```python
import torch

def _softmax(x, axis=-1):
    return torch.softmax(x, dim=axis)
def _gelu(x):
    return torch.nn.functional.gelu(x, approximate="tanh")
def _silu(x):
    return torch.nn.functional.silu(x)
def _sigmoid(x):
    return torch.sigmoid(x)
def _layernorm(x, axis=-1, eps=1e-5):
    m = x.mean(dim=axis, keepdim=True)
    v = x.var(dim=axis, keepdim=True, unbiased=False)
    return (x - m) / torch.sqrt(v + eps)
def _scatter_add(tgt, idx, src, axis=0):
    return tgt.clone().index_add_(axis, idx, src)
def _segment_sum(src, seg, n):
    out = torch.zeros((n,) + src.shape[1:], dtype=src.dtype)
    return out.index_add_(0, seg, src)
def _pad(x, pw):
    flat = tuple(v for pair in reversed(pw) for v in pair)
    return torch.nn.functional.pad(x, flat)

kernel_name = 'parallel_sum__compressed_kv_cla__mixer_channel_mlp__prompt'

def setup_inputs():

    _w = (lambda a: (lambda t: t.to(torch.bfloat16) if t.is_floating_point() else t)(torch.as_tensor(a)))
    def _A_setup():
        B, H, Sq, Sk, D, M = 1, 32, 2048, 2048, 128, 512
        Dc = 4 * D
        return {
            "x": _w((lambda *s: torch.randn(*s, dtype=torch.bfloat16) * 0.05)(B, Sq, M)),
            "c_kv": _w((lambda *s: torch.randn(*s, dtype=torch.bfloat16) * 0.4)(B, Sk, Dc)),
            "w_q": _w((lambda *s: torch.randn(*s, dtype=torch.bfloat16) * 3.2)(M, H, D) * (M ** -0.5)),
            "w_uk": _w((lambda *s: torch.randn(*s, dtype=torch.bfloat16) * 3.2)(Dc, H, D) * (Dc ** -0.5)),
            "w_uv": _w((lambda *s: torch.randn(*s, dtype=torch.bfloat16) * 0.4)(Dc, H, D) * (Dc ** -0.5)),
            "w_o": _w((lambda *s: torch.randn(*s, dtype=torch.bfloat16) * 0.4)(H, D, M) * ((H * D) ** -0.5)),
        }
    _A_in = _A_setup()

    def _B_setup():
        B, S, D, F = 1, 2048, 512, 1376
        return {
            "x": _w((lambda *s: torch.randn(*s, dtype=torch.bfloat16) * 0.05)(B, S, D)),
            "w1": _w((lambda *s: torch.randn(*s, dtype=torch.bfloat16) * 0.8)(D, F) * (D ** -0.5)),
            "b1": _w((lambda *s: torch.randn(*s, dtype=torch.bfloat16) * 0.4)(F)),
            "w2": _w((lambda *s: torch.randn(*s, dtype=torch.bfloat16) * 0.05)(F, D) * (F ** -0.5)),
            "b2": _w((lambda *s: torch.randn(*s, dtype=torch.bfloat16) * 0.05)(D)),
        }
    _B_in = _B_setup()

    return {
        "A_x": _A_in["x"],
        "A_c_kv": _A_in["c_kv"],
        "A_w_q": _A_in["w_q"],
        "A_w_uk": _A_in["w_uk"],
        "A_w_uv": _A_in["w_uv"],
        "A_w_o": _A_in["w_o"],
        "B_x": _B_in["x"],
        "B_w1": _B_in["w1"],
        "B_b1": _B_in["b1"],
        "B_w2": _B_in["w2"],
        "B_b2": _B_in["b2"],
    }

def reference(A_x, A_c_kv, A_w_q, A_w_uk, A_w_uv, A_w_o, B_x, B_w1, B_b1, B_w2, B_b2):
    def _A_ref(x, c_kv, w_q, w_uk, w_uv, w_o):
        B, Sq, M = x.shape[0], x.shape[1], x.shape[2]
        Sk = c_kv.shape[1]
        H, D = w_q.shape[1], w_q.shape[2]
        q = torch.einsum("bqm,mhd->bhqd", x, w_q)
        k = torch.einsum("bkc,chd->bhkd", c_kv, w_uk)
        v = torch.einsum("bkc,chd->bhkd", c_kv, w_uv)
        scores = torch.einsum("bhqd,bhkd->bhqk", q, k) * (D ** -0.5)
        off = Sk - Sq
        qi = torch.arange(Sq)[:, None]
        kj = torch.arange(Sk)[None, :]
        cmask = kj <= (qi + off)
        scores = torch.where(cmask[None, None], scores, -1e9)
        p = _softmax(scores, axis=-1)
        ctx = torch.einsum("bhqk,bhkd->bhqd", p, v)
        return torch.einsum("bhqd,hdm->bqm", ctx, w_o)

    def _B_ref(x, w1, b1, w2, b2):
        y = _layernorm(x, axis=-1)
        h = _gelu(torch.einsum("bsd,df->bsf", y, w1) + b1)
        return torch.einsum("bsf,fd->bsd", h, w2) + b2

    x = A_x
    xn = _layernorm(x, axis=-1)
    return x + _A_ref(xn, A_c_kv, A_w_q, A_w_uk, A_w_uv, A_w_o) + _B_ref(xn, B_w1, B_b1, B_w2, B_b2)
```

```python
from dsl import *

XN_OFF = 0
YF_OFF = 2 << 20
KF_OFF = 4 << 20
VF_OFF = 20 << 20
CTX_OFF = 36 << 20
HF_OFF = 52 << 20
WS_BYTES = 64 << 20

KA = dict(x=0, ckv=8, wq=16, wuk=24, wuv=32, wo=40, bx=48, w1=56, b1=64, w2=72, b2=80, out=88, dbg=96, ws=104)
SZ = dict(x=2 << 20, ckv=2 << 20, wq=4 << 20, wuk=4 << 20, wuv=4 << 20, wo=4 << 20, w1=512 * 1376 * 2,
          b1=1376 * 2, w2=1376 * 512 * 2, b2=1024, out=2 << 20, ws=WS_BYTES)

class Q:
    def __init__(self, k, name, maxn):
        self.k, self.name, self.maxn = k, name, maxn
        self.q = []
        self.ever = {}
    def issue(self, tag=None):
        self.q.append(tag)
        self.ever[tag] = self.ever.get(tag, 0) + 1
    def need(self, *tags, cnt=None):
        if cnt:
            for t, c in zip(tags, cnt): assert self.ever.get(t, 0) == c, (t, c, self.ever.get(t, 0))
        last = -1
        for i, t in enumerate(self.q):
            if t in tags: last = i
        if last < 0: return
        n = len(self.q) - 1 - last
        n = min(n, self.maxn)
        self.k.op("s_waitcnt", f"{self.name}({n})")
        self.q = self.q[len(self.q) - n:] if n else []
    def drain(self):
        self.k.op("s_waitcnt", f"{self.name}(0)")
        self.q = []

def load_srd(k, dst, name, tmp):
    k.op("s_mov_b32", S(dst), S(tmp))
    k.op("s_and_b32", S(dst + 1), S(tmp + 1), "0xffff")
    k.op("s_mov_b32", S(dst + 2), hex(SZ[name]))
    k.op("s_mov_b32", S(dst + 3), "0x20000")

def wave_sum(k, v, t):
    k.nop(2)
    k.op("v_add_f32_dpp", V(v), V(v), V(v), mods="quad_perm:[1,0,3,2] row_mask:0xf bank_mask:0xf")
    k.nop(2)
    k.op("v_add_f32_dpp", V(v), V(v), V(v), mods="quad_perm:[2,3,0,1] row_mask:0xf bank_mask:0xf")
    k.nop(2)
    k.op("v_add_f32_dpp", V(v), V(v), V(v), mods="row_half_mirror row_mask:0xf bank_mask:0xf")
    k.nop(2)
    k.op("v_add_f32_dpp", V(v), V(v), V(v), mods="row_mirror row_mask:0xf bank_mask:0xf")
    k.op("v_mov_b32", V(t), V(v))
    k.nop(2)
    k.op("v_permlane16_swap_b32", V(v), V(t))
    k.op("v_add_f32", V(v), V(v), V(t))
    k.op("v_mov_b32", V(t), V(v))
    k.nop(2)
    k.op("v_permlane32_swap_b32", V(v), V(t))
    k.op("v_add_f32", V(v), V(v), V(t))

def rbf(k, dst, src):
    k.op("v_cvt_pk_bf16_f32", V(dst), V(src), V(src))
    k.op("v_lshlrev_b32", V(dst), 16, V(dst))

def descriptor(k, vgpr=None, sgpr=None, accum=None):
    mv, ms, ma = k.maxregs()
    vgpr = vgpr or mv
    sgpr = sgpr or ms
    assert mv <= vgpr and ms <= sgpr, (mv, ms)
    acc = accum or ((mv + 3) // 4 * 4)
    if ma: assert vgpr >= acc + ma, (vgpr, acc, ma)
    return f""".amdhsa_kernel {k.name}
  .amdhsa_next_free_vgpr {vgpr}
  .amdhsa_next_free_sgpr {sgpr}
  .amdhsa_accum_offset {acc}
  .amdhsa_group_segment_fixed_size 0
  .amdhsa_kernarg_size 112
  .amdhsa_user_sgpr_count 2
  .amdhsa_user_sgpr_kernarg_segment_ptr 1
  .amdhsa_system_sgpr_workgroup_id_x 1
  .amdhsa_float_denorm_mode_32 3
.end_amdhsa_kernel
"""

STAMP_OFF = 60 << 20
class Stamps:
    def __init__(self, k, enabled, base, kidx, lq=None, maxn=16):
        self.k, self.en, self.base, self.n, self.kidx, self.lq, self.m = k, enabled, base, 0, kidx, lq, maxn
    def stamp(self):
        if not self.en: return
        k = self.k
        assert self.n < self.m
        k.op("s_memrealtime", S(self.base + 2 * self.m, 2))
        k.op("s_memtime", S(self.base + 2 * self.m + 2, 2))
        if self.lq: self.lq.drain()
        else: k.wait(lgkm=0)
        k.op("s_mov_b32", S(self.base + self.n), S(self.base + 2 * self.m))
        k.op("s_mov_b32", S(self.base + self.m + self.n), S(self.base + 2 * self.m + 2))
        self.n += 1
    def flush(self, sWS, sW, vt):
        if not self.en: return
        k = self.k
        t = self.base + 2 * self.m
        k.op("s_lshl_b32", S(t), "s2", 3)
        k.op("s_add_u32", S(t), S(t), S(sW))
        k.op("s_lshl_b32", S(t), S(t), 7)
        k.op("s_add_u32", S(t), S(t), STAMP_OFF + self.kidx * (1 << 18))
        k.op("v_mov_b32", V(vt + 1), 0)
        for i in range(self.n):
            k.op("v_mov_b32", V(vt), S(self.base + i))
            k.op("buffer_store_dword", V(vt), V(vt + 1), S(sWS, 4), S(t), mods=f"offen offset:{4*i}")
            k.op("v_mov_b32", V(vt), S(self.base + self.m + i))
            k.op("buffer_store_dword", V(vt), V(vt + 1), S(sWS, 4), S(t), mods=f"offen offset:{64+4*i}")

class FillQ:
    def __init__(self, k, on_emit=None):
        self.k, self.q, self.last, self.need, self.on_emit = k, [], 0, 0, on_emit
    def add_kern(self, side):
        self.q += list(side.ins)
    def add(self, f):
        self.q.append(f)
    def count_since(self):
        return sum(i.states() for i in self.k.ins[self.last:] if i.mn)
    def emit(self, n=1, force=False):
        done = 0
        while self.q and done < n:
            it = self.q[0]
            if isinstance(it, Ins) and it.mn == "s_nop":
                self.need = max(self.need, it.states()); self.q.pop(0); continue
            if self.need:
                have = self.count_since()
                if have < self.need:
                    if not force: return done
                    self.k.nop(self.need - have)
                self.need = 0
            self.q.pop(0)
            if isinstance(it, Ins):
                self.k.ins.append(it)
                if self.on_emit: self.on_emit(it)
            else:
                it()
            self.last = len(self.k.ins)
            done += 1
        return done
    def flush(self):
        while self.q: self.emit(1, force=True)
    def __len__(self): return len(self.q)
```

```python
import re, sys

def V(i, n=1):
    return f"v{i}" if n == 1 else f"v[{i}:{i+n-1}]"
def S(i, n=1):
    return f"s{i}" if n == 1 else f"s[{i}:{i+n-1}]"
def A(i, n=1):
    return f"a{i}" if n == 1 else f"a[{i}:{i+n-1}]"

_reg_re = re.compile(r"^(-?)(?:abs\()?([vsa])(?:(\d+)|\[(\d+):(\d+)\])\)?$")
def regs_of(opnd):
    o = opnd.strip()
    if o == "vcc": return {("s", 106), ("s", 107)}
    if o == "vcc_lo": return {("s", 106)}
    if o == "vcc_hi": return {("s", 107)}
    if o == "exec": return {("s", 126), ("s", 127)}
    if o == "m0": return {("s", 124)}
    m = _reg_re.match(o)
    if not m: return set()
    k = m.group(2)
    if m.group(3) is not None:
        return {(k, int(m.group(3)))}
    return {(k, i) for i in range(int(m.group(4)), int(m.group(5)) + 1)}

TRANS = ("v_exp_f32", "v_log_f32", "v_rcp_f32", "v_rsq_f32", "v_sqrt_f32", "v_sin_f32", "v_cos_f32")

class Ins:
    __slots__ = ("mn", "ops", "mods", "label", "comment", "w", "r", "kind", "passes", "idx", "raw")
    def __init__(self, mn, ops=(), mods="", label=None, comment=None, raw=None):
        self.mn, self.ops, self.mods, self.label, self.comment, self.raw = mn, list(ops), mods, label, comment, raw
        self.w, self.r = set(), set()
        self.kind = "other"; self.passes = 0
        if mn: self.classify()
    def classify(self):
        mn, ops = self.mn, self.ops
        R = lambda i: regs_of(ops[i]) if i < len(ops) else set()
        allr = lambda a: set().union(*[R(i) for i in range(a, len(ops))]) if len(ops) > a else set()
        if mn.startswith("v_mfma"):
            self.kind = "mfma"
            self.passes = 8 if "32x32x16" in mn else 4 if "16x16x32" in mn else None
            assert self.passes
            self.w = R(0); self.r = allr(1)
        elif mn.startswith("v_cmp"):
            self.kind = "valu"; self.w = R(0); self.r = allr(1)
        elif mn in ("v_readfirstlane_b32", "v_readlane_b32"):
            self.kind = "valu"; self.w = R(0); self.r = allr(1)
        elif mn.startswith("v_permlane") and "swap" in mn:
            self.kind = "valu"; self.w = R(0) | R(1); self.r = R(0) | R(1)
        elif mn.startswith("v_"):
            self.kind = "valu"; self.w = R(0); self.r = allr(1)
            if mn.startswith("v_fmac") or mn.startswith("v_mac") or mn.startswith("v_dot2c"):
                self.r |= R(0)
            if mn.startswith("v_add_co") or mn.startswith("v_sub_co") or mn.startswith("v_addc_co"):
                self.w |= R(1); self.r = allr(2)
            if mn == "v_cndmask_b32" and len(ops) == 3:
                self.r |= regs_of("vcc")
        elif mn.startswith("ds_read") or mn.startswith("ds_bpermute") or mn.startswith("ds_swizzle"):
            self.kind = "ds"; self.w = R(0); self.r = allr(1)
        elif mn.startswith("ds_write"):
            self.kind = "ds"; self.r = allr(0)
        elif mn.startswith("buffer_load") or mn.startswith("global_load"):
            if " lds" in (" " + self.mods) or "_lds_" in mn:
                self.kind = "dma"; self.r = allr(0) | regs_of("m0")
            else:
                self.kind = "vmem"; self.w = R(0); self.r = allr(1)
        elif mn.startswith("buffer_store") or mn.startswith("global_store") or mn.startswith("buffer_atomic") or mn.startswith("global_atomic"):
            self.kind = "vstore"; self.r = allr(0)
            if "atomic" in mn and "sc0" in self.mods:
                self.kind = "vmem"; self.w = R(0)
        elif mn in ("buffer_wbl2", "buffer_inv"):
            self.kind = "vstore"
        elif mn.startswith("s_load") or mn in ("s_memtime", "s_memrealtime"):
            self.kind = "smem"; self.w = R(0); self.r = allr(1)
        elif mn.startswith("s_cmp") or mn.startswith("s_bitcmp"):
            self.kind = "salu"; self.r = allr(0)
        elif mn.startswith("s_cbranch") or mn == "s_branch":
            self.kind = "branch"
            if "vcc" in mn: self.r = regs_of("vcc")
        elif mn in ("s_waitcnt", "s_nop", "s_barrier", "s_endpgm", "s_setprio", "s_sleep"):
            self.kind = "ctl"
        elif mn.startswith("s_"):
            self.kind = "salu"; self.w = R(0); self.r = allr(1)
            if "saveexec" in mn:
                self.w |= regs_of("exec"); self.r |= regs_of("exec")
            if mn in ("s_addk_i32", "s_mulk_i32"): self.r |= R(0)
        else:
            raise ValueError("unknown mnemonic " + mn)
    def states(self):
        if self.mn == "s_nop": return int(self.ops[0], 0) + 1
        return 1
    def text(self):
        if self.raw is not None: return self.raw
        if self.label: return self.label + ":"
        s = "  " + self.mn
        if self.ops: s += " " + ", ".join(self.ops)
        if self.mods: s += " " + self.mods
        if self.comment: s += "   ; " + self.comment
        return s

class Kern:
    def __init__(self, name):
        self.name = name
        self.ins = []
        self.nlab = 0
    def op(self, mn, *ops, mods="", c=None, dummy=False):
        i = Ins(mn, [str(o) for o in ops], mods, comment=c)
        if dummy: i.w = set()
        self.ins.append(i)
        return i
    def label(self, l):
        self.ins.append(Ins(None, label=l))
    def newlabel(self, p="L"):
        self.nlab += 1
        return f"{self.name}_{p}{self.nlab}"
    def comment(self, t):
        self.ins.append(Ins(None, raw="  ; " + t))
    def raw(self, t):
        self.ins.append(Ins(None, raw=t))
    def wait(self, vm=None, lgkm=None):
        s = []
        if vm is not None: s.append(f"vmcnt({vm})")
        if lgkm is not None: s.append(f"lgkmcnt({lgkm})")
        self.op("s_waitcnt", " ".join(s))
    def nop(self, n):
        while n > 0:
            k = min(n, 16); self.op("s_nop", k - 1); n -= k
    def text(self):
        return "\n".join(i.text() for i in self.ins)

    def _cfg(self):
        code = [i for i in self.ins if i.mn or i.label]
        labs = {}
        real = []
        for i in code:
            if i.label: labs[i.label] = len(real)
            else: i.idx = len(real); real.append(i)
        succ = []
        for i in real:
            n = i.idx
            if i.mn == "s_endpgm": succ.append([])
            elif i.mn == "s_branch": succ.append([labs[i.ops[0]]])
            elif i.kind == "branch": succ.append([n + 1, labs[i.ops[0]]])
            else: succ.append([n + 1])
        return real, succ

    def check_hazards(self):
        real, succ = self._cfg()
        errs = []
        vg = lambda s: {x for x in s if x[0] in "va"}
        sg = lambda s: {x for x in s if x[0] == "s"}
        def need(p, c):
            n = 0
            if p.kind == "valu":
                wv, ws = vg(p.w), sg(p.w)
                if c.kind == "mfma" and wv & c.r: n = max(n, 2)
                if p.mn in TRANS and c.kind == "valu" and c.mn not in TRANS and wv & c.r: n = max(n, 1)
                if p.mn in TRANS and c.kind in ("vstore", "ds", "vmem", "dma") and wv & c.r: n = max(n, 1)
                if c.mn in ("v_readfirstlane_b32", "v_readlane_b32") and wv & c.r: n = max(n, 1)
                if c.mn.startswith("v_permlane") and wv & c.r: n = max(n, 2)
                if c.kind == "valu" and ("row_" in c.mods or "quad_perm" in c.mods or "wave_" in c.mods) and wv & c.r: n = max(n, 2)
                if ws:
                    if c.kind == "valu" and ws & c.r: n = max(n, 4 if c.mn in ("v_readlane_b32", "v_writelane_b32") else 2)
                    if c.kind in ("vmem", "vstore", "dma") and ws & c.r: n = max(n, 5)
                    if c.kind in ("salu", "branch") and ws & c.r: n = max(n, 1)
            if p.kind == "mfma":
                big = {4: 8, 8: 12}[p.passes]
                if c.kind == "valu" and p.w & (c.r | c.w): n = max(n, big)
                if c.kind in ("vmem", "vstore", "ds", "dma") and p.w & (c.r | c.w): n = max(n, big)
                if c.kind == "mfma":
                    ab = regs_of(c.ops[1]) | regs_of(c.ops[2])
                    cc = regs_of(c.ops[3])
                    if p.w & ab: n = max(n, big)
                    if p.w & cc:
                        if not (cc == p.w and c.mn == p.mn): n = max(n, big - 2)
                    elif p.w & c.w: n = max(n, big)
                cc = regs_of(p.ops[3])
                if c.kind == "valu" and cc & c.w: n = max(n, {4: 3, 8: 7}[p.passes])
            if p.kind == "salu" and ("s", 124) in p.w and c.kind == "dma": n = max(n, 1)
            if p.kind == "vstore" and ("x4" in p.mn or "x3" in p.mn):
                data = regs_of(p.ops[0]) if p.mn.startswith("buffer") else regs_of(p.ops[1])
                if c.kind in ("valu", "mfma") and data & c.w: n = max(n, 2)
                elif data & c.w: n = max(n, 1)
            if p.kind == "salu" and ("s", 126) in p.w and c.kind == "mfma": n = max(n, 0)
            return n
        MAXD = 12
        for p in real:
            if p.kind not in ("valu", "mfma", "salu", "vstore"): continue
            if p.kind == "salu" and ("s", 124) not in p.w: continue
            stack = [(s, 0) for s in succ[p.idx]]
            seen = {}
            while stack:
                j, d = stack.pop()
                if j >= len(real): continue
                if j in seen and seen[j] <= d: continue
                seen[j] = d
                c = real[j]
                n = need(p, c)
                if n > d:
                    errs.append(f"HAZARD need {n} have {d}: [{p.idx}] {p.text().strip()}  ->  [{c.idx}] {c.text().strip()}")
                d2 = d + c.states()
                if d2 < MAXD:
                    for s in succ[j]: stack.append((s, d2))
        return errs

    def check_waits(self, maxstates=400000):
        real, succ = self._cfg()
        errs = set()
        stack = [(0, (), ())]
        seen = set()
        while stack:
            j, lg, vm = stack.pop()
            if j >= len(real): continue
            key = (j, lg, vm)
            if key in seen: continue
            seen.add(key)
            if len(seen) > maxstates:
                errs.add("too many states"); break
            c = real[j]
            touched = c.r | c.w
            for q, nm in ((lg, "lgkm"), (vm, "vm")):
                for (k, dst) in q:
                    if dst & touched:
                        errs.add(f"WAIT({nm}) missing: [{k}] {real[k].text().strip()}  ->  [{j}] {c.text().strip()}")
            if c.mn == "s_waitcnt":
                m = re.search(r"vmcnt\((\d+)\)", c.ops[0])
                if m:
                    n = int(m.group(1)); vm = vm[len(vm) - n:] if n < len(vm) else vm
                    if n == 0: vm = ()
                m = re.search(r"lgkmcnt\((\d+)\)", c.ops[0])
                if m:
                    n = int(m.group(1))
                    if any(real[k].kind == "smem" for k, _ in lg):
                        if n == 0: lg = ()
                    else:
                        lg = lg[len(lg) - n:] if n < len(lg) else lg
                        if n == 0: lg = ()
            elif c.kind in ("ds", "smem"):
                lg = lg + ((j, frozenset(c.w)),)
                if len(lg) > 40: lg = lg[-40:]
            elif c.kind in ("vmem", "vstore", "dma"):
                e = (j, frozenset(c.w)) if c.w else (-1, frozenset())
                vm = vm + (e,)
                while vm and not vm[0][1]: vm = vm[1:]
                if len(vm) > 70: vm = vm[-70:]
            for s in succ[j]: stack.append((s, lg, vm))
        return sorted(errs)

    def maxregs(self):
        mv = ms = ma = -1
        for i in self.ins:
            if not i.mn: continue
            for k, r in i.r | i.w:
                if k == "v": mv = max(mv, r)
                elif k == "a": ma = max(ma, r)
                elif k == "s" and r < 102: ms = max(ms, r)
        return mv + 1, ms + 1, ma + 1
```

```python
from common import *
from k1_v1 import layernorm
CODE_PF = 20480

def build_k1(D=4, store_mods="", stamps=False, prefetch=True, twice=False, noln=False, pfinit=0, pfstart=1, pfcode=False, pfn=7, pfper=2, pfvdelay=4, pfroles="v"):
    k = Kern("k1_kernel")
    vq, lq = Q(k, "vmcnt", 63), Q(k, "lgkmcnt", 15)
    stp = Stamps(k, stamps, 60, 0, lq)
    sX, sC, sWK, sWV, sWS = 8, 12, 16, 20, 24
    sW, sH, sJ = 28, 29, 30
    sT0, sT1, sT2 = 31, 32, 33
    sAm0, sWm0 = 34, 35
    sSo, sSo2 = 36, 37
    sKst, sVst = 38, 39
    sR = 50
    vL = 1
    vKo, vVo = 2, 3
    TA = 16; AA = 24; VA = 26; VW = 30
    WF = 36
    LNR = 68
    ACC2 = 68 + 32
    ACCV = 64 + 0
    ACC = 128
    k.op("s_cmp_ge_u32", "s2", 256)
    k.op("s_cbranch_scc1", "k1_end")
    k.op("s_load_dwordx4", S(40, 4), S(0, 2), KA["x"])
    k.op("s_load_dwordx4", S(44, 4), S(0, 2), KA["wuk"])
    k.op("s_load_dwordx2", S(48, 2), S(0, 2), KA["ws"])
    k.op("v_and_b32", V(vL), 63, "v0")
    k.op("v_lshrrev_b32", V(4), 6, "v0")
    k.op("s_and_b32", S(sT0), "s2", 7)
    k.op("v_readfirstlane_b32", S(sW), V(4))
    k.op("s_lshr_b32", S(sT1), "s2", 3)
    k.op("s_and_b32", S(sT2), S(sT1), 3)
    k.op("s_lshl_b32", S(sH), S(sT0), 2)
    k.op("s_add_u32", S(sH), S(sH), S(sT2))
    k.op("s_lshr_b32", S(sJ), S(sT1), 2)
    k.op("v_lshrrev_b32", V(4), 3, V(vL))
    k.op("v_and_b32", V(5), 7, V(vL))
    k.op("v_lshrrev_b32", V(6), 4, V(vL))
    k.op("v_xor_b32", V(7), V(5), V(6))
    k.op("v_lshlrev_b32", V(7), 4, V(7))
    k.op("v_lshl_add_u32", V(7), V(4), 10, V(7))
    k.op("s_lshl_b32", S(sT0), S(sJ), 18)
    k.op("s_lshl_b32", S(sT1), S(sW), 16)
    k.op("s_add_u32", S(sT0), S(sT0), S(sT1))
    k.op("v_add_u32", V(VA), S(sT0), V(7))
    k.op("v_xor_b32", V(VA + 1), 64, V(VA))
    k.op("v_add_u32", V(VA + 1), 7168, V(VA + 1))
    k.op("v_add_u32", V(VA + 2), 2 * 7168, V(VA))
    k.op("v_add_u32", V(VA + 3), 2 * 7168, V(VA + 1))
    k.op("v_lshlrev_b32", V(7), 1, V(6))
    k.op("v_and_b32", V(8), 15, V(vL))
    k.op("v_xor_b32", V(7), V(7), V(8))
    k.op("v_lshlrev_b32", V(7), 4, V(7))
    k.op("v_lshl_add_u32", V(7), V(6), 13, V(7))
    k.op("s_lshl_b32", S(sT0), S(sW), 17)
    k.op("s_lshl_b32", S(sT1), S(sH), 8)
    k.op("s_add_u32", S(sT0), S(sT0), S(sT1))
    k.op("v_add_u32", V(VW), S(sT0), V(7))
    k.op("v_add_u32", V(VW + 1), 32768 - 1024, V(VW))
    k.op("v_xor_b32", V(VW + 2), 128, V(VW))
    k.op("v_add_u32", V(VW + 2), 2 * (32768 - 1024), V(VW + 2))
    k.op("v_add_u32", V(VW + 3), 32768 - 1024, V(VW + 2))
    k.op("s_mul_i32", S(sAm0), S(sW), 24576)
    k.op("s_add_u32", S(sAm0), S(sAm0), 65536)
    k.op("s_lshl_b32", S(sWm0), S(sW), 12)
    k.wait(lgkm=0)
    stp.stamp()
    load_srd(k, sC, "ckv", 42); load_srd(k, sWK, "wuk", 44)

    def dma_w_items(s):
        if s < 8: so, srd = s * 524288, sWK
        else: so, srd = ((s - 8) % 4) * 1048576 + ((s - 8) // 4) * 128, sWV
        def setup():
            k.op("s_add_u32", "m0", S(sWm0), (s % 4) * 16384)
            k.op("s_mov_b32", S(sSo), so)
        def ld(i):
            def f():
                k.op("buffer_load_dwordx4", V(VW + i), S(srd, 4), S(sSo), mods=f"offen offset:{i*1024} lds")
                vq.issue(("W", s))
            return f
        return [setup] + [ld(i) for i in range(4)]
    def dma_a_items(s, u):
        def setup():
            k.op("s_add_u32", "m0", S(sAm0), (s % 3) * 8192 + u * 4096)
            k.op("s_mov_b32", S(sSo), s * 128 + u * 32768)
        def ld(i):
            def f():
                k.op("buffer_load_dwordx4", V(VA + i), S(sC, 4), S(sSo), mods=f"offen offset:{i*1024} lds")
                vq.issue(("A", s))
            return f
        return [setup] + [ld(i) for i in range(4)]
    def dma_w(s):
        for f in dma_w_items(s): f()
    def dma_a(s, u):
        for f in dma_a_items(s, u): f()
    sPF, sPFo, sPFs, vPF = 56, 54, 55, 34
    if prefetch:
        k.op("s_getpc_b64", S(96, 2))
        k.op("s_cmp_eq_u32", S(sW), 0)
        k.op("s_cselect_b32", S(sPF), S(42), S(44))
        k.op("s_cselect_b32", S(sPF + 1), S(43), S(45))
        k.op("s_cmp_eq_u32", S(sW), 2)
        k.op("s_cselect_b32", S(sPF), S(46), S(sPF))
        k.op("s_cselect_b32", S(sPF + 1), S(47), S(sPF + 1))
        k.op("s_cmp_eq_u32", S(sW), 3)
        k.op("s_cselect_b32", S(sPF), S(96), S(sPF))
        k.op("s_cselect_b32", S(sPF + 1), S(97), S(sPF + 1))
        k.op("s_mov_b32", S(sPF + 2), hex(4 << 20))
        k.op("s_cselect_b32", S(sPF + 2), hex(CODE_PF) if pfcode else "0", S(sPF + 2))
        k.op("s_and_b32", S(sPF + 1), S(sPF + 1), "0xffff")
        k.op("s_cmp_eq_u32", S(sW), 0)
        k.op("s_cselect_b32", S(sPF + 2), hex(2 << 20) if "a" in pfroles else "0", S(sPF + 2))
        if "k" not in pfroles:
            k.op("s_cmp_eq_u32", S(sW), 1)
            k.op("s_cselect_b32", S(sPF + 2), "0", S(sPF + 2))
        k.op("s_mov_b32", S(sPF + 3), "0x20000")
        k.op("s_lshr_b32", S(sT1), "s2", 3)
        k.op("v_bfe_u32", V(7), V(vL), 3, 1)
        k.op("v_lshlrev_b32", V(7), 13, V(7))
        k.op("v_lshl_add_u32", V(7), V(5), 7, V(7))
        k.op("s_lshl_b32", S(sT2), S(sT1), 14)
        k.op("s_and_b32", S(sT0), "s2", 7)
        k.op("s_lshl_b32", S(sT0), S(sT0), 10)
        k.op("s_add_u32", S(sT2), S(sT2), S(sT0))
        k.op("v_add_u32", V(7), S(sT2), V(7))
        k.op("s_lshl_b32", S(sT2), S(sT1), 16)
        k.op("v_lshlrev_b32", V(9), 10, V(vL))
        k.op("v_add_u32", V(9), S(sT2), V(9))
        k.op("v_lshlrev_b32", V(vPF), 7, V(vL))
        k.op("s_cmp_eq_u32", S(sW), 0)
        k.op("s_cselect_b64", "vcc", "-1", "0")
        k.op("s_mov_b32", S(sPFs), 524288)
        k.op("s_cselect_b32", S(sPFs), 128, S(sPFs))
        k.op("v_cndmask_b32", V(7), V(7), V(9), "vcc")
        k.op("s_cmp_eq_u32", S(sW), 3)
        k.op("s_cselect_b64", "vcc", "-1", "0")
        k.op("s_cselect_b32", S(sPFs), 8192, S(sPFs))
        k.op("v_cndmask_b32", V(vPF), V(7), V(vPF), "vcc")
        k.op("s_cmp_lt_u32", S(sW), 2)
        k.op("s_cselect_b32", S(sPFo), S(sPFs), 0)
        k.op("s_mul_i32", S(sPFo), S(sPFo), pfstart)
        k.op("s_cmp_eq_u32", S(sW), 2)
        k.op("s_cselect_b32", S(sPFo), hex((-pfvdelay * 524288) & 0xffffffff), S(sPFo))
    def pf():
        if not prefetch: return
        k.op("buffer_load_dword", V(35), V(vPF), S(sPF, 4), S(sPFo), mods="offen", dummy=True); vq.issue()
        k.op("s_add_u32", S(sPFo), S(sPFo), S(sPFs))
    dma_w(0); dma_a(0, 0); dma_a(0, 1)
    for _ in range(pfinit): pf()
    dma_w(1); dma_a(1, 0); dma_a(1, 1)
    stp.stamp()
    load_srd(k, sX, "x", 40); load_srd(k, sWV, "wuv", 46); load_srd(k, sWS, "ws", 48)
    k.op("v_bfe_u32", V(10), V(vL), 2, 2)
    k.op("v_and_b32", V(11), 3, V(vL))
    k.op("v_and_b32", V(12), 1, V(6))
    k.op("v_lshl_or_b32", V(13), V(12), 2, V(10))
    k.op("v_lshl_add_u32", V(14), V(6), 3, V(10))
    k.op("v_lshlrev_b32", V(15), 8, V(14))
    k.op("v_lshl_add_u32", V(15), V(11), 3, V(15))
    for nb in range(8):
        k.op("v_xor_b32", V(7), nb, V(13))
        k.op("v_lshl_add_u32", V(TA + nb), V(7), 5, V(15))
    k.op("v_lshrrev_b32", V(7), 1, V(8))
    k.op("v_xor_b32", V(7), V(7), V(6))
    k.op("v_lshlrev_b32", V(7), 4, V(7))
    k.op("v_lshl_add_u32", V(7), V(8), 7, V(7))
    k.op("v_add_u32", V(AA), S(sAm0), V(7))
    k.op("v_xor_b32", V(AA + 1), 64, V(AA))
    k.op("v_lshrrev_b32", V(7), 1, V(6))
    k.op("v_lshlrev_b32", V(vKo), 9, V(7))
    k.op("v_lshl_add_u32", V(vKo), V(12), 10, V(vKo))
    k.op("v_lshrrev_b32", V(4), 3, V(8))
    k.op("v_lshl_add_u32", V(vKo), V(4), 8, V(vKo))
    k.op("v_and_b32", V(4), 7, V(8))
    k.op("v_lshl_add_u32", V(vKo), V(4), 4, V(vKo))
    k.op("v_lshlrev_b32", V(vVo), 12, V(7))
    k.op("v_lshl_add_u32", V(vVo), V(12), 9, V(vVo))
    k.op("v_lshl_add_u32", V(vVo), V(8), 4, V(vVo))
    k.op("s_lshl_b32", S(sKst), S(sH), 19)
    k.op("s_lshl_b32", S(sT1), S(sJ), 16)
    k.op("s_add_u32", S(sKst), S(sKst), S(sT1))
    k.op("s_lshl_b32", S(sT1), S(sW), 14)
    k.op("s_add_u32", S(sKst), S(sKst), S(sT1))
    k.op("s_add_u32", S(sVst), S(sKst), VF_OFF)
    k.op("s_add_u32", S(sKst), S(sKst), KF_OFF)
    k.op("s_lshl_b32", S(sR), "s2", 3)
    k.op("s_lshl_b32", S(sT1), S(sW), 1)
    k.op("s_add_u32", S(sR), S(sR), S(sT1))
    k.op("s_lshr_b32", S(sR + 1), S(sR), 4)
    k.op("s_lshl_b32", S(sR + 1), S(sR + 1), 14)
    k.op("s_and_b32", S(sR + 2), S(sR), 15)
    k.op("s_lshl_b32", S(sR + 2), S(sR + 2), 4)
    k.op("s_add_u32", S(sR + 1), S(sR + 1), S(sR + 2))
    k.op("s_lshl_b32", S(sR + 2), S(sR), 3)
    k.op("s_add_u32", S(sR + 2), S(sR + 2), YF_OFF)
    k.op("s_lshl_b32", S(sR), S(sR), 10)
    vLs, vLd, vLz = LNR + 28, LNR + 29, LNR + 30
    k.op("v_mov_b32", V(vLz), 0)
    k.op("v_lshlrev_b32", V(vLs), 4, V(vL))
    k.op("v_lshrrev_b32", V(vLd), 2, V(vL))
    k.op("v_lshlrev_b32", V(vLd), 10, V(vLd))
    k.op("v_lshl_add_u32", V(vLd), V(11), 8, V(vLd))
    X0, X1 = 100, 104
    def ln_load():
        k.op("buffer_load_dwordx4", V(X0, 4), V(vLs), S(sX, 4), S(sR), mods="offen"); vq.issue("ln")
        k.op("buffer_load_dwordx4", V(X1, 4), V(vLs), S(sX, 4), S(sR), mods="offen offset:1024"); vq.issue("ln")
    lnq = FillQ(k, on_emit=lambda i: vq.issue() if i.kind == "vstore" else None)
    q1 = FillQ(k)
    q2 = FillQ(k, on_emit=lambda i: vq.issue() if i.kind == "vstore" else None)
    if not noln: lnq.add(lambda: vq.need("ln"))
    for r, X in enumerate((X0, X1) if not noln else ()):
        ln = Kern("ln")
        layernorm(ln, X, LNR + 4, LNR + 8, LNR + 16)
        layernorm(ln, LNR + 4, LNR + 24, LNR + 8, LNR + 16, stats_only=True)
        ln.op("buffer_store_dwordx4", V(LNR + 4, 4), V(vLd), S(sWS, 4), S(sR + 1), mods=f"offen offset:{16*r}")
        ln.op("buffer_store_dwordx2", V(LNR + 24, 2), V(vLz), S(sWS, 4), S(sR + 2), mods=f"offen offset:{8*r}")
        ln.nop(2)
        lnq.add_kern(ln)

    def frag_info(n):
        s, i = n >> 4, n & 15
        if s < 8:
            ks, nb = i >> 3, i & 7
            return s, s * 2 + ks, nb, (s % 4) * 16384 + ks * 8192, 1024
        ks, nb = i >> 2, i & 3
        return s, ((s - 8) % 4) * 4 + ks, nb, (s % 4) * 16384 + ks * 4096, 512
    pend = []
    def page_switch(s):
        if s == 8:
            k.op("v_lshrrev_b32", V(7), 1, V(10))
            k.op("v_lshl_or_b32", V(13), V(12), 1, V(7))
            k.op("v_lshlrev_b32", V(15), 7, V(14))
            k.op("v_lshl_add_u32", V(15), V(11), 3, V(15))
            for nb in range(4):
                k.op("v_xor_b32", V(7), nb, V(13))
                k.op("v_lshl_add_u32", V(TA + nb), V(7), 5, V(15))
        vq.need(("W", s), ("A", s), cnt=(4, 8 if s < 8 else 0))
        if s in (0, 1): stp.stamp()
        k.op("s_barrier")
        if s + 2 == 8:
            k.op("v_lshlrev_b32", V(7), 1, V(12))
            k.op("v_xor_b32", V(7), V(7), V(5))
            k.op("v_lshlrev_b32", V(7), 4, V(7))
            k.op("v_lshrrev_b32", V(4), 3, V(vL))
            k.op("v_lshl_add_u32", V(7), V(4), 13, V(7))
            k.op("s_lshl_b32", S(sT1), S(sW), 18)
            k.op("s_lshl_b32", S(sT2), S(sH), 8)
            k.op("s_add_u32", S(sT1), S(sT1), S(sT2))
            k.op("v_add_u32", V(VW), S(sT1), V(7))
            k.op("v_xor_b32", V(VW + 1), 64, V(VW))
            k.op("v_add_u32", V(VW + 1), 65536 - 1024, V(VW + 1))
            k.op("v_add_u32", V(VW + 2), 2 * (65536 - 1024), V(VW))
            k.op("v_add_u32", V(VW + 3), 2 * (65536 - 1024), V(VW + 1))
        def act_read(ks, c):
            def f():
                r = ((s * 2 + ks) * 4 + c) * 4
                k.op("ds_read_b128", A(r, 4), V(AA + ks), mods=f"offset:{(s%3)*8192 + c*2048}")
                lq.issue(("a", s * 2 + ks))
            return f
        assert len(q1) == 0, len(q1)
        if s < 8:
            for ks in range(2):
                for c in range(4):
                    if s == 0 and ks == 0: act_read(ks, c)()
                    else: q1.add(act_read(ks, c))
        if s + 2 < 16:
            for f in dma_w_items(s + 2): q1.add(f)
        if s < pfn:
            for _ in range(pfper): q1.add(pf)
        if s + 2 < 8:
            for u in range(2):
                for f in dma_a_items(s + 2, u): q1.add(f)
    def read_frag(n, which=None):
        s, ksg, nb, off, st = frag_info(n)
        if n % 16 == 0 and which != 1: page_switch(s)
        r = WF + (n % 8) * 4
        for i in (range(2) if which is None else [which]):
            k.op("ds_read_b64_tr_b16", V(r + 2 * i, 2), V(TA + nb), mods=f"offset:{off + i*st}")
            lq.issue(("w", n))
    def tileK(nb, c): return ACC + 4 * (nb * 4 + c)
    def tileV(half, nb, c): return ACC + 64 * half + 4 * (nb * 4 + c)
    def pack(e, a, b):
        e.op("v_cvt_pk_bf16_f32", V(a), V(a), V(a + 1))
        e.op("v_cvt_pk_bf16_f32", V(a + 1), V(a + 2), V(a + 3))
        e.op("v_cvt_pk_bf16_f32", V(a + 2), V(b), V(b + 1))
        e.op("v_cvt_pk_bf16_f32", V(a + 3), V(b + 2), V(b + 3))
    def k_epi(pi, c):
        e = Kern("e")
        a, b = tileK(2 * pi, c), tileK(2 * pi + 1, c)
        pack(e, a, b)
        e.op("s_add_u32", S(sT2), S(sKst), (c >> 1) * 8192 + (pi >> 1) * 4096)
        e.op("buffer_store_dwordx4", V(a, 4), V(vKo), S(sWS, 4), S(sT2),
             mods=f"offen offset:{(pi&1)*2048 + (c&1)*128}{store_mods}")
        return e
    def v_epi(half, nb, u):
        e = Kern("e")
        a, b = tileV(half, nb, 2 * u), tileV(half, nb, 2 * u + 1)
        n = half * 4 + nb
        pack(e, a, b)
        e.op("s_add_u32", S(sT2), S(sVst), u * 8192)
        e.op("buffer_store_dwordx4", V(a, 4), V(vVo), S(sWS, 4), S(sT2),
             mods=f"offen offset:{(n>>1)*1024 + (n&1)*256}{store_mods}")
        return e
    events = {}
    def at(n, f): events.setdefault(n, []).append(f)
    at(123, lambda: [q2.add_kern(k_epi(0, c)) for c in range(4)])
    at(125, lambda: [q2.add_kern(k_epi(1, c)) for c in range(4)])
    at(129, lambda: [q2.add_kern(k_epi(p, c)) for p in (2, 3) for c in range(4)])
    at(193, lambda: [q2.add_kern(v_epi(0, nb, u)) for nb in range(4) for u in range(2)])
    at(254, lambda: [q2.add_kern(v_epi(1, 0, u)) for u in range(2)])
    at(255, lambda: [q2.add_kern(v_epi(1, 1, u)) for u in range(2)])
    LN0, LN1 = 100, 250
    ln_load()
    for n in range(D): read_frag(n)
    for n in range(256):
        if n in (64, 128, 192): stp.stamp()
        s, ksg, nb, off, st = frag_info(n)
        lq.need(("w", n), ("a", ksg), cnt=(2, 4))
        wf = V(WF + (n % 8) * 4, 4)
        first = (ksg == 0)
        for f in events.get(n, []): f()
        if n in (128, 129, 130, 131):
            pass
        for c in range(4):
            af = A((ksg * 4 + c) * 4, 4)
            if s < 8:
                d = V(tileK(nb, c), 4)
                k.op("v_mfma_f32_16x16x32_bf16", d, wf, af, "0" if first else d)
            else:
                d = V(tileV((s - 8) // 4, nb, c), 4)
                k.op("v_mfma_f32_16x16x32_bf16", d, af, wf, "0" if first else d)
            cap = 1
            if c == 0 and n + D < 256:
                read_frag(n + D, 0); cap = 0
            if c == 1 and n + D < 256:
                read_frag(n + D, 1); cap = 0
            if 123 <= n <= 127: cap += 2
            if n < LN1 and len(lnq): cap += 1
            if len(q1) > 8: cap += 1
            cap -= q1.emit(cap)
            cap -= q2.emit(cap)
            if n >= LN0: cap -= lnq.emit(cap)
        if n == 127: q2.flush()
    stp.stamp()
    q2.flush()
    k.nop(4)
    for nb in (2, 3):
        for u in range(2): q2.add_kern(v_epi(1, nb, u))
    q2.flush()
    assert len(lnq) == 0, len(lnq)
    if stamps:
        k.wait(vm=0)
        stp.stamp()
        stp.flush(sWS, sW, 4)
    k.label("k1_end")
    k.op("s_endpgm")
    return k

if __name__ == "__main__":
    k = build_k1()
    for e in k.check_hazards(): print(e)
    for e in k.check_waits(): print(e)
    print(k.maxregs(), len(k.ins))
```

```python
from common import *

def layernorm(k, src, dstp, f, t, stats_only=False):
    for i in range(4):
        k.op("v_lshlrev_b32", V(f + 2 * i), 16, V(src + i))
        k.op("v_and_b32", V(f + 2 * i + 1), "0xffff0000", V(src + i))
    s, tmp, mean, var, d, rs = t, t + 1, t + 2, t + 3, t + 4, t + 5
    k.op("v_add_f32", V(s), V(f), V(f + 1))
    for i in range(2, 8):
        k.op("v_add_f32", V(s), V(s), V(f + i))
    wave_sum(k, s, tmp)
    k.op("v_mul_f32", V(mean), "0x3b000000", V(s))
    k.op("v_sub_f32", V(d), V(f), V(mean))
    k.op("v_mul_f32", V(var), V(d), V(d))
    for i in range(1, 8):
        k.op("v_sub_f32", V(d), V(f + i), V(mean))
        k.op("v_fmac_f32", V(var), V(d), V(d))
    wave_sum(k, var, tmp)
    k.op("v_mul_f32", V(var), "0x3b000000", V(var))
    rbf(k, mean, mean)
    rbf(k, var, var)
    k.op("v_add_f32", V(var), "0x3727c5ac", V(var))
    rbf(k, var, var)
    k.op("v_sqrt_f32", V(var), V(var))
    k.nop(1)
    rbf(k, var, var)
    k.op("v_rcp_f32", V(rs), V(var))
    if stats_only:
        k.op("v_mov_b32", V(dstp), V(mean))
        k.op("v_fma_f32", V(tmp), "-" + V(var), V(rs), "1.0")
        k.op("v_fma_f32", V(dstp + 1), V(tmp), V(rs), V(rs))
        return
    for i in range(8):
        k.op("v_sub_f32", V(f + i), V(f + i), V(mean))
    for i in range(4):
        k.op("v_cvt_pk_bf16_f32", V(tmp), V(f + 2 * i), V(f + 2 * i + 1))
        k.op("v_lshlrev_b32", V(f + 2 * i), 16, V(tmp))
        k.op("v_and_b32", V(f + 2 * i + 1), "0xffff0000", V(tmp))
    for i in range(8):
        k.op("v_mul_f32", V(d), V(f + i), V(rs))
        k.op("v_fma_f32", V(tmp), "-" + V(d), V(var), V(f + i))
        k.op("v_fma_f32", V(f + i), V(tmp), V(rs), V(d))
    for i in range(4):
        k.op("v_cvt_pk_bf16_f32", V(dstp + i), V(f + 2 * i), V(f + 2 * i + 1))

def build_k1(D=5, store_mods="", stamps=False, prefetch=True, twice=False):
    k = Kern("k1_kernel")
    vq, lq = Q(k, "vmcnt", 63), Q(k, "lgkmcnt", 15)
    stp = Stamps(k, stamps, 60, 0, lq)
    sX, sC, sWK, sWV, sWS = 8, 12, 16, 20, 24
    sW, sH, sJ = 28, 29, 30
    sT0, sT1, sT2 = 31, 32, 33
    sAm0, sWm0 = 34, 35
    sSo = 36
    sKst, sKst2, sVst = 37, 38, 39
    vL = 1
    TA = 16; AA = 24; VA = 26; VW = 30
    WF = 32; ACC = 64; ACT = 128
    vKo, vVo = 2, 3
    k.op("s_cmp_ge_u32", "s2", 256)
    k.op("s_cbranch_scc1", "k1_end")
    if twice:
        k.op("s_mov_b32", S(90), 0)
        k.label("k1_again")
    k.op("s_load_dwordx4", S(40, 4), S(0, 2), KA["x"])
    k.op("s_load_dwordx4", S(44, 4), S(0, 2), KA["wuk"])
    k.op("s_load_dwordx2", S(48, 2), S(0, 2), KA["ws"])
    k.op("v_and_b32", V(vL), 63, "v0")
    k.op("v_lshrrev_b32", V(4), 6, "v0")
    k.op("s_and_b32", S(sT0), "s2", 7)
    k.op("v_readfirstlane_b32", S(sW), V(4))
    k.op("s_lshr_b32", S(sT1), "s2", 3)
    k.op("s_and_b32", S(sT2), S(sT1), 3)
    k.op("s_lshl_b32", S(sH), S(sT0), 2)
    k.op("s_add_u32", S(sH), S(sH), S(sT2))
    k.op("s_lshr_b32", S(sJ), S(sT1), 2)
    k.op("v_lshrrev_b32", V(4), 3, V(vL))
    k.op("v_and_b32", V(5), 7, V(vL))
    k.op("v_lshrrev_b32", V(6), 4, V(vL))
    k.op("v_xor_b32", V(7), V(5), V(6))
    k.op("v_lshlrev_b32", V(7), 4, V(7))
    k.op("v_lshl_add_u32", V(7), V(4), 10, V(7))
    k.op("s_lshl_b32", S(sT0), S(sJ), 18)
    k.op("s_lshl_b32", S(sT1), S(sW), 15)
    k.op("s_add_u32", S(sT0), S(sT0), S(sT1))
    k.op("v_add_u32", V(VA), S(sT0), V(7))
    k.op("v_xor_b32", V(VA + 1), 64, V(VA))
    k.op("v_add_u32", V(VA + 1), 7168, V(VA + 1))
    k.op("v_add_u32", V(VA + 2), 2 * 7168, V(VA))
    k.op("v_add_u32", V(VA + 3), 2 * 7168, V(VA + 1))
    k.op("s_and_b32", S(sT0), S(sW), 1)
    k.op("s_lshl_b32", S(sT0), S(sT0), 2)
    k.op("v_or_b32", V(7), S(sT0), V(6))
    k.op("v_lshlrev_b32", V(7), 1, V(7))
    k.op("v_and_b32", V(8), 15, V(vL))
    k.op("v_xor_b32", V(7), V(7), V(8))
    k.op("v_lshlrev_b32", V(7), 4, V(7))
    k.op("v_lshl_add_u32", V(7), V(6), 13, V(7))
    k.op("s_lshl_b32", S(sT0), S(sW), 16)
    k.op("s_lshl_b32", S(sT1), S(sH), 8)
    k.op("s_add_u32", S(sT0), S(sT0), S(sT1))
    k.op("v_add_u32", V(VW), S(sT0), V(7))
    k.op("v_add_u32", V(VW + 1), 32768 - 1024, V(VW))
    k.op("s_mul_i32", S(sAm0), S(sW), 12288)
    k.op("s_add_u32", S(sAm0), S(sAm0), 65536)
    k.op("s_lshl_b32", S(sWm0), S(sW), 11)
    k.wait(lgkm=0)
    stp.stamp()
    load_srd(k, sX, "x", 40); load_srd(k, sC, "ckv", 42)
    load_srd(k, sWK, "wuk", 44); load_srd(k, sWV, "wuv", 46); load_srd(k, sWS, "ws", 48)

    def dma_w(s):
        k.op("s_add_u32", "m0", S(sWm0), (s % 4) * 16384)
        if s < 8:
            k.op("s_mov_b32", S(sSo), s * 524288)
            srd = sWK
        else:
            half, ss = (s - 8) // 4, (s - 8) % 4
            k.op("s_mov_b32", S(sSo), ss * 1048576 + half * 128)
            srd = sWV
        for i in range(2):
            k.op("buffer_load_dwordx4", V(VW + i), S(srd, 4), S(sSo), mods=f"offen offset:{i*1024} lds")
            vq.issue(("W", s))
    def dma_a(s):
        k.op("s_add_u32", "m0", S(sAm0), (s % 3) * 4096)
        k.op("s_mov_b32", S(sSo), s * 128)
        for i in range(4):
            k.op("buffer_load_dwordx4", V(VA + i), S(sC, 4), S(sSo), mods=f"offen offset:{i*1024} lds")
            vq.issue(("A", s))
    dma_w(0); dma_a(0)
    stp.stamp()
    dma_w(1); dma_a(1)
    stp.stamp()
    if prefetch:
        k.op("s_lshr_b32", S(sT1), "s2", 3)
        k.op("s_lshl_b32", S(sT2), S(sT1), 16)
        k.op("s_lshl_b32", S(sT0), S(sW), 7)
        k.op("s_add_u32", S(sT2), S(sT2), S(sT0))
        k.op("v_lshlrev_b32", V(7), 10, V(vL))
        k.op("buffer_load_dword", V(9), V(7), S(sC, 4), S(sT2), mods="offen", dummy=True); vq.issue()
        k.op("s_lshl_b32", S(sT1), S(sT1), 3)
        k.op("s_add_u32", S(sT1), S(sT1), S(sW))
        k.op("s_lshl_b32", S(sT1), S(sT1), 14)
        k.op("s_and_b32", S(sT0), "s2", 7)
        k.op("s_lshl_b32", S(sT0), S(sT0), 10)
        k.op("s_add_u32", S(sT1), S(sT1), S(sT0))
        k.op("v_bfe_u32", V(7), V(vL), 3, 1)
        k.op("v_lshlrev_b32", V(7), 13, V(7))
        k.op("v_lshl_add_u32", V(7), V(5), 7, V(7))
        k.op("buffer_load_dword", V(9), V(7), S(sWK, 4), S(sT1), mods="offen", dummy=True); vq.issue()
        k.op("buffer_load_dword", V(9), V(7), S(sWV, 4), S(sT1), mods="offen", dummy=True); vq.issue()
    k.op("v_bfe_u32", V(10), V(vL), 2, 2)
    k.op("v_and_b32", V(11), 3, V(vL))
    k.op("v_and_b32", V(12), 1, V(6))
    k.op("v_lshl_or_b32", V(13), V(12), 2, V(10))
    k.op("v_lshl_add_u32", V(14), V(6), 3, V(10))
    k.op("v_lshlrev_b32", V(15), 8, V(14))
    k.op("v_lshl_add_u32", V(15), V(11), 3, V(15))
    for nb in range(8):
        k.op("v_xor_b32", V(7), nb, V(13))
        k.op("v_lshl_add_u32", V(TA + nb), V(7), 5, V(15))
    k.op("v_lshrrev_b32", V(7), 1, V(8))
    k.op("v_xor_b32", V(7), V(7), V(6))
    k.op("v_lshlrev_b32", V(7), 4, V(7))
    k.op("v_lshl_add_u32", V(7), V(8), 7, V(7))
    k.op("v_add_u32", V(AA), S(sAm0), V(7))
    k.op("v_xor_b32", V(AA + 1), 64, V(AA))
    k.op("v_lshrrev_b32", V(7), 1, V(6))
    k.op("v_lshlrev_b32", V(vKo), 9, V(7))
    k.op("v_lshl_add_u32", V(vKo), V(12), 10, V(vKo))
    k.op("v_lshrrev_b32", V(4), 3, V(8))
    k.op("v_lshl_add_u32", V(vKo), V(4), 8, V(vKo))
    k.op("v_and_b32", V(4), 7, V(8))
    k.op("v_lshl_add_u32", V(vKo), V(4), 4, V(vKo))
    k.op("v_lshlrev_b32", V(vVo), 12, V(7))
    k.op("v_lshl_add_u32", V(vVo), V(12), 9, V(vVo))
    k.op("v_lshl_add_u32", V(vVo), V(8), 4, V(vVo))
    k.op("s_lshl_b32", S(sKst), S(sH), 19)
    k.op("s_lshl_b32", S(sT1), S(sJ), 16)
    k.op("s_add_u32", S(sKst), S(sKst), S(sT1))
    k.op("s_lshl_b32", S(sT1), S(sW), 13)
    k.op("s_add_u32", S(sKst), S(sKst), S(sT1))
    k.op("s_add_u32", S(sVst), S(sKst), VF_OFF)
    k.op("s_add_u32", S(sKst), S(sKst), KF_OFF)
    k.op("s_add_u32", S(sKst2), S(sKst), 4096)
    LNR = ACC + 32
    ln = Kern("ln")
    sR0, sR1, sR2 = 50, 51, 52
    layernorm(ln, LNR, LNR + 4, LNR + 8, LNR + 16)
    layernorm(ln, LNR + 4, LNR + 24, LNR + 8, LNR + 16)
    ln.op("v_lshrrev_b32", V(LNR + 28), 2, V(vL))
    ln.op("v_lshlrev_b32", V(LNR + 28), 10, V(LNR + 28))
    ln.op("v_lshl_add_u32", V(LNR + 28), V(11), 8, V(LNR + 28))
    ln_ins = [i for i in ln.ins if i.mn != "s_nop"]
    k.op("s_lshl_b32", S(sR0), "s2", 3)
    k.op("s_add_u32", S(sR0), S(sR0), S(sW))
    k.op("s_lshr_b32", S(sR1), S(sR0), 4)
    k.op("s_lshl_b32", S(sR1), S(sR1), 14)
    k.op("s_and_b32", S(sR2), S(sR0), 15)
    k.op("s_lshl_b32", S(sR2), S(sR2), 4)
    k.op("s_add_u32", S(sR1), S(sR1), S(sR2))
    k.op("s_add_u32", S(sR2), S(sR1), YF_OFF)
    k.op("s_lshl_b32", S(sR0), S(sR0), 10)
    def ln_load():
        k.op("v_lshlrev_b32", V(LNR + 28), 4, V(vL))
        k.op("buffer_load_dwordx4", V(LNR, 4), V(LNR + 28), S(sX, 4), S(sR0), mods="offen")
        vq.issue("ln")
    def ln_store():
        k.op("buffer_store_dwordx4", V(LNR + 4, 4), V(LNR + 28), S(sWS, 4), S(sR1), mods="offen"); vq.issue()
        k.op("buffer_store_dwordx4", V(LNR + 24, 4), V(LNR + 28), S(sWS, 4), S(sR2), mods="offen"); vq.issue()

    def frag_info(n):
        s, i = n >> 4, n & 15
        if s < 8:
            ks, nb = i >> 3, i & 7
            return s, s * 2 + ks, nb, (s % 4) * 16384 + ks * 8192, 1024
        ks, nb = i >> 2, i & 3
        return s, ((s - 8) % 4) * 4 + ks, nb, (s % 4) * 16384 + ks * 4096, 512
    def page_switch(s):
        if s == 8:
            k.op("v_lshrrev_b32", V(7), 1, V(10))
            k.op("v_lshl_or_b32", V(13), V(12), 1, V(7))
            k.op("v_lshlrev_b32", V(15), 7, V(14))
            k.op("v_lshl_add_u32", V(15), V(11), 3, V(15))
            for nb in range(4):
                k.op("v_xor_b32", V(7), nb, V(13))
                k.op("v_lshl_add_u32", V(TA + nb), V(7), 5, V(15))
        vq.need(("W", s), ("A", s))
        if s in (0, 1, 2): stp.stamp()
        k.op("s_barrier")
        if s in (0, ): stp.stamp()
        if s + 2 == 8:
            k.op("v_lshlrev_b32", V(7), 1, V(12))
            k.op("v_xor_b32", V(7), V(7), V(5))
            k.op("v_lshlrev_b32", V(7), 4, V(7))
            k.op("v_lshrrev_b32", V(4), 3, V(vL))
            k.op("v_lshl_add_u32", V(7), V(4), 13, V(7))
            k.op("s_lshl_b32", S(sT1), S(sW), 17)
            k.op("s_lshl_b32", S(sT2), S(sH), 8)
            k.op("s_add_u32", S(sT1), S(sT1), S(sT2))
            k.op("v_add_u32", V(VW), S(sT1), V(7))
            k.op("v_xor_b32", V(VW + 1), 64, V(VW))
            k.op("v_add_u32", V(VW + 1), 65536 - 1024, V(VW + 1))
        if s < 8:
            for ks in range(2):
                for c in range(2):
                    r = ACT + ((s * 2 + ks) * 2 + c) * 4
                    k.op("ds_read_b128", V(r, 4), V(AA + ks), mods=f"offset:{(s%3)*4096 + c*2048}")
                    lq.issue(("a", s * 2 + ks))
        if s + 2 < 16: dma_w(s + 2)
        if s + 2 < 8: dma_a(s + 2)
    def read_frag(n):
        s, ksg, nb, off, st = frag_info(n)
        if n % 16 == 0: page_switch(s)
        r = WF + (n % 8) * 4
        for i in range(2):
            k.op("ds_read_b64_tr_b16", V(r + 2 * i, 2), V(TA + nb), mods=f"offset:{off + i*st}")
            lq.issue(("w", n))
    fill = []
    def k_epi(pi, c):
        a, b = ACC + 4 * (4 * pi + c), ACC + 4 * (4 * pi + 2 + c)
        def f():
            k.op("v_cvt_pk_bf16_f32", V(a), V(a), V(a + 1))
            k.op("v_cvt_pk_bf16_f32", V(a + 1), V(a + 2), V(a + 3))
            k.op("v_cvt_pk_bf16_f32", V(a + 2), V(b), V(b + 1))
            k.op("v_cvt_pk_bf16_f32", V(a + 3), V(b + 2), V(b + 3))
            k.op("buffer_store_dwordx4", V(a, 4), V(vKo), S(sWS, 4), S(sKst2 if pi >= 2 else sKst),
                 mods=f"offen offset:{(pi&1)*2048 + c*128}{store_mods}")
            vq.issue()
        return f
    def v_epi(half, nb):
        a, b = ACC + 4 * (8 * half + 2 * nb), ACC + 4 * (8 * half + 2 * nb + 1)
        n = half * 4 + nb
        def f():
            k.op("v_cvt_pk_bf16_f32", V(a), V(a), V(a + 1))
            k.op("v_cvt_pk_bf16_f32", V(a + 1), V(a + 2), V(a + 3))
            k.op("v_cvt_pk_bf16_f32", V(a + 2), V(b), V(b + 1))
            k.op("v_cvt_pk_bf16_f32", V(a + 3), V(b + 2), V(b + 3))
            k.op("buffer_store_dwordx4", V(a, 4), V(vVo), S(sWS, 4), S(sVst),
                 mods=f"offen offset:{(n>>1)*1024 + (n&1)*256}{store_mods}")
            vq.issue()
        return f
    fill += [(124, k_epi(0, 0)), (125, k_epi(0, 1)), (126, k_epi(1, 0)), (127, k_epi(1, 1))]
    fill += [(130, k_epi(2, 0)), (132, k_epi(2, 1)), (134, k_epi(3, 0)), (136, k_epi(3, 1))]
    fill += [(194 + 2 * nb, v_epi(0, nb)) for nb in range(4)]
    fill += [(138, ln_load), (147, lambda: vq.need("ln")), (190, ln_store)]
    LN0, LN1 = 147, 189
    per = -(-len(ln_ins) // (LN1 - LN0 + 1))
    def ln_chunk(a, b):
        def f():
            prev = None
            for i in ln_ins[a:b]:
                if prev is not None and (i.mn.startswith("v_permlane") or "dpp" in i.mn) : k.nop(2)
                elif prev is not None and prev.mn in TRANS: k.nop(1)
                k.ins.append(i); prev = i
        return f
    for t in range(LN1 - LN0 + 1):
        fill.append((LN0 + t, ln_chunk(t * per, (t + 1) * per)))
    stp.stamp()
    for n in range(D): read_frag(n)
    for n in range(256):
        if n in (64, 128, 192): stp.stamp()
        s, ksg, nb, off, st = frag_info(n)
        lq.need(("w", n), ("a", ksg))
        wf = V(WF + (n % 8) * 4, 4)
        first = (ksg == 0)
        for c in range(2):
            af = V(ACT + (ksg * 2 + c) * 4, 4)
            if s < 8:
                d = V(ACC + 4 * (nb * 2 + c), 4)
                k.op("v_mfma_f32_16x16x32_bf16", d, wf, af, "0" if first else d)
            else:
                d = V(ACC + 4 * (8 * ((s - 8) // 4) + nb * 2 + c), 4)
                k.op("v_mfma_f32_16x16x32_bf16", d, af, wf, "0" if first else d)
        if n + D < 256: read_frag(n + D)
        for (e, f) in fill:
            if e == n: f()
    k.nop(8)
    stp.stamp()
    for nb in range(4): v_epi(1, nb)()
    if stamps:
        k.wait(vm=0)
        stp.stamp()
        if twice:
            k.op("s_barrier")
            k.op("s_add_u32", S(90), S(90), 1)
            k.op("s_cmp_lt_u32", S(90), 2)
            k.op("s_cbranch_scc1", "k1_again")
        stp.flush(sWS, sW, 4)
    k.label("k1_end")
    k.op("s_endpgm")
    return k

if __name__ == "__main__":
    k = build_k1()
    for e in k.check_hazards(): print(e)
    for e in k.check_waits(): print(e)
    print(k.maxregs(), len(k.ins))
```

```python
from common import *
import struct
def f32(x): return hex(struct.unpack("<I", struct.pack("<f", x))[0])
LOG2E = 1.4426950408889634
QSCALE = LOG2E / (128 ** 0.5)
STAT_OFF = YF_OFF

def build_k2(stamps=False, D=4, DA=4, thr=2.0 ** 30):
    k = Kern("k2_kernel")
    vq, lq = Q(k, "vmcnt", 63), Q(k, "lgkmcnt", 15)
    stp = Stamps(k, stamps, 62, 1, lq, maxn=8)
    sWS, sWQ, sW1, sK, sV, sB1 = 8, 12, 16, 20, 24, 28
    sW, sH, sP, sNa, sNb, sT = 32, 33, 34, 35, 36, 37
    sT0, sT1, sT2, sSo = 38, 39, 40, 41
    sP2, sP1, sRd, sNx = 42, 43, 44, 45
    sTK, sTV, sW4k, sThr, sRet = 46, 47, 48, 49, 50
    sXa, sXb = 51, 52
    sCa, sCb = 53, 54
    sM = 56
    sLd = 98
    vL, vL16, vA, vD, vZ, vNinf = 1, 2, 3, 4, 5, 6
    vPs = [7, 8]; vLs = [9, 10]; vMx = [11, 12]
    vT = 13
    vCo = 20
    QR, NEGM, SR = 32, 96, 128
    def Sreg(sub, par): return SR + sub * 64 + par * 32
    OA, FR = 64, 192
    TA, TB, VW, VW1 = 96, 104, 108, 112
    vXo = 21
    MACC = 32
    ONES = 116
    XR = 0

    k.op("s_cmp_ge_u32", "s2", 256)
    k.op("s_cbranch_scc1", "k2_end")
    k.op("s_load_dwordx2", S(84, 2), S(0, 2), KA["wq"])
    k.op("s_load_dwordx4", S(88, 4), S(0, 2), KA["w1"])
    k.op("s_load_dwordx2", S(92, 2), S(0, 2), KA["ws"])
    k.op("v_and_b32", V(vL), 63, "v0")
    k.op("v_lshrrev_b32", V(13), 6, "v0")
    k.op("s_and_b32", S(sT0), "s2", 7)
    k.op("v_readfirstlane_b32", S(sW), V(13))
    k.op("s_lshr_b32", S(sT1), "s2", 3)
    k.op("s_and_b32", S(sT2), S(sT1), 3)
    k.op("s_lshl_b32", S(sH), S(sT0), 2)
    k.op("s_add_u32", S(sH), S(sH), S(sT2))
    k.op("s_lshr_b32", S(sP), S(sT1), 2)
    k.op("v_lshlrev_b32", V(vL16), 4, V(vL))
    k.op("s_lshl_b32", S(sW4k), S(sW), 12)
    k.op("v_add_u32", V(vD), S(sW4k), V(vL16))
    g, l15, p8, l3, r_, cc, g1, t7 = 22, 23, 24, 25, 26, 27, 28, 29
    k.op("v_lshrrev_b32", V(g), 4, V(vL))
    k.op("v_and_b32", V(l15), 15, V(vL))
    k.op("v_and_b32", V(p8), 7, V(vL))
    k.op("v_lshrrev_b32", V(l3), 3, V(vL))
    k.op("v_bfe_u32", V(r_), V(vL), 2, 2)
    k.op("v_and_b32", V(cc), 3, V(vL))
    k.op("v_and_b32", V(g1), 1, V(g))
    k.op("v_lshlrev_b32", V(t7), 1, V(g))
    k.op("v_xor_b32", V(t7), V(t7), V(l15))
    k.op("v_lshlrev_b32", V(t7), 4, V(t7))
    k.op("v_lshl_add_u32", V(t7), V(g), 13, V(t7))
    k.op("s_lshl_b32", S(sT0), S(sW), 17)
    k.op("s_lshl_b32", S(sT1), S(sH), 8)
    k.op("s_add_u32", S(sT0), S(sT0), S(sT1))
    k.op("v_add_u32", V(VW), S(sT0), V(t7))
    k.op("v_add_u32", V(VW + 1), 32768 - 1024, V(VW))
    k.op("v_xor_b32", V(VW + 2), 128, V(VW))
    k.op("v_add_u32", V(VW + 2), 2 * (32768 - 1024), V(VW + 2))
    k.op("v_add_u32", V(VW + 3), 32768 - 1024, V(VW + 2))
    k.op("v_lshlrev_b32", V(t7), 1, V(g1))
    k.op("v_xor_b32", V(t7), V(t7), V(p8))
    k.op("v_lshlrev_b32", V(t7), 4, V(t7))
    k.op("v_mul_u32_u24", V(30), 2752, V(l3))
    k.op("s_mul_i32", S(sT0), S(sW), 32 * 2752)
    k.op("s_mul_i32", S(sT1), S(sH), 96)
    k.op("s_add_u32", S(sT0), S(sT0), S(sT1))
    k.op("v_add_u32", V(30), S(sT0), V(30))
    k.op("v_add_u32", V(VW1), V(30), V(t7))
    k.op("v_xor_b32", V(t7), 64, V(t7))
    k.op("v_add_u32", V(VW1 + 1), V(30), V(t7))
    k.op("v_add_u32", V(VW1 + 1), 8 * 2752 - 1024, V(VW1 + 1))
    k.op("v_add_u32", V(VW1 + 2), 2 * (8 * 2752 - 1024), V(VW1))
    k.op("v_add_u32", V(VW1 + 3), 2 * (8 * 2752 - 1024), V(VW1 + 1))
    k.op("s_lshl_b32", S(sT0), S(sP), 7)
    k.op("s_lshl_b32", S(sT1), S(sW), 5)
    k.op("s_add_u32", S(sXa), S(sT0), S(sT1))
    k.op("s_sub_u32", S(sXb), 1920, S(sT0))
    k.op("s_add_u32", S(sXb), S(sXb), S(sT1))
    k.op("s_lshl_b32", S(sT2), S(sH), 12)
    k.op("s_add_u32", S(sT2), S(sT2), CTX_OFF)
    k.op("s_lshl_b32", S(sCa), S(sXa), 13)
    k.op("s_add_u32", S(sCa), S(sCa), S(sT2))
    k.op("s_lshl_b32", S(sCb), S(sXb), 13)
    k.op("s_add_u32", S(sCb), S(sCb), S(sT2))
    sRa, sRb = 94, 95
    k.op("s_mov_b32", S(sRa), S(sXa)); k.op("s_mov_b32", S(sRb), S(sXb))
    k.op("s_lshl_b32", S(sXa), S(sXa), 10)
    k.op("s_lshl_b32", S(sXb), S(sXb), 10)
    k.op("s_lshr_b32", S(sT1), S(sW), 1)
    k.op("s_lshl_b32", S(sT0), S(sP), 1)
    k.op("s_add_u32", S(sNa), S(sT0), S(sT1))
    k.op("s_add_u32", S(sNa), S(sNa), 1)
    k.op("s_sub_u32", S(sNb), 31, S(sT0))
    k.op("s_add_u32", S(sNb), S(sNb), S(sT1))
    k.wait(lgkm=0)
    stp.stamp()
    load_srd(k, sWQ, "wq", 84); load_srd(k, sW1, "w1", 88); load_srd(k, sWS, "ws", 92)

    pages = {}
    order = []
    for j in range(4):
        order += [("W1", j), ("WQ", 2 * j), ("WQ", 2 * j + 1)]
    for i, p in enumerate(order): pages[p] = i
    for t in range(6): pages[("K", t)] = 12 + 2 * t; pages[("V", t)] = 15 + 2 * t
    def slot(p): return (pages[p] % 10) * 16384
    def dma_items(p):
        kind, j = p
        def setup():
            k.op("s_add_u32", "m0", S(sW4k), slot(p))
            k.op("s_mov_b32", S(sSo), {"W1": j * 128 * 2752, "WQ": j * 524288, "K": j * 16384, "V": j * 16384}[kind])
        def ld(i):
            def f():
                if kind == "WQ": k.op("buffer_load_dwordx4", V(VW + i), S(sWQ, 4), S(sSo), mods=f"offen offset:{i*1024} lds")
                elif kind == "W1": k.op("buffer_load_dwordx4", V(VW1 + i), S(sW1, 4), S(sSo), mods=f"offen offset:{i*1024} lds")
                else: k.op("buffer_load_dwordx4", V(vD), S(sK if kind == "K" else sV, 4), S(sSo), mods=f"offen offset:{i*1024} lds")
                vq.issue(p)
            return f
        return [setup] + [ld(i) for i in range(4)]
    def xn_load(ks, rb):
        def f():
            r = XR + ((ks % 12) * 4 + rb) * 4
            k.op("s_add_u32", S(sLd), S(sXa if rb < 2 else sXb), (rb & 1) * 16384 + (ks >> 2) * 4096)
            k.op("buffer_load_dwordx4", A(r, 4), V(vL16), S(sWS, 4), S(sLd), mods=f"offen offset:{(ks&3)*1024}")
            vq.issue(("x", ks))
        return f
    for p in (("W1", 0), ("WQ", 0)):
        for f in dma_items(p): f()
    for ks in range(2):
        for rb in range(4): xn_load(ks, rb)()
    for f in dma_items(("WQ", 1)): f()
    for ks in range(2, 4):
        for rb in range(4): xn_load(ks, rb)()
    load_srd(k, sB1, "b1", 90)
    k.op("s_lshl_b32", S(sT0), S(sH), 19)
    k.op("s_add_u32", S(sT1), S(sT0), KF_OFF)
    k.op("s_add_u32", S(sK), S(92), S(sT1))
    k.op("s_addc_u32", S(sK + 1), S(93), 0)
    k.op("s_and_b32", S(sK + 1), S(sK + 1), "0xffff")
    k.op("s_lshl_b32", S(sT2), S(sP), 15)
    k.op("s_sub_u32", S(sK + 2), 32 * 16384, S(sT2))
    k.op("s_mov_b32", S(sK + 3), "0x20000")
    k.op("s_add_u32", S(sT1), S(sT0), VF_OFF)
    k.op("s_add_u32", S(sV), S(92), S(sT1))
    k.op("s_addc_u32", S(sV + 1), S(93), 0)
    k.op("s_and_b32", S(sV + 1), S(sV + 1), "0xffff")
    k.op("s_mov_b32", S(sV + 2), S(sK + 2))
    k.op("s_mov_b32", S(sV + 3), "0x20000")
    k.op("v_lshl_or_b32", V(30), V(g1), 2, V(r_))
    k.op("v_lshl_add_u32", V(31), V(g), 3, V(r_))
    k.op("v_lshlrev_b32", V(t7), 8, V(31))
    k.op("v_lshl_add_u32", V(t7), V(cc), 3, V(t7))
    for nb in range(8):
        k.op("v_xor_b32", V(13), nb, V(30))
        k.op("v_lshl_add_u32", V(TA + nb), V(13), 5, V(t7))
    k.op("v_lshrrev_b32", V(13), 1, V(r_))
    k.op("v_lshl_or_b32", V(30), V(g1), 1, V(13))
    k.op("v_lshlrev_b32", V(t7), 7, V(31))
    k.op("v_lshl_add_u32", V(t7), V(cc), 3, V(t7))
    for nb in range(3):
        k.op("v_xor_b32", V(13), nb, V(30))
        k.op("v_lshl_add_u32", V(TB + nb), V(13), 5, V(t7))
    for i in range(4): k.op("v_mov_b32", V(ONES + i), "0x3f803f80")
    win = {"TA": 0, "TB": 0}
    def set_window(name, base, n, off):
        w = off // 65536
        if win[name] != w:
            d = (w - win[name]) * 65536
            for i in range(n): k.op("v_add_u32", V(base + i), hex(d & 0xffffffff), V(base + i))
            win[name] = w
        return off - w * 65536
    frs = []
    for ks in range(16):
        for nb in range(3): frs.append(("W1", ks, nb))
        for nb in range(8): frs.append(("WQ", ks, nb))
    NF = len(frs)
    q1 = FillQ(k)
    plan = {0: [("W1", 1), ("WQ", 2)], 1: [("WQ", 3)], 2: [("W1", 2), ("WQ", 4)], 3: [("WQ", 5)], 4: [("W1", 3), ("WQ", 6)],
            5: [("WQ", 7)], 6: [("K", 0), ("K", 1)], 7: [("V", 0), ("K", 2)]}
    def stage_switch(s):
        need = [("WQ", s)] + ([("W1", s // 2)] if s % 2 == 0 else [])
        vq.need(*need, cnt=[4] * len(need))
        k.op("s_barrier")
        q1.flush()
        for ks in (2 * s + 4, 2 * s + 5):
            if ks < 16:
                for rb in range(4): q1.add(xn_load(ks, rb))
        for p in plan[s]:
            for f in dma_items(p): q1.add(f)
    def read_frag(n, which):
        kind, ks, nb = frs[n]
        if n % 22 == 0 and which == 0: stage_switch(n // 22)
        r = FR + (n % 16) * 4
        if kind == "WQ":
            off = slot(("WQ", ks // 2)) + (ks & 1) * 8192 + which * 1024
            off = set_window("TA", TA, 8, slot(("WQ", ks // 2))) + (ks & 1) * 8192 + which * 1024
            k.op("ds_read_b64_tr_b16", A(r + 2 * which, 2), V(TA + nb), mods=f"offset:{off}")
        else:
            off = set_window("TB", TB, 3, slot(("W1", ks // 4))) + (ks & 3) * 4096 + which * 512
            k.op("ds_read_b64_tr_b16", A(r + 2 * which, 2), V(TB + nb), mods=f"offset:{off}")
        lq.issue(("w", n))
    def qacc(nb, rb): return SR + 4 * (nb * 4 + rb)
    def macc(nb, rb): return MACC + 4 * (nb * 4 + rb)
    for n in range(D):
        read_frag(n, 0); read_frag(n, 1)
    stp.stamp()
    for n in range(NF):
        kind, ks, nb = frs[n]
        if n % 11 == 0: vq.need(("x", ks), cnt=[4])
        lq.need(("w", n), cnt=[2])
        wf = A(FR + (n % 16) * 4, 4)
        first = ks == 0
        ms = []
        for rb in range(4):
            d = V(qacc(nb, rb) if kind == "WQ" else macc(nb, rb), 4)
            ms.append((d, A(XR + ((ks % 12) * 4 + rb) * 4, 4)))
        if kind == "W1": ms.append((V(MACC + 48 + 4 * nb, 4), V(ONES, 4)))
        for c, (d, b) in enumerate(ms):
            k.op("v_mfma_f32_16x16x32_bf16", d, wf, b, "0" if first else d)
            if c < 2 and n + D < NF: read_frag(n + D, c)
            else: q1.emit(2 if len(q1) > 12 else 1)
    q1.flush()
    stp.stamp()
    ST = 100
    B1 = 108
    k.op("v_lshlrev_b32", V(13), 3, V(l15))
    for rb in range(4):
        k.op("s_lshl_b32", S(sT0), S(sRa if rb < 2 else sRb), 3)
        k.op("s_add_u32", S(sT0), S(sT0), STAT_OFF + (rb & 1) * 128)
        k.op("buffer_load_dwordx2", V(ST + 2 * rb, 2), V(13), S(sWS, 4), S(sT0), mods="offen"); vq.issue("st")
    k.op("v_lshlrev_b32", V(14), 3, V(g))
    k.op("s_mul_i32", S(sT1), S(sH), 96)
    for nb in range(3):
        k.op("buffer_load_dwordx2", V(B1 + 2 * nb, 2), V(14), S(sB1, 4), S(sT1), mods=f"offen offset:{nb*32}"); vq.issue("st")
    vq.need(("K", 0), cnt=[4])
    k.op("s_barrier")
    for p in (("V", 1), ("K", 3), ("V", 2)):
        for f in dma_items(p): f()
    vq.need("st")
    k.op("v_lshlrev_b32", V(15), 4, V(vL))
    C1, C2 = -2 * LOG2E * 0.7978845608028654, -2 * LOG2E * 0.7978845608028654 * 0.044715
    k.op("s_mov_b32", S(sLd + 1), f32(C2))
    k.op("v_mov_b32", V(16), f32(C1))
    for nb in range(3):
        bb = 120
        k.op("v_lshlrev_b32", V(bb), 16, V(B1 + 2 * nb))
        k.op("v_and_b32", V(bb + 1), "0xffff0000", V(B1 + 2 * nb))
        k.op("v_lshlrev_b32", V(bb + 2), 16, V(B1 + 2 * nb + 1))
        k.op("v_and_b32", V(bb + 3), "0xffff0000", V(B1 + 2 * nb + 1))
        cs = MACC + 48 + 4 * nb
        k.op("s_mul_i32", S(sT1), S(sH), 3)
        k.op("s_add_u32", S(sT1), S(sT1), nb)
        k.op("s_lshr_b32", S(sT2), S(sT1), 1)
        k.op("s_lshl_b32", S(sT2), S(sT2), 10)
        k.op("s_and_b32", S(sT0), S(sT1), 1)
        k.op("s_lshl_b32", S(sT0), S(sT0), 3)
        k.op("s_add_u32", S(sT2), S(sT2), S(sT0))
        k.op("s_add_u32", S(sT2), S(sT2), HF_OFF)
        lab = k.newlabel("skiph")
        k.op("s_cmp_ge_u32", S(sT1), 86)
        k.op("s_cbranch_scc1", lab)
        for rb in range(4):
            a = macc(nb, rb)
            m2, rs = ST + 2 * rb, ST + 2 * rb + 1
            for i in range(4):
                k.op("v_fma_f32", V(a + i), "-" + V(m2), V(cs + i), V(a + i))
            for i in range(4):
                k.op("v_mul_f32", V(a + i), V(a + i), V(rs))
            for i in range(2):
                k.op("v_cvt_pk_bf16_f32", V(17), V(a + 2 * i), V(a + 2 * i + 1))
                k.op("v_lshlrev_b32", V(a + 2 * i), 16, V(17))
                k.op("v_and_b32", V(a + 2 * i + 1), "0xffff0000", V(17))
            for i in range(4):
                k.op("v_add_f32", V(a + i), V(a + i), V(bb + i))
            for i in range(2):
                k.op("v_cvt_pk_bf16_f32", V(17), V(a + 2 * i), V(a + 2 * i + 1))
                k.op("v_lshlrev_b32", V(a + 2 * i), 16, V(17))
                k.op("v_and_b32", V(a + 2 * i + 1), "0xffff0000", V(17))
            t = 124
            for i in range(4): k.op("v_mul_f32", V(t + i), V(a + i), V(a + i))
            for i in range(4): k.op("v_fma_f32", V(t + i), V(t + i), S(sLd + 1), V(16))
            for i in range(4): k.op("v_mul_f32", V(t + i), V(t + i), V(a + i))
            for i in range(4): k.op("v_exp_f32", V(t + i), V(t + i))
            for i in range(4): k.op("v_add_f32", V(t + i), "1.0", V(t + i))
            for i in range(4): k.op("v_rcp_f32", V(t + i), V(t + i))
            for i in range(4): k.op("v_mul_f32", V(a + i), V(a + i), V(t + i))
            k.op("v_cvt_pk_bf16_f32", V(a), V(a), V(a + 1))
            k.op("v_cvt_pk_bf16_f32", V(a + 1), V(a + 2), V(a + 3))
            k.op("s_lshr_b32", S(sT0), S(sRa if rb < 2 else sRb), 4)
            k.op("s_add_u32", S(sT0), S(sT0), rb & 1)
            k.op("s_mul_i32", S(sT0), S(sT0), 43 * 1024)
            k.op("s_add_u32", S(sT0), S(sT0), S(sT2))
            k.op("buffer_store_dwordx2", V(a, 2), V(15), S(sWS, 4), S(sT0), mods="offen")
        k.label(lab)
    vq.q = [None] * 12 + vq.q
    k.op("s_mov_b32", S(sT0), f32(QSCALE))
    for sub in range(2):
        for pi in range(4):
            X = [QR + sub * 32 + (2 * pi + u) * 4 for u in range(2)]
            for c in range(2):
                for half in range(2):
                    a = qacc(2 * pi + half, sub * 2 + c)
                    for i in range(4): k.op("v_mul_f32", V(a + i), S(sT0), V(a + i))
                    k.op("v_cvt_pk_bf16_f32", V(X[c] + 2 * half), V(a), V(a + 1))
                    k.op("v_cvt_pk_bf16_f32", V(X[c] + 2 * half + 1), V(a + 2), V(a + 3))
            k.nop(1)
            for i in range(4): k.op("v_permlane16_swap_b32", V(X[0] + i), V(X[1] + i))
    stp.stamp()
    k.op("v_and_b32", V(13), 31, V(vL))
    k.op("v_lshrrev_b32", V(14), 5, V(vL))
    k.op("s_and_b32", S(sT0), S(sW), 1)
    k.op("s_lshl_b32", S(sT0), S(sT0), 5)
    k.op("v_add_u32", V(vZ), S(sT0), V(13))
    k.op("v_lshlrev_b32", V(15), 2, V(14))
    k.op("v_sub_u32", V(vZ), V(vZ), V(15))
    k.op("v_mov_b32", V(vNinf), f32(-1e30))
    k.op("v_lshrrev_b32", V(15), 4, V(13))
    k.op("v_lshlrev_b32", V(vCo), 17, V(15))
    k.op("v_lshl_add_u32", V(vCo), V(14), 8, V(vCo))
    k.op("v_and_b32", V(15), 15, V(vL))
    k.op("v_lshl_add_u32", V(vCo), V(15), 4, V(vCo))
    k.op("s_mov_b32", S(sThr), f32(thr))
    k.op("s_mov_b32", S(sP2), 0)
    k.op("s_mov_b32", S(sP1), 32768)
    k.op("s_mov_b32", S(sRd), 65536)
    k.op("s_mov_b32", S(sNx), 98304)
    k.op("s_mov_b32", S(sTK), 4 * 16384)
    k.op("s_mov_b32", S(sTV), 3 * 16384)
    k.op("s_mov_b32", S(sT), 0)

    def mfma32(d, a, b, c): k.op("v_mfma_f32_32x32x16_bf16", d, a, b, c)
    def mask_block(sub, par):
        s0 = Sreg(sub, par)
        for e0 in range(0, 32, 2):
            for u in range(2):
                e = e0 + u; kb, r = e >> 4, e & 15
                c = 32 * kb + 16 * ((r >> 2) & 1) + 8 * (r >> 3) + (r & 3)
                k.op("v_cmp_gt_i32", S(sM + 2 * u, 2), c, V(vZ))
            k.nop(1)
            for u in range(2):
                k.op("v_cndmask_b32", V(s0 + e0 + u), V(s0 + e0 + u), V(vNinf), S(sM + 2 * u, 2))
    def soft_ops(sub, par):
        s0 = Sreg(sub, par); ps = vPs[sub]
        L = []
        def ex(e): return (8, lambda: k.op("v_exp_f32", V(s0 + e), V(s0 + e)))
        def tail(j):
            o = []
            if j == 0: o.append((4, lambda: k.op("v_add_f32", V(ps), V(s0), V(s0 + 1))))
            else:
                o.append((4, lambda: k.op("v_add_f32", V(ps), V(ps), V(s0 + 2 * j))))
                o.append((4, lambda: k.op("v_add_f32", V(ps), V(ps), V(s0 + 2 * j + 1))))
            d = 8 * (j >> 2) + (j & 3)
            o.append((4, lambda: k.op("v_cvt_pk_bf16_f32", V(s0 + d), V(s0 + 2 * j), V(s0 + 2 * j + 1))))
            return o
        for j in range(16):
            t = tail(j - 1) if j else []
            L.append(ex(2 * j)); L += t[:1]
            L.append(ex(2 * j + 1)); L += t[1:]
        L += tail(15)
        return L
    NP1 = 44
    def merge(lists):
        out = []
        n = max(len(x) for x in lists) if lists else 0
        for i in range(n):
            for x in lists:
                if i < len(x): out.append(x[i])
        return out
    def spread(ops, ngaps):
        tot = sum(c for c, _ in ops)
        res = [[] for _ in range(ngaps)]
        acc = 0
        for c, f in ops:
            gi = min(ngaps - 1, int((acc + c / 2) * ngaps / tot))
            res[gi].append(f); acc += c
        return res
    def rd(frag, isV):
        k.op("ds_read_b128", A(FR + frag * 4, 4), V(vA), mods=f"offset:{(16384 if isV else 0) + frag*1024}")
    def dma_block_items():
        it = []
        it.append(lambda: k.op("s_add_u32", "m0", S(sP2), S(sW4k)))
        for i in range(4):
            it.append(lambda i=i: k.op("buffer_load_dwordx4", V(vD), S(sK, 4), S(sTK), mods=f"offen offset:{i*1024} lds"))
        it.append(lambda: k.op("s_add_u32", "m0", "m0", 16384))
        for i in range(4):
            it.append(lambda i=i: k.op("buffer_load_dwordx4", V(vD), S(sV, 4), S(sTV), mods=f"offen offset:{i*1024} lds"))
        it.append(lambda: k.op("s_mov_b32", S(sTV), S(sTK)))
        it.append(lambda: k.op("s_add_u32", S(sTK), S(sTK), 16384))
        return it
    def rotate_items():
        return [lambda: k.op("s_mov_b32", S(sP2), S(sP1)), lambda: k.op("s_mov_b32", S(sP1), S(sRd)),
                lambda: k.op("s_mov_b32", S(sRd), S(sNx)),
                lambda: (k.op("s_add_u32", S(sNx), S(sNx), 32768), k.op("s_cmp_eq_u32", S(sNx), 163840),
                         k.op("s_cselect_b32", S(sNx), 0, S(sNx)))]
    def phaseA(par, qk, ex):
        ops = merge([soft_ops(s, par)[NP1:] for s in ex])
        ng = 16 * len(qk)
        extra = dma_block_items()
        if not qk:
            k.wait(lgkm=0)
            for f in range(DA): rd(f, True)
            for c, f in ops: f()
            return
        sp = spread(ops, ng - 4 * 1)
        gi = 0
        for f in range(16):
            kb, s = f >> 3, f & 7
            if f % 2 == 0: k.wait(lgkm=DA - 2)
            for sub in qk:
                d = V(Sreg(sub, 1 - par) + 16 * kb, 16)
                mfma32(d, A(FR + f * 4, 4), V(QR + sub * 32 + s * 4, 4), V(NEGM + 16 * sub, 16) if s == 0 else d)
                if sub == qk[0]:
                    nf = f + DA
                    if nf < 16: rd(nf, False)
                    else: rd(nf - 16, True)
                if gi < len(sp):
                    for fn in sp[gi]: fn()
                if gi >= ng - 4 - 8 and extra:
                    extra.pop(0)()
                    if len(qk) == 1 and gi >= ng - 4 and extra: extra.pop(0)()
                gi += 1
        for fn in extra: fn()
    def phaseB(par, pv, exn, bar="always"):
        ops = merge([soft_ops(s, 1 - par)[:NP1] for s in exn])
        ng = 16 * len(pv)
        sp = spread(ops, ng) if ops else []
        rot = rotate_items()
        gi = 0
        for f in range(16):
            kg, db = f >> 2, f & 3
            if f % 2 == 0: k.wait(lgkm=DA - 2)
            for sub in pv:
                d = A(OA + sub * 64 + 16 * db, 16)
                mfma32(d, A(FR + f * 4, 4), V(Sreg(sub, par) + 8 * kg, 4), d)
                if sub == pv[0]:
                    nf = f + DA
                    if nf == 16:
                        if bar == "always":
                            k.wait(vm=16); k.op("s_barrier")
                        elif bar == "w01":
                            lab = k.newlabel("nobar")
                            k.op("s_cmp_ge_u32", S(sW), 2); k.op("s_cbranch_scc1", lab)
                            k.wait(vm=8); k.op("s_barrier")
                            k.label(lab)
                        k.op("v_add_u32", V(vA), S(sNx), V(vL16))
                    if nf < 16: rd(nf, True)
                    else: rd(nf - 16, False)
                    if nf > 16 and rot: rot.pop(0)()
                if gi < len(sp):
                    for fn in sp[gi]: fn()
                gi += 1
        for fn in rot: fn()
    rare_sites = {}
    def check(par, subs, site):
        for sub in subs:
            k.op("v_cmp_nle_f32", "vcc", V(vPs[sub]), V(vT + 6))
            k.op("s_mov_b32", S(sRet), site)
            k.op("s_cbranch_vccnz", f"k2_rare_{sub}_{par}")
            lab = f"k2_ret_{sub}_{par}_{site}"
            k.label(lab)
            rare_sites.setdefault((sub, par), []).append((site, lab))
            k.op("v_add_f32", V(vLs[sub]), V(vLs[sub]), V(vPs[sub]))
    def raw_qk(subs, par, fill=None):
        k.op("v_add_u32", V(vT), S(sP1), V(vL16))
        k.wait(lgkm=0)
        for f in range(16): k.op("ds_read_b128", A(f * 4, 4), V(vT), mods=f"offset:{f*1024}")
        for f in range(16):
            kb, s = f >> 3, f & 7
            k.wait(lgkm=15 - f)
            for sub in subs:
                d = V(Sreg(sub, par) + 16 * kb, 16)
                mfma32(d, A(f * 4, 4), V(QR + sub * 32 + s * 4, 4), "0" if s == 0 else d)
                if fill: fill()
        k.nop(12)
    def rowmax(sub, par, dst):
        s0 = Sreg(sub, par)
        k.op("v_max3_f32", V(dst), V(s0), V(s0 + 1), V(s0 + 2))
        for e in range(3, 31, 2): k.op("v_max3_f32", V(dst), V(dst), V(s0 + e), V(s0 + e + 1))
        k.op("v_max_f32", V(dst), V(dst), V(s0 + 31))
        k.op("v_mov_b32", V(vT + 1), V(dst))
        k.nop(2)
        k.op("v_permlane32_swap_b32", V(dst), V(vT + 1))
        k.op("v_max_f32", V(dst), V(dst), V(vT + 1))
    def epilogue(sub):
        t = Sreg(sub, 0)
        k.op("v_mov_b32", V(vT + 1), V(vLs[sub]))
        k.nop(2)
        k.op("v_permlane32_swap_b32", V(vLs[sub]), V(vT + 1))
        k.op("v_add_f32", V(vLs[sub]), V(vLs[sub]), V(vT + 1))
        k.op("v_rcp_f32", V(vT + 2), V(vLs[sub]))
        k.nop(8)
        for db in range(4):
            for half in range(2):
                b = t + db * 16 + half * 8
                for i in range(8): k.op("v_accvgpr_read_b32", V(b + i), A(OA + sub * 64 + db * 16 + half * 8 + i))
                for i in range(8): k.op("v_mul_f32", V(b + i), V(b + i), V(vT + 2))
                for i in range(4): k.op("v_cvt_pk_bf16_f32", V(b + i), V(b + 2 * i), V(b + 2 * i + 1))
                k.op("buffer_store_dwordx4", V(b, 4), V(vCo), S(sWS, 4), S(sCa if sub == 0 else sCb),
                     mods=f"offen offset:{db*1024 + half*512}")

    k.op("v_mov_b32", V(vT + 6), S(sThr))
    zi = [0]
    def zfill():
        for _ in range(4):
            if zi[0] < 128:
                k.op("v_accvgpr_write_b32", A(OA + zi[0]), 0); zi[0] += 1
    raw_qk([0, 1], 0, zfill)
    lab = k.newlabel("nomask0")
    k.op("s_cmp_lg_u32", S(sNa), 1); k.op("s_cbranch_scc1", lab)
    mask_block(0, 0)
    k.label(lab)
    k.wait(vm=12)
    k.op("s_barrier")
    k.op("v_add_u32", V(vA), S(sRd), V(vL16))
    for sub in range(2):
        rowmax(sub, 0, vMx[sub])
        k.op("v_mov_b32", V(vLs[sub]), 0)
        for i in range(16): k.op("v_sub_f32", V(NEGM + 16 * sub + i), 0, V(vMx[sub]))
        for e in range(32): k.op("v_sub_f32", V(Sreg(sub, 0) + e), V(Sreg(sub, 0) + e), V(vMx[sub]))
    for f in range(DA): rd(f, False)
    for c, f in merge([soft_ops(s, 0)[:NP1] for s in range(2)]): f()
    stp.stamp()
    k.op("s_cmp_lt_u32", 1, S(sNa))
    k.op("s_cbranch_scc0", "k2_DL0")
    for par in range(2):
        k.label(f"k2_DD{par}")
        phaseA(par, [0, 1], [0, 1])
        check(par, [0, 1], 0)
        lab = k.newlabel("nomask")
        k.op("s_add_u32", S(sT0), S(sT), 2)
        k.op("s_cmp_lg_u32", S(sT0), S(sNa)); k.op("s_cbranch_scc1", lab)
        k.nop(12)
        mask_block(0, 1 - par)
        k.label(lab)
        phaseB(par, [0, 1], [0, 1])
        k.op("s_add_u32", S(sT), S(sT), 1)
        k.op("s_add_u32", S(sT0), S(sT), 1)
        k.op("s_cmp_lt_u32", S(sT0), S(sNa))
        k.op("s_cbranch_scc0", f"k2_DL{1-par}")
        if par == 1: k.op("s_branch", "k2_DD0")
    for par in range(2):
        k.label(f"k2_DL{par}")
        phaseA(par, [1], [0, 1])
        check(par, [0, 1], 1)
        phaseB(par, [0, 1], [1])
        epilogue(0)
        k.op("s_add_u32", S(sT), S(sT), 1)
        k.op("s_branch", f"k2_SS{1-par}")
    for par in range(2):
        k.label(f"k2_SS{par}")
        phaseA(par, [1], [1])
        check(par, [1], 2)
        lab = k.newlabel("nomask")
        k.op("s_add_u32", S(sT0), S(sT), 2)
        k.op("s_cmp_lg_u32", S(sT0), S(sNb)); k.op("s_cbranch_scc1", lab)
        k.nop(12)
        mask_block(1, 1 - par)
        k.label(lab)
        phaseB(par, [1], [1])
        k.op("s_add_u32", S(sT), S(sT), 1)
        k.op("s_add_u32", S(sT0), S(sT), 1)
        k.op("s_cmp_lt_u32", S(sT0), S(sNb))
        k.op("s_cbranch_scc0", f"k2_SL{1-par}")
        if par == 1: k.op("s_branch", "k2_SS0")
    for par in range(2):
        k.label(f"k2_SL{par}")
        phaseA(par, [], [1])
        check(par, [1], 3)
        phaseB(par, [1], [], bar="w01")
        k.op("s_branch", "k2_fin")
    k.label("k2_fin")
    stp.stamp()
    epilogue(1)
    if stamps:
        k.wait(vm=0, lgkm=0)
        stp.stamp()
        stp.flush(sWS, sW, 13)
    k.op("s_endpgm")
    for (sub, par), sites in sorted(rare_sites.items()):
        k.label(f"k2_rare_{sub}_{par}")
        k.nop(12)
        raw_qk([sub], par)
        lab = k.newlabel("rnomask")
        k.op("s_add_u32", S(sT0), S(sT), 1)
        k.op("s_cmp_lg_u32", S(sT0), S(sNa if sub == 0 else sNb)); k.op("s_cbranch_scc1", lab)
        mask_block(sub, par)
        k.label(lab)
        rowmax(sub, par, vT + 3)
        k.op("v_max_f32", V(vT + 3), V(vT + 3), V(vMx[sub]))
        k.op("v_sub_f32", V(vT + 4), V(vT + 3), V(vMx[sub]))
        k.op("v_mov_b32", V(vMx[sub]), V(vT + 3))
        k.op("v_sub_f32", V(vT + 5), 0, V(vT + 4))
        k.op("v_exp_f32", V(vT + 5), V(vT + 5))
        for i in range(16): k.op("v_sub_f32", V(NEGM + 16 * sub + i), 0, V(vT + 3))
        k.op("v_mul_f32", V(vLs[sub]), V(vLs[sub]), V(vT + 5))
        for i in range(64):
            k.op("v_accvgpr_read_b32", V(vT + (i & 1)), A(OA + sub * 64 + i))
            k.op("v_mul_f32", V(vT + (i & 1)), V(vT + (i & 1)), V(vT + 5))
            k.op("v_accvgpr_write_b32", A(OA + sub * 64 + i), V(vT + (i & 1)))
        for e in range(32): k.op("v_sub_f32", V(Sreg(sub, par) + e), V(Sreg(sub, par) + e), V(vT + 3))
        for e in range(32): k.op("v_sub_f32", V(Sreg(sub, 1 - par) + e), V(Sreg(sub, 1 - par) + e), V(vT + 4))
        for c, f in soft_ops(sub, par): f()
        k.nop(2)
        for (site, lab) in sites[:-1]:
            k.op("s_cmp_eq_u32", S(sRet), site); k.op("s_cbranch_scc1", lab)
        k.op("s_branch", sites[-1][1])
    k.label("k2_end")
    k.op("s_endpgm")
    return k

if __name__ == "__main__":
    k = build_k2()
    for e in k.check_hazards(): print(e)
    for e in k.check_waits(): print(e)
    print(k.maxregs(), len(k.ins))
```

```python
from common import *
LDS = 131072
def build_k3(stamps=False, P=4, NS=22):
    k = Kern("k3_kernel")
    vq, lq = Q(k, "vmcnt", 63), Q(k, "lgkmcnt", 15)
    stp = Stamps(k, stamps, 62, 2, lq, maxn=8)
    sWS, sWm, sX, sO, sB2 = 8, 12, 16, 20, 24
    sW, sRt, sCt, sT0, sT1, sT2 = 28, 29, 30, 31, 32, 33
    sAo, sKS, sWo, sWKS, sM0, sKSl = 34, 35, 36, 37, 38, 39
    vL, vL16 = 1, 2
    VA, VW, TA = 4, 8, 12
    g, l15, r_, cc, g1, t0, t1 = 20, 21, 22, 23, 24, 25, 26
    XV, BV = 28, 32
    vOo = 27
    ACC = 36
    AF = 100
    WF = AF + 16 * P
    k.op("s_cmp_ge_u32", "s2", 256)
    k.op("s_cbranch_scc1", "k3_end")
    k.op("s_load_dwordx2", S(40, 2), S(0, 2), KA["x"])
    k.op("s_load_dwordx2", S(42, 2), S(0, 2), KA["wo"])
    k.op("s_load_dwordx4", S(44, 4), S(0, 2), KA["w2"])
    k.op("s_load_dwordx2", S(48, 2), S(0, 2), KA["out"])
    k.op("s_load_dwordx2", S(50, 2), S(0, 2), KA["ws"])
    k.op("v_and_b32", V(vL), 63, "v0")
    k.op("v_lshrrev_b32", V(t0), 6, "v0")
    k.op("s_and_b32", S(sT0), "s2", 7)
    k.op("v_readfirstlane_b32", S(sW), V(t0))
    k.op("s_lshr_b32", S(sT1), "s2", 3)
    k.op("s_and_b32", S(sT2), S(sT1), 3)
    k.op("s_lshl_b32", S(sRt), S(sT0), 2)
    k.op("s_add_u32", S(sRt), S(sRt), S(sT2))
    k.op("s_lshr_b32", S(sCt), S(sT1), 2)
    k.op("v_lshlrev_b32", V(vL16), 4, V(vL))
    k.op("v_lshrrev_b32", V(g), 4, V(vL))
    k.op("v_and_b32", V(l15), 15, V(vL))
    k.op("v_bfe_u32", V(r_), V(vL), 2, 2)
    k.op("v_and_b32", V(cc), 3, V(vL))
    k.op("v_and_b32", V(g1), 1, V(g))
    k.op("s_mov_b32", S(sT0), 44032)
    k.op("s_cmp_lt_u32", S(sW), 6)
    k.op("s_cselect_b32", S(sT0), 131072, S(sT0))
    k.op("s_mov_b32", S(sKS), 2048)
    k.op("s_cselect_b32", S(sKS), 6144, S(sKS))
    k.op("s_mov_b32", S(sAo), HF_OFF - 6 * 1024)
    k.op("s_cselect_b32", S(sAo), CTX_OFF, S(sAo))
    k.op("s_cselect_b64", "vcc", "-1", "0")
    k.op("s_sub_u32", S(sT1), S(sW), 6)
    k.op("s_cmp_lt_u32", S(sW), 6)
    k.op("s_cselect_b32", S(sWo), S(sW), S(sT1))
    k.op("s_lshl_b32", S(sWo), S(sWo), 15)
    k.op("s_lshl_b32", S(sWKS), S(sKS), 5)
    k.op("s_lshl_b32", S(sT1), S(sW), 10)
    k.op("s_add_u32", S(sAo), S(sAo), S(sT1))
    k.op("s_lshl_b32", S(sT2), S(sT0), 2)
    k.op("s_mul_i32", S(sT2), S(sT2), S(sRt))
    k.op("s_add_u32", S(sAo), S(sAo), S(sT2))
    k.op("v_mov_b32", V(VA), V(vL16))
    for rb in range(1, 4): k.op("v_add_u32", V(VA + rb), S(sT0), V(VA + rb - 1))
    k.op("s_cmp_lt_u32", S(sW), 2)
    k.op("s_cselect_b32", S(sKSl), S(sKS), 0)
    k.op("s_cmp_eq_u32", S(sW), 6)
    k.op("s_cselect_b32", S(sKSl), S(sKS), S(sKSl))
    k.op("v_lshlrev_b32", V(t0), 1, V(g))
    k.op("v_and_b32", V(t1), 7, V(vL))
    k.op("v_xor_b32", V(t0), V(t0), V(t1))
    k.op("v_lshlrev_b32", V(t0), 4, V(t0))
    k.op("v_lshrrev_b32", V(t1), 3, V(vL))
    k.op("v_lshl_add_u32", V(t0), V(t1), 10, V(t0))
    k.op("s_lshl_b32", S(sT1), S(sCt), 7)
    k.op("v_add_u32", V(VW), S(sT1), V(t0))
    for i in range(1, 4): k.op("v_add_u32", V(VW + i), 7168, V(VW + i - 1))
    k.op("s_lshl_b32", S(sM0), S(sW), 14)
    k.wait(lgkm=0)
    stp.stamp()
    load_srd(k, sWS, "ws", 50)
    k.op("s_cmp_lt_u32", S(sW), 6)
    k.op("s_cselect_b32", S(sWm), S(42), S(44))
    k.op("s_cselect_b32", S(sWm + 1), S(43), S(45))
    k.op("s_mov_b32", S(sWm + 2), hex(SZ["w2"]))
    k.op("s_cselect_b32", S(sWm + 2), hex(SZ["wo"]), S(sWm + 2))
    k.op("s_and_b32", S(sWm + 1), S(sWm + 1), "0xffff")
    k.op("s_mov_b32", S(sWm + 3), "0x20000")
    def issue_items(i):
        it = []
        sl = i % P
        it.append(lambda: k.op("s_add_u32", "m0", S(sM0), sl * 4096))
        def a(rb):
            def f():
                k.op("buffer_load_dwordx4", V(AF + sl * 16 + rb * 4, 4), V(VA + rb), S(sWS, 4), S(sAo), mods="offen"); vq.issue(("a", i))
            return f
        def w(j):
            def f():
                k.op("buffer_load_dwordx4", V(VW + j), S(sWm, 4), S(sWo), mods=f"offen offset:{j*1024} lds"); vq.issue(("w", i))
            return f
        it.append(a(0))
        it += [w(j) for j in range(4)]
        it += [a(rb) for rb in range(1, 4)]
        it.append(lambda: k.op("s_add_u32", S(sAo), S(sAo), S(sKSl if i == NS - 2 else sKS)))
        it.append(lambda: k.op("s_add_u32", S(sWo), S(sWo), S(sWKS)))
        return it
    for i in range(P - 1):
        for f in issue_items(i): f()
    load_srd(k, sX, "x", 40); load_srd(k, sO, "out", 48); load_srd(k, sB2, "b2", 46)
    k.op("v_lshrrev_b32", V(t0), 1, V(g))
    k.op("v_lshlrev_b32", V(t0), 4, V(t0))
    k.op("v_lshl_add_u32", V(t0), V(g1), 2, V(t0))
    k.op("v_lshlrev_b32", V(t1), 2, V(g))
    k.op("v_cndmask_b32", V(t0), V(t1), V(t0), "vcc")
    k.op("v_add_u32", V(t0), V(t0), V(r_))
    k.op("v_lshlrev_b32", V(t0), 7, V(t0))
    k.op("v_lshl_add_u32", V(t0), V(cc), 3, V(t0))
    k.op("v_add_u32", V(t0), S(sM0), V(t0))
    k.op("v_lshrrev_b32", V(t1), 1, V(r_))
    k.op("v_lshl_or_b32", V(t1), V(g1), 1, V(t1))
    k.op("s_mov_b32", S(sT0), 2048)
    k.op("s_cmp_lt_u32", S(sW), 6)
    k.op("s_cselect_b32", S(sT0), 1024, S(sT0))
    for nb in range(4):
        k.op("v_xor_b32", V(3), nb, V(t1))
        k.op("v_lshl_add_u32", V(TA + 2 * nb), V(3), 5, V(t0))
        k.op("v_add_u32", V(TA + 2 * nb + 1), S(sT0), V(TA + 2 * nb))
    k.op("s_lshl_b32", S(sT0), S(sRt), 16)
    k.op("s_lshr_b32", S(sT1), S(sW), 1)
    k.op("s_lshl_b32", S(sT1), S(sT1), 14)
    k.op("s_add_u32", S(sT0), S(sT0), S(sT1))
    k.op("s_lshl_b32", S(sT1), S(sCt), 7)
    k.op("s_and_b32", S(sT2), S(sW), 1)
    k.op("s_lshl_b32", S(sT2), S(sT2), 6)
    k.op("s_add_u32", S(sT1), S(sT1), S(sT2))
    k.op("s_add_u32", S(sT0), S(sT0), S(sT1))
    k.op("v_lshlrev_b32", V(vOo), 10, V(l15))
    k.op("v_lshl_add_u32", V(vOo), V(g), 3, V(vOo))
    k.op("v_add_u32", V(vOo), S(sT0), V(vOo))
    k.op("v_lshlrev_b32", V(3), 3, V(g))
    for u in range(2):
        k.op("buffer_load_dwordx2", V(XV + 2 * u, 2), V(vOo), S(sX, 4), 0, mods=f"offen offset:{32*u}"); vq.issue("xb")
        k.op("buffer_load_dwordx2", V(BV + 2 * u, 2), V(3), S(sB2, 4), S(sT1), mods=f"offen offset:{32*u}"); vq.issue("xb")
    def rd_items(i):
        it = []
        for nb in range(4):
            for j in range(2):
                def f(nb=nb, j=j):
                    k.op("ds_read_b64_tr_b16", V(WF + (i % 2) * 16 + nb * 4 + 2 * j, 2), V(TA + 2 * nb + j), mods=f"offset:{(i%P)*4096}")
                    lq.issue(("r", i, nb))
                it.append(f)
        return it
    vq.need(("w", 0))
    for f in rd_items(0): f()
    stp.stamp()
    for i in range(NS):
        q = FillQ(k)
        if i + 1 < NS:
            q.add(lambda: vq.need(("w", i + 1), cnt=[4]))
            for f in rd_items(i + 1): q.add(f)
        if i + P - 1 < NS:
            for f in issue_items(i + P - 1): q.add(f)
        vq.need(("a", i), cnt=[4])
        n = 0
        for nb in range(4):
            lq.need(("r", i, nb), cnt=[2])
            for rb in range(4):
                d = V(ACC + 4 * (nb * 4 + rb), 4)
                k.op("v_mfma_f32_16x16x32_bf16", d, V(WF + (i % 2) * 16 + nb * 4, 4), V(AF + (i % P) * 16 + rb * 4, 4), "0" if i == 0 else d)
                q.emit(2 if n % 4 == 0 else 1); n += 1
        q.flush()
    stp.stamp()
    k.op("v_add_u32", V(t0), S(sM0), V(vL16))
    k.nop(8)
    for t in range(16):
        k.op("ds_write_b128", V(t0), V(ACC + 4 * t, 4), mods=f"offset:{t*1024}")
    k.wait(lgkm=0)
    k.op("s_barrier")
    k.op("s_and_b32", S(sT2), S(sW), 1)
    k.op("s_lshl_b32", S(sT2), S(sT2), 13)
    k.op("s_lshr_b32", S(sT1), S(sW), 1)
    k.op("s_lshl_b32", S(sT1), S(sT1), 10)
    k.op("s_add_u32", S(sT2), S(sT2), S(sT1))
    k.op("v_add_u32", V(t0), S(sT2), V(vL16))
    k.op("v_add_u32", V(t1), 65536, V(t0))
    R = AF
    for u in range(2):
        for w in range(8):
            k.op("ds_read_b128", V(R + (u * 8 + w) * 4, 4), V(t0 if w < 4 else t1), mods=f"offset:{(w%4)*16384 + u*4096}")
    k.wait(vm=0)
    for u in range(2):
        k.wait(lgkm=8 - 8 * u)
        b = R + u * 32
        for i in range(4):
            k.op("v_add_f32", V(b + i), V(b + i), V(b + 4 + i))
            k.op("v_add_f32", V(b + 8 + i), V(b + 8 + i), V(b + 12 + i))
            k.op("v_add_f32", V(b + 16 + i), V(b + 16 + i), V(b + 20 + i))
            k.op("v_add_f32", V(b + 24 + i), V(b + 24 + i), V(b + 28 + i))
            k.op("v_add_f32", V(b + i), V(b + i), V(b + 8 + i))
            k.op("v_add_f32", V(b + i), V(b + i), V(b + 16 + i))
        def rb2(a):
            k.op("v_cvt_pk_bf16_f32", V(3), V(a), V(a + 1))
            k.op("v_lshlrev_b32", V(a), 16, V(3))
            k.op("v_and_b32", V(a + 1), "0xffff0000", V(3))
        def unpack(dst, src):
            k.op("v_lshlrev_b32", V(dst), 16, V(src))
            k.op("v_and_b32", V(dst + 1), "0xffff0000", V(src))
        for h in range(2):
            rb2(b + 2 * h); rb2(b + 24 + 2 * h)
            unpack(b + 4 + 2 * h, XV + 2 * u + h)
            unpack(b + 8 + 2 * h, BV + 2 * u + h)
        for i in range(4):
            k.op("v_add_f32", V(b + i), V(b + i), V(b + 4 + i))
            k.op("v_add_f32", V(b + 24 + i), V(b + 24 + i), V(b + 8 + i))
        for h in range(2):
            rb2(b + 2 * h); rb2(b + 24 + 2 * h)
        for i in range(4):
            k.op("v_add_f32", V(b + i), V(b + i), V(b + 24 + i))
        k.op("v_cvt_pk_bf16_f32", V(b), V(b), V(b + 1))
        k.op("v_cvt_pk_bf16_f32", V(b + 1), V(b + 2), V(b + 3))
        k.op("buffer_store_dwordx2", V(b, 2), V(vOo), S(sO, 4), 0, mods=f"offen offset:{32*u}")
    if stamps:
        k.wait(vm=0)
        stp.stamp()
        stp.flush(sWS, sW, 3)
    k.label("k3_end")
    k.op("s_endpgm")
    return k

if __name__ == "__main__":
    k = build_k3()
    for e in k.check_hazards(): print(e)
    for e in k.check_waits(): print(e)
    print(k.maxregs(), len(k.ins))
```

```python
import sys, importlib
from common import *
HEADER = open("parallel_sum__compressed_kv_cla__mixer_channel_mlp__prompt.s.ref").read().split("; Override launch")[0]

def assemble(kernels, path):
    out = [HEADER.rstrip()]
    import os
    for (k, g, b, lds, vg) in kernels:
        if k.name in os.environ.get("SKIPLAUNCH", "").split(","): continue
        out.append(f"; @launch kernel={k.name} grid=({g},1,1) block=({b},1,1) lds={lds}")
    out.append('.amdgcn_target "amdgcn-amd-amdhsa--gfx950"')
    out.append(".text")
    seen = []
    for (k, g, b, lds, vg) in kernels:
        if k.name in seen: continue
        seen.append(k.name)
        errs = k.check_hazards() + k.check_waits()
        for e in errs: print(k.name, e)
        if errs: print("!!!! verification errors in", k.name)
        out.append(f".globl {k.name}\n.p2align 8\n.type {k.name},@function\n{k.name}:")
        out.append(k.text())
    out.append('.section .rodata,"a"')
    seen = []
    for (k, g, b, lds, vg) in kernels:
        if k.name in seen: continue
        seen.append(k.name)
        out.append(".p2align 6")
        out.append(descriptor(k, vgpr=vg, accum=256 if vg == 512 else None, sgpr=102 if vg == 512 else None))
    open(path, "w").write("\n".join(out) + "\n")

if __name__ == "__main__":
    import k1, os
    ST = bool(os.environ.get("STAMPS"))
    ks = [(k1.build_k1(stamps=ST, prefetch=not os.environ.get('NOPF'), twice=bool(os.environ.get('TWICE')), noln=bool(os.environ.get('NOLN')), **eval(os.environ.get('K1ARGS', '{}'))), 256, 256, 163840, 512)]
    try:
        import k2
        ks.append((k2.build_k2(stamps=ST, **eval(os.environ.get('K2ARGS', '{}'))), 256, 256, 163840, 512))
        import k3
        ks.append((k3.build_k3(stamps=ST, **eval(os.environ.get('K3ARGS', '{}'))), 256, 256, k3.LDS, None))
    except ImportError as e:
        print("missing", e)
    path = sys.argv[1] if len(sys.argv) > 1 else "dev.s"
    assemble(ks, path)
    print("wrote", path)
```

```python
from common import *
import struct
def f32(x): return hex(struct.unpack("<I", struct.pack("<f", x))[0])
LOG2E = 1.4426950408889634
QSCALE = LOG2E / (128 ** 0.5)
STAT_OFF = YF_OFF

def build_k2(stamps=False, D=4, DA=8, thr=2.0 ** 60):
    k = Kern("k2_kernel")
    vq, lq = Q(k, "vmcnt", 63), Q(k, "lgkmcnt", 15)
    stp = Stamps(k, stamps, 62, 1, lq, maxn=8)
    sWS, sWQ, sW1, sK, sV, sB1 = 8, 12, 16, 20, 24, 28
    sW, sH, sP, sNa, sNb, sT = 32, 33, 34, 35, 36, 37
    sT0, sT1, sT2, sSo = 38, 39, 40, 41
    sP2, sP1, sRd, sNx = 42, 43, 44, 45
    sTK, sTV, sW4k, sThr, sRet = 46, 47, 48, 49, 50
    sXa, sXb = 51, 52
    sCa, sCb = 53, 54
    sM = 56
    sLd = 98
    vL, vL16, vA, vD, vZ, vNinf = 1, 2, 3, 4, 5, 6
    vPs = [7, 8]; vLs = [9, 10]; vMx = [11, 12]
    vT = 13
    vCo = 20
    QR, NEGM, SR = 32, 96, 128
    def Sreg(sub, par): return SR + sub * 64 + par * 32
    OA, FR = 64, 192
    TA, TB, VW, VW1 = 96, 104, 108, 112
    vXo = 21
    MACC = 32
    ONES = 116
    XR = 0

    k.op("s_cmp_ge_u32", "s2", 256)
    k.op("s_cbranch_scc1", "k2_end")
    k.op("s_load_dwordx2", S(84, 2), S(0, 2), KA["wq"])
    k.op("s_load_dwordx4", S(88, 4), S(0, 2), KA["w1"])
    k.op("s_load_dwordx2", S(92, 2), S(0, 2), KA["ws"])
    k.op("v_and_b32", V(vL), 63, "v0")
    k.op("v_lshrrev_b32", V(13), 6, "v0")
    k.op("s_and_b32", S(sT0), "s2", 7)
    k.op("v_readfirstlane_b32", S(sW), V(13))
    k.op("s_lshr_b32", S(sT1), "s2", 3)
    k.op("s_and_b32", S(sT2), S(sT1), 3)
    k.op("s_lshl_b32", S(sH), S(sT0), 2)
    k.op("s_add_u32", S(sH), S(sH), S(sT2))
    k.op("s_lshr_b32", S(sP), S(sT1), 2)
    k.op("v_lshlrev_b32", V(vL16), 4, V(vL))
    k.op("s_lshl_b32", S(sW4k), S(sW), 12)
    k.op("v_add_u32", V(vD), S(sW4k), V(vL16))
    g, l15, p8, l3, r_, cc, g1, t7 = 22, 23, 24, 25, 26, 27, 28, 29
    k.op("v_lshrrev_b32", V(g), 4, V(vL))
    k.op("v_and_b32", V(l15), 15, V(vL))
    k.op("v_and_b32", V(p8), 7, V(vL))
    k.op("v_lshrrev_b32", V(l3), 3, V(vL))
    k.op("v_bfe_u32", V(r_), V(vL), 2, 2)
    k.op("v_and_b32", V(cc), 3, V(vL))
    k.op("v_and_b32", V(g1), 1, V(g))
    k.op("v_lshlrev_b32", V(t7), 1, V(g))
    k.op("v_xor_b32", V(t7), V(t7), V(l15))
    k.op("v_lshlrev_b32", V(t7), 4, V(t7))
    k.op("v_lshl_add_u32", V(t7), V(g), 13, V(t7))
    k.op("s_lshl_b32", S(sT0), S(sW), 17)
    k.op("s_lshl_b32", S(sT1), S(sH), 8)
    k.op("s_add_u32", S(sT0), S(sT0), S(sT1))
    k.op("v_add_u32", V(VW), S(sT0), V(t7))
    k.op("v_add_u32", V(VW + 1), 32768 - 1024, V(VW))
    k.op("v_xor_b32", V(VW + 2), 128, V(VW))
    k.op("v_add_u32", V(VW + 2), 2 * (32768 - 1024), V(VW + 2))
    k.op("v_add_u32", V(VW + 3), 32768 - 1024, V(VW + 2))
    k.op("v_lshlrev_b32", V(t7), 1, V(g1))
    k.op("v_xor_b32", V(t7), V(t7), V(p8))
    k.op("v_lshlrev_b32", V(t7), 4, V(t7))
    k.op("v_mul_u32_u24", V(30), 2752, V(l3))
    k.op("s_mul_i32", S(sT0), S(sW), 32 * 2752)
    k.op("s_mul_i32", S(sT1), S(sH), 96)
    k.op("s_add_u32", S(sT0), S(sT0), S(sT1))
    k.op("v_add_u32", V(30), S(sT0), V(30))
    k.op("v_add_u32", V(VW1), V(30), V(t7))
    k.op("v_xor_b32", V(t7), 64, V(t7))
    k.op("v_add_u32", V(VW1 + 1), V(30), V(t7))
    k.op("v_add_u32", V(VW1 + 1), 8 * 2752 - 1024, V(VW1 + 1))
    k.op("v_add_u32", V(VW1 + 2), 2 * (8 * 2752 - 1024), V(VW1))
    k.op("v_add_u32", V(VW1 + 3), 2 * (8 * 2752 - 1024), V(VW1 + 1))
    k.op("s_lshl_b32", S(sT0), S(sP), 7)
    k.op("s_lshl_b32", S(sT1), S(sW), 5)
    k.op("s_add_u32", S(sXa), S(sT0), S(sT1))
    k.op("s_sub_u32", S(sXb), 1920, S(sT0))
    k.op("s_add_u32", S(sXb), S(sXb), S(sT1))
    k.op("s_lshl_b32", S(sT2), S(sH), 12)
    k.op("s_add_u32", S(sT2), S(sT2), CTX_OFF)
    k.op("s_lshl_b32", S(sCa), S(sXa), 13)
    k.op("s_add_u32", S(sCa), S(sCa), S(sT2))
    k.op("s_lshl_b32", S(sCb), S(sXb), 13)
    k.op("s_add_u32", S(sCb), S(sCb), S(sT2))
    sRa, sRb = 94, 95
    k.op("s_mov_b32", S(sRa), S(sXa)); k.op("s_mov_b32", S(sRb), S(sXb))
    sHr = 56
    for rb in range(4):
        k.op("s_lshr_b32", S(sHr + rb), S(sRa if rb < 2 else sRb), 4)
        k.op("s_add_u32", S(sHr + rb), S(sHr + rb), rb & 1)
        k.op("s_mul_i32", S(sHr + rb), S(sHr + rb), 43 * 1024)
    k.op("s_lshl_b32", S(sXa), S(sXa), 10)
    k.op("s_lshl_b32", S(sXb), S(sXb), 10)
    k.op("s_lshr_b32", S(sT1), S(sW), 1)
    k.op("s_lshl_b32", S(sT0), S(sP), 1)
    k.op("s_add_u32", S(sNa), S(sT0), S(sT1))
    k.op("s_add_u32", S(sNa), S(sNa), 1)
    k.op("s_sub_u32", S(sNb), 31, S(sT0))
    k.op("s_add_u32", S(sNb), S(sNb), S(sT1))
    k.wait(lgkm=0)
    stp.stamp()
    load_srd(k, sWQ, "wq", 84); load_srd(k, sW1, "w1", 88); load_srd(k, sWS, "ws", 92)

    pages = {}
    order = []
    for j in range(4):
        order += [("W1", j), ("WQ", 2 * j), ("WQ", 2 * j + 1)]
    for i, p in enumerate(order): pages[p] = i
    for t in range(6): pages[("K", t)] = 12 + 2 * t; pages[("V", t)] = 15 + 2 * t
    def slot(p): return (pages[p] % 10) * 16384
    def dma_items(p):
        kind, j = p
        def setup():
            k.op("s_add_u32", "m0", S(sW4k), slot(p))
            k.op("s_mov_b32", S(sSo), {"W1": j * 128 * 2752, "WQ": j * 524288, "K": j * 16384, "V": (j + 1) * 16384}[kind])
        def ld(i):
            def f():
                if kind == "WQ": k.op("buffer_load_dwordx4", V(VW + i), S(sWQ, 4), S(sSo), mods=f"offen offset:{i*1024} lds")
                elif kind == "W1": k.op("buffer_load_dwordx4", V(VW1 + i), S(sW1, 4), S(sSo), mods=f"offen offset:{i*1024} lds")
                else: k.op("buffer_load_dwordx4", V(vD), S(sK if kind == "K" else sV, 4), S(sSo), mods=f"offen offset:{i*1024} lds")
                vq.issue(p)
            return f
        return [setup] + [ld(i) for i in range(4)]
    def xn_load(ks, rb):
        def f():
            r = XR + ((ks % 12) * 4 + rb) * 4
            k.op("s_add_u32", S(sLd), S(sXa if rb < 2 else sXb), (rb & 1) * 16384 + (ks >> 2) * 4096)
            k.op("buffer_load_dwordx4", A(r, 4), V(vL16), S(sWS, 4), S(sLd), mods=f"offen offset:{(ks&3)*1024}")
            vq.issue(("x", ks))
        return f
    for p in (("W1", 0), ("WQ", 0)):
        for f in dma_items(p): f()
    for ks in range(2):
        for rb in range(4): xn_load(ks, rb)()
    for f in dma_items(("WQ", 1)): f()
    for ks in range(2, 4):
        for rb in range(4): xn_load(ks, rb)()
    load_srd(k, sB1, "b1", 90)
    k.op("s_lshl_b32", S(sT0), S(sH), 19)
    k.op("s_add_u32", S(sT1), S(sT0), KF_OFF)
    k.op("s_add_u32", S(sK), S(92), S(sT1))
    k.op("s_addc_u32", S(sK + 1), S(93), 0)
    k.op("s_and_b32", S(sK + 1), S(sK + 1), "0xffff")
    k.op("s_lshl_b32", S(sT2), S(sP), 15)
    k.op("s_sub_u32", S(sK + 2), 32 * 16384, S(sT2))
    k.op("s_mov_b32", S(sK + 3), "0x20000")
    k.op("s_add_u32", S(sT1), S(sT0), VF_OFF - 16384)
    k.op("s_add_u32", S(sV), S(92), S(sT1))
    k.op("s_addc_u32", S(sV + 1), S(93), 0)
    k.op("s_and_b32", S(sV + 1), S(sV + 1), "0xffff")
    k.op("s_add_u32", S(sV + 2), S(sK + 2), 16384)
    k.op("s_mov_b32", S(sV + 3), "0x20000")
    k.op("v_lshl_or_b32", V(30), V(g1), 2, V(r_))
    k.op("v_lshl_add_u32", V(31), V(g), 3, V(r_))
    k.op("v_lshlrev_b32", V(t7), 8, V(31))
    k.op("v_lshl_add_u32", V(t7), V(cc), 3, V(t7))
    for nb in range(8):
        k.op("v_xor_b32", V(13), nb, V(30))
        k.op("v_lshl_add_u32", V(TA + nb), V(13), 5, V(t7))
    k.op("v_lshrrev_b32", V(13), 1, V(r_))
    k.op("v_lshl_or_b32", V(30), V(g1), 1, V(13))
    k.op("v_lshlrev_b32", V(t7), 7, V(31))
    k.op("v_lshl_add_u32", V(t7), V(cc), 3, V(t7))
    for nb in range(3):
        k.op("v_xor_b32", V(13), nb, V(30))
        k.op("v_lshl_add_u32", V(TB + nb), V(13), 5, V(t7))
    for i in range(4): k.op("v_mov_b32", V(ONES + i), "0x3f803f80")
    ST = 120
    B1 = [92, 94, 30]
    k.op("v_lshlrev_b32", V(13), 3, V(l15))
    for rb in range(4):
        k.op("s_lshl_b32", S(sT0), S(sRa if rb < 2 else sRb), 3)
        k.op("s_add_u32", S(sT0), S(sT0), STAT_OFF + (rb & 1) * 128)
        k.op("buffer_load_dwordx2", V(ST + 2 * rb, 2), V(13), S(sWS, 4), S(sT0), mods="offen"); vq.issue("st")
    k.op("v_lshlrev_b32", V(14), 3, V(g))
    k.op("s_mul_i32", S(sT1), S(sH), 96)
    for nb in range(3):
        k.op("buffer_load_dwordx2", V(B1[nb], 2), V(14), S(sB1, 4), S(sT1), mods=f"offen offset:{nb*32}"); vq.issue("st")
    win = {"TA": 0, "TB": 0}
    def set_window(name, base, n, off):
        w = off // 65536
        if win[name] != w:
            d = (w - win[name]) * 65536
            for i in range(n): k.op("v_add_u32", V(base + i), hex(d & 0xffffffff), V(base + i))
            win[name] = w
        return off - w * 65536
    frs = []
    for ks in range(16):
        for nb in range(3): frs.append(("W1", ks, nb))
        for nb in range(8): frs.append(("WQ", ks, nb))
    NF = len(frs)
    q1 = FillQ(k)
    plan = {0: [("W1", 1), ("WQ", 2)], 1: [("WQ", 3)], 2: [("W1", 2), ("WQ", 4)], 3: [("WQ", 5)], 4: [("W1", 3), ("WQ", 6)],
            5: [("WQ", 7)], 6: [("K", 0), ("K", 1)], 7: [("V", 0), ("K", 2)]}
    def stage_switch(s):
        need = [("WQ", s)] + ([("W1", s // 2)] if s % 2 == 0 else [])
        vq.need(*need, cnt=[4] * len(need))
        k.op("s_barrier")
        q1.flush()
        for ks in (2 * s + 4, 2 * s + 5):
            if ks < 16:
                for rb in range(4): q1.add(xn_load(ks, rb))
        for p in plan[s]:
            for f in dma_items(p): q1.add(f)
    def read_frag(n, which):
        kind, ks, nb = frs[n]
        if n % 22 == 0 and which == 0: stage_switch(n // 22)
        r = FR + (n % 16) * 4
        if kind == "WQ":
            off = slot(("WQ", ks // 2)) + (ks & 1) * 8192 + which * 1024
            off = set_window("TA", TA, 8, slot(("WQ", ks // 2))) + (ks & 1) * 8192 + which * 1024
            k.op("ds_read_b64_tr_b16", A(r + 2 * which, 2), V(TA + nb), mods=f"offset:{off}")
        else:
            off = set_window("TB", TB, 3, slot(("W1", ks // 4))) + (ks & 3) * 4096 + which * 512
            k.op("ds_read_b64_tr_b16", A(r + 2 * which, 2), V(TB + nb), mods=f"offset:{off}")
        lq.issue(("w", n))
    def qacc(nb, rb): return SR + 4 * (nb * 4 + rb)
    def macc(nb, rb): return MACC + 4 * (nb * 4 + rb)
    for n in range(D):
        read_frag(n, 0); read_frag(n, 1)
    stp.stamp()
    for n in range(NF):
        kind, ks, nb = frs[n]
        if n % 11 == 0: vq.need(("x", ks), cnt=[4])
        lq.need(("w", n), cnt=[2])
        wf = A(FR + (n % 16) * 4, 4)
        first = ks == 0
        ms = []
        for rb in range(4):
            d = V(qacc(nb, rb) if kind == "WQ" else macc(nb, rb), 4)
            ms.append((d, A(XR + ((ks % 12) * 4 + rb) * 4, 4)))
        if kind == "W1": ms.append((V(MACC + 48 + 4 * nb, 4), V(ONES, 4)))
        for c, (d, b) in enumerate(ms):
            k.op("v_mfma_f32_16x16x32_bf16", d, wf, b, "0" if first else d)
            if c < 2 and n + D < NF: read_frag(n + D, c)
            else: q1.emit(2 if len(q1) > 12 else 1)
    q1.flush()
    stp.stamp()
    vq.need(("K", 0), cnt=[4])
    k.op("s_barrier")
    for p in (("V", 1), ("K", 3), ("V", 2)):
        for f in dma_items(p): f()
    k.op("v_lshlrev_b32", V(15), 4, V(vL))
    C1, C2 = -2 * LOG2E * 0.7978845608028654, -2 * LOG2E * 0.7978845608028654 * 0.044715
    k.op("v_mov_b32", V(16), f32(C1)); k.op("v_mov_b32", V(17), f32(C2))
    k.op("v_mov_b32", V(18), "1.0"); k.op("v_mov_b32", V(19), "1.0")
    def P(r): return V(r, 2)
    bb, t = 96, 100
    for nb in range(3):
        k.op("v_lshlrev_b32", V(bb), 16, V(B1[nb]))
        k.op("v_and_b32", V(bb + 1), "0xffff0000", V(B1[nb]))
        k.op("v_lshlrev_b32", V(bb + 2), 16, V(B1[nb] + 1))
        k.op("v_and_b32", V(bb + 3), "0xffff0000", V(B1[nb] + 1))
        cs = MACC + 48 + 4 * nb
        k.op("s_mul_i32", S(sT1), S(sH), 3)
        k.op("s_add_u32", S(sT1), S(sT1), nb)
        k.op("s_lshr_b32", S(sT2), S(sT1), 1)
        k.op("s_lshl_b32", S(sT2), S(sT2), 10)
        k.op("s_and_b32", S(sT0), S(sT1), 1)
        k.op("s_lshl_b32", S(sT0), S(sT0), 3)
        k.op("s_add_u32", S(sT2), S(sT2), S(sT0))
        k.op("s_add_u32", S(sT2), S(sT2), HF_OFF)
        lab = k.newlabel("skiph")
        k.op("s_cmp_ge_u32", S(sT1), 86)
        k.op("s_cbranch_scc1", lab)
        for rp in range(2):
            rbs = (2 * rp, 2 * rp + 1)
            def each(fn):
                for j, rb in enumerate(rbs):
                    for i in (0, 2): fn(macc(nb, rb) + i, t + 4 * j + i, ST + 2 * rb, i)
            each(lambda a, tt, st, i: k.op("v_pk_fma_f32", P(a), P(cs + i), P(st), P(a), mods="op_sel_hi:[1,0,1] neg_lo:[1,0,0] neg_hi:[1,0,0]"))
            each(lambda a, tt, st, i: k.op("v_pk_fma_f32", P(a), P(a), P(st), P(bb + i), mods="op_sel:[0,1,0]"))
            each(lambda a, tt, st, i: k.op("v_pk_mul_f32", P(tt), P(a), P(a)))
            each(lambda a, tt, st, i: k.op("v_pk_fma_f32", P(tt), P(tt), P(16), P(16), mods="op_sel:[0,1,0] op_sel_hi:[1,1,0]"))
            each(lambda a, tt, st, i: k.op("v_pk_mul_f32", P(tt), P(tt), P(a)))
            for i in range(8): k.op("v_exp_f32", V(t + i), V(t + i))
            each(lambda a, tt, st, i: k.op("v_pk_add_f32", P(tt), P(tt), P(18)))
            for i in range(8): k.op("v_rcp_f32", V(t + i), V(t + i))
            each(lambda a, tt, st, i: k.op("v_pk_mul_f32", P(a), P(a), P(tt)))
            for rb in rbs:
                a = macc(nb, rb)
                k.op("v_cvt_pk_bf16_f32", V(a), V(a), V(a + 1))
                k.op("v_cvt_pk_bf16_f32", V(a + 1), V(a + 2), V(a + 3))
                k.op("s_add_u32", S(sT0), S(sHr + rb), S(sT2))
                k.op("buffer_store_dwordx2", V(a, 2), V(15), S(sWS, 4), S(sT0), mods="offen")
        k.label(lab)
    k.op("v_mov_b32", V(16), f32(QSCALE)); k.op("v_mov_b32", V(17), f32(QSCALE))
    for sub in range(2):
        for pi in range(4):
            X = [QR + sub * 32 + (2 * pi + u) * 4 for u in range(2)]
            for c in range(2):
                for half in range(2):
                    a = qacc(2 * pi + half, sub * 2 + c)
                    for i in (0, 2): k.op("v_pk_mul_f32", P(a + i), P(a + i), P(16))
                    k.op("v_cvt_pk_bf16_f32", V(X[c] + 2 * half), V(a), V(a + 1))
                    k.op("v_cvt_pk_bf16_f32", V(X[c] + 2 * half + 1), V(a + 2), V(a + 3))
            k.nop(1)
            for i in range(4): k.op("v_permlane16_swap_b32", V(X[0] + i), V(X[1] + i))
    stp.stamp()
    k.op("v_and_b32", V(13), 31, V(vL))
    k.op("v_lshrrev_b32", V(14), 5, V(vL))
    k.op("s_and_b32", S(sT0), S(sW), 1)
    k.op("s_lshl_b32", S(sT0), S(sT0), 5)
    k.op("v_add_u32", V(vZ), S(sT0), V(13))
    k.op("v_lshlrev_b32", V(15), 2, V(14))
    k.op("v_sub_u32", V(vZ), V(vZ), V(15))
    k.op("v_mov_b32", V(vNinf), f32(-1e30))
    k.op("v_lshrrev_b32", V(15), 4, V(13))
    k.op("v_lshlrev_b32", V(vCo), 17, V(15))
    k.op("v_lshl_add_u32", V(vCo), V(14), 8, V(vCo))
    k.op("v_and_b32", V(15), 15, V(vL))
    k.op("v_lshl_add_u32", V(vCo), V(15), 4, V(vCo))
    k.op("s_mov_b32", S(sThr), f32(thr))
    k.op("s_mov_b32", S(sP2), 0)
    k.op("s_mov_b32", S(sNx), 98304)
    k.op("s_mov_b32", S(sTK), 4 * 16384)
    k.op("s_mov_b32", S(sT), 2)

    def mfma32(d, a, b, c): k.op("v_mfma_f32_32x32x16_bf16", d, a, b, c)
    def mask_block(sub, par):
        s0 = Sreg(sub, par)
        for e0 in range(0, 32, 2):
            for u in range(2):
                e = e0 + u; kb, r = e >> 4, e & 15
                c = 32 * kb + 16 * ((r >> 2) & 1) + 8 * (r >> 3) + (r & 3)
                k.op("v_cmp_gt_i32", S(sM + 2 * u, 2), c, V(vZ))
            k.nop(1)
            for u in range(2):
                k.op("v_cndmask_b32", V(s0 + e0 + u), V(s0 + e0 + u), V(vNinf), S(sM + 2 * u, 2))
    def soft_slot(sub, par, n):
        s0 = Sreg(sub, par); l = vLs[sub]
        o = []
        if n < 32: o.append(lambda: k.op("v_exp_f32", V(s0 + n), V(s0 + n)))
        if n >= 1: o.append(lambda: k.op("v_add_f32", V(l), V(l), V(s0 + n - 1)))
        if n >= 2 and n % 2 == 0:
            j = (n - 2) // 2
            d = 8 * (j >> 2) + (j & 3)
            o.append(lambda: k.op("v_cvt_pk_bf16_f32", V(s0 + d), V(s0 + 2 * j), V(s0 + 2 * j + 1)))
        return o
    def rd(frag, isV):
        k.op("ds_read_b128", A(FR + frag * 4, 4), V(vA), mods=f"offset:{(16384 if isV else 0) + frag*1024}")
    def ldK(i): return lambda: k.op("buffer_load_dwordx4", V(vD), S(sK, 4), S(sTK), mods=f"offen offset:{i*1024} lds")
    def ldV(i): return lambda: k.op("buffer_load_dwordx4", V(vD), S(sV, 4), S(sTK), mods=f"offen offset:{i*1024} lds")
    m0K = lambda: k.op("s_add_u32", "m0", S(sP2), S(sW4k))
    m0V = lambda: k.op("s_add_u32", "m0", "m0", 16384)
    advT = lambda: k.op("s_add_u32", S(sTK), S(sTK), 16384)
    advP = lambda: k.op("s_add_u32", S(sP2), S(sP2), 32768)
    wrapP = lambda: (k.op("s_cmp_eq_u32", S(sP2), 163840), k.op("s_cselect_b32", S(sP2), 0, S(sP2)))
    XA = {1: [ldK(2)], 5: [ldK(3)], 7: [m0V], 9: [ldV(0)], 13: [ldV(1)]}
    XB = {1: [ldV(2)], 5: [ldV(3)], 6: [advT], 7: [advP], 9: [wrapP], 10: [m0K], 11: [ldK(0)], 15: [ldK(1)]}
    WP = 4
    def phaseA(par, qk, ex):
        if not qk:
            k.wait(lgkm=0)
            for f in range(DA): rd(f, True)
            for n in range(16, 32):
                for sub in ex:
                    for fn in soft_slot(sub, par, n): fn()
            return
        for f in range(16):
            kb, s = f >> 3, f & 7
            if f % WP == 0: k.wait(lgkm=DA - WP)
            for j, sub in enumerate(qk):
                d = V(Sreg(sub, 1 - par) + 16 * kb, 16)
                mfma32(d, A(FR + f * 4, 4), V(QR + sub * 32 + s * 4, 4), V(NEGM + 16 * sub, 16) if s == 0 else d)
                if j == 0:
                    nf = f + DA
                    if nf < 16: rd(nf, False)
                    else: rd(nf - 16, True)
                for xs in (ex if len(qk) == 1 else [sub]):
                    for fn in soft_slot(xs, par, 16 + f): fn()
                if j == len(qk) - 1:
                    for fn in XA.get(f, []): fn()
    def phaseB(par, pv, exn, bar="always", tailops=()):
        extra = list(tailops)
        for f in range(16):
            kg, db = f >> 2, f & 3
            if f % WP == 0: k.wait(lgkm=DA - WP if bar == "always" else max(0, min(DA - WP, 16 - f - WP)))
            for j, sub in enumerate(pv):
                d = A(OA + sub * 64 + 16 * db, 16)
                mfma32(d, A(FR + f * 4, 4), V(Sreg(sub, par) + 8 * kg, 4), d)
                if j == 0:
                    nf = f + DA
                    if nf == 16:
                        if bar == "always":
                            k.wait(vm=16); k.op("s_barrier")
                        elif bar == "w01":
                            lab = k.newlabel("nobar")
                            k.op("s_cmp_ge_u32", S(sW), 2); k.op("s_cbranch_scc1", lab)
                            k.wait(vm=8); k.op("s_barrier")
                            k.label(lab)
                        k.op("v_add_u32", V(vA), S(sNx), V(vL16))
                    if bar == "always" or nf < 16:
                        if nf < 16: rd(nf, True)
                        else: rd(nf - 16, False)
                if f == 0:
                    for fn in soft_slot(sub, par, 32): fn()
                if sub in exn:
                    for fn in soft_slot(sub, 1 - par, f): fn()
                if j == len(pv) - 1 and bar == "always":
                    for fn in XB.get(f, []): fn()
                    if f in (12, 13, 14) and extra: extra.pop(0)()
        for fn in extra: fn()
    def nx_items():
        return [lambda: k.op("s_add_u32", S(sNx), S(sNx), 32768),
                lambda: (k.op("s_cmp_eq_u32", S(sNx), 163840), k.op("s_cselect_b32", S(sNx), 0, S(sNx))),
                lambda: k.op("s_add_u32", S(sT), S(sT), 1)]
    def rowmax(sub, par, dst):
        s0 = Sreg(sub, par)
        k.op("v_max3_f32", V(dst), V(s0), V(s0 + 1), V(s0 + 2))
        for e in range(3, 31, 2): k.op("v_max3_f32", V(dst), V(dst), V(s0 + e), V(s0 + e + 1))
        k.op("v_max_f32", V(dst), V(dst), V(s0 + 31))
        k.op("v_mov_b32", V(vT + 1), V(dst))
        k.nop(2)
        k.op("v_permlane32_swap_b32", V(dst), V(vT + 1))
        k.op("v_max_f32", V(dst), V(dst), V(vT + 1))
    def epilogue(sub, site):
        t = Sreg(sub, 0)
        k.op("v_cmp_nle_f32", "vcc", V(vLs[sub]), V(21))
        k.op("s_mov_b32", S(sRet), site)
        k.op("s_cbranch_vccnz", f"k2_slow_{sub}")
        lab = f"k2_ret_{sub}_{site}"
        k.label(lab)
        slow_sites.setdefault(sub, []).append((site, lab))
        k.op("v_mov_b32", V(vT + 1), V(vLs[sub]))
        k.nop(2)
        k.op("v_permlane32_swap_b32", V(vLs[sub]), V(vT + 1))
        k.op("v_add_f32", V(vLs[sub]), V(vLs[sub]), V(vT + 1))
        k.op("v_rcp_f32", V(vT + 3), V(vLs[sub]))
        k.nop(6)
        for db in range(4):
            for half in range(2):
                b = t + db * 16 + half * 8
                for i in range(8): k.op("v_accvgpr_read_b32", V(b + i), A(OA + sub * 64 + db * 16 + half * 8 + i))
                for i in range(0, 8, 2): k.op("v_pk_mul_f32", P(b + i), P(b + i), P(vT + 3), mods="op_sel_hi:[1,0]")
                for i in range(4): k.op("v_cvt_pk_bf16_f32", V(b + i), V(b + 2 * i), V(b + 2 * i + 1))
                k.op("buffer_store_dwordx4", V(b, 4), V(vCo), S(sWS, 4), S(sCa if sub == 0 else sCb),
                     mods=f"offen offset:{db*1024 + half*512}")
    slow_sites = {}
    k.op("v_mov_b32", V(21), S(sThr))
    k.op("v_add_u32", V(vT), 32768, V(vL16))
    for f in range(16): k.op("ds_read_b128", A(f * 4, 4), V(vT), mods=f"offset:{f*1024}")
    zi = 0
    for f in range(16):
        kb, s = f >> 3, f & 7
        k.wait(lgkm=15 - f)
        for sub in range(2):
            d = V(Sreg(sub, 0) + 16 * kb, 16)
            mfma32(d, A(f * 4, 4), V(QR + sub * 32 + s * 4, 4), "0" if s == 0 else d)
            for _ in range(4):
                k.op("v_accvgpr_write_b32", A(OA + zi), 0); zi += 1
    k.wait(vm=12)
    k.op("s_barrier")
    m0K()
    k.op("v_add_u32", V(vA), 65536, V(vL16))
    ldK(0)(); ldK(1)()
    for f in range(DA): rd(f, False)
    k.nop(4)
    lab = k.newlabel("nomask0")
    k.op("s_cmp_lg_u32", S(sNa), 1); k.op("s_cbranch_scc1", lab)
    mask_block(0, 0)
    k.label(lab)
    for sub in range(2):
        rowmax(sub, 0, vMx[sub])
        k.op("v_mov_b32", V(vLs[sub]), 0)
        k.op("v_sub_f32", V(NEGM + 16 * sub), 0, V(vMx[sub]))
        k.op("v_sub_f32", V(NEGM + 16 * sub + 1), 0, V(vMx[sub]))
        for i in range(2, 16, 2): k.op("v_pk_mov_b32", P(NEGM + 16 * sub + i), P(NEGM + 16 * sub), P(NEGM + 16 * sub), mods="op_sel:[0,1]")
        for e in range(0, 32, 2): k.op("v_pk_add_f32", P(Sreg(sub, 0) + e), P(Sreg(sub, 0) + e), P(NEGM + 16 * sub))
    for n in range(16):
        for sub in range(2):
            for fn in soft_slot(sub, 0, n): fn()
    stp.stamp()
    k.op("s_cmp_lt_u32", 1, S(sNa))
    k.op("s_cbranch_scc0", "k2_DL0")
    def maskif(sub, par):
        lab = k.newlabel("nomask")
        k.op("s_cmp_lg_u32", S(sT), S(sNa if sub == 0 else sNb)); k.op("s_cbranch_scc1", lab)
        k.nop(12)
        mask_block(sub, par)
        k.label(lab)
    for par in range(2):
        k.label(f"k2_DD{par}")
        phaseA(par, [0, 1], [0, 1])
        maskif(0, 1 - par)
        phaseB(par, [0, 1], [0, 1], tailops=nx_items())
        k.op("s_cmp_le_u32", S(sT), S(sNa))
        k.op("s_cbranch_scc0", f"k2_DL{1-par}")
        if par == 1: k.op("s_branch", "k2_DD0")
    for par in range(2):
        k.label(f"k2_DL{par}")
        phaseA(par, [1], [0, 1])
        phaseB(par, [0, 1], [1], tailops=nx_items())
        epilogue(0, par)
        k.op("s_branch", f"k2_SS{1-par}")
    for par in range(2):
        k.label(f"k2_SS{par}")
        phaseA(par, [1], [1])
        maskif(1, 1 - par)
        phaseB(par, [1], [1], tailops=nx_items())
        k.op("s_cmp_le_u32", S(sT), S(sNb))
        k.op("s_cbranch_scc0", f"k2_SL{1-par}")
        if par == 1: k.op("s_branch", "k2_SS0")
    for par in range(2):
        k.label(f"k2_SL{par}")
        phaseA(par, [], [1])
        k.nop(2)
        phaseB(par, [1], [], bar="w01")
        if par == 0: k.op("s_branch", "k2_fin")
    k.label("k2_fin")
    stp.stamp()
    epilogue(1, 0)
    if stamps:
        k.wait(vm=0, lgkm=0)
        stp.stamp()
        stp.flush(sWS, sW, 13)
    k.op("s_endpgm")
    sU, sUo = 60, 61
    for sub, sites in sorted(slow_sites.items()):
        s0 = Sreg(sub, 0)
        m, l = vMx[sub], vLs[sub]
        k.label(f"k2_slow_{sub}")
        k.nop(12)
        for i in range(64): k.op("v_accvgpr_write_b32", A(OA + sub * 64 + i), 0)
        k.op("v_mov_b32", V(m), f32(-1e30))
        k.op("v_mov_b32", V(l), 0)
        k.op("s_mov_b32", S(sU), 1)
        k.op("s_mov_b32", S(sUo), 0)
        loop = f"k2_slowloop_{sub}"
        k.label(loop)
        for c in range(4):
            k.op("s_add_u32", S(sLd), S(sUo), c * 4096)
            for i in range(4): k.op("buffer_load_dwordx4", A((c * 4 + i) * 4, 4), V(vL16), S(sK, 4), S(sLd), mods=f"offen offset:{i*1024}")
        k.wait(vm=0)
        for f in range(16):
            kb, s = f >> 3, f & 7
            d = V(s0 + 16 * kb, 16)
            mfma32(d, A(f * 4, 4), V(QR + sub * 32 + s * 4, 4), "0" if s == 0 else d)
        for c in range(4):
            k.op("s_add_u32", S(sLd), S(sUo), c * 4096 + 16384)
            for i in range(4): k.op("buffer_load_dwordx4", A((c * 4 + i) * 4, 4), V(vL16), S(sV, 4), S(sLd), mods=f"offen offset:{i*1024}")
        lab = k.newlabel("snomask")
        k.op("s_cmp_lg_u32", S(sU), S(sNa if sub == 0 else sNb)); k.op("s_cbranch_scc1", lab)
        mask_block(sub, 0)
        k.label(lab)
        rowmax(sub, 0, vT + 3)
        k.op("v_max_f32", V(vT + 3), V(vT + 3), V(m))
        k.op("v_sub_f32", V(vT + 5), V(m), V(vT + 3))
        k.op("v_mov_b32", V(m), V(vT + 3))
        k.op("v_exp_f32", V(vT + 5), V(vT + 5))
        for e in range(32): k.op("v_sub_f32", V(s0 + e), V(s0 + e), V(m))
        k.op("v_mul_f32", V(l), V(l), V(vT + 5))
        for i in range(64):
            k.op("v_accvgpr_read_b32", V(vT + (i & 1)), A(OA + sub * 64 + i))
            k.op("v_mul_f32", V(vT + (i & 1)), V(vT + (i & 1)), V(vT + 5))
            k.op("v_accvgpr_write_b32", A(OA + sub * 64 + i), V(vT + (i & 1)))
        for n in range(33):
            if n == 32: k.nop(1)
            for fn in soft_slot(sub, 0, n): fn()
        k.wait(vm=0)
        k.nop(1)
        for f in range(16):
            kg, db = f >> 2, f & 3
            d = A(OA + sub * 64 + 16 * db, 16)
            mfma32(d, A(f * 4, 4), V(s0 + 8 * kg, 4), d)
        k.op("s_add_u32", S(sUo), S(sUo), 16384)
        k.op("s_add_u32", S(sU), S(sU), 1)
        k.nop(8)
        k.op("s_cmp_le_u32", S(sU), S(sNa if sub == 0 else sNb))
        k.op("s_cbranch_scc1", loop)
        for (site, lab) in sites[:-1]:
            k.op("s_cmp_eq_u32", S(sRet), site); k.op("s_cbranch_scc1", lab)
        k.op("s_branch", sites[-1][1])
    k.label("k2_end")
    k.op("s_endpgm")
    return k

if __name__ == "__main__":
    k = build_k2()
    for e in k.check_hazards(): print(e)
    for e in k.check_waits(): print(e)
    print(k.maxregs(), len(k.ins))
```

```python
from common import *
LDS = 131072
def build_k3(stamps=False, P=4, NS=22, bar=1, WIN=4):
    k = Kern("k3_kernel")
    vq, lq = Q(k, "vmcnt", 63), Q(k, "lgkmcnt", 15)
    stp = Stamps(k, stamps, 62, 2, lq, maxn=8)
    sWS, sWm, sX, sO, sB2 = 8, 12, 16, 20, 24
    sW, sRt, sCt, sT0, sT1, sT2 = 28, 29, 30, 31, 32, 33
    sAo, sKS, sWo, sWKS, sM0, sKSl = 34, 35, 36, 37, 38, 39
    sRot, sSt, sAc, sWc = 52, 53, 54, 55
    vL, vL16 = 1, 2
    VA, VW, TA = 4, 8, 12
    g, l15, r_, cc, g1, t0, t1 = 20, 21, 22, 23, 24, 25, 26
    XV, BV = 28, 32
    vOo = 27
    ACC = 36
    AF = 100
    WF = AF + 16 * P
    k.op("s_cmp_ge_u32", "s2", 256)
    k.op("s_cbranch_scc1", "k3_end")
    k.op("s_load_dwordx2", S(40, 2), S(0, 2), KA["x"])
    k.op("s_load_dwordx2", S(42, 2), S(0, 2), KA["wo"])
    k.op("s_load_dwordx4", S(44, 4), S(0, 2), KA["w2"])
    k.op("s_load_dwordx2", S(48, 2), S(0, 2), KA["out"])
    k.op("s_load_dwordx2", S(50, 2), S(0, 2), KA["ws"])
    k.op("v_and_b32", V(vL), 63, "v0")
    k.op("v_lshrrev_b32", V(t0), 6, "v0")
    k.op("s_and_b32", S(sT0), "s2", 7)
    k.op("v_readfirstlane_b32", S(sW), V(t0))
    k.op("s_lshr_b32", S(sT1), "s2", 3)
    k.op("s_and_b32", S(sT2), S(sT1), 3)
    k.op("s_lshl_b32", S(sRt), S(sT0), 2)
    k.op("s_add_u32", S(sRt), S(sRt), S(sT2))
    k.op("s_lshr_b32", S(sCt), S(sT1), 2)
    k.op("v_lshlrev_b32", V(vL16), 4, V(vL))
    k.op("v_lshrrev_b32", V(g), 4, V(vL))
    k.op("v_and_b32", V(l15), 15, V(vL))
    k.op("v_bfe_u32", V(r_), V(vL), 2, 2)
    k.op("v_and_b32", V(cc), 3, V(vL))
    k.op("v_and_b32", V(g1), 1, V(g))
    k.op("s_mov_b32", S(sT0), 44032)
    k.op("s_cmp_lt_u32", S(sW), 6)
    k.op("s_cselect_b32", S(sT0), 131072, S(sT0))
    k.op("s_mov_b32", S(sKS), 2048)
    k.op("s_cselect_b32", S(sKS), 6144, S(sKS))
    k.op("s_mov_b32", S(sAo), HF_OFF - 6 * 1024)
    k.op("s_cselect_b32", S(sAo), CTX_OFF, S(sAo))
    k.op("s_cselect_b64", "vcc", "-1", "0")
    k.op("s_sub_u32", S(sT1), S(sW), 6)
    k.op("s_cmp_lt_u32", S(sW), 6)
    k.op("s_cselect_b32", S(sWo), S(sW), S(sT1))
    k.op("s_lshl_b32", S(sWo), S(sWo), 15)
    k.op("s_lshl_b32", S(sWKS), S(sKS), 5)
    k.op("s_lshl_b32", S(sT1), S(sW), 10)
    k.op("s_add_u32", S(sAo), S(sAo), S(sT1))
    k.op("s_lshl_b32", S(sT2), S(sT0), 2)
    k.op("s_mul_i32", S(sT2), S(sT2), S(sRt))
    k.op("s_add_u32", S(sAo), S(sAo), S(sT2))
    k.op("v_mov_b32", V(VA), V(vL16))
    for rb in range(1, 4): k.op("v_add_u32", V(VA + rb), S(sT0), V(VA + rb - 1))
    k.op("s_cmp_lt_u32", S(sW), 2)
    k.op("s_cselect_b32", S(sKSl), 21, 20)
    k.op("s_cmp_eq_u32", S(sW), 6)
    k.op("s_cselect_b32", S(sKSl), 21, S(sKSl))
    if WIN == 8:
        k.op("s_lshl_b32", S(sRot), S(sRt), 1)
        k.op("s_add_u32", S(sRot), S(sRot), S(sCt))
    else:
        k.op("s_add_u32", S(sRot), S(sRt), S(sCt))
    k.op("v_lshlrev_b32", V(t0), 1, V(g))
    k.op("v_and_b32", V(t1), 7, V(vL))
    k.op("v_xor_b32", V(t0), V(t0), V(t1))
    k.op("v_lshlrev_b32", V(t0), 4, V(t0))
    k.op("v_lshrrev_b32", V(t1), 3, V(vL))
    k.op("v_lshl_add_u32", V(t0), V(t1), 10, V(t0))
    k.op("s_lshl_b32", S(sT1), S(sCt), 7)
    k.op("v_add_u32", V(VW), S(sT1), V(t0))
    for i in range(1, 4): k.op("v_add_u32", V(VW + i), 7168, V(VW + i - 1))
    k.op("s_lshl_b32", S(sM0), S(sW), 14)
    k.wait(lgkm=0)
    stp.stamp()
    load_srd(k, sWS, "ws", 50)
    k.op("s_cmp_lt_u32", S(sW), 6)
    k.op("s_cselect_b32", S(sWm), S(42), S(44))
    k.op("s_cselect_b32", S(sWm + 1), S(43), S(45))
    k.op("s_mov_b32", S(sWm + 2), hex(SZ["w2"]))
    k.op("s_cselect_b32", S(sWm + 2), hex(SZ["wo"]), S(sWm + 2))
    k.op("s_and_b32", S(sWm + 1), S(sWm + 1), "0xffff")
    k.op("s_mov_b32", S(sWm + 3), "0x20000")
    def issue_items(i):
        it = []
        sl = i % P
        base = i // WIN * WIN
        wn = WIN
        while base + wn > NS:
            wn //= 2
            if i >= base + wn: base += wn
        def addr():
            k.op("s_add_u32", S(sSt), S(sRot), i - base)
            k.op("s_and_b32", S(sSt), S(sSt), wn - 1)
            k.op("s_add_u32", S(sSt), S(sSt), base)
            k.op("s_mul_i32", S(sWc), S(sSt), S(sWKS))
            k.op("s_add_u32", S(sWc), S(sWc), S(sWo))
            k.op("s_min_u32", S(sSt), S(sSt), S(sKSl))
            k.op("s_mul_i32", S(sAc), S(sSt), S(sKS))
            k.op("s_add_u32", S(sAc), S(sAc), S(sAo))
        it.append(addr)
        it.append(lambda: k.op("s_add_u32", "m0", S(sM0), sl * 4096))
        def a(rb):
            def f():
                k.op("buffer_load_dwordx4", V(AF + sl * 16 + rb * 4, 4), V(VA + rb), S(sWS, 4), S(sAc), mods="offen"); vq.issue(("a", i))
            return f
        def w(j):
            def f():
                k.op("buffer_load_dwordx4", V(VW + j), S(sWm, 4), S(sWc), mods=f"offen offset:{j*1024} lds"); vq.issue(("w", i))
            return f
        it.append(a(0))
        it += [w(j) for j in range(4)]
        it += [a(rb) for rb in range(1, 4)]
        return it
    for i in range(P - 1):
        for f in issue_items(i): f()
    load_srd(k, sX, "x", 40); load_srd(k, sO, "out", 48); load_srd(k, sB2, "b2", 46)
    k.op("v_lshrrev_b32", V(t0), 1, V(g))
    k.op("v_lshlrev_b32", V(t0), 4, V(t0))
    k.op("v_lshl_add_u32", V(t0), V(g1), 2, V(t0))
    k.op("v_lshlrev_b32", V(t1), 2, V(g))
    k.op("v_cndmask_b32", V(t0), V(t1), V(t0), "vcc")
    k.op("v_add_u32", V(t0), V(t0), V(r_))
    k.op("v_lshlrev_b32", V(t0), 7, V(t0))
    k.op("v_lshl_add_u32", V(t0), V(cc), 3, V(t0))
    k.op("v_add_u32", V(t0), S(sM0), V(t0))
    k.op("v_lshrrev_b32", V(t1), 1, V(r_))
    k.op("v_lshl_or_b32", V(t1), V(g1), 1, V(t1))
    k.op("s_mov_b32", S(sT0), 2048)
    k.op("s_cmp_lt_u32", S(sW), 6)
    k.op("s_cselect_b32", S(sT0), 1024, S(sT0))
    for nb in range(4):
        k.op("v_xor_b32", V(3), nb, V(t1))
        k.op("v_lshl_add_u32", V(TA + 2 * nb), V(3), 5, V(t0))
        k.op("v_add_u32", V(TA + 2 * nb + 1), S(sT0), V(TA + 2 * nb))
    k.op("s_lshl_b32", S(sT0), S(sRt), 16)
    k.op("s_lshr_b32", S(sT1), S(sW), 1)
    k.op("s_lshl_b32", S(sT1), S(sT1), 14)
    k.op("s_add_u32", S(sT0), S(sT0), S(sT1))
    k.op("s_lshl_b32", S(sT1), S(sCt), 7)
    k.op("s_and_b32", S(sT2), S(sW), 1)
    k.op("s_lshl_b32", S(sT2), S(sT2), 6)
    k.op("s_add_u32", S(sT1), S(sT1), S(sT2))
    k.op("s_add_u32", S(sT0), S(sT0), S(sT1))
    k.op("v_lshlrev_b32", V(vOo), 10, V(l15))
    k.op("v_lshl_add_u32", V(vOo), V(g), 3, V(vOo))
    k.op("v_add_u32", V(vOo), S(sT0), V(vOo))
    k.op("v_lshlrev_b32", V(3), 3, V(g))
    for u in range(2):
        k.op("buffer_load_dwordx2", V(XV + 2 * u, 2), V(vOo), S(sX, 4), 0, mods=f"offen offset:{32*u}"); vq.issue("xb")
        k.op("buffer_load_dwordx2", V(BV + 2 * u, 2), V(3), S(sB2, 4), S(sT1), mods=f"offen offset:{32*u}"); vq.issue("xb")
    def rd_items(i):
        it = []
        for nb in range(4):
            for j in range(2):
                def f(nb=nb, j=j):
                    k.op("ds_read_b64_tr_b16", V(WF + (i % 2) * 16 + nb * 4 + 2 * j, 2), V(TA + 2 * nb + j), mods=f"offset:{(i%P)*4096}")
                    lq.issue(("r", i, nb))
                it.append(f)
        return it
    vq.need(("w", 0))
    for f in rd_items(0): f()
    stp.stamp()
    for i in range(NS):
        q = FillQ(k)
        if i + 1 < NS:
            q.add(lambda: vq.need(("w", i + 1), cnt=[4]))
            for f in rd_items(i + 1): q.add(f)
        if i + P - 1 < NS:
            for f in issue_items(i + P - 1): q.add(f)
        vq.need(("a", i), cnt=[4])
        if bar and i % bar == 0: k.op("s_barrier")
        n = 0
        for nb in range(4):
            lq.need(("r", i, nb), cnt=[2])
            for rb in range(4):
                d = V(ACC + 4 * (nb * 4 + rb), 4)
                k.op("v_mfma_f32_16x16x32_bf16", d, V(WF + (i % 2) * 16 + nb * 4, 4), V(AF + (i % P) * 16 + rb * 4, 4), "0" if i == 0 else d)
                q.emit(2 if n % 4 == 0 else 1); n += 1
        q.flush()
    stp.stamp()
    k.op("v_add_u32", V(t0), S(sM0), V(vL16))
    k.nop(8)
    for t in range(16):
        k.op("ds_write_b128", V(t0), V(ACC + 4 * t, 4), mods=f"offset:{t*1024}")
    k.wait(lgkm=0)
    k.op("s_barrier")
    k.op("s_and_b32", S(sT2), S(sW), 1)
    k.op("s_lshl_b32", S(sT2), S(sT2), 13)
    k.op("s_lshr_b32", S(sT1), S(sW), 1)
    k.op("s_lshl_b32", S(sT1), S(sT1), 10)
    k.op("s_add_u32", S(sT2), S(sT2), S(sT1))
    k.op("v_add_u32", V(t0), S(sT2), V(vL16))
    k.op("v_add_u32", V(t1), 65536, V(t0))
    R = AF
    for u in range(2):
        for w in range(8):
            k.op("ds_read_b128", V(R + (u * 8 + w) * 4, 4), V(t0 if w < 4 else t1), mods=f"offset:{(w%4)*16384 + u*4096}")
    k.wait(vm=0)
    for u in range(2):
        k.wait(lgkm=8 - 8 * u)
        b = R + u * 32
        for i in range(4):
            k.op("v_add_f32", V(b + i), V(b + i), V(b + 4 + i))
            k.op("v_add_f32", V(b + 8 + i), V(b + 8 + i), V(b + 12 + i))
            k.op("v_add_f32", V(b + 16 + i), V(b + 16 + i), V(b + 20 + i))
            k.op("v_add_f32", V(b + 24 + i), V(b + 24 + i), V(b + 28 + i))
            k.op("v_add_f32", V(b + i), V(b + i), V(b + 8 + i))
            k.op("v_add_f32", V(b + i), V(b + i), V(b + 16 + i))
        def rb2(a):
            k.op("v_cvt_pk_bf16_f32", V(3), V(a), V(a + 1))
            k.op("v_lshlrev_b32", V(a), 16, V(3))
            k.op("v_and_b32", V(a + 1), "0xffff0000", V(3))
        def unpack(dst, src):
            k.op("v_lshlrev_b32", V(dst), 16, V(src))
            k.op("v_and_b32", V(dst + 1), "0xffff0000", V(src))
        for h in range(2):
            rb2(b + 2 * h); rb2(b + 24 + 2 * h)
            unpack(b + 4 + 2 * h, XV + 2 * u + h)
            unpack(b + 8 + 2 * h, BV + 2 * u + h)
        for i in range(4):
            k.op("v_add_f32", V(b + i), V(b + i), V(b + 4 + i))
            k.op("v_add_f32", V(b + 24 + i), V(b + 24 + i), V(b + 8 + i))
        for h in range(2):
            rb2(b + 2 * h); rb2(b + 24 + 2 * h)
        for i in range(4):
            k.op("v_add_f32", V(b + i), V(b + i), V(b + 24 + i))
        k.op("v_cvt_pk_bf16_f32", V(b), V(b), V(b + 1))
        k.op("v_cvt_pk_bf16_f32", V(b + 1), V(b + 2), V(b + 3))
        k.op("buffer_store_dwordx2", V(b, 2), V(vOo), S(sO, 4), 0, mods=f"offen offset:{32*u}")
    if stamps:
        k.wait(vm=0)
        stp.stamp()
        stp.flush(sWS, sW, 3)
    k.label("k3_end")
    k.op("s_endpgm")
    return k

if __name__ == "__main__":
    k = build_k3()
    for e in k.check_hazards(): print(e)
    for e in k.check_waits(): print(e)
    print(k.maxregs(), len(k.ins))
```

```python
from dsl import *

XN_OFF = 0
YF_OFF = 2 << 20
KF_OFF = 4 << 20
VF_OFF = 20 << 20
CTX_OFF = 36 << 20
HF_OFF = 52 << 20
WS_BYTES = 64 << 20

KA = dict(x=0, ckv=8, wq=16, wuk=24, wuv=32, wo=40, bx=48, w1=56, b1=64, w2=72, b2=80, out=88, dbg=96, ws=104)
SZ = dict(x=2 << 20, ckv=2 << 20, wq=4 << 20, wuk=4 << 20, wuv=4 << 20, wo=4 << 20, w1=512 * 1376 * 2,
          b1=1376 * 2, w2=1376 * 512 * 2, b2=1024, out=2 << 20, ws=WS_BYTES)

class Q:
    def __init__(self, k, name, maxn):
        self.k, self.name, self.maxn = k, name, maxn
        self.q = []
        self.ever = {}
    def issue(self, tag=None):
        self.q.append(tag)
        self.ever[tag] = self.ever.get(tag, 0) + 1
    def need(self, *tags, cnt=None):
        if cnt:
            for t, c in zip(tags, cnt): assert self.ever.get(t, 0) == c, (t, c, self.ever.get(t, 0))
        last = -1
        for i, t in enumerate(self.q):
            if t in tags: last = i
        if last < 0: return
        n = len(self.q) - 1 - last
        n = min(n, self.maxn)
        self.k.op("s_waitcnt", f"{self.name}({n})")
        self.q = self.q[len(self.q) - n:] if n else []
    def drain(self):
        self.k.op("s_waitcnt", f"{self.name}(0)")
        self.q = []

def load_srd(k, dst, name, tmp):
    k.op("s_mov_b32", S(dst), S(tmp))
    k.op("s_and_b32", S(dst + 1), S(tmp + 1), "0xffff")
    k.op("s_mov_b32", S(dst + 2), hex(SZ[name]))
    k.op("s_mov_b32", S(dst + 3), "0x20000")

def wave_sum(k, v, t):
    k.nop(2)
    k.op("v_add_f32_dpp", V(v), V(v), V(v), mods="quad_perm:[1,0,3,2] row_mask:0xf bank_mask:0xf")
    k.nop(2)
    k.op("v_add_f32_dpp", V(v), V(v), V(v), mods="quad_perm:[2,3,0,1] row_mask:0xf bank_mask:0xf")
    k.nop(2)
    k.op("v_add_f32_dpp", V(v), V(v), V(v), mods="row_half_mirror row_mask:0xf bank_mask:0xf")
    k.nop(2)
    k.op("v_add_f32_dpp", V(v), V(v), V(v), mods="row_mirror row_mask:0xf bank_mask:0xf")
    k.op("v_mov_b32", V(t), V(v))
    k.nop(2)
    k.op("v_permlane16_swap_b32", V(v), V(t))
    k.op("v_add_f32", V(v), V(v), V(t))
    k.op("v_mov_b32", V(t), V(v))
    k.nop(2)
    k.op("v_permlane32_swap_b32", V(v), V(t))
    k.op("v_add_f32", V(v), V(v), V(t))

def rbf(k, dst, src):
    k.op("v_cvt_pk_bf16_f32", V(dst), V(src), V(src))
    k.op("v_lshlrev_b32", V(dst), 16, V(dst))

def descriptor(k, vgpr=None, sgpr=None, accum=None):
    mv, ms, ma = k.maxregs()
    vgpr = vgpr or mv
    sgpr = sgpr or ms
    assert mv <= vgpr and ms <= sgpr, (mv, ms)
    acc = accum or ((mv + 3) // 4 * 4)
    if ma: assert vgpr >= acc + ma, (vgpr, acc, ma)
    return f""".amdhsa_kernel {k.name}
  .amdhsa_next_free_vgpr {vgpr}
  .amdhsa_next_free_sgpr {sgpr}
  .amdhsa_accum_offset {acc}
  .amdhsa_group_segment_fixed_size 0
  .amdhsa_kernarg_size 112
  .amdhsa_user_sgpr_count 2
  .amdhsa_user_sgpr_kernarg_segment_ptr 1
  .amdhsa_system_sgpr_workgroup_id_x 1
  .amdhsa_float_denorm_mode_32 3
.end_amdhsa_kernel
"""

STAMP_OFF = 60 << 20
FLAG_OFF = 59 << 20
FLAG2_OFF = FLAG_OFF + 65536
class Stamps:
    def __init__(self, k, enabled, base, kidx, lq=None, maxn=16):
        self.k, self.en, self.base, self.n, self.kidx, self.lq, self.m = k, enabled, base, 0, kidx, lq, maxn
    def stamp(self):
        if not self.en: return
        k = self.k
        assert self.n < self.m
        k.op("s_memrealtime", S(self.base + 2 * self.m, 2))
        k.op("s_memtime", S(self.base + 2 * self.m + 2, 2))
        if self.lq: self.lq.drain()
        else: k.wait(lgkm=0)
        k.op("s_mov_b32", S(self.base + self.n), S(self.base + 2 * self.m))
        k.op("s_mov_b32", S(self.base + self.m + self.n), S(self.base + 2 * self.m + 2))
        self.n += 1
    def flush(self, sWS, sW, vt):
        if not self.en: return
        k = self.k
        t = self.base + 2 * self.m
        k.op("s_lshl_b32", S(t), "s2", 3)
        k.op("s_add_u32", S(t), S(t), S(sW))
        k.op("s_lshl_b32", S(t), S(t), 7)
        k.op("s_add_u32", S(t), S(t), STAMP_OFF + self.kidx * (1 << 18))
        k.op("v_mov_b32", V(vt + 1), 0)
        for i in range(self.n):
            k.op("v_mov_b32", V(vt), S(self.base + i))
            k.op("buffer_store_dword", V(vt), V(vt + 1), S(sWS, 4), S(t), mods=f"offen offset:{4*i}")
            k.op("v_mov_b32", V(vt), S(self.base + self.m + i))
            k.op("buffer_store_dword", V(vt), V(vt + 1), S(sWS, 4), S(t), mods=f"offen offset:{64+4*i}")

class FillQ:
    def __init__(self, k, on_emit=None):
        self.k, self.q, self.last, self.need, self.on_emit = k, [], 0, 0, on_emit
    def add_kern(self, side):
        self.q += list(side.ins)
    def add(self, f):
        self.q.append(f)
    def count_since(self):
        return sum(i.states() for i in self.k.ins[self.last:] if i.mn)
    def emit(self, n=1, force=False):
        done = 0
        while self.q and done < n:
            it = self.q[0]
            if isinstance(it, Ins) and it.mn == "s_nop":
                self.need = max(self.need, it.states()); self.q.pop(0); continue
            if self.need:
                have = self.count_since()
                if have < self.need:
                    if not force: return done
                    self.k.nop(self.need - have)
                self.need = 0
            self.q.pop(0)
            if isinstance(it, Ins):
                self.k.ins.append(it)
                if self.on_emit: self.on_emit(it)
            else:
                it()
            self.last = len(self.k.ins)
            done += 1
        return done
    def flush(self):
        while self.q: self.emit(1, force=True)
    def __len__(self): return len(self.q)

def skew_stage(k, dst, sRot, i, N, t1, lag=4):
    assert lag == 4
    if i == 0:
        k.op("s_mov_b32", S(dst), S(sRot))
    elif i + 3 < N:
        t = i + 3
        k.op("s_cmp_eq_u32", S(sRot), t & 3)
        k.op("s_cselect_b32", S(dst), t, t - 4)
    else:
        j = i + 3 - N
        cand = N - 4 + j
        k.op("s_add_u32", S(t1), S(sRot), (4 - (N - 4)) & 3)
        k.op("s_and_b32", S(t1), S(t1), 3)
        k.op("s_cmp_le_u32", S(t1), j)
        k.op("s_cselect_b32", S(dst), cand + 1, cand)

def pf_code(k, srd, label, nbytes, vtmp, vlane, sIdx, dummy):
    lab = k.newlabel("pc")
    k.op("s_getpc_b64", S(srd, 2))
    k.label(lab)
    k.op("s_add_u32", S(srd), S(srd), f"{label}-{lab}")
    k.op("s_addc_u32", S(srd + 1), S(srd + 1), 0)
    k.op("s_and_b32", S(srd + 1), S(srd + 1), "0xffff")
    k.op("s_mov_b32", S(srd + 2), nbytes)
    k.op("s_mov_b32", S(srd + 3), "0x20000")
    k.op("v_lshlrev_b32", V(vtmp), 7, V(vlane))
    k.op("buffer_load_dword", V(dummy), V(vtmp), S(srd, 4), S(sIdx), mods="offen", dummy=True)
```

```python
from common import *
from k1_v1 import layernorm
CODE_PF = 20480

def build_k1(D=4, store_mods="", stamps=False, prefetch=True, twice=False, noln=False, pfinit=0, pfstart=1, pfcode=False, pfn=7, pfper=2, pfvdelay=4, pfroles="v", pf2=True):
    k = Kern("k1_kernel")
    vq, lq = Q(k, "vmcnt", 63), Q(k, "lgkmcnt", 15)
    stp = Stamps(k, stamps, 60, 0, lq)
    sX, sC, sWK, sWV, sWS = 8, 12, 16, 20, 24
    sW, sH, sJ = 28, 29, 30
    sT0, sT1, sT2 = 31, 32, 33
    sAm0, sWm0 = 34, 35
    sSo, sSo2 = 36, 37
    sKst, sVst = 38, 39
    sR = 50
    vL = 1
    vKo, vVo = 2, 3
    TA = 16; AA = 24; VA = 26; VW = 30
    WF = 36
    LNR = 68
    ACC2 = 68 + 32
    ACCV = 64 + 0
    ACC = 128
    k.op("s_cmp_ge_u32", "s2", 256)
    k.op("s_cbranch_scc1", "k1_end")
    k.op("s_load_dwordx4", S(40, 4), S(0, 2), KA["x"])
    k.op("s_load_dwordx4", S(44, 4), S(0, 2), KA["wuk"])
    k.op("s_load_dwordx2", S(48, 2), S(0, 2), KA["ws"])
    k.op("s_load_dwordx2", S(98, 2), S(0, 2), KA["wq"])
    k.op("s_load_dwordx2", S(100, 2), S(0, 2), KA["w1"])
    k.op("v_and_b32", V(vL), 63, "v0")
    k.op("v_lshrrev_b32", V(4), 6, "v0")
    k.op("s_and_b32", S(sT0), "s2", 7)
    k.op("v_readfirstlane_b32", S(sW), V(4))
    k.op("s_lshr_b32", S(sT1), "s2", 3)
    k.op("s_and_b32", S(sT2), S(sT1), 3)
    k.op("s_lshl_b32", S(sH), S(sT0), 2)
    k.op("s_add_u32", S(sH), S(sH), S(sT2))
    k.op("s_lshr_b32", S(sJ), S(sT1), 2)
    k.op("v_lshrrev_b32", V(4), 3, V(vL))
    k.op("v_and_b32", V(5), 7, V(vL))
    k.op("v_lshrrev_b32", V(6), 4, V(vL))
    k.op("v_xor_b32", V(7), V(5), V(6))
    k.op("v_lshlrev_b32", V(7), 4, V(7))
    k.op("v_lshl_add_u32", V(7), V(4), 10, V(7))
    k.op("s_lshl_b32", S(sT0), S(sJ), 18)
    k.op("s_lshl_b32", S(sT1), S(sW), 16)
    k.op("s_add_u32", S(sT0), S(sT0), S(sT1))
    k.op("v_add_u32", V(VA), S(sT0), V(7))
    k.op("v_xor_b32", V(VA + 1), 64, V(VA))
    k.op("v_add_u32", V(VA + 1), 7168, V(VA + 1))
    k.op("v_add_u32", V(VA + 2), 2 * 7168, V(VA))
    k.op("v_add_u32", V(VA + 3), 2 * 7168, V(VA + 1))
    k.op("v_lshlrev_b32", V(7), 1, V(6))
    k.op("v_and_b32", V(8), 15, V(vL))
    k.op("v_xor_b32", V(7), V(7), V(8))
    k.op("v_lshlrev_b32", V(7), 4, V(7))
    k.op("v_lshl_add_u32", V(7), V(6), 13, V(7))
    k.op("s_lshl_b32", S(sT0), S(sW), 17)
    k.op("s_lshl_b32", S(sT1), S(sH), 8)
    k.op("s_add_u32", S(sT0), S(sT0), S(sT1))
    k.op("v_add_u32", V(VW), S(sT0), V(7))
    k.op("v_add_u32", V(VW + 1), 32768 - 1024, V(VW))
    k.op("v_xor_b32", V(VW + 2), 128, V(VW))
    k.op("v_add_u32", V(VW + 2), 2 * (32768 - 1024), V(VW + 2))
    k.op("v_add_u32", V(VW + 3), 32768 - 1024, V(VW + 2))
    k.op("s_mul_i32", S(sAm0), S(sW), 24576)
    k.op("s_add_u32", S(sAm0), S(sAm0), 65536)
    k.op("s_lshl_b32", S(sWm0), S(sW), 12)
    k.wait(lgkm=0)
    stp.stamp()
    load_srd(k, sC, "ckv", 42); load_srd(k, sWK, "wuk", 44)

    def dma_w_items(s):
        if s < 8: so, srd = s * 524288, sWK
        else: so, srd = ((s - 8) % 4) * 1048576 + ((s - 8) // 4) * 128, sWV
        def setup():
            k.op("s_add_u32", "m0", S(sWm0), (s % 4) * 16384)
            k.op("s_mov_b32", S(sSo), so)
        def ld(i):
            def f():
                k.op("buffer_load_dwordx4", V(VW + i), S(srd, 4), S(sSo), mods=f"offen offset:{i*1024} lds")
                vq.issue(("W", s))
            return f
        return [setup] + [ld(i) for i in range(4)]
    def dma_a_items(s, u):
        def setup():
            k.op("s_add_u32", "m0", S(sAm0), (s % 3) * 8192 + u * 4096)
            k.op("s_mov_b32", S(sSo), s * 128 + u * 32768)
        def ld(i):
            def f():
                k.op("buffer_load_dwordx4", V(VA + i), S(sC, 4), S(sSo), mods=f"offen offset:{i*1024} lds")
                vq.issue(("A", s))
            return f
        return [setup] + [ld(i) for i in range(4)]
    def dma_w(s):
        for f in dma_w_items(s): f()
    def dma_a(s, u):
        for f in dma_a_items(s, u): f()
    sPF, sPFo, sPFs, vPF = 56, 54, 55, 34
    if prefetch:
        k.op("s_getpc_b64", S(96, 2))
        k.op("s_cmp_eq_u32", S(sW), 0)
        k.op("s_cselect_b32", S(sPF), S(42), S(44))
        k.op("s_cselect_b32", S(sPF + 1), S(43), S(45))
        k.op("s_cmp_eq_u32", S(sW), 2)
        k.op("s_cselect_b32", S(sPF), S(46), S(sPF))
        k.op("s_cselect_b32", S(sPF + 1), S(47), S(sPF + 1))
        k.op("s_cmp_eq_u32", S(sW), 3)
        k.op("s_cselect_b32", S(sPF), S(96), S(sPF))
        k.op("s_cselect_b32", S(sPF + 1), S(97), S(sPF + 1))
        k.op("s_mov_b32", S(sPF + 2), hex(4 << 20))
        k.op("s_cselect_b32", S(sPF + 2), hex(CODE_PF) if pfcode else "0", S(sPF + 2))
        k.op("s_and_b32", S(sPF + 1), S(sPF + 1), "0xffff")
        k.op("s_cmp_eq_u32", S(sW), 0)
        k.op("s_cselect_b32", S(sPF + 2), hex(2 << 20) if "a" in pfroles else "0", S(sPF + 2))
        if "k" not in pfroles:
            k.op("s_cmp_eq_u32", S(sW), 1)
            k.op("s_cselect_b32", S(sPF + 2), "0", S(sPF + 2))
        k.op("s_mov_b32", S(sPF + 3), "0x20000")
        k.op("s_lshr_b32", S(sT1), "s2", 3)
        k.op("v_bfe_u32", V(7), V(vL), 3, 1)
        k.op("v_lshlrev_b32", V(7), 13, V(7))
        k.op("v_lshl_add_u32", V(7), V(5), 7, V(7))
        k.op("s_lshl_b32", S(sT2), S(sT1), 14)
        k.op("s_and_b32", S(sT0), "s2", 7)
        k.op("s_lshl_b32", S(sT0), S(sT0), 10)
        k.op("s_add_u32", S(sT2), S(sT2), S(sT0))
        k.op("v_add_u32", V(7), S(sT2), V(7))
        k.op("s_lshl_b32", S(sT2), S(sT1), 16)
        k.op("v_lshlrev_b32", V(9), 10, V(vL))
        k.op("v_add_u32", V(9), S(sT2), V(9))
        k.op("v_lshlrev_b32", V(vPF), 7, V(vL))
        k.op("s_cmp_eq_u32", S(sW), 0)
        k.op("s_cselect_b64", "vcc", "-1", "0")
        k.op("s_mov_b32", S(sPFs), 524288)
        k.op("s_cselect_b32", S(sPFs), 128, S(sPFs))
        k.op("v_cndmask_b32", V(7), V(7), V(9), "vcc")
        k.op("s_cmp_eq_u32", S(sW), 3)
        k.op("s_cselect_b64", "vcc", "-1", "0")
        k.op("s_cselect_b32", S(sPFs), 8192, S(sPFs))
        k.op("v_cndmask_b32", V(vPF), V(7), V(vPF), "vcc")
        k.op("s_cmp_lt_u32", S(sW), 2)
        k.op("s_cselect_b32", S(sPFo), S(sPFs), 0)
        k.op("s_mul_i32", S(sPFo), S(sPFo), pfstart)
        k.op("s_cmp_eq_u32", S(sW), 2)
        k.op("s_cselect_b32", S(sPFo), hex((-pfvdelay * 524288) & 0xffffffff), S(sPFo))
    def pf():
        if not prefetch: return
        k.op("buffer_load_dword", V(35), V(vPF), S(sPF, 4), S(sPFo), mods="offen", dummy=True); vq.issue()
        k.op("s_add_u32", S(sPFo), S(sPFo), S(sPFs))
    dma_w(0); dma_a(0, 0); dma_a(0, 1)
    for _ in range(pfinit): pf()
    dma_w(1); dma_a(1, 0); dma_a(1, 1)
    stp.stamp()
    load_srd(k, sX, "x", 40); load_srd(k, sWV, "wuv", 46); load_srd(k, sWS, "ws", 48)
    k.op("v_bfe_u32", V(10), V(vL), 2, 2)
    k.op("v_and_b32", V(11), 3, V(vL))
    k.op("v_and_b32", V(12), 1, V(6))
    k.op("v_lshl_or_b32", V(13), V(12), 2, V(10))
    k.op("v_lshl_add_u32", V(14), V(6), 3, V(10))
    k.op("v_lshlrev_b32", V(15), 8, V(14))
    k.op("v_lshl_add_u32", V(15), V(11), 3, V(15))
    for nb in range(8):
        k.op("v_xor_b32", V(7), nb, V(13))
        k.op("v_lshl_add_u32", V(TA + nb), V(7), 5, V(15))
    k.op("v_lshrrev_b32", V(7), 1, V(8))
    k.op("v_xor_b32", V(7), V(7), V(6))
    k.op("v_lshlrev_b32", V(7), 4, V(7))
    k.op("v_lshl_add_u32", V(7), V(8), 7, V(7))
    k.op("v_add_u32", V(AA), S(sAm0), V(7))
    k.op("v_xor_b32", V(AA + 1), 64, V(AA))
    k.op("v_lshrrev_b32", V(7), 1, V(6))
    k.op("v_lshlrev_b32", V(vKo), 9, V(7))
    k.op("v_lshl_add_u32", V(vKo), V(12), 10, V(vKo))
    k.op("v_lshrrev_b32", V(4), 3, V(8))
    k.op("v_lshl_add_u32", V(vKo), V(4), 8, V(vKo))
    k.op("v_and_b32", V(4), 7, V(8))
    k.op("v_lshl_add_u32", V(vKo), V(4), 4, V(vKo))
    k.op("v_lshlrev_b32", V(vVo), 12, V(7))
    k.op("v_lshl_add_u32", V(vVo), V(12), 9, V(vVo))
    k.op("v_lshl_add_u32", V(vVo), V(8), 4, V(vVo))
    k.op("s_lshl_b32", S(sKst), S(sH), 19)
    k.op("s_lshl_b32", S(sT1), S(sJ), 16)
    k.op("s_add_u32", S(sKst), S(sKst), S(sT1))
    k.op("s_lshl_b32", S(sT1), S(sW), 14)
    k.op("s_add_u32", S(sKst), S(sKst), S(sT1))
    k.op("s_add_u32", S(sVst), S(sKst), VF_OFF)
    k.op("s_add_u32", S(sKst), S(sKst), KF_OFF)
    k.op("s_lshl_b32", S(sR), "s2", 3)
    k.op("s_lshl_b32", S(sT1), S(sW), 1)
    k.op("s_add_u32", S(sR), S(sR), S(sT1))
    k.op("s_lshr_b32", S(sR + 1), S(sR), 4)
    k.op("s_lshl_b32", S(sR + 1), S(sR + 1), 14)
    k.op("s_and_b32", S(sR + 2), S(sR), 15)
    k.op("s_lshl_b32", S(sR + 2), S(sR + 2), 4)
    k.op("s_add_u32", S(sR + 1), S(sR + 1), S(sR + 2))
    k.op("s_lshl_b32", S(sR + 2), S(sR), 3)
    k.op("s_add_u32", S(sR + 2), S(sR + 2), YF_OFF)
    k.op("s_lshl_b32", S(sR), S(sR), 10)
    vLs, vLd, vLz = LNR + 28, LNR + 29, LNR + 30
    k.op("v_mov_b32", V(vLz), 0)
    k.op("v_lshlrev_b32", V(vLs), 4, V(vL))
    k.op("v_lshrrev_b32", V(vLd), 2, V(vL))
    k.op("v_lshlrev_b32", V(vLd), 10, V(vLd))
    k.op("v_lshl_add_u32", V(vLd), V(11), 8, V(vLd))
    k.op("s_lshl_b32", S(sT1), "s2", 8)
    k.op("s_add_u32", S(sT1), S(sT1), FLAG_OFF)
    for i in range(4): k.op("v_mov_b32", V(108 + i), 0)
    k.op("buffer_store_dwordx4", V(108, 4), V(vLz), S(sWS, 4), S(sT1), mods="offen"); vq.issue()
    X0, X1 = 100, 104
    def ln_load():
        k.op("buffer_load_dwordx4", V(X0, 4), V(vLs), S(sX, 4), S(sR), mods="offen"); vq.issue("ln")
        k.op("buffer_load_dwordx4", V(X1, 4), V(vLs), S(sX, 4), S(sR), mods="offen offset:1024"); vq.issue("ln")
    lnq = FillQ(k, on_emit=lambda i: vq.issue() if i.kind == "vstore" else None)
    q1 = FillQ(k)
    q2 = FillQ(k, on_emit=lambda i: vq.issue() if i.kind == "vstore" else None)
    if not noln: lnq.add(lambda: vq.need("ln"))
    for r, X in enumerate((X0, X1) if not noln else ()):
        ln = Kern("ln")
        layernorm(ln, X, LNR + 4, LNR + 8, LNR + 16)
        layernorm(ln, LNR + 4, LNR + 24, LNR + 8, LNR + 16, stats_only=True)
        ln.op("buffer_store_dwordx4", V(LNR + 4, 4), V(vLd), S(sWS, 4), S(sR + 1), mods=f"offen offset:{16*r}")
        ln.op("buffer_store_dwordx2", V(LNR + 24, 2), V(vLz), S(sWS, 4), S(sR + 2), mods=f"offen offset:{8*r}")
        ln.nop(2)
        lnq.add_kern(ln)

    def frag_info(n):
        s, i = n >> 4, n & 15
        if s < 8:
            ks, nb = i >> 3, i & 7
            return s, s * 2 + ks, nb, (s % 4) * 16384 + ks * 8192, 1024
        ks, nb = i >> 2, i & 3
        return s, ((s - 8) % 4) * 4 + ks, nb, (s % 4) * 16384 + ks * 4096, 512
    pend = []
    def page_switch(s):
        if s == 8:
            k.op("v_lshrrev_b32", V(7), 1, V(10))
            k.op("v_lshl_or_b32", V(13), V(12), 1, V(7))
            k.op("v_lshlrev_b32", V(15), 7, V(14))
            k.op("v_lshl_add_u32", V(15), V(11), 3, V(15))
            for nb in range(4):
                k.op("v_xor_b32", V(7), nb, V(13))
                k.op("v_lshl_add_u32", V(TA + nb), V(7), 5, V(15))
        vq.need(("W", s), ("A", s), cnt=(4, 8 if s < 8 else 0))
        if s in (0, 1): stp.stamp()
        k.op("s_barrier")
        if s + 2 == 8:
            k.op("v_lshlrev_b32", V(7), 1, V(12))
            k.op("v_xor_b32", V(7), V(7), V(5))
            k.op("v_lshlrev_b32", V(7), 4, V(7))
            k.op("v_lshrrev_b32", V(4), 3, V(vL))
            k.op("v_lshl_add_u32", V(7), V(4), 13, V(7))
            k.op("s_lshl_b32", S(sT1), S(sW), 18)
            k.op("s_lshl_b32", S(sT2), S(sH), 8)
            k.op("s_add_u32", S(sT1), S(sT1), S(sT2))
            k.op("v_add_u32", V(VW), S(sT1), V(7))
            k.op("v_xor_b32", V(VW + 1), 64, V(VW))
            k.op("v_add_u32", V(VW + 1), 65536 - 1024, V(VW + 1))
            k.op("v_add_u32", V(VW + 2), 2 * (65536 - 1024), V(VW))
            k.op("v_add_u32", V(VW + 3), 2 * (65536 - 1024), V(VW + 1))
        def act_read(ks, c):
            def f():
                r = ((s * 2 + ks) * 4 + c) * 4
                k.op("ds_read_b128", A(r, 4), V(AA + ks), mods=f"offset:{(s%3)*8192 + c*2048}")
                lq.issue(("a", s * 2 + ks))
            return f
        assert len(q1) == 0, len(q1)
        if s < 8:
            for ks in range(2):
                for c in range(4):
                    if s == 0 and ks == 0: act_read(ks, c)()
                    else: q1.add(act_read(ks, c))
        if s + 2 < 16:
            for f in dma_w_items(s + 2): q1.add(f)
        if s < pfn:
            for _ in range(pfper): q1.add(pf)
        if s + 2 < 8:
            for u in range(2):
                for f in dma_a_items(s + 2, u): q1.add(f)
    def read_frag(n, which=None):
        s, ksg, nb, off, st = frag_info(n)
        if n % 16 == 0 and which != 1: page_switch(s)
        r = WF + (n % 8) * 4
        for i in (range(2) if which is None else [which]):
            k.op("ds_read_b64_tr_b16", V(r + 2 * i, 2), V(TA + nb), mods=f"offset:{off + i*st}")
            lq.issue(("w", n))
    def tileK(nb, c): return ACC + 4 * (nb * 4 + c)
    def tileV(half, nb, c): return ACC + 64 * half + 4 * (nb * 4 + c)
    def pack(e, a, b):
        e.op("v_cvt_pk_bf16_f32", V(a), V(a), V(a + 1))
        e.op("v_cvt_pk_bf16_f32", V(a + 1), V(a + 2), V(a + 3))
        e.op("v_cvt_pk_bf16_f32", V(a + 2), V(b), V(b + 1))
        e.op("v_cvt_pk_bf16_f32", V(a + 3), V(b + 2), V(b + 3))
    def k_epi(pi, c):
        e = Kern("e")
        a, b = tileK(2 * pi, c), tileK(2 * pi + 1, c)
        pack(e, a, b)
        e.op("s_add_u32", S(sT2), S(sKst), (c >> 1) * 8192 + (pi >> 1) * 4096)
        e.op("buffer_store_dwordx4", V(a, 4), V(vKo), S(sWS, 4), S(sT2),
             mods=f"offen offset:{(pi&1)*2048 + (c&1)*128}{store_mods}")
        return e
    def v_epi(half, nb, u):
        e = Kern("e")
        a, b = tileV(half, nb, 2 * u), tileV(half, nb, 2 * u + 1)
        n = half * 4 + nb
        pack(e, a, b)
        e.op("s_add_u32", S(sT2), S(sVst), u * 8192)
        e.op("buffer_store_dwordx4", V(a, 4), V(vVo), S(sWS, 4), S(sT2),
             mods=f"offen offset:{(n>>1)*1024 + (n&1)*256}{store_mods}")
        return e
    events = {}
    def at(n, f): events.setdefault(n, []).append(f)
    at(123, lambda: [q2.add_kern(k_epi(0, c)) for c in range(4)])
    at(125, lambda: [q2.add_kern(k_epi(1, c)) for c in range(4)])
    at(129, lambda: [q2.add_kern(k_epi(p, c)) for p in (2, 3) for c in range(4)])
    at(193, lambda: [q2.add_kern(v_epi(0, nb, u)) for nb in range(4) for u in range(2)])
    at(254, lambda: [q2.add_kern(v_epi(1, 0, u)) for u in range(2)])
    at(255, lambda: [q2.add_kern(v_epi(1, 1, u)) for u in range(2)])
    LN0, LN1 = 100, 250
    def pf_k2():
        sp = sC
        k.op("s_lshr_b32", S(sT1), "s2", 3)
        k.op("s_lshl_b32", S(sT1), S(sT1), 2)
        k.op("s_add_u32", S(sT1), S(sT1), S(sW))
        k.op("s_and_b32", S(sT0), "s2", 7)
        load_srd(k, sp, "wq", 98)
        k.op("v_bfe_u32", V(7), V(vL), 3, 2)
        k.op("v_lshlrev_b32", V(9), 13, V(7))
        k.op("v_lshl_add_u32", V(9), V(5), 7, V(9))
        k.op("s_lshl_b32", S(sSo2), S(sT1), 15)
        k.op("s_lshl_b32", S(sPFo), S(sT0), 10)
        k.op("s_add_u32", S(sSo2), S(sSo2), S(sPFo))
        k.op("buffer_load_dword", V(35), V(9), S(sp, 4), S(sSo2), mods="offen", dummy=True); vq.issue()
        load_srd(k, sPF, "w1", 100)
        k.op("v_mul_u32_u24", V(9), 2752, V(7))
        k.op("v_lshl_add_u32", V(9), V(5), 6, V(9))
        k.op("s_mul_i32", S(sSo2), S(sT1), 4 * 2752)
        k.op("s_mul_i32", S(sPFo), S(sT0), 384)
        k.op("s_add_u32", S(sSo2), S(sSo2), S(sPFo))
        k.op("buffer_load_dword", V(35), V(9), S(sPF, 4), S(sSo2), mods="offen", dummy=True); vq.issue()
        k.op("s_lshl_b32", S(sSo2), S(sT1), 13)
        pf_code(k, sp, "k2_kernel", "k2_slow_0-k2_kernel", 9, vL, sSo2, 35); vq.issue()
    if pf2: at(225, pf_k2)
    ln_load()
    for n in range(D): read_frag(n)
    for n in range(256):
        if n in (64, 128, 192): stp.stamp()
        s, ksg, nb, off, st = frag_info(n)
        lq.need(("w", n), ("a", ksg), cnt=(2, 4))
        wf = V(WF + (n % 8) * 4, 4)
        first = (ksg == 0)
        for f in events.get(n, []): f()
        if n in (128, 129, 130, 131):
            pass
        for c in range(4):
            af = A((ksg * 4 + c) * 4, 4)
            if s < 8:
                d = V(tileK(nb, c), 4)
                k.op("v_mfma_f32_16x16x32_bf16", d, wf, af, "0" if first else d)
            else:
                d = V(tileV((s - 8) // 4, nb, c), 4)
                k.op("v_mfma_f32_16x16x32_bf16", d, af, wf, "0" if first else d)
            cap = 1
            if c == 0 and n + D < 256:
                read_frag(n + D, 0); cap = 0
            if c == 1 and n + D < 256:
                read_frag(n + D, 1); cap = 0
            if 123 <= n <= 127: cap += 2
            if n < LN1 and len(lnq): cap += 1
            if len(q1) > 8: cap += 1
            cap -= q1.emit(cap)
            cap -= q2.emit(cap)
            if n >= LN0: cap -= lnq.emit(cap)
        if n == 127: q2.flush()
    stp.stamp()
    q2.flush()
    k.nop(4)
    for nb in (2, 3):
        for u in range(2): q2.add_kern(v_epi(1, nb, u))
    q2.flush()
    assert len(lnq) == 0, len(lnq)
    if stamps:
        k.wait(vm=0)
        stp.stamp()
        stp.flush(sWS, sW, 4)
    k.label("k1_end")
    k.op("s_endpgm")
    return k

if __name__ == "__main__":
    k = build_k1()
    for e in k.check_hazards(): print(e)
    for e in k.check_waits(): print(e)
    print(k.maxregs(), len(k.ins))
```

```python
from common import *
import struct
def f32(x): return hex(struct.unpack("<I", struct.pack("<f", x))[0])
LOG2E = 1.4426950408889634
QSCALE = LOG2E / (128 ** 0.5)
STAT_OFF = YF_OFF

def build_k2(stamps=False, D=4, DA=8, thr=2.0 ** 60, pf3=True):
    k = Kern("k2_kernel")
    vq, lq = Q(k, "vmcnt", 63), Q(k, "lgkmcnt", 15)
    stp = Stamps(k, stamps, 62, 1, lq, maxn=8)
    sWS, sWQ, sW1, sK, sV, sB1 = 8, 12, 16, 20, 24, 28
    sW, sH, sP, sNa, sNb, sT = 32, 33, 34, 35, 36, 37
    sT0, sT1, sT2, sSo = 38, 39, 40, 41
    sP2, sP1, sRd, sNx = 42, 43, 44, 45
    sTK, sTV, sW4k, sThr, sRet = 46, 47, 48, 49, 50
    sXa, sXb = 51, 52
    sCa, sCb = 53, 54
    sM = 56
    sLd = 98
    vL, vL16, vA, vD, vZ, vNinf = 1, 2, 3, 4, 5, 6
    vPs = [7, 8]; vLs = [9, 10]; vMx = [11, 12]
    vT = 13
    vCo = 20
    QR, NEGM, SR = 32, 96, 128
    def Sreg(sub, par): return SR + sub * 64 + par * 32
    OA, FR = 64, 192
    TA, TB, VW, VW1 = 96, 104, 108, 112
    vXo = 21
    MACC = 32
    ONES = 116
    XR = 0

    k.op("s_cmp_ge_u32", "s2", 256)
    k.op("s_cbranch_scc1", "k2_end")
    k.op("s_load_dwordx2", S(84, 2), S(0, 2), KA["wq"])
    k.op("s_load_dwordx4", S(88, 4), S(0, 2), KA["w1"])
    k.op("s_load_dwordx2", S(92, 2), S(0, 2), KA["ws"])
    k.op("s_load_dwordx2", S(86, 2), S(0, 2), KA["wo"])
    k.op("s_load_dwordx2", S(96, 2), S(0, 2), KA["w2"])
    k.op("v_and_b32", V(vL), 63, "v0")
    k.op("v_lshrrev_b32", V(13), 6, "v0")
    k.op("s_and_b32", S(sT0), "s2", 7)
    k.op("v_readfirstlane_b32", S(sW), V(13))
    k.op("s_lshr_b32", S(sT1), "s2", 3)
    k.op("s_and_b32", S(sT2), S(sT1), 3)
    k.op("s_lshl_b32", S(sH), S(sT0), 2)
    k.op("s_add_u32", S(sH), S(sH), S(sT2))
    k.op("s_lshr_b32", S(sP), S(sT1), 2)
    k.op("v_lshlrev_b32", V(vL16), 4, V(vL))
    k.op("s_lshl_b32", S(sW4k), S(sW), 12)
    k.op("v_add_u32", V(vD), S(sW4k), V(vL16))
    g, l15, p8, l3, r_, cc, g1, t7 = 22, 23, 24, 25, 26, 27, 28, 29
    k.op("v_lshrrev_b32", V(g), 4, V(vL))
    k.op("v_and_b32", V(l15), 15, V(vL))
    k.op("v_and_b32", V(p8), 7, V(vL))
    k.op("v_lshrrev_b32", V(l3), 3, V(vL))
    k.op("v_bfe_u32", V(r_), V(vL), 2, 2)
    k.op("v_and_b32", V(cc), 3, V(vL))
    k.op("v_and_b32", V(g1), 1, V(g))
    k.op("v_lshlrev_b32", V(t7), 1, V(g))
    k.op("v_xor_b32", V(t7), V(t7), V(l15))
    k.op("v_lshlrev_b32", V(t7), 4, V(t7))
    k.op("v_lshl_add_u32", V(t7), V(g), 13, V(t7))
    k.op("s_lshl_b32", S(sT0), S(sW), 17)
    k.op("s_lshl_b32", S(sT1), S(sH), 8)
    k.op("s_add_u32", S(sT0), S(sT0), S(sT1))
    k.op("v_add_u32", V(VW), S(sT0), V(t7))
    k.op("v_add_u32", V(VW + 1), 32768 - 1024, V(VW))
    k.op("v_xor_b32", V(VW + 2), 128, V(VW))
    k.op("v_add_u32", V(VW + 2), 2 * (32768 - 1024), V(VW + 2))
    k.op("v_add_u32", V(VW + 3), 32768 - 1024, V(VW + 2))
    k.op("v_lshlrev_b32", V(t7), 1, V(g1))
    k.op("v_xor_b32", V(t7), V(t7), V(p8))
    k.op("v_lshlrev_b32", V(t7), 4, V(t7))
    k.op("v_mul_u32_u24", V(30), 2752, V(l3))
    k.op("s_mul_i32", S(sT0), S(sW), 32 * 2752)
    k.op("s_mul_i32", S(sT1), S(sH), 96)
    k.op("s_add_u32", S(sT0), S(sT0), S(sT1))
    k.op("v_add_u32", V(30), S(sT0), V(30))
    k.op("v_add_u32", V(VW1), V(30), V(t7))
    k.op("v_xor_b32", V(t7), 64, V(t7))
    k.op("v_add_u32", V(VW1 + 1), V(30), V(t7))
    k.op("v_add_u32", V(VW1 + 1), 8 * 2752 - 1024, V(VW1 + 1))
    k.op("v_add_u32", V(VW1 + 2), 2 * (8 * 2752 - 1024), V(VW1))
    k.op("v_add_u32", V(VW1 + 3), 2 * (8 * 2752 - 1024), V(VW1 + 1))
    k.op("s_lshl_b32", S(sT0), S(sP), 7)
    k.op("s_lshl_b32", S(sT1), S(sW), 5)
    k.op("s_add_u32", S(sXa), S(sT0), S(sT1))
    k.op("s_sub_u32", S(sXb), 1920, S(sT0))
    k.op("s_add_u32", S(sXb), S(sXb), S(sT1))
    k.op("s_lshl_b32", S(sT2), S(sH), 12)
    k.op("s_add_u32", S(sT2), S(sT2), CTX_OFF)
    k.op("s_lshl_b32", S(sCa), S(sXa), 13)
    k.op("s_add_u32", S(sCa), S(sCa), S(sT2))
    k.op("s_lshl_b32", S(sCb), S(sXb), 13)
    k.op("s_add_u32", S(sCb), S(sCb), S(sT2))
    sRa, sRb = 94, 95
    k.op("s_mov_b32", S(sRa), S(sXa)); k.op("s_mov_b32", S(sRb), S(sXb))
    sHr = 56
    for rb in range(4):
        k.op("s_lshr_b32", S(sHr + rb), S(sRa if rb < 2 else sRb), 4)
        k.op("s_add_u32", S(sHr + rb), S(sHr + rb), rb & 1)
        k.op("s_mul_i32", S(sHr + rb), S(sHr + rb), 43 * 1024)
    k.op("s_lshl_b32", S(sXa), S(sXa), 10)
    k.op("s_lshl_b32", S(sXb), S(sXb), 10)
    k.op("s_lshr_b32", S(sT1), S(sW), 1)
    k.op("s_lshl_b32", S(sT0), S(sP), 1)
    k.op("s_add_u32", S(sNa), S(sT0), S(sT1))
    k.op("s_add_u32", S(sNa), S(sNa), 1)
    k.op("s_sub_u32", S(sNb), 31, S(sT0))
    k.op("s_add_u32", S(sNb), S(sNb), S(sT1))
    k.wait(lgkm=0)
    stp.stamp()
    load_srd(k, sWQ, "wq", 84); load_srd(k, sW1, "w1", 88); load_srd(k, sWS, "ws", 92)

    pages = {}
    order = []
    for j in range(4):
        order += [("W1", j), ("WQ", 2 * j), ("WQ", 2 * j + 1)]
    for i, p in enumerate(order): pages[p] = i
    for t in range(6): pages[("K", t)] = 12 + 2 * t; pages[("V", t)] = 15 + 2 * t
    def slot(p): return (pages[p] % 10) * 16384
    def dma_items(p):
        kind, j = p
        def setup():
            k.op("s_add_u32", "m0", S(sW4k), slot(p))
            k.op("s_mov_b32", S(sSo), {"W1": j * 128 * 2752, "WQ": j * 524288, "K": j * 16384, "V": (j + 1) * 16384}[kind])
        def ld(i):
            def f():
                if kind == "WQ": k.op("buffer_load_dwordx4", V(VW + i), S(sWQ, 4), S(sSo), mods=f"offen offset:{i*1024} lds")
                elif kind == "W1": k.op("buffer_load_dwordx4", V(VW1 + i), S(sW1, 4), S(sSo), mods=f"offen offset:{i*1024} lds")
                else: k.op("buffer_load_dwordx4", V(vD), S(sK if kind == "K" else sV, 4), S(sSo), mods=f"offen offset:{i*1024} lds")
                vq.issue(p)
            return f
        return [setup] + [ld(i) for i in range(4)]
    def xn_load(ks, rb):
        def f():
            r = XR + ((ks % 12) * 4 + rb) * 4
            k.op("s_add_u32", S(sLd), S(sXa if rb < 2 else sXb), (rb & 1) * 16384 + (ks >> 2) * 4096)
            k.op("buffer_load_dwordx4", A(r, 4), V(vL16), S(sWS, 4), S(sLd), mods=f"offen offset:{(ks&3)*1024}")
            vq.issue(("x", ks))
        return f
    for p in (("W1", 0), ("WQ", 0)):
        for f in dma_items(p): f()
    for ks in range(2):
        for rb in range(4): xn_load(ks, rb)()
    for f in dma_items(("WQ", 1)): f()
    for ks in range(2, 4):
        for rb in range(4): xn_load(ks, rb)()
    load_srd(k, sB1, "b1", 90)
    k.op("s_lshl_b32", S(sT0), S(sH), 19)
    k.op("s_add_u32", S(sT1), S(sT0), KF_OFF)
    k.op("s_add_u32", S(sK), S(92), S(sT1))
    k.op("s_addc_u32", S(sK + 1), S(93), 0)
    k.op("s_and_b32", S(sK + 1), S(sK + 1), "0xffff")
    k.op("s_lshl_b32", S(sT2), S(sP), 15)
    k.op("s_sub_u32", S(sK + 2), 32 * 16384, S(sT2))
    k.op("s_mov_b32", S(sK + 3), "0x20000")
    k.op("s_add_u32", S(sT1), S(sT0), VF_OFF - 16384)
    k.op("s_add_u32", S(sV), S(92), S(sT1))
    k.op("s_addc_u32", S(sV + 1), S(93), 0)
    k.op("s_and_b32", S(sV + 1), S(sV + 1), "0xffff")
    k.op("s_add_u32", S(sV + 2), S(sK + 2), 16384)
    k.op("s_mov_b32", S(sV + 3), "0x20000")
    k.op("v_lshl_or_b32", V(30), V(g1), 2, V(r_))
    k.op("v_lshl_add_u32", V(31), V(g), 3, V(r_))
    k.op("v_lshlrev_b32", V(t7), 8, V(31))
    k.op("v_lshl_add_u32", V(t7), V(cc), 3, V(t7))
    for nb in range(8):
        k.op("v_xor_b32", V(13), nb, V(30))
        k.op("v_lshl_add_u32", V(TA + nb), V(13), 5, V(t7))
    k.op("v_lshrrev_b32", V(13), 1, V(r_))
    k.op("v_lshl_or_b32", V(30), V(g1), 1, V(13))
    k.op("v_lshlrev_b32", V(t7), 7, V(31))
    k.op("v_lshl_add_u32", V(t7), V(cc), 3, V(t7))
    for nb in range(3):
        k.op("v_xor_b32", V(13), nb, V(30))
        k.op("v_lshl_add_u32", V(TB + nb), V(13), 5, V(t7))
    for i in range(4): k.op("v_mov_b32", V(ONES + i), "0x3f803f80")
    ST = 120
    B1 = [92, 94, 30]
    k.op("v_lshlrev_b32", V(13), 3, V(l15))
    for rb in range(4):
        k.op("s_lshl_b32", S(sT0), S(sRa if rb < 2 else sRb), 3)
        k.op("s_add_u32", S(sT0), S(sT0), STAT_OFF + (rb & 1) * 128)
        k.op("buffer_load_dwordx2", V(ST + 2 * rb, 2), V(13), S(sWS, 4), S(sT0), mods="offen"); vq.issue("st")
    k.op("v_lshlrev_b32", V(14), 3, V(g))
    k.op("s_mul_i32", S(sT1), S(sH), 96)
    for nb in range(3):
        k.op("buffer_load_dwordx2", V(B1[nb], 2), V(14), S(sB1, 4), S(sT1), mods=f"offen offset:{nb*32}"); vq.issue("st")
    win = {"TA": 0, "TB": 0}
    def set_window(name, base, n, off):
        w = off // 65536
        if win[name] != w:
            d = (w - win[name]) * 65536
            for i in range(n): k.op("v_add_u32", V(base + i), hex(d & 0xffffffff), V(base + i))
            win[name] = w
        return off - w * 65536
    frs = []
    for ks in range(16):
        for nb in range(3): frs.append(("W1", ks, nb))
        for nb in range(8): frs.append(("WQ", ks, nb))
    NF = len(frs)
    q1 = FillQ(k)
    plan = {0: [("W1", 1), ("WQ", 2)], 1: [("WQ", 3)], 2: [("W1", 2), ("WQ", 4)], 3: [("WQ", 5)], 4: [("W1", 3), ("WQ", 6)],
            5: [("WQ", 7)], 6: [("K", 0), ("K", 1)], 7: [("V", 0), ("K", 2)]}
    def stage_switch(s):
        need = [("WQ", s)] + ([("W1", s // 2)] if s % 2 == 0 else [])
        vq.need(*need, cnt=[4] * len(need))
        k.op("s_barrier")
        q1.flush()
        for ks in (2 * s + 4, 2 * s + 5):
            if ks < 16:
                for rb in range(4): q1.add(xn_load(ks, rb))
        for p in plan[s]:
            for f in dma_items(p): q1.add(f)
    def read_frag(n, which):
        kind, ks, nb = frs[n]
        if n % 22 == 0 and which == 0: stage_switch(n // 22)
        r = FR + (n % 16) * 4
        if kind == "WQ":
            off = slot(("WQ", ks // 2)) + (ks & 1) * 8192 + which * 1024
            off = set_window("TA", TA, 8, slot(("WQ", ks // 2))) + (ks & 1) * 8192 + which * 1024
            k.op("ds_read_b64_tr_b16", A(r + 2 * which, 2), V(TA + nb), mods=f"offset:{off}")
        else:
            off = set_window("TB", TB, 3, slot(("W1", ks // 4))) + (ks & 3) * 4096 + which * 512
            k.op("ds_read_b64_tr_b16", A(r + 2 * which, 2), V(TB + nb), mods=f"offset:{off}")
        lq.issue(("w", n))
    def qacc(nb, rb): return SR + 4 * (nb * 4 + rb)
    def macc(nb, rb): return MACC + 4 * (nb * 4 + rb)
    for n in range(D):
        read_frag(n, 0); read_frag(n, 1)
    stp.stamp()
    for n in range(NF):
        kind, ks, nb = frs[n]
        if n % 11 == 0: vq.need(("x", ks), cnt=[4])
        lq.need(("w", n), cnt=[2])
        wf = A(FR + (n % 16) * 4, 4)
        first = ks == 0
        ms = []
        for rb in range(4):
            d = V(qacc(nb, rb) if kind == "WQ" else macc(nb, rb), 4)
            ms.append((d, A(XR + ((ks % 12) * 4 + rb) * 4, 4)))
        if kind == "W1": ms.append((V(MACC + 48 + 4 * nb, 4), V(ONES, 4)))
        for c, (d, b) in enumerate(ms):
            k.op("v_mfma_f32_16x16x32_bf16", d, wf, b, "0" if first else d)
            if c < 2 and n + D < NF: read_frag(n + D, c)
            else: q1.emit(2 if len(q1) > 12 else 1)
    q1.flush()
    stp.stamp()
    vq.need(("K", 0), cnt=[4])
    k.op("s_barrier")
    for p in (("V", 1), ("K", 3), ("V", 2)):
        for f in dma_items(p): f()
    k.op("v_lshlrev_b32", V(15), 4, V(vL))
    C1, C2 = -2 * LOG2E * 0.7978845608028654, -2 * LOG2E * 0.7978845608028654 * 0.044715
    k.op("v_mov_b32", V(16), f32(C1)); k.op("v_mov_b32", V(17), f32(C2))
    k.op("v_mov_b32", V(18), "1.0"); k.op("v_mov_b32", V(19), "1.0")
    def P(r): return V(r, 2)
    bb, t = 96, 100
    for nb in range(3):
        k.op("v_lshlrev_b32", V(bb), 16, V(B1[nb]))
        k.op("v_and_b32", V(bb + 1), "0xffff0000", V(B1[nb]))
        k.op("v_lshlrev_b32", V(bb + 2), 16, V(B1[nb] + 1))
        k.op("v_and_b32", V(bb + 3), "0xffff0000", V(B1[nb] + 1))
        cs = MACC + 48 + 4 * nb
        k.op("s_mul_i32", S(sT1), S(sH), 3)
        k.op("s_add_u32", S(sT1), S(sT1), nb)
        k.op("s_lshr_b32", S(sT2), S(sT1), 1)
        k.op("s_lshl_b32", S(sT2), S(sT2), 10)
        k.op("s_and_b32", S(sT0), S(sT1), 1)
        k.op("s_lshl_b32", S(sT0), S(sT0), 3)
        k.op("s_add_u32", S(sT2), S(sT2), S(sT0))
        k.op("s_add_u32", S(sT2), S(sT2), HF_OFF)
        lab = k.newlabel("skiph")
        k.op("s_cmp_ge_u32", S(sT1), 86)
        k.op("s_cbranch_scc1", lab)
        for rp in range(2):
            rbs = (2 * rp, 2 * rp + 1)
            def each(fn):
                for j, rb in enumerate(rbs):
                    for i in (0, 2): fn(macc(nb, rb) + i, t + 4 * j + i, ST + 2 * rb, i)
            each(lambda a, tt, st, i: k.op("v_pk_fma_f32", P(a), P(cs + i), P(st), P(a), mods="op_sel_hi:[1,0,1] neg_lo:[1,0,0] neg_hi:[1,0,0]"))
            each(lambda a, tt, st, i: k.op("v_pk_fma_f32", P(a), P(a), P(st), P(bb + i), mods="op_sel:[0,1,0]"))
            each(lambda a, tt, st, i: k.op("v_pk_mul_f32", P(tt), P(a), P(a)))
            each(lambda a, tt, st, i: k.op("v_pk_fma_f32", P(tt), P(tt), P(16), P(16), mods="op_sel:[0,1,0] op_sel_hi:[1,1,0]"))
            each(lambda a, tt, st, i: k.op("v_pk_mul_f32", P(tt), P(tt), P(a)))
            for i in range(8): k.op("v_exp_f32", V(t + i), V(t + i))
            each(lambda a, tt, st, i: k.op("v_pk_add_f32", P(tt), P(tt), P(18)))
            for i in range(8): k.op("v_rcp_f32", V(t + i), V(t + i))
            each(lambda a, tt, st, i: k.op("v_pk_mul_f32", P(a), P(a), P(tt)))
            for rb in rbs:
                a = macc(nb, rb)
                k.op("v_cvt_pk_bf16_f32", V(a), V(a), V(a + 1))
                k.op("v_cvt_pk_bf16_f32", V(a + 1), V(a + 2), V(a + 3))
                k.op("s_add_u32", S(sT0), S(sHr + rb), S(sT2))
                k.op("buffer_store_dwordx2", V(a, 2), V(15), S(sWS, 4), S(sT0), mods="offen")
        k.label(lab)
    k.op("v_mov_b32", V(16), f32(QSCALE)); k.op("v_mov_b32", V(17), f32(QSCALE))
    for sub in range(2):
        for pi in range(4):
            X = [QR + sub * 32 + (2 * pi + u) * 4 for u in range(2)]
            for c in range(2):
                for half in range(2):
                    a = qacc(2 * pi + half, sub * 2 + c)
                    for i in (0, 2): k.op("v_pk_mul_f32", P(a + i), P(a + i), P(16))
                    k.op("v_cvt_pk_bf16_f32", V(X[c] + 2 * half), V(a), V(a + 1))
                    k.op("v_cvt_pk_bf16_f32", V(X[c] + 2 * half + 1), V(a + 2), V(a + 3))
            k.nop(1)
            for i in range(4): k.op("v_permlane16_swap_b32", V(X[0] + i), V(X[1] + i))
    stp.stamp()
    k.op("v_and_b32", V(13), 31, V(vL))
    k.op("v_lshrrev_b32", V(14), 5, V(vL))
    k.op("s_and_b32", S(sT0), S(sW), 1)
    k.op("s_lshl_b32", S(sT0), S(sT0), 5)
    k.op("v_add_u32", V(vZ), S(sT0), V(13))
    k.op("v_lshlrev_b32", V(15), 2, V(14))
    k.op("v_sub_u32", V(vZ), V(vZ), V(15))
    k.op("v_mov_b32", V(vNinf), f32(-1e30))
    k.op("v_lshrrev_b32", V(15), 4, V(13))
    k.op("v_lshlrev_b32", V(vCo), 17, V(15))
    k.op("v_lshl_add_u32", V(vCo), V(14), 8, V(vCo))
    k.op("v_and_b32", V(15), 15, V(vL))
    k.op("v_lshl_add_u32", V(vCo), V(15), 4, V(vCo))
    k.op("s_mov_b32", S(sThr), f32(thr))
    k.op("s_mov_b32", S(sP2), 0)
    k.op("s_mov_b32", S(sNx), 98304)
    k.op("s_mov_b32", S(sTK), 4 * 16384)
    k.op("s_mov_b32", S(sT), 2)

    def mfma32(d, a, b, c): k.op("v_mfma_f32_32x32x16_bf16", d, a, b, c)
    def mask_block(sub, par):
        s0 = Sreg(sub, par)
        for e0 in range(0, 32, 2):
            for u in range(2):
                e = e0 + u; kb, r = e >> 4, e & 15
                c = 32 * kb + 16 * ((r >> 2) & 1) + 8 * (r >> 3) + (r & 3)
                k.op("v_cmp_gt_i32", S(sM + 2 * u, 2), c, V(vZ))
            k.nop(1)
            for u in range(2):
                k.op("v_cndmask_b32", V(s0 + e0 + u), V(s0 + e0 + u), V(vNinf), S(sM + 2 * u, 2))
    def soft_slot(sub, par, n):
        s0 = Sreg(sub, par); l = vLs[sub]
        o = []
        if n < 32: o.append(lambda: k.op("v_exp_f32", V(s0 + n), V(s0 + n)))
        if n >= 1: o.append(lambda: k.op("v_add_f32", V(l), V(l), V(s0 + n - 1)))
        if n >= 2 and n % 2 == 0:
            j = (n - 2) // 2
            d = 8 * (j >> 2) + (j & 3)
            o.append(lambda: k.op("v_cvt_pk_bf16_f32", V(s0 + d), V(s0 + 2 * j), V(s0 + 2 * j + 1)))
        return o
    def rd(frag, isV):
        k.op("ds_read_b128", A(FR + frag * 4, 4), V(vA), mods=f"offset:{(16384 if isV else 0) + frag*1024}")
    def ldK(i): return lambda: k.op("buffer_load_dwordx4", V(vD), S(sK, 4), S(sTK), mods=f"offen offset:{i*1024} lds")
    def ldV(i): return lambda: k.op("buffer_load_dwordx4", V(vD), S(sV, 4), S(sTK), mods=f"offen offset:{i*1024} lds")
    m0K = lambda: k.op("s_add_u32", "m0", S(sP2), S(sW4k))
    m0V = lambda: k.op("s_add_u32", "m0", "m0", 16384)
    advT = lambda: k.op("s_add_u32", S(sTK), S(sTK), 16384)
    advP = lambda: k.op("s_add_u32", S(sP2), S(sP2), 32768)
    wrapP = lambda: (k.op("s_cmp_eq_u32", S(sP2), 163840), k.op("s_cselect_b32", S(sP2), 0, S(sP2)))
    XA = {1: [ldK(2)], 5: [ldK(3)], 7: [m0V], 9: [ldV(0)], 13: [ldV(1)]}
    XB = {1: [ldV(2)], 5: [ldV(3)], 6: [advT], 7: [advP], 9: [wrapP], 10: [m0K], 11: [ldK(0)], 15: [ldK(1)]}
    WP = 4
    def phaseA(par, qk, ex):
        if not qk:
            k.wait(lgkm=0)
            for f in range(DA): rd(f, True)
            for n in range(16, 32):
                for sub in ex:
                    for fn in soft_slot(sub, par, n): fn()
            return
        for f in range(16):
            kb, s = f >> 3, f & 7
            if f % WP == 0: k.wait(lgkm=DA - WP)
            for j, sub in enumerate(qk):
                d = V(Sreg(sub, 1 - par) + 16 * kb, 16)
                mfma32(d, A(FR + f * 4, 4), V(QR + sub * 32 + s * 4, 4), V(NEGM + 16 * sub, 16) if s == 0 else d)
                if j == 0:
                    nf = f + DA
                    if nf < 16: rd(nf, False)
                    else: rd(nf - 16, True)
                for xs in (ex if len(qk) == 1 else [sub]):
                    for fn in soft_slot(xs, par, 16 + f): fn()
                if j == len(qk) - 1:
                    for fn in XA.get(f, []): fn()
    def phaseB(par, pv, exn, bar="always", tailops=()):
        extra = list(tailops)
        for f in range(16):
            kg, db = f >> 2, f & 3
            if f % WP == 0: k.wait(lgkm=DA - WP if bar == "always" else max(0, min(DA - WP, 16 - f - WP)))
            for j, sub in enumerate(pv):
                d = A(OA + sub * 64 + 16 * db, 16)
                mfma32(d, A(FR + f * 4, 4), V(Sreg(sub, par) + 8 * kg, 4), d)
                if j == 0:
                    nf = f + DA
                    if nf == 16:
                        if bar == "always":
                            k.wait(vm=16); k.op("s_barrier")
                        elif bar == "w01":
                            lab = k.newlabel("nobar")
                            k.op("s_cmp_ge_u32", S(sW), 2); k.op("s_cbranch_scc1", lab)
                            k.wait(vm=8); k.op("s_barrier")
                            k.label(lab)
                        k.op("v_add_u32", V(vA), S(sNx), V(vL16))
                    if bar == "always" or nf < 16:
                        if nf < 16: rd(nf, True)
                        else: rd(nf - 16, False)
                if f == 0:
                    for fn in soft_slot(sub, par, 32): fn()
                if sub in exn:
                    for fn in soft_slot(sub, 1 - par, f): fn()
                if j == len(pv) - 1 and bar == "always":
                    for fn in XB.get(f, []): fn()
                    if f in (12, 13, 14) and extra: extra.pop(0)()
        for fn in extra: fn()
    def nx_items():
        return [lambda: k.op("s_add_u32", S(sNx), S(sNx), 32768),
                lambda: (k.op("s_cmp_eq_u32", S(sNx), 163840), k.op("s_cselect_b32", S(sNx), 0, S(sNx))),
                lambda: k.op("s_add_u32", S(sT), S(sT), 1)]
    def rowmax(sub, par, dst):
        s0 = Sreg(sub, par)
        k.op("v_max3_f32", V(dst), V(s0), V(s0 + 1), V(s0 + 2))
        for e in range(3, 31, 2): k.op("v_max3_f32", V(dst), V(dst), V(s0 + e), V(s0 + e + 1))
        k.op("v_max_f32", V(dst), V(dst), V(s0 + 31))
        k.op("v_mov_b32", V(vT + 1), V(dst))
        k.nop(2)
        k.op("v_permlane32_swap_b32", V(dst), V(vT + 1))
        k.op("v_max_f32", V(dst), V(dst), V(vT + 1))
    def epilogue(sub, site):
        t = Sreg(sub, 0)
        k.op("v_cmp_nle_f32", "vcc", V(vLs[sub]), V(21))
        k.op("s_mov_b32", S(sRet), site)
        k.op("s_cbranch_vccnz", f"k2_slow_{sub}")
        lab = f"k2_ret_{sub}_{site}"
        k.label(lab)
        slow_sites.setdefault(sub, []).append((site, lab))
        k.op("v_mov_b32", V(vT + 1), V(vLs[sub]))
        k.nop(2)
        k.op("v_permlane32_swap_b32", V(vLs[sub]), V(vT + 1))
        k.op("v_add_f32", V(vLs[sub]), V(vLs[sub]), V(vT + 1))
        k.op("v_rcp_f32", V(vT + 3), V(vLs[sub]))
        k.nop(6)
        for db in range(4):
            for half in range(2):
                b = t + db * 16 + half * 8
                for i in range(8): k.op("v_accvgpr_read_b32", V(b + i), A(OA + sub * 64 + db * 16 + half * 8 + i))
                for i in range(0, 8, 2): k.op("v_pk_mul_f32", P(b + i), P(b + i), P(vT + 3), mods="op_sel_hi:[1,0]")
                for i in range(4): k.op("v_cvt_pk_bf16_f32", V(b + i), V(b + 2 * i), V(b + 2 * i + 1))
                k.op("buffer_store_dwordx4", V(b, 4), V(vCo), S(sWS, 4), S(sCa if sub == 0 else sCb),
                     mods=f"offen offset:{db*1024 + half*512}")
    slow_sites = {}
    k.op("v_mov_b32", V(21), S(sThr))
    k.op("v_add_u32", V(vT), 32768, V(vL16))
    for f in range(16): k.op("ds_read_b128", A(f * 4, 4), V(vT), mods=f"offset:{f*1024}")
    zi = 0
    for f in range(16):
        kb, s = f >> 3, f & 7
        k.wait(lgkm=15 - f)
        for sub in range(2):
            d = V(Sreg(sub, 0) + 16 * kb, 16)
            mfma32(d, A(f * 4, 4), V(QR + sub * 32 + s * 4, 4), "0" if s == 0 else d)
            for _ in range(4):
                k.op("v_accvgpr_write_b32", A(OA + zi), 0); zi += 1
    k.wait(vm=12)
    k.op("s_barrier")
    m0K()
    k.op("v_add_u32", V(vA), 65536, V(vL16))
    ldK(0)(); ldK(1)()
    for f in range(DA): rd(f, False)
    k.nop(4)
    lab = k.newlabel("nomask0")
    k.op("s_cmp_lg_u32", S(sNa), 1); k.op("s_cbranch_scc1", lab)
    mask_block(0, 0)
    k.label(lab)
    for sub in range(2):
        rowmax(sub, 0, vMx[sub])
        k.op("v_mov_b32", V(vLs[sub]), 0)
        k.op("v_sub_f32", V(NEGM + 16 * sub), 0, V(vMx[sub]))
        k.op("v_sub_f32", V(NEGM + 16 * sub + 1), 0, V(vMx[sub]))
        for i in range(2, 16, 2): k.op("v_pk_mov_b32", P(NEGM + 16 * sub + i), P(NEGM + 16 * sub), P(NEGM + 16 * sub), mods="op_sel:[0,1]")
        for e in range(0, 32, 2): k.op("v_pk_add_f32", P(Sreg(sub, 0) + e), P(Sreg(sub, 0) + e), P(NEGM + 16 * sub))
    for n in range(16):
        for sub in range(2):
            for fn in soft_slot(sub, 0, n): fn()
    stp.stamp()
    k.op("s_cmp_lt_u32", 1, S(sNa))
    k.op("s_cbranch_scc0", "k2_DL0")
    def pf_k3():
        sp = sWQ
        k.op("s_and_b32", S(sT0), "s2", 7)
        k.op("s_lshr_b32", S(sT0), S(sT0), 1)
        k.op("s_mul_i32", S(sT1), S(sT0), 43 * 32768)
        k.op("s_cmp_lt_u32", S(sT0), 3)
        k.op("s_cselect_b32", S(sp), S(86), S(96))
        k.op("s_cselect_b32", S(sp + 1), S(87), S(97))
        k.op("s_mov_b32", S(sp + 2), hex(SZ["w2"]))
        k.op("s_cselect_b32", S(sp + 2), hex(SZ["wo"]), S(sp + 2))
        k.op("s_cselect_b32", S(sT1), S(sT1), 0)
        k.op("s_and_b32", S(sp + 1), S(sp + 1), "0xffff")
        k.op("s_mov_b32", S(sp + 3), "0x20000")
        k.op("s_lshr_b32", S(sT2), "s2", 3)
        k.op("s_lshl_b32", S(sT2), S(sT2), 2)
        k.op("s_add_u32", S(sT2), S(sT2), S(sW))
        k.op("s_mul_i32", S(sT0), S(sT2), 11264)
        k.op("s_add_u32", S(sT1), S(sT1), S(sT0))
        k.op("v_lshlrev_b32", V(vT), 7, V(vL))
        k.op("buffer_load_dword", V(130), V(vT), S(sp, 4), S(sT1), mods="offen", dummy=True)
        k.op("v_and_b32", V(vT + 2), 31, V(vL))
        k.op("v_lshlrev_b32", V(vT + 2), 7, V(vT + 2))
        k.op("s_add_u32", S(sT1), S(sT1), 8192)
        k.op("buffer_load_dword", V(130), V(vT + 2), S(sp, 4), S(sT1), mods="offen", dummy=True)
        k.op("s_lshl_b32", S(sT2), S(sT2), 13)
        pf_code(k, sW1, "k3_kernel", "k3_end-k3_kernel", vT, vL, sT2, 130)
    def maskif(sub, par):
        lab = k.newlabel("nomask")
        k.op("s_cmp_lg_u32", S(sT), S(sNa if sub == 0 else sNb)); k.op("s_cbranch_scc1", lab)
        k.nop(12)
        mask_block(sub, par)
        k.label(lab)
    for par in range(2):
        k.label(f"k2_DD{par}")
        phaseA(par, [0, 1], [0, 1])
        maskif(0, 1 - par)
        phaseB(par, [0, 1], [0, 1], tailops=nx_items())
        k.op("s_cmp_le_u32", S(sT), S(sNa))
        k.op("s_cbranch_scc0", f"k2_DL{1-par}")
        if par == 1: k.op("s_branch", "k2_DD0")
    for par in range(2):
        k.label(f"k2_DL{par}")
        phaseA(par, [1], [0, 1])
        phaseB(par, [0, 1], [1], tailops=nx_items())
        epilogue(0, par)
        k.op("s_branch", f"k2_SS{1-par}")
    for par in range(2):
        k.label(f"k2_SS{par}")
        phaseA(par, [1], [1])
        maskif(1, 1 - par)
        phaseB(par, [1], [1], tailops=nx_items())
        k.op("s_cmp_le_u32", S(sT), S(sNb))
        k.op("s_cbranch_scc0", f"k2_SL{1-par}")
        if par == 1: k.op("s_branch", "k2_SS0")
    for par in range(2):
        k.label(f"k2_SL{par}")
        if pf3: pf_k3()
        phaseA(par, [], [1])
        k.nop(2)
        phaseB(par, [1], [], bar="w01")
        if par == 0: k.op("s_branch", "k2_fin")
    k.label("k2_fin")
    stp.stamp()
    epilogue(1, 0)
    if stamps:
        k.wait(vm=0, lgkm=0)
        stp.stamp()
        stp.flush(sWS, sW, 13)
    k.op("s_endpgm")
    sU, sUo = 60, 61
    for sub, sites in sorted(slow_sites.items()):
        s0 = Sreg(sub, 0)
        m, l = vMx[sub], vLs[sub]
        k.label(f"k2_slow_{sub}")
        k.nop(12)
        for i in range(64): k.op("v_accvgpr_write_b32", A(OA + sub * 64 + i), 0)
        k.op("v_mov_b32", V(m), f32(-1e30))
        k.op("v_mov_b32", V(l), 0)
        k.op("s_mov_b32", S(sU), 1)
        k.op("s_mov_b32", S(sUo), 0)
        loop = f"k2_slowloop_{sub}"
        k.label(loop)
        for c in range(4):
            k.op("s_add_u32", S(sLd), S(sUo), c * 4096)
            for i in range(4): k.op("buffer_load_dwordx4", A((c * 4 + i) * 4, 4), V(vL16), S(sK, 4), S(sLd), mods=f"offen offset:{i*1024}")
        k.wait(vm=0)
        for f in range(16):
            kb, s = f >> 3, f & 7
            d = V(s0 + 16 * kb, 16)
            mfma32(d, A(f * 4, 4), V(QR + sub * 32 + s * 4, 4), "0" if s == 0 else d)
        for c in range(4):
            k.op("s_add_u32", S(sLd), S(sUo), c * 4096 + 16384)
            for i in range(4): k.op("buffer_load_dwordx4", A((c * 4 + i) * 4, 4), V(vL16), S(sV, 4), S(sLd), mods=f"offen offset:{i*1024}")
        lab = k.newlabel("snomask")
        k.op("s_cmp_lg_u32", S(sU), S(sNa if sub == 0 else sNb)); k.op("s_cbranch_scc1", lab)
        mask_block(sub, 0)
        k.label(lab)
        rowmax(sub, 0, vT + 3)
        k.op("v_max_f32", V(vT + 3), V(vT + 3), V(m))
        k.op("v_sub_f32", V(vT + 5), V(m), V(vT + 3))
        k.op("v_mov_b32", V(m), V(vT + 3))
        k.op("v_exp_f32", V(vT + 5), V(vT + 5))
        for e in range(32): k.op("v_sub_f32", V(s0 + e), V(s0 + e), V(m))
        k.op("v_mul_f32", V(l), V(l), V(vT + 5))
        for i in range(64):
            k.op("v_accvgpr_read_b32", V(vT + (i & 1)), A(OA + sub * 64 + i))
            k.op("v_mul_f32", V(vT + (i & 1)), V(vT + (i & 1)), V(vT + 5))
            k.op("v_accvgpr_write_b32", A(OA + sub * 64 + i), V(vT + (i & 1)))
        for n in range(33):
            if n == 32: k.nop(1)
            for fn in soft_slot(sub, 0, n): fn()
        k.wait(vm=0)
        k.nop(1)
        for f in range(16):
            kg, db = f >> 2, f & 3
            d = A(OA + sub * 64 + 16 * db, 16)
            mfma32(d, A(f * 4, 4), V(s0 + 8 * kg, 4), d)
        k.op("s_add_u32", S(sUo), S(sUo), 16384)
        k.op("s_add_u32", S(sU), S(sU), 1)
        k.nop(8)
        k.op("s_cmp_le_u32", S(sU), S(sNa if sub == 0 else sNb))
        k.op("s_cbranch_scc1", loop)
        for (site, lab) in sites[:-1]:
            k.op("s_cmp_eq_u32", S(sRet), site); k.op("s_cbranch_scc1", lab)
        k.op("s_branch", sites[-1][1])
    k.label("k2_end")
    k.op("s_endpgm")
    return k

if __name__ == "__main__":
    k = build_k2()
    for e in k.check_hazards(): print(e)
    for e in k.check_waits(): print(e)
    print(k.maxregs(), len(k.ins))
```

```python
from common import *
LDS = 163840
PART_OFF = 64 << 20
NKS = 43
def build_k3(stamps=False, WIN=0, NR=5, q2rate=2, nodma=False, nomma=False):
    k = Kern("k3_kernel")
    vq, lq = Q(k, "vmcnt", 63), Q(k, "lgkmcnt", 15)
    stp = Stamps(k, stamps, 62, 2, lq, maxn=8)
    sWS, sWm, sX, sO, sB2, sDb = 8, 12, 16, 20, 24, 84
    sW, sMt, sNt, sT0, sT1, sT2 = 28, 29, 30, 31, 32, 33
    sAo, sS, sWo, sCnt, sMa, sMw = 34, 35, 36, 37, 38, 39
    sRot, sSt, sAc, sWc, sPw, sPr, sTile = 52, 53, 54, 55, 56, 57, 58
    vL, vL16 = 1, 2
    VA, VW = 4, 6
    TA = 8
    AA = 24
    g, l15, r_, cc, g1, t0, t1 = 26, 27, 28, 29, 30, 31, 3
    vOo = 32
    XV, BV = 34, 42
    ACC = 52
    AF = 116
    WF = 148
    k.op("s_cmp_ge_u32", "s2", 256)
    k.op("s_cbranch_scc1", "k3_end")
    k.op("s_load_dwordx2", S(40, 2), S(0, 2), KA["x"])
    k.op("s_load_dwordx2", S(42, 2), S(0, 2), KA["wo"])
    k.op("s_load_dwordx4", S(44, 4), S(0, 2), KA["w2"])
    k.op("s_load_dwordx4", S(48, 4), S(0, 2), KA["out"])
    k.op("s_load_dwordx2", S(88, 2), S(0, 2), KA["ws"])
    k.op("v_and_b32", V(vL), 63, "v0")
    k.op("v_lshrrev_b32", V(t0), 6, "v0")
    k.op("s_and_b32", S(sT0), "s2", 7)
    k.op("v_readfirstlane_b32", S(sW), V(t0))
    k.op("s_lshr_b32", S(sS), S(sT0), 1)
    k.op("s_and_b32", S(sT0), S(sT0), 1)
    k.op("s_lshr_b32", S(sT1), "s2", 3)
    k.op("s_and_b32", S(sT2), S(sT1), 7)
    k.op("s_lshl_b32", S(sMt), S(sT0), 3)
    k.op("s_add_u32", S(sMt), S(sMt), S(sT2))
    k.op("s_lshr_b32", S(sNt), S(sT1), 3)
    k.op("s_add_u32", S(sRot), S(sMt), S(sNt))
    k.op("s_and_b32", S(sRot), S(sRot), 3)
    k.op("s_lshl_b32", S(sTile), S(sMt), 2)
    k.op("s_add_u32", S(sTile), S(sTile), S(sNt))
    k.op("v_lshlrev_b32", V(vL16), 4, V(vL))
    k.op("v_lshrrev_b32", V(g), 4, V(vL))
    k.op("v_and_b32", V(l15), 15, V(vL))
    k.op("v_bfe_u32", V(r_), V(vL), 2, 2)
    k.op("v_and_b32", V(cc), 3, V(vL))
    k.op("v_and_b32", V(g1), 1, V(g))
    k.op("s_mul_i32", S(sWo), S(sS), NKS)
    k.op("s_mov_b32", S(sT0), 44032)
    k.op("s_mov_b32", S(sAo), HF_OFF)
    k.op("s_cmp_lt_u32", S(sS), 3)
    k.op("s_cselect_b32", S(sT0), 131072, S(sT0))
    k.op("s_cselect_b32", S(sAo), CTX_OFF, S(sAo))
    k.op("s_cselect_b32", S(sWo), S(sWo), 0)
    k.op("s_cselect_b64", "vcc", "-1", "0")
    k.op("s_cmp_eq_u32", S(sS), 2)
    k.op("s_cselect_b32", S(sCnt), 41, 42)
    k.op("s_lshl_b32", S(sT1), S(sWo), 10)
    k.op("s_add_u32", S(sAo), S(sAo), S(sT1))
    k.op("s_lshl_b32", S(sWo), S(sWo), 15)
    k.op("s_lshl_b32", S(sT2), S(sMt), 3)
    k.op("s_lshl_b32", S(sT1), S(sW), 1)
    k.op("s_add_u32", S(sT2), S(sT2), S(sT1))
    k.op("s_mul_i32", S(sT2), S(sT2), S(sT0))
    k.op("s_add_u32", S(sAo), S(sAo), S(sT2))
    k.op("v_mov_b32", V(VA), V(vL16))
    k.op("s_sub_u32", S(sT0), S(sT0), 1024)
    k.op("v_add_u32", V(VA + 1), S(sT0), V(vL16))
    k.op("v_lshlrev_b32", V(t0), 1, V(g))
    k.op("v_xor_b32", V(t0), V(t0), V(l15))
    k.op("v_lshlrev_b32", V(t0), 4, V(t0))
    k.op("v_lshl_add_u32", V(t0), V(g), 10, V(t0))
    k.op("s_lshl_b32", S(sT1), S(sNt), 8)
    k.op("s_lshl_b32", S(sT2), S(sW), 13)
    k.op("s_add_u32", S(sT1), S(sT1), S(sT2))
    k.op("v_add_u32", V(VW), S(sT1), V(t0))
    k.op("v_xor_b32", V(VW + 1), 128, V(VW))
    k.op("v_add_u32", V(VW + 1), 4096 - 1024, V(VW + 1))
    k.op("s_lshl_b32", S(sMa), S(sW), 11)
    k.op("s_add_u32", S(sMw), S(sMa), 8192)
    k.wait(lgkm=0)
    stp.stamp()
    k.op("s_mov_b32", S(sWS), S(88))
    k.op("s_and_b32", S(sWS + 1), S(89), "0xffff")
    k.op("s_mov_b32", S(sWS + 2), hex(80 << 20))
    k.op("s_mov_b32", S(sWS + 3), "0x20000")
    k.op("s_cmp_lt_u32", S(sS), 3)
    k.op("s_cselect_b32", S(sWm), S(42), S(44))
    k.op("s_cselect_b32", S(sWm + 1), S(43), S(45))
    k.op("s_mov_b32", S(sWm + 2), hex(SZ["w2"]))
    k.op("s_cselect_b32", S(sWm + 2), hex(SZ["wo"]), S(sWm + 2))
    k.op("s_and_b32", S(sWm + 1), S(sWm + 1), "0xffff")
    k.op("s_mov_b32", S(sWm + 3), "0x20000")
    NST = 22
    def nks_of(st): return 2 if st < 21 else 1
    def issue_items(st):
        it = []
        sl = (st % NR) * 32768
        def addr():
            if st < 21:
                if WIN == 0:
                    skew_stage(k, sSt, sRot, st, 21, sWc)
                elif st < 20:
                    k.op("s_add_u32", S(sSt), S(sRot), st % WIN)
                    k.op("s_and_b32", S(sSt), S(sSt), WIN - 1)
                    k.op("s_add_u32", S(sSt), S(sSt), st // WIN * WIN)
                else:
                    k.op("s_mov_b32", S(sSt), 20)
                k.op("s_lshl_b32", S(sWc), S(sSt), 16)
                k.op("s_add_u32", S(sWc), S(sWc), S(sWo))
                k.op("s_lshl_b32", S(sAc), S(sSt), 11)
                k.op("s_add_u32", S(sAc), S(sAc), S(sAo))
            else:
                k.op("s_add_u32", S(sWc), S(sWo), st * 65536)
                k.op("s_lshl_b32", S(sAc), S(sCnt), 10)
                k.op("s_add_u32", S(sAc), S(sAc), S(sAo))
        it.append(addr)
        for u in range(nks_of(st)):
            it.append(lambda u=u: k.op("s_add_u32", "m0", S(sMw), sl + u * 16384))
            if u: it.append(lambda: k.op("s_add_u32", S(sWc), S(sWc), 32768))
            else: it.append(lambda: k.op("s_nop", 0))
            for j in range(2):
                def w(j=j):
                    k.op("buffer_load_dwordx4", V(VW + j), S(sWm, 4), S(sWc), mods=f"offen offset:{j*1024} lds"); vq.issue(("s", st))
                it.append(w)
            it.append(lambda u=u: k.op("s_add_u32", "m0", S(sMa), sl + u * 16384))
            if u: it.append(lambda: k.op("s_add_u32", S(sAc), S(sAc), 1024))
            else: it.append(lambda: k.op("s_nop", 0))
            for j in range(2):
                def a(j=j):
                    k.op("buffer_load_dwordx4", V(VA + j), S(sWS, 4), S(sAc), mods=f"offen offset:{j*1024} lds"); vq.issue(("s", st))
                it.append(a)
        return it
    for st in range(NR - 2):
        for f in issue_items(st): f()
    load_srd(k, sX, "x", 40); load_srd(k, sO, "out", 48); load_srd(k, sB2, "b2", 46)
    k.op("s_mov_b32", S(sDb), S(50))
    k.op("s_and_b32", S(sDb + 1), S(51), "0xffff")
    k.op("s_mov_b32", S(sDb + 2), 256)
    k.op("s_mov_b32", S(sDb + 3), "0x20000")
    k.op("v_lshrrev_b32", V(t0), 1, V(g))
    k.op("v_lshlrev_b32", V(t0), 4, V(t0))
    k.op("v_lshl_add_u32", V(t0), V(g1), 2, V(t0))
    k.op("v_lshlrev_b32", V(t1), 2, V(g))
    k.op("v_cndmask_b32", V(t0), V(t1), V(t0), "vcc")
    k.op("v_add_u32", V(t0), V(t0), V(r_))
    k.op("v_lshlrev_b32", V(t0), 8, V(t0))
    k.op("v_lshl_add_u32", V(t0), V(cc), 3, V(t0))
    k.op("v_add_u32", V(t0), 8192, V(t0))
    k.op("v_lshl_or_b32", V(t1), V(g1), 2, V(r_))
    k.op("s_and_b32", S(sT1), S(sW), 1)
    k.op("s_lshl_b32", S(sT1), S(sT1), 2)
    k.op("v_xor_b32", V(t1), S(sT1), V(t1))
    k.op("s_mov_b32", S(sT0), 4096)
    k.op("s_cmp_lt_u32", S(sS), 3)
    k.op("s_cselect_b32", S(sT0), 2048, S(sT0))
    for nb in range(4):
        k.op("v_xor_b32", V(33), nb, V(t1))
        k.op("v_lshl_add_u32", V(TA + 2 * nb), V(33), 5, V(t0))
        k.op("v_add_u32", V(TA + 2 * nb + 1), S(sT0), V(TA + 2 * nb))
    for i in range(8): k.op("v_add_u32", V(TA + 8 + i), 65536, V(TA + i))
    for i in range(8): k.op("v_add_u32", V(180 + i), 131072, V(TA + i))
    k.op("s_lshr_b32", S(sT1), S(sW), 1)
    k.op("s_lshl_b32", S(sT1), S(sT1), 12)
    k.op("v_add_u32", V(AA), S(sT1), V(vL16))
    k.op("v_add_u32", V(AA + 1), 65536, V(AA))
    k.op("v_add_u32", V(50), 131072, V(AA))
    k.op("s_lshl_b32", S(sT0), S(sMt), 17)
    k.op("s_lshr_b32", S(sT1), S(sW), 1)
    k.op("s_lshl_b32", S(sT1), S(sT1), 16)
    k.op("s_add_u32", S(sT0), S(sT0), S(sT1))
    k.op("s_lshl_b32", S(sT1), S(sS), 14)
    k.op("s_add_u32", S(sT0), S(sT0), S(sT1))
    k.op("s_lshl_b32", S(sT1), S(sNt), 8)
    k.op("s_and_b32", S(sT2), S(sW), 1)
    k.op("s_lshl_b32", S(sT2), S(sT2), 7)
    k.op("s_add_u32", S(sT1), S(sT1), S(sT2))
    k.op("s_add_u32", S(sT0), S(sT0), S(sT1))
    k.op("v_lshlrev_b32", V(vOo), 10, V(l15))
    k.op("v_lshl_add_u32", V(vOo), V(g), 3, V(vOo))
    k.op("v_add_u32", V(vOo), S(sT0), V(vOo))
    k.op("v_lshlrev_b32", V(33), 3, V(g))
    for u in range(4):
        k.op("buffer_load_dwordx2", V(XV + 2 * u, 2), V(vOo), S(sX, 4), 0, mods=f"offen offset:{32*u}"); vq.issue("xb")
        k.op("buffer_load_dwordx2", V(BV + 2 * u, 2), V(33), S(sB2, 4), S(sT1), mods=f"offen offset:{32*u}"); vq.issue("xb")
    k.op("s_lshl_b32", S(sPr), S(sTile), 17)
    k.op("s_lshl_b32", S(sT1), S(sW), 13)
    k.op("s_add_u32", S(sPr), S(sPr), S(sT1))
    k.op("s_add_u32", S(sPr), S(sPr), PART_OFF)
    k.op("s_lshl_b32", S(sT1), S(sS), 15)
    k.op("s_add_u32", S(sPw), S(sPr), S(sT1))
    k.op("s_lshl_b32", S(sT1), S(sS), 11)
    k.op("s_add_u32", S(sPr), S(sPr), S(sT1))
    steps = [(st, u) for st in range(NST) for u in range(nks_of(st))]
    q = FillQ(k)
    def rd_items(i):
        st, u = steps[i]
        off = (st % NR) * 32768 + u * 16384
        hi = off // 65536
        off -= 65536 * hi
        it = []
        if u == 0:
            def sw():
                vq.need(("s", st), cnt=None if nodma else [4 * nks_of(st)])
                k.op("s_barrier")
                q2.flush()
                if st + NR - 2 < NST and not nodma:
                    for f in issue_items(st + NR - 2): q2.add(f)
            it.append(sw)
        for x in range(4):
            def fa(rb=x):
                k.op("ds_read_b128", V(AF + (i % 2) * 16 + rb * 4, 4), V(AA + hi if hi < 2 else 50), mods=f"offset:{off + rb*1024}")
                lq.issue(("a", i))
            def fw(nb=x, j=0):
                k.op("ds_read_b64_tr_b16", V(WF + (i % 2) * 16 + nb * 4 + 2 * j, 2), V((TA + 8 * hi if hi < 2 else 180) + 2 * nb + j), mods=f"offset:{off}")
                lq.issue(("r", i, nb))
            if not nomma: it.append(fa)
        for nb in range(4):
            for j in range(2):
                if not nomma: it.append(lambda nb=nb, j=j: fw(nb, j))
        return it
    q2 = FillQ(k)
    for f in rd_items(0): f()
    stp.stamp()
    for i in range(len(steps)):
        if i + 1 < len(steps):
            for f in rd_items(i + 1): q.add(f)
        n = 0
        for nb in range(4):
            lq.need(("r", i, nb), ("a", i), cnt=None if nomma else [2, 4])
            for rb in range(4):
                d = V(ACC + 4 * (rb * 4 + nb), 4)
                if not nomma: k.op("v_mfma_f32_16x16x32_bf16", d, V(WF + (i % 2) * 16 + nb * 4, 4), V(AF + (i % 2) * 16 + rb * 4, 4), "0" if i == 0 else d)
                q.emit(1)
                if n % q2rate == q2rate - 1 or len(q) == 0: q2.emit(1)
                n += 1
        q.flush()
    q2.flush()
    stp.stamp()
    OWN = WF
    k.nop(8)
    for rb in range(4):
        l1, l2 = k.newlabel("own"), k.newlabel("nxt")
        a0 = ACC + 16 * rb
        k.op("s_cmp_eq_u32", S(sS), rb)
        k.op("s_cbranch_scc1", l1)
        for i in range(8): k.op("v_cvt_pk_bf16_f32", V(a0 + i), V(a0 + 2 * i), V(a0 + 2 * i + 1))
        if rb >= 2: k.op("s_add_u32", S(sT0), S(sPw), 4096)
        for p in range(2):
            k.op("buffer_store_dwordx4", V(a0 + 4 * p, 4), V(vL16), S(sWS, 4), S(sPw if rb < 2 else sT0), mods=f"offen offset:{(rb&1)*2048 + p*1024} sc1")
        k.op("s_branch", l2)
        k.label(l1)
        for i in range(16): k.op("v_mov_b32", V(OWN + i), V(a0 + i))
        k.label(l2)
    k.wait(vm=0)
    k.op("s_barrier")
    stp.stamp()
    k.op("s_cmp_lg_u32", S(sW), 0)
    k.op("s_cbranch_scc1", "k3_wait")
    k.op("s_lshl_b32", S(sT0), S(sTile), 8)
    k.op("s_add_u32", S(sT0), S(sT0), FLAG_OFF)
    k.op("s_lshl_b32", S(sT2), S(sS), 2)
    k.op("v_mov_b32", V(t0), 0)
    k.op("v_mov_b32", V(t1), 1)
    k.op("v_mov_b32", V(4), S(sT2))
    k.op("s_mov_b64", S(90, 2), "exec")
    k.op("s_mov_b64", "exec", 1)
    k.op("buffer_store_dword", V(t1), V(4), S(sWS, 4), S(sT0), mods="offen sc1")
    k.op("s_mov_b32", S(sT1), 0)
    k.label("k3_poll")
    k.op("buffer_load_dwordx4", V(4, 4), V(t0), S(sWS, 4), S(sT0), mods="offen sc1")
    k.op("s_add_u32", S(sT1), S(sT1), 1)
    k.wait(vm=0)
    k.op("v_and_b32", V(4), V(4), V(5))
    k.op("v_and_b32", V(6), V(6), V(7))
    k.op("v_and_b32", V(4), V(4), V(6))
    k.op("s_cmp_gt_u32", S(sT1), 2000000)
    k.op("v_readfirstlane_b32", S(sT2), V(4))
    k.op("s_cbranch_scc1", "k3_pdone")
    k.op("s_cmp_lg_u32", S(sT2), 1)
    k.op("s_cbranch_scc1", "k3_poll")
    k.label("k3_pdone")
    k.op("s_mov_b64", "exec", S(90, 2))
    k.label("k3_wait")
    k.op("s_barrier")
    stp.stamp()
    R = 8
    R = AF
    for src in range(4):
        l1 = k.newlabel("skp")
        k.op("s_cmp_eq_u32", S(sS), src)
        k.op("s_cbranch_scc1", l1)
        for p in range(2):
            k.op("buffer_load_dwordx4", V(R + src * 8 + 4 * p, 4), V(vL16), S(sWS, 4), S(sPr), mods=f"offen offset:{p*1024} sc1")
        k.label(l1)
        k.op("s_add_u32", S(sPr), S(sPr), 32768)
    def rb2(a):
        k.op("v_cvt_pk_bf16_f32", V(33), V(a), V(a + 1))
        k.op("v_lshlrev_b32", V(a), 16, V(33))
        k.op("v_and_b32", V(a + 1), "0xffff0000", V(33))
    def unpack(dst, src):
        k.op("v_lshlrev_b32", V(dst), 16, V(src))
        k.op("v_and_b32", V(dst + 1), "0xffff0000", V(src))
    XF, BF = 8, 164
    for i in range(8):
        unpack(XF + 2 * i, XV + i); unpack(BF + 2 * i, BV + i)
    k.wait(vm=0)
    F = ACC
    for src in range(4):
        l1, l2 = k.newlabel("own"), k.newlabel("nxt")
        k.op("s_cmp_eq_u32", S(sS), src)
        k.op("s_cbranch_scc1", l1)
        for i in range(8): unpack(F + 16 * src + 2 * i, R + src * 8 + i)
        k.op("s_branch", l2)
        k.label(l1)
        for i in range(16): k.op("v_mov_b32", V(F + 16 * src + i), V(OWN + i))
        k.label(l2)
    for i in range(16):
        k.op("v_add_f32", V(F + i), V(F + i), V(F + 16 + i))
        k.op("v_add_f32", V(F + i), V(F + i), V(F + 32 + i))
    for h in range(8):
        rb2(F + 2 * h); rb2(F + 48 + 2 * h)
    for i in range(16):
        k.op("v_add_f32", V(F + i), V(F + i), V(XF + i))
        k.op("v_add_f32", V(F + 48 + i), V(F + 48 + i), V(BF + i))
    for h in range(8):
        rb2(F + 2 * h); rb2(F + 48 + 2 * h)
    for i in range(16):
        k.op("v_add_f32", V(F + i), V(F + i), V(F + 48 + i))
    for nb in range(4):
        k.op("v_cvt_pk_bf16_f32", V(F + 4 * nb), V(F + 4 * nb), V(F + 4 * nb + 1))
        k.op("v_cvt_pk_bf16_f32", V(F + 4 * nb + 1), V(F + 4 * nb + 2), V(F + 4 * nb + 3))
        k.op("buffer_store_dwordx2", V(F + 4 * nb, 2), V(vOo), S(sO, 4), 0, mods=f"offen offset:{32*nb}")
    if stamps:
        k.wait(vm=0)
        stp.stamp()
        stp.flush(sWS, sW, 3)
    k.label("k3_end")
    k.op("s_endpgm")
    return k

if __name__ == "__main__":
    k = build_k3()
    for e in k.check_hazards(): print(e)
    for e in k.check_waits(): print(e)
    print(k.maxregs(), len(k.ins))
```

```python
from common import *
from k1_v1 import layernorm
CODE_PF = 20480

def build_k1(D=4, store_mods="", stamps=False, prefetch=True, twice=False, noln=False, pfinit=0, pfstart=1, pfcode=False, pfn=7, pfper=2, pfvdelay=4, pfroles="v", pf2=True, skew=True, early=True, pf2at=225, fuse=False, LN0=100, LN1=250):
    k = Kern("k1_kernel")
    vq, lq = Q(k, "vmcnt", 63), Q(k, "lgkmcnt", 15)
    stp = Stamps(k, stamps, 60, 0, lq, maxn=10)
    sX, sC, sWK, sWV, sWS = 8, 12, 16, 20, 24
    sW, sH, sJ = 28, 29, 30
    sT0, sT1, sT2 = 31, 32, 33
    sAm0, sWm0 = 34, 35
    sSo, sSo2 = 36, 37
    sKst, sVst = 38, 39
    sR = 50
    CH = 84
    vL = 1
    vKo, vVo = 2, 3
    TA = 16; AA = 24; VA = 26; VW = 30
    WF = 36
    LNR = 68
    ACC2 = 68 + 32
    ACCV = 64 + 0
    ACC = 128
    k.op("s_cmp_ge_u32", "s2", 256)
    k.op("s_cbranch_scc1", "k1_end")
    k.op("s_load_dwordx4", S(40, 4), S(0, 2), KA["x"])
    k.op("s_load_dwordx4", S(44, 4), S(0, 2), KA["wuk"])
    k.op("s_load_dwordx2", S(48, 2), S(0, 2), KA["ws"])
    k.op("s_load_dwordx2", S(98, 2), S(0, 2), KA["wq"])
    k.op("s_load_dwordx2", S(100, 2), S(0, 2), KA["w1"])
    k.op("v_and_b32", V(vL), 63, "v0")
    k.op("v_lshrrev_b32", V(4), 6, "v0")
    k.op("s_and_b32", S(sT0), "s2", 7)
    k.op("v_readfirstlane_b32", S(sW), V(4))
    k.op("s_lshr_b32", S(sT1), "s2", 3)
    k.op("s_and_b32", S(sT2), S(sT1), 3)
    k.op("s_lshl_b32", S(sH), S(sT0), 2)
    k.op("s_add_u32", S(sH), S(sH), S(sT2))
    k.op("s_lshr_b32", S(sJ), S(sT1), 2)
    k.op("v_lshrrev_b32", V(4), 3, V(vL))
    k.op("v_and_b32", V(5), 7, V(vL))
    k.op("v_lshrrev_b32", V(6), 4, V(vL))
    k.op("v_xor_b32", V(7), V(5), V(6))
    k.op("v_lshlrev_b32", V(7), 4, V(7))
    k.op("v_lshl_add_u32", V(7), V(4), 10, V(7))
    k.op("s_lshl_b32", S(sT0), S(sJ), 18)
    k.op("s_lshl_b32", S(sT1), S(sW), 16)
    k.op("s_add_u32", S(sT0), S(sT0), S(sT1))
    k.op("v_add_u32", V(VA), S(sT0), V(7))
    k.op("v_xor_b32", V(VA + 1), 64, V(VA))
    k.op("v_add_u32", V(VA + 1), 7168, V(VA + 1))
    k.op("v_add_u32", V(VA + 2), 2 * 7168, V(VA))
    k.op("v_add_u32", V(VA + 3), 2 * 7168, V(VA + 1))
    k.op("v_lshlrev_b32", V(7), 1, V(6))
    k.op("v_and_b32", V(8), 15, V(vL))
    k.op("v_xor_b32", V(7), V(7), V(8))
    k.op("v_lshlrev_b32", V(7), 4, V(7))
    k.op("v_lshl_add_u32", V(7), V(6), 13, V(7))
    k.op("s_lshl_b32", S(sT0), S(sW), 17)
    k.op("s_lshl_b32", S(sT1), S(sH), 8)
    k.op("s_add_u32", S(sT0), S(sT0), S(sT1))
    k.op("v_add_u32", V(VW), S(sT0), V(7))
    k.op("v_add_u32", V(VW + 1), 32768 - 1024, V(VW))
    k.op("v_xor_b32", V(VW + 2), 128, V(VW))
    k.op("v_add_u32", V(VW + 2), 2 * (32768 - 1024), V(VW + 2))
    k.op("v_add_u32", V(VW + 3), 32768 - 1024, V(VW + 2))
    k.op("s_lshl_b32", S(sAm0), S(sW), 13)
    k.op("s_add_u32", S(sAm0), S(sAm0), 65536)
    sCh = 64 if not stamps else None
    k.op("s_add_u32", S(sT0), S(sH), S(sJ))
    k.op("s_and_b32", S(sT0), S(sT0), 3)
    for i in range(8):
        if skew: skew_stage(k, CH + i, sT0, i, 8, sT1)
        else: k.op("s_mov_b32", S(CH + i), i)
    k.op("s_lshl_b32", S(sWm0), S(sW), 12)
    k.wait(lgkm=0)
    stp.stamp()
    load_srd(k, sC, "ckv", 42); load_srd(k, sWK, "wuk", 44)

    def wslot(s):
        if s < 10 or not early: return (s % 4) * 16384
        return 65536 + ((5 + (s - 10) // 2) % 3) * 32768 + ((s - 10) % 2) * 16384
    def dma_w_items(s):
        srd = sWK if s < 8 else sWV
        def setup():
            k.op("s_add_u32", "m0", S(sWm0), wslot(s))
            if s < 8: k.op("s_lshl_b32", S(sSo), S(CH + s), 19)
            else:
                q = (s - 8) % 4
                k.op("s_cmp_lt_u32", S(sW), 2)
                k.op("s_cselect_b32", S(sSo), S(CH + 2 * q), S(CH + 2 * q + 1))
                k.op("s_lshl_b32", S(sSo), S(sSo), 19)
                if s >= 12: k.op("s_add_u32", S(sSo), S(sSo), 128)
        def ld(i):
            def f():
                k.op("buffer_load_dwordx4", V(VW + i), S(srd, 4), S(sSo), mods=f"offen offset:{i*1024} lds")
                vq.issue(("W", s))
            return f
        return [setup] + [ld(i) for i in range(4)]
    def dma_a_items(s, u):
        def setup():
            k.op("s_add_u32", "m0", S(sAm0), (s % 3) * 32768 + u * 4096)
            k.op("s_lshl_b32", S(sSo), S(CH + s), 7)
            if u: k.op("s_add_u32", S(sSo), S(sSo), 32768)
        def ld(i):
            def f():
                k.op("buffer_load_dwordx4", V(VA + i), S(sC, 4), S(sSo), mods=f"offen offset:{i*1024} lds")
                vq.issue(("A", s))
            return f
        return [setup] + [ld(i) for i in range(4)]
    def dma_w(s):
        for f in dma_w_items(s): f()
    def dma_a(s, u):
        for f in dma_a_items(s, u): f()
    sPF, sPFo, sPFs, vPF = 56, 54, 55, 34
    if prefetch:
        k.op("s_getpc_b64", S(96, 2))
        k.op("s_cmp_eq_u32", S(sW), 0)
        k.op("s_cselect_b32", S(sPF), S(42), S(44))
        k.op("s_cselect_b32", S(sPF + 1), S(43), S(45))
        k.op("s_cmp_eq_u32", S(sW), 2)
        k.op("s_cselect_b32", S(sPF), S(46), S(sPF))
        k.op("s_cselect_b32", S(sPF + 1), S(47), S(sPF + 1))
        k.op("s_cmp_eq_u32", S(sW), 3)
        k.op("s_cselect_b32", S(sPF), S(96), S(sPF))
        k.op("s_cselect_b32", S(sPF + 1), S(97), S(sPF + 1))
        k.op("s_mov_b32", S(sPF + 2), hex(4 << 20))
        k.op("s_cselect_b32", S(sPF + 2), hex(CODE_PF) if pfcode else "0", S(sPF + 2))
        k.op("s_and_b32", S(sPF + 1), S(sPF + 1), "0xffff")
        k.op("s_cmp_eq_u32", S(sW), 0)
        k.op("s_cselect_b32", S(sPF + 2), hex(2 << 20) if "a" in pfroles else "0", S(sPF + 2))
        if "k" not in pfroles:
            k.op("s_cmp_eq_u32", S(sW), 1)
            k.op("s_cselect_b32", S(sPF + 2), "0", S(sPF + 2))
        k.op("s_mov_b32", S(sPF + 3), "0x20000")
        k.op("s_lshr_b32", S(sT1), "s2", 3)
        k.op("v_bfe_u32", V(7), V(vL), 3, 1)
        k.op("v_lshlrev_b32", V(7), 13, V(7))
        k.op("v_lshl_add_u32", V(7), V(5), 7, V(7))
        k.op("s_lshl_b32", S(sT2), S(sT1), 14)
        k.op("s_and_b32", S(sT0), "s2", 7)
        k.op("s_lshl_b32", S(sT0), S(sT0), 10)
        k.op("s_add_u32", S(sT2), S(sT2), S(sT0))
        k.op("v_add_u32", V(7), S(sT2), V(7))
        k.op("s_lshl_b32", S(sT2), S(sT1), 16)
        k.op("v_lshlrev_b32", V(9), 10, V(vL))
        k.op("v_add_u32", V(9), S(sT2), V(9))
        k.op("v_lshlrev_b32", V(vPF), 7, V(vL))
        k.op("s_cmp_eq_u32", S(sW), 0)
        k.op("s_cselect_b64", "vcc", "-1", "0")
        k.op("s_mov_b32", S(sPFs), 524288)
        k.op("s_cselect_b32", S(sPFs), 128, S(sPFs))
        k.op("v_cndmask_b32", V(7), V(7), V(9), "vcc")
        k.op("s_cmp_eq_u32", S(sW), 3)
        k.op("s_cselect_b64", "vcc", "-1", "0")
        k.op("s_cselect_b32", S(sPFs), 8192, S(sPFs))
        k.op("v_cndmask_b32", V(vPF), V(7), V(vPF), "vcc")
        k.op("s_cmp_lt_u32", S(sW), 2)
        k.op("s_cselect_b32", S(sPFo), S(sPFs), 0)
        k.op("s_mul_i32", S(sPFo), S(sPFo), pfstart)
        k.op("s_cmp_eq_u32", S(sW), 2)
        k.op("s_cselect_b32", S(sPFo), hex((-pfvdelay * 524288) & 0xffffffff), S(sPFo))
    def pf():
        if not prefetch: return
        k.op("buffer_load_dword", V(35), V(vPF), S(sPF, 4), S(sPFo), mods="offen", dummy=True); vq.issue()
        k.op("s_add_u32", S(sPFo), S(sPFo), S(sPFs))
    dma_w(0); dma_a(0, 0); dma_a(0, 1)
    for _ in range(pfinit): pf()
    dma_w(1); dma_a(1, 0); dma_a(1, 1)
    stp.stamp()
    load_srd(k, sX, "x", 40); load_srd(k, sWV, "wuv", 46); load_srd(k, sWS, "ws", 48)
    k.op("v_bfe_u32", V(10), V(vL), 2, 2)
    k.op("v_and_b32", V(11), 3, V(vL))
    k.op("v_and_b32", V(12), 1, V(6))
    k.op("v_lshl_or_b32", V(13), V(12), 2, V(10))
    k.op("v_lshl_add_u32", V(14), V(6), 3, V(10))
    k.op("v_lshlrev_b32", V(15), 8, V(14))
    k.op("v_lshl_add_u32", V(15), V(11), 3, V(15))
    for nb in range(8):
        k.op("v_xor_b32", V(7), nb, V(13))
        k.op("v_lshl_add_u32", V(TA + nb), V(7), 5, V(15))
    k.op("v_lshrrev_b32", V(7), 1, V(8))
    k.op("v_xor_b32", V(7), V(7), V(6))
    k.op("v_lshlrev_b32", V(7), 4, V(7))
    k.op("v_lshl_add_u32", V(7), V(8), 7, V(7))
    k.op("v_add_u32", V(AA), S(sAm0), V(7))
    k.op("v_xor_b32", V(AA + 1), 64, V(AA))
    k.op("v_add_u32", V(112), 65536, V(AA))
    k.op("v_add_u32", V(113), 65536, V(AA + 1))
    k.op("v_lshrrev_b32", V(7), 1, V(6))
    k.op("v_lshlrev_b32", V(vKo), 9, V(7))
    k.op("v_lshl_add_u32", V(vKo), V(12), 10, V(vKo))
    k.op("v_lshrrev_b32", V(4), 3, V(8))
    k.op("v_lshl_add_u32", V(vKo), V(4), 8, V(vKo))
    k.op("v_and_b32", V(4), 7, V(8))
    k.op("v_lshl_add_u32", V(vKo), V(4), 4, V(vKo))
    k.op("v_lshlrev_b32", V(vVo), 12, V(7))
    k.op("v_lshl_add_u32", V(vVo), V(12), 9, V(vVo))
    k.op("v_lshl_add_u32", V(vVo), V(8), 4, V(vVo))
    k.op("s_lshl_b32", S(sKst), S(sH), 19)
    k.op("s_lshl_b32", S(sT1), S(sJ), 16)
    k.op("s_add_u32", S(sKst), S(sKst), S(sT1))
    k.op("s_lshl_b32", S(sT1), S(sW), 14)
    k.op("s_add_u32", S(sKst), S(sKst), S(sT1))
    k.op("s_add_u32", S(sVst), S(sKst), VF_OFF)
    k.op("s_add_u32", S(sKst), S(sKst), KF_OFF)
    k.op("s_lshl_b32", S(sR), "s2", 3)
    k.op("s_lshl_b32", S(sT1), S(sW), 1)
    k.op("s_add_u32", S(sR), S(sR), S(sT1))
    k.op("s_lshr_b32", S(sR + 1), S(sR), 4)
    k.op("s_lshl_b32", S(sR + 1), S(sR + 1), 14)
    k.op("s_and_b32", S(sR + 2), S(sR), 15)
    k.op("s_lshl_b32", S(sR + 2), S(sR + 2), 4)
    k.op("s_add_u32", S(sR + 1), S(sR + 1), S(sR + 2))
    k.op("s_lshl_b32", S(sR + 2), S(sR), 3)
    k.op("s_add_u32", S(sR + 2), S(sR + 2), YF_OFF)
    k.op("s_lshl_b32", S(sR), S(sR), 10)
    vLs, vLd, vLz = LNR + 28, LNR + 29, LNR + 30
    k.op("v_mov_b32", V(vLz), 0)
    k.op("v_lshlrev_b32", V(vLs), 4, V(vL))
    k.op("v_lshrrev_b32", V(vLd), 2, V(vL))
    k.op("v_lshlrev_b32", V(vLd), 10, V(vLd))
    k.op("v_lshl_add_u32", V(vLd), V(11), 8, V(vLd))
    k.op("s_lshl_b32", S(sT1), "s2", 8)
    k.op("s_add_u32", S(sT1), S(sT1), FLAG_OFF)
    for i in range(4): k.op("v_mov_b32", V(108 + i), 0)
    k.op("buffer_store_dwordx4", V(108, 4), V(vLz), S(sWS, 4), S(sT1), mods="offen"); vq.issue()
    X0, X1 = 100, 104
    def ln_load():
        k.op("buffer_load_dwordx4", V(X0, 4), V(vLs), S(sX, 4), S(sR), mods="offen"); vq.issue("ln")
        k.op("buffer_load_dwordx4", V(X1, 4), V(vLs), S(sX, 4), S(sR), mods="offen offset:1024"); vq.issue("ln")
    lnq = FillQ(k, on_emit=lambda i: vq.issue() if i.kind == "vstore" else None)
    q1 = FillQ(k)
    q2 = FillQ(k, on_emit=lambda i: vq.issue() if i.kind == "vstore" else None)
    if not noln: lnq.add(lambda: vq.need("ln"))
    for r, X in enumerate((X0, X1) if not noln else ()):
        ln = Kern("ln")
        layernorm(ln, X, LNR + 4, LNR + 8, LNR + 16)
        layernorm(ln, LNR + 4, LNR + 24, LNR + 8, LNR + 16, stats_only=True)
        ln.op("buffer_store_dwordx4", V(LNR + 4, 4), V(vLd), S(sWS, 4), S(sR + 1), mods=f"offen offset:{16*r}" + (" sc1" if fuse else ""))
        ln.op("buffer_store_dwordx2", V(LNR + 24, 2), V(vLz), S(sWS, 4), S(sR + 2), mods=f"offen offset:{8*r}" + (" sc1" if fuse else ""))
        ln.nop(2)
        lnq.add_kern(ln)

    def frag_info(n):
        s, i = n >> 4, n & 15
        if s < 8:
            ks, nb = i >> 3, i & 7
            return s, s * 2 + ks, nb, wslot(s) + ks * 8192, 1024
        ks, nb = i >> 2, i & 3
        return s, ((s - 8) % 4) * 4 + ks, nb, wslot(s) + ks * 4096, 512
    pend = []
    def page_switch(s):
        if s == 8:
            k.op("v_lshrrev_b32", V(7), 1, V(10))
            k.op("v_lshl_or_b32", V(13), V(12), 1, V(7))
            k.op("v_lshlrev_b32", V(15), 7, V(14))
            k.op("v_lshl_add_u32", V(15), V(11), 3, V(15))
            for nb in range(4):
                k.op("v_xor_b32", V(7), nb, V(13))
                k.op("v_lshl_add_u32", V(TA + nb), V(7), 5, V(15))
                k.op("v_add_u32", V(TA + 4 + nb), 65536, V(TA + nb))
                k.op("v_add_u32", V(114 + nb), 131072, V(TA + nb))
        vq.need(("W", s), ("A", s), cnt=(4, 8 if s < 8 else 0))
        if s in (0, 1): stp.stamp()
        k.op("s_barrier")
        if s + 2 == 8:
            k.op("v_lshlrev_b32", V(7), 1, V(12))
            k.op("v_xor_b32", V(7), V(7), V(5))
            k.op("v_lshlrev_b32", V(7), 4, V(7))
            k.op("v_lshrrev_b32", V(4), 3, V(vL))
            k.op("v_lshl_add_u32", V(7), V(4), 13, V(7))
            k.op("s_and_b32", S(sT1), S(sW), 1)
            k.op("s_lshl_b32", S(sT1), S(sT1), 18)
            k.op("s_lshl_b32", S(sT2), S(sH), 8)
            k.op("s_add_u32", S(sT1), S(sT1), S(sT2))
            k.op("v_add_u32", V(VW), S(sT1), V(7))
            k.op("v_xor_b32", V(VW + 1), 64, V(VW))
            k.op("v_add_u32", V(VW + 1), 65536 - 1024, V(VW + 1))
            k.op("v_add_u32", V(VW + 2), 2 * (65536 - 1024), V(VW))
            k.op("v_add_u32", V(VW + 3), 2 * (65536 - 1024), V(VW + 1))
        def act_read(ks, c):
            def f():
                r = ((s * 2 + ks) * 4 + c) * 4
                k.op("ds_read_b128", A(r, 4), V((AA if s % 3 < 2 else 112) + ks), mods=f"offset:{(s%3%2)*32768 + c*2048}")
                lq.issue(("a", s * 2 + ks))
            return f
        assert len(q1) == 0, len(q1)
        if s < 8:
            for ks in range(2):
                for c in range(4):
                    if s == 0 and ks == 0: act_read(ks, c)()
                    else: q1.add(act_read(ks, c))
        if s + 2 < (10 if early else 16):
            for f in dma_w_items(s + 2): q1.add(f)
        if early and s in (6, 7, 8):
            for pg in (10 + 2 * (s - 6), 11 + 2 * (s - 6)):
                for f in dma_w_items(pg): q1.add(f)
        if s < pfn:
            for _ in range(pfper): q1.add(pf)
        if s + 2 < 8:
            for u in range(2):
                for f in dma_a_items(s + 2, u): q1.add(f)
    def read_frag(n, which=None):
        s, ksg, nb, off, st = frag_info(n)
        if n % 16 == 0 and which != 1: page_switch(s)
        r = WF + (n % 8) * 4
        for i in (range(2) if which is None else [which]):
            wn = off // 65536
            k.op("ds_read_b64_tr_b16", V(r + 2 * i, 2), V([TA, TA + 4, 114][wn] + nb), mods=f"offset:{off - wn*65536 + i*st}")
            lq.issue(("w", n))
    def tileK(nb, c): return ACC + 4 * (nb * 4 + c)
    def tileV(half, nb, c): return ACC + 64 * half + 4 * (nb * 4 + c)
    def pack(e, a, b):
        e.op("v_cvt_pk_bf16_f32", V(a), V(a), V(a + 1))
        e.op("v_cvt_pk_bf16_f32", V(a + 1), V(a + 2), V(a + 3))
        e.op("v_cvt_pk_bf16_f32", V(a + 2), V(b), V(b + 1))
        e.op("v_cvt_pk_bf16_f32", V(a + 3), V(b + 2), V(b + 3))
    def k_epi(pi, c):
        e = Kern("e")
        a, b = tileK(2 * pi, c), tileK(2 * pi + 1, c)
        pack(e, a, b)
        e.op("s_add_u32", S(sT2), S(sKst), (c >> 1) * 8192 + (pi >> 1) * 4096)
        e.op("buffer_store_dwordx4", V(a, 4), V(vKo), S(sWS, 4), S(sT2),
             mods=f"offen offset:{(pi&1)*2048 + (c&1)*128}{store_mods}")
        return e
    def v_epi(half, nb, u):
        e = Kern("e")
        a, b = tileV(half, nb, 2 * u), tileV(half, nb, 2 * u + 1)
        n = half * 4 + nb
        pack(e, a, b)
        e.op("s_add_u32", S(sT2), S(sVst), u * 8192)
        e.op("buffer_store_dwordx4", V(a, 4), V(vVo), S(sWS, 4), S(sT2),
             mods=f"offen offset:{(n>>1)*1024 + (n&1)*256}{store_mods}")
        return e
    events = {}
    def at(n, f): events.setdefault(n, []).append(f)
    at(123, lambda: [q2.add_kern(k_epi(0, c)) for c in range(4)])
    at(125, lambda: [q2.add_kern(k_epi(1, c)) for c in range(4)])
    at(129, lambda: [q2.add_kern(k_epi(p, c)) for p in (2, 3) for c in range(4)])
    at(193, lambda: [q2.add_kern(v_epi(0, nb, u)) for nb in range(4) for u in range(2)])
    at(254, lambda: [q2.add_kern(v_epi(1, 0, u)) for u in range(2)])
    at(255, lambda: [q2.add_kern(v_epi(1, 1, u)) for u in range(2)])
    def pf_k2():
        sp = sC
        k.op("s_lshr_b32", S(sT1), "s2", 3)
        k.op("s_lshl_b32", S(sT1), S(sT1), 2)
        k.op("s_add_u32", S(sT1), S(sT1), S(sW))
        k.op("s_and_b32", S(sT0), "s2", 7)
        load_srd(k, sp, "wq", 98)
        k.op("v_bfe_u32", V(7), V(vL), 3, 2)
        k.op("v_lshlrev_b32", V(9), 13, V(7))
        k.op("v_lshl_add_u32", V(9), V(5), 7, V(9))
        k.op("s_lshl_b32", S(sSo2), S(sT1), 15)
        k.op("s_lshl_b32", S(sPFo), S(sT0), 10)
        k.op("s_add_u32", S(sSo2), S(sSo2), S(sPFo))
        k.op("buffer_load_dword", V(35), V(9), S(sp, 4), S(sSo2), mods="offen", dummy=True); vq.issue()
        load_srd(k, sPF, "w1", 100)
        k.op("v_mul_u32_u24", V(9), 2752, V(7))
        k.op("v_lshl_add_u32", V(9), V(5), 6, V(9))
        k.op("s_mul_i32", S(sSo2), S(sT1), 4 * 2752)
        k.op("s_mul_i32", S(sPFo), S(sT0), 384)
        k.op("s_add_u32", S(sSo2), S(sSo2), S(sPFo))
        k.op("buffer_load_dword", V(35), V(9), S(sPF, 4), S(sSo2), mods="offen", dummy=True); vq.issue()
        k.op("s_lshl_b32", S(sSo2), S(sT1), 13)
        pf_code(k, sp, "k2_kernel", "k2_slow_0-k2_kernel", 9, vL, sSo2, 35); vq.issue()
    if pf2: at(pf2at, pf_k2)
    ln_load()
    for n in range(D): read_frag(n)
    for n in range(256):
        if n in (64, 128, 192): stp.stamp()
        s, ksg, nb, off, st = frag_info(n)
        lq.need(("w", n), ("a", ksg), cnt=(2, 4))
        wf = V(WF + (n % 8) * 4, 4)
        first = (ksg == 0)
        for f in events.get(n, []): f()
        if n in (128, 129, 130, 131):
            pass
        for c in range(4):
            af = A((ksg * 4 + c) * 4, 4)
            if s < 8:
                d = V(tileK(nb, c), 4)
                k.op("v_mfma_f32_16x16x32_bf16", d, wf, af, "0" if first else d)
            else:
                d = V(tileV((s - 8) // 4, nb, c), 4)
                k.op("v_mfma_f32_16x16x32_bf16", d, af, wf, "0" if first else d)
            cap = 1
            if c == 0 and n + D < 256:
                read_frag(n + D, 0); cap = 0
            if c == 1 and n + D < 256:
                read_frag(n + D, 1); cap = 0
            if 123 <= n <= 127: cap += 2
            if n < LN1 and len(lnq): cap += 1
            if len(q1) > 8: cap += 1
            cap -= q1.emit(cap)
            cap -= q2.emit(cap)
            if n >= LN0: cap -= lnq.emit(cap)
        if n == 127: q2.flush()
    stp.stamp()
    q2.flush()
    k.nop(4)
    for nb in (2, 3):
        for u in range(2): q2.add_kern(v_epi(1, nb, u))
    q2.flush()
    assert len(lnq) == 0, len(lnq)
    if stamps:
        if not fuse: k.wait(vm=0)
        stp.stamp()
        stp.flush(sWS, sW, 4)
    if fuse:
        k.wait(lgkm=0)
        k.op("s_barrier")
        k.raw("  s_branch k2_kernel")
    k.label("k1_end")
    k.op("s_endpgm")
    return k

if __name__ == "__main__":
    k = build_k1()
    for e in k.check_hazards(): print(e)
    for e in k.check_waits(): print(e)
    print(k.maxregs(), len(k.ins))
```

```python
from common import *
from k1_v1 import layernorm
CODE_PF = 20480

def build_k1(D=4, store_mods="", stamps=False, prefetch=True, twice=False, noln=False, pfinit=0, pfstart=1, pfcode=False, pfn=7, pfper=2, pfvdelay=4, pfroles="v", pf2=True, skew=True, early=True, pf2at=225, fuse=False, LN0=100, LN1=250, pfxn=0):
    k = Kern("k1_kernel")
    vq, lq = Q(k, "vmcnt", 63), Q(k, "lgkmcnt", 15)
    stp = Stamps(k, stamps, 60, 0, lq, maxn=10)
    sX, sC, sWK, sWV, sWS = 8, 12, 16, 20, 24
    sW, sH, sJ = 28, 29, 30
    sT0, sT1, sT2 = 31, 32, 33
    sAm0, sWm0 = 34, 35
    sSo, sSo2 = 36, 37
    sKst, sVst = 38, 39
    sR = 50
    CH = 84
    vL = 1
    vKo, vVo = 2, 3
    TA = 16; AA = 24; VA = 26; VW = 30
    WF = 36
    LNR = 68
    ACC2 = 68 + 32
    ACCV = 64 + 0
    ACC = 128
    k.op("s_cmp_ge_u32", "s2", 256)
    k.op("s_cbranch_scc1", "k1_end")
    k.op("s_load_dwordx4", S(40, 4), S(0, 2), KA["x"])
    k.op("s_load_dwordx4", S(44, 4), S(0, 2), KA["wuk"])
    k.op("s_load_dwordx2", S(48, 2), S(0, 2), KA["ws"])
    k.op("s_load_dwordx2", S(98, 2), S(0, 2), KA["wq"])
    k.op("s_load_dwordx2", S(100, 2), S(0, 2), KA["w1"])
    k.op("v_and_b32", V(vL), 63, "v0")
    k.op("v_lshrrev_b32", V(4), 6, "v0")
    k.op("s_and_b32", S(sT0), "s2", 7)
    k.op("v_readfirstlane_b32", S(sW), V(4))
    k.op("s_lshr_b32", S(sT1), "s2", 3)
    k.op("s_and_b32", S(sT2), S(sT1), 3)
    k.op("s_lshl_b32", S(sH), S(sT0), 2)
    k.op("s_add_u32", S(sH), S(sH), S(sT2))
    k.op("s_lshr_b32", S(sJ), S(sT1), 2)
    k.op("v_lshrrev_b32", V(4), 3, V(vL))
    k.op("v_and_b32", V(5), 7, V(vL))
    k.op("v_lshrrev_b32", V(6), 4, V(vL))
    k.op("v_xor_b32", V(7), V(5), V(6))
    k.op("v_lshlrev_b32", V(7), 4, V(7))
    k.op("v_lshl_add_u32", V(7), V(4), 10, V(7))
    k.op("s_lshl_b32", S(sT0), S(sJ), 18)
    k.op("s_lshl_b32", S(sT1), S(sW), 16)
    k.op("s_add_u32", S(sT0), S(sT0), S(sT1))
    k.op("v_add_u32", V(VA), S(sT0), V(7))
    k.op("v_xor_b32", V(VA + 1), 64, V(VA))
    k.op("v_add_u32", V(VA + 1), 7168, V(VA + 1))
    k.op("v_add_u32", V(VA + 2), 2 * 7168, V(VA))
    k.op("v_add_u32", V(VA + 3), 2 * 7168, V(VA + 1))
    k.op("v_lshlrev_b32", V(7), 1, V(6))
    k.op("v_and_b32", V(8), 15, V(vL))
    k.op("v_xor_b32", V(7), V(7), V(8))
    k.op("v_lshlrev_b32", V(7), 4, V(7))
    k.op("v_lshl_add_u32", V(7), V(6), 13, V(7))
    k.op("s_lshl_b32", S(sT0), S(sW), 17)
    k.op("s_lshl_b32", S(sT1), S(sH), 8)
    k.op("s_add_u32", S(sT0), S(sT0), S(sT1))
    k.op("v_add_u32", V(VW), S(sT0), V(7))
    k.op("v_add_u32", V(VW + 1), 32768 - 1024, V(VW))
    k.op("v_xor_b32", V(VW + 2), 128, V(VW))
    k.op("v_add_u32", V(VW + 2), 2 * (32768 - 1024), V(VW + 2))
    k.op("v_add_u32", V(VW + 3), 32768 - 1024, V(VW + 2))
    k.op("s_lshl_b32", S(sAm0), S(sW), 13)
    k.op("s_add_u32", S(sAm0), S(sAm0), 65536)
    sCh = 64 if not stamps else None
    k.op("s_add_u32", S(sT0), S(sH), S(sJ))
    k.op("s_and_b32", S(sT0), S(sT0), 3)
    for i in range(8):
        if skew: skew_stage(k, CH + i, sT0, i, 8, sT1)
        else: k.op("s_mov_b32", S(CH + i), i)
    k.op("s_lshl_b32", S(sWm0), S(sW), 12)
    k.wait(lgkm=0)
    stp.stamp()
    load_srd(k, sC, "ckv", 42); load_srd(k, sWK, "wuk", 44)

    def wslot(s):
        if s < 10 or not early: return (s % 4) * 16384
        return 65536 + ((5 + (s - 10) // 2) % 3) * 32768 + ((s - 10) % 2) * 16384
    def dma_w_items(s):
        srd = sWK if s < 8 else sWV
        def setup():
            k.op("s_add_u32", "m0", S(sWm0), wslot(s))
            if s < 8: k.op("s_lshl_b32", S(sSo), S(CH + s), 19)
            else:
                q = (s - 8) % 4
                k.op("s_cmp_lt_u32", S(sW), 2)
                k.op("s_cselect_b32", S(sSo), S(CH + 2 * q), S(CH + 2 * q + 1))
                k.op("s_lshl_b32", S(sSo), S(sSo), 19)
                if s >= 12: k.op("s_add_u32", S(sSo), S(sSo), 128)
        def ld(i):
            def f():
                k.op("buffer_load_dwordx4", V(VW + i), S(srd, 4), S(sSo), mods=f"offen offset:{i*1024} lds")
                vq.issue(("W", s))
            return f
        return [setup] + [ld(i) for i in range(4)]
    def dma_a_items(s, u):
        def setup():
            k.op("s_add_u32", "m0", S(sAm0), (s % 3) * 32768 + u * 4096)
            k.op("s_lshl_b32", S(sSo), S(CH + s), 7)
            if u: k.op("s_add_u32", S(sSo), S(sSo), 32768)
        def ld(i):
            def f():
                k.op("buffer_load_dwordx4", V(VA + i), S(sC, 4), S(sSo), mods=f"offen offset:{i*1024} lds")
                vq.issue(("A", s))
            return f
        return [setup] + [ld(i) for i in range(4)]
    def dma_w(s):
        for f in dma_w_items(s): f()
    def dma_a(s, u):
        for f in dma_a_items(s, u): f()
    sPF, sPFo, sPFs, vPF = 56, 54, 55, 34
    if prefetch:
        k.op("s_getpc_b64", S(96, 2))
        k.op("s_cmp_eq_u32", S(sW), 0)
        k.op("s_cselect_b32", S(sPF), S(42), S(44))
        k.op("s_cselect_b32", S(sPF + 1), S(43), S(45))
        k.op("s_cmp_eq_u32", S(sW), 2)
        k.op("s_cselect_b32", S(sPF), S(46), S(sPF))
        k.op("s_cselect_b32", S(sPF + 1), S(47), S(sPF + 1))
        k.op("s_cmp_eq_u32", S(sW), 3)
        k.op("s_cselect_b32", S(sPF), S(96), S(sPF))
        k.op("s_cselect_b32", S(sPF + 1), S(97), S(sPF + 1))
        k.op("s_mov_b32", S(sPF + 2), hex(4 << 20))
        k.op("s_cselect_b32", S(sPF + 2), hex(CODE_PF) if pfcode else "0", S(sPF + 2))
        k.op("s_and_b32", S(sPF + 1), S(sPF + 1), "0xffff")
        k.op("s_cmp_eq_u32", S(sW), 0)
        k.op("s_cselect_b32", S(sPF + 2), hex(2 << 20) if "a" in pfroles else "0", S(sPF + 2))
        if "k" not in pfroles:
            k.op("s_cmp_eq_u32", S(sW), 1)
            k.op("s_cselect_b32", S(sPF + 2), "0", S(sPF + 2))
        k.op("s_mov_b32", S(sPF + 3), "0x20000")
        k.op("s_lshr_b32", S(sT1), "s2", 3)
        k.op("v_bfe_u32", V(7), V(vL), 3, 1)
        k.op("v_lshlrev_b32", V(7), 13, V(7))
        k.op("v_lshl_add_u32", V(7), V(5), 7, V(7))
        k.op("s_lshl_b32", S(sT2), S(sT1), 14)
        k.op("s_and_b32", S(sT0), "s2", 7)
        k.op("s_lshl_b32", S(sT0), S(sT0), 10)
        k.op("s_add_u32", S(sT2), S(sT2), S(sT0))
        k.op("v_add_u32", V(7), S(sT2), V(7))
        k.op("s_lshl_b32", S(sT2), S(sT1), 16)
        k.op("v_lshlrev_b32", V(9), 10, V(vL))
        k.op("v_add_u32", V(9), S(sT2), V(9))
        k.op("v_lshlrev_b32", V(vPF), 7, V(vL))
        k.op("s_cmp_eq_u32", S(sW), 0)
        k.op("s_cselect_b64", "vcc", "-1", "0")
        k.op("s_mov_b32", S(sPFs), 524288)
        k.op("s_cselect_b32", S(sPFs), 128, S(sPFs))
        k.op("v_cndmask_b32", V(7), V(7), V(9), "vcc")
        k.op("s_cmp_eq_u32", S(sW), 3)
        k.op("s_cselect_b64", "vcc", "-1", "0")
        k.op("s_cselect_b32", S(sPFs), 8192, S(sPFs))
        k.op("v_cndmask_b32", V(vPF), V(7), V(vPF), "vcc")
        k.op("s_cmp_lt_u32", S(sW), 2)
        k.op("s_cselect_b32", S(sPFo), S(sPFs), 0)
        k.op("s_mul_i32", S(sPFo), S(sPFo), pfstart)
        k.op("s_cmp_eq_u32", S(sW), 2)
        k.op("s_cselect_b32", S(sPFo), hex((-pfvdelay * 524288) & 0xffffffff), S(sPFo))
    def pf():
        if not prefetch: return
        k.op("buffer_load_dword", V(35), V(vPF), S(sPF, 4), S(sPFo), mods="offen", dummy=True); vq.issue()
        k.op("s_add_u32", S(sPFo), S(sPFo), S(sPFs))
    dma_w(0); dma_a(0, 0); dma_a(0, 1)
    for _ in range(pfinit): pf()
    dma_w(1); dma_a(1, 0); dma_a(1, 1)
    stp.stamp()
    load_srd(k, sX, "x", 40); load_srd(k, sWV, "wuv", 46); load_srd(k, sWS, "ws", 48)
    k.op("v_bfe_u32", V(10), V(vL), 2, 2)
    k.op("v_and_b32", V(11), 3, V(vL))
    k.op("v_and_b32", V(12), 1, V(6))
    k.op("v_lshl_or_b32", V(13), V(12), 2, V(10))
    k.op("v_lshl_add_u32", V(14), V(6), 3, V(10))
    k.op("v_lshlrev_b32", V(15), 8, V(14))
    k.op("v_lshl_add_u32", V(15), V(11), 3, V(15))
    for nb in range(8):
        k.op("v_xor_b32", V(7), nb, V(13))
        k.op("v_lshl_add_u32", V(TA + nb), V(7), 5, V(15))
    k.op("v_lshrrev_b32", V(7), 1, V(8))
    k.op("v_xor_b32", V(7), V(7), V(6))
    k.op("v_lshlrev_b32", V(7), 4, V(7))
    k.op("v_lshl_add_u32", V(7), V(8), 7, V(7))
    k.op("v_add_u32", V(AA), S(sAm0), V(7))
    k.op("v_xor_b32", V(AA + 1), 64, V(AA))
    k.op("v_add_u32", V(112), 65536, V(AA))
    k.op("v_add_u32", V(113), 65536, V(AA + 1))
    k.op("v_lshrrev_b32", V(7), 1, V(6))
    k.op("v_lshlrev_b32", V(vKo), 9, V(7))
    k.op("v_lshl_add_u32", V(vKo), V(12), 10, V(vKo))
    k.op("v_lshrrev_b32", V(4), 3, V(8))
    k.op("v_lshl_add_u32", V(vKo), V(4), 8, V(vKo))
    k.op("v_and_b32", V(4), 7, V(8))
    k.op("v_lshl_add_u32", V(vKo), V(4), 4, V(vKo))
    k.op("v_lshlrev_b32", V(vVo), 12, V(7))
    k.op("v_lshl_add_u32", V(vVo), V(12), 9, V(vVo))
    k.op("v_lshl_add_u32", V(vVo), V(8), 4, V(vVo))
    k.op("s_lshl_b32", S(sKst), S(sH), 19)
    k.op("s_lshl_b32", S(sT1), S(sJ), 16)
    k.op("s_add_u32", S(sKst), S(sKst), S(sT1))
    k.op("s_lshl_b32", S(sT1), S(sW), 14)
    k.op("s_add_u32", S(sKst), S(sKst), S(sT1))
    k.op("s_add_u32", S(sVst), S(sKst), VF_OFF)
    k.op("s_add_u32", S(sKst), S(sKst), KF_OFF)
    k.op("s_lshl_b32", S(sR), "s2", 3)
    k.op("s_lshl_b32", S(sT1), S(sW), 1)
    k.op("s_add_u32", S(sR), S(sR), S(sT1))
    k.op("s_lshr_b32", S(sR + 1), S(sR), 4)
    k.op("s_lshl_b32", S(sR + 1), S(sR + 1), 14)
    k.op("s_and_b32", S(sR + 2), S(sR), 15)
    k.op("s_lshl_b32", S(sR + 2), S(sR + 2), 4)
    k.op("s_add_u32", S(sR + 1), S(sR + 1), S(sR + 2))
    k.op("s_lshl_b32", S(sR + 2), S(sR), 3)
    k.op("s_add_u32", S(sR + 2), S(sR + 2), YF_OFF)
    k.op("s_lshl_b32", S(sR), S(sR), 10)
    vLs, vLd, vLz = LNR + 28, LNR + 29, LNR + 30
    k.op("v_mov_b32", V(vLz), 0)
    k.op("v_lshlrev_b32", V(vLs), 4, V(vL))
    k.op("v_lshrrev_b32", V(vLd), 2, V(vL))
    k.op("v_lshlrev_b32", V(vLd), 10, V(vLd))
    k.op("v_lshl_add_u32", V(vLd), V(11), 8, V(vLd))
    k.op("s_lshl_b32", S(sT1), "s2", 8)
    k.op("s_add_u32", S(sT1), S(sT1), FLAG_OFF)
    for i in range(4): k.op("v_mov_b32", V(108 + i), 0)
    k.op("buffer_store_dwordx4", V(108, 4), V(vLz), S(sWS, 4), S(sT1), mods="offen"); vq.issue()
    k.op("s_lshl_b32", S(sT1), "s2", 4)
    k.op("s_add_u32", S(sT1), S(sT1), FLAG2_OFF)
    k.op("buffer_store_dwordx4", V(108, 4), V(vLz), S(sWS, 4), S(sT1), mods="offen"); vq.issue()
    X0, X1 = 100, 104
    def ln_load():
        k.op("buffer_load_dwordx4", V(X0, 4), V(vLs), S(sX, 4), S(sR), mods="offen"); vq.issue("ln")
        k.op("buffer_load_dwordx4", V(X1, 4), V(vLs), S(sX, 4), S(sR), mods="offen offset:1024"); vq.issue("ln")
    lnq = FillQ(k, on_emit=lambda i: vq.issue() if i.kind == "vstore" else None)
    q1 = FillQ(k)
    q2 = FillQ(k, on_emit=lambda i: vq.issue() if i.kind == "vstore" else None)
    if not noln: lnq.add(lambda: vq.need("ln"))
    for r, X in enumerate((X0, X1) if not noln else ()):
        ln = Kern("ln")
        layernorm(ln, X, LNR + 4, LNR + 8, LNR + 16)
        layernorm(ln, LNR + 4, LNR + 24, LNR + 8, LNR + 16, stats_only=True)
        ln.op("buffer_store_dwordx4", V(LNR + 4, 4), V(vLd), S(sWS, 4), S(sR + 1), mods=f"offen offset:{16*r}" + (" sc1" if fuse else ""))
        ln.op("buffer_store_dwordx2", V(LNR + 24, 2), V(vLz), S(sWS, 4), S(sR + 2), mods=f"offen offset:{8*r}" + (" sc1" if fuse else ""))
        ln.nop(2)
        lnq.add_kern(ln)

    def frag_info(n):
        s, i = n >> 4, n & 15
        if s < 8:
            ks, nb = i >> 3, i & 7
            return s, s * 2 + ks, nb, wslot(s) + ks * 8192, 1024
        ks, nb = i >> 2, i & 3
        return s, ((s - 8) % 4) * 4 + ks, nb, wslot(s) + ks * 4096, 512
    pend = []
    def page_switch(s):
        if s == 8:
            k.op("v_lshrrev_b32", V(7), 1, V(10))
            k.op("v_lshl_or_b32", V(13), V(12), 1, V(7))
            k.op("v_lshlrev_b32", V(15), 7, V(14))
            k.op("v_lshl_add_u32", V(15), V(11), 3, V(15))
            for nb in range(4):
                k.op("v_xor_b32", V(7), nb, V(13))
                k.op("v_lshl_add_u32", V(TA + nb), V(7), 5, V(15))
                k.op("v_add_u32", V(TA + 4 + nb), 65536, V(TA + nb))
                k.op("v_add_u32", V(114 + nb), 131072, V(TA + nb))
        vq.need(("W", s), ("A", s), cnt=(4, 8 if s < 8 else 0))
        if s in (0, 1): stp.stamp()
        k.op("s_barrier")
        if s + 2 == 8:
            k.op("v_lshlrev_b32", V(7), 1, V(12))
            k.op("v_xor_b32", V(7), V(7), V(5))
            k.op("v_lshlrev_b32", V(7), 4, V(7))
            k.op("v_lshrrev_b32", V(4), 3, V(vL))
            k.op("v_lshl_add_u32", V(7), V(4), 13, V(7))
            k.op("s_and_b32", S(sT1), S(sW), 1)
            k.op("s_lshl_b32", S(sT1), S(sT1), 18)
            k.op("s_lshl_b32", S(sT2), S(sH), 8)
            k.op("s_add_u32", S(sT1), S(sT1), S(sT2))
            k.op("v_add_u32", V(VW), S(sT1), V(7))
            k.op("v_xor_b32", V(VW + 1), 64, V(VW))
            k.op("v_add_u32", V(VW + 1), 65536 - 1024, V(VW + 1))
            k.op("v_add_u32", V(VW + 2), 2 * (65536 - 1024), V(VW))
            k.op("v_add_u32", V(VW + 3), 2 * (65536 - 1024), V(VW + 1))
        def act_read(ks, c):
            def f():
                r = ((s * 2 + ks) * 4 + c) * 4
                k.op("ds_read_b128", A(r, 4), V((AA if s % 3 < 2 else 112) + ks), mods=f"offset:{(s%3%2)*32768 + c*2048}")
                lq.issue(("a", s * 2 + ks))
            return f
        assert len(q1) == 0, len(q1)
        if s < 8:
            for ks in range(2):
                for c in range(4):
                    if s == 0 and ks == 0: act_read(ks, c)()
                    else: q1.add(act_read(ks, c))
        if s + 2 < (10 if early else 16):
            for f in dma_w_items(s + 2): q1.add(f)
        if early and s in (6, 7, 8):
            for pg in (10 + 2 * (s - 6), 11 + 2 * (s - 6)):
                for f in dma_w_items(pg): q1.add(f)
        if s < pfn:
            for _ in range(pfper): q1.add(pf)
        if s + 2 < 8:
            for u in range(2):
                for f in dma_a_items(s + 2, u): q1.add(f)
    def read_frag(n, which=None):
        s, ksg, nb, off, st = frag_info(n)
        if n % 16 == 0 and which != 1: page_switch(s)
        r = WF + (n % 8) * 4
        for i in (range(2) if which is None else [which]):
            wn = off // 65536
            k.op("ds_read_b64_tr_b16", V(r + 2 * i, 2), V([TA, TA + 4, 114][wn] + nb), mods=f"offset:{off - wn*65536 + i*st}")
            lq.issue(("w", n))
    def tileK(nb, c): return ACC + 4 * (nb * 4 + c)
    def tileV(half, nb, c): return ACC + 64 * half + 4 * (nb * 4 + c)
    def pack(e, a, b):
        e.op("v_cvt_pk_bf16_f32", V(a), V(a), V(a + 1))
        e.op("v_cvt_pk_bf16_f32", V(a + 1), V(a + 2), V(a + 3))
        e.op("v_cvt_pk_bf16_f32", V(a + 2), V(b), V(b + 1))
        e.op("v_cvt_pk_bf16_f32", V(a + 3), V(b + 2), V(b + 3))
    def k_epi(pi, c):
        e = Kern("e")
        a, b = tileK(2 * pi, c), tileK(2 * pi + 1, c)
        pack(e, a, b)
        e.op("s_add_u32", S(sT2), S(sKst), (c >> 1) * 8192 + (pi >> 1) * 4096)
        e.op("buffer_store_dwordx4", V(a, 4), V(vKo), S(sWS, 4), S(sT2),
             mods=f"offen offset:{(pi&1)*2048 + (c&1)*128}{store_mods}")
        return e
    def v_epi(half, nb, u):
        e = Kern("e")
        a, b = tileV(half, nb, 2 * u), tileV(half, nb, 2 * u + 1)
        n = half * 4 + nb
        pack(e, a, b)
        e.op("s_add_u32", S(sT2), S(sVst), u * 8192)
        e.op("buffer_store_dwordx4", V(a, 4), V(vVo), S(sWS, 4), S(sT2),
             mods=f"offen offset:{(n>>1)*1024 + (n&1)*256}{store_mods}")
        return e
    events = {}
    def at(n, f): events.setdefault(n, []).append(f)
    at(123, lambda: [q2.add_kern(k_epi(0, c)) for c in range(4)])
    at(125, lambda: [q2.add_kern(k_epi(1, c)) for c in range(4)])
    at(129, lambda: [q2.add_kern(k_epi(p, c)) for p in (2, 3) for c in range(4)])
    at(193, lambda: [q2.add_kern(v_epi(0, nb, u)) for nb in range(4) for u in range(2)])
    at(254, lambda: [q2.add_kern(v_epi(1, 0, u)) for u in range(2)])
    at(255, lambda: [q2.add_kern(v_epi(1, 1, u)) for u in range(2)])
    def pf_k2():
        sp = sC
        k.op("s_lshr_b32", S(sT1), "s2", 3)
        k.op("s_lshl_b32", S(sT1), S(sT1), 2)
        k.op("s_add_u32", S(sT1), S(sT1), S(sW))
        k.op("s_and_b32", S(sT0), "s2", 7)
        load_srd(k, sp, "wq", 98)
        k.op("v_bfe_u32", V(7), V(vL), 3, 2)
        k.op("v_lshlrev_b32", V(9), 13, V(7))
        k.op("v_lshl_add_u32", V(9), V(5), 7, V(9))
        k.op("s_lshl_b32", S(sSo2), S(sT1), 15)
        k.op("s_lshl_b32", S(sPFo), S(sT0), 10)
        k.op("s_add_u32", S(sSo2), S(sSo2), S(sPFo))
        k.op("buffer_load_dword", V(35), V(9), S(sp, 4), S(sSo2), mods="offen", dummy=True); vq.issue()
        load_srd(k, sPF, "w1", 100)
        k.op("v_mul_u32_u24", V(9), 2752, V(7))
        k.op("v_lshl_add_u32", V(9), V(5), 6, V(9))
        k.op("s_mul_i32", S(sSo2), S(sT1), 4 * 2752)
        k.op("s_mul_i32", S(sPFo), S(sT0), 384)
        k.op("s_add_u32", S(sSo2), S(sSo2), S(sPFo))
        k.op("buffer_load_dword", V(35), V(9), S(sPF, 4), S(sSo2), mods="offen", dummy=True); vq.issue()
        k.op("s_lshl_b32", S(sSo2), S(sT1), 13)
        pf_code(k, sp, "k2_kernel", "k2_slow_0-k2_kernel", 9, vL, sSo2, 35); vq.issue()
    if pf2: at(pf2at, pf_k2)
    def pf_xn():
        k.op("s_lshr_b32", S(sT1), "s2", 3)
        k.op("s_lshl_b32", S(sT1), S(sT1), 2)
        k.op("s_add_u32", S(sT1), S(sT1), S(sW))
        k.op("s_lshl_b32", S(sSo2), S(sT1), 14)
        k.op("v_lshlrev_b32", V(9), 7, V(vL))
        k.op("buffer_load_dword", V(35), V(9), S(sWS, 4), S(sSo2), mods="offen", dummy=True); vq.issue()
        k.op("s_add_u32", S(sSo2), S(sSo2), 8192)
        k.op("buffer_load_dword", V(35), V(9), S(sWS, 4), S(sSo2), mods="offen", dummy=True); vq.issue()
    if pfxn: at(pfxn, pf_xn)
    ln_load()
    for n in range(D): read_frag(n)
    for n in range(256):
        if n in (64, 128, 192): stp.stamp()
        s, ksg, nb, off, st = frag_info(n)
        lq.need(("w", n), ("a", ksg), cnt=(2, 4))
        wf = V(WF + (n % 8) * 4, 4)
        first = (ksg == 0)
        for f in events.get(n, []): f()
        if n in (128, 129, 130, 131):
            pass
        for c in range(4):
            af = A((ksg * 4 + c) * 4, 4)
            if s < 8:
                d = V(tileK(nb, c), 4)
                k.op("v_mfma_f32_16x16x32_bf16", d, wf, af, "0" if first else d)
            else:
                d = V(tileV((s - 8) // 4, nb, c), 4)
                k.op("v_mfma_f32_16x16x32_bf16", d, af, wf, "0" if first else d)
            cap = 1
            if c == 0 and n + D < 256:
                read_frag(n + D, 0); cap = 0
            if c == 1 and n + D < 256:
                read_frag(n + D, 1); cap = 0
            if 123 <= n <= 127: cap += 2
            if n < LN1 and len(lnq): cap += 1
            if len(q1) > 8: cap += 1
            cap -= q1.emit(cap)
            cap -= q2.emit(cap)
            if n >= LN0: cap -= lnq.emit(cap)
        if n == 127: q2.flush()
    stp.stamp()
    q2.flush()
    k.nop(4)
    for nb in (2, 3):
        for u in range(2): q2.add_kern(v_epi(1, nb, u))
    q2.flush()
    assert len(lnq) == 0, len(lnq)
    if stamps:
        if not fuse: k.wait(vm=0)
        stp.stamp()
        stp.flush(sWS, sW, 4)
    if fuse:
        k.wait(lgkm=0)
        k.op("s_barrier")
        k.raw("  s_branch k2_kernel")
    k.label("k1_end")
    k.op("s_endpgm")
    return k

if __name__ == "__main__":
    k = build_k1()
    for e in k.check_hazards(): print(e)
    for e in k.check_waits(): print(e)
    print(k.maxregs(), len(k.ins))
```

```python
from common import *
import struct
def f32(x): return hex(struct.unpack("<I", struct.pack("<f", x))[0])
LOG2E = 1.4426950408889634
QSCALE = LOG2E / (128 ** 0.5)
STAT_OFF = YF_OFF

def build_k2(stamps=False, D=4, DA=8, thr=2.0 ** 60, pf3=True, fuse3=False):
    k = Kern("k2_kernel")
    vq, lq = Q(k, "vmcnt", 63), Q(k, "lgkmcnt", 15)
    stp = Stamps(k, stamps, 62, 1, lq, maxn=8)
    sWS, sWQ, sW1, sK, sV, sB1 = 8, 12, 16, 20, 24, 28
    sW, sH, sP, sNa, sNb, sT = 32, 33, 34, 35, 36, 37
    sT0, sT1, sT2, sSo = 38, 39, 40, 41
    sP2, sP1, sRd, sNx = 42, 43, 44, 45
    sTK, sTV, sW4k, sThr, sRet = 46, 47, 48, 49, 50
    sXa, sXb = 51, 52
    sCa, sCb = 53, 54
    sM = 56
    sLd = 98
    vL, vL16, vA, vD, vZ, vNinf = 1, 2, 3, 4, 5, 6
    vPs = [7, 8]; vLs = [9, 10]; vMx = [11, 12]
    vT = 13
    vCo = 20
    QR, NEGM, SR = 32, 96, 128
    def Sreg(sub, par): return SR + sub * 64 + par * 32
    OA, FR = 64, 192
    TA, TB, VW, VW1 = 96, 104, 108, 112
    vXo = 21
    MACC = 32
    ONES = 116
    XR = 0

    k.op("s_cmp_ge_u32", "s2", 256)
    k.op("s_cbranch_scc1", "k2_end")
    k.op("s_load_dwordx2", S(84, 2), S(0, 2), KA["wq"])
    k.op("s_load_dwordx4", S(88, 4), S(0, 2), KA["w1"])
    k.op("s_load_dwordx2", S(92, 2), S(0, 2), KA["ws"])
    k.op("s_load_dwordx2", S(86, 2), S(0, 2), KA["wo"])
    k.op("s_load_dwordx2", S(96, 2), S(0, 2), KA["w2"])
    k.op("v_and_b32", V(vL), 63, "v0")
    k.op("v_lshrrev_b32", V(13), 6, "v0")
    k.op("s_and_b32", S(sT0), "s2", 7)
    k.op("v_readfirstlane_b32", S(sW), V(13))
    k.op("s_lshr_b32", S(sT1), "s2", 3)
    k.op("s_and_b32", S(sT2), S(sT1), 3)
    k.op("s_lshl_b32", S(sH), S(sT0), 2)
    k.op("s_add_u32", S(sH), S(sH), S(sT2))
    k.op("s_lshr_b32", S(sP), S(sT1), 2)
    k.op("v_lshlrev_b32", V(vL16), 4, V(vL))
    k.op("s_lshl_b32", S(sW4k), S(sW), 12)
    k.op("v_add_u32", V(vD), S(sW4k), V(vL16))
    g, l15, p8, l3, r_, cc, g1, t7 = 22, 23, 24, 25, 26, 27, 28, 29
    k.op("v_lshrrev_b32", V(g), 4, V(vL))
    k.op("v_and_b32", V(l15), 15, V(vL))
    k.op("v_and_b32", V(p8), 7, V(vL))
    k.op("v_lshrrev_b32", V(l3), 3, V(vL))
    k.op("v_bfe_u32", V(r_), V(vL), 2, 2)
    k.op("v_and_b32", V(cc), 3, V(vL))
    k.op("v_and_b32", V(g1), 1, V(g))
    k.op("v_lshlrev_b32", V(t7), 1, V(g))
    k.op("v_xor_b32", V(t7), V(t7), V(l15))
    k.op("v_lshlrev_b32", V(t7), 4, V(t7))
    k.op("v_lshl_add_u32", V(t7), V(g), 13, V(t7))
    k.op("s_lshl_b32", S(sT0), S(sW), 17)
    k.op("s_lshl_b32", S(sT1), S(sH), 8)
    k.op("s_add_u32", S(sT0), S(sT0), S(sT1))
    k.op("v_add_u32", V(VW), S(sT0), V(t7))
    k.op("v_add_u32", V(VW + 1), 32768 - 1024, V(VW))
    k.op("v_xor_b32", V(VW + 2), 128, V(VW))
    k.op("v_add_u32", V(VW + 2), 2 * (32768 - 1024), V(VW + 2))
    k.op("v_add_u32", V(VW + 3), 32768 - 1024, V(VW + 2))
    k.op("v_lshlrev_b32", V(t7), 1, V(g1))
    k.op("v_xor_b32", V(t7), V(t7), V(p8))
    k.op("v_lshlrev_b32", V(t7), 4, V(t7))
    k.op("v_mul_u32_u24", V(30), 2752, V(l3))
    k.op("s_mul_i32", S(sT0), S(sW), 32 * 2752)
    k.op("s_mul_i32", S(sT1), S(sH), 96)
    k.op("s_add_u32", S(sT0), S(sT0), S(sT1))
    k.op("v_add_u32", V(30), S(sT0), V(30))
    k.op("v_add_u32", V(VW1), V(30), V(t7))
    k.op("v_xor_b32", V(t7), 64, V(t7))
    k.op("v_add_u32", V(VW1 + 1), V(30), V(t7))
    k.op("v_add_u32", V(VW1 + 1), 8 * 2752 - 1024, V(VW1 + 1))
    k.op("v_add_u32", V(VW1 + 2), 2 * (8 * 2752 - 1024), V(VW1))
    k.op("v_add_u32", V(VW1 + 3), 2 * (8 * 2752 - 1024), V(VW1 + 1))
    k.op("s_lshl_b32", S(sT0), S(sP), 7)
    k.op("s_lshl_b32", S(sT1), S(sW), 5)
    k.op("s_add_u32", S(sXa), S(sT0), S(sT1))
    k.op("s_sub_u32", S(sXb), 1920, S(sT0))
    k.op("s_add_u32", S(sXb), S(sXb), S(sT1))
    k.op("s_lshl_b32", S(sT2), S(sH), 12)
    k.op("s_add_u32", S(sT2), S(sT2), CTX_OFF)
    k.op("s_lshl_b32", S(sCa), S(sXa), 13)
    k.op("s_add_u32", S(sCa), S(sCa), S(sT2))
    k.op("s_lshl_b32", S(sCb), S(sXb), 13)
    k.op("s_add_u32", S(sCb), S(sCb), S(sT2))
    sRa, sRb = 94, 95
    k.op("s_mov_b32", S(sRa), S(sXa)); k.op("s_mov_b32", S(sRb), S(sXb))
    sHr = 56
    for rb in range(4):
        k.op("s_lshr_b32", S(sHr + rb), S(sRa if rb < 2 else sRb), 4)
        k.op("s_add_u32", S(sHr + rb), S(sHr + rb), rb & 1)
        k.op("s_mul_i32", S(sHr + rb), S(sHr + rb), 43 * 1024)
    k.op("s_lshl_b32", S(sXa), S(sXa), 10)
    k.op("s_lshl_b32", S(sXb), S(sXb), 10)
    k.op("s_lshr_b32", S(sT1), S(sW), 1)
    k.op("s_lshl_b32", S(sT0), S(sP), 1)
    k.op("s_add_u32", S(sNa), S(sT0), S(sT1))
    k.op("s_add_u32", S(sNa), S(sNa), 1)
    k.op("s_sub_u32", S(sNb), 31, S(sT0))
    k.op("s_add_u32", S(sNb), S(sNb), S(sT1))
    k.wait(lgkm=0)
    stp.stamp()
    load_srd(k, sWQ, "wq", 84); load_srd(k, sW1, "w1", 88); load_srd(k, sWS, "ws", 92)

    pages = {}
    order = []
    for j in range(4):
        order += [("W1", j), ("WQ", 2 * j), ("WQ", 2 * j + 1)]
    for i, p in enumerate(order): pages[p] = i
    for t in range(6): pages[("K", t)] = 12 + 2 * t; pages[("V", t)] = 15 + 2 * t
    def slot(p): return (pages[p] % 10) * 16384
    def dma_items(p):
        kind, j = p
        def setup():
            k.op("s_add_u32", "m0", S(sW4k), slot(p))
            k.op("s_mov_b32", S(sSo), {"W1": j * 128 * 2752, "WQ": j * 524288, "K": j * 16384, "V": (j + 1) * 16384}[kind])
        def ld(i):
            def f():
                if kind == "WQ": k.op("buffer_load_dwordx4", V(VW + i), S(sWQ, 4), S(sSo), mods=f"offen offset:{i*1024} lds")
                elif kind == "W1": k.op("buffer_load_dwordx4", V(VW1 + i), S(sW1, 4), S(sSo), mods=f"offen offset:{i*1024} lds")
                else: k.op("buffer_load_dwordx4", V(vD), S(sK if kind == "K" else sV, 4), S(sSo), mods=f"offen offset:{i*1024} lds")
                vq.issue(p)
            return f
        return [setup] + [ld(i) for i in range(4)]
    def xn_load(ks, rb):
        def f():
            r = XR + ((ks % 12) * 4 + rb) * 4
            k.op("s_add_u32", S(sLd), S(sXa if rb < 2 else sXb), (rb & 1) * 16384 + (ks >> 2) * 4096)
            k.op("buffer_load_dwordx4", A(r, 4), V(vL16), S(sWS, 4), S(sLd), mods=f"offen offset:{(ks&3)*1024}")
            vq.issue(("x", ks))
        return f
    for p in (("W1", 0), ("WQ", 0)):
        for f in dma_items(p): f()
    for ks in range(2):
        for rb in range(4): xn_load(ks, rb)()
    for f in dma_items(("WQ", 1)): f()
    for ks in range(2, 4):
        for rb in range(4): xn_load(ks, rb)()
    load_srd(k, sB1, "b1", 90)
    k.op("s_lshl_b32", S(sT0), S(sH), 19)
    k.op("s_add_u32", S(sT1), S(sT0), KF_OFF)
    k.op("s_add_u32", S(sK), S(92), S(sT1))
    k.op("s_addc_u32", S(sK + 1), S(93), 0)
    k.op("s_and_b32", S(sK + 1), S(sK + 1), "0xffff")
    k.op("s_lshl_b32", S(sT2), S(sP), 15)
    k.op("s_sub_u32", S(sK + 2), 32 * 16384, S(sT2))
    k.op("s_mov_b32", S(sK + 3), "0x20000")
    k.op("s_add_u32", S(sT1), S(sT0), VF_OFF - 16384)
    k.op("s_add_u32", S(sV), S(92), S(sT1))
    k.op("s_addc_u32", S(sV + 1), S(93), 0)
    k.op("s_and_b32", S(sV + 1), S(sV + 1), "0xffff")
    k.op("s_add_u32", S(sV + 2), S(sK + 2), 16384)
    k.op("s_mov_b32", S(sV + 3), "0x20000")
    k.op("v_lshl_or_b32", V(30), V(g1), 2, V(r_))
    k.op("v_lshl_add_u32", V(31), V(g), 3, V(r_))
    k.op("v_lshlrev_b32", V(t7), 8, V(31))
    k.op("v_lshl_add_u32", V(t7), V(cc), 3, V(t7))
    for nb in range(8):
        k.op("v_xor_b32", V(13), nb, V(30))
        k.op("v_lshl_add_u32", V(TA + nb), V(13), 5, V(t7))
    k.op("v_lshrrev_b32", V(13), 1, V(r_))
    k.op("v_lshl_or_b32", V(30), V(g1), 1, V(13))
    k.op("v_lshlrev_b32", V(t7), 7, V(31))
    k.op("v_lshl_add_u32", V(t7), V(cc), 3, V(t7))
    for nb in range(3):
        k.op("v_xor_b32", V(13), nb, V(30))
        k.op("v_lshl_add_u32", V(TB + nb), V(13), 5, V(t7))
    for i in range(4): k.op("v_mov_b32", V(ONES + i), "0x3f803f80")
    ST = 120
    B1 = [92, 94, 30]
    k.op("v_lshlrev_b32", V(13), 3, V(l15))
    for rb in range(4):
        k.op("s_lshl_b32", S(sT0), S(sRa if rb < 2 else sRb), 3)
        k.op("s_add_u32", S(sT0), S(sT0), STAT_OFF + (rb & 1) * 128)
        k.op("buffer_load_dwordx2", V(ST + 2 * rb, 2), V(13), S(sWS, 4), S(sT0), mods="offen"); vq.issue("st")
    k.op("v_lshlrev_b32", V(14), 3, V(g))
    k.op("s_mul_i32", S(sT1), S(sH), 96)
    for nb in range(3):
        k.op("buffer_load_dwordx2", V(B1[nb], 2), V(14), S(sB1, 4), S(sT1), mods=f"offen offset:{nb*32}"); vq.issue("st")
    win = {"TA": 0, "TB": 0}
    def set_window(name, base, n, off):
        w = off // 65536
        if win[name] != w:
            d = (w - win[name]) * 65536
            for i in range(n): k.op("v_add_u32", V(base + i), hex(d & 0xffffffff), V(base + i))
            win[name] = w
        return off - w * 65536
    frs = []
    for ks in range(16):
        for nb in range(3): frs.append(("W1", ks, nb))
        for nb in range(8): frs.append(("WQ", ks, nb))
    NF = len(frs)
    q1 = FillQ(k)
    plan = {0: [("W1", 1), ("WQ", 2)], 1: [("WQ", 3)], 2: [("W1", 2), ("WQ", 4)], 3: [("WQ", 5)], 4: [("W1", 3), ("WQ", 6)],
            5: [("WQ", 7)], 6: [("K", 0), ("K", 1)], 7: [("V", 0), ("K", 2)]}
    def stage_switch(s):
        need = [("WQ", s)] + ([("W1", s // 2)] if s % 2 == 0 else [])
        vq.need(*need, cnt=[4] * len(need))
        k.op("s_barrier")
        q1.flush()
        for ks in (2 * s + 4, 2 * s + 5):
            if ks < 16:
                for rb in range(4): q1.add(xn_load(ks, rb))
        for p in plan[s]:
            for f in dma_items(p): q1.add(f)
    def read_frag(n, which):
        kind, ks, nb = frs[n]
        if n % 22 == 0 and which == 0: stage_switch(n // 22)
        r = FR + (n % 16) * 4
        if kind == "WQ":
            off = slot(("WQ", ks // 2)) + (ks & 1) * 8192 + which * 1024
            off = set_window("TA", TA, 8, slot(("WQ", ks // 2))) + (ks & 1) * 8192 + which * 1024
            k.op("ds_read_b64_tr_b16", A(r + 2 * which, 2), V(TA + nb), mods=f"offset:{off}")
        else:
            off = set_window("TB", TB, 3, slot(("W1", ks // 4))) + (ks & 3) * 4096 + which * 512
            k.op("ds_read_b64_tr_b16", A(r + 2 * which, 2), V(TB + nb), mods=f"offset:{off}")
        lq.issue(("w", n))
    def qacc(nb, rb): return SR + 4 * (nb * 4 + rb)
    def macc(nb, rb): return MACC + 4 * (nb * 4 + rb)
    for n in range(D):
        read_frag(n, 0); read_frag(n, 1)
    stp.stamp()
    for n in range(NF):
        kind, ks, nb = frs[n]
        if n % 11 == 0: vq.need(("x", ks), cnt=[4])
        lq.need(("w", n), cnt=[2])
        wf = A(FR + (n % 16) * 4, 4)
        first = ks == 0
        ms = []
        for rb in range(4):
            d = V(qacc(nb, rb) if kind == "WQ" else macc(nb, rb), 4)
            ms.append((d, A(XR + ((ks % 12) * 4 + rb) * 4, 4)))
        if kind == "W1": ms.append((V(MACC + 48 + 4 * nb, 4), V(ONES, 4)))
        for c, (d, b) in enumerate(ms):
            k.op("v_mfma_f32_16x16x32_bf16", d, wf, b, "0" if first else d)
            if c < 2 and n + D < NF: read_frag(n + D, c)
            else: q1.emit(2 if len(q1) > 12 else 1)
    q1.flush()
    stp.stamp()
    vq.need(("K", 0), cnt=[4])
    k.op("s_barrier")
    for p in (("V", 1), ("K", 3), ("V", 2)):
        for f in dma_items(p): f()
    k.op("v_lshlrev_b32", V(15), 4, V(vL))
    C1, C2 = -2 * LOG2E * 0.7978845608028654, -2 * LOG2E * 0.7978845608028654 * 0.044715
    k.op("v_mov_b32", V(16), f32(C1)); k.op("v_mov_b32", V(17), f32(C2))
    k.op("v_mov_b32", V(18), "1.0"); k.op("v_mov_b32", V(19), "1.0")
    def P(r): return V(r, 2)
    bb, t = 96, 100
    for nb in range(3):
        k.op("v_lshlrev_b32", V(bb), 16, V(B1[nb]))
        k.op("v_and_b32", V(bb + 1), "0xffff0000", V(B1[nb]))
        k.op("v_lshlrev_b32", V(bb + 2), 16, V(B1[nb] + 1))
        k.op("v_and_b32", V(bb + 3), "0xffff0000", V(B1[nb] + 1))
        cs = MACC + 48 + 4 * nb
        k.op("s_mul_i32", S(sT1), S(sH), 3)
        k.op("s_add_u32", S(sT1), S(sT1), nb)
        k.op("s_lshr_b32", S(sT2), S(sT1), 1)
        k.op("s_lshl_b32", S(sT2), S(sT2), 10)
        k.op("s_and_b32", S(sT0), S(sT1), 1)
        k.op("s_lshl_b32", S(sT0), S(sT0), 3)
        k.op("s_add_u32", S(sT2), S(sT2), S(sT0))
        k.op("s_add_u32", S(sT2), S(sT2), HF_OFF)
        lab = k.newlabel("skiph")
        k.op("s_cmp_ge_u32", S(sT1), 86)
        k.op("s_cbranch_scc1", lab)
        for rp in range(2):
            rbs = (2 * rp, 2 * rp + 1)
            def each(fn):
                for j, rb in enumerate(rbs):
                    for i in (0, 2): fn(macc(nb, rb) + i, t + 4 * j + i, ST + 2 * rb, i)
            each(lambda a, tt, st, i: k.op("v_pk_fma_f32", P(a), P(cs + i), P(st), P(a), mods="op_sel_hi:[1,0,1] neg_lo:[1,0,0] neg_hi:[1,0,0]"))
            each(lambda a, tt, st, i: k.op("v_pk_fma_f32", P(a), P(a), P(st), P(bb + i), mods="op_sel:[0,1,0]"))
            each(lambda a, tt, st, i: k.op("v_pk_mul_f32", P(tt), P(a), P(a)))
            each(lambda a, tt, st, i: k.op("v_pk_fma_f32", P(tt), P(tt), P(16), P(16), mods="op_sel:[0,1,0] op_sel_hi:[1,1,0]"))
            each(lambda a, tt, st, i: k.op("v_pk_mul_f32", P(tt), P(tt), P(a)))
            for i in range(8): k.op("v_exp_f32", V(t + i), V(t + i))
            each(lambda a, tt, st, i: k.op("v_pk_add_f32", P(tt), P(tt), P(18)))
            for i in range(8): k.op("v_rcp_f32", V(t + i), V(t + i))
            each(lambda a, tt, st, i: k.op("v_pk_mul_f32", P(a), P(a), P(tt)))
            for rb in rbs:
                a = macc(nb, rb)
                k.op("v_cvt_pk_bf16_f32", V(a), V(a), V(a + 1))
                k.op("v_cvt_pk_bf16_f32", V(a + 1), V(a + 2), V(a + 3))
                k.op("s_add_u32", S(sT0), S(sHr + rb), S(sT2))
                k.op("buffer_store_dwordx2", V(a, 2), V(15), S(sWS, 4), S(sT0), mods="offen" + (" sc1" if fuse3 else ""))
        k.label(lab)
    k.op("v_mov_b32", V(16), f32(QSCALE)); k.op("v_mov_b32", V(17), f32(QSCALE))
    for sub in range(2):
        for pi in range(4):
            X = [QR + sub * 32 + (2 * pi + u) * 4 for u in range(2)]
            for c in range(2):
                for half in range(2):
                    a = qacc(2 * pi + half, sub * 2 + c)
                    for i in (0, 2): k.op("v_pk_mul_f32", P(a + i), P(a + i), P(16))
                    k.op("v_cvt_pk_bf16_f32", V(X[c] + 2 * half), V(a), V(a + 1))
                    k.op("v_cvt_pk_bf16_f32", V(X[c] + 2 * half + 1), V(a + 2), V(a + 3))
            k.nop(1)
            for i in range(4): k.op("v_permlane16_swap_b32", V(X[0] + i), V(X[1] + i))
    stp.stamp()
    k.op("v_and_b32", V(13), 31, V(vL))
    k.op("v_lshrrev_b32", V(14), 5, V(vL))
    k.op("s_and_b32", S(sT0), S(sW), 1)
    k.op("s_lshl_b32", S(sT0), S(sT0), 5)
    k.op("v_add_u32", V(vZ), S(sT0), V(13))
    k.op("v_lshlrev_b32", V(15), 2, V(14))
    k.op("v_sub_u32", V(vZ), V(vZ), V(15))
    k.op("v_mov_b32", V(vNinf), f32(-1e30))
    k.op("v_lshrrev_b32", V(15), 4, V(13))
    k.op("v_lshlrev_b32", V(vCo), 17, V(15))
    k.op("v_lshl_add_u32", V(vCo), V(14), 8, V(vCo))
    k.op("v_and_b32", V(15), 15, V(vL))
    k.op("v_lshl_add_u32", V(vCo), V(15), 4, V(vCo))
    k.op("s_mov_b32", S(sThr), f32(thr))
    k.op("s_mov_b32", S(sP2), 0)
    k.op("s_mov_b32", S(sNx), 98304)
    k.op("s_mov_b32", S(sTK), 4 * 16384)
    k.op("s_mov_b32", S(sT), 2)

    def mfma32(d, a, b, c): k.op("v_mfma_f32_32x32x16_bf16", d, a, b, c)
    def mask_block(sub, par):
        s0 = Sreg(sub, par)
        for e0 in range(0, 32, 2):
            for u in range(2):
                e = e0 + u; kb, r = e >> 4, e & 15
                c = 32 * kb + 16 * ((r >> 2) & 1) + 8 * (r >> 3) + (r & 3)
                k.op("v_cmp_gt_i32", S(sM + 2 * u, 2), c, V(vZ))
            k.nop(1)
            for u in range(2):
                k.op("v_cndmask_b32", V(s0 + e0 + u), V(s0 + e0 + u), V(vNinf), S(sM + 2 * u, 2))
    def soft_slot(sub, par, n):
        s0 = Sreg(sub, par); l = vLs[sub]
        o = []
        if n < 32: o.append(lambda: k.op("v_exp_f32", V(s0 + n), V(s0 + n)))
        if n >= 1: o.append(lambda: k.op("v_add_f32", V(l), V(l), V(s0 + n - 1)))
        if n >= 2 and n % 2 == 0:
            j = (n - 2) // 2
            d = 8 * (j >> 2) + (j & 3)
            o.append(lambda: k.op("v_cvt_pk_bf16_f32", V(s0 + d), V(s0 + 2 * j), V(s0 + 2 * j + 1)))
        return o
    def rd(frag, isV):
        k.op("ds_read_b128", A(FR + frag * 4, 4), V(vA), mods=f"offset:{(16384 if isV else 0) + frag*1024}")
    def ldK(i): return lambda: k.op("buffer_load_dwordx4", V(vD), S(sK, 4), S(sTK), mods=f"offen offset:{i*1024} lds")
    def ldV(i): return lambda: k.op("buffer_load_dwordx4", V(vD), S(sV, 4), S(sTK), mods=f"offen offset:{i*1024} lds")
    m0K = lambda: k.op("s_add_u32", "m0", S(sP2), S(sW4k))
    m0V = lambda: k.op("s_add_u32", "m0", "m0", 16384)
    advT = lambda: k.op("s_add_u32", S(sTK), S(sTK), 16384)
    advP = lambda: k.op("s_add_u32", S(sP2), S(sP2), 32768)
    wrapP = lambda: (k.op("s_cmp_eq_u32", S(sP2), 163840), k.op("s_cselect_b32", S(sP2), 0, S(sP2)))
    XA = {1: [ldK(2)], 5: [ldK(3)], 7: [m0V], 9: [ldV(0)], 13: [ldV(1)]}
    XB = {1: [ldV(2)], 5: [ldV(3)], 6: [advT], 7: [advP], 9: [wrapP], 10: [m0K], 11: [ldK(0)], 15: [ldK(1)]}
    WP = 4
    def phaseA(par, qk, ex):
        if not qk:
            k.wait(lgkm=0)
            for f in range(DA): rd(f, True)
            for n in range(16, 32):
                for sub in ex:
                    for fn in soft_slot(sub, par, n): fn()
            return
        for f in range(16):
            kb, s = f >> 3, f & 7
            if f % WP == 0: k.wait(lgkm=DA - WP)
            for j, sub in enumerate(qk):
                d = V(Sreg(sub, 1 - par) + 16 * kb, 16)
                mfma32(d, A(FR + f * 4, 4), V(QR + sub * 32 + s * 4, 4), V(NEGM + 16 * sub, 16) if s == 0 else d)
                if j == 0:
                    nf = f + DA
                    if nf < 16: rd(nf, False)
                    else: rd(nf - 16, True)
                for xs in (ex if len(qk) == 1 else [sub]):
                    for fn in soft_slot(xs, par, 16 + f): fn()
                if j == len(qk) - 1:
                    for fn in XA.get(f, []): fn()
    def phaseB(par, pv, exn, bar="always", tailops=()):
        extra = list(tailops)
        for f in range(16):
            kg, db = f >> 2, f & 3
            if f % WP == 0: k.wait(lgkm=DA - WP if bar == "always" else max(0, min(DA - WP, 16 - f - WP)))
            for j, sub in enumerate(pv):
                d = A(OA + sub * 64 + 16 * db, 16)
                mfma32(d, A(FR + f * 4, 4), V(Sreg(sub, par) + 8 * kg, 4), d)
                if j == 0:
                    nf = f + DA
                    if nf == 16:
                        if bar == "always":
                            k.wait(vm=16); k.op("s_barrier")
                        elif bar == "w01":
                            lab = k.newlabel("nobar")
                            k.op("s_cmp_ge_u32", S(sW), 2); k.op("s_cbranch_scc1", lab)
                            k.wait(vm=8); k.op("s_barrier")
                            k.label(lab)
                        k.op("v_add_u32", V(vA), S(sNx), V(vL16))
                    if bar == "always" or nf < 16:
                        if nf < 16: rd(nf, True)
                        else: rd(nf - 16, False)
                if f == 0:
                    for fn in soft_slot(sub, par, 32): fn()
                if sub in exn:
                    for fn in soft_slot(sub, 1 - par, f): fn()
                if j == len(pv) - 1 and bar == "always":
                    for fn in XB.get(f, []): fn()
                    if f in (12, 13, 14) and extra: extra.pop(0)()
        for fn in extra: fn()
    def nx_items():
        return [lambda: k.op("s_add_u32", S(sNx), S(sNx), 32768),
                lambda: (k.op("s_cmp_eq_u32", S(sNx), 163840), k.op("s_cselect_b32", S(sNx), 0, S(sNx))),
                lambda: k.op("s_add_u32", S(sT), S(sT), 1)]
    def rowmax(sub, par, dst):
        s0 = Sreg(sub, par)
        k.op("v_max3_f32", V(dst), V(s0), V(s0 + 1), V(s0 + 2))
        for e in range(3, 31, 2): k.op("v_max3_f32", V(dst), V(dst), V(s0 + e), V(s0 + e + 1))
        k.op("v_max_f32", V(dst), V(dst), V(s0 + 31))
        k.op("v_mov_b32", V(vT + 1), V(dst))
        k.nop(2)
        k.op("v_permlane32_swap_b32", V(dst), V(vT + 1))
        k.op("v_max_f32", V(dst), V(dst), V(vT + 1))
    def epilogue(sub, site):
        t = Sreg(sub, 0)
        k.op("v_cmp_nle_f32", "vcc", V(vLs[sub]), V(21))
        k.op("s_mov_b32", S(sRet), site)
        k.op("s_cbranch_vccnz", f"k2_slow_{sub}")
        lab = f"k2_ret_{sub}_{site}"
        k.label(lab)
        slow_sites.setdefault(sub, []).append((site, lab))
        k.op("v_mov_b32", V(vT + 1), V(vLs[sub]))
        k.nop(2)
        k.op("v_permlane32_swap_b32", V(vLs[sub]), V(vT + 1))
        k.op("v_add_f32", V(vLs[sub]), V(vLs[sub]), V(vT + 1))
        k.op("v_rcp_f32", V(vT + 3), V(vLs[sub]))
        k.nop(6)
        for db in range(4):
            for half in range(2):
                b = t + db * 16 + half * 8
                for i in range(8): k.op("v_accvgpr_read_b32", V(b + i), A(OA + sub * 64 + db * 16 + half * 8 + i))
                for i in range(0, 8, 2): k.op("v_pk_mul_f32", P(b + i), P(b + i), P(vT + 3), mods="op_sel_hi:[1,0]")
                for i in range(4): k.op("v_cvt_pk_bf16_f32", V(b + i), V(b + 2 * i), V(b + 2 * i + 1))
                k.op("buffer_store_dwordx4", V(b, 4), V(vCo), S(sWS, 4), S(sCa if sub == 0 else sCb),
                     mods=f"offen offset:{db*1024 + half*512}" + (" sc1" if fuse3 else ""))
    slow_sites = {}
    k.op("v_mov_b32", V(21), S(sThr))
    k.op("v_add_u32", V(vT), 32768, V(vL16))
    for f in range(16): k.op("ds_read_b128", A(f * 4, 4), V(vT), mods=f"offset:{f*1024}")
    zi = 0
    for f in range(16):
        kb, s = f >> 3, f & 7
        k.wait(lgkm=15 - f)
        for sub in range(2):
            d = V(Sreg(sub, 0) + 16 * kb, 16)
            mfma32(d, A(f * 4, 4), V(QR + sub * 32 + s * 4, 4), "0" if s == 0 else d)
            for _ in range(4):
                k.op("v_accvgpr_write_b32", A(OA + zi), 0); zi += 1
    k.wait(vm=12)
    k.op("s_barrier")
    m0K()
    k.op("v_add_u32", V(vA), 65536, V(vL16))
    ldK(0)(); ldK(1)()
    for f in range(DA): rd(f, False)
    k.nop(4)
    lab = k.newlabel("nomask0")
    k.op("s_cmp_lg_u32", S(sNa), 1); k.op("s_cbranch_scc1", lab)
    mask_block(0, 0)
    k.label(lab)
    for sub in range(2):
        rowmax(sub, 0, vMx[sub])
        k.op("v_mov_b32", V(vLs[sub]), 0)
        k.op("v_sub_f32", V(NEGM + 16 * sub), 0, V(vMx[sub]))
        k.op("v_sub_f32", V(NEGM + 16 * sub + 1), 0, V(vMx[sub]))
        for i in range(2, 16, 2): k.op("v_pk_mov_b32", P(NEGM + 16 * sub + i), P(NEGM + 16 * sub), P(NEGM + 16 * sub), mods="op_sel:[0,1]")
        for e in range(0, 32, 2): k.op("v_pk_add_f32", P(Sreg(sub, 0) + e), P(Sreg(sub, 0) + e), P(NEGM + 16 * sub))
    for n in range(16):
        for sub in range(2):
            for fn in soft_slot(sub, 0, n): fn()
    stp.stamp()
    k.op("s_cmp_lt_u32", 1, S(sNa))
    k.op("s_cbranch_scc0", "k2_DL0")
    def pf_k3():
        sp = sWQ
        k.op("s_and_b32", S(sT0), "s2", 7)
        k.op("s_lshr_b32", S(sT0), S(sT0), 1)
        k.op("s_mul_i32", S(sT1), S(sT0), 43 * 32768)
        k.op("s_cmp_lt_u32", S(sT0), 3)
        k.op("s_cselect_b32", S(sp), S(86), S(96))
        k.op("s_cselect_b32", S(sp + 1), S(87), S(97))
        k.op("s_mov_b32", S(sp + 2), hex(SZ["w2"]))
        k.op("s_cselect_b32", S(sp + 2), hex(SZ["wo"]), S(sp + 2))
        k.op("s_cselect_b32", S(sT1), S(sT1), 0)
        k.op("s_and_b32", S(sp + 1), S(sp + 1), "0xffff")
        k.op("s_mov_b32", S(sp + 3), "0x20000")
        k.op("s_lshr_b32", S(sT2), "s2", 3)
        k.op("s_lshl_b32", S(sT2), S(sT2), 2)
        k.op("s_add_u32", S(sT2), S(sT2), S(sW))
        k.op("s_mul_i32", S(sT0), S(sT2), 11264)
        k.op("s_add_u32", S(sT1), S(sT1), S(sT0))
        k.op("v_lshlrev_b32", V(vT), 7, V(vL))
        k.op("buffer_load_dword", V(130), V(vT), S(sp, 4), S(sT1), mods="offen", dummy=True)
        k.op("v_and_b32", V(vT + 2), 31, V(vL))
        k.op("v_lshlrev_b32", V(vT + 2), 7, V(vT + 2))
        k.op("s_add_u32", S(sT1), S(sT1), 8192)
        k.op("buffer_load_dword", V(130), V(vT + 2), S(sp, 4), S(sT1), mods="offen", dummy=True)
        k.op("s_lshl_b32", S(sT2), S(sT2), 13)
        pf_code(k, sW1, "k3_kernel", "k3_end-k3_kernel", vT, vL, sT2, 130)
    def maskif(sub, par):
        lab = k.newlabel("nomask")
        k.op("s_cmp_lg_u32", S(sT), S(sNa if sub == 0 else sNb)); k.op("s_cbranch_scc1", lab)
        k.nop(12)
        mask_block(sub, par)
        k.label(lab)
    for par in range(2):
        k.label(f"k2_DD{par}")
        phaseA(par, [0, 1], [0, 1])
        maskif(0, 1 - par)
        phaseB(par, [0, 1], [0, 1], tailops=nx_items())
        k.op("s_cmp_le_u32", S(sT), S(sNa))
        k.op("s_cbranch_scc0", f"k2_DL{1-par}")
        if par == 1: k.op("s_branch", "k2_DD0")
    for par in range(2):
        k.label(f"k2_DL{par}")
        phaseA(par, [1], [0, 1])
        phaseB(par, [0, 1], [1], tailops=nx_items())
        epilogue(0, par)
        k.op("s_branch", f"k2_SS{1-par}")
    for par in range(2):
        k.label(f"k2_SS{par}")
        phaseA(par, [1], [1])
        maskif(1, 1 - par)
        phaseB(par, [1], [1], tailops=nx_items())
        k.op("s_cmp_le_u32", S(sT), S(sNb))
        k.op("s_cbranch_scc0", f"k2_SL{1-par}")
        if par == 1: k.op("s_branch", "k2_SS0")
    for par in range(2):
        k.label(f"k2_SL{par}")
        if pf3: pf_k3()
        phaseA(par, [], [1])
        k.nop(2)
        phaseB(par, [1], [], bar="w01")
        if par == 0: k.op("s_branch", "k2_fin")
    k.label("k2_fin")
    stp.stamp()
    epilogue(1, 0)
    if stamps:
        k.wait(vm=0, lgkm=0)
        stp.stamp()
        stp.flush(sWS, sW, 13)
    if fuse3:
        k.wait(vm=0, lgkm=0)
        k.op("s_barrier")
        lab = k.newlabel("noflag")
        k.op("s_cmp_lg_u32", S(sW), 0); k.op("s_cbranch_scc1", lab)
        k.op("s_lshl_b32", S(sT0), S(sP), 8)
        k.op("s_lshl_b32", S(sT1), S(sH), 2)
        k.op("s_add_u32", S(sT0), S(sT0), S(sT1))
        k.op("s_add_u32", S(sT0), S(sT0), FLAG2_OFF)
        k.op("v_mov_b32", V(vT), 0)
        k.op("v_mov_b32", V(vT + 1), 1)
        k.op("s_mov_b64", "exec", 1)
        k.op("buffer_store_dword", V(vT + 1), V(vT), S(sWS, 4), S(sT0), mods="offen sc1")
        k.op("s_mov_b64", "exec", -1)
        k.label(lab)
        k.raw("  s_branch k3_kernel")
    k.op("s_endpgm")
    sU, sUo = 60, 61
    for sub, sites in sorted(slow_sites.items()):
        s0 = Sreg(sub, 0)
        m, l = vMx[sub], vLs[sub]
        k.label(f"k2_slow_{sub}")
        k.nop(12)
        for i in range(64): k.op("v_accvgpr_write_b32", A(OA + sub * 64 + i), 0)
        k.op("v_mov_b32", V(m), f32(-1e30))
        k.op("v_mov_b32", V(l), 0)
        k.op("s_mov_b32", S(sU), 1)
        k.op("s_mov_b32", S(sUo), 0)
        loop = f"k2_slowloop_{sub}"
        k.label(loop)
        for c in range(4):
            k.op("s_add_u32", S(sLd), S(sUo), c * 4096)
            for i in range(4): k.op("buffer_load_dwordx4", A((c * 4 + i) * 4, 4), V(vL16), S(sK, 4), S(sLd), mods=f"offen offset:{i*1024}")
        k.wait(vm=0)
        for f in range(16):
            kb, s = f >> 3, f & 7
            d = V(s0 + 16 * kb, 16)
            mfma32(d, A(f * 4, 4), V(QR + sub * 32 + s * 4, 4), "0" if s == 0 else d)
        for c in range(4):
            k.op("s_add_u32", S(sLd), S(sUo), c * 4096 + 16384)
            for i in range(4): k.op("buffer_load_dwordx4", A((c * 4 + i) * 4, 4), V(vL16), S(sV, 4), S(sLd), mods=f"offen offset:{i*1024}")
        lab = k.newlabel("snomask")
        k.op("s_cmp_lg_u32", S(sU), S(sNa if sub == 0 else sNb)); k.op("s_cbranch_scc1", lab)
        mask_block(sub, 0)
        k.label(lab)
        rowmax(sub, 0, vT + 3)
        k.op("v_max_f32", V(vT + 3), V(vT + 3), V(m))
        k.op("v_sub_f32", V(vT + 5), V(m), V(vT + 3))
        k.op("v_mov_b32", V(m), V(vT + 3))
        k.op("v_exp_f32", V(vT + 5), V(vT + 5))
        for e in range(32): k.op("v_sub_f32", V(s0 + e), V(s0 + e), V(m))
        k.op("v_mul_f32", V(l), V(l), V(vT + 5))
        for i in range(64):
            k.op("v_accvgpr_read_b32", V(vT + (i & 1)), A(OA + sub * 64 + i))
            k.op("v_mul_f32", V(vT + (i & 1)), V(vT + (i & 1)), V(vT + 5))
            k.op("v_accvgpr_write_b32", A(OA + sub * 64 + i), V(vT + (i & 1)))
        for n in range(33):
            if n == 32: k.nop(1)
            for fn in soft_slot(sub, 0, n): fn()
        k.wait(vm=0)
        k.nop(1)
        for f in range(16):
            kg, db = f >> 2, f & 3
            d = A(OA + sub * 64 + 16 * db, 16)
            mfma32(d, A(f * 4, 4), V(s0 + 8 * kg, 4), d)
        k.op("s_add_u32", S(sUo), S(sUo), 16384)
        k.op("s_add_u32", S(sU), S(sU), 1)
        k.nop(8)
        k.op("s_cmp_le_u32", S(sU), S(sNa if sub == 0 else sNb))
        k.op("s_cbranch_scc1", loop)
        for (site, lab) in sites[:-1]:
            k.op("s_cmp_eq_u32", S(sRet), site); k.op("s_cbranch_scc1", lab)
        k.op("s_branch", sites[-1][1])
    k.label("k2_end")
    k.op("s_endpgm")
    return k

if __name__ == "__main__":
    k = build_k2()
    for e in k.check_hazards(): print(e)
    for e in k.check_waits(): print(e)
    print(k.maxregs(), len(k.ins))
```

```python
from common import *
LDS = 163840
PART_OFF = 64 << 20
NKS = 43
def build_k3(stamps=False, WIN=0, NR=5, q2rate=2, nodma=False, nomma=False, fused=False):
    k = Kern("k3_kernel")
    vq, lq = Q(k, "vmcnt", 63), Q(k, "lgkmcnt", 15)
    stp = Stamps(k, stamps, 62, 2, lq, maxn=8)
    sWS, sWm, sX, sO, sB2, sDb = 8, 12, 16, 20, 24, 84
    sW, sMt, sNt, sT0, sT1, sT2 = 28, 29, 30, 31, 32, 33
    sAo, sS, sWo, sCnt, sMa, sMw = 34, 35, 36, 37, 38, 39
    sRot, sSt, sAc, sWc, sPw, sPr, sTile = 52, 53, 54, 55, 56, 57, 58
    vL, vL16 = 1, 2
    VA, VW = 4, 6
    TA = 8
    AA = 24
    g, l15, r_, cc, g1, t0, t1 = 26, 27, 28, 29, 30, 31, 3
    vOo = 32
    XV, BV = 34, 42
    ACC = 52
    AF = 116
    WF = 148
    k.op("s_cmp_ge_u32", "s2", 256)
    k.op("s_cbranch_scc1", "k3_end")
    k.op("s_load_dwordx2", S(40, 2), S(0, 2), KA["x"])
    k.op("s_load_dwordx2", S(42, 2), S(0, 2), KA["wo"])
    k.op("s_load_dwordx4", S(44, 4), S(0, 2), KA["w2"])
    k.op("s_load_dwordx4", S(48, 4), S(0, 2), KA["out"])
    k.op("s_load_dwordx2", S(88, 2), S(0, 2), KA["ws"])
    k.op("v_and_b32", V(vL), 63, "v0")
    k.op("v_lshrrev_b32", V(t0), 6, "v0")
    k.op("s_and_b32", S(sT0), "s2", 7)
    k.op("v_readfirstlane_b32", S(sW), V(t0))
    k.op("s_lshr_b32", S(sS), S(sT0), 1)
    k.op("s_and_b32", S(sT0), S(sT0), 1)
    k.op("s_lshr_b32", S(sT1), "s2", 3)
    k.op("s_and_b32", S(sT2), S(sT1), 7)
    k.op("s_lshl_b32", S(sMt), S(sT0), 3)
    k.op("s_add_u32", S(sMt), S(sMt), S(sT2))
    k.op("s_lshr_b32", S(sNt), S(sT1), 3)
    k.op("s_add_u32", S(sRot), S(sMt), S(sNt))
    k.op("s_and_b32", S(sRot), S(sRot), 3)
    k.op("s_lshl_b32", S(sTile), S(sMt), 2)
    k.op("s_add_u32", S(sTile), S(sTile), S(sNt))
    k.op("v_lshlrev_b32", V(vL16), 4, V(vL))
    k.op("v_lshrrev_b32", V(g), 4, V(vL))
    k.op("v_and_b32", V(l15), 15, V(vL))
    k.op("v_bfe_u32", V(r_), V(vL), 2, 2)
    k.op("v_and_b32", V(cc), 3, V(vL))
    k.op("v_and_b32", V(g1), 1, V(g))
    k.op("s_mul_i32", S(sWo), S(sS), NKS)
    k.op("s_mov_b32", S(sT0), 44032)
    k.op("s_mov_b32", S(sAo), HF_OFF)
    k.op("s_cmp_lt_u32", S(sS), 3)
    k.op("s_cselect_b32", S(sT0), 131072, S(sT0))
    k.op("s_cselect_b32", S(sAo), CTX_OFF, S(sAo))
    k.op("s_cselect_b32", S(sWo), S(sWo), 0)
    k.op("s_cselect_b64", "vcc", "-1", "0")
    k.op("s_cmp_eq_u32", S(sS), 2)
    k.op("s_cselect_b32", S(sCnt), 41, 42)
    k.op("s_lshl_b32", S(sT1), S(sWo), 10)
    k.op("s_add_u32", S(sAo), S(sAo), S(sT1))
    k.op("s_lshl_b32", S(sWo), S(sWo), 15)
    k.op("s_lshl_b32", S(sT2), S(sMt), 3)
    k.op("s_lshl_b32", S(sT1), S(sW), 1)
    k.op("s_add_u32", S(sT2), S(sT2), S(sT1))
    k.op("s_mul_i32", S(sT2), S(sT2), S(sT0))
    k.op("s_add_u32", S(sAo), S(sAo), S(sT2))
    k.op("v_mov_b32", V(VA), V(vL16))
    k.op("s_sub_u32", S(sT0), S(sT0), 1024)
    k.op("v_add_u32", V(VA + 1), S(sT0), V(vL16))
    k.op("v_lshlrev_b32", V(t0), 1, V(g))
    k.op("v_xor_b32", V(t0), V(t0), V(l15))
    k.op("v_lshlrev_b32", V(t0), 4, V(t0))
    k.op("v_lshl_add_u32", V(t0), V(g), 10, V(t0))
    k.op("s_lshl_b32", S(sT1), S(sNt), 8)
    k.op("s_lshl_b32", S(sT2), S(sW), 13)
    k.op("s_add_u32", S(sT1), S(sT1), S(sT2))
    k.op("v_add_u32", V(VW), S(sT1), V(t0))
    k.op("v_xor_b32", V(VW + 1), 128, V(VW))
    k.op("v_add_u32", V(VW + 1), 4096 - 1024, V(VW + 1))
    k.op("s_lshl_b32", S(sMa), S(sW), 11)
    k.op("s_add_u32", S(sMw), S(sMa), 8192)
    k.wait(lgkm=0)
    stp.stamp()
    k.op("s_mov_b32", S(sWS), S(88))
    k.op("s_and_b32", S(sWS + 1), S(89), "0xffff")
    k.op("s_mov_b32", S(sWS + 2), hex(80 << 20))
    k.op("s_mov_b32", S(sWS + 3), "0x20000")
    k.op("s_cmp_lt_u32", S(sS), 3)
    k.op("s_cselect_b32", S(sWm), S(42), S(44))
    k.op("s_cselect_b32", S(sWm + 1), S(43), S(45))
    k.op("s_mov_b32", S(sWm + 2), hex(SZ["w2"]))
    k.op("s_cselect_b32", S(sWm + 2), hex(SZ["wo"]), S(sWm + 2))
    k.op("s_and_b32", S(sWm + 1), S(sWm + 1), "0xffff")
    k.op("s_mov_b32", S(sWm + 3), "0x20000")
    NST = 22
    def nks_of(st): return 2 if st < 21 else 1
    def issue_items(st, part="both"):
        it = []
        sl = (st % NR) * 32768
        def addr():
            if st < 21:
                if WIN == 0:
                    skew_stage(k, sSt, sRot, st, 21, sWc)
                elif st < 20:
                    k.op("s_add_u32", S(sSt), S(sRot), st % WIN)
                    k.op("s_and_b32", S(sSt), S(sSt), WIN - 1)
                    k.op("s_add_u32", S(sSt), S(sSt), st // WIN * WIN)
                else:
                    k.op("s_mov_b32", S(sSt), 20)
                k.op("s_lshl_b32", S(sWc), S(sSt), 16)
                k.op("s_add_u32", S(sWc), S(sWc), S(sWo))
                k.op("s_lshl_b32", S(sAc), S(sSt), 11)
                k.op("s_add_u32", S(sAc), S(sAc), S(sAo))
            else:
                k.op("s_add_u32", S(sWc), S(sWo), st * 65536)
                k.op("s_lshl_b32", S(sAc), S(sCnt), 10)
                k.op("s_add_u32", S(sAc), S(sAc), S(sAo))
        it.append(addr)
        for u in range(nks_of(st)):
            if part != "a":
                it.append(lambda u=u: k.op("s_add_u32", "m0", S(sMw), sl + u * 16384))
                if u: it.append(lambda: k.op("s_add_u32", S(sWc), S(sWc), 32768))
                else: it.append(lambda: k.op("s_nop", 0))
                for j in range(2):
                    def w(j=j):
                        k.op("buffer_load_dwordx4", V(VW + j), S(sWm, 4), S(sWc), mods=f"offen offset:{j*1024} lds"); vq.issue(("s", st))
                    it.append(w)
            if part != "w":
                it.append(lambda u=u: k.op("s_add_u32", "m0", S(sMa), sl + u * 16384))
                if u: it.append(lambda: k.op("s_add_u32", S(sAc), S(sAc), 1024))
                else: it.append(lambda: k.op("s_nop", 0))
                for j in range(2):
                    def a(j=j):
                        k.op("buffer_load_dwordx4", V(VA + j), S(sWS, 4), S(sAc), mods=f"offen offset:{j*1024} lds"); vq.issue(("s", st))
                    it.append(a)
        return it
    for st in range(NR - 2):
        for f in issue_items(st, "w" if fused else "both"): f()
    load_srd(k, sX, "x", 40); load_srd(k, sO, "out", 48); load_srd(k, sB2, "b2", 46)
    k.op("s_mov_b32", S(sDb), S(50))
    k.op("s_and_b32", S(sDb + 1), S(51), "0xffff")
    k.op("s_mov_b32", S(sDb + 2), 256)
    k.op("s_mov_b32", S(sDb + 3), "0x20000")
    k.op("v_lshrrev_b32", V(t0), 1, V(g))
    k.op("v_lshlrev_b32", V(t0), 4, V(t0))
    k.op("v_lshl_add_u32", V(t0), V(g1), 2, V(t0))
    k.op("v_lshlrev_b32", V(t1), 2, V(g))
    k.op("v_cndmask_b32", V(t0), V(t1), V(t0), "vcc")
    k.op("v_add_u32", V(t0), V(t0), V(r_))
    k.op("v_lshlrev_b32", V(t0), 8, V(t0))
    k.op("v_lshl_add_u32", V(t0), V(cc), 3, V(t0))
    k.op("v_add_u32", V(t0), 8192, V(t0))
    k.op("v_lshl_or_b32", V(t1), V(g1), 2, V(r_))
    k.op("s_and_b32", S(sT1), S(sW), 1)
    k.op("s_lshl_b32", S(sT1), S(sT1), 2)
    k.op("v_xor_b32", V(t1), S(sT1), V(t1))
    k.op("s_mov_b32", S(sT0), 4096)
    k.op("s_cmp_lt_u32", S(sS), 3)
    k.op("s_cselect_b32", S(sT0), 2048, S(sT0))
    for nb in range(4):
        k.op("v_xor_b32", V(33), nb, V(t1))
        k.op("v_lshl_add_u32", V(TA + 2 * nb), V(33), 5, V(t0))
        k.op("v_add_u32", V(TA + 2 * nb + 1), S(sT0), V(TA + 2 * nb))
    for i in range(8): k.op("v_add_u32", V(TA + 8 + i), 65536, V(TA + i))
    for i in range(8): k.op("v_add_u32", V(180 + i), 131072, V(TA + i))
    k.op("s_lshr_b32", S(sT1), S(sW), 1)
    k.op("s_lshl_b32", S(sT1), S(sT1), 12)
    k.op("v_add_u32", V(AA), S(sT1), V(vL16))
    k.op("v_add_u32", V(AA + 1), 65536, V(AA))
    k.op("v_add_u32", V(50), 131072, V(AA))
    k.op("s_lshl_b32", S(sT0), S(sMt), 17)
    k.op("s_lshr_b32", S(sT1), S(sW), 1)
    k.op("s_lshl_b32", S(sT1), S(sT1), 16)
    k.op("s_add_u32", S(sT0), S(sT0), S(sT1))
    k.op("s_lshl_b32", S(sT1), S(sS), 14)
    k.op("s_add_u32", S(sT0), S(sT0), S(sT1))
    k.op("s_lshl_b32", S(sT1), S(sNt), 8)
    k.op("s_and_b32", S(sT2), S(sW), 1)
    k.op("s_lshl_b32", S(sT2), S(sT2), 7)
    k.op("s_add_u32", S(sT1), S(sT1), S(sT2))
    k.op("s_add_u32", S(sT0), S(sT0), S(sT1))
    k.op("v_lshlrev_b32", V(vOo), 10, V(l15))
    k.op("v_lshl_add_u32", V(vOo), V(g), 3, V(vOo))
    k.op("v_add_u32", V(vOo), S(sT0), V(vOo))
    k.op("v_lshlrev_b32", V(33), 3, V(g))
    for u in range(4):
        k.op("buffer_load_dwordx2", V(XV + 2 * u, 2), V(vOo), S(sX, 4), 0, mods=f"offen offset:{32*u}"); vq.issue("xb")
        k.op("buffer_load_dwordx2", V(BV + 2 * u, 2), V(33), S(sB2, 4), S(sT1), mods=f"offen offset:{32*u}"); vq.issue("xb")
    k.op("s_lshl_b32", S(sPr), S(sTile), 17)
    k.op("s_lshl_b32", S(sT1), S(sW), 13)
    k.op("s_add_u32", S(sPr), S(sPr), S(sT1))
    k.op("s_add_u32", S(sPr), S(sPr), PART_OFF)
    k.op("s_lshl_b32", S(sT1), S(sS), 15)
    k.op("s_add_u32", S(sPw), S(sPr), S(sT1))
    k.op("s_lshl_b32", S(sT1), S(sS), 11)
    k.op("s_add_u32", S(sPr), S(sPr), S(sT1))
    if fused:
        lab = k.newlabel("nopoll")
        k.op("s_cmp_lg_u32", S(sW), 0); k.op("s_cbranch_scc1", lab)
        k.op("s_sub_u32", S(sT1), 15, S(sMt))
        k.op("s_min_u32", S(sT0), S(sMt), S(sT1))
        k.op("s_lshl_b32", S(sT0), S(sT0), 8)
        k.op("s_add_u32", S(sT0), S(sT0), FLAG2_OFF)
        k.op("s_mov_b32", S(92), "0x1fffffff")
        k.op("s_cmp_eq_u32", S(sS), 0); k.op("s_cselect_b32", S(92), "0x7ff", S(92))
        k.op("s_cmp_eq_u32", S(sS), 1); k.op("s_cselect_b32", S(92), "0x3ffc00", S(92))
        k.op("s_cmp_eq_u32", S(sS), 2); k.op("s_cselect_b32", S(92), "0xffe00000", S(92))
        k.op("s_mov_b32", S(93), 0)
        k.op("v_lshlrev_b32", V(t0), 2, V(vL))
        k.op("s_mov_b32", S(sT1), 0)
        k.op("s_mov_b64", "exec", S(92, 2))
        k.label("k3_poll2")
        k.op("buffer_load_dword", V(t1), V(t0), S(sWS, 4), S(sT0), mods="offen sc1")
        k.op("s_add_u32", S(sT1), S(sT1), 1)
        k.wait(vm=0)
        k.op("v_cmp_ne_u32", "vcc", 1, V(t1))
        k.op("s_cmp_gt_u32", S(sT1), 2000000)
        k.op("s_cbranch_scc1", "k3_p2done")
        k.op("s_cbranch_vccnz", "k3_poll2")
        k.label("k3_p2done")
        k.op("s_mov_b64", "exec", -1)
        k.op("buffer_inv", mods="sc1")
        k.wait(vm=0)
        k.label(lab)
        k.op("s_barrier")
        stp.stamp()
        for st in range(NR - 2):
            for f in issue_items(st, "a"): f()
    steps = [(st, u) for st in range(NST) for u in range(nks_of(st))]
    q = FillQ(k)
    def rd_items(i):
        st, u = steps[i]
        off = (st % NR) * 32768 + u * 16384
        hi = off // 65536
        off -= 65536 * hi
        it = []
        if u == 0:
            def sw():
                vq.need(("s", st), cnt=None if nodma else [4 * nks_of(st)])
                k.op("s_barrier")
                q2.flush()
                if st + NR - 2 < NST and not nodma:
                    for f in issue_items(st + NR - 2): q2.add(f)
            it.append(sw)
        for x in range(4):
            def fa(rb=x):
                k.op("ds_read_b128", V(AF + (i % 2) * 16 + rb * 4, 4), V(AA + hi if hi < 2 else 50), mods=f"offset:{off + rb*1024}")
                lq.issue(("a", i))
            def fw(nb=x, j=0):
                k.op("ds_read_b64_tr_b16", V(WF + (i % 2) * 16 + nb * 4 + 2 * j, 2), V((TA + 8 * hi if hi < 2 else 180) + 2 * nb + j), mods=f"offset:{off}")
                lq.issue(("r", i, nb))
            if not nomma: it.append(fa)
        for nb in range(4):
            for j in range(2):
                if not nomma: it.append(lambda nb=nb, j=j: fw(nb, j))
        return it
    q2 = FillQ(k)
    for f in rd_items(0): f()
    stp.stamp()
    for i in range(len(steps)):
        if i + 1 < len(steps):
            for f in rd_items(i + 1): q.add(f)
        n = 0
        for nb in range(4):
            lq.need(("r", i, nb), ("a", i), cnt=None if nomma else [2, 4])
            for rb in range(4):
                d = V(ACC + 4 * (rb * 4 + nb), 4)
                if not nomma: k.op("v_mfma_f32_16x16x32_bf16", d, V(WF + (i % 2) * 16 + nb * 4, 4), V(AF + (i % 2) * 16 + rb * 4, 4), "0" if i == 0 else d)
                q.emit(1)
                if n % q2rate == q2rate - 1 or len(q) == 0: q2.emit(1)
                n += 1
        q.flush()
    q2.flush()
    stp.stamp()
    OWN = WF
    k.nop(8)
    for rb in range(4):
        l1, l2 = k.newlabel("own"), k.newlabel("nxt")
        a0 = ACC + 16 * rb
        k.op("s_cmp_eq_u32", S(sS), rb)
        k.op("s_cbranch_scc1", l1)
        for i in range(8): k.op("v_cvt_pk_bf16_f32", V(a0 + i), V(a0 + 2 * i), V(a0 + 2 * i + 1))
        if rb >= 2: k.op("s_add_u32", S(sT0), S(sPw), 4096)
        for p in range(2):
            k.op("buffer_store_dwordx4", V(a0 + 4 * p, 4), V(vL16), S(sWS, 4), S(sPw if rb < 2 else sT0), mods=f"offen offset:{(rb&1)*2048 + p*1024} sc1")
        k.op("s_branch", l2)
        k.label(l1)
        for i in range(16): k.op("v_mov_b32", V(OWN + i), V(a0 + i))
        k.label(l2)
    k.wait(vm=0)
    k.op("s_barrier")
    stp.stamp()
    k.op("s_cmp_lg_u32", S(sW), 0)
    k.op("s_cbranch_scc1", "k3_wait")
    k.op("s_lshl_b32", S(sT0), S(sTile), 8)
    k.op("s_add_u32", S(sT0), S(sT0), FLAG_OFF)
    k.op("s_lshl_b32", S(sT2), S(sS), 2)
    k.op("v_mov_b32", V(t0), 0)
    k.op("v_mov_b32", V(t1), 1)
    k.op("v_mov_b32", V(4), S(sT2))
    k.op("s_mov_b64", S(90, 2), "exec")
    k.op("s_mov_b64", "exec", 1)
    k.op("buffer_store_dword", V(t1), V(4), S(sWS, 4), S(sT0), mods="offen sc1")
    k.op("s_mov_b32", S(sT1), 0)
    k.label("k3_poll")
    k.op("buffer_load_dwordx4", V(4, 4), V(t0), S(sWS, 4), S(sT0), mods="offen sc1")
    k.op("s_add_u32", S(sT1), S(sT1), 1)
    k.wait(vm=0)
    k.op("v_and_b32", V(4), V(4), V(5))
    k.op("v_and_b32", V(6), V(6), V(7))
    k.op("v_and_b32", V(4), V(4), V(6))
    k.op("s_cmp_gt_u32", S(sT1), 2000000)
    k.op("v_readfirstlane_b32", S(sT2), V(4))
    k.op("s_cbranch_scc1", "k3_pdone")
    k.op("s_cmp_lg_u32", S(sT2), 1)
    k.op("s_cbranch_scc1", "k3_poll")
    k.label("k3_pdone")
    k.op("s_mov_b64", "exec", S(90, 2))
    k.label("k3_wait")
    k.op("s_barrier")
    stp.stamp()
    R = 8
    R = AF
    for src in range(4):
        l1 = k.newlabel("skp")
        k.op("s_cmp_eq_u32", S(sS), src)
        k.op("s_cbranch_scc1", l1)
        for p in range(2):
            k.op("buffer_load_dwordx4", V(R + src * 8 + 4 * p, 4), V(vL16), S(sWS, 4), S(sPr), mods=f"offen offset:{p*1024} sc1")
        k.label(l1)
        k.op("s_add_u32", S(sPr), S(sPr), 32768)
    def rb2(a):
        k.op("v_cvt_pk_bf16_f32", V(33), V(a), V(a + 1))
        k.op("v_lshlrev_b32", V(a), 16, V(33))
        k.op("v_and_b32", V(a + 1), "0xffff0000", V(33))
    def unpack(dst, src):
        k.op("v_lshlrev_b32", V(dst), 16, V(src))
        k.op("v_and_b32", V(dst + 1), "0xffff0000", V(src))
    XF, BF = 8, 164
    for i in range(8):
        unpack(XF + 2 * i, XV + i); unpack(BF + 2 * i, BV + i)
    k.wait(vm=0)
    F = ACC
    for src in range(4):
        l1, l2 = k.newlabel("own"), k.newlabel("nxt")
        k.op("s_cmp_eq_u32", S(sS), src)
        k.op("s_cbranch_scc1", l1)
        for i in range(8): unpack(F + 16 * src + 2 * i, R + src * 8 + i)
        k.op("s_branch", l2)
        k.label(l1)
        for i in range(16): k.op("v_mov_b32", V(F + 16 * src + i), V(OWN + i))
        k.label(l2)
    for i in range(16):
        k.op("v_add_f32", V(F + i), V(F + i), V(F + 16 + i))
        k.op("v_add_f32", V(F + i), V(F + i), V(F + 32 + i))
    for h in range(8):
        rb2(F + 2 * h); rb2(F + 48 + 2 * h)
    for i in range(16):
        k.op("v_add_f32", V(F + i), V(F + i), V(XF + i))
        k.op("v_add_f32", V(F + 48 + i), V(F + 48 + i), V(BF + i))
    for h in range(8):
        rb2(F + 2 * h); rb2(F + 48 + 2 * h)
    for i in range(16):
        k.op("v_add_f32", V(F + i), V(F + i), V(F + 48 + i))
    for nb in range(4):
        k.op("v_cvt_pk_bf16_f32", V(F + 4 * nb), V(F + 4 * nb), V(F + 4 * nb + 1))
        k.op("v_cvt_pk_bf16_f32", V(F + 4 * nb + 1), V(F + 4 * nb + 2), V(F + 4 * nb + 3))
        k.op("buffer_store_dwordx2", V(F + 4 * nb, 2), V(vOo), S(sO, 4), 0, mods=f"offen offset:{32*nb}")
    if stamps:
        k.wait(vm=0)
        stp.stamp()
        stp.flush(sWS, sW, 3)
    k.label("k3_end")
    k.op("s_endpgm")
    return k

if __name__ == "__main__":
    k = build_k3()
    for e in k.check_hazards(): print(e)
    for e in k.check_waits(): print(e)
    print(k.maxregs(), len(k.ins))
```

```python
from common import *
from k1_v1 import layernorm

def build_k1(store_mods="", stamps=False, prefetch=True, twice=False, noln=False, pf2=True, pf2at=13, D=6, LN0=2):
    k = Kern("k1_kernel")
    vq, lq = Q(k, "vmcnt", 63), Q(k, "lgkmcnt", 15)
    stp = Stamps(k, stamps, 60, 0, lq, maxn=10)
    sX, sC, sWm, sWS, sP = 8, 12, 16, 24, 20
    sW, sH, sKV, sRq = 28, 29, 30, 34
    sT0, sT1, sT2 = 31, 32, 33
    sSo, sSo2, sW4k, sW8k, sAo, sSt = 36, 37, 38, 39, 35, 56
    sR = 50
    vL, vL16 = 1, 2
    TA = 16
    VA = 28
    VW = 36
    AAr = 40
    AF = 52
    ACC = 84
    LNR = 148
    X0, X1 = 180, 184
    g, l15, r_, cc, g1, t0, t1, p8 = 4, 5, 6, 7, 8, 9, 10, 11
    k.op("s_cmp_ge_u32", "s2", 256)
    k.op("s_cbranch_scc1", "k1_end")
    k.op("s_load_dwordx4", S(40, 4), S(0, 2), KA["x"])
    k.op("s_load_dwordx4", S(44, 4), S(0, 2), KA["wuk"])
    k.op("s_load_dwordx2", S(48, 2), S(0, 2), KA["ws"])
    k.op("s_load_dwordx2", S(98, 2), S(0, 2), KA["wq"])
    k.op("s_load_dwordx2", S(100, 2), S(0, 2), KA["w1"])
    k.op("v_and_b32", V(vL), 63, "v0")
    k.op("v_lshrrev_b32", V(t0), 6, "v0")
    k.op("s_and_b32", S(sT0), "s2", 7)
    k.op("v_readfirstlane_b32", S(sW), V(t0))
    k.op("s_lshr_b32", S(sT1), "s2", 3)
    k.op("s_and_b32", S(sT2), S(sT1), 3)
    k.op("s_lshl_b32", S(sH), S(sT0), 2)
    k.op("s_add_u32", S(sH), S(sH), S(sT2))
    k.op("s_bfe_u32", S(sKV), S(sT1), "0x10002")
    k.op("s_lshr_b32", S(sRq), S(sT1), 3)
    k.op("v_lshlrev_b32", V(vL16), 4, V(vL))
    k.op("v_lshrrev_b32", V(g), 4, V(vL))
    k.op("v_and_b32", V(l15), 15, V(vL))
    k.op("v_bfe_u32", V(r_), V(vL), 2, 2)
    k.op("v_and_b32", V(cc), 3, V(vL))
    k.op("v_and_b32", V(g1), 1, V(g))
    k.op("v_and_b32", V(p8), 7, V(vL))
    k.op("s_lshl_b32", S(sW4k), S(sW), 12)
    k.op("s_lshl_b32", S(sW8k), S(sW), 13)
    k.op("v_lshlrev_b32", V(t0), 1, V(g))
    k.op("v_xor_b32", V(t0), V(t0), V(l15))
    k.op("v_lshlrev_b32", V(t0), 4, V(t0))
    k.op("v_lshl_add_u32", V(t0), V(g), 13, V(t0))
    k.op("s_lshl_b32", S(sT0), S(sW), 17)
    k.op("s_lshl_b32", S(sT1), S(sH), 8)
    k.op("s_add_u32", S(sT0), S(sT0), S(sT1))
    k.op("v_add_u32", V(VW), S(sT0), V(t0))
    k.op("v_add_u32", V(VW + 1), 32768 - 1024, V(VW))
    k.op("v_xor_b32", V(VW + 2), 128, V(VW))
    k.op("v_add_u32", V(VW + 2), 2 * (32768 - 1024), V(VW + 2))
    k.op("v_add_u32", V(VW + 3), 32768 - 1024, V(VW + 2))
    k.op("s_and_b32", S(sT0), S(sW), 1)
    k.op("s_lshl_b32", S(sT0), S(sT0), 7)
    k.op("v_xor_b32", V(t0), S(sT0), V(vL16))
    for i in range(8): k.op("v_xor_b32", V(VA + i), i * 16, V(t0))
    k.op("s_lshl_b32", S(sAo), S(sRq), 19)
    k.op("s_lshr_b32", S(sT1), S(sW), 1)
    k.op("s_lshl_b32", S(sT1), S(sT1), 15)
    k.op("s_add_u32", S(sAo), S(sAo), S(sT1))
    k.op("s_lshl_b32", S(sT0), S(sT0), 6)
    k.op("s_add_u32", S(sAo), S(sAo), S(sT0))
    k.wait(lgkm=0)
    stp.stamp()
    load_srd(k, sC, "ckv", 42)
    k.op("s_cmp_eq_u32", S(sKV), 0)
    k.op("s_cselect_b32", S(sWm), S(44), S(46))
    k.op("s_cselect_b32", S(sWm + 1), S(45), S(47))
    k.op("s_and_b32", S(sWm + 1), S(sWm + 1), "0xffff")
    k.op("s_mov_b32", S(sWm + 2), hex(4 << 20))
    k.op("s_mov_b32", S(sWm + 3), "0x20000")
    def aslot(st): return ((st + 4) % 5) * 32768
    def dma_w_items(s):
        def setup():
            k.op("s_add_u32", "m0", S(sW4k), s * 16384)
            k.op("s_mov_b32", S(sSo), s * 524288)
        def ld(i):
            def f():
                k.op("buffer_load_dwordx4", V(VW + i), S(sWm, 4), S(sSo), mods=f"offen offset:{i*1024} lds"); vq.issue(("W", s))
            return f
        return [setup] + [ld(i) for i in range(4)]
    def dma_a_items(st):
        it = []
        for u in range(2):
            def setup(u=u):
                k.op("s_add_u32", "m0", S(sW8k), aslot(st) + u * 4096)
                k.op("s_add_u32", S(sSo), S(sAo), (st >> 1) * 65536 + (st & 1) * 16384 + u * 4096)
            it.append(setup)
            for i in range(4):
                def f(i=i, u=u):
                    k.op("buffer_load_dwordx4", V(VA + 4 * u + i), S(sC, 4), S(sSo), mods=f"offen offset:{i*1024} lds"); vq.issue(("A", st))
                it.append(f)
        return it
    for f in dma_w_items(0) + dma_a_items(0): f()
    for s in range(1, 8):
        for f in dma_w_items(s): f()
    stp.stamp()
    load_srd(k, sX, "x", 40); load_srd(k, sWS, "ws", 48)
    k.op("v_lshl_or_b32", V(t1), V(g1), 2, V(r_))
    k.op("s_and_b32", S(sT0), S(sW), 1)
    k.op("s_lshl_b32", S(sT0), S(sT0), 2)
    k.op("v_xor_b32", V(t1), S(sT0), V(t1))
    k.op("v_lshl_add_u32", V(t0), V(g), 3, V(r_))
    k.op("v_lshlrev_b32", V(t0), 8, V(t0))
    k.op("v_lshl_add_u32", V(t0), V(cc), 3, V(t0))
    for nb in range(4):
        k.op("v_xor_b32", V(12), nb, V(t1))
        k.op("v_lshl_add_u32", V(TA + nb), V(12), 5, V(t0))
        k.op("v_add_u32", V(TA + 4 + nb), 65536, V(TA + nb))
    k.op("s_lshr_b32", S(sT0), S(sW), 1)
    k.op("s_lshl_b32", S(sT0), S(sT0), 14)
    k.op("v_lshlrev_b32", V(t0), 10, V(l15))
    k.op("v_add_u32", V(t0), S(sT0), V(t0))
    k.op("v_xor_b32", V(t1), V(g), V(l15))
    for q in range(4):
        k.op("v_xor_b32", V(12), 4 * q, V(t1))
        k.op("v_lshl_add_u32", V(AAr + q), V(12), 4, V(t0))
        k.op("v_add_u32", V(AAr + 4 + q), 65536, V(AAr + q))
        k.op("v_add_u32", V(AAr + 8 + q), 131072, V(AAr + q))
    k.op("s_lshl_b32", S(sSt), S(sH), 19)
    k.op("s_lshl_b32", S(sT1), S(sRq), 17)
    k.op("s_add_u32", S(sSt), S(sSt), S(sT1))
    k.op("s_lshr_b32", S(sT1), S(sW), 1)
    k.op("s_lshl_b32", S(sT1), S(sT1), 13)
    k.op("s_add_u32", S(sSt), S(sSt), S(sT1))
    k.op("s_and_b32", S(sT1), S(sW), 1)
    k.op("s_lshl_b32", S(sT2), S(sT1), 12)
    k.op("s_add_u32", S(sT2), S(sT2), VF_OFF)
    k.op("s_lshl_b32", S(sT1), S(sT1), 11)
    k.op("s_add_u32", S(sT1), S(sT1), KF_OFF)
    k.op("s_cmp_eq_u32", S(sKV), 0)
    k.op("s_cselect_b32", S(sT1), S(sT1), S(sT2))
    k.op("s_add_u32", S(sSt), S(sSt), S(sT1))
    k.op("s_lshl_b32", S(sR), "s2", 3)
    k.op("s_lshl_b32", S(sT1), S(sW), 1)
    k.op("s_add_u32", S(sR), S(sR), S(sT1))
    k.op("s_lshr_b32", S(sR + 1), S(sR), 4)
    k.op("s_lshl_b32", S(sR + 1), S(sR + 1), 14)
    k.op("s_and_b32", S(sR + 2), S(sR), 15)
    k.op("s_lshl_b32", S(sR + 2), S(sR + 2), 4)
    k.op("s_add_u32", S(sR + 1), S(sR + 1), S(sR + 2))
    k.op("s_lshl_b32", S(sR + 2), S(sR), 3)
    k.op("s_add_u32", S(sR + 2), S(sR + 2), YF_OFF)
    k.op("s_lshl_b32", S(sR), S(sR), 10)
    vLd, vLz = LNR + 29, LNR + 30
    k.op("v_mov_b32", V(vLz), 0)
    k.op("v_lshrrev_b32", V(vLd), 2, V(vL))
    k.op("v_lshlrev_b32", V(vLd), 10, V(vLd))
    k.op("v_lshl_add_u32", V(vLd), V(cc), 8, V(vLd))
    k.op("buffer_load_dwordx4", V(X0, 4), V(vL16), S(sX, 4), S(sR), mods="offen"); vq.issue("ln")
    k.op("buffer_load_dwordx4", V(X1, 4), V(vL16), S(sX, 4), S(sR), mods="offen offset:1024"); vq.issue("ln")
    k.op("s_lshl_b32", S(sT1), "s2", 8)
    k.op("s_add_u32", S(sT1), S(sT1), FLAG_OFF)
    for i in range(4): k.op("v_mov_b32", V(188 + i), 0)
    k.op("buffer_store_dwordx4", V(188, 4), V(vLz), S(sWS, 4), S(sT1), mods="offen"); vq.issue()
    k.op("s_lshl_b32", S(sT1), "s2", 4)
    k.op("s_add_u32", S(sT1), S(sT1), FLAG2_OFF)
    k.op("buffer_store_dwordx4", V(188, 4), V(vLz), S(sWS, 4), S(sT1), mods="offen"); vq.issue()

    def pf_k2():
        k.op("s_lshr_b32", S(sT1), "s2", 3)
        k.op("s_lshl_b32", S(sT1), S(sT1), 2)
        k.op("s_add_u32", S(sT1), S(sT1), S(sW))
        k.op("s_and_b32", S(sT0), "s2", 7)
        load_srd(k, sP, "wq", 98)
        k.op("v_bfe_u32", V(12), V(vL), 3, 2)
        k.op("v_lshlrev_b32", V(13), 13, V(12))
        k.op("v_lshl_add_u32", V(13), V(p8), 7, V(13))
        k.op("s_lshl_b32", S(sSo2), S(sT1), 15)
        k.op("s_lshl_b32", S(sT2), S(sT0), 10)
        k.op("s_add_u32", S(sSo2), S(sSo2), S(sT2))
        k.op("buffer_load_dword", V(14), V(13), S(sP, 4), S(sSo2), mods="offen", dummy=True); vq.issue()
        load_srd(k, sWm, "w1", 100)
        k.op("v_mul_u32_u24", V(13), 2752, V(12))
        k.op("v_lshl_add_u32", V(13), V(p8), 6, V(13))
        k.op("s_mul_i32", S(sSo2), S(sT1), 4 * 2752)
        k.op("s_mul_i32", S(sT2), S(sT0), 384)
        k.op("s_add_u32", S(sSo2), S(sSo2), S(sT2))
        k.op("buffer_load_dword", V(14), V(13), S(sWm, 4), S(sSo2), mods="offen", dummy=True); vq.issue()
        k.op("s_lshl_b32", S(sSo2), S(sT1), 13)
        pf_code(k, sX, "k2_kernel", "k2_slow_0-k2_kernel", 13, vL, sSo2, 14); vq.issue()

    k.op("s_cmp_lg_u32", S(sKV), 0)
    k.op("s_cbranch_scc1", "k1_V")
    import copy
    vq0, lq0, n0 = copy.deepcopy((vq.q, vq.ever)), copy.deepcopy((lq.q, lq.ever)), stp.n
    for kv in range(2):
        if kv:
            k.label("k1_V")
            vq.q, vq.ever = copy.deepcopy(vq0); lq.q, lq.ever = copy.deepcopy(lq0); stp.n = n0
        onst = lambda i: vq.issue() if i.kind == "vstore" else None
        q1, q2, lnq = FillQ(k), FillQ(k, on_emit=onst), FillQ(k, on_emit=onst)
        if not noln:
            lnq.add(lambda: vq.need("ln"))
            for r, X in enumerate((X0, X1)):
                ln = Kern("ln")
                layernorm(ln, X, LNR + 4, LNR + 8, LNR + 16)
                layernorm(ln, LNR + 4, LNR + 24, LNR + 8, LNR + 16, stats_only=True)
                ln.op("buffer_store_dwordx4", V(LNR + 4, 4), V(vLd), S(sWS, 4), S(sR + 1), mods=f"offen offset:{16*r}")
                ln.op("buffer_store_dwordx2", V(LNR + 24, 2), V(vLz), S(sWS, 4), S(sR + 2), mods=f"offen offset:{8*r}")
                ln.nop(2)
                lnq.add_kern(ln)
        def acc(st, nb): return ACC + 16 * (st % 4) + 4 * nb
        def pack(e, a, b):
            e.op("v_cvt_pk_bf16_f32", V(a), V(a), V(a + 1))
            e.op("v_cvt_pk_bf16_f32", V(a + 1), V(a + 2), V(a + 3))
            e.op("v_cvt_pk_bf16_f32", V(a + 2), V(b), V(b + 1))
            e.op("v_cvt_pk_bf16_f32", V(a + 3), V(b + 2), V(b + 3))
        def epi(st):
            e = Kern("e")
            if kv == 0:
                e.op("s_add_u32", S(sSo2), S(sSt), (st >> 1) * 16384 + (st & 1) * 4096)
                for p in range(2):
                    pack(e, acc(st, 2 * p), acc(st, 2 * p + 1))
                    e.op("buffer_store_dwordx4", V(acc(st, 2 * p), 4), V(vL16), S(sWS, 4), S(sSo2), mods=f"offen offset:{p*1024}{store_mods}")
            elif st & 1:
                e.op("s_add_u32", S(sSo2), S(sSt), (st >> 1) * 16384)
                for nb in range(4):
                    pack(e, acc(st - 1, nb), acc(st, nb))
                    e.op("buffer_store_dwordx4", V(acc(st - 1, nb), 4), V(vL16), S(sWS, 4), S(sSo2), mods=f"offen offset:{nb*1024}{store_mods}")
            return e
        def rd_act(n):
            st, ks = n >> 4, n & 15
            if ks == 0 and st > 0:
                vq.need(("A", st), cnt=[8])
                k.op("s_barrier")
                q1.flush()
                if st + 3 < 16 and st >= 2:
                    for f in dma_a_items(st + 3): q1.add(f)
                if st == 1:
                    for f in dma_a_items(4): q1.add(f)
            off = aslot(st)
            wn = off // 65536
            k.op("ds_read_b128", V(AF + (n % 8) * 4, 4), V(AAr + 4 * wn + (ks & 3)), mods=f"offset:{off - wn*65536 + (ks>>2)*256}")
            lq.issue(("a", n))
        def mf(st, ks, nb, n):
            d = V(acc(st, nb), 4); wf = A((ks * 4 + nb) * 4, 4); af = V(AF + (n % 8) * 4, 4)
            if kv == 0: k.op("v_mfma_f32_16x16x32_bf16", d, wf, af, "0" if ks == 0 else d)
            else: k.op("v_mfma_f32_16x16x32_bf16", d, af, wf, "0" if ks == 0 else d)
        def wreads(s):
            for ks in (2 * s, 2 * s + 1):
                for nb in range(4):
                    for i in range(2):
                        off = s * 16384 + (ks & 1) * 8192 + i * 1024
                        wn = off // 65536
                        k.op("ds_read_b64_tr_b16", A((ks * 4 + nb) * 4 + 2 * i, 2), V(TA + 4 * wn + nb), mods=f"offset:{off - wn*65536}")
                        lq.issue(("w", ks))
        for s in range(8):
            vq.need(("W", s), ("A", 0), cnt=[4, 8])
            k.op("s_barrier")
            if s == 0: stp.stamp()
            if s in (3, 5, 7):
                for f in dma_a_items((s - 1) // 2): f()
            wreads(s)
            rd_act(2 * s); rd_act(2 * s + 1)
            if s > 0:
                for ks in (2 * s - 2, 2 * s - 1):
                    lq.need(("w", ks), ("a", ks), cnt=[8, 1])
                    for nb in range(4): mf(0, ks, nb, ks)
        stp.stamp()
        nxt = 16
        for n in range(14, 256):
            st, ks = n >> 4, n & 15
            if n in (64, 128, 192): stp.stamp()
            if ks == 2 and st > 0: q2.add_kern(epi(st - 1))
            if pf2 and n == pf2at * 16 + 8: pf_k2()
            if n < 16: lq.need(("w", ks), ("a", n), cnt=[8, 1])
            elif n % 2 == 0: lq.need(("a", n), ("a", n + 1), cnt=[1, 1])
            for nb in range(4):
                mf(st, ks, nb, n)
                cap = 1
                if nb == 0 or n < 18:
                    if nxt < 256 and nxt <= n + D:
                        rd_act(nxt); nxt += 1; cap = 0
                cap -= q1.emit(cap)
                cap -= q2.emit(cap)
                if st >= LN0: cap -= lnq.emit(cap)
        stp.stamp()
        q2.flush(); lnq.flush()
        k.nop(8)
        q2.add_kern(epi(15)); q2.flush()
        if stamps:
            k.wait(vm=0)
            stp.stamp()
            stp.flush(sWS, sW, 4)
        k.op("s_endpgm")
    k.label("k1_end")
    k.op("s_endpgm")
    return k

if __name__ == "__main__":
    k = build_k1()
    for e in k.check_hazards(): print(e)
    for e in k.check_waits(): print(e)
    print(k.maxregs(), len(k.ins))
```

```python
from common import *
import struct
def f32(x): return hex(struct.unpack("<I", struct.pack("<f", x))[0])
LOG2E = 1.4426950408889634
QSCALE = LOG2E / (128 ** 0.5)
STAT_OFF = YF_OFF

def build_k2(stamps=False, D=4, DA=8, thr=2.0 ** 60, pf3=True, fuse3=False, xnobar=False, xnodma=False, oolmask=True):
    k = Kern("k2_kernel")
    vq, lq = Q(k, "vmcnt", 63), Q(k, "lgkmcnt", 15)
    stp = Stamps(k, stamps, 62, 1, lq, maxn=8)
    sWS, sWQ, sW1, sK, sV, sB1 = 8, 12, 16, 20, 24, 28
    sW, sH, sP, sNa, sNb, sT = 32, 33, 34, 35, 36, 37
    sT0, sT1, sT2, sSo = 38, 39, 40, 41
    sP2, sP1, sRd, sNx = 42, 43, 44, 45
    sTK, sTV, sW4k, sThr, sRet = 46, 47, 48, 49, 50
    sXa, sXb = 51, 52
    sCa, sCb = 53, 54
    sM = 56
    sLd = 98
    vL, vL16, vA, vD, vZ, vNinf = 1, 2, 3, 4, 5, 6
    vPs = [7, 8]; vLs = [9, 10]; vMx = [11, 12]
    vT = 13
    vCo = 20
    QR, NEGM, SR = 32, 96, 128
    def Sreg(sub, par): return SR + sub * 64 + par * 32
    OA, FR = 64, 192
    TA, TB, VW, VW1 = 96, 104, 108, 112
    vXo = 21
    MACC = 32
    ONES = 116
    XR = 0

    k.op("s_cmp_ge_u32", "s2", 256)
    k.op("s_cbranch_scc1", "k2_end")
    k.op("s_load_dwordx2", S(84, 2), S(0, 2), KA["wq"])
    k.op("s_load_dwordx4", S(88, 4), S(0, 2), KA["w1"])
    k.op("s_load_dwordx2", S(92, 2), S(0, 2), KA["ws"])
    k.op("s_load_dwordx2", S(86, 2), S(0, 2), KA["wo"])
    k.op("s_load_dwordx2", S(96, 2), S(0, 2), KA["w2"])
    k.op("v_and_b32", V(vL), 63, "v0")
    k.op("v_lshrrev_b32", V(13), 6, "v0")
    k.op("s_and_b32", S(sT0), "s2", 7)
    k.op("v_readfirstlane_b32", S(sW), V(13))
    k.op("s_lshr_b32", S(sT1), "s2", 3)
    k.op("s_and_b32", S(sT2), S(sT1), 3)
    k.op("s_lshl_b32", S(sH), S(sT0), 2)
    k.op("s_add_u32", S(sH), S(sH), S(sT2))
    k.op("s_lshr_b32", S(sP), S(sT1), 2)
    k.op("v_lshlrev_b32", V(vL16), 4, V(vL))
    k.op("s_lshl_b32", S(sW4k), S(sW), 12)
    k.op("v_add_u32", V(vD), S(sW4k), V(vL16))
    g, l15, p8, l3, r_, cc, g1, t7 = 22, 23, 24, 25, 26, 27, 28, 29
    k.op("v_lshrrev_b32", V(g), 4, V(vL))
    k.op("v_and_b32", V(l15), 15, V(vL))
    k.op("v_and_b32", V(p8), 7, V(vL))
    k.op("v_lshrrev_b32", V(l3), 3, V(vL))
    k.op("v_bfe_u32", V(r_), V(vL), 2, 2)
    k.op("v_and_b32", V(cc), 3, V(vL))
    k.op("v_and_b32", V(g1), 1, V(g))
    k.op("v_lshlrev_b32", V(t7), 1, V(g))
    k.op("v_xor_b32", V(t7), V(t7), V(l15))
    k.op("v_lshlrev_b32", V(t7), 4, V(t7))
    k.op("v_lshl_add_u32", V(t7), V(g), 13, V(t7))
    k.op("s_lshl_b32", S(sT0), S(sW), 17)
    k.op("s_lshl_b32", S(sT1), S(sH), 8)
    k.op("s_add_u32", S(sT0), S(sT0), S(sT1))
    k.op("v_add_u32", V(VW), S(sT0), V(t7))
    k.op("v_add_u32", V(VW + 1), 32768 - 1024, V(VW))
    k.op("v_xor_b32", V(VW + 2), 128, V(VW))
    k.op("v_add_u32", V(VW + 2), 2 * (32768 - 1024), V(VW + 2))
    k.op("v_add_u32", V(VW + 3), 32768 - 1024, V(VW + 2))
    k.op("v_lshlrev_b32", V(t7), 1, V(g1))
    k.op("v_xor_b32", V(t7), V(t7), V(p8))
    k.op("v_lshlrev_b32", V(t7), 4, V(t7))
    k.op("v_mul_u32_u24", V(30), 2752, V(l3))
    k.op("s_mul_i32", S(sT0), S(sW), 32 * 2752)
    k.op("s_mul_i32", S(sT1), S(sH), 96)
    k.op("s_add_u32", S(sT0), S(sT0), S(sT1))
    k.op("v_add_u32", V(30), S(sT0), V(30))
    k.op("v_add_u32", V(VW1), V(30), V(t7))
    k.op("v_xor_b32", V(t7), 64, V(t7))
    k.op("v_add_u32", V(VW1 + 1), V(30), V(t7))
    k.op("v_add_u32", V(VW1 + 1), 8 * 2752 - 1024, V(VW1 + 1))
    k.op("v_add_u32", V(VW1 + 2), 2 * (8 * 2752 - 1024), V(VW1))
    k.op("v_add_u32", V(VW1 + 3), 2 * (8 * 2752 - 1024), V(VW1 + 1))
    k.op("s_lshl_b32", S(sT0), S(sP), 7)
    k.op("s_lshl_b32", S(sT1), S(sW), 5)
    k.op("s_add_u32", S(sXa), S(sT0), S(sT1))
    k.op("s_sub_u32", S(sXb), 1920, S(sT0))
    k.op("s_add_u32", S(sXb), S(sXb), S(sT1))
    k.op("s_lshl_b32", S(sT2), S(sH), 12)
    k.op("s_add_u32", S(sT2), S(sT2), CTX_OFF)
    k.op("s_lshl_b32", S(sCa), S(sXa), 13)
    k.op("s_add_u32", S(sCa), S(sCa), S(sT2))
    k.op("s_lshl_b32", S(sCb), S(sXb), 13)
    k.op("s_add_u32", S(sCb), S(sCb), S(sT2))
    sRa, sRb = 94, 95
    k.op("s_mov_b32", S(sRa), S(sXa)); k.op("s_mov_b32", S(sRb), S(sXb))
    sHr = 56
    for rb in range(4):
        k.op("s_lshr_b32", S(sHr + rb), S(sRa if rb < 2 else sRb), 4)
        k.op("s_add_u32", S(sHr + rb), S(sHr + rb), rb & 1)
        k.op("s_mul_i32", S(sHr + rb), S(sHr + rb), 43 * 1024)
    k.op("s_lshl_b32", S(sXa), S(sXa), 10)
    k.op("s_lshl_b32", S(sXb), S(sXb), 10)
    k.op("s_lshr_b32", S(sT1), S(sW), 1)
    k.op("s_lshl_b32", S(sT0), S(sP), 1)
    k.op("s_add_u32", S(sNa), S(sT0), S(sT1))
    k.op("s_add_u32", S(sNa), S(sNa), 1)
    k.op("s_sub_u32", S(sNb), 31, S(sT0))
    k.op("s_add_u32", S(sNb), S(sNb), S(sT1))
    k.wait(lgkm=0)
    stp.stamp()
    load_srd(k, sWQ, "wq", 84); load_srd(k, sW1, "w1", 88); load_srd(k, sWS, "ws", 92)

    pages = {}
    order = []
    for j in range(4):
        order += [("W1", j), ("WQ", 2 * j), ("WQ", 2 * j + 1)]
    for i, p in enumerate(order): pages[p] = i
    for t in range(6): pages[("K", t)] = 12 + 2 * t; pages[("V", t)] = 15 + 2 * t
    def slot(p): return (pages[p] % 10) * 16384
    def dma_items(p):
        kind, j = p
        def setup():
            k.op("s_add_u32", "m0", S(sW4k), slot(p))
            k.op("s_mov_b32", S(sSo), {"W1": j * 128 * 2752, "WQ": j * 524288, "K": j * 16384, "V": (j + 1) * 16384}[kind])
        def ld(i):
            def f():
                if kind == "WQ": k.op("buffer_load_dwordx4", V(VW + i), S(sWQ, 4), S(sSo), mods=f"offen offset:{i*1024} lds")
                elif kind == "W1": k.op("buffer_load_dwordx4", V(VW1 + i), S(sW1, 4), S(sSo), mods=f"offen offset:{i*1024} lds")
                else: k.op("buffer_load_dwordx4", V(vD), S(sK if kind == "K" else sV, 4), S(sSo), mods=f"offen offset:{i*1024} lds")
                vq.issue(p)
            return f
        return [setup] + [ld(i) for i in range(4)]
    def xn_load(ks, rb):
        def f():
            r = XR + ((ks % 12) * 4 + rb) * 4
            k.op("s_add_u32", S(sLd), S(sXa if rb < 2 else sXb), (rb & 1) * 16384 + (ks >> 2) * 4096)
            k.op("buffer_load_dwordx4", A(r, 4), V(vL16), S(sWS, 4), S(sLd), mods=f"offen offset:{(ks&3)*1024}")
            vq.issue(("x", ks))
        return f
    for p in (("W1", 0), ("WQ", 0)):
        for f in dma_items(p): f()
    for ks in range(2):
        for rb in range(4): xn_load(ks, rb)()
    for f in dma_items(("WQ", 1)): f()
    for ks in range(2, 4):
        for rb in range(4): xn_load(ks, rb)()
    load_srd(k, sB1, "b1", 90)
    k.op("s_lshl_b32", S(sT0), S(sH), 19)
    k.op("s_add_u32", S(sT1), S(sT0), KF_OFF)
    k.op("s_add_u32", S(sK), S(92), S(sT1))
    k.op("s_addc_u32", S(sK + 1), S(93), 0)
    k.op("s_and_b32", S(sK + 1), S(sK + 1), "0xffff")
    k.op("s_lshl_b32", S(sT2), S(sP), 15)
    k.op("s_sub_u32", S(sK + 2), 32 * 16384, S(sT2))
    k.op("s_mov_b32", S(sK + 3), "0x20000")
    k.op("s_add_u32", S(sT1), S(sT0), VF_OFF - 16384)
    k.op("s_add_u32", S(sV), S(92), S(sT1))
    k.op("s_addc_u32", S(sV + 1), S(93), 0)
    k.op("s_and_b32", S(sV + 1), S(sV + 1), "0xffff")
    k.op("s_add_u32", S(sV + 2), S(sK + 2), 16384)
    k.op("s_mov_b32", S(sV + 3), "0x20000")
    k.op("v_lshl_or_b32", V(30), V(g1), 2, V(r_))
    k.op("v_lshl_add_u32", V(31), V(g), 3, V(r_))
    k.op("v_lshlrev_b32", V(t7), 8, V(31))
    k.op("v_lshl_add_u32", V(t7), V(cc), 3, V(t7))
    for nb in range(8):
        k.op("v_xor_b32", V(13), nb, V(30))
        k.op("v_lshl_add_u32", V(TA + nb), V(13), 5, V(t7))
    k.op("v_lshrrev_b32", V(13), 1, V(r_))
    k.op("v_lshl_or_b32", V(30), V(g1), 1, V(13))
    k.op("v_lshlrev_b32", V(t7), 7, V(31))
    k.op("v_lshl_add_u32", V(t7), V(cc), 3, V(t7))
    for nb in range(3):
        k.op("v_xor_b32", V(13), nb, V(30))
        k.op("v_lshl_add_u32", V(TB + nb), V(13), 5, V(t7))
    for i in range(4): k.op("v_mov_b32", V(ONES + i), "0x3f803f80")
    ST = 120
    B1 = [92, 94, 30]
    k.op("v_lshlrev_b32", V(13), 3, V(l15))
    for rb in range(4):
        k.op("s_lshl_b32", S(sT0), S(sRa if rb < 2 else sRb), 3)
        k.op("s_add_u32", S(sT0), S(sT0), STAT_OFF + (rb & 1) * 128)
        k.op("buffer_load_dwordx2", V(ST + 2 * rb, 2), V(13), S(sWS, 4), S(sT0), mods="offen"); vq.issue("st")
    k.op("v_lshlrev_b32", V(14), 3, V(g))
    k.op("s_mul_i32", S(sT1), S(sH), 96)
    for nb in range(3):
        k.op("buffer_load_dwordx2", V(B1[nb], 2), V(14), S(sB1, 4), S(sT1), mods=f"offen offset:{nb*32}"); vq.issue("st")
    win = {"TA": 0, "TB": 0}
    def set_window(name, base, n, off):
        w = off // 65536
        if win[name] != w:
            d = (w - win[name]) * 65536
            for i in range(n): k.op("v_add_u32", V(base + i), hex(d & 0xffffffff), V(base + i))
            win[name] = w
        return off - w * 65536
    frs = []
    for ks in range(16):
        for nb in range(3): frs.append(("W1", ks, nb))
        for nb in range(8): frs.append(("WQ", ks, nb))
    NF = len(frs)
    q1 = FillQ(k)
    plan = {0: [("W1", 1), ("WQ", 2)], 1: [("WQ", 3)], 2: [("W1", 2), ("WQ", 4)], 3: [("WQ", 5)], 4: [("W1", 3), ("WQ", 6)],
            5: [("WQ", 7)], 6: [("K", 0), ("K", 1)], 7: [("V", 0), ("K", 2)]}
    def stage_switch(s):
        need = [("WQ", s)] + ([("W1", s // 2)] if s % 2 == 0 else [])
        vq.need(*need, cnt=[4] * len(need))
        k.op("s_barrier")
        q1.flush()
        for ks in (2 * s + 4, 2 * s + 5):
            if ks < 16:
                for rb in range(4): q1.add(xn_load(ks, rb))
        for p in plan[s]:
            for f in dma_items(p): q1.add(f)
    def read_frag(n, which):
        kind, ks, nb = frs[n]
        if n % 22 == 0 and which == 0: stage_switch(n // 22)
        r = FR + (n % 16) * 4
        if kind == "WQ":
            off = slot(("WQ", ks // 2)) + (ks & 1) * 8192 + which * 1024
            off = set_window("TA", TA, 8, slot(("WQ", ks // 2))) + (ks & 1) * 8192 + which * 1024
            k.op("ds_read_b64_tr_b16", A(r + 2 * which, 2), V(TA + nb), mods=f"offset:{off}")
        else:
            off = set_window("TB", TB, 3, slot(("W1", ks // 4))) + (ks & 3) * 4096 + which * 512
            k.op("ds_read_b64_tr_b16", A(r + 2 * which, 2), V(TB + nb), mods=f"offset:{off}")
        lq.issue(("w", n))
    def qacc(nb, rb): return SR + 4 * (nb * 4 + rb)
    def macc(nb, rb): return MACC + 4 * (nb * 4 + rb)
    for n in range(D):
        read_frag(n, 0); read_frag(n, 1)
    stp.stamp()
    for n in range(NF):
        kind, ks, nb = frs[n]
        if n % 11 == 0: vq.need(("x", ks), cnt=[4])
        lq.need(("w", n), cnt=[2])
        wf = A(FR + (n % 16) * 4, 4)
        first = ks == 0
        ms = []
        for rb in range(4):
            d = V(qacc(nb, rb) if kind == "WQ" else macc(nb, rb), 4)
            ms.append((d, A(XR + ((ks % 12) * 4 + rb) * 4, 4)))
        if kind == "W1": ms.append((V(MACC + 48 + 4 * nb, 4), V(ONES, 4)))
        for c, (d, b) in enumerate(ms):
            k.op("v_mfma_f32_16x16x32_bf16", d, wf, b, "0" if first else d)
            if c < 2 and n + D < NF: read_frag(n + D, c)
            else: q1.emit(2 if len(q1) > 12 else 1)
    q1.flush()
    stp.stamp()
    vq.need(("K", 0), cnt=[4])
    k.op("s_barrier")
    for p in (("V", 1), ("K", 3), ("V", 2)):
        for f in dma_items(p): f()
    k.op("v_mul_u32_u24", V(15), 44032, V(g1))
    k.op("v_lshrrev_b32", V(16), 5, V(vL))
    k.op("v_lshl_add_u32", V(15), V(16), 8, V(15))
    k.op("v_lshl_add_u32", V(15), V(l15), 4, V(15))
    C1, C2 = -2 * LOG2E * 0.7978845608028654, -2 * LOG2E * 0.7978845608028654 * 0.044715
    k.op("v_mov_b32", V(16), f32(C1)); k.op("v_mov_b32", V(17), f32(C2))
    k.op("v_mov_b32", V(18), "1.0"); k.op("v_mov_b32", V(19), "1.0")
    def P(r): return V(r, 2)
    bb, t = 96, 100
    for nb in range(3):
        k.op("v_lshlrev_b32", V(bb), 16, V(B1[nb]))
        k.op("v_and_b32", V(bb + 1), "0xffff0000", V(B1[nb]))
        k.op("v_lshlrev_b32", V(bb + 2), 16, V(B1[nb] + 1))
        k.op("v_and_b32", V(bb + 3), "0xffff0000", V(B1[nb] + 1))
        cs = MACC + 48 + 4 * nb
        k.op("s_mul_i32", S(sT1), S(sH), 3)
        k.op("s_add_u32", S(sT1), S(sT1), nb)
        k.op("s_lshl_b32", S(sT2), S(sT1), 9)
        k.op("s_add_u32", S(sT2), S(sT2), HF_OFF)
        lab = k.newlabel("skiph")
        k.op("s_cmp_ge_u32", S(sT1), 86)
        k.op("s_cbranch_scc1", lab)
        for rp in range(2):
            rbs = (2 * rp, 2 * rp + 1)
            def each(fn):
                for j, rb in enumerate(rbs):
                    for i in (0, 2): fn(macc(nb, rb) + i, t + 4 * j + i, ST + 2 * rb, i)
            each(lambda a, tt, st, i: k.op("v_pk_fma_f32", P(a), P(cs + i), P(st), P(a), mods="op_sel_hi:[1,0,1] neg_lo:[1,0,0] neg_hi:[1,0,0]"))
            each(lambda a, tt, st, i: k.op("v_pk_fma_f32", P(a), P(a), P(st), P(bb + i), mods="op_sel:[0,1,0]"))
            each(lambda a, tt, st, i: k.op("v_pk_mul_f32", P(tt), P(a), P(a)))
            each(lambda a, tt, st, i: k.op("v_pk_fma_f32", P(tt), P(tt), P(16), P(16), mods="op_sel:[0,1,0] op_sel_hi:[1,1,0]"))
            each(lambda a, tt, st, i: k.op("v_pk_mul_f32", P(tt), P(tt), P(a)))
            for i in range(8): k.op("v_exp_f32", V(t + i), V(t + i))
            each(lambda a, tt, st, i: k.op("v_pk_add_f32", P(tt), P(tt), P(18)))
            for i in range(8): k.op("v_rcp_f32", V(t + i), V(t + i))
            each(lambda a, tt, st, i: k.op("v_pk_mul_f32", P(a), P(a), P(tt)))
            a0, a1 = macc(nb, rbs[0]), macc(nb, rbs[1])
            k.op("v_cvt_pk_bf16_f32", V(a0), V(a0), V(a0 + 1))
            k.op("v_cvt_pk_bf16_f32", V(a0 + 1), V(a0 + 2), V(a0 + 3))
            k.op("v_cvt_pk_bf16_f32", V(a0 + 2), V(a1), V(a1 + 1))
            k.op("v_cvt_pk_bf16_f32", V(a0 + 3), V(a1 + 2), V(a1 + 3))
            k.op("s_add_u32", S(sT0), S(sHr + 2 * rp), S(sT2))
            k.nop(1)
            k.op("v_permlane16_swap_b32", V(a0), V(a0 + 2))
            k.op("v_permlane16_swap_b32", V(a0 + 1), V(a0 + 3))
            k.op("buffer_store_dwordx4", V(a0, 4), V(15), S(sWS, 4), S(sT0), mods="offen" + (" sc1" if fuse3 else ""))
        k.label(lab)
    k.op("v_mov_b32", V(16), f32(QSCALE)); k.op("v_mov_b32", V(17), f32(QSCALE))
    def Qreg(sub, qb, ds): return QR + sub * 32 + qb * 16 + ds * 4
    for rb in range(4):
        for ds in range(4):
            X = Qreg(rb >> 1, rb & 1, ds)
            for half in range(2):
                a = qacc(2 * ds + half, rb)
                for i in (0, 2): k.op("v_pk_mul_f32", P(a + i), P(a + i), P(16))
                k.op("v_cvt_pk_bf16_f32", V(X + 2 * half), V(a), V(a + 1))
                k.op("v_cvt_pk_bf16_f32", V(X + 2 * half + 1), V(a + 2), V(a + 3))
    stp.stamp()
    def Ngm(sub, qb): return NEGM + sub * 8 + qb * 4
    def Lac(sub, qb): return 112 + sub * 8 + qb * 4
    ON1 = 24
    k.op("s_and_b32", S(sT0), S(sW), 1)
    k.op("s_lshl_b32", S(sT0), S(sT0), 5)
    k.op("v_add_u32", V(vZ), S(sT0), V(l15))
    k.op("v_lshlrev_b32", V(15), 2, V(g))
    k.op("v_sub_u32", V(vZ), V(vZ), V(15))
    k.op("v_mov_b32", V(vNinf), f32(-1e30))
    for i in range(4): k.op("v_mov_b32", V(ON1 + i), "0x3f803f80")
    for i in range(16): k.op("v_mov_b32", V(112 + i), 0)
    k.op("s_mov_b32", S(sThr), f32(thr))
    k.op("s_mov_b32", S(sP2), 0)
    k.op("s_mov_b32", S(sNx), 98304)
    k.op("s_mov_b32", S(sTK), 4 * 16384)
    k.op("s_mov_b32", S(sT), 2)

    def mf(d, a, b, c): k.op("v_mfma_f32_16x16x32_bf16", d, a, b, c)
    def mask_block(sub, par):
        s0 = Sreg(sub, par)
        for e0 in range(0, 32, 2):
            for u in range(2):
                e = e0 + u; qb, kb, r = e >> 4, (e >> 2) & 3, e & 3
                k.op("v_cmp_gt_i32", S(sM + 2 * u, 2), 16 * kb + r - 16 * qb, V(vZ))
            k.nop(1)
            for u in range(2):
                k.op("v_cndmask_b32", V(s0 + e0 + u), V(s0 + e0 + u), V(vNinf), S(sM + 2 * u, 2))
    def ereg(n):
        k32, qb, j = n >> 4, (n >> 3) & 1, n & 7
        return qb * 16 + k32 * 8 + j
    def soft_exp(sub, par, n):
        r = Sreg(sub, par) + ereg(n)
        k.op("v_exp_f32", V(r), V(r))
    def soft_cvt(sub, par, n):
        e = n - 2
        r = Sreg(sub, par) + ereg(e)
        d = Sreg(sub, par) + (ereg(e) & ~7) + ((e & 7) >> 1)
        k.op("v_cvt_pk_bf16_f32", V(d), V(r), V(r + 1))
    def rd(frag, isV):
        k.op("ds_read_b128", A(FR + frag * 4, 4), V(vA), mods=f"offset:{(16384 if isV else 0) + frag*1024}")
    def ldK(i): return lambda: k.op("buffer_load_dwordx4", V(vD), S(sK, 4), S(sTK), mods=f"offen offset:{i*1024} lds")
    def ldV(i): return lambda: k.op("buffer_load_dwordx4", V(vD), S(sV, 4), S(sTK), mods=f"offen offset:{i*1024} lds")
    m0K = lambda: k.op("s_add_u32", "m0", S(sP2), S(sW4k))
    m0V = lambda: k.op("s_add_u32", "m0", "m0", 16384)
    advT = lambda: k.op("s_add_u32", S(sTK), S(sTK), 16384)
    advP = lambda: k.op("s_add_u32", S(sP2), S(sP2), 32768)
    wrapP = lambda: (k.op("s_cmp_eq_u32", S(sP2), 163840), k.op("s_cselect_b32", S(sP2), 0, S(sP2)))
    XA = {1: [ldK(2)], 5: [ldK(3)], 7: [m0V], 9: [ldV(0)], 13: [ldV(1)]}
    XB = {1: [ldV(2)], 5: [ldV(3)], 7: [advT, advP], 9: [wrapP, m0K], 11: [ldK(0)], 15: [ldK(1)]}
    WP = 4
    def phaseA(par, qk, ex):
        if not qk:
            k.wait(lgkm=0)
            for f in range(DA): rd(f, True)
            for n in range(16, 32):
                for sub in ex:
                    soft_exp(sub, par, n)
                    if n % 2 == 0: soft_cvt(sub, par, n)
            return
        for f in range(16):
            kb, ds = f >> 2, f & 3
            if f % WP == 0: k.wait(lgkm=DA - WP)
            for j, sub in enumerate(qk):
                xs = ex if len(qk) == 1 else [sub]
                for qb in range(2):
                    d = V(Sreg(sub, 1 - par) + qb * 16 + kb * 4, 4)
                    mf(d, A(FR + f * 4, 4), V(Qreg(sub, qb, ds), 4), V(Ngm(sub, qb), 4) if ds == 0 else d)
                    if qb == 0:
                        for x in xs: soft_exp(x, par, 16 + f)
                if j == 0:
                    nf = f + DA
                    if nf < 16: rd(nf, False)
                    else: rd(nf - 16, True)
                if f % 2 == 0:
                    for x in xs: soft_cvt(x, par, 16 + f)
                if j == len(qk) - 1:
                    for fn in XA.get(f, []): fn()
    def phaseB(par, pv, exn, bar="always", tailops=()):
        extra = list(tailops)
        for f in range(16):
            k32, db = f >> 3, f & 7
            if f % WP == 0: k.wait(lgkm=DA - WP if bar == "always" else max(0, min(DA - WP, 16 - f - WP)))
            for j, sub in enumerate(pv):
                for qb in range(2):
                    d = A(OA + sub * 64 + (db * 2 + qb) * 4, 4)
                    mf(d, A(FR + f * 4, 4), V(Sreg(sub, par) + qb * 16 + k32 * 8, 4), d)
                    if qb == 0 and sub in exn: soft_exp(sub, 1 - par, f)
                if j == 0:
                    nf = f + DA
                    if nf == 16:
                        if bar == "always":
                            k.wait(vm=16); k.op("s_barrier")
                        elif bar == "w01":
                            lab = k.newlabel("nobar")
                            k.op("s_cmp_ge_u32", S(sW), 2); k.op("s_cbranch_scc1", lab)
                            k.wait(vm=8); k.op("s_barrier")
                            k.label(lab)
                        k.op("v_add_u32", V(vA), S(sNx), V(vL16))
                    if bar == "always" or nf < 16:
                        if nf < 16: rd(nf, True)
                        else: rd(nf - 16, False)
                if f == 0: soft_cvt(sub, par, 32)
                elif f % 2 == 0 and sub in exn: soft_cvt(sub, 1 - par, f)
                if f % 4 == 3:
                    qb = (f >> 2) & 1
                    d = V(Lac(sub, qb), 4)
                    mf(d, V(ON1, 4), V(Sreg(sub, par) + qb * 16 + k32 * 8, 4), d)
                if j == len(pv) - 1 and bar == "always":
                    for fn in XB.get(f, []): fn()
                    if f in (3, 13, 14) and extra: extra.pop(0)()
        for fn in extra: fn()
    def nx_items():
        return [lambda: k.op("s_add_u32", S(sT), S(sT), 1),
                lambda: k.op("s_add_u32", S(sNx), S(sNx), 32768),
                lambda: (k.op("s_cmp_eq_u32", S(sNx), 163840), k.op("s_cselect_b32", S(sNx), 0, S(sNx)))]
    def rowmax(sub, par, qb, dst):
        s0 = Sreg(sub, par) + 16 * qb
        k.op("v_max3_f32", V(dst), V(s0), V(s0 + 1), V(s0 + 2))
        for e in range(3, 15, 2): k.op("v_max3_f32", V(dst), V(dst), V(s0 + e), V(s0 + e + 1))
        k.op("v_max_f32", V(dst), V(dst), V(s0 + 15))
        for sw in ("v_permlane16_swap_b32", "v_permlane32_swap_b32"):
            k.op("v_mov_b32", V(vT + 1), V(dst))
            k.nop(2)
            k.op(sw, V(dst), V(vT + 1))
            k.op("v_max_f32", V(dst), V(dst), V(vT + 1))
    slow_sites = {}
    def epilogue(sub, site):
        t = Sreg(sub, 0)
        k.nop(8)
        k.op("v_max_f32", V(vT), V(Lac(sub, 0)), V(Lac(sub, 1)))
        k.op("v_add_f32", V(vT + 1), V(Lac(sub, 0)), V(Lac(sub, 1)))
        k.op("v_cmp_nle_f32", "vcc", V(vT + 1), V(21))
        k.op("s_mov_b32", S(sRet), site)
        k.op("s_cbranch_vccnz", f"k2_slow_{sub}")
        lab = f"k2_ret_{sub}_{site}"
        k.label(lab)
        slow_sites.setdefault(sub, []).append((site, lab))
        k.op("v_rcp_f32", V(vT + 3), V(Lac(sub, 0)))
        k.op("v_rcp_f32", V(vT + 4), V(Lac(sub, 1)))
        for qb in range(2):
            if qb: k.op("s_add_u32", S(sT0), S(sCa if sub == 0 else sCb), 131072)
            for ks in range(4):
                b = t + (qb * 4 + ks) * 8
                for half in range(2):
                    for i in range(4):
                        k.op("v_accvgpr_read_b32", V(b + 4 * half + i), A(OA + sub * 64 + ((2 * ks + half) * 2 + qb) * 4 + i))
                for i in range(0, 8, 2):
                    k.op("v_pk_mul_f32", P(b + i), P(b + i), P(vT + 3), mods="op_sel_hi:[1,0]" if qb == 0 else "op_sel:[0,1]")
                for i in range(4): k.op("v_cvt_pk_bf16_f32", V(b + i), V(b + 2 * i), V(b + 2 * i + 1))
                k.op("buffer_store_dwordx4", V(b, 4), V(vL16), S(sWS, 4), S(sT0 if qb else (sCa if sub == 0 else sCb)),
                     mods=f"offen offset:{ks*1024}" + (" sc1" if fuse3 else ""))
    k.op("v_mov_b32", V(21), S(sThr))
    k.op("v_add_u32", V(vT), 32768, V(vL16))
    for f in range(16): k.op("ds_read_b128", A(f * 4, 4), V(vT), mods=f"offset:{f*1024}")
    zi = 0
    for f in range(16):
        kb, ds = f >> 2, f & 3
        k.wait(lgkm=15 - f)
        for sub in range(2):
            for qb in range(2):
                d = V(Sreg(sub, 0) + qb * 16 + kb * 4, 4)
                mf(d, A(f * 4, 4), V(Qreg(sub, qb, ds), 4), "0" if ds == 0 else d)
                for _ in range(2):
                    k.op("v_accvgpr_write_b32", A(OA + zi), 0); zi += 1
    k.wait(vm=12)
    k.op("s_barrier")
    m0K()
    k.op("v_add_u32", V(vA), 65536, V(vL16))
    ldK(0)(); ldK(1)()
    for f in range(DA): rd(f, False)
    lab = k.newlabel("nomask0")
    k.op("s_cmp_lg_u32", S(sNa), 1); k.op("s_cbranch_scc1", lab)
    mask_block(0, 0)
    k.label(lab)
    for sub in range(2):
        for qb in range(2):
            rowmax(sub, 0, qb, vT + 2)
            n0 = Ngm(sub, qb)
            for i in range(4): k.op("v_sub_f32", V(n0 + i), 0, V(vT + 2))
            for e in range(0, 16, 2): k.op("v_pk_add_f32", P(Sreg(sub, 0) + 16 * qb + e), P(Sreg(sub, 0) + 16 * qb + e), P(n0))
    for n in range(16):
        for sub in range(2):
            soft_exp(sub, 0, n)
        for sub in range(2):
            if n % 2 == 0 and n: soft_cvt(sub, 0, n)
    stp.stamp()
    k.op("s_cmp_lt_u32", 1, S(sNa))
    k.op("s_cbranch_scc0", "k2_DL0")
    def pf_k3():
        sp = sWQ
        k.op("s_and_b32", S(sT0), "s2", 7)
        k.op("s_lshr_b32", S(sT0), S(sT0), 1)
        k.op("s_mul_i32", S(sT1), S(sT0), 43 * 32768)
        k.op("s_cmp_lt_u32", S(sT0), 3)
        k.op("s_cselect_b32", S(sp), S(86), S(96))
        k.op("s_cselect_b32", S(sp + 1), S(87), S(97))
        k.op("s_mov_b32", S(sp + 2), hex(SZ["w2"]))
        k.op("s_cselect_b32", S(sp + 2), hex(SZ["wo"]), S(sp + 2))
        k.op("s_cselect_b32", S(sT1), S(sT1), 0)
        k.op("s_and_b32", S(sp + 1), S(sp + 1), "0xffff")
        k.op("s_mov_b32", S(sp + 3), "0x20000")
        k.op("s_lshr_b32", S(sT2), "s2", 3)
        k.op("s_lshl_b32", S(sT2), S(sT2), 2)
        k.op("s_add_u32", S(sT2), S(sT2), S(sW))
        k.op("s_mul_i32", S(sT0), S(sT2), 11264)
        k.op("s_add_u32", S(sT1), S(sT1), S(sT0))
        k.op("v_lshlrev_b32", V(vT), 7, V(vL))
        k.op("buffer_load_dword", V(130), V(vT), S(sp, 4), S(sT1), mods="offen", dummy=True)
        k.op("v_and_b32", V(vT + 2), 31, V(vL))
        k.op("v_lshlrev_b32", V(vT + 2), 7, V(vT + 2))
        k.op("s_add_u32", S(sT1), S(sT1), 8192)
        k.op("buffer_load_dword", V(130), V(vT + 2), S(sp, 4), S(sT1), mods="offen", dummy=True)
        k.op("s_lshl_b32", S(sT2), S(sT2), 13)
        pf_code(k, sW1, "k3_kernel", "k3_end-k3_kernel", vT, vL, sT2, 130)
    ool = []
    def maskif(sub, par):
        lab, lab2 = k.newlabel("nomask"), k.newlabel("domask")
        k.op("s_cmp_eq_u32", S(sT), S(sNa if sub == 0 else sNb)); k.op("s_cbranch_scc1", lab2)
        k.label(lab)
        ool.append((lab2, lab, sub, par))
    for par in range(2):
        k.label(f"k2_DD{par}")
        phaseA(par, [0, 1], [0, 1])
        maskif(0, 1 - par)
        phaseB(par, [0, 1], [0, 1], tailops=nx_items())
        k.op("s_cmp_le_u32", S(sT), S(sNa))
        k.op("s_cbranch_scc0", f"k2_DL{1-par}")
        if par == 1: k.op("s_branch", "k2_DD0")
    for par in range(2):
        k.label(f"k2_DL{par}")
        phaseA(par, [1], [0, 1])
        phaseB(par, [0, 1], [1], tailops=nx_items())
        epilogue(0, par)
        k.op("s_branch", f"k2_SS{1-par}")
    for par in range(2):
        k.label(f"k2_SS{par}")
        phaseA(par, [1], [1])
        maskif(1, 1 - par)
        phaseB(par, [1], [1], tailops=nx_items())
        k.op("s_cmp_le_u32", S(sT), S(sNb))
        k.op("s_cbranch_scc0", f"k2_SL{1-par}")
        if par == 1: k.op("s_branch", "k2_SS0")
    for par in range(2):
        k.label(f"k2_SL{par}")
        if pf3: pf_k3()
        phaseA(par, [], [1])
        k.nop(2)
        phaseB(par, [1], [], bar="w01")
        if par == 0: k.op("s_branch", "k2_fin")
    k.label("k2_fin")
    stp.stamp()
    epilogue(1, 0)
    if stamps:
        k.wait(vm=0, lgkm=0)
        stp.stamp()
        stp.flush(sWS, sW, 13)
    if fuse3:
        k.op("s_lshl_b32", S(sT0), S(sP), 8)
        k.op("s_lshl_b32", S(sT1), S(sH), 2)
        k.op("s_add_u32", S(sT0), S(sT0), S(sT1))
        k.op("s_add_u32", S(96), S(sT0), FLAG2_OFF)
        k.wait(lgkm=0)
        k.raw("  s_branch k3_kernel")
    k.op("s_endpgm")
    for (lab2, lab, sub, par) in ool:
        k.label(lab2)
        k.nop(8)
        mask_block(sub, par)
        k.op("s_branch", lab)
    sU, sUo = 60, 61
    for sub, sites in sorted(slow_sites.items()):
        s0 = Sreg(sub, 0)
        m = [Ngm(sub, 0), Ngm(sub, 1)]
        k.label(f"k2_slow_{sub}")
        k.nop(8)
        for i in range(64): k.op("v_accvgpr_write_b32", A(OA + sub * 64 + i), 0)
        for qb in range(2):
            k.op("v_mov_b32", V(m[qb]), f32(-1e30))
            for i in range(4): k.op("v_mov_b32", V(Lac(sub, qb) + i), 0)
        k.op("s_mov_b32", S(sU), 1)
        k.op("s_mov_b32", S(sUo), 0)
        loop = f"k2_slowloop_{sub}"
        k.label(loop)
        for c in range(4):
            k.op("s_add_u32", S(sLd), S(sUo), c * 4096)
            for i in range(4): k.op("buffer_load_dwordx4", A((c * 4 + i) * 4, 4), V(vL16), S(sK, 4), S(sLd), mods=f"offen offset:{i*1024}")
        k.wait(vm=0)
        for f in range(16):
            kb, ds = f >> 2, f & 3
            for qb in range(2):
                d = V(s0 + qb * 16 + kb * 4, 4)
                mf(d, A(f * 4, 4), V(Qreg(sub, qb, ds), 4), "0" if ds == 0 else d)
        for c in range(4):
            k.op("s_add_u32", S(sLd), S(sUo), c * 4096 + 16384)
            for i in range(4): k.op("buffer_load_dwordx4", A((c * 4 + i) * 4, 4), V(vL16), S(sV, 4), S(sLd), mods=f"offen offset:{i*1024}")
        lab = k.newlabel("snomask")
        k.op("s_cmp_lg_u32", S(sU), S(sNa if sub == 0 else sNb)); k.op("s_cbranch_scc1", lab)
        mask_block(sub, 0)
        k.label(lab)
        for qb in range(2):
            al = m[qb] + 1
            rowmax(sub, 0, qb, vT + 3)
            k.op("v_max_f32", V(vT + 3), V(vT + 3), V(m[qb]))
            k.op("v_sub_f32", V(al), V(m[qb]), V(vT + 3))
            k.op("v_mov_b32", V(m[qb]), V(vT + 3))
            k.op("v_exp_f32", V(al), V(al))
            for e in range(16): k.op("v_sub_f32", V(s0 + 16 * qb + e), V(s0 + 16 * qb + e), V(m[qb]))
            for i in range(4): k.op("v_mul_f32", V(Lac(sub, qb) + i), V(Lac(sub, qb) + i), V(al))
            for db in range(8):
                for i in range(4):
                    ar = OA + sub * 64 + (db * 2 + qb) * 4 + i
                    k.op("v_accvgpr_read_b32", V(vT + (i & 1)), A(ar))
                    k.op("v_mul_f32", V(vT + (i & 1)), V(vT + (i & 1)), V(al))
                    k.op("v_accvgpr_write_b32", A(ar), V(vT + (i & 1)))
        for n in range(33):
            if n < 32: soft_exp(sub, 0, n)
            else: k.nop(1)
            if n % 2 == 0 and n: soft_cvt(sub, 0, n)
        k.wait(vm=0)
        k.nop(1)
        for f in range(16):
            k32, db = f >> 3, f & 7
            for qb in range(2):
                d = A(OA + sub * 64 + (db * 2 + qb) * 4, 4)
                mf(d, A(f * 4, 4), V(s0 + qb * 16 + k32 * 8, 4), d)
            if f % 4 == 3:
                qb = (f >> 2) & 1
                d = V(Lac(sub, qb), 4)
                mf(d, V(ON1, 4), V(s0 + qb * 16 + k32 * 8, 4), d)
        k.op("s_add_u32", S(sUo), S(sUo), 16384)
        k.op("s_add_u32", S(sU), S(sU), 1)
        k.nop(8)
        k.op("s_cmp_le_u32", S(sU), S(sNa if sub == 0 else sNb))
        k.op("s_cbranch_scc1", loop)
        for (site, lab) in sites[:-1]:
            k.op("s_cmp_eq_u32", S(sRet), site); k.op("s_cbranch_scc1", lab)
        k.op("s_branch", sites[-1][1])
    k.label("k2_end")
    k.op("s_endpgm")
    return k

if __name__ == "__main__":
    k = build_k2()
    for e in k.check_hazards(): print(e)
    for e in k.check_waits(): print(e)
    print(k.maxregs(), len(k.ins))
```

```python
from common import *
LDS = 163840
PART_OFF = 64 << 20
NKS = 43
def build_k3(stamps=False, WIN=0, NR=5, q2rate=2, nodma=False, nomma=False, fused=False):
    k = Kern("k3_kernel")
    vq, lq = Q(k, "vmcnt", 63), Q(k, "lgkmcnt", 15)
    stp = Stamps(k, stamps, 62, 2, lq, maxn=8)
    sWS, sWm, sX, sO, sB2, sDb = 8, 12, 16, 20, 24, 84
    sW, sMt, sNt, sT0, sT1, sT2 = 28, 29, 30, 31, 32, 33
    sAo, sS, sWo, sCnt, sMa, sMw = 34, 35, 36, 37, 38, 39
    sRot, sSt, sAc, sWc, sPw, sPr, sTile = 52, 53, 54, 55, 56, 57, 58
    vL, vL16 = 1, 2
    VA, VW = 4, 6
    TA = 8
    AA = 24
    g, l15, r_, cc, g1, t0, t1 = 26, 27, 28, 29, 30, 31, 3
    vOo = 32
    XV, BV = 34, 42
    ACC = 52
    AF = 116
    WF = 148
    k.op("s_cmp_ge_u32", "s2", 256)
    k.op("s_cbranch_scc1", "k3_end")
    k.op("s_load_dwordx2", S(40, 2), S(0, 2), KA["x"])
    k.op("s_load_dwordx2", S(42, 2), S(0, 2), KA["wo"])
    k.op("s_load_dwordx4", S(44, 4), S(0, 2), KA["w2"])
    k.op("s_load_dwordx4", S(48, 4), S(0, 2), KA["out"])
    k.op("s_load_dwordx2", S(88, 2), S(0, 2), KA["ws"])
    k.op("v_and_b32", V(vL), 63, "v0")
    k.op("v_lshrrev_b32", V(t0), 6, "v0")
    k.op("s_and_b32", S(sT0), "s2", 7)
    k.op("v_readfirstlane_b32", S(sW), V(t0))
    k.op("s_lshr_b32", S(sS), S(sT0), 1)
    k.op("s_and_b32", S(sT0), S(sT0), 1)
    k.op("s_lshr_b32", S(sT1), "s2", 3)
    k.op("s_and_b32", S(sT2), S(sT1), 7)
    k.op("s_lshl_b32", S(sMt), S(sT0), 3)
    k.op("s_add_u32", S(sMt), S(sMt), S(sT2))
    k.op("s_lshr_b32", S(sNt), S(sT1), 3)
    k.op("s_add_u32", S(sRot), S(sMt), S(sNt))
    k.op("s_and_b32", S(sRot), S(sRot), 3)
    k.op("s_lshl_b32", S(sTile), S(sMt), 2)
    k.op("s_add_u32", S(sTile), S(sTile), S(sNt))
    k.op("v_lshlrev_b32", V(vL16), 4, V(vL))
    k.op("v_lshrrev_b32", V(g), 4, V(vL))
    k.op("v_and_b32", V(l15), 15, V(vL))
    k.op("v_bfe_u32", V(r_), V(vL), 2, 2)
    k.op("v_and_b32", V(cc), 3, V(vL))
    k.op("v_and_b32", V(g1), 1, V(g))
    k.op("s_mul_i32", S(sWo), S(sS), NKS)
    k.op("s_mov_b32", S(sT0), 44032)
    k.op("s_mov_b32", S(sAo), HF_OFF)
    k.op("s_cmp_lt_u32", S(sS), 3)
    k.op("s_cselect_b32", S(sT0), 131072, S(sT0))
    k.op("s_cselect_b32", S(sAo), CTX_OFF, S(sAo))
    k.op("s_cselect_b32", S(sWo), S(sWo), 0)
    k.op("s_cselect_b64", "vcc", "-1", "0")
    k.op("s_cmp_eq_u32", S(sS), 2)
    k.op("s_cselect_b32", S(sCnt), 41, 42)
    k.op("s_lshl_b32", S(sT1), S(sWo), 10)
    k.op("s_add_u32", S(sAo), S(sAo), S(sT1))
    k.op("s_lshl_b32", S(sWo), S(sWo), 15)
    k.op("s_lshl_b32", S(sT2), S(sMt), 3)
    k.op("s_lshl_b32", S(sT1), S(sW), 1)
    k.op("s_add_u32", S(sT2), S(sT2), S(sT1))
    k.op("s_mul_i32", S(sT2), S(sT2), S(sT0))
    k.op("s_add_u32", S(sAo), S(sAo), S(sT2))
    k.op("v_mov_b32", V(VA), V(vL16))
    k.op("s_sub_u32", S(sT0), S(sT0), 1024)
    k.op("v_add_u32", V(VA + 1), S(sT0), V(vL16))
    k.op("v_lshlrev_b32", V(t0), 1, V(g))
    k.op("v_xor_b32", V(t0), V(t0), V(l15))
    k.op("v_lshlrev_b32", V(t0), 4, V(t0))
    k.op("v_lshl_add_u32", V(t0), V(g), 10, V(t0))
    k.op("s_lshl_b32", S(sT1), S(sNt), 8)
    k.op("s_lshl_b32", S(sT2), S(sW), 13)
    k.op("s_add_u32", S(sT1), S(sT1), S(sT2))
    k.op("v_add_u32", V(VW), S(sT1), V(t0))
    k.op("s_and_b32", S(sT1), S(sW), 1)
    k.op("s_lshl_b32", S(sT1), S(sT1), 7)
    k.op("s_cmp_lt_u32", S(sS), 3)
    k.op("s_cselect_b32", S(sT2), 128, S(sT1))
    k.op("s_cselect_b32", S(sT1), 0, S(sT1))
    k.op("v_xor_b32", V(VW + 1), S(sT2), V(VW))
    k.op("v_xor_b32", V(VW), S(sT1), V(VW))
    k.op("v_add_u32", V(VW + 1), 4096 - 1024, V(VW + 1))
    k.op("s_lshl_b32", S(sMa), S(sW), 11)
    k.op("s_add_u32", S(sMw), S(sMa), 8192)
    k.wait(lgkm=0)
    stp.stamp()
    k.op("s_mov_b32", S(sWS), S(88))
    k.op("s_and_b32", S(sWS + 1), S(89), "0xffff")
    k.op("s_mov_b32", S(sWS + 2), hex(80 << 20))
    k.op("s_mov_b32", S(sWS + 3), "0x20000")
    k.op("s_cmp_lt_u32", S(sS), 3)
    k.op("s_cselect_b32", S(sWm), S(42), S(44))
    k.op("s_cselect_b32", S(sWm + 1), S(43), S(45))
    k.op("s_mov_b32", S(sWm + 2), hex(SZ["w2"]))
    k.op("s_cselect_b32", S(sWm + 2), hex(SZ["wo"]), S(sWm + 2))
    k.op("s_and_b32", S(sWm + 1), S(sWm + 1), "0xffff")
    k.op("s_mov_b32", S(sWm + 3), "0x20000")
    NST = 22
    def nks_of(st): return 2 if st < 21 else 1
    def issue_items(st, part="both"):
        it = []
        sl = (st % NR) * 32768
        def addr():
            if st < 21:
                if WIN == 0:
                    skew_stage(k, sSt, sRot, st, 21, sWc)
                elif st < 20:
                    k.op("s_add_u32", S(sSt), S(sRot), st % WIN)
                    k.op("s_and_b32", S(sSt), S(sSt), WIN - 1)
                    k.op("s_add_u32", S(sSt), S(sSt), st // WIN * WIN)
                else:
                    k.op("s_mov_b32", S(sSt), 20)
                k.op("s_lshl_b32", S(sWc), S(sSt), 16)
                k.op("s_add_u32", S(sWc), S(sWc), S(sWo))
                k.op("s_lshl_b32", S(sAc), S(sSt), 11)
                k.op("s_add_u32", S(sAc), S(sAc), S(sAo))
            else:
                k.op("s_add_u32", S(sWc), S(sWo), st * 65536)
                k.op("s_lshl_b32", S(sAc), S(sCnt), 10)
                k.op("s_add_u32", S(sAc), S(sAc), S(sAo))
        it.append(addr)
        for u in range(nks_of(st)):
            if part != "a":
                it.append(lambda u=u: k.op("s_add_u32", "m0", S(sMw), sl + u * 16384))
                if u: it.append(lambda: k.op("s_add_u32", S(sWc), S(sWc), 32768))
                else: it.append(lambda: k.op("s_nop", 0))
                for j in range(2):
                    def w(j=j):
                        k.op("buffer_load_dwordx4", V(VW + j), S(sWm, 4), S(sWc), mods=f"offen offset:{j*1024} lds"); vq.issue(("s", st))
                    it.append(w)
            if part != "w":
                it.append(lambda u=u: k.op("s_add_u32", "m0", S(sMa), sl + u * 16384))
                if u: it.append(lambda: k.op("s_add_u32", S(sAc), S(sAc), 1024))
                else: it.append(lambda: k.op("s_nop", 0))
                for j in range(2):
                    def a(j=j):
                        k.op("buffer_load_dwordx4", V(VA + j), S(sWS, 4), S(sAc), mods=f"offen offset:{j*1024} lds"); vq.issue(("s", st))
                    it.append(a)
        return it
    if not fused:
        for st in range(NR - 2):
            for f in issue_items(st): f()
    load_srd(k, sX, "x", 40); load_srd(k, sO, "out", 48); load_srd(k, sB2, "b2", 46)
    k.op("s_mov_b32", S(sDb), S(50))
    k.op("s_and_b32", S(sDb + 1), S(51), "0xffff")
    k.op("s_mov_b32", S(sDb + 2), 256)
    k.op("s_mov_b32", S(sDb + 3), "0x20000")
    k.op("v_lshlrev_b32", V(t0), 2, V(g))
    k.op("v_lshlrev_b32", V(t1), 3, V(g))
    k.op("v_cndmask_b32", V(t0), V(t1), V(t0), "vcc")
    k.op("v_add_u32", V(t0), V(t0), V(r_))
    k.op("v_lshlrev_b32", V(t0), 8, V(t0))
    k.op("v_lshl_add_u32", V(t0), V(cc), 3, V(t0))
    k.op("v_add_u32", V(t0), 8192, V(t0))
    k.op("v_lshl_or_b32", V(t1), V(g1), 2, V(r_))
    k.op("s_and_b32", S(sT1), S(sW), 1)
    k.op("s_lshl_b32", S(sT1), S(sT1), 2)
    k.op("v_xor_b32", V(t1), S(sT1), V(t1))
    k.op("s_mov_b32", S(sT0), 1024)
    k.op("s_cmp_lt_u32", S(sS), 3)
    k.op("s_cselect_b32", S(sT0), 4096, S(sT0))
    for nb in range(4):
        k.op("v_xor_b32", V(33), nb, V(t1))
        k.op("v_lshl_add_u32", V(TA + 2 * nb), V(33), 5, V(t0))
        k.op("v_add_u32", V(TA + 2 * nb + 1), S(sT0), V(TA + 2 * nb))
    for i in range(8): k.op("v_add_u32", V(TA + 8 + i), 65536, V(TA + i))
    for i in range(8): k.op("v_add_u32", V(180 + i), 131072, V(TA + i))
    k.op("s_lshr_b32", S(sT1), S(sW), 1)
    k.op("s_lshl_b32", S(sT1), S(sT1), 12)
    k.op("v_add_u32", V(AA), S(sT1), V(vL16))
    k.op("v_add_u32", V(AA + 1), 65536, V(AA))
    k.op("v_add_u32", V(50), 131072, V(AA))
    k.op("s_lshl_b32", S(sT0), S(sMt), 17)
    k.op("s_lshr_b32", S(sT1), S(sW), 1)
    k.op("s_lshl_b32", S(sT1), S(sT1), 16)
    k.op("s_add_u32", S(sT0), S(sT0), S(sT1))
    k.op("s_lshl_b32", S(sT1), S(sS), 14)
    k.op("s_add_u32", S(sT0), S(sT0), S(sT1))
    k.op("s_lshl_b32", S(sT1), S(sNt), 8)
    k.op("s_and_b32", S(sT2), S(sW), 1)
    k.op("s_lshl_b32", S(sT2), S(sT2), 7)
    k.op("s_add_u32", S(sT1), S(sT1), S(sT2))
    k.op("s_add_u32", S(sT0), S(sT0), S(sT1))
    k.op("v_lshlrev_b32", V(vOo), 10, V(l15))
    k.op("v_lshl_add_u32", V(vOo), V(g), 3, V(vOo))
    k.op("v_add_u32", V(vOo), S(sT0), V(vOo))
    k.op("v_lshlrev_b32", V(33), 3, V(g))
    def xb_loads():
        for u in range(4):
            k.op("buffer_load_dwordx2", V(XV + 2 * u, 2), V(vOo), S(sX, 4), 0, mods=f"offen offset:{32*u}"); vq.issue("xb")
            k.op("buffer_load_dwordx2", V(BV + 2 * u, 2), V(33), S(sB2, 4), S(59), mods=f"offen offset:{32*u}"); vq.issue("xb")
    k.op("s_mov_b32", S(59), S(sT1))
    if not fused: xb_loads()
    k.op("s_lshl_b32", S(sPr), S(sTile), 17)
    k.op("s_lshl_b32", S(sT1), S(sW), 13)
    k.op("s_add_u32", S(sPr), S(sPr), S(sT1))
    k.op("s_add_u32", S(sPr), S(sPr), PART_OFF)
    k.op("s_lshl_b32", S(sT1), S(sS), 15)
    k.op("s_add_u32", S(sPw), S(sPr), S(sT1))
    k.op("s_lshl_b32", S(sT1), S(sS), 11)
    k.op("s_add_u32", S(sPr), S(sPr), S(sT1))
    if fused:
        k.wait(vm=0)
        k.op("s_barrier")
        lab = k.newlabel("noflag")
        k.op("s_cmp_lg_u32", S(sW), 0); k.op("s_cbranch_scc1", lab)
        k.op("v_mov_b32", V(ACC), 0)
        k.op("v_mov_b32", V(ACC + 1), 1)
        k.op("s_mov_b64", "exec", 1)
        k.op("buffer_store_dword", V(ACC + 1), V(ACC), S(sWS, 4), S(96), mods="offen sc1")
        k.op("s_mov_b64", "exec", -1)
        k.op("buffer_inv", mods="sc1")
        k.label(lab)
        stp.stamp()
        for st in range(NR - 2):
            for f in issue_items(st, "w"): f()
        xb_loads()
        lab = k.newlabel("nopoll")
        k.op("s_cmp_lg_u32", S(sW), 0); k.op("s_cbranch_scc1", lab)
        k.op("s_sub_u32", S(sT1), 15, S(sMt))
        k.op("s_min_u32", S(sT0), S(sMt), S(sT1))
        k.op("s_lshl_b32", S(sT0), S(sT0), 8)
        k.op("s_add_u32", S(sT0), S(sT0), FLAG2_OFF)
        k.op("s_mov_b32", S(92), "0x1fffffff")
        k.op("s_cmp_eq_u32", S(sS), 0); k.op("s_cselect_b32", S(92), "0x7ff", S(92))
        k.op("s_cmp_eq_u32", S(sS), 1); k.op("s_cselect_b32", S(92), "0x3ffc00", S(92))
        k.op("s_cmp_eq_u32", S(sS), 2); k.op("s_cselect_b32", S(92), "0xffe00000", S(92))
        k.op("s_mov_b32", S(93), 0)
        k.op("v_lshlrev_b32", V(t0), 2, V(vL))
        k.op("s_mov_b32", S(sT1), 0)
        k.op("s_mov_b64", "exec", S(92, 2))
        k.label("k3_poll2")
        k.op("buffer_load_dword", V(t1), V(t0), S(sWS, 4), S(sT0), mods="offen sc1")
        k.op("s_add_u32", S(sT1), S(sT1), 1)
        k.wait(vm=0)
        k.op("v_cmp_ne_u32", "vcc", 1, V(t1))
        k.op("s_cmp_gt_u32", S(sT1), 2000000)
        k.op("s_cbranch_scc1", "k3_p2done")
        k.op("s_cbranch_vccnz", "k3_poll2")
        k.label("k3_p2done")
        k.op("s_mov_b64", "exec", -1)
        k.label(lab)
        k.op("s_barrier")
        stp.stamp()
        for st in range(NR - 2):
            for f in issue_items(st, "a"): f()
    steps = [(st, u) for st in range(NST) for u in range(nks_of(st))]
    q = FillQ(k)
    def rd_items(i):
        st, u = steps[i]
        off = (st % NR) * 32768 + u * 16384
        hi = off // 65536
        off -= 65536 * hi
        it = []
        if u == 0:
            def sw():
                vq.need(("s", st), cnt=None if nodma else [4 * nks_of(st)])
                k.op("s_barrier")
                q2.flush()
                if st + NR - 2 < NST and not nodma:
                    for f in issue_items(st + NR - 2): q2.add(f)
            it.append(sw)
        for x in range(4):
            def fa(rb=x):
                k.op("ds_read_b128", V(AF + (i % 2) * 16 + rb * 4, 4), V(AA + hi if hi < 2 else 50), mods=f"offset:{off + rb*1024}")
                lq.issue(("a", i))
            def fw(nb=x, j=0):
                k.op("ds_read_b64_tr_b16", V(WF + (i % 2) * 16 + nb * 4 + 2 * j, 2), V((TA + 8 * hi if hi < 2 else 180) + 2 * nb + j), mods=f"offset:{off}")
                lq.issue(("r", i, nb))
            if not nomma: it.append(fa)
        for nb in range(4):
            for j in range(2):
                if not nomma: it.append(lambda nb=nb, j=j: fw(nb, j))
        return it
    q2 = FillQ(k)
    for f in rd_items(0): f()
    stp.stamp()
    for i in range(len(steps)):
        if i + 1 < len(steps):
            for f in rd_items(i + 1): q.add(f)
        n = 0
        for nb in range(4):
            lq.need(("r", i, nb), ("a", i), cnt=None if nomma else [2, 4])
            for rb in range(4):
                d = V(ACC + 4 * (rb * 4 + nb), 4)
                if not nomma: k.op("v_mfma_f32_16x16x32_bf16", d, V(WF + (i % 2) * 16 + nb * 4, 4), V(AF + (i % 2) * 16 + rb * 4, 4), "0" if i == 0 else d)
                q.emit(1)
                if n % q2rate == q2rate - 1 or len(q) == 0: q2.emit(1)
                n += 1
        q.flush()
    q2.flush()
    stp.stamp()
    OWN = WF
    k.nop(8)
    for rb in range(4):
        l1, l2 = k.newlabel("own"), k.newlabel("nxt")
        a0 = ACC + 16 * rb
        k.op("s_cmp_eq_u32", S(sS), rb)
        k.op("s_cbranch_scc1", l1)
        for i in range(8): k.op("v_cvt_pk_bf16_f32", V(a0 + i), V(a0 + 2 * i), V(a0 + 2 * i + 1))
        if rb >= 2: k.op("s_add_u32", S(sT0), S(sPw), 4096)
        for p in range(2):
            k.op("buffer_store_dwordx4", V(a0 + 4 * p, 4), V(vL16), S(sWS, 4), S(sPw if rb < 2 else sT0), mods=f"offen offset:{(rb&1)*2048 + p*1024} sc1")
        k.op("s_branch", l2)
        k.label(l1)
        for i in range(16): k.op("v_mov_b32", V(OWN + i), V(a0 + i))
        k.label(l2)
    k.wait(vm=0)
    k.op("s_barrier")
    stp.stamp()
    k.op("s_cmp_lg_u32", S(sW), 0)
    k.op("s_cbranch_scc1", "k3_wait")
    k.op("s_lshl_b32", S(sT0), S(sTile), 8)
    k.op("s_add_u32", S(sT0), S(sT0), FLAG_OFF)
    k.op("s_lshl_b32", S(sT2), S(sS), 2)
    k.op("v_mov_b32", V(t0), 0)
    k.op("v_mov_b32", V(t1), 1)
    k.op("v_mov_b32", V(4), S(sT2))
    k.op("s_mov_b64", S(90, 2), "exec")
    k.op("s_mov_b64", "exec", 1)
    k.op("buffer_store_dword", V(t1), V(4), S(sWS, 4), S(sT0), mods="offen sc1")
    k.op("s_mov_b32", S(sT1), 0)
    k.label("k3_poll")
    k.op("buffer_load_dwordx4", V(4, 4), V(t0), S(sWS, 4), S(sT0), mods="offen sc1")
    k.op("s_add_u32", S(sT1), S(sT1), 1)
    k.wait(vm=0)
    k.op("v_and_b32", V(4), V(4), V(5))
    k.op("v_and_b32", V(6), V(6), V(7))
    k.op("v_and_b32", V(4), V(4), V(6))
    k.op("s_cmp_gt_u32", S(sT1), 2000000)
    k.op("v_readfirstlane_b32", S(sT2), V(4))
    k.op("s_cbranch_scc1", "k3_pdone")
    k.op("s_cmp_lg_u32", S(sT2), 1)
    k.op("s_cbranch_scc1", "k3_poll")
    k.label("k3_pdone")
    k.op("s_mov_b64", "exec", S(90, 2))
    k.label("k3_wait")
    k.op("s_barrier")
    stp.stamp()
    R = 8
    R = AF
    for src in range(4):
        l1 = k.newlabel("skp")
        k.op("s_cmp_eq_u32", S(sS), src)
        k.op("s_cbranch_scc1", l1)
        for p in range(2):
            k.op("buffer_load_dwordx4", V(R + src * 8 + 4 * p, 4), V(vL16), S(sWS, 4), S(sPr), mods=f"offen offset:{p*1024} sc1")
        k.label(l1)
        k.op("s_add_u32", S(sPr), S(sPr), 32768)
    def rb2(a):
        k.op("v_cvt_pk_bf16_f32", V(33), V(a), V(a + 1))
        k.op("v_lshlrev_b32", V(a), 16, V(33))
        k.op("v_and_b32", V(a + 1), "0xffff0000", V(33))
    def unpack(dst, src):
        k.op("v_lshlrev_b32", V(dst), 16, V(src))
        k.op("v_and_b32", V(dst + 1), "0xffff0000", V(src))
    XF, BF = 8, 164
    for i in range(8):
        unpack(XF + 2 * i, XV + i); unpack(BF + 2 * i, BV + i)
    k.wait(vm=0)
    F = ACC
    for src in range(4):
        l1, l2 = k.newlabel("own"), k.newlabel("nxt")
        k.op("s_cmp_eq_u32", S(sS), src)
        k.op("s_cbranch_scc1", l1)
        for i in range(8): unpack(F + 16 * src + 2 * i, R + src * 8 + i)
        k.op("s_branch", l2)
        k.label(l1)
        for i in range(16): k.op("v_mov_b32", V(F + 16 * src + i), V(OWN + i))
        k.label(l2)
    for i in range(16):
        k.op("v_add_f32", V(F + i), V(F + i), V(F + 16 + i))
        k.op("v_add_f32", V(F + i), V(F + i), V(F + 32 + i))
    for h in range(8):
        rb2(F + 2 * h); rb2(F + 48 + 2 * h)
    for i in range(16):
        k.op("v_add_f32", V(F + i), V(F + i), V(XF + i))
        k.op("v_add_f32", V(F + 48 + i), V(F + 48 + i), V(BF + i))
    for h in range(8):
        rb2(F + 2 * h); rb2(F + 48 + 2 * h)
    for i in range(16):
        k.op("v_add_f32", V(F + i), V(F + i), V(F + 48 + i))
    for nb in range(4):
        k.op("v_cvt_pk_bf16_f32", V(F + 4 * nb), V(F + 4 * nb), V(F + 4 * nb + 1))
        k.op("v_cvt_pk_bf16_f32", V(F + 4 * nb + 1), V(F + 4 * nb + 2), V(F + 4 * nb + 3))
        k.op("buffer_store_dwordx2", V(F + 4 * nb, 2), V(vOo), S(sO, 4), 0, mods=f"offen offset:{32*nb}")
    if stamps:
        k.wait(vm=0)
        stp.stamp()
        stp.flush(sWS, sW, 3)
    k.label("k3_end")
    k.op("s_endpgm")
    return k

if __name__ == "__main__":
    k = build_k3()
    for e in k.check_hazards(): print(e)
    for e in k.check_waits(): print(e)
    print(k.maxregs(), len(k.ins))
```

```python
from common import *
from k1_v1 import layernorm

def build_k1(store_mods="", stamps=False, prefetch=True, twice=False, noln=False, pf2=True, pf2at=13, D=6, LN0=2, nostore=False, skew=True):
    k = Kern("k1_kernel")
    vq, lq = Q(k, "vmcnt", 63), Q(k, "lgkmcnt", 15)
    stp = Stamps(k, stamps, 60, 0, lq, maxn=10)
    sX, sC, sWm, sWS, sP = 8, 12, 16, 24, 20
    sW, sH, sKV, sRq = 28, 29, 30, 34
    sT0, sT1, sT2 = 31, 32, 33
    sSo, sSo2, sW4k, sW8k, sAo, sSt = 36, 37, 38, 39, 35, 56
    sR = 50
    vL, vL16 = 1, 2
    TA = 16
    VA = 28
    VW = 36
    AAr = 40
    AF = 52
    ACC = 84
    LNR = 148
    X0, X1 = 180, 184
    g, l15, r_, cc, g1, t0, t1, p8 = 4, 5, 6, 7, 8, 9, 10, 11
    k.op("s_cmp_ge_u32", "s2", 256)
    k.op("s_cbranch_scc1", "k1_end")
    k.op("s_load_dwordx4", S(40, 4), S(0, 2), KA["x"])
    k.op("s_load_dwordx4", S(44, 4), S(0, 2), KA["wuk"])
    k.op("s_load_dwordx2", S(48, 2), S(0, 2), KA["ws"])
    k.op("s_load_dwordx2", S(98, 2), S(0, 2), KA["wq"])
    k.op("s_load_dwordx2", S(100, 2), S(0, 2), KA["w1"])
    k.op("v_and_b32", V(vL), 63, "v0")
    k.op("v_lshrrev_b32", V(t0), 6, "v0")
    k.op("s_and_b32", S(sT0), "s2", 7)
    k.op("v_readfirstlane_b32", S(sW), V(t0))
    k.op("s_lshr_b32", S(sT1), "s2", 3)
    k.op("s_and_b32", S(sT2), S(sT1), 3)
    k.op("s_lshl_b32", S(sH), S(sT0), 2)
    k.op("s_add_u32", S(sH), S(sH), S(sT2))
    k.op("s_bfe_u32", S(sKV), S(sT1), "0x10002")
    k.op("s_lshr_b32", S(sRq), S(sT1), 3)
    k.op("v_lshlrev_b32", V(vL16), 4, V(vL))
    k.op("v_lshrrev_b32", V(g), 4, V(vL))
    k.op("v_and_b32", V(l15), 15, V(vL))
    k.op("v_bfe_u32", V(r_), V(vL), 2, 2)
    k.op("v_and_b32", V(cc), 3, V(vL))
    k.op("v_and_b32", V(g1), 1, V(g))
    k.op("v_and_b32", V(p8), 7, V(vL))
    k.op("s_lshl_b32", S(sW4k), S(sW), 12)
    k.op("s_lshl_b32", S(sW8k), S(sW), 13)
    k.op("v_lshlrev_b32", V(t0), 1, V(g))
    k.op("v_xor_b32", V(t0), V(t0), V(l15))
    k.op("v_lshlrev_b32", V(t0), 4, V(t0))
    k.op("v_lshl_add_u32", V(t0), V(g), 13, V(t0))
    k.op("s_lshl_b32", S(sT0), S(sW), 17)
    k.op("s_lshl_b32", S(sT1), S(sH), 8)
    k.op("s_add_u32", S(sT0), S(sT0), S(sT1))
    k.op("v_add_u32", V(VW), S(sT0), V(t0))
    k.op("v_add_u32", V(VW + 1), 32768 - 1024, V(VW))
    k.op("v_xor_b32", V(VW + 2), 128, V(VW))
    k.op("v_add_u32", V(VW + 2), 2 * (32768 - 1024), V(VW + 2))
    k.op("v_add_u32", V(VW + 3), 32768 - 1024, V(VW + 2))
    k.op("s_and_b32", S(sT0), S(sW), 1)
    k.op("s_lshl_b32", S(sT0), S(sT0), 7)
    k.op("v_xor_b32", V(t0), S(sT0), V(vL16))
    for i in range(8): k.op("v_xor_b32", V(VA + i), i * 16, V(t0))
    k.op("s_lshl_b32", S(sAo), S(sRq), 19)
    k.op("s_lshr_b32", S(sT1), S(sW), 1)
    k.op("s_lshl_b32", S(sT1), S(sT1), 15)
    k.op("s_add_u32", S(sAo), S(sAo), S(sT1))
    k.op("s_lshl_b32", S(sT0), S(sT0), 6)
    k.op("s_add_u32", S(sAo), S(sAo), S(sT0))
    CHA, CHS = 84, 3
    k.op("s_lshr_b32", S(sT0), "s2", 3)
    k.op("s_and_b32", S(sT0), S(sT0), 3)
    for i in range(8):
        if skew: skew_stage(k, CHA + i, sT0, i, 8, sT1)
        else: k.op("s_mov_b32", S(CHA + i), i)
        k.op("s_lshl_b32", S(CHA + i), S(CHA + i), 16)
        k.op("s_add_u32", S(CHA + i), S(CHA + i), S(sAo))
    k.wait(lgkm=0)
    stp.stamp()
    load_srd(k, sC, "ckv", 42)
    k.op("s_cmp_eq_u32", S(sKV), 0)
    k.op("s_cselect_b32", S(sWm), S(44), S(46))
    k.op("s_cselect_b32", S(sWm + 1), S(45), S(47))
    k.op("s_and_b32", S(sWm + 1), S(sWm + 1), "0xffff")
    k.op("s_mov_b32", S(sWm + 2), hex(4 << 20))
    k.op("s_mov_b32", S(sWm + 3), "0x20000")
    def aslot(st): return [1, 2, 0, 3, 4][(st - 2) % 5] * 32768
    def wslot(s): return (s % 6) * 16384
    def dma_w_items(s):
        def setup():
            k.op("s_add_u32", "m0", S(sW4k), wslot(s))
            k.op("s_mov_b32", S(sSo), s * 524288)
        def ld(i):
            def f():
                k.op("buffer_load_dwordx4", V(VW + i), S(sWm, 4), S(sSo), mods=f"offen offset:{i*1024} lds"); vq.issue(("W", s))
            return f
        return [setup] + [ld(i) for i in range(4)]
    def dma_a_items(st):
        it = []
        for u in range(2):
            def setup(u=u):
                k.op("s_add_u32", "m0", S(sW8k), aslot(st) + u * 4096)
                k.op("s_add_u32", S(sSo), S(CHA + (st >> 1)), (st & 1) * 16384 + u * 4096)
            it.append(setup)
            for i in range(4):
                def f(i=i, u=u):
                    k.op("buffer_load_dwordx4", V(VA + 4 * u + i), S(sC, 4), S(sSo), mods=f"offen offset:{i*1024} lds"); vq.issue(("A", st))
                it.append(f)
        return it
    for f in dma_w_items(0) + dma_a_items(0) + dma_w_items(1) + dma_a_items(1): f()
    stp.stamp()
    load_srd(k, sX, "x", 40); load_srd(k, sWS, "ws", 48)
    k.op("v_lshl_or_b32", V(t1), V(g1), 2, V(r_))
    k.op("s_and_b32", S(sT0), S(sW), 1)
    k.op("s_lshl_b32", S(sT0), S(sT0), 2)
    k.op("v_xor_b32", V(t1), S(sT0), V(t1))
    k.op("v_lshl_add_u32", V(t0), V(g), 3, V(r_))
    k.op("v_lshlrev_b32", V(t0), 8, V(t0))
    k.op("v_lshl_add_u32", V(t0), V(cc), 3, V(t0))
    for nb in range(4):
        k.op("v_xor_b32", V(12), nb, V(t1))
        k.op("v_lshl_add_u32", V(TA + nb), V(12), 5, V(t0))
        k.op("v_add_u32", V(TA + 4 + nb), 65536, V(TA + nb))
    k.op("s_lshr_b32", S(sT0), S(sW), 1)
    k.op("s_lshl_b32", S(sT0), S(sT0), 14)
    k.op("v_lshlrev_b32", V(t0), 10, V(l15))
    k.op("v_add_u32", V(t0), S(sT0), V(t0))
    k.op("v_xor_b32", V(t1), V(g), V(l15))
    for q in range(4):
        k.op("v_xor_b32", V(12), 4 * q, V(t1))
        k.op("v_lshl_add_u32", V(AAr + q), V(12), 4, V(t0))
        k.op("v_add_u32", V(AAr + 4 + q), 65536, V(AAr + q))
        k.op("v_add_u32", V(AAr + 8 + q), 131072, V(AAr + q))
    k.op("s_lshl_b32", S(sSt), S(sH), 19)
    k.op("s_lshl_b32", S(sT1), S(sRq), 17)
    k.op("s_add_u32", S(sSt), S(sSt), S(sT1))
    k.op("s_lshr_b32", S(sT1), S(sW), 1)
    k.op("s_lshl_b32", S(sT1), S(sT1), 13)
    k.op("s_add_u32", S(sSt), S(sSt), S(sT1))
    k.op("s_and_b32", S(sT1), S(sW), 1)
    k.op("s_lshl_b32", S(sT2), S(sT1), 12)
    k.op("s_add_u32", S(sT2), S(sT2), VF_OFF)
    k.op("s_lshl_b32", S(sT1), S(sT1), 11)
    k.op("s_add_u32", S(sT1), S(sT1), KF_OFF)
    k.op("s_cmp_eq_u32", S(sKV), 0)
    k.op("s_cselect_b32", S(sT1), S(sT1), S(sT2))
    k.op("s_add_u32", S(sSt), S(sSt), S(sT1))
    k.op("s_lshr_b32", S(sT1), S(sAo), 2)
    k.op("s_sub_u32", S(sSt), S(sSt), S(sT1))
    k.op("s_lshl_b32", S(sR), "s2", 3)
    k.op("s_lshl_b32", S(sT1), S(sW), 1)
    k.op("s_add_u32", S(sR), S(sR), S(sT1))
    k.op("s_lshr_b32", S(sR + 1), S(sR), 4)
    k.op("s_lshl_b32", S(sR + 1), S(sR + 1), 14)
    k.op("s_and_b32", S(sR + 2), S(sR), 15)
    k.op("s_lshl_b32", S(sR + 2), S(sR + 2), 4)
    k.op("s_add_u32", S(sR + 1), S(sR + 1), S(sR + 2))
    k.op("s_lshl_b32", S(sR + 2), S(sR), 3)
    k.op("s_add_u32", S(sR + 2), S(sR + 2), YF_OFF)
    k.op("s_lshl_b32", S(sR), S(sR), 10)
    vLd, vLz = LNR + 29, LNR + 30
    k.op("v_mov_b32", V(vLz), 0)
    k.op("v_lshrrev_b32", V(vLd), 2, V(vL))
    k.op("v_lshlrev_b32", V(vLd), 10, V(vLd))
    k.op("v_lshl_add_u32", V(vLd), V(cc), 8, V(vLd))
    k.op("buffer_load_dwordx4", V(X0, 4), V(vL16), S(sX, 4), S(sR), mods="offen"); vq.issue("ln")
    k.op("buffer_load_dwordx4", V(X1, 4), V(vL16), S(sX, 4), S(sR), mods="offen offset:1024"); vq.issue("ln")
    k.op("s_lshl_b32", S(sT1), "s2", 8)
    k.op("s_add_u32", S(sT1), S(sT1), FLAG_OFF)
    for i in range(4): k.op("v_mov_b32", V(188 + i), 0)
    k.op("buffer_store_dwordx4", V(188, 4), V(vLz), S(sWS, 4), S(sT1), mods="offen"); vq.issue()
    k.op("s_lshl_b32", S(sT1), "s2", 4)
    k.op("s_add_u32", S(sT1), S(sT1), FLAG2_OFF)
    k.op("buffer_store_dwordx4", V(188, 4), V(vLz), S(sWS, 4), S(sT1), mods="offen"); vq.issue()

    def pf_k2():
        k.op("s_lshr_b32", S(sT1), "s2", 3)
        k.op("s_lshl_b32", S(sT1), S(sT1), 2)
        k.op("s_add_u32", S(sT1), S(sT1), S(sW))
        k.op("s_and_b32", S(sT0), "s2", 7)
        load_srd(k, sP, "wq", 98)
        k.op("v_bfe_u32", V(12), V(vL), 3, 2)
        k.op("v_lshlrev_b32", V(13), 13, V(12))
        k.op("v_lshl_add_u32", V(13), V(p8), 7, V(13))
        k.op("s_lshl_b32", S(sSo2), S(sT1), 15)
        k.op("s_lshl_b32", S(sT2), S(sT0), 10)
        k.op("s_add_u32", S(sSo2), S(sSo2), S(sT2))
        k.op("buffer_load_dword", V(14), V(13), S(sP, 4), S(sSo2), mods="offen", dummy=True); vq.issue()
        load_srd(k, sWm, "w1", 100)
        k.op("v_mul_u32_u24", V(13), 2752, V(12))
        k.op("v_lshl_add_u32", V(13), V(p8), 6, V(13))
        k.op("s_mul_i32", S(sSo2), S(sT1), 4 * 2752)
        k.op("s_mul_i32", S(sT2), S(sT0), 384)
        k.op("s_add_u32", S(sSo2), S(sSo2), S(sT2))
        k.op("buffer_load_dword", V(14), V(13), S(sWm, 4), S(sSo2), mods="offen", dummy=True); vq.issue()
        k.op("s_lshl_b32", S(sSo2), S(sT1), 13)
        pf_code(k, sX, "k2_kernel", "k2_slow_0-k2_kernel", 13, vL, sSo2, 14); vq.issue()

    k.op("s_cmp_lg_u32", S(sKV), 0)
    k.op("s_cbranch_scc1", "k1_V")
    import copy
    vq0, lq0, n0 = copy.deepcopy((vq.q, vq.ever)), copy.deepcopy((lq.q, lq.ever)), stp.n
    for kv in range(2):
        if kv:
            k.label("k1_V")
            vq.q, vq.ever = copy.deepcopy(vq0); lq.q, lq.ever = copy.deepcopy(lq0); stp.n = n0
        onst = lambda i: vq.issue() if i.kind == "vstore" else None
        q1, q2, lnq = FillQ(k), FillQ(k, on_emit=onst), FillQ(k, on_emit=onst)
        if not noln:
            lnq.add(lambda: vq.need("ln"))
            for r, X in enumerate((X0, X1)):
                ln = Kern("ln")
                layernorm(ln, X, LNR + 4, LNR + 8, LNR + 16)
                layernorm(ln, LNR + 4, LNR + 24, LNR + 8, LNR + 16, stats_only=True)
                ln.op("buffer_store_dwordx4", V(LNR + 4, 4), V(vLd), S(sWS, 4), S(sR + 1), mods=f"offen offset:{16*r}")
                ln.op("buffer_store_dwordx2", V(LNR + 24, 2), V(vLz), S(sWS, 4), S(sR + 2), mods=f"offen offset:{8*r}")
                ln.nop(2)
                lnq.add_kern(ln)
        def acc(st, nb): return ACC + 16 * (st % 4) + 4 * nb
        def pack(e, a, b):
            e.op("v_cvt_pk_bf16_f32", V(a), V(a), V(a + 1))
            e.op("v_cvt_pk_bf16_f32", V(a + 1), V(a + 2), V(a + 3))
            e.op("v_cvt_pk_bf16_f32", V(a + 2), V(b), V(b + 1))
            e.op("v_cvt_pk_bf16_f32", V(a + 3), V(b + 2), V(b + 3))
        def epi(st):
            e = Kern("e")
            if kv == 0:
                e.op("s_lshr_b32", S(sSo2), S(CHA + (st >> 1)), 2)
                e.op("s_add_u32", S(sSo2), S(sSo2), S(sSt))
                if st & 1: e.op("s_add_u32", S(sSo2), S(sSo2), 4096)
                for p in range(2):
                    pack(e, acc(st, 2 * p), acc(st, 2 * p + 1))
                    e.op("buffer_store_dwordx4", V(acc(st, 2 * p), 4), V(vL16), S(sWS, 4), S(sSo2), mods=f"offen offset:{p*1024}{store_mods}")
            elif st & 1:
                e.op("s_lshr_b32", S(sSo2), S(CHA + (st >> 1)), 2)
                e.op("s_add_u32", S(sSo2), S(sSo2), S(sSt))
                for nb in range(4):
                    pack(e, acc(st - 1, nb), acc(st, nb))
                    e.op("buffer_store_dwordx4", V(acc(st - 1, nb), 4), V(vL16), S(sWS, 4), S(sSo2), mods=f"offen offset:{nb*1024}{store_mods}")
            if nostore: e.ins = [i for i in e.ins if i.kind != "vstore"]
            return e
        AF2 = 192
        def afr(n, alt=False): return (AF2 if alt else AF) + (n % 8) * 4
        def rd_act(n, alt=False):
            st, ks = n >> 4, n & 15
            if ks == 0 and st > 1:
                if st == 2: assert len(lq.q) == 0
                vq.need(("A", st), cnt=[8])
                k.op("s_barrier")
                q1.flush()
                if st == 2:
                    for f in dma_a_items(4): q1.add(f)
                if st >= 3 and st + 2 < 16:
                    pass
                if st >= 2 and st + 3 < 16:
                    for f in dma_a_items(st + 3): q1.add(f)
            off = aslot(st)
            wn = off // 65536
            k.op("ds_read_b128", V(afr(n, alt), 4), V(AAr + 4 * wn + (ks & 3)), mods=f"offset:{off - wn*65536 + (ks>>2)*256}")
            lq.issue(("a", n))
        def mf(st, ks, nb, n, alt=False):
            d = V(acc(st, nb), 4); wf = A((ks * 4 + nb) * 4, 4); af = V(afr(n, alt), 4)
            if kv == 0: k.op("v_mfma_f32_16x16x32_bf16", d, wf, af, "0" if ks == 0 else d)
            else: k.op("v_mfma_f32_16x16x32_bf16", d, af, wf, "0" if ks == 0 else d)
        def wread_items(s):
            it = []
            for ks in (2 * s, 2 * s + 1):
                for nb in range(4):
                    for i in range(2):
                        def f(ks=ks, nb=nb, i=i):
                            off = wslot(s) + (ks & 1) * 8192 + i * 1024
                            wn = off // 65536
                            k.op("ds_read_b64_tr_b16", A((ks * 4 + nb) * 4 + 2 * i, 2), V(TA + 4 * wn + nb), mods=f"offset:{off - wn*65536}")
                            lq.issue(("w", ks))
                        it.append(f)
                it.append(lambda ks=ks: rd_act(ks))
                it.append(lambda ks=ks: rd_act(16 + ks, True))
            return it
        for f in dma_w_items(2) + dma_w_items(3): f()
        qr = FillQ(k)
        for s in range(9):
            if s < 8:
                vq.need(("W", s), ("A", 0), ("A", 1), cnt=[4, 8, 8])
                k.op("s_barrier")
                if s == 0: stp.stamp()
                for f in wread_items(s): qr.add(f)
                if s + 4 < 8:
                    for f in dma_w_items(s + 4): q1.add(f)
                if s == 5:
                    for f in dma_a_items(2): q1.add(f)
                if s == 7:
                    for f in dma_a_items(3): q1.add(f)
            if s == 0:
                qr.flush(); q1.flush(); continue
            for ks in (2 * s - 2, 2 * s - 1):
                lq.need(("w", ks), ("a", ks), ("a", 16 + ks), cnt=[8, 1, 1])
                if ks == 15:
                    for n in range(32, 32 + D): qr.add(lambda n=n: rd_act(n))
                for alt in range(2):
                    for nb in range(4):
                        mf(alt, ks, nb, 16 * alt + ks, bool(alt))
                        qr.emit(2)
                        if len(qr) == 0: q1.emit(1)
            qr.flush()
            if s < 8: q1.flush()
        stp.stamp()
        nxt = 32 + D
        for n in range(32, 256):
            st, ks = n >> 4, n & 15
            if n in (64, 128, 192): stp.stamp()
            if n == 34: q2.add_kern(epi(0))
            if ks == 2: q2.add_kern(epi(st - 1))
            if pf2 and n == pf2at * 16 + 8: pf_k2()
            if n % 2 == 0: lq.need(("a", n), ("a", n + 1), cnt=[1, 1])
            for nb in range(4):
                mf(st, ks, nb, n)
                cap = 1
                if nb == 0 and nxt < 256:
                    rd_act(nxt); nxt += 1; cap = 0
                cap -= q1.emit(cap)
                cap -= q2.emit(cap)
                if st >= LN0: cap -= lnq.emit(cap)
        stp.stamp()
        q2.flush(); lnq.flush()
        k.nop(8)
        q2.add_kern(epi(15)); q2.flush()
        if pf2 and pf2at >= 16: pf_k2()
        if stamps:
            k.wait(vm=0)
            stp.stamp()
            stp.flush(sWS, sW, 4)
        k.op("s_endpgm")
    k.label("k1_end")
    k.op("s_endpgm")
    return k

if __name__ == "__main__":
    k = build_k1()
    for e in k.check_hazards(): print(e)
    for e in k.check_waits(): print(e)
    print(k.maxregs(), len(k.ins))
```

```python
from common import *
import struct
def f32(x): return hex(struct.unpack("<I", struct.pack("<f", x))[0])
LOG2E = 1.4426950408889634
QSCALE = LOG2E / (128 ** 0.5)
STAT_OFF = YF_OFF

def build_k2(stamps=False, D=6, DA=8, thr=2.0 ** 60, pf3=True, fuse3=False, xnobar=False, xnodma=False, oolmask=True, pfself=True):
    k = Kern("k2_kernel")
    vq, lq = Q(k, "vmcnt", 63), Q(k, "lgkmcnt", 15)
    stp = Stamps(k, stamps, 62, 1, lq, maxn=8)
    sWS, sWQ, sW1, sK, sV, sB1 = 8, 12, 16, 20, 24, 28
    sW, sH, sP, sNa, sNb, sT = 32, 33, 34, 35, 36, 37
    sT0, sT1, sT2, sSo = 38, 39, 40, 41
    sP2, sP1, sRd, sNx = 42, 43, 44, 45
    sTK, sTV, sW4k, sThr, sRet = 46, 47, 48, 49, 50
    sXa, sXb = 51, 52
    sCa, sCb = 53, 54
    sM = 56
    sLd = 98
    vL, vL16, vA, vD, vZ, vNinf = 1, 2, 3, 4, 5, 6
    vPs = [7, 8]; vLs = [9, 10]; vMx = [11, 12]
    vT = 13
    vCo = 20
    QR, NEGM, SR = 32, 96, 128
    def Sreg(sub, par): return SR + sub * 64 + par * 32
    OA, FR = 64, 192
    TA, TB, VW, VW1 = 96, 104, 108, 112
    vXo = 21
    MACC = 32
    ONES = 116
    XR = 0

    k.op("s_cmp_ge_u32", "s2", 256)
    k.op("s_cbranch_scc1", "k2_end")
    if pfself:
        pf_self(k, "k2_slow_0", vt=254); vq.issue()
    k.op("s_load_dwordx2", S(84, 2), S(0, 2), KA["wq"])
    k.op("s_load_dwordx4", S(88, 4), S(0, 2), KA["w1"])
    k.op("s_load_dwordx2", S(92, 2), S(0, 2), KA["ws"])
    k.op("s_load_dwordx2", S(86, 2), S(0, 2), KA["wo"])
    k.op("s_load_dwordx2", S(96, 2), S(0, 2), KA["w2"])
    k.op("v_and_b32", V(vL), 63, "v0")
    k.op("v_lshrrev_b32", V(13), 6, "v0")
    k.op("s_and_b32", S(sT0), "s2", 7)
    k.op("v_readfirstlane_b32", S(sW), V(13))
    k.op("s_lshr_b32", S(sT1), "s2", 3)
    k.op("s_and_b32", S(sT2), S(sT1), 3)
    k.op("s_lshl_b32", S(sH), S(sT0), 2)
    k.op("s_add_u32", S(sH), S(sH), S(sT2))
    k.op("s_lshr_b32", S(sP), S(sT1), 2)
    k.op("v_lshlrev_b32", V(vL16), 4, V(vL))
    k.op("s_lshl_b32", S(sW4k), S(sW), 12)
    k.op("v_add_u32", V(vD), S(sW4k), V(vL16))
    g, l15, p8, l3, r_, cc, g1, t7 = 22, 23, 24, 25, 26, 27, 28, 29
    k.op("v_lshrrev_b32", V(g), 4, V(vL))
    k.op("v_and_b32", V(l15), 15, V(vL))
    k.op("v_and_b32", V(p8), 7, V(vL))
    k.op("v_lshrrev_b32", V(l3), 3, V(vL))
    k.op("v_bfe_u32", V(r_), V(vL), 2, 2)
    k.op("v_and_b32", V(cc), 3, V(vL))
    k.op("v_and_b32", V(g1), 1, V(g))
    k.op("v_lshlrev_b32", V(t7), 1, V(g))
    k.op("v_xor_b32", V(t7), V(t7), V(l15))
    k.op("v_lshlrev_b32", V(t7), 4, V(t7))
    k.op("v_lshl_add_u32", V(t7), V(g), 13, V(t7))
    k.op("s_lshl_b32", S(sT0), S(sW), 17)
    k.op("s_lshl_b32", S(sT1), S(sH), 8)
    k.op("s_add_u32", S(sT0), S(sT0), S(sT1))
    k.op("v_add_u32", V(VW), S(sT0), V(t7))
    k.op("v_add_u32", V(VW + 1), 32768 - 1024, V(VW))
    k.op("v_xor_b32", V(VW + 2), 128, V(VW))
    k.op("v_add_u32", V(VW + 2), 2 * (32768 - 1024), V(VW + 2))
    k.op("v_add_u32", V(VW + 3), 32768 - 1024, V(VW + 2))
    k.op("v_lshlrev_b32", V(t7), 1, V(g1))
    k.op("v_xor_b32", V(t7), V(t7), V(p8))
    k.op("v_lshlrev_b32", V(t7), 4, V(t7))
    k.op("v_mul_u32_u24", V(30), 2752, V(l3))
    k.op("s_mul_i32", S(sT0), S(sW), 32 * 2752)
    k.op("s_mul_i32", S(sT1), S(sH), 96)
    k.op("s_add_u32", S(sT0), S(sT0), S(sT1))
    k.op("v_add_u32", V(30), S(sT0), V(30))
    k.op("v_add_u32", V(VW1), V(30), V(t7))
    k.op("v_xor_b32", V(t7), 64, V(t7))
    k.op("v_add_u32", V(VW1 + 1), V(30), V(t7))
    k.op("v_add_u32", V(VW1 + 1), 8 * 2752 - 1024, V(VW1 + 1))
    k.op("v_add_u32", V(VW1 + 2), 2 * (8 * 2752 - 1024), V(VW1))
    k.op("v_add_u32", V(VW1 + 3), 2 * (8 * 2752 - 1024), V(VW1 + 1))
    k.op("s_lshl_b32", S(sT0), S(sP), 7)
    k.op("s_lshl_b32", S(sT1), S(sW), 5)
    k.op("s_add_u32", S(sXa), S(sT0), S(sT1))
    k.op("s_sub_u32", S(sXb), 1920, S(sT0))
    k.op("s_add_u32", S(sXb), S(sXb), S(sT1))
    k.op("s_lshl_b32", S(sT2), S(sH), 12)
    k.op("s_add_u32", S(sT2), S(sT2), CTX_OFF)
    k.op("s_lshl_b32", S(sCa), S(sXa), 13)
    k.op("s_add_u32", S(sCa), S(sCa), S(sT2))
    k.op("s_lshl_b32", S(sCb), S(sXb), 13)
    k.op("s_add_u32", S(sCb), S(sCb), S(sT2))
    sRa, sRb = 94, 95
    k.op("s_mov_b32", S(sRa), S(sXa)); k.op("s_mov_b32", S(sRb), S(sXb))
    sHr = 56
    for rb in range(4):
        k.op("s_lshr_b32", S(sHr + rb), S(sRa if rb < 2 else sRb), 4)
        k.op("s_add_u32", S(sHr + rb), S(sHr + rb), rb & 1)
        k.op("s_mul_i32", S(sHr + rb), S(sHr + rb), 43 * 1024)
    k.op("s_lshl_b32", S(sXa), S(sXa), 10)
    k.op("s_lshl_b32", S(sXb), S(sXb), 10)
    k.op("s_lshr_b32", S(sT1), S(sW), 1)
    k.op("s_lshl_b32", S(sT0), S(sP), 1)
    k.op("s_add_u32", S(sNa), S(sT0), S(sT1))
    k.op("s_add_u32", S(sNa), S(sNa), 1)
    k.op("s_sub_u32", S(sNb), 31, S(sT0))
    k.op("s_add_u32", S(sNb), S(sNb), S(sT1))
    k.wait(lgkm=0)
    stp.stamp()
    load_srd(k, sWQ, "wq", 84); load_srd(k, sW1, "w1", 88); load_srd(k, sWS, "ws", 92)

    pages = {}
    order = []
    for j in range(4):
        order += [("W1", j), ("WQ", 2 * j), ("WQ", 2 * j + 1)]
    for i, p in enumerate(order): pages[p] = i
    for t in range(6): pages[("K", t)] = 12 + 2 * t; pages[("V", t)] = 15 + 2 * t
    def slot(p): return (pages[p] % 10) * 16384
    def dma_items(p):
        kind, j = p
        def setup():
            k.op("s_add_u32", "m0", S(sW4k), slot(p))
            k.op("s_mov_b32", S(sSo), {"W1": j * 128 * 2752, "WQ": j * 524288, "K": j * 16384, "V": (j + 1) * 16384}[kind])
        def ld(i):
            def f():
                if kind == "WQ": k.op("buffer_load_dwordx4", V(VW + i), S(sWQ, 4), S(sSo), mods=f"offen offset:{i*1024} lds")
                elif kind == "W1": k.op("buffer_load_dwordx4", V(VW1 + i), S(sW1, 4), S(sSo), mods=f"offen offset:{i*1024} lds")
                else: k.op("buffer_load_dwordx4", V(vD), S(sK if kind == "K" else sV, 4), S(sSo), mods=f"offen offset:{i*1024} lds")
                vq.issue(p)
            return f
        return [setup] + [ld(i) for i in range(4)]
    def xn_load(ks, rb):
        def f():
            r = XR + ((ks % 12) * 4 + rb) * 4
            if ks & 3 == 0: k.op("s_add_u32", S(sLd + rb), S(sXa if rb < 2 else sXb), (rb & 1) * 16384 + (ks >> 2) * 4096)
            k.op("buffer_load_dwordx4", A(r, 4), V(vL16), S(sWS, 4), S(sLd + rb), mods=f"offen offset:{(ks&3)*1024}")
            vq.issue(("x", ks))
        return f
    for p in (("W1", 0), ("WQ", 0)):
        for f in dma_items(p): f()
    for ks in range(2):
        for rb in range(4): xn_load(ks, rb)()
    for f in dma_items(("WQ", 1)): f()
    for ks in range(2, 4):
        for rb in range(4): xn_load(ks, rb)()
    load_srd(k, sB1, "b1", 90)
    k.op("s_lshl_b32", S(sT0), S(sH), 19)
    k.op("s_add_u32", S(sT1), S(sT0), KF_OFF)
    k.op("s_add_u32", S(sK), S(92), S(sT1))
    k.op("s_addc_u32", S(sK + 1), S(93), 0)
    k.op("s_and_b32", S(sK + 1), S(sK + 1), "0xffff")
    k.op("s_lshl_b32", S(sT2), S(sP), 15)
    k.op("s_sub_u32", S(sK + 2), 32 * 16384, S(sT2))
    k.op("s_mov_b32", S(sK + 3), "0x20000")
    k.op("s_add_u32", S(sT1), S(sT0), VF_OFF - 16384)
    k.op("s_add_u32", S(sV), S(92), S(sT1))
    k.op("s_addc_u32", S(sV + 1), S(93), 0)
    k.op("s_and_b32", S(sV + 1), S(sV + 1), "0xffff")
    k.op("s_add_u32", S(sV + 2), S(sK + 2), 16384)
    k.op("s_mov_b32", S(sV + 3), "0x20000")
    k.op("v_lshl_or_b32", V(30), V(g1), 2, V(r_))
    k.op("v_lshl_add_u32", V(31), V(g), 3, V(r_))
    k.op("v_lshlrev_b32", V(t7), 8, V(31))
    k.op("v_lshl_add_u32", V(t7), V(cc), 3, V(t7))
    for nb in range(8):
        k.op("v_xor_b32", V(13), nb, V(30))
        k.op("v_lshl_add_u32", V(TA + nb), V(13), 5, V(t7))
    k.op("v_lshrrev_b32", V(13), 1, V(r_))
    k.op("v_lshl_or_b32", V(30), V(g1), 1, V(13))
    k.op("v_lshlrev_b32", V(t7), 7, V(31))
    k.op("v_lshl_add_u32", V(t7), V(cc), 3, V(t7))
    for nb in range(3):
        k.op("v_xor_b32", V(13), nb, V(30))
        k.op("v_lshl_add_u32", V(TB + nb), V(13), 5, V(t7))
    for i in range(4): k.op("v_mov_b32", V(ONES + i), "0x3f803f80")
    ST = 120
    B1 = [92, 94, 30]
    k.op("v_lshlrev_b32", V(13), 3, V(l15))
    for rb in range(4):
        k.op("s_lshl_b32", S(sT0), S(sRa if rb < 2 else sRb), 3)
        k.op("s_add_u32", S(sT0), S(sT0), STAT_OFF + (rb & 1) * 128)
        k.op("buffer_load_dwordx2", V(ST + 2 * rb, 2), V(13), S(sWS, 4), S(sT0), mods="offen"); vq.issue("st")
    k.op("v_lshlrev_b32", V(14), 3, V(g))
    k.op("s_mul_i32", S(sT1), S(sH), 96)
    for nb in range(3):
        k.op("buffer_load_dwordx2", V(B1[nb], 2), V(14), S(sB1, 4), S(sT1), mods=f"offen offset:{nb*32}"); vq.issue("st")
    win = {"TA": 0, "TB": 0}
    def set_window(name, base, n, off):
        w = off // 65536
        if win[name] != w:
            d = (w - win[name]) * 65536
            for i in range(n): k.op("v_add_u32", V(base + i), hex(d & 0xffffffff), V(base + i))
            win[name] = w
        return off - w * 65536
    frs = []
    for ks in range(16):
        for nb in range(3): frs.append(("W1", ks, nb))
        for nb in range(8): frs.append(("WQ", ks, nb))
    NF = len(frs)
    q1 = FillQ(k)
    plan = {0: [("W1", 1), ("WQ", 2)], 1: [("WQ", 3)], 2: [("W1", 2), ("WQ", 4)], 3: [("WQ", 5)], 4: [("W1", 3), ("WQ", 6)],
            5: [("WQ", 7)], 6: [("K", 0), ("K", 1)], 7: [("V", 0), ("K", 2)]}
    def stage_switch(s):
        need = [("WQ", s)] + ([("W1", s // 2)] if s % 2 == 0 else [])
        vq.need(*need, cnt=[4] * len(need))
        k.op("s_barrier")
        q1.flush()
        for ks in (2 * s + 4, 2 * s + 5):
            if ks < 16:
                for rb in range(4): q1.add(xn_load(ks, rb))
        for p in plan[s]:
            for f in dma_items(p): q1.add(f)
    def read_frag(n, which):
        kind, ks, nb = frs[n]
        if n % 22 == 0 and which == 0: stage_switch(n // 22)
        r = FR + (n % 16) * 4
        if kind == "WQ":
            off = slot(("WQ", ks // 2)) + (ks & 1) * 8192 + which * 1024
            off = set_window("TA", TA, 8, slot(("WQ", ks // 2))) + (ks & 1) * 8192 + which * 1024
            k.op("ds_read_b64_tr_b16", A(r + 2 * which, 2), V(TA + nb), mods=f"offset:{off}")
        else:
            off = set_window("TB", TB, 3, slot(("W1", ks // 4))) + (ks & 3) * 4096 + which * 512
            k.op("ds_read_b64_tr_b16", A(r + 2 * which, 2), V(TB + nb), mods=f"offset:{off}")
        lq.issue(("w", n))
    def qacc(nb, rb): return SR + 4 * (nb * 4 + rb)
    def macc(nb, rb): return MACC + 4 * (nb * 4 + rb)
    for n in range(D):
        read_frag(n, 0); read_frag(n, 1)
    stp.stamp()
    for n in range(NF):
        kind, ks, nb = frs[n]
        if n % 11 == 0: vq.need(("x", ks), cnt=[4])
        if n % 2 == 0: lq.need(("w", n), ("w", n + 1), cnt=[2, 2])
        wf = A(FR + (n % 16) * 4, 4)
        first = ks == 0
        ms = []
        for rb in range(4):
            d = V(qacc(nb, rb) if kind == "WQ" else macc(nb, rb), 4)
            ms.append((d, A(XR + ((ks % 12) * 4 + rb) * 4, 4)))
        if kind == "W1": ms.append((V(MACC + 48 + 4 * nb, 4), V(ONES, 4)))
        for c, (d, b) in enumerate(ms):
            k.op("v_mfma_f32_16x16x32_bf16", d, wf, b, "0" if first else d)
            if c < 2 and n + D < NF: read_frag(n + D, c)
            else: q1.emit(2 if len(q1) > 12 else 1)
    q1.flush()
    stp.stamp()
    vq.need(("K", 0), cnt=[4])
    k.op("s_barrier")
    for p in (("V", 1), ("K", 3), ("V", 2)):
        for f in dma_items(p): f()
    k.op("v_mul_u32_u24", V(15), 44032, V(g1))
    k.op("v_lshrrev_b32", V(16), 5, V(vL))
    k.op("v_lshl_add_u32", V(15), V(16), 8, V(15))
    k.op("v_lshl_add_u32", V(15), V(l15), 4, V(15))
    C1, C2 = -2 * LOG2E * 0.7978845608028654, -2 * LOG2E * 0.7978845608028654 * 0.044715
    k.op("v_mov_b32", V(16), f32(C1)); k.op("v_mov_b32", V(17), f32(C2))
    k.op("v_mov_b32", V(18), "1.0"); k.op("v_mov_b32", V(19), "1.0")
    def P(r): return V(r, 2)
    bb, t = 96, 100
    for nb in range(3):
        k.op("v_lshlrev_b32", V(bb), 16, V(B1[nb]))
        k.op("v_and_b32", V(bb + 1), "0xffff0000", V(B1[nb]))
        k.op("v_lshlrev_b32", V(bb + 2), 16, V(B1[nb] + 1))
        k.op("v_and_b32", V(bb + 3), "0xffff0000", V(B1[nb] + 1))
        cs = MACC + 48 + 4 * nb
        k.op("s_mul_i32", S(sT1), S(sH), 3)
        k.op("s_add_u32", S(sT1), S(sT1), nb)
        k.op("s_lshl_b32", S(sT2), S(sT1), 9)
        k.op("s_add_u32", S(sT2), S(sT2), HF_OFF)
        lab = k.newlabel("skiph")
        k.op("s_cmp_ge_u32", S(sT1), 86)
        k.op("s_cbranch_scc1", lab)
        for rp in range(2):
            rbs = (2 * rp, 2 * rp + 1)
            def each(fn):
                for j, rb in enumerate(rbs):
                    for i in (0, 2): fn(macc(nb, rb) + i, t + 4 * j + i, ST + 2 * rb, i)
            each(lambda a, tt, st, i: k.op("v_pk_fma_f32", P(a), P(cs + i), P(st), P(a), mods="op_sel_hi:[1,0,1] neg_lo:[1,0,0] neg_hi:[1,0,0]"))
            each(lambda a, tt, st, i: k.op("v_pk_fma_f32", P(a), P(a), P(st), P(bb + i), mods="op_sel:[0,1,0]"))
            each(lambda a, tt, st, i: k.op("v_pk_mul_f32", P(tt), P(a), P(a)))
            each(lambda a, tt, st, i: k.op("v_pk_fma_f32", P(tt), P(tt), P(16), P(16), mods="op_sel:[0,1,0] op_sel_hi:[1,1,0]"))
            each(lambda a, tt, st, i: k.op("v_pk_mul_f32", P(tt), P(tt), P(a)))
            for i in range(8): k.op("v_exp_f32", V(t + i), V(t + i))
            each(lambda a, tt, st, i: k.op("v_pk_add_f32", P(tt), P(tt), P(18)))
            for i in range(8): k.op("v_rcp_f32", V(t + i), V(t + i))
            each(lambda a, tt, st, i: k.op("v_pk_mul_f32", P(a), P(a), P(tt)))
            a0, a1 = macc(nb, rbs[0]), macc(nb, rbs[1])
            k.op("v_cvt_pk_bf16_f32", V(a0), V(a0), V(a0 + 1))
            k.op("v_cvt_pk_bf16_f32", V(a0 + 1), V(a0 + 2), V(a0 + 3))
            k.op("v_cvt_pk_bf16_f32", V(a0 + 2), V(a1), V(a1 + 1))
            k.op("v_cvt_pk_bf16_f32", V(a0 + 3), V(a1 + 2), V(a1 + 3))
            k.op("s_add_u32", S(sT0), S(sHr + 2 * rp), S(sT2))
            k.nop(1)
            k.op("v_permlane16_swap_b32", V(a0), V(a0 + 2))
            k.op("v_permlane16_swap_b32", V(a0 + 1), V(a0 + 3))
            k.op("buffer_store_dwordx4", V(a0, 4), V(15), S(sWS, 4), S(sT0), mods="offen" + (" sc1" if fuse3 else ""))
        k.label(lab)
    k.op("v_mov_b32", V(16), f32(QSCALE)); k.op("v_mov_b32", V(17), f32(QSCALE))
    def Qreg(sub, qb, ds): return QR + sub * 32 + qb * 16 + ds * 4
    for rb in range(4):
        for ds in range(4):
            X = Qreg(rb >> 1, rb & 1, ds)
            for half in range(2):
                a = qacc(2 * ds + half, rb)
                for i in (0, 2): k.op("v_pk_mul_f32", P(a + i), P(a + i), P(16))
                k.op("v_cvt_pk_bf16_f32", V(X + 2 * half), V(a), V(a + 1))
                k.op("v_cvt_pk_bf16_f32", V(X + 2 * half + 1), V(a + 2), V(a + 3))
    stp.stamp()
    def Ngm(sub, qb): return NEGM + sub * 8 + qb * 4
    def Lac(sub, qb): return 112 + sub * 8 + qb * 4
    ON1 = 24
    k.op("s_and_b32", S(sT0), S(sW), 1)
    k.op("s_lshl_b32", S(sT0), S(sT0), 5)
    k.op("v_add_u32", V(vZ), S(sT0), V(l15))
    k.op("v_lshlrev_b32", V(15), 2, V(g))
    k.op("v_sub_u32", V(vZ), V(vZ), V(15))
    k.op("v_mov_b32", V(vNinf), f32(-1e30))
    for i in range(4): k.op("v_mov_b32", V(ON1 + i), "0x3f803f80")
    for i in range(16): k.op("v_mov_b32", V(112 + i), 0)
    k.op("s_mov_b32", S(sThr), f32(thr))
    k.op("s_mov_b32", S(sP2), 0)
    k.op("s_mov_b32", S(sNx), 98304)
    k.op("s_mov_b32", S(sTK), 4 * 16384)
    k.op("s_mov_b32", S(sT), 2)

    def mf(d, a, b, c): k.op("v_mfma_f32_16x16x32_bf16", d, a, b, c)
    def mask_block(sub, par):
        s0 = Sreg(sub, par)
        for e0 in range(0, 32, 2):
            for u in range(2):
                e = e0 + u; qb, kb, r = e >> 4, (e >> 2) & 3, e & 3
                k.op("v_cmp_gt_i32", S(sM + 2 * u, 2), 16 * kb + r - 16 * qb, V(vZ))
            k.nop(1)
            for u in range(2):
                k.op("v_cndmask_b32", V(s0 + e0 + u), V(s0 + e0 + u), V(vNinf), S(sM + 2 * u, 2))
    def ereg(n):
        k32, qb, j = n >> 4, (n >> 3) & 1, n & 7
        return qb * 16 + k32 * 8 + j
    def soft_exp(sub, par, n):
        r = Sreg(sub, par) + ereg(n)
        k.op("v_exp_f32", V(r), V(r))
    def soft_cvt(sub, par, n):
        e = n - 2
        r = Sreg(sub, par) + ereg(e)
        d = Sreg(sub, par) + (ereg(e) & ~7) + ((e & 7) >> 1)
        k.op("v_cvt_pk_bf16_f32", V(d), V(r), V(r + 1))
    def rd(frag, isV):
        k.op("ds_read_b128", A(FR + frag * 4, 4), V(vA), mods=f"offset:{(16384 if isV else 0) + frag*1024}")
    def ldK(i): return lambda: k.op("buffer_load_dwordx4", V(vD), S(sK, 4), S(sTK), mods=f"offen offset:{i*1024} lds")
    def ldV(i): return lambda: k.op("buffer_load_dwordx4", V(vD), S(sV, 4), S(sTK), mods=f"offen offset:{i*1024} lds")
    m0K = lambda: k.op("s_add_u32", "m0", S(sP2), S(sW4k))
    m0V = lambda: k.op("s_add_u32", "m0", "m0", 16384)
    advT = lambda: k.op("s_add_u32", S(sTK), S(sTK), 16384)
    advP = lambda: k.op("s_add_u32", S(sP2), S(sP2), 32768)
    wrapP = lambda: (k.op("s_cmp_eq_u32", S(sP2), 163840), k.op("s_cselect_b32", S(sP2), 0, S(sP2)))
    XA = {1: [ldK(2)], 5: [ldK(3)], 7: [m0V], 9: [ldV(0)], 13: [ldV(1)]}
    XB = {1: [ldV(2)], 5: [ldV(3)], 7: [advT, advP], 9: [wrapP, m0K], 11: [ldK(0)], 15: [ldK(1)]}
    WP = 4
    def phaseA(par, qk, ex):
        if not qk:
            k.wait(lgkm=0)
            for f in range(DA): rd(f, True)
            for n in range(16, 32):
                for sub in ex:
                    soft_exp(sub, par, n)
                    if n % 2 == 0: soft_cvt(sub, par, n)
            return
        for f in range(16):
            kb, ds = f >> 2, f & 3
            if f % WP == 0: k.wait(lgkm=DA - WP)
            for j, sub in enumerate(qk):
                xs = ex if len(qk) == 1 else [sub]
                for qb in range(2):
                    d = V(Sreg(sub, 1 - par) + qb * 16 + kb * 4, 4)
                    mf(d, A(FR + f * 4, 4), V(Qreg(sub, qb, ds), 4), V(Ngm(sub, qb), 4) if ds == 0 else d)
                    if qb == 0:
                        for x in xs: soft_exp(x, par, 16 + f)
                if j == 0:
                    nf = f + DA
                    if nf < 16: rd(nf, False)
                    else: rd(nf - 16, True)
                if f % 2 == 0:
                    for x in xs: soft_cvt(x, par, 16 + f)
                if j == len(qk) - 1:
                    for fn in XA.get(f, []): fn()
    def phaseB(par, pv, exn, bar="always", tailops=()):
        extra = list(tailops)
        for f in range(16):
            k32, db = f >> 3, f & 7
            if f % WP == 0: k.wait(lgkm=DA - WP if bar == "always" else max(0, min(DA - WP, 16 - f - WP)))
            for j, sub in enumerate(pv):
                for qb in range(2):
                    d = A(OA + sub * 64 + (db * 2 + qb) * 4, 4)
                    mf(d, A(FR + f * 4, 4), V(Sreg(sub, par) + qb * 16 + k32 * 8, 4), d)
                    if qb == 0 and sub in exn: soft_exp(sub, 1 - par, f)
                if j == 0:
                    nf = f + DA
                    if nf == 16:
                        if bar == "always":
                            k.wait(vm=16); k.op("s_barrier")
                        elif bar == "w01":
                            lab = k.newlabel("nobar")
                            k.op("s_cmp_ge_u32", S(sW), 2); k.op("s_cbranch_scc1", lab)
                            k.wait(vm=8); k.op("s_barrier")
                            k.label(lab)
                        k.op("v_add_u32", V(vA), S(sNx), V(vL16))
                    if bar == "always" or nf < 16:
                        if nf < 16: rd(nf, True)
                        else: rd(nf - 16, False)
                if f == 0: soft_cvt(sub, par, 32)
                elif f % 2 == 0 and sub in exn: soft_cvt(sub, 1 - par, f)
                if f % 4 == 3:
                    qb = (f >> 2) & 1
                    d = V(Lac(sub, qb), 4)
                    mf(d, V(ON1, 4), V(Sreg(sub, par) + qb * 16 + k32 * 8, 4), d)
                if j == len(pv) - 1 and bar == "always":
                    for fn in XB.get(f, []): fn()
                    if f in (3, 13, 14) and extra: extra.pop(0)()
        for fn in extra: fn()
    def nx_items():
        return [lambda: k.op("s_add_u32", S(sT), S(sT), 1),
                lambda: k.op("s_add_u32", S(sNx), S(sNx), 32768),
                lambda: (k.op("s_cmp_eq_u32", S(sNx), 163840), k.op("s_cselect_b32", S(sNx), 0, S(sNx)))]
    def rowmax(sub, par, qb, dst):
        s0 = Sreg(sub, par) + 16 * qb
        k.op("v_max3_f32", V(dst), V(s0), V(s0 + 1), V(s0 + 2))
        for e in range(3, 15, 2): k.op("v_max3_f32", V(dst), V(dst), V(s0 + e), V(s0 + e + 1))
        k.op("v_max_f32", V(dst), V(dst), V(s0 + 15))
        for sw in ("v_permlane16_swap_b32", "v_permlane32_swap_b32"):
            k.op("v_mov_b32", V(vT + 1), V(dst))
            k.nop(2)
            k.op(sw, V(dst), V(vT + 1))
            k.op("v_max_f32", V(dst), V(dst), V(vT + 1))
    slow_sites = {}
    def epilogue(sub, site):
        t = Sreg(sub, 0)
        k.nop(8)
        k.op("v_max_f32", V(vT), V(Lac(sub, 0)), V(Lac(sub, 1)))
        k.op("v_add_f32", V(vT + 1), V(Lac(sub, 0)), V(Lac(sub, 1)))
        k.op("v_cmp_nle_f32", "vcc", V(vT + 1), V(21))
        k.op("s_mov_b32", S(sRet), site)
        k.op("s_cbranch_vccnz", f"k2_slow_{sub}")
        lab = f"k2_ret_{sub}_{site}"
        k.label(lab)
        slow_sites.setdefault(sub, []).append((site, lab))
        k.op("v_rcp_f32", V(vT + 3), V(Lac(sub, 0)))
        k.op("v_rcp_f32", V(vT + 4), V(Lac(sub, 1)))
        for qb in range(2):
            if qb: k.op("s_add_u32", S(sT0), S(sCa if sub == 0 else sCb), 131072)
            for ks in range(4):
                b = t + (qb * 4 + ks) * 8
                for half in range(2):
                    for i in range(4):
                        k.op("v_accvgpr_read_b32", V(b + 4 * half + i), A(OA + sub * 64 + ((2 * ks + half) * 2 + qb) * 4 + i))
                for i in range(0, 8, 2):
                    k.op("v_pk_mul_f32", P(b + i), P(b + i), P(vT + 3), mods="op_sel_hi:[1,0]" if qb == 0 else "op_sel:[0,1]")
                for i in range(4): k.op("v_cvt_pk_bf16_f32", V(b + i), V(b + 2 * i), V(b + 2 * i + 1))
                k.op("buffer_store_dwordx4", V(b, 4), V(vL16), S(sWS, 4), S(sT0 if qb else (sCa if sub == 0 else sCb)),
                     mods=f"offen offset:{ks*1024}" + (" sc1" if fuse3 else ""))
    k.op("v_mov_b32", V(21), S(sThr))
    k.op("v_add_u32", V(vT), 32768, V(vL16))
    for f in range(16): k.op("ds_read_b128", A(f * 4, 4), V(vT), mods=f"offset:{f*1024}")
    zi = 0
    for f in range(16):
        kb, ds = f >> 2, f & 3
        k.wait(lgkm=15 - f)
        for sub in range(2):
            for qb in range(2):
                d = V(Sreg(sub, 0) + qb * 16 + kb * 4, 4)
                mf(d, A(f * 4, 4), V(Qreg(sub, qb, ds), 4), "0" if ds == 0 else d)
                for _ in range(2):
                    k.op("v_accvgpr_write_b32", A(OA + zi), 0); zi += 1
    k.wait(vm=12)
    k.op("s_barrier")
    m0K()
    k.op("v_add_u32", V(vA), 65536, V(vL16))
    ldK(0)(); ldK(1)()
    for f in range(DA): rd(f, False)
    lab = k.newlabel("nomask0")
    k.op("s_cmp_lg_u32", S(sNa), 1); k.op("s_cbranch_scc1", lab)
    mask_block(0, 0)
    k.label(lab)
    for sub in range(2):
        for qb in range(2):
            rowmax(sub, 0, qb, vT + 2)
            n0 = Ngm(sub, qb)
            for i in range(4): k.op("v_sub_f32", V(n0 + i), 0, V(vT + 2))
            for e in range(0, 16, 2): k.op("v_pk_add_f32", P(Sreg(sub, 0) + 16 * qb + e), P(Sreg(sub, 0) + 16 * qb + e), P(n0))
    for n in range(16):
        for sub in range(2):
            soft_exp(sub, 0, n)
        for sub in range(2):
            if n % 2 == 0 and n: soft_cvt(sub, 0, n)
    stp.stamp()
    k.op("s_cmp_lt_u32", 1, S(sNa))
    k.op("s_cbranch_scc0", "k2_DL0")
    def pf_k3():
        sp = sWQ
        k.op("s_and_b32", S(sT0), "s2", 7)
        k.op("s_lshr_b32", S(sT0), S(sT0), 1)
        k.op("s_mul_i32", S(sT1), S(sT0), 43 * 32768)
        k.op("s_cmp_lt_u32", S(sT0), 3)
        k.op("s_cselect_b32", S(sp), S(86), S(96))
        k.op("s_cselect_b32", S(sp + 1), S(87), S(97))
        k.op("s_mov_b32", S(sp + 2), hex(SZ["w2"]))
        k.op("s_cselect_b32", S(sp + 2), hex(SZ["wo"]), S(sp + 2))
        k.op("s_cselect_b32", S(sT1), S(sT1), 0)
        k.op("s_and_b32", S(sp + 1), S(sp + 1), "0xffff")
        k.op("s_mov_b32", S(sp + 3), "0x20000")
        k.op("s_lshr_b32", S(sT2), "s2", 3)
        k.op("s_lshl_b32", S(sT2), S(sT2), 2)
        k.op("s_add_u32", S(sT2), S(sT2), S(sW))
        k.op("s_mul_i32", S(sT0), S(sT2), 11264)
        k.op("s_add_u32", S(sT1), S(sT1), S(sT0))
        k.op("v_lshlrev_b32", V(vT), 7, V(vL))
        k.op("buffer_load_dword", V(130), V(vT), S(sp, 4), S(sT1), mods="offen", dummy=True)
        k.op("v_and_b32", V(vT + 2), 31, V(vL))
        k.op("v_lshlrev_b32", V(vT + 2), 7, V(vT + 2))
        k.op("s_add_u32", S(sT1), S(sT1), 8192)
        k.op("buffer_load_dword", V(130), V(vT + 2), S(sp, 4), S(sT1), mods="offen", dummy=True)
        k.op("s_lshl_b32", S(sT2), S(sT2), 13)
        pf_code(k, sW1, "k3_kernel", "k3_end-k3_kernel", vT, vL, sT2, 130)
    ool = []
    def maskif(sub, par):
        lab, lab2 = k.newlabel("nomask"), k.newlabel("domask")
        k.op("s_cmp_eq_u32", S(sT), S(sNa if sub == 0 else sNb)); k.op("s_cbranch_scc1", lab2)
        k.label(lab)
        ool.append((lab2, lab, sub, par))
    for par in range(2):
        k.label(f"k2_DD{par}")
        phaseA(par, [0, 1], [0, 1])
        maskif(0, 1 - par)
        phaseB(par, [0, 1], [0, 1], tailops=nx_items())
        k.op("s_cmp_le_u32", S(sT), S(sNa))
        k.op("s_cbranch_scc0", f"k2_DL{1-par}")
        if par == 1: k.op("s_branch", "k2_DD0")
    for par in range(2):
        k.label(f"k2_DL{par}")
        phaseA(par, [1], [0, 1])
        phaseB(par, [0, 1], [1], tailops=nx_items())
        epilogue(0, par)
        k.op("s_branch", f"k2_SS{1-par}")
    for par in range(2):
        k.label(f"k2_SS{par}")
        phaseA(par, [1], [1])
        maskif(1, 1 - par)
        phaseB(par, [1], [1], tailops=nx_items())
        k.op("s_cmp_le_u32", S(sT), S(sNb))
        k.op("s_cbranch_scc0", f"k2_SL{1-par}")
        if par == 1: k.op("s_branch", "k2_SS0")
    for par in range(2):
        k.label(f"k2_SL{par}")
        if pf3: pf_k3()
        phaseA(par, [], [1])
        k.nop(2)
        phaseB(par, [1], [], bar="w01")
        if par == 0: k.op("s_branch", "k2_fin")
    k.label("k2_fin")
    stp.stamp()
    epilogue(1, 0)
    if stamps:
        k.wait(vm=0, lgkm=0)
        stp.stamp()
        stp.flush(sWS, sW, 13)
    if fuse3:
        k.op("s_lshl_b32", S(sT0), S(sP), 8)
        k.op("s_lshl_b32", S(sT1), S(sH), 2)
        k.op("s_add_u32", S(sT0), S(sT0), S(sT1))
        k.op("s_add_u32", S(96), S(sT0), FLAG2_OFF)
        k.wait(lgkm=0)
        k.raw("  s_branch k3_kernel")
    k.op("s_endpgm")
    for (lab2, lab, sub, par) in ool:
        k.label(lab2)
        k.nop(8)
        mask_block(sub, par)
        k.op("s_branch", lab)
    sU, sUo = 60, 61
    for sub, sites in sorted(slow_sites.items()):
        s0 = Sreg(sub, 0)
        m = [Ngm(sub, 0), Ngm(sub, 1)]
        k.label(f"k2_slow_{sub}")
        k.nop(8)
        for i in range(64): k.op("v_accvgpr_write_b32", A(OA + sub * 64 + i), 0)
        for qb in range(2):
            k.op("v_mov_b32", V(m[qb]), f32(-1e30))
            for i in range(4): k.op("v_mov_b32", V(Lac(sub, qb) + i), 0)
        k.op("s_mov_b32", S(sU), 1)
        k.op("s_mov_b32", S(sUo), 0)
        loop = f"k2_slowloop_{sub}"
        k.label(loop)
        for c in range(4):
            k.op("s_add_u32", S(sLd), S(sUo), c * 4096)
            for i in range(4): k.op("buffer_load_dwordx4", A((c * 4 + i) * 4, 4), V(vL16), S(sK, 4), S(sLd), mods=f"offen offset:{i*1024}")
        k.wait(vm=0)
        for f in range(16):
            kb, ds = f >> 2, f & 3
            for qb in range(2):
                d = V(s0 + qb * 16 + kb * 4, 4)
                mf(d, A(f * 4, 4), V(Qreg(sub, qb, ds), 4), "0" if ds == 0 else d)
        for c in range(4):
            k.op("s_add_u32", S(sLd), S(sUo), c * 4096 + 16384)
            for i in range(4): k.op("buffer_load_dwordx4", A((c * 4 + i) * 4, 4), V(vL16), S(sV, 4), S(sLd), mods=f"offen offset:{i*1024}")
        lab = k.newlabel("snomask")
        k.op("s_cmp_lg_u32", S(sU), S(sNa if sub == 0 else sNb)); k.op("s_cbranch_scc1", lab)
        mask_block(sub, 0)
        k.label(lab)
        for qb in range(2):
            al = m[qb] + 1
            rowmax(sub, 0, qb, vT + 3)
            k.op("v_max_f32", V(vT + 3), V(vT + 3), V(m[qb]))
            k.op("v_sub_f32", V(al), V(m[qb]), V(vT + 3))
            k.op("v_mov_b32", V(m[qb]), V(vT + 3))
            k.op("v_exp_f32", V(al), V(al))
            for e in range(16): k.op("v_sub_f32", V(s0 + 16 * qb + e), V(s0 + 16 * qb + e), V(m[qb]))
            for i in range(4): k.op("v_mul_f32", V(Lac(sub, qb) + i), V(Lac(sub, qb) + i), V(al))
            for db in range(8):
                for i in range(4):
                    ar = OA + sub * 64 + (db * 2 + qb) * 4 + i
                    k.op("v_accvgpr_read_b32", V(vT + (i & 1)), A(ar))
                    k.op("v_mul_f32", V(vT + (i & 1)), V(vT + (i & 1)), V(al))
                    k.op("v_accvgpr_write_b32", A(ar), V(vT + (i & 1)))
        for n in range(33):
            if n < 32: soft_exp(sub, 0, n)
            else: k.nop(1)
            if n % 2 == 0 and n: soft_cvt(sub, 0, n)
        k.wait(vm=0)
        k.nop(1)
        for f in range(16):
            k32, db = f >> 3, f & 7
            for qb in range(2):
                d = A(OA + sub * 64 + (db * 2 + qb) * 4, 4)
                mf(d, A(f * 4, 4), V(s0 + qb * 16 + k32 * 8, 4), d)
            if f % 4 == 3:
                qb = (f >> 2) & 1
                d = V(Lac(sub, qb), 4)
                mf(d, V(ON1, 4), V(s0 + qb * 16 + k32 * 8, 4), d)
        k.op("s_add_u32", S(sUo), S(sUo), 16384)
        k.op("s_add_u32", S(sU), S(sU), 1)
        k.nop(8)
        k.op("s_cmp_le_u32", S(sU), S(sNa if sub == 0 else sNb))
        k.op("s_cbranch_scc1", loop)
        for (site, lab) in sites[:-1]:
            k.op("s_cmp_eq_u32", S(sRet), site); k.op("s_cbranch_scc1", lab)
        k.op("s_branch", sites[-1][1])
    k.label("k2_end")
    k.op("s_endpgm")
    return k

if __name__ == "__main__":
    k = build_k2()
    for e in k.check_hazards(): print(e)
    for e in k.check_waits(): print(e)
    print(k.maxregs(), len(k.ins))
```

```python
from common import *
from k1_v1 import layernorm

def build_k1(store_mods="", stamps=False, prefetch=True, twice=False, noln=False, pf2=True, pf2at=13, D=6, LN0=2, nostore=False, skew=True, pfself=False):
    k = Kern("k1_kernel")
    vq, lq = Q(k, "vmcnt", 63), Q(k, "lgkmcnt", 15)
    stp = Stamps(k, stamps, 60, 0, lq, maxn=10)
    sX, sC, sWm, sWS, sP = 8, 12, 16, 24, 20
    sW, sH, sKV, sRq = 28, 29, 30, 34
    sT0, sT1, sT2 = 31, 32, 33
    sSo, sSo2, sW4k, sW8k, sAo, sSt = 36, 37, 38, 39, 35, 56
    sR = 50
    vL, vL16 = 1, 2
    TA = 16
    VA = 28
    VW = 36
    AAr = 40
    AF = 52
    ACC = 84
    LNR = 148
    X0, X1 = 180, 184
    g, l15, r_, cc, g1, t0, t1, p8 = 4, 5, 6, 7, 8, 9, 10, 11
    k.op("s_cmp_ge_u32", "s2", 256)
    k.op("s_cbranch_scc1", "k1_end")
    k.op("s_load_dwordx4", S(40, 4), S(0, 2), KA["x"])
    k.op("s_load_dwordx4", S(44, 4), S(0, 2), KA["wuk"])
    k.op("s_load_dwordx2", S(48, 2), S(0, 2), KA["ws"])
    k.op("s_load_dwordx2", S(98, 2), S(0, 2), KA["wq"])
    k.op("s_load_dwordx2", S(100, 2), S(0, 2), KA["w1"])
    k.op("v_and_b32", V(vL), 63, "v0")
    k.op("v_lshrrev_b32", V(t0), 6, "v0")
    k.op("s_and_b32", S(sT0), "s2", 7)
    k.op("v_readfirstlane_b32", S(sW), V(t0))
    k.op("s_lshr_b32", S(sT1), "s2", 3)
    k.op("s_and_b32", S(sT2), S(sT1), 3)
    k.op("s_lshl_b32", S(sH), S(sT0), 2)
    k.op("s_add_u32", S(sH), S(sH), S(sT2))
    k.op("s_bfe_u32", S(sKV), S(sT1), "0x10002")
    k.op("s_lshr_b32", S(sRq), S(sT1), 3)
    k.op("v_lshlrev_b32", V(vL16), 4, V(vL))
    k.op("v_lshrrev_b32", V(g), 4, V(vL))
    k.op("v_and_b32", V(l15), 15, V(vL))
    k.op("v_bfe_u32", V(r_), V(vL), 2, 2)
    k.op("v_and_b32", V(cc), 3, V(vL))
    k.op("v_and_b32", V(g1), 1, V(g))
    k.op("v_and_b32", V(p8), 7, V(vL))
    if pfself:
        k.op("s_lshr_b32", S(sT1), "s2", 3)
        k.op("s_lshl_b32", S(sT1), S(sT1), 2)
        k.op("s_add_u32", S(sT1), S(sT1), S(sW))
        k.op("s_lshl_b32", S(sT1), S(sT1), 13)
        lab = k.newlabel("pc")
        k.op("s_getpc_b64", S(sP, 2))
        k.label(lab)
        k.op("s_and_b32", S(sP + 1), S(sP + 1), "0xffff")
        k.op("s_mov_b32", S(sP + 2), f"k1_end-{lab}")
        k.op("s_mov_b32", S(sP + 3), "0x20000")
        k.op("v_lshlrev_b32", V(13), 7, V(vL))
        k.op("buffer_load_dword", V(14), V(13), S(sP, 4), S(sT1), mods="offen", dummy=True); vq.issue()
    k.op("s_lshl_b32", S(sW4k), S(sW), 12)
    k.op("s_lshl_b32", S(sW8k), S(sW), 13)
    k.op("v_lshlrev_b32", V(t0), 1, V(g))
    k.op("v_xor_b32", V(t0), V(t0), V(l15))
    k.op("v_lshlrev_b32", V(t0), 4, V(t0))
    k.op("v_lshl_add_u32", V(t0), V(g), 13, V(t0))
    k.op("s_lshl_b32", S(sT0), S(sW), 17)
    k.op("s_lshl_b32", S(sT1), S(sH), 8)
    k.op("s_add_u32", S(sT0), S(sT0), S(sT1))
    k.op("v_add_u32", V(VW), S(sT0), V(t0))
    k.op("v_add_u32", V(VW + 1), 32768 - 1024, V(VW))
    k.op("v_xor_b32", V(VW + 2), 128, V(VW))
    k.op("v_add_u32", V(VW + 2), 2 * (32768 - 1024), V(VW + 2))
    k.op("v_add_u32", V(VW + 3), 32768 - 1024, V(VW + 2))
    k.op("s_and_b32", S(sT0), S(sW), 1)
    k.op("s_lshl_b32", S(sT0), S(sT0), 7)
    k.op("v_xor_b32", V(t0), S(sT0), V(vL16))
    for i in range(8): k.op("v_xor_b32", V(VA + i), i * 16, V(t0))
    k.op("s_lshl_b32", S(sAo), S(sRq), 19)
    k.op("s_lshr_b32", S(sT1), S(sW), 1)
    k.op("s_lshl_b32", S(sT1), S(sT1), 15)
    k.op("s_add_u32", S(sAo), S(sAo), S(sT1))
    k.op("s_lshl_b32", S(sT0), S(sT0), 6)
    k.op("s_add_u32", S(sAo), S(sAo), S(sT0))
    CHA, CHS = 84, 3
    k.op("s_lshr_b32", S(sT0), "s2", 3)
    k.op("s_and_b32", S(sT0), S(sT0), 3)
    for i in range(8):
        if skew: skew_stage(k, CHA + i, sT0, i, 8, sT1)
        else: k.op("s_mov_b32", S(CHA + i), i)
        k.op("s_lshl_b32", S(CHA + i), S(CHA + i), 16)
        k.op("s_add_u32", S(CHA + i), S(CHA + i), S(sAo))
    k.wait(lgkm=0)
    stp.stamp()
    load_srd(k, sC, "ckv", 42)
    k.op("s_cmp_eq_u32", S(sKV), 0)
    k.op("s_cselect_b32", S(sWm), S(44), S(46))
    k.op("s_cselect_b32", S(sWm + 1), S(45), S(47))
    k.op("s_and_b32", S(sWm + 1), S(sWm + 1), "0xffff")
    k.op("s_mov_b32", S(sWm + 2), hex(4 << 20))
    k.op("s_mov_b32", S(sWm + 3), "0x20000")
    def aslot(st): return [1, 2, 0, 3, 4][(st - 2) % 5] * 32768
    def wslot(s): return (s % 6) * 16384
    def dma_w_items(s):
        def setup():
            k.op("s_add_u32", "m0", S(sW4k), wslot(s))
            k.op("s_mov_b32", S(sSo), s * 524288)
        def ld(i):
            def f():
                k.op("buffer_load_dwordx4", V(VW + i), S(sWm, 4), S(sSo), mods=f"offen offset:{i*1024} lds"); vq.issue(("W", s))
            return f
        return [setup] + [ld(i) for i in range(4)]
    def dma_a_items(st):
        it = []
        for u in range(2):
            def setup(u=u):
                k.op("s_add_u32", "m0", S(sW8k), aslot(st) + u * 4096)
                k.op("s_add_u32", S(sSo), S(CHA + (st >> 1)), (st & 1) * 16384 + u * 4096)
            it.append(setup)
            for i in range(4):
                def f(i=i, u=u):
                    k.op("buffer_load_dwordx4", V(VA + 4 * u + i), S(sC, 4), S(sSo), mods=f"offen offset:{i*1024} lds"); vq.issue(("A", st))
                it.append(f)
        return it
    for f in dma_w_items(0) + dma_a_items(0) + dma_w_items(1) + dma_a_items(1): f()
    stp.stamp()
    load_srd(k, sX, "x", 40); load_srd(k, sWS, "ws", 48)
    k.op("v_lshl_or_b32", V(t1), V(g1), 2, V(r_))
    k.op("s_and_b32", S(sT0), S(sW), 1)
    k.op("s_lshl_b32", S(sT0), S(sT0), 2)
    k.op("v_xor_b32", V(t1), S(sT0), V(t1))
    k.op("v_lshl_add_u32", V(t0), V(g), 3, V(r_))
    k.op("v_lshlrev_b32", V(t0), 8, V(t0))
    k.op("v_lshl_add_u32", V(t0), V(cc), 3, V(t0))
    for nb in range(4):
        k.op("v_xor_b32", V(12), nb, V(t1))
        k.op("v_lshl_add_u32", V(TA + nb), V(12), 5, V(t0))
        k.op("v_add_u32", V(TA + 4 + nb), 65536, V(TA + nb))
    k.op("s_lshr_b32", S(sT0), S(sW), 1)
    k.op("s_lshl_b32", S(sT0), S(sT0), 14)
    k.op("v_lshlrev_b32", V(t0), 10, V(l15))
    k.op("v_add_u32", V(t0), S(sT0), V(t0))
    k.op("v_xor_b32", V(t1), V(g), V(l15))
    for q in range(4):
        k.op("v_xor_b32", V(12), 4 * q, V(t1))
        k.op("v_lshl_add_u32", V(AAr + q), V(12), 4, V(t0))
        k.op("v_add_u32", V(AAr + 4 + q), 65536, V(AAr + q))
        k.op("v_add_u32", V(AAr + 8 + q), 131072, V(AAr + q))
    k.op("s_lshl_b32", S(sSt), S(sH), 19)
    k.op("s_lshl_b32", S(sT1), S(sRq), 17)
    k.op("s_add_u32", S(sSt), S(sSt), S(sT1))
    k.op("s_lshr_b32", S(sT1), S(sW), 1)
    k.op("s_lshl_b32", S(sT1), S(sT1), 13)
    k.op("s_add_u32", S(sSt), S(sSt), S(sT1))
    k.op("s_and_b32", S(sT1), S(sW), 1)
    k.op("s_lshl_b32", S(sT2), S(sT1), 12)
    k.op("s_add_u32", S(sT2), S(sT2), VF_OFF)
    k.op("s_lshl_b32", S(sT1), S(sT1), 11)
    k.op("s_add_u32", S(sT1), S(sT1), KF_OFF)
    k.op("s_cmp_eq_u32", S(sKV), 0)
    k.op("s_cselect_b32", S(sT1), S(sT1), S(sT2))
    k.op("s_add_u32", S(sSt), S(sSt), S(sT1))
    k.op("s_lshr_b32", S(sT1), S(sAo), 2)
    k.op("s_sub_u32", S(sSt), S(sSt), S(sT1))
    k.op("s_lshl_b32", S(sR), "s2", 3)
    k.op("s_lshl_b32", S(sT1), S(sW), 1)
    k.op("s_add_u32", S(sR), S(sR), S(sT1))
    k.op("s_lshr_b32", S(sR + 1), S(sR), 4)
    k.op("s_lshl_b32", S(sR + 1), S(sR + 1), 14)
    k.op("s_and_b32", S(sR + 2), S(sR), 15)
    k.op("s_lshl_b32", S(sR + 2), S(sR + 2), 4)
    k.op("s_add_u32", S(sR + 1), S(sR + 1), S(sR + 2))
    k.op("s_lshl_b32", S(sR + 2), S(sR), 3)
    k.op("s_add_u32", S(sR + 2), S(sR + 2), YF_OFF)
    k.op("s_lshl_b32", S(sR), S(sR), 10)
    vLd, vLz = LNR + 29, LNR + 30
    k.op("v_mov_b32", V(vLz), 0)
    k.op("v_lshrrev_b32", V(vLd), 2, V(vL))
    k.op("v_lshlrev_b32", V(vLd), 10, V(vLd))
    k.op("v_lshl_add_u32", V(vLd), V(cc), 8, V(vLd))
    k.op("buffer_load_dwordx4", V(X0, 4), V(vL16), S(sX, 4), S(sR), mods="offen"); vq.issue("ln")
    k.op("buffer_load_dwordx4", V(X1, 4), V(vL16), S(sX, 4), S(sR), mods="offen offset:1024"); vq.issue("ln")
    k.op("s_lshl_b32", S(sT1), "s2", 8)
    k.op("s_add_u32", S(sT1), S(sT1), FLAG_OFF)
    for i in range(4): k.op("v_mov_b32", V(188 + i), 0)
    k.op("buffer_store_dwordx4", V(188, 4), V(vLz), S(sWS, 4), S(sT1), mods="offen"); vq.issue()
    k.op("s_lshl_b32", S(sT1), "s2", 4)
    k.op("s_add_u32", S(sT1), S(sT1), FLAG2_OFF)
    k.op("buffer_store_dwordx4", V(188, 4), V(vLz), S(sWS, 4), S(sT1), mods="offen"); vq.issue()

    def pf_k2():
        k.op("s_lshr_b32", S(sT1), "s2", 3)
        k.op("s_lshl_b32", S(sT1), S(sT1), 2)
        k.op("s_add_u32", S(sT1), S(sT1), S(sW))
        k.op("s_and_b32", S(sT0), "s2", 7)
        load_srd(k, sP, "wq", 98)
        k.op("v_bfe_u32", V(12), V(vL), 3, 2)
        k.op("v_lshlrev_b32", V(13), 13, V(12))
        k.op("v_lshl_add_u32", V(13), V(p8), 7, V(13))
        k.op("s_lshl_b32", S(sSo2), S(sT1), 15)
        k.op("s_lshl_b32", S(sT2), S(sT0), 10)
        k.op("s_add_u32", S(sSo2), S(sSo2), S(sT2))
        k.op("buffer_load_dword", V(14), V(13), S(sP, 4), S(sSo2), mods="offen", dummy=True); vq.issue()
        load_srd(k, sWm, "w1", 100)
        k.op("v_mul_u32_u24", V(13), 2752, V(12))
        k.op("v_lshl_add_u32", V(13), V(p8), 6, V(13))
        k.op("s_mul_i32", S(sSo2), S(sT1), 4 * 2752)
        k.op("s_mul_i32", S(sT2), S(sT0), 384)
        k.op("s_add_u32", S(sSo2), S(sSo2), S(sT2))
        k.op("buffer_load_dword", V(14), V(13), S(sWm, 4), S(sSo2), mods="offen", dummy=True); vq.issue()
        k.op("s_lshl_b32", S(sSo2), S(sT1), 13)
        pf_code(k, sX, "k2_kernel", "k2_slow_0-k2_kernel", 13, vL, sSo2, 14); vq.issue()

    k.op("s_cmp_lg_u32", S(sKV), 0)
    k.op("s_cbranch_scc1", "k1_V")
    import copy
    vq0, lq0, n0 = copy.deepcopy((vq.q, vq.ever)), copy.deepcopy((lq.q, lq.ever)), stp.n
    for kv in range(2):
        if kv:
            k.label("k1_V")
            vq.q, vq.ever = copy.deepcopy(vq0); lq.q, lq.ever = copy.deepcopy(lq0); stp.n = n0
        onst = lambda i: vq.issue() if i.kind == "vstore" else None
        q1, q2, lnq = FillQ(k), FillQ(k, on_emit=onst), FillQ(k, on_emit=onst)
        if not noln:
            lnq.add(lambda: vq.need("ln"))
            for r, X in enumerate((X0, X1)):
                ln = Kern("ln")
                layernorm(ln, X, LNR + 4, LNR + 8, LNR + 16)
                layernorm(ln, LNR + 4, LNR + 24, LNR + 8, LNR + 16, stats_only=True)
                ln.op("buffer_store_dwordx4", V(LNR + 4, 4), V(vLd), S(sWS, 4), S(sR + 1), mods=f"offen offset:{16*r}")
                ln.op("buffer_store_dwordx2", V(LNR + 24, 2), V(vLz), S(sWS, 4), S(sR + 2), mods=f"offen offset:{8*r}")
                ln.nop(2)
                lnq.add_kern(ln)
        def acc(st, nb): return ACC + 16 * (st % 4) + 4 * nb
        def pack(e, a, b):
            e.op("v_cvt_pk_bf16_f32", V(a), V(a), V(a + 1))
            e.op("v_cvt_pk_bf16_f32", V(a + 1), V(a + 2), V(a + 3))
            e.op("v_cvt_pk_bf16_f32", V(a + 2), V(b), V(b + 1))
            e.op("v_cvt_pk_bf16_f32", V(a + 3), V(b + 2), V(b + 3))
        def epi(st):
            e = Kern("e")
            if kv == 0:
                e.op("s_lshr_b32", S(sSo2), S(CHA + (st >> 1)), 2)
                e.op("s_add_u32", S(sSo2), S(sSo2), S(sSt))
                if st & 1: e.op("s_add_u32", S(sSo2), S(sSo2), 4096)
                for p in range(2):
                    pack(e, acc(st, 2 * p), acc(st, 2 * p + 1))
                    e.op("buffer_store_dwordx4", V(acc(st, 2 * p), 4), V(vL16), S(sWS, 4), S(sSo2), mods=f"offen offset:{p*1024}{store_mods}")
            elif st & 1:
                e.op("s_lshr_b32", S(sSo2), S(CHA + (st >> 1)), 2)
                e.op("s_add_u32", S(sSo2), S(sSo2), S(sSt))
                for nb in range(4):
                    pack(e, acc(st - 1, nb), acc(st, nb))
                    e.op("buffer_store_dwordx4", V(acc(st - 1, nb), 4), V(vL16), S(sWS, 4), S(sSo2), mods=f"offen offset:{nb*1024}{store_mods}")
            if nostore: e.ins = [i for i in e.ins if i.kind != "vstore"]
            return e
        AF2 = 192
        def afr(n, alt=False): return (AF2 if alt else AF) + (n % 8) * 4
        def rd_act(n, alt=False):
            st, ks = n >> 4, n & 15
            if ks == 0 and st > 1:
                if st == 2: assert len(lq.q) == 0
                vq.need(("A", st), cnt=[8])
                k.op("s_barrier")
                q1.flush()
                if st == 2:
                    for f in dma_a_items(4): q1.add(f)
                if st >= 3 and st + 2 < 16:
                    pass
                if st >= 2 and st + 3 < 16:
                    for f in dma_a_items(st + 3): q1.add(f)
            off = aslot(st)
            wn = off // 65536
            k.op("ds_read_b128", V(afr(n, alt), 4), V(AAr + 4 * wn + (ks & 3)), mods=f"offset:{off - wn*65536 + (ks>>2)*256}")
            lq.issue(("a", n))
        def mf(st, ks, nb, n, alt=False):
            d = V(acc(st, nb), 4); wf = A((ks * 4 + nb) * 4, 4); af = V(afr(n, alt), 4)
            if kv == 0: k.op("v_mfma_f32_16x16x32_bf16", d, wf, af, "0" if ks == 0 else d)
            else: k.op("v_mfma_f32_16x16x32_bf16", d, af, wf, "0" if ks == 0 else d)
        def wread_items(s):
            it = []
            for ks in (2 * s, 2 * s + 1):
                for nb in range(4):
                    for i in range(2):
                        def f(ks=ks, nb=nb, i=i):
                            off = wslot(s) + (ks & 1) * 8192 + i * 1024
                            wn = off // 65536
                            k.op("ds_read_b64_tr_b16", A((ks * 4 + nb) * 4 + 2 * i, 2), V(TA + 4 * wn + nb), mods=f"offset:{off - wn*65536}")
                            lq.issue(("w", ks))
                        it.append(f)
                it.append(lambda ks=ks: rd_act(ks))
                it.append(lambda ks=ks: rd_act(16 + ks, True))
            return it
        for f in dma_w_items(2) + dma_w_items(3): f()
        qr = FillQ(k)
        for s in range(9):
            if s < 8:
                vq.need(("W", s), ("A", 0), ("A", 1), cnt=[4, 8, 8])
                k.op("s_barrier")
                if s == 0: stp.stamp()
                for f in wread_items(s): qr.add(f)
                if s + 4 < 8:
                    for f in dma_w_items(s + 4): q1.add(f)
                if s == 5:
                    for f in dma_a_items(2): q1.add(f)
                if s == 7:
                    for f in dma_a_items(3): q1.add(f)
            if s == 0:
                qr.flush(); q1.flush(); continue
            for ks in (2 * s - 2, 2 * s - 1):
                lq.need(("w", ks), ("a", ks), ("a", 16 + ks), cnt=[8, 1, 1])
                if ks == 15:
                    for n in range(32, 32 + D): qr.add(lambda n=n: rd_act(n))
                for alt in range(2):
                    for nb in range(4):
                        mf(alt, ks, nb, 16 * alt + ks, bool(alt))
                        qr.emit(2)
                        if len(qr) == 0: q1.emit(1)
            qr.flush()
            if s < 8: q1.flush()
        stp.stamp()
        nxt = 32 + D
        for n in range(32, 256):
            st, ks = n >> 4, n & 15
            if n in (64, 128, 192): stp.stamp()
            if n == 34: q2.add_kern(epi(0))
            if ks == 2: q2.add_kern(epi(st - 1))
            if pf2 and n == pf2at * 16 + 8: pf_k2()
            if n % 2 == 0: lq.need(("a", n), ("a", n + 1), cnt=[1, 1])
            for nb in range(4):
                mf(st, ks, nb, n)
                cap = 1
                if nb == 0 and nxt < 256:
                    rd_act(nxt); nxt += 1; cap = 0
                cap -= q1.emit(cap)
                cap -= q2.emit(cap)
                if st >= LN0: cap -= lnq.emit(cap)
        stp.stamp()
        q2.flush(); lnq.flush()
        k.nop(8)
        q2.add_kern(epi(15)); q2.flush()
        if pf2 and pf2at >= 16: pf_k2()
        if stamps:
            k.wait(vm=0)
            stp.stamp()
            stp.flush(sWS, sW, 4)
        k.op("s_endpgm")
    k.label("k1_end")
    k.op("s_endpgm")
    return k

if __name__ == "__main__":
    k = build_k1()
    for e in k.check_hazards(): print(e)
    for e in k.check_waits(): print(e)
    print(k.maxregs(), len(k.ins))
```

```python
from dsl import *

XN_OFF = 0
YF_OFF = 2 << 20
KF_OFF = 4 << 20
VF_OFF = 20 << 20
CTX_OFF = 36 << 20
HF_OFF = 52 << 20
WS_BYTES = 64 << 20

KA = dict(x=0, ckv=8, wq=16, wuk=24, wuv=32, wo=40, bx=48, w1=56, b1=64, w2=72, b2=80, out=88, dbg=96, ws=104)
SZ = dict(x=2 << 20, ckv=2 << 20, wq=4 << 20, wuk=4 << 20, wuv=4 << 20, wo=4 << 20, w1=512 * 1376 * 2,
          b1=1376 * 2, w2=1376 * 512 * 2, b2=1024, out=2 << 20, ws=WS_BYTES)

class Q:
    def __init__(self, k, name, maxn):
        self.k, self.name, self.maxn = k, name, maxn
        self.q = []
        self.ever = {}
    def issue(self, tag=None):
        self.q.append(tag)
        self.ever[tag] = self.ever.get(tag, 0) + 1
    def need(self, *tags, cnt=None):
        if cnt:
            for t, c in zip(tags, cnt): assert self.ever.get(t, 0) == c, (t, c, self.ever.get(t, 0))
        last = -1
        for i, t in enumerate(self.q):
            if t in tags: last = i
        if last < 0: return
        n = len(self.q) - 1 - last
        n = min(n, self.maxn)
        self.k.op("s_waitcnt", f"{self.name}({n})")
        self.q = self.q[len(self.q) - n:] if n else []
    def drain(self):
        self.k.op("s_waitcnt", f"{self.name}(0)")
        self.q = []

def load_srd(k, dst, name, tmp):
    k.op("s_mov_b32", S(dst), S(tmp))
    k.op("s_and_b32", S(dst + 1), S(tmp + 1), "0xffff")
    k.op("s_mov_b32", S(dst + 2), hex(SZ[name]))
    k.op("s_mov_b32", S(dst + 3), "0x20000")

def wave_sum(k, v, t):
    k.nop(2)
    k.op("v_add_f32_dpp", V(v), V(v), V(v), mods="quad_perm:[1,0,3,2] row_mask:0xf bank_mask:0xf")
    k.nop(2)
    k.op("v_add_f32_dpp", V(v), V(v), V(v), mods="quad_perm:[2,3,0,1] row_mask:0xf bank_mask:0xf")
    k.nop(2)
    k.op("v_add_f32_dpp", V(v), V(v), V(v), mods="row_half_mirror row_mask:0xf bank_mask:0xf")
    k.nop(2)
    k.op("v_add_f32_dpp", V(v), V(v), V(v), mods="row_mirror row_mask:0xf bank_mask:0xf")
    k.op("v_mov_b32", V(t), V(v))
    k.nop(2)
    k.op("v_permlane16_swap_b32", V(v), V(t))
    k.op("v_add_f32", V(v), V(v), V(t))
    k.op("v_mov_b32", V(t), V(v))
    k.nop(2)
    k.op("v_permlane32_swap_b32", V(v), V(t))
    k.op("v_add_f32", V(v), V(v), V(t))

def rbf(k, dst, src):
    k.op("v_cvt_pk_bf16_f32", V(dst), V(src), V(src))
    k.op("v_lshlrev_b32", V(dst), 16, V(dst))

def descriptor(k, vgpr=None, sgpr=None, accum=None):
    mv, ms, ma = k.maxregs()
    vgpr = vgpr or mv
    sgpr = sgpr or ms
    assert mv <= vgpr and ms <= sgpr, (mv, ms)
    acc = accum or ((mv + 3) // 4 * 4)
    if ma: assert vgpr >= acc + ma, (vgpr, acc, ma)
    return f""".amdhsa_kernel {k.name}
  .amdhsa_next_free_vgpr {vgpr}
  .amdhsa_next_free_sgpr {sgpr}
  .amdhsa_accum_offset {acc}
  .amdhsa_group_segment_fixed_size 0
  .amdhsa_kernarg_size 112
  .amdhsa_user_sgpr_count 2
  .amdhsa_user_sgpr_kernarg_segment_ptr 1
  .amdhsa_system_sgpr_workgroup_id_x 1
  .amdhsa_float_denorm_mode_32 3
.end_amdhsa_kernel
"""

STAMP_OFF = 60 << 20
FLAG_OFF = 59 << 20
FLAG2_OFF = FLAG_OFF + 65536
class Stamps:
    def __init__(self, k, enabled, base, kidx, lq=None, maxn=16):
        self.k, self.en, self.base, self.n, self.kidx, self.lq, self.m = k, enabled, base, 0, kidx, lq, maxn
    def stamp(self):
        if not self.en: return
        k = self.k
        assert self.n < self.m
        k.op("s_memrealtime", S(self.base + 2 * self.m, 2))
        k.op("s_memtime", S(self.base + 2 * self.m + 2, 2))
        if self.lq: self.lq.drain()
        else: k.wait(lgkm=0)
        k.op("s_mov_b32", S(self.base + self.n), S(self.base + 2 * self.m))
        k.op("s_mov_b32", S(self.base + self.m + self.n), S(self.base + 2 * self.m + 2))
        self.n += 1
    def flush(self, sWS, sW, vt):
        if not self.en: return
        k = self.k
        t = self.base + 2 * self.m
        k.op("s_lshl_b32", S(t), "s2", 3)
        k.op("s_add_u32", S(t), S(t), S(sW))
        k.op("s_lshl_b32", S(t), S(t), 7)
        k.op("s_add_u32", S(t), S(t), STAMP_OFF + self.kidx * (1 << 18))
        k.op("v_mov_b32", V(vt + 1), 0)
        for i in range(self.n):
            k.op("v_mov_b32", V(vt), S(self.base + i))
            k.op("buffer_store_dword", V(vt), V(vt + 1), S(sWS, 4), S(t), mods=f"offen offset:{4*i}")
            k.op("v_mov_b32", V(vt), S(self.base + self.m + i))
            k.op("buffer_store_dword", V(vt), V(vt + 1), S(sWS, 4), S(t), mods=f"offen offset:{64+4*i}")

class FillQ:
    def __init__(self, k, on_emit=None):
        self.k, self.q, self.last, self.need, self.on_emit = k, [], 0, 0, on_emit
    def add_kern(self, side):
        self.q += list(side.ins)
    def add(self, f):
        self.q.append(f)
    def count_since(self):
        return sum(i.states() for i in self.k.ins[self.last:] if i.mn)
    def emit(self, n=1, force=False):
        done = 0
        while self.q and done < n:
            it = self.q[0]
            if isinstance(it, Ins) and it.mn == "s_nop":
                self.need = max(self.need, it.states()); self.q.pop(0); continue
            if self.need:
                have = self.count_since()
                if have < self.need:
                    if not force: return done
                    self.k.nop(self.need - have)
                self.need = 0
            self.q.pop(0)
            if isinstance(it, Ins):
                self.k.ins.append(it)
                if self.on_emit: self.on_emit(it)
            else:
                it()
            self.last = len(self.k.ins)
            done += 1
        return done
    def flush(self):
        while self.q: self.emit(1, force=True)
    def __len__(self): return len(self.q)

def skew_stage(k, dst, sRot, i, N, t1, lag=4):
    assert lag == 4
    if i == 0:
        k.op("s_mov_b32", S(dst), S(sRot))
    elif i + 3 < N:
        t = i + 3
        k.op("s_cmp_eq_u32", S(sRot), t & 3)
        k.op("s_cselect_b32", S(dst), t, t - 4)
    else:
        j = i + 3 - N
        cand = N - 4 + j
        k.op("s_add_u32", S(t1), S(sRot), (4 - (N - 4)) & 3)
        k.op("s_and_b32", S(t1), S(t1), 3)
        k.op("s_cmp_le_u32", S(t1), j)
        k.op("s_cselect_b32", S(dst), cand + 1, cand)

def pf_code(k, srd, label, nbytes, vtmp, vlane, sIdx, dummy):
    lab = k.newlabel("pc")
    k.op("s_getpc_b64", S(srd, 2))
    k.label(lab)
    k.op("s_add_u32", S(srd), S(srd), f"{label}-{lab}")
    k.op("s_addc_u32", S(srd + 1), S(srd + 1), 0)
    k.op("s_and_b32", S(srd + 1), S(srd + 1), "0xffff")
    k.op("s_mov_b32", S(srd + 2), nbytes)
    k.op("s_mov_b32", S(srd + 3), "0x20000")
    k.op("v_lshlrev_b32", V(vtmp), 7, V(vlane))
    k.op("buffer_load_dword", V(dummy), V(vtmp), S(srd, 4), S(sIdx), mods="offen", dummy=True)

def pf_self(k, endlabel, srd=4, vt=14):
    lab = k.newlabel("pc")
    k.op("s_getpc_b64", S(srd, 2))
    k.label(lab)
    k.op("v_lshlrev_b32", V(vt), 7, "v0")
    k.op("s_and_b32", S(srd + 1), S(srd + 1), "0xffff")
    k.op("s_mov_b32", S(srd + 2), f"{endlabel}-{lab}")
    k.op("s_mov_b32", S(srd + 3), "0x20000")
    k.op("s_lshr_b32", "s3", "s2", 3)
    k.op("s_lshl_b32", "s3", "s3", 15)
    k.op("buffer_load_dword", V(vt + 1), V(vt), S(srd, 4), "s3", mods="offen", dummy=True)
```

```python
from common import *
from k1_v1 import layernorm

def build_k1(store_mods="", stamps=False, prefetch=True, twice=False, noln=False, pf2=True, pf2at=13, D=6, LN0=2, nostore=False, skew=True, pfself=True):
    k = Kern("k1_kernel")
    vq, lq = Q(k, "vmcnt", 63), Q(k, "lgkmcnt", 15)
    stp = Stamps(k, stamps, 60, 0, lq, maxn=10)
    sX, sC, sWm, sWS, sP = 8, 12, 16, 24, 20
    sW, sH, sKV, sRq = 28, 29, 30, 34
    sT0, sT1, sT2 = 31, 32, 33
    sSo, sSo2, sW4k, sW8k, sAo, sSt = 36, 37, 38, 39, 35, 56
    sR = 50
    vL, vL16 = 1, 2
    TA = 16
    VA = 28
    VW = 36
    AAr = 40
    AF = 52
    ACC = 84
    LNR = 148
    X0, X1 = 180, 184
    g, l15, r_, cc, g1, t0, t1, p8 = 4, 5, 6, 7, 8, 9, 10, 11
    k.op("s_cmp_ge_u32", "s2", 256)
    k.op("s_cbranch_scc1", "k1_end")
    if pfself:
        pf_self(k, "k1_end", vt=14); vq.issue()
    k.op("s_load_dwordx4", S(40, 4), S(0, 2), KA["x"])
    k.op("s_load_dwordx4", S(44, 4), S(0, 2), KA["wuk"])
    k.op("s_load_dwordx2", S(48, 2), S(0, 2), KA["ws"])
    k.op("s_load_dwordx2", S(98, 2), S(0, 2), KA["wq"])
    k.op("s_load_dwordx2", S(100, 2), S(0, 2), KA["w1"])
    k.op("v_and_b32", V(vL), 63, "v0")
    k.op("v_lshrrev_b32", V(t0), 6, "v0")
    k.op("s_and_b32", S(sT0), "s2", 7)
    k.op("v_readfirstlane_b32", S(sW), V(t0))
    k.op("s_lshr_b32", S(sT1), "s2", 3)
    k.op("s_and_b32", S(sT2), S(sT1), 3)
    k.op("s_lshl_b32", S(sH), S(sT0), 2)
    k.op("s_add_u32", S(sH), S(sH), S(sT2))
    k.op("s_bfe_u32", S(sKV), S(sT1), "0x10002")
    k.op("s_lshr_b32", S(sRq), S(sT1), 3)
    k.op("v_lshlrev_b32", V(vL16), 4, V(vL))
    k.op("v_lshrrev_b32", V(g), 4, V(vL))
    k.op("v_and_b32", V(l15), 15, V(vL))
    k.op("v_bfe_u32", V(r_), V(vL), 2, 2)
    k.op("v_and_b32", V(cc), 3, V(vL))
    k.op("v_and_b32", V(g1), 1, V(g))
    k.op("v_and_b32", V(p8), 7, V(vL))
    k.op("s_lshl_b32", S(sW4k), S(sW), 12)
    k.op("s_lshl_b32", S(sW8k), S(sW), 13)
    k.op("v_lshlrev_b32", V(t0), 1, V(g))
    k.op("v_xor_b32", V(t0), V(t0), V(l15))
    k.op("v_lshlrev_b32", V(t0), 4, V(t0))
    k.op("v_lshl_add_u32", V(t0), V(g), 13, V(t0))
    k.op("s_lshl_b32", S(sT0), S(sW), 17)
    k.op("s_lshl_b32", S(sT1), S(sH), 8)
    k.op("s_add_u32", S(sT0), S(sT0), S(sT1))
    k.op("v_add_u32", V(VW), S(sT0), V(t0))
    k.op("v_add_u32", V(VW + 1), 32768 - 1024, V(VW))
    k.op("v_xor_b32", V(VW + 2), 128, V(VW))
    k.op("v_add_u32", V(VW + 2), 2 * (32768 - 1024), V(VW + 2))
    k.op("v_add_u32", V(VW + 3), 32768 - 1024, V(VW + 2))
    k.op("s_and_b32", S(sT0), S(sW), 1)
    k.op("s_lshl_b32", S(sT0), S(sT0), 7)
    k.op("v_xor_b32", V(t0), S(sT0), V(vL16))
    for i in range(8): k.op("v_xor_b32", V(VA + i), i * 16, V(t0))
    k.op("s_lshl_b32", S(sAo), S(sRq), 19)
    k.op("s_lshr_b32", S(sT1), S(sW), 1)
    k.op("s_lshl_b32", S(sT1), S(sT1), 15)
    k.op("s_add_u32", S(sAo), S(sAo), S(sT1))
    k.op("s_lshl_b32", S(sT0), S(sT0), 6)
    k.op("s_add_u32", S(sAo), S(sAo), S(sT0))
    CHA, CHS = 84, 3
    k.op("s_lshr_b32", S(sT0), "s2", 3)
    k.op("s_and_b32", S(sT0), S(sT0), 3)
    for i in range(8):
        if skew: skew_stage(k, CHA + i, sT0, i, 8, sT1)
        else: k.op("s_mov_b32", S(CHA + i), i)
        k.op("s_lshl_b32", S(CHA + i), S(CHA + i), 16)
        k.op("s_add_u32", S(CHA + i), S(CHA + i), S(sAo))
    k.wait(lgkm=0)
    stp.stamp()
    load_srd(k, sC, "ckv", 42)
    k.op("s_cmp_eq_u32", S(sKV), 0)
    k.op("s_cselect_b32", S(sWm), S(44), S(46))
    k.op("s_cselect_b32", S(sWm + 1), S(45), S(47))
    k.op("s_and_b32", S(sWm + 1), S(sWm + 1), "0xffff")
    k.op("s_mov_b32", S(sWm + 2), hex(4 << 20))
    k.op("s_mov_b32", S(sWm + 3), "0x20000")
    def aslot(st): return [1, 2, 0, 3, 4][(st - 2) % 5] * 32768
    def wslot(s): return (s % 6) * 16384
    def dma_w_items(s):
        def setup():
            k.op("s_add_u32", "m0", S(sW4k), wslot(s))
            k.op("s_mov_b32", S(sSo), s * 524288)
        def ld(i):
            def f():
                k.op("buffer_load_dwordx4", V(VW + i), S(sWm, 4), S(sSo), mods=f"offen offset:{i*1024} lds"); vq.issue(("W", s))
            return f
        return [setup] + [ld(i) for i in range(4)]
    def dma_a_items(st):
        it = []
        for u in range(2):
            def setup(u=u):
                k.op("s_add_u32", "m0", S(sW8k), aslot(st) + u * 4096)
                k.op("s_add_u32", S(sSo), S(CHA + (st >> 1)), (st & 1) * 16384 + u * 4096)
            it.append(setup)
            for i in range(4):
                def f(i=i, u=u):
                    k.op("buffer_load_dwordx4", V(VA + 4 * u + i), S(sC, 4), S(sSo), mods=f"offen offset:{i*1024} lds"); vq.issue(("A", st))
                it.append(f)
        return it
    for f in dma_w_items(0) + dma_a_items(0) + dma_w_items(1) + dma_a_items(1): f()
    stp.stamp()
    load_srd(k, sX, "x", 40); load_srd(k, sWS, "ws", 48)
    k.op("v_lshl_or_b32", V(t1), V(g1), 2, V(r_))
    k.op("s_and_b32", S(sT0), S(sW), 1)
    k.op("s_lshl_b32", S(sT0), S(sT0), 2)
    k.op("v_xor_b32", V(t1), S(sT0), V(t1))
    k.op("v_lshl_add_u32", V(t0), V(g), 3, V(r_))
    k.op("v_lshlrev_b32", V(t0), 8, V(t0))
    k.op("v_lshl_add_u32", V(t0), V(cc), 3, V(t0))
    for nb in range(4):
        k.op("v_xor_b32", V(12), nb, V(t1))
        k.op("v_lshl_add_u32", V(TA + nb), V(12), 5, V(t0))
        k.op("v_add_u32", V(TA + 4 + nb), 65536, V(TA + nb))
    k.op("s_lshr_b32", S(sT0), S(sW), 1)
    k.op("s_lshl_b32", S(sT0), S(sT0), 14)
    k.op("v_lshlrev_b32", V(t0), 10, V(l15))
    k.op("v_add_u32", V(t0), S(sT0), V(t0))
    k.op("v_xor_b32", V(t1), V(g), V(l15))
    for q in range(4):
        k.op("v_xor_b32", V(12), 4 * q, V(t1))
        k.op("v_lshl_add_u32", V(AAr + q), V(12), 4, V(t0))
        k.op("v_add_u32", V(AAr + 4 + q), 65536, V(AAr + q))
        k.op("v_add_u32", V(AAr + 8 + q), 131072, V(AAr + q))
    k.op("s_lshl_b32", S(sSt), S(sH), 19)
    k.op("s_lshl_b32", S(sT1), S(sRq), 17)
    k.op("s_add_u32", S(sSt), S(sSt), S(sT1))
    k.op("s_lshr_b32", S(sT1), S(sW), 1)
    k.op("s_lshl_b32", S(sT1), S(sT1), 13)
    k.op("s_add_u32", S(sSt), S(sSt), S(sT1))
    k.op("s_and_b32", S(sT1), S(sW), 1)
    k.op("s_lshl_b32", S(sT2), S(sT1), 12)
    k.op("s_add_u32", S(sT2), S(sT2), VF_OFF)
    k.op("s_lshl_b32", S(sT1), S(sT1), 11)
    k.op("s_add_u32", S(sT1), S(sT1), KF_OFF)
    k.op("s_cmp_eq_u32", S(sKV), 0)
    k.op("s_cselect_b32", S(sT1), S(sT1), S(sT2))
    k.op("s_add_u32", S(sSt), S(sSt), S(sT1))
    k.op("s_lshr_b32", S(sT1), S(sAo), 2)
    k.op("s_sub_u32", S(sSt), S(sSt), S(sT1))
    k.op("s_lshl_b32", S(sR), "s2", 3)
    k.op("s_lshl_b32", S(sT1), S(sW), 1)
    k.op("s_add_u32", S(sR), S(sR), S(sT1))
    k.op("s_lshr_b32", S(sR + 1), S(sR), 4)
    k.op("s_lshl_b32", S(sR + 1), S(sR + 1), 14)
    k.op("s_and_b32", S(sR + 2), S(sR), 15)
    k.op("s_lshl_b32", S(sR + 2), S(sR + 2), 4)
    k.op("s_add_u32", S(sR + 1), S(sR + 1), S(sR + 2))
    k.op("s_lshl_b32", S(sR + 2), S(sR), 3)
    k.op("s_add_u32", S(sR + 2), S(sR + 2), YF_OFF)
    k.op("s_lshl_b32", S(sR), S(sR), 10)
    vLd, vLz = LNR + 29, LNR + 30
    k.op("v_mov_b32", V(vLz), 0)
    k.op("v_lshrrev_b32", V(vLd), 2, V(vL))
    k.op("v_lshlrev_b32", V(vLd), 10, V(vLd))
    k.op("v_lshl_add_u32", V(vLd), V(cc), 8, V(vLd))
    k.op("buffer_load_dwordx4", V(X0, 4), V(vL16), S(sX, 4), S(sR), mods="offen"); vq.issue("ln")
    k.op("buffer_load_dwordx4", V(X1, 4), V(vL16), S(sX, 4), S(sR), mods="offen offset:1024"); vq.issue("ln")
    k.op("s_lshl_b32", S(sT1), "s2", 8)
    k.op("s_add_u32", S(sT1), S(sT1), FLAG_OFF)
    for i in range(4): k.op("v_mov_b32", V(188 + i), 0)
    k.op("buffer_store_dwordx4", V(188, 4), V(vLz), S(sWS, 4), S(sT1), mods="offen"); vq.issue()
    k.op("s_lshl_b32", S(sT1), "s2", 4)
    k.op("s_add_u32", S(sT1), S(sT1), FLAG2_OFF)
    k.op("buffer_store_dwordx4", V(188, 4), V(vLz), S(sWS, 4), S(sT1), mods="offen"); vq.issue()

    def pf_k2():
        k.op("s_lshr_b32", S(sT1), "s2", 3)
        k.op("s_lshl_b32", S(sT1), S(sT1), 2)
        k.op("s_add_u32", S(sT1), S(sT1), S(sW))
        k.op("s_and_b32", S(sT0), "s2", 7)
        load_srd(k, sP, "wq", 98)
        k.op("v_bfe_u32", V(12), V(vL), 3, 2)
        k.op("v_lshlrev_b32", V(13), 13, V(12))
        k.op("v_lshl_add_u32", V(13), V(p8), 7, V(13))
        k.op("s_lshl_b32", S(57), S(sT1), 15)
        k.op("s_lshl_b32", S(sT2), S(sT0), 10)
        k.op("s_add_u32", S(57), S(57), S(sT2))
        k.op("buffer_load_dword", V(15), V(13), S(sP, 4), S(57), mods="offen", dummy=True); vq.issue()
        load_srd(k, sWm, "w1", 100)
        k.op("v_mul_u32_u24", V(13), 2752, V(12))
        k.op("v_lshl_add_u32", V(13), V(p8), 6, V(13))
        k.op("s_mul_i32", S(57), S(sT1), 4 * 2752)
        k.op("s_mul_i32", S(sT2), S(sT0), 384)
        k.op("s_add_u32", S(57), S(57), S(sT2))
        k.op("buffer_load_dword", V(15), V(13), S(sWm, 4), S(57), mods="offen", dummy=True); vq.issue()
        k.op("s_lshl_b32", S(57), S(sT1), 13)
        pf_code(k, sX, "k2_kernel", "k2_slow_0-k2_kernel", 13, vL, 57, 15); vq.issue()

    k.op("s_cmp_lg_u32", S(sKV), 0)
    k.op("s_cbranch_scc1", "k1_V")
    import copy
    vq0, lq0, n0 = copy.deepcopy((vq.q, vq.ever)), copy.deepcopy((lq.q, lq.ever)), stp.n
    for kv in range(2):
        if kv:
            k.label("k1_V")
            vq.q, vq.ever = copy.deepcopy(vq0); lq.q, lq.ever = copy.deepcopy(lq0); stp.n = n0
        onst = lambda i: vq.issue() if i.kind == "vstore" else None
        q1, q2, lnq = FillQ(k), FillQ(k, on_emit=onst), FillQ(k, on_emit=onst)
        if not noln:
            lnq.add(lambda: vq.need("ln"))
            for r, X in enumerate((X0, X1)):
                ln = Kern("ln")
                layernorm(ln, X, LNR + 4, LNR + 8, LNR + 16)
                layernorm(ln, LNR + 4, LNR + 24, LNR + 8, LNR + 16, stats_only=True)
                ln.op("buffer_store_dwordx4", V(LNR + 4, 4), V(vLd), S(sWS, 4), S(sR + 1), mods=f"offen offset:{16*r}")
                ln.op("buffer_store_dwordx2", V(LNR + 24, 2), V(vLz), S(sWS, 4), S(sR + 2), mods=f"offen offset:{8*r}")
                ln.nop(2)
                lnq.add_kern(ln)
        def acc(st, nb): return ACC + 16 * (st % 4) + 4 * nb
        def pack(e, a, b):
            e.op("v_cvt_pk_bf16_f32", V(a), V(a), V(a + 1))
            e.op("v_cvt_pk_bf16_f32", V(a + 1), V(a + 2), V(a + 3))
            e.op("v_cvt_pk_bf16_f32", V(a + 2), V(b), V(b + 1))
            e.op("v_cvt_pk_bf16_f32", V(a + 3), V(b + 2), V(b + 3))
        def epi(st):
            e = Kern("e")
            if kv == 0:
                e.op("s_lshr_b32", S(sSo2), S(CHA + (st >> 1)), 2)
                e.op("s_add_u32", S(sSo2), S(sSo2), S(sSt))
                if st & 1: e.op("s_add_u32", S(sSo2), S(sSo2), 4096)
                for p in range(2):
                    pack(e, acc(st, 2 * p), acc(st, 2 * p + 1))
                    e.op("buffer_store_dwordx4", V(acc(st, 2 * p), 4), V(vL16), S(sWS, 4), S(sSo2), mods=f"offen offset:{p*1024}{store_mods}")
            elif st & 1:
                e.op("s_lshr_b32", S(sSo2), S(CHA + (st >> 1)), 2)
                e.op("s_add_u32", S(sSo2), S(sSo2), S(sSt))
                for nb in range(4):
                    pack(e, acc(st - 1, nb), acc(st, nb))
                    e.op("buffer_store_dwordx4", V(acc(st - 1, nb), 4), V(vL16), S(sWS, 4), S(sSo2), mods=f"offen offset:{nb*1024}{store_mods}")
            if nostore: e.ins = [i for i in e.ins if i.kind != "vstore"]
            return e
        AF2 = 192
        def afr(n, alt=False): return (AF2 if alt else AF) + (n % 8) * 4
        def rd_act(n, alt=False):
            st, ks = n >> 4, n & 15
            if ks == 0 and st > 1:
                if st == 2: assert len(lq.q) == 0
                vq.need(("A", st), cnt=[8])
                k.op("s_barrier")
                q1.flush()
                if st == 2:
                    for f in dma_a_items(4): q1.add(f)
                if st >= 3 and st + 2 < 16:
                    pass
                if st >= 2 and st + 3 < 16:
                    for f in dma_a_items(st + 3): q1.add(f)
            off = aslot(st)
            wn = off // 65536
            k.op("ds_read_b128", V(afr(n, alt), 4), V(AAr + 4 * wn + (ks & 3)), mods=f"offset:{off - wn*65536 + (ks>>2)*256}")
            lq.issue(("a", n))
        def mf(st, ks, nb, n, alt=False):
            d = V(acc(st, nb), 4); wf = A((ks * 4 + nb) * 4, 4); af = V(afr(n, alt), 4)
            if kv == 0: k.op("v_mfma_f32_16x16x32_bf16", d, wf, af, "0" if ks == 0 else d)
            else: k.op("v_mfma_f32_16x16x32_bf16", d, af, wf, "0" if ks == 0 else d)
        def wread_items(s):
            it = []
            for ks in (2 * s, 2 * s + 1):
                for nb in range(4):
                    for i in range(2):
                        def f(ks=ks, nb=nb, i=i):
                            off = wslot(s) + (ks & 1) * 8192 + i * 1024
                            wn = off // 65536
                            k.op("ds_read_b64_tr_b16", A((ks * 4 + nb) * 4 + 2 * i, 2), V(TA + 4 * wn + nb), mods=f"offset:{off - wn*65536}")
                            lq.issue(("w", ks))
                        it.append(f)
                it.append(lambda ks=ks: rd_act(ks))
                it.append(lambda ks=ks: rd_act(16 + ks, True))
            return it
        for f in dma_w_items(2) + dma_w_items(3): f()
        qr = FillQ(k)
        for s in range(9):
            if s < 8:
                vq.need(("W", s), ("A", 0), ("A", 1), cnt=[4, 8, 8])
                k.op("s_barrier")
                if s == 0: stp.stamp()
                for f in wread_items(s): qr.add(f)
                if s + 4 < 8:
                    for f in dma_w_items(s + 4): q1.add(f)
                if s == 5:
                    for f in dma_a_items(2): q1.add(f)
                if s == 7:
                    for f in dma_a_items(3): q1.add(f)
            if s == 0:
                qr.flush(); q1.flush(); continue
            for ks in (2 * s - 2, 2 * s - 1):
                lq.need(("w", ks), ("a", ks), ("a", 16 + ks), cnt=[8, 1, 1])
                if ks == 15:
                    for n in range(32, 32 + D): qr.add(lambda n=n: rd_act(n))
                for alt in range(2):
                    for nb in range(4):
                        mf(alt, ks, nb, 16 * alt + ks, bool(alt))
                        qr.emit(2)
                        if len(qr) == 0: q1.emit(1)
            qr.flush()
            if s < 8: q1.flush()
        stp.stamp()
        nxt = 32 + D
        for n in range(32, 256):
            st, ks = n >> 4, n & 15
            if n in (64, 128, 192): stp.stamp()
            if n == 34: q2.add_kern(epi(0))
            if ks == 2: q2.add_kern(epi(st - 1))
            if pf2 and n == pf2at * 16 + 8: pf_k2()
            if n % 2 == 0: lq.need(("a", n), ("a", n + 1), cnt=[1, 1])
            for nb in range(4):
                mf(st, ks, nb, n)
                cap = 1
                if nb == 0 and nxt < 256:
                    rd_act(nxt); nxt += 1; cap = 0
                cap -= q1.emit(cap)
                cap -= q2.emit(cap)
                if st >= LN0: cap -= lnq.emit(cap)
        stp.stamp()
        q2.flush(); lnq.flush()
        k.nop(8)
        q2.add_kern(epi(15)); q2.flush()
        if pf2 and pf2at >= 16: pf_k2()
        if stamps:
            k.wait(vm=0)
            stp.stamp()
            stp.flush(sWS, sW, 4)
        k.op("s_endpgm")
    k.label("k1_end")
    k.op("s_endpgm")
    return k

if __name__ == "__main__":
    k = build_k1()
    for e in k.check_hazards(): print(e)
    for e in k.check_waits(): print(e)
    print(k.maxregs(), len(k.ins))
```

```python
from common import *
LDS = 163840
PART_OFF = 64 << 20
NKS = 43
def build_k3(stamps=False, WIN=0, NR=5, q2rate=2, nodma=False, nomma=False, fused=False, pfself=True, psleep=8):
    k = Kern("k3_kernel")
    vq, lq = Q(k, "vmcnt", 63), Q(k, "lgkmcnt", 15)
    stp = Stamps(k, stamps, 62, 2, lq, maxn=8)
    sWS, sWm, sX, sO, sB2, sDb = 8, 12, 16, 20, 24, 84
    sW, sMt, sNt, sT0, sT1, sT2 = 28, 29, 30, 31, 32, 33
    sAo, sS, sWo, sCnt, sMa, sMw = 34, 35, 36, 37, 38, 39
    sRot, sSt, sAc, sWc, sPw, sPr, sTile = 52, 53, 54, 55, 56, 57, 58
    vL, vL16 = 1, 2
    VA, VW = 4, 6
    TA = 8
    AA = 24
    g, l15, r_, cc, g1, t0, t1 = 26, 27, 28, 29, 30, 31, 3
    vOo = 32
    XV, BV = 34, 42
    ACC = 52
    AF = 116
    WF = 148
    k.op("s_cmp_ge_u32", "s2", 256)
    k.op("s_cbranch_scc1", "k3_end")
    if pfself:
        pf_self(k, "k3_end", vt=188); vq.issue()
    k.op("s_load_dwordx2", S(40, 2), S(0, 2), KA["x"])
    k.op("s_load_dwordx2", S(42, 2), S(0, 2), KA["wo"])
    k.op("s_load_dwordx4", S(44, 4), S(0, 2), KA["w2"])
    k.op("s_load_dwordx4", S(48, 4), S(0, 2), KA["out"])
    k.op("s_load_dwordx2", S(88, 2), S(0, 2), KA["ws"])
    k.op("v_and_b32", V(vL), 63, "v0")
    k.op("v_lshrrev_b32", V(t0), 6, "v0")
    k.op("s_and_b32", S(sT0), "s2", 7)
    k.op("v_readfirstlane_b32", S(sW), V(t0))
    k.op("s_lshr_b32", S(sS), S(sT0), 1)
    k.op("s_and_b32", S(sT0), S(sT0), 1)
    k.op("s_lshr_b32", S(sT1), "s2", 3)
    k.op("s_and_b32", S(sT2), S(sT1), 7)
    k.op("s_lshl_b32", S(sMt), S(sT0), 3)
    k.op("s_add_u32", S(sMt), S(sMt), S(sT2))
    k.op("s_lshr_b32", S(sNt), S(sT1), 3)
    k.op("s_add_u32", S(sRot), S(sMt), S(sNt))
    k.op("s_and_b32", S(sRot), S(sRot), 3)
    k.op("s_lshl_b32", S(sTile), S(sMt), 2)
    k.op("s_add_u32", S(sTile), S(sTile), S(sNt))
    k.op("v_lshlrev_b32", V(vL16), 4, V(vL))
    k.op("v_lshrrev_b32", V(g), 4, V(vL))
    k.op("v_and_b32", V(l15), 15, V(vL))
    k.op("v_bfe_u32", V(r_), V(vL), 2, 2)
    k.op("v_and_b32", V(cc), 3, V(vL))
    k.op("v_and_b32", V(g1), 1, V(g))
    k.op("s_mul_i32", S(sWo), S(sS), NKS)
    k.op("s_mov_b32", S(sT0), 44032)
    k.op("s_mov_b32", S(sAo), HF_OFF)
    k.op("s_cmp_lt_u32", S(sS), 3)
    k.op("s_cselect_b32", S(sT0), 131072, S(sT0))
    k.op("s_cselect_b32", S(sAo), CTX_OFF, S(sAo))
    k.op("s_cselect_b32", S(sWo), S(sWo), 0)
    k.op("s_cselect_b64", "vcc", "-1", "0")
    k.op("s_cmp_eq_u32", S(sS), 2)
    k.op("s_cselect_b32", S(sCnt), 41, 42)
    k.op("s_lshl_b32", S(sT1), S(sWo), 10)
    k.op("s_add_u32", S(sAo), S(sAo), S(sT1))
    k.op("s_lshl_b32", S(sWo), S(sWo), 15)
    k.op("s_lshl_b32", S(sT2), S(sMt), 3)
    k.op("s_lshl_b32", S(sT1), S(sW), 1)
    k.op("s_add_u32", S(sT2), S(sT2), S(sT1))
    k.op("s_mul_i32", S(sT2), S(sT2), S(sT0))
    k.op("s_add_u32", S(sAo), S(sAo), S(sT2))
    k.op("v_mov_b32", V(VA), V(vL16))
    k.op("s_sub_u32", S(sT0), S(sT0), 1024)
    k.op("v_add_u32", V(VA + 1), S(sT0), V(vL16))
    k.op("v_lshlrev_b32", V(t0), 1, V(g))
    k.op("v_xor_b32", V(t0), V(t0), V(l15))
    k.op("v_lshlrev_b32", V(t0), 4, V(t0))
    k.op("v_lshl_add_u32", V(t0), V(g), 10, V(t0))
    k.op("s_lshl_b32", S(sT1), S(sNt), 8)
    k.op("s_lshl_b32", S(sT2), S(sW), 13)
    k.op("s_add_u32", S(sT1), S(sT1), S(sT2))
    k.op("v_add_u32", V(VW), S(sT1), V(t0))
    k.op("s_and_b32", S(sT1), S(sW), 1)
    k.op("s_lshl_b32", S(sT1), S(sT1), 7)
    k.op("s_cmp_lt_u32", S(sS), 3)
    k.op("s_cselect_b32", S(sT2), 128, S(sT1))
    k.op("s_cselect_b32", S(sT1), 0, S(sT1))
    k.op("v_xor_b32", V(VW + 1), S(sT2), V(VW))
    k.op("v_xor_b32", V(VW), S(sT1), V(VW))
    k.op("v_add_u32", V(VW + 1), 4096 - 1024, V(VW + 1))
    k.op("s_lshl_b32", S(sMa), S(sW), 11)
    k.op("s_add_u32", S(sMw), S(sMa), 8192)
    k.wait(lgkm=0)
    stp.stamp()
    k.op("s_mov_b32", S(sWS), S(88))
    k.op("s_and_b32", S(sWS + 1), S(89), "0xffff")
    k.op("s_mov_b32", S(sWS + 2), hex(80 << 20))
    k.op("s_mov_b32", S(sWS + 3), "0x20000")
    k.op("s_cmp_lt_u32", S(sS), 3)
    k.op("s_cselect_b32", S(sWm), S(42), S(44))
    k.op("s_cselect_b32", S(sWm + 1), S(43), S(45))
    k.op("s_mov_b32", S(sWm + 2), hex(SZ["w2"]))
    k.op("s_cselect_b32", S(sWm + 2), hex(SZ["wo"]), S(sWm + 2))
    k.op("s_and_b32", S(sWm + 1), S(sWm + 1), "0xffff")
    k.op("s_mov_b32", S(sWm + 3), "0x20000")
    NST = 22
    def nks_of(st): return 2 if st < 21 else 1
    def issue_items(st, part="both"):
        it = []
        sl = (st % NR) * 32768
        def addr():
            if st < 21:
                if WIN == 0:
                    skew_stage(k, sSt, sRot, st, 21, sWc)
                elif st < 20:
                    k.op("s_add_u32", S(sSt), S(sRot), st % WIN)
                    k.op("s_and_b32", S(sSt), S(sSt), WIN - 1)
                    k.op("s_add_u32", S(sSt), S(sSt), st // WIN * WIN)
                else:
                    k.op("s_mov_b32", S(sSt), 20)
                k.op("s_lshl_b32", S(sWc), S(sSt), 16)
                k.op("s_add_u32", S(sWc), S(sWc), S(sWo))
                k.op("s_lshl_b32", S(sAc), S(sSt), 11)
                k.op("s_add_u32", S(sAc), S(sAc), S(sAo))
            else:
                k.op("s_add_u32", S(sWc), S(sWo), st * 65536)
                k.op("s_lshl_b32", S(sAc), S(sCnt), 10)
                k.op("s_add_u32", S(sAc), S(sAc), S(sAo))
        it.append(addr)
        for u in range(nks_of(st)):
            if part != "a":
                it.append(lambda u=u: k.op("s_add_u32", "m0", S(sMw), sl + u * 16384))
                if u: it.append(lambda: k.op("s_add_u32", S(sWc), S(sWc), 32768))
                else: it.append(lambda: k.op("s_nop", 0))
                for j in range(2):
                    def w(j=j):
                        k.op("buffer_load_dwordx4", V(VW + j), S(sWm, 4), S(sWc), mods=f"offen offset:{j*1024} lds"); vq.issue(("s", st))
                    it.append(w)
            if part != "w":
                it.append(lambda u=u: k.op("s_add_u32", "m0", S(sMa), sl + u * 16384))
                if u: it.append(lambda: k.op("s_add_u32", S(sAc), S(sAc), 1024))
                else: it.append(lambda: k.op("s_nop", 0))
                for j in range(2):
                    def a(j=j):
                        k.op("buffer_load_dwordx4", V(VA + j), S(sWS, 4), S(sAc), mods=f"offen offset:{j*1024}{' sc1' if fused else ''} lds"); vq.issue(("s", st))
                    it.append(a)
        return it
    if not fused:
        for st in range(NR - 2):
            for f in issue_items(st): f()
    load_srd(k, sX, "x", 40); load_srd(k, sO, "out", 48); load_srd(k, sB2, "b2", 46)
    k.op("s_mov_b32", S(sDb), S(50))
    k.op("s_and_b32", S(sDb + 1), S(51), "0xffff")
    k.op("s_mov_b32", S(sDb + 2), 256)
    k.op("s_mov_b32", S(sDb + 3), "0x20000")
    k.op("v_lshlrev_b32", V(t0), 2, V(g))
    k.op("v_lshlrev_b32", V(t1), 3, V(g))
    k.op("v_cndmask_b32", V(t0), V(t1), V(t0), "vcc")
    k.op("v_add_u32", V(t0), V(t0), V(r_))
    k.op("v_lshlrev_b32", V(t0), 8, V(t0))
    k.op("v_lshl_add_u32", V(t0), V(cc), 3, V(t0))
    k.op("v_add_u32", V(t0), 8192, V(t0))
    k.op("v_lshl_or_b32", V(t1), V(g1), 2, V(r_))
    k.op("s_and_b32", S(sT1), S(sW), 1)
    k.op("s_lshl_b32", S(sT1), S(sT1), 2)
    k.op("v_xor_b32", V(t1), S(sT1), V(t1))
    k.op("s_mov_b32", S(sT0), 1024)
    k.op("s_cmp_lt_u32", S(sS), 3)
    k.op("s_cselect_b32", S(sT0), 4096, S(sT0))
    for nb in range(4):
        k.op("v_xor_b32", V(33), nb, V(t1))
        k.op("v_lshl_add_u32", V(TA + 2 * nb), V(33), 5, V(t0))
        k.op("v_add_u32", V(TA + 2 * nb + 1), S(sT0), V(TA + 2 * nb))
    for i in range(8): k.op("v_add_u32", V(TA + 8 + i), 65536, V(TA + i))
    for i in range(8): k.op("v_add_u32", V(180 + i), 131072, V(TA + i))
    k.op("s_lshr_b32", S(sT1), S(sW), 1)
    k.op("s_lshl_b32", S(sT1), S(sT1), 12)
    k.op("v_add_u32", V(AA), S(sT1), V(vL16))
    k.op("v_add_u32", V(AA + 1), 65536, V(AA))
    k.op("v_add_u32", V(50), 131072, V(AA))
    k.op("s_lshl_b32", S(sT0), S(sMt), 17)
    k.op("s_lshr_b32", S(sT1), S(sW), 1)
    k.op("s_lshl_b32", S(sT1), S(sT1), 16)
    k.op("s_add_u32", S(sT0), S(sT0), S(sT1))
    k.op("s_lshl_b32", S(sT1), S(sS), 14)
    k.op("s_add_u32", S(sT0), S(sT0), S(sT1))
    k.op("s_lshl_b32", S(sT1), S(sNt), 8)
    k.op("s_and_b32", S(sT2), S(sW), 1)
    k.op("s_lshl_b32", S(sT2), S(sT2), 7)
    k.op("s_add_u32", S(sT1), S(sT1), S(sT2))
    k.op("s_add_u32", S(sT0), S(sT0), S(sT1))
    k.op("v_lshlrev_b32", V(vOo), 10, V(l15))
    k.op("v_lshl_add_u32", V(vOo), V(g), 3, V(vOo))
    k.op("v_add_u32", V(vOo), S(sT0), V(vOo))
    k.op("v_lshlrev_b32", V(33), 3, V(g))
    def xb_loads():
        for u in range(4):
            k.op("buffer_load_dwordx2", V(XV + 2 * u, 2), V(vOo), S(sX, 4), 0, mods=f"offen offset:{32*u}"); vq.issue("xb")
            k.op("buffer_load_dwordx2", V(BV + 2 * u, 2), V(33), S(sB2, 4), S(59), mods=f"offen offset:{32*u}"); vq.issue("xb")
    k.op("s_mov_b32", S(59), S(sT1))
    if not fused: xb_loads()
    k.op("s_lshl_b32", S(sPr), S(sTile), 17)
    k.op("s_lshl_b32", S(sT1), S(sW), 13)
    k.op("s_add_u32", S(sPr), S(sPr), S(sT1))
    k.op("s_add_u32", S(sPr), S(sPr), PART_OFF)
    k.op("s_lshl_b32", S(sT1), S(sS), 15)
    k.op("s_add_u32", S(sPw), S(sPr), S(sT1))
    k.op("s_lshl_b32", S(sT1), S(sS), 11)
    k.op("s_add_u32", S(sPr), S(sPr), S(sT1))
    if fused:
        k.wait(vm=0)
        k.op("s_barrier")
        lab = k.newlabel("noflag")
        k.op("s_cmp_lg_u32", S(sW), 0); k.op("s_cbranch_scc1", lab)
        k.op("v_mov_b32", V(ACC), 0)
        k.op("v_mov_b32", V(ACC + 1), 1)
        k.op("s_mov_b64", "exec", 1)
        k.op("buffer_store_dword", V(ACC + 1), V(ACC), S(sWS, 4), S(96), mods="offen sc1")
        k.op("s_mov_b64", "exec", -1)
        k.op("buffer_inv", mods="sc1")
        k.label(lab)
        stp.stamp()
        for st in range(NR - 2):
            for f in issue_items(st, "w"): f()
        xb_loads()
        lab = k.newlabel("nopoll")
        k.op("s_cmp_lg_u32", S(sW), 0); k.op("s_cbranch_scc1", lab)
        k.op("s_sub_u32", S(sT1), 15, S(sMt))
        k.op("s_min_u32", S(sT0), S(sMt), S(sT1))
        k.op("s_lshl_b32", S(sT0), S(sT0), 8)
        k.op("s_add_u32", S(sT0), S(sT0), FLAG2_OFF)
        k.op("s_mov_b32", S(92), "0x1fffffff")
        k.op("s_cmp_eq_u32", S(sS), 0); k.op("s_cselect_b32", S(92), "0x7ff", S(92))
        k.op("s_cmp_eq_u32", S(sS), 1); k.op("s_cselect_b32", S(92), "0x3ffc00", S(92))
        k.op("s_cmp_eq_u32", S(sS), 2); k.op("s_cselect_b32", S(92), "0xffe00000", S(92))
        k.op("s_mov_b32", S(93), 0)
        k.op("v_lshlrev_b32", V(t0), 2, V(vL))
        k.op("s_mov_b32", S(sT1), 0)
        k.op("s_mov_b64", "exec", S(92, 2))
        k.label("k3_poll2")
        k.op("buffer_load_dword", V(t1), V(t0), S(sWS, 4), S(sT0), mods="offen sc1")
        k.op("s_add_u32", S(sT1), S(sT1), 1)
        k.wait(vm=0)
        k.op("v_cmp_ne_u32", "vcc", 1, V(t1))
        k.op("s_cmp_gt_u32", S(sT1), SPIN_MAX)
        k.op("s_cbranch_scc1", "k3_p2done")
        k.op("s_cbranch_vccz", "k3_p2done")
        k.op("s_sleep", psleep)
        k.op("s_branch", "k3_poll2")
        k.label("k3_p2done")
        k.op("s_mov_b64", "exec", -1)
        k.label(lab)
        k.op("s_barrier")
        stp.stamp()
        for st in range(NR - 2):
            for f in issue_items(st, "a"): f()
    steps = [(st, u) for st in range(NST) for u in range(nks_of(st))]
    q = FillQ(k)
    def rd_items(i):
        st, u = steps[i]
        off = (st % NR) * 32768 + u * 16384
        hi = off // 65536
        off -= 65536 * hi
        it = []
        if u == 0:
            def sw():
                vq.need(("s", st), cnt=None if nodma else [4 * nks_of(st)])
                k.op("s_barrier")
                q2.flush()
                if st + NR - 2 < NST and not nodma:
                    for f in issue_items(st + NR - 2): q2.add(f)
            it.append(sw)
        for x in range(4):
            def fa(rb=x):
                k.op("ds_read_b128", V(AF + (i % 2) * 16 + rb * 4, 4), V(AA + hi if hi < 2 else 50), mods=f"offset:{off + rb*1024}")
                lq.issue(("a", i))
            def fw(nb=x, j=0):
                k.op("ds_read_b64_tr_b16", V(WF + (i % 2) * 16 + nb * 4 + 2 * j, 2), V((TA + 8 * hi if hi < 2 else 180) + 2 * nb + j), mods=f"offset:{off}")
                lq.issue(("r", i, nb))
            if not nomma: it.append(fa)
        for nb in range(4):
            for j in range(2):
                if not nomma: it.append(lambda nb=nb, j=j: fw(nb, j))
        return it
    q2 = FillQ(k)
    for f in rd_items(0): f()
    stp.stamp()
    for i in range(len(steps)):
        if i + 1 < len(steps):
            for f in rd_items(i + 1): q.add(f)
        n = 0
        for nb in range(4):
            lq.need(("r", i, nb), ("a", i), cnt=None if nomma else [2, 4])
            for rb in range(4):
                d = V(ACC + 4 * (rb * 4 + nb), 4)
                if not nomma: k.op("v_mfma_f32_16x16x32_bf16", d, V(WF + (i % 2) * 16 + nb * 4, 4), V(AF + (i % 2) * 16 + rb * 4, 4), "0" if i == 0 else d)
                q.emit(1)
                if n % q2rate == q2rate - 1 or len(q) == 0: q2.emit(1)
                n += 1
        q.flush()
    q2.flush()
    stp.stamp()
    OWN = WF
    k.nop(8)
    for rb in range(4):
        l1, l2 = k.newlabel("own"), k.newlabel("nxt")
        a0 = ACC + 16 * rb
        k.op("s_cmp_eq_u32", S(sS), rb)
        k.op("s_cbranch_scc1", l1)
        for i in range(8): k.op("v_cvt_pk_bf16_f32", V(a0 + i), V(a0 + 2 * i), V(a0 + 2 * i + 1))
        if rb >= 2: k.op("s_add_u32", S(sT0), S(sPw), 4096)
        for p in range(2):
            k.op("buffer_store_dwordx4", V(a0 + 4 * p, 4), V(vL16), S(sWS, 4), S(sPw if rb < 2 else sT0), mods=f"offen offset:{(rb&1)*2048 + p*1024} sc1")
        k.op("s_branch", l2)
        k.label(l1)
        for i in range(16): k.op("v_mov_b32", V(OWN + i), V(a0 + i))
        k.label(l2)
    k.wait(vm=0)
    k.op("s_barrier")
    stp.stamp()
    k.op("s_cmp_lg_u32", S(sW), 0)
    k.op("s_cbranch_scc1", "k3_wait")
    k.op("s_lshl_b32", S(sT0), S(sTile), 8)
    k.op("s_add_u32", S(sT0), S(sT0), FLAG_OFF)
    k.op("s_lshl_b32", S(sT2), S(sS), 2)
    k.op("v_mov_b32", V(t0), 0)
    k.op("v_mov_b32", V(t1), 1)
    k.op("v_mov_b32", V(4), S(sT2))
    k.op("s_mov_b64", S(90, 2), "exec")
    k.op("s_mov_b64", "exec", 1)
    k.op("buffer_store_dword", V(t1), V(4), S(sWS, 4), S(sT0), mods="offen sc1")
    k.op("s_mov_b32", S(sT1), 0)
    k.label("k3_poll")
    k.op("buffer_load_dwordx4", V(4, 4), V(t0), S(sWS, 4), S(sT0), mods="offen sc1")
    k.op("s_add_u32", S(sT1), S(sT1), 1)
    k.wait(vm=0)
    k.op("v_and_b32", V(4), V(4), V(5))
    k.op("v_and_b32", V(6), V(6), V(7))
    k.op("v_and_b32", V(4), V(4), V(6))
    k.op("s_cmp_gt_u32", S(sT1), SPIN_MAX)
    k.op("v_readfirstlane_b32", S(sT2), V(4))
    k.op("s_cbranch_scc1", "k3_pdone")
    k.op("s_cmp_lg_u32", S(sT2), 1)
    k.op("s_cbranch_scc1", "k3_poll")
    k.label("k3_pdone")
    k.op("s_mov_b64", "exec", S(90, 2))
    k.label("k3_wait")
    k.op("s_barrier")
    stp.stamp()
    R = 8
    R = AF
    for src in range(4):
        l1 = k.newlabel("skp")
        k.op("s_cmp_eq_u32", S(sS), src)
        k.op("s_cbranch_scc1", l1)
        for p in range(2):
            k.op("buffer_load_dwordx4", V(R + src * 8 + 4 * p, 4), V(vL16), S(sWS, 4), S(sPr), mods=f"offen offset:{p*1024} sc1")
        k.label(l1)
        k.op("s_add_u32", S(sPr), S(sPr), 32768)
    def rb2(a):
        k.op("v_cvt_pk_bf16_f32", V(33), V(a), V(a + 1))
        k.op("v_lshlrev_b32", V(a), 16, V(33))
        k.op("v_and_b32", V(a + 1), "0xffff0000", V(33))
    def unpack(dst, src):
        k.op("v_lshlrev_b32", V(dst), 16, V(src))
        k.op("v_and_b32", V(dst + 1), "0xffff0000", V(src))
    XF, BF = 8, 164
    for i in range(8):
        unpack(XF + 2 * i, XV + i); unpack(BF + 2 * i, BV + i)
    k.wait(vm=0)
    F = ACC
    for src in range(4):
        l1, l2 = k.newlabel("own"), k.newlabel("nxt")
        k.op("s_cmp_eq_u32", S(sS), src)
        k.op("s_cbranch_scc1", l1)
        for i in range(8): unpack(F + 16 * src + 2 * i, R + src * 8 + i)
        k.op("s_branch", l2)
        k.label(l1)
        for i in range(16): k.op("v_mov_b32", V(F + 16 * src + i), V(OWN + i))
        k.label(l2)
    for i in range(16):
        k.op("v_add_f32", V(F + i), V(F + i), V(F + 16 + i))
        k.op("v_add_f32", V(F + i), V(F + i), V(F + 32 + i))
    for h in range(8):
        rb2(F + 2 * h); rb2(F + 48 + 2 * h)
    for i in range(16):
        k.op("v_add_f32", V(F + i), V(F + i), V(XF + i))
        k.op("v_add_f32", V(F + 48 + i), V(F + 48 + i), V(BF + i))
    for h in range(8):
        rb2(F + 2 * h); rb2(F + 48 + 2 * h)
    for i in range(16):
        k.op("v_add_f32", V(F + i), V(F + i), V(F + 48 + i))
    for nb in range(4):
        k.op("v_cvt_pk_bf16_f32", V(F + 4 * nb), V(F + 4 * nb), V(F + 4 * nb + 1))
        k.op("v_cvt_pk_bf16_f32", V(F + 4 * nb + 1), V(F + 4 * nb + 2), V(F + 4 * nb + 3))
        k.op("buffer_store_dwordx2", V(F + 4 * nb, 2), V(vOo), S(sO, 4), 0, mods=f"offen offset:{32*nb}")
    if stamps:
        k.wait(vm=0)
        stp.stamp()
        stp.flush(sWS, sW, 3)
    k.label("k3_end")
    k.op("s_endpgm")
    return k

if __name__ == "__main__":
    k = build_k3()
    for e in k.check_hazards(): print(e)
    for e in k.check_waits(): print(e)
    print(k.maxregs(), len(k.ins))
```

```python
from dsl import *

XN_OFF = 0
YF_OFF = 2 << 20
KF_OFF = 4 << 20
VF_OFF = 20 << 20
CTX_OFF = 36 << 20
HF_OFF = 52 << 20
WS_BYTES = 64 << 20

KA = dict(x=0, ckv=8, wq=16, wuk=24, wuv=32, wo=40, bx=48, w1=56, b1=64, w2=72, b2=80, out=88, dbg=96, ws=104)
SZ = dict(x=2 << 20, ckv=2 << 20, wq=4 << 20, wuk=4 << 20, wuv=4 << 20, wo=4 << 20, w1=512 * 1376 * 2,
          b1=1376 * 2, w2=1376 * 512 * 2, b2=1024, out=2 << 20, ws=WS_BYTES)

class Q:
    def __init__(self, k, name, maxn):
        self.k, self.name, self.maxn = k, name, maxn
        self.q = []
        self.ever = {}
    def issue(self, tag=None):
        self.q.append(tag)
        self.ever[tag] = self.ever.get(tag, 0) + 1
    def need(self, *tags, cnt=None):
        if cnt:
            for t, c in zip(tags, cnt): assert self.ever.get(t, 0) == c, (t, c, self.ever.get(t, 0))
        last = -1
        for i, t in enumerate(self.q):
            if t in tags: last = i
        if last < 0: return
        n = len(self.q) - 1 - last
        n = min(n, self.maxn)
        self.k.op("s_waitcnt", f"{self.name}({n})")
        self.q = self.q[len(self.q) - n:] if n else []
    def drain(self):
        self.k.op("s_waitcnt", f"{self.name}(0)")
        self.q = []

def load_srd(k, dst, name, tmp):
    k.op("s_mov_b32", S(dst), S(tmp))
    k.op("s_and_b32", S(dst + 1), S(tmp + 1), "0xffff")
    k.op("s_mov_b32", S(dst + 2), hex(SZ[name]))
    k.op("s_mov_b32", S(dst + 3), "0x20000")

def wave_sum(k, v, t):
    k.nop(2)
    k.op("v_add_f32_dpp", V(v), V(v), V(v), mods="quad_perm:[1,0,3,2] row_mask:0xf bank_mask:0xf")
    k.nop(2)
    k.op("v_add_f32_dpp", V(v), V(v), V(v), mods="quad_perm:[2,3,0,1] row_mask:0xf bank_mask:0xf")
    k.nop(2)
    k.op("v_add_f32_dpp", V(v), V(v), V(v), mods="row_half_mirror row_mask:0xf bank_mask:0xf")
    k.nop(2)
    k.op("v_add_f32_dpp", V(v), V(v), V(v), mods="row_mirror row_mask:0xf bank_mask:0xf")
    k.op("v_mov_b32", V(t), V(v))
    k.nop(2)
    k.op("v_permlane16_swap_b32", V(v), V(t))
    k.op("v_add_f32", V(v), V(v), V(t))
    k.op("v_mov_b32", V(t), V(v))
    k.nop(2)
    k.op("v_permlane32_swap_b32", V(v), V(t))
    k.op("v_add_f32", V(v), V(v), V(t))

def rbf(k, dst, src):
    k.op("v_cvt_pk_bf16_f32", V(dst), V(src), V(src))
    k.op("v_lshlrev_b32", V(dst), 16, V(dst))

def descriptor(k, vgpr=None, sgpr=None, accum=None):
    mv, ms, ma = k.maxregs()
    vgpr = vgpr or mv
    sgpr = sgpr or ms
    assert mv <= vgpr and ms <= sgpr, (mv, ms)
    acc = accum or ((mv + 3) // 4 * 4)
    if ma: assert vgpr >= acc + ma, (vgpr, acc, ma)
    return f""".amdhsa_kernel {k.name}
  .amdhsa_next_free_vgpr {vgpr}
  .amdhsa_next_free_sgpr {sgpr}
  .amdhsa_accum_offset {acc}
  .amdhsa_group_segment_fixed_size 0
  .amdhsa_kernarg_size 112
  .amdhsa_user_sgpr_count 2
  .amdhsa_user_sgpr_kernarg_segment_ptr 1
  .amdhsa_system_sgpr_workgroup_id_x 1
  .amdhsa_float_denorm_mode_32 3
.end_amdhsa_kernel
"""

STAMP_OFF = 60 << 20
FLAG_OFF = 59 << 20
FLAG2_OFF = FLAG_OFF + 65536
FL_OFF = FLAG_OFF + 69632
FA_OFF = FLAG_OFF + 73728
SPIN_MAX = 400000
class Stamps:
    def __init__(self, k, enabled, base, kidx, lq=None, maxn=16):
        self.k, self.en, self.base, self.n, self.kidx, self.lq, self.m = k, enabled, base, 0, kidx, lq, maxn
    def stamp(self):
        if not self.en: return
        k = self.k
        assert self.n < self.m
        k.op("s_memrealtime", S(self.base + 2 * self.m, 2))
        k.op("s_memtime", S(self.base + 2 * self.m + 2, 2))
        if self.lq: self.lq.drain()
        else: k.wait(lgkm=0)
        k.op("s_mov_b32", S(self.base + self.n), S(self.base + 2 * self.m))
        k.op("s_mov_b32", S(self.base + self.m + self.n), S(self.base + 2 * self.m + 2))
        self.n += 1
    def flush(self, sWS, sW, vt):
        if not self.en: return
        k = self.k
        t = self.base + 2 * self.m
        k.op("s_lshl_b32", S(t), "s2", 3)
        k.op("s_add_u32", S(t), S(t), S(sW))
        k.op("s_lshl_b32", S(t), S(t), 7)
        k.op("s_add_u32", S(t), S(t), STAMP_OFF + self.kidx * (1 << 18))
        k.op("v_mov_b32", V(vt + 1), 0)
        for i in range(self.n):
            k.op("v_mov_b32", V(vt), S(self.base + i))
            k.op("buffer_store_dword", V(vt), V(vt + 1), S(sWS, 4), S(t), mods=f"offen offset:{4*i}")
            k.op("v_mov_b32", V(vt), S(self.base + self.m + i))
            k.op("buffer_store_dword", V(vt), V(vt + 1), S(sWS, 4), S(t), mods=f"offen offset:{64+4*i}")

class FillQ:
    def __init__(self, k, on_emit=None):
        self.k, self.q, self.last, self.need, self.on_emit = k, [], 0, 0, on_emit
    def add_kern(self, side):
        self.q += list(side.ins)
    def add(self, f):
        self.q.append(f)
    def count_since(self):
        return sum(i.states() for i in self.k.ins[self.last:] if i.mn)
    def emit(self, n=1, force=False):
        done = 0
        while self.q and done < n:
            it = self.q[0]
            if isinstance(it, Ins) and it.mn == "s_nop":
                self.need = max(self.need, it.states()); self.q.pop(0); continue
            if self.need:
                have = self.count_since()
                if have < self.need:
                    if not force: return done
                    self.k.nop(self.need - have)
                self.need = 0
            self.q.pop(0)
            if isinstance(it, Ins):
                self.k.ins.append(it)
                if self.on_emit: self.on_emit(it)
            else:
                it()
            self.last = len(self.k.ins)
            done += 1
        return done
    def flush(self):
        while self.q: self.emit(1, force=True)
    def __len__(self): return len(self.q)

def skew_stage(k, dst, sRot, i, N, t1, lag=4):
    assert lag == 4
    if i == 0:
        k.op("s_mov_b32", S(dst), S(sRot))
    elif i + 3 < N:
        t = i + 3
        k.op("s_cmp_eq_u32", S(sRot), t & 3)
        k.op("s_cselect_b32", S(dst), t, t - 4)
    else:
        j = i + 3 - N
        cand = N - 4 + j
        k.op("s_add_u32", S(t1), S(sRot), (4 - (N - 4)) & 3)
        k.op("s_and_b32", S(t1), S(t1), 3)
        k.op("s_cmp_le_u32", S(t1), j)
        k.op("s_cselect_b32", S(dst), cand + 1, cand)

def pf_code(k, srd, label, nbytes, vtmp, vlane, sIdx, dummy):
    lab = k.newlabel("pc")
    k.op("s_getpc_b64", S(srd, 2))
    k.label(lab)
    k.op("s_add_u32", S(srd), S(srd), f"{label}-{lab}")
    k.op("s_addc_u32", S(srd + 1), S(srd + 1), 0)
    k.op("s_and_b32", S(srd + 1), S(srd + 1), "0xffff")
    k.op("s_mov_b32", S(srd + 2), nbytes)
    k.op("s_mov_b32", S(srd + 3), "0x20000")
    k.op("v_lshlrev_b32", V(vtmp), 7, V(vlane))
    k.op("buffer_load_dword", V(dummy), V(vtmp), S(srd, 4), S(sIdx), mods="offen", dummy=True)

def pf_self(k, endlabel, srd=4, vt=14):
    lab = k.newlabel("pc")
    k.op("s_getpc_b64", S(srd, 2))
    k.label(lab)
    k.op("v_lshlrev_b32", V(vt), 7, "v0")
    k.op("s_and_b32", S(srd + 1), S(srd + 1), "0xffff")
    k.op("s_mov_b32", S(srd + 2), f"{endlabel}-{lab}")
    k.op("s_mov_b32", S(srd + 3), "0x20000")
    k.op("s_lshr_b32", "s3", "s2", 3)
    k.op("s_lshl_b32", "s3", "s3", 15)
    k.op("buffer_load_dword", V(vt + 1), V(vt), S(srd, 4), "s3", mods="offen", dummy=True)

def one_lane_store(k, sW, srd, soffs, val, vt):
    lab = k.newlabel("skip1")
    k.op("v_mov_b32", V(vt), 0)
    k.op("v_mov_b32", V(vt + 1), val)
    k.op("s_cmp_lg_u32", S(sW), 0); k.op("s_cbranch_scc1", lab)
    k.op("s_mov_b64", "exec", 1)
    for so in soffs:
        k.op("buffer_store_dword", V(vt + 1), V(vt), S(srd, 4), S(so), mods="offen sc1")
    k.op("s_mov_b64", "exec", -1)
    k.label(lab)

def spin_until(k, name, loads, check, sCnt, sleep=4):
    done, again = f"{name}_done", f"{name}_again"
    k.op("s_mov_b32", S(sCnt), 0)
    k.label(again)
    check()
    k.op("s_cmp_gt_u32", S(sCnt), SPIN_MAX)
    k.op("s_cbranch_scc1", done)
    k.op("s_cbranch_vccz", done)
    k.op("s_sleep", sleep)
    loads()
    k.op("s_add_u32", S(sCnt), S(sCnt), 1)
    k.wait(vm=0)
    k.op("s_branch", again)
    k.label(done)
```

```python
from common import *
from k1_v1 import layernorm

def build_k1(store_mods="", stamps=False, prefetch=True, twice=False, noln=False, pf2=True, pf2at=13, D=6, LN0=2, nostore=False, skew=True, pfself=True, fuse=False, fldelay=3):
    k = Kern("k1_kernel")
    vq, lq = Q(k, "vmcnt", 63), Q(k, "lgkmcnt", 15)
    stp = Stamps(k, stamps, 60, 0, lq, maxn=10)
    sX, sC, sWm, sWS, sP = 8, 12, 16, 24, 20
    sW, sH, sKV, sRq = 28, 29, 30, 34
    sT0, sT1, sT2 = 31, 32, 33
    sSo, sSo2, sW4k, sW8k, sAo, sSt = 36, 37, 38, 39, 35, 56
    sR = 50
    vL, vL16 = 1, 2
    TA = 16
    VA = 28
    VW = 36
    AAr = 40
    AF = 52
    ACC = 84
    LNR = 148
    X0, X1 = 180, 184
    g, l15, r_, cc, g1, t0, t1, p8 = 4, 5, 6, 7, 8, 9, 10, 11
    k.op("s_cmp_ge_u32", "s2", 256)
    k.op("s_cbranch_scc1", "k1_end")
    if pfself:
        pf_self(k, "k1_end", vt=14); vq.issue()
    k.op("s_load_dwordx4", S(40, 4), S(0, 2), KA["x"])
    k.op("s_load_dwordx4", S(44, 4), S(0, 2), KA["wuk"])
    k.op("s_load_dwordx2", S(48, 2), S(0, 2), KA["ws"])
    if fuse: k.op("s_load_dwordx2", S(96, 2), S(0, 2), KA["dbg"])
    k.op("s_load_dwordx2", S(98, 2), S(0, 2), KA["wq"])
    k.op("s_load_dwordx2", S(100, 2), S(0, 2), KA["w1"])
    k.op("v_and_b32", V(vL), 63, "v0")
    k.op("v_lshrrev_b32", V(t0), 6, "v0")
    k.op("s_and_b32", S(sT0), "s2", 7)
    k.op("v_readfirstlane_b32", S(sW), V(t0))
    k.op("s_lshr_b32", S(sT1), "s2", 3)
    k.op("s_and_b32", S(sT2), S(sT1), 3)
    k.op("s_lshl_b32", S(sH), S(sT0), 2)
    k.op("s_add_u32", S(sH), S(sH), S(sT2))
    k.op("s_bfe_u32", S(sKV), S(sT1), "0x10002")
    k.op("s_lshr_b32", S(sRq), S(sT1), 3)
    k.op("v_lshlrev_b32", V(vL16), 4, V(vL))
    k.op("v_lshrrev_b32", V(g), 4, V(vL))
    k.op("v_and_b32", V(l15), 15, V(vL))
    k.op("v_bfe_u32", V(r_), V(vL), 2, 2)
    k.op("v_and_b32", V(cc), 3, V(vL))
    k.op("v_and_b32", V(g1), 1, V(g))
    k.op("v_and_b32", V(p8), 7, V(vL))
    k.op("s_lshl_b32", S(sW4k), S(sW), 12)
    k.op("s_lshl_b32", S(sW8k), S(sW), 13)
    k.op("v_lshlrev_b32", V(t0), 1, V(g))
    k.op("v_xor_b32", V(t0), V(t0), V(l15))
    k.op("v_lshlrev_b32", V(t0), 4, V(t0))
    k.op("v_lshl_add_u32", V(t0), V(g), 13, V(t0))
    k.op("s_lshl_b32", S(sT0), S(sW), 17)
    k.op("s_lshl_b32", S(sT1), S(sH), 8)
    k.op("s_add_u32", S(sT0), S(sT0), S(sT1))
    k.op("v_add_u32", V(VW), S(sT0), V(t0))
    k.op("v_add_u32", V(VW + 1), 32768 - 1024, V(VW))
    k.op("v_xor_b32", V(VW + 2), 128, V(VW))
    k.op("v_add_u32", V(VW + 2), 2 * (32768 - 1024), V(VW + 2))
    k.op("v_add_u32", V(VW + 3), 32768 - 1024, V(VW + 2))
    k.op("s_and_b32", S(sT0), S(sW), 1)
    k.op("s_lshl_b32", S(sT0), S(sT0), 7)
    k.op("v_xor_b32", V(t0), S(sT0), V(vL16))
    for i in range(8): k.op("v_xor_b32", V(VA + i), i * 16, V(t0))
    k.op("s_lshl_b32", S(sAo), S(sRq), 19)
    k.op("s_lshr_b32", S(sT1), S(sW), 1)
    k.op("s_lshl_b32", S(sT1), S(sT1), 15)
    k.op("s_add_u32", S(sAo), S(sAo), S(sT1))
    k.op("s_lshl_b32", S(sT0), S(sT0), 6)
    k.op("s_add_u32", S(sAo), S(sAo), S(sT0))
    CHA, CHS = 84, 3
    k.op("s_lshr_b32", S(sT0), "s2", 3)
    k.op("s_and_b32", S(sT0), S(sT0), 3)
    for i in range(8):
        if skew: skew_stage(k, CHA + i, sT0, i, 8, sT1)
        else: k.op("s_mov_b32", S(CHA + i), i)
        k.op("s_lshl_b32", S(CHA + i), S(CHA + i), 16)
        k.op("s_add_u32", S(CHA + i), S(CHA + i), S(sAo))
    k.wait(lgkm=0)
    stp.stamp()
    load_srd(k, sC, "ckv", 42)
    k.op("s_cmp_eq_u32", S(sKV), 0)
    k.op("s_cselect_b32", S(sWm), S(44), S(46))
    k.op("s_cselect_b32", S(sWm + 1), S(45), S(47))
    k.op("s_and_b32", S(sWm + 1), S(sWm + 1), "0xffff")
    k.op("s_mov_b32", S(sWm + 2), hex(4 << 20))
    k.op("s_mov_b32", S(sWm + 3), "0x20000")
    def aslot(st): return [1, 2, 0, 3, 4][(st - 2) % 5] * 32768
    def wslot(s): return (s % 6) * 16384
    def dma_w_items(s):
        def setup():
            k.op("s_add_u32", "m0", S(sW4k), wslot(s))
            k.op("s_mov_b32", S(sSo), s * 524288)
        def ld(i):
            def f():
                k.op("buffer_load_dwordx4", V(VW + i), S(sWm, 4), S(sSo), mods=f"offen offset:{i*1024} lds"); vq.issue(("W", s))
            return f
        return [setup] + [ld(i) for i in range(4)]
    def dma_a_items(st):
        it = []
        for u in range(2):
            def setup(u=u):
                k.op("s_add_u32", "m0", S(sW8k), aslot(st) + u * 4096)
                k.op("s_add_u32", S(sSo), S(CHA + (st >> 1)), (st & 1) * 16384 + u * 4096)
            it.append(setup)
            for i in range(4):
                def f(i=i, u=u):
                    k.op("buffer_load_dwordx4", V(VA + 4 * u + i), S(sC, 4), S(sSo), mods=f"offen offset:{i*1024} lds"); vq.issue(("A", st))
                it.append(f)
        return it
    for f in dma_w_items(0) + dma_a_items(0) + dma_w_items(1) + dma_a_items(1): f()
    stp.stamp()
    load_srd(k, sX, "x", 40); load_srd(k, sWS, "ws", 48)
    k.op("v_lshl_or_b32", V(t1), V(g1), 2, V(r_))
    k.op("s_and_b32", S(sT0), S(sW), 1)
    k.op("s_lshl_b32", S(sT0), S(sT0), 2)
    k.op("v_xor_b32", V(t1), S(sT0), V(t1))
    k.op("v_lshl_add_u32", V(t0), V(g), 3, V(r_))
    k.op("v_lshlrev_b32", V(t0), 8, V(t0))
    k.op("v_lshl_add_u32", V(t0), V(cc), 3, V(t0))
    for nb in range(4):
        k.op("v_xor_b32", V(12), nb, V(t1))
        k.op("v_lshl_add_u32", V(TA + nb), V(12), 5, V(t0))
        k.op("v_add_u32", V(TA + 4 + nb), 65536, V(TA + nb))
    k.op("s_lshr_b32", S(sT0), S(sW), 1)
    k.op("s_lshl_b32", S(sT0), S(sT0), 14)
    k.op("v_lshlrev_b32", V(t0), 10, V(l15))
    k.op("v_add_u32", V(t0), S(sT0), V(t0))
    k.op("v_xor_b32", V(t1), V(g), V(l15))
    for q in range(4):
        k.op("v_xor_b32", V(12), 4 * q, V(t1))
        k.op("v_lshl_add_u32", V(AAr + q), V(12), 4, V(t0))
        k.op("v_add_u32", V(AAr + 4 + q), 65536, V(AAr + q))
        k.op("v_add_u32", V(AAr + 8 + q), 131072, V(AAr + q))
    k.op("s_lshl_b32", S(sSt), S(sH), 19)
    k.op("s_lshl_b32", S(sT1), S(sRq), 17)
    k.op("s_add_u32", S(sSt), S(sSt), S(sT1))
    k.op("s_lshr_b32", S(sT1), S(sW), 1)
    k.op("s_lshl_b32", S(sT1), S(sT1), 13)
    k.op("s_add_u32", S(sSt), S(sSt), S(sT1))
    k.op("s_and_b32", S(sT1), S(sW), 1)
    k.op("s_lshl_b32", S(sT2), S(sT1), 12)
    k.op("s_add_u32", S(sT2), S(sT2), VF_OFF)
    k.op("s_lshl_b32", S(sT1), S(sT1), 11)
    k.op("s_add_u32", S(sT1), S(sT1), KF_OFF)
    k.op("s_cmp_eq_u32", S(sKV), 0)
    k.op("s_cselect_b32", S(sT1), S(sT1), S(sT2))
    k.op("s_add_u32", S(sSt), S(sSt), S(sT1))
    k.op("s_lshr_b32", S(sT1), S(sAo), 2)
    k.op("s_sub_u32", S(sSt), S(sSt), S(sT1))
    k.op("s_lshl_b32", S(sR), "s2", 3)
    k.op("s_lshl_b32", S(sT1), S(sW), 1)
    k.op("s_add_u32", S(sR), S(sR), S(sT1))
    k.op("s_lshr_b32", S(sR + 1), S(sR), 4)
    k.op("s_lshl_b32", S(sR + 1), S(sR + 1), 14)
    k.op("s_and_b32", S(sR + 2), S(sR), 15)
    k.op("s_lshl_b32", S(sR + 2), S(sR + 2), 4)
    k.op("s_add_u32", S(sR + 1), S(sR + 1), S(sR + 2))
    k.op("s_lshl_b32", S(sR + 2), S(sR), 3)
    k.op("s_add_u32", S(sR + 2), S(sR + 2), YF_OFF)
    k.op("s_lshl_b32", S(sR), S(sR), 10)
    vLd, vLz = LNR + 29, LNR + 30
    k.op("v_mov_b32", V(vLz), 0)
    k.op("v_lshrrev_b32", V(vLd), 2, V(vL))
    k.op("v_lshlrev_b32", V(vLd), 10, V(vLd))
    k.op("v_lshl_add_u32", V(vLd), V(cc), 8, V(vLd))
    k.op("buffer_load_dwordx4", V(X0, 4), V(vL16), S(sX, 4), S(sR), mods="offen"); vq.issue("ln")
    k.op("buffer_load_dwordx4", V(X1, 4), V(vL16), S(sX, 4), S(sR), mods="offen offset:1024"); vq.issue("ln")
    sFL, sFA, sF2, sF3, sDb = 53, 54, 55, 58, 92
    if not fuse:
        k.op("s_lshl_b32", S(sT1), "s2", 8)
        k.op("s_add_u32", S(sT1), S(sT1), FLAG_OFF)
        for i in range(4): k.op("v_mov_b32", V(188 + i), 0)
        k.op("buffer_store_dwordx4", V(188, 4), V(vLz), S(sWS, 4), S(sT1), mods="offen" + (" sc1" if fuse else "")); vq.issue()
        k.op("s_lshl_b32", S(sT1), "s2", 4)
        k.op("s_add_u32", S(sT1), S(sT1), FLAG2_OFF)
        k.op("buffer_store_dwordx4", V(188, 4), V(vLz), S(sWS, 4), S(sT1), mods="offen" + (" sc1" if fuse else "")); vq.issue()
    else:
        k.op("s_lshl_b32", S(sFL), "s2", 2)
        k.op("s_add_u32", S(sFL), S(sFL), FL_OFF)
        k.op("s_lshl_b32", S(sFA), S(sH), 7)
        k.op("s_lshl_b32", S(sT1), S(sKV), 4)
        k.op("s_add_u32", S(sFA), S(sFA), S(sT1))
        k.op("s_lshl_b32", S(sT1), S(sRq), 2)
        k.op("s_add_u32", S(sFA), S(sFA), S(sT1))
        k.op("s_add_u32", S(sFA), S(sFA), FA_OFF)
        k.op("s_lshr_b32", S(sT1), "s2", 5)
        k.op("s_lshl_b32", S(sF2), S(sT1), 8)
        k.op("s_lshl_b32", S(sT1), S(sH), 2)
        k.op("s_add_u32", S(sF2), S(sF2), S(sT1))
        k.op("s_add_u32", S(sF2), S(sF2), FLAG2_OFF)
        k.op("s_and_b32", S(sT1), "s2", 1)
        k.op("s_lshl_b32", S(sF3), S(sT1), 13)
        k.op("s_bfe_u32", S(sT1), "s2", "0x30003")
        k.op("s_lshl_b32", S(sT1), S(sT1), 10)
        k.op("s_add_u32", S(sF3), S(sF3), S(sT1))
        k.op("s_lshr_b32", S(sT1), "s2", 6)
        k.op("s_lshl_b32", S(sT1), S(sT1), 8)
        k.op("s_add_u32", S(sF3), S(sF3), S(sT1))
        k.op("s_and_b32", S(sT1), "s2", 6)
        k.op("s_lshl_b32", S(sT1), S(sT1), 1)
        k.op("s_add_u32", S(sF3), S(sF3), S(sT1))
        k.op("s_add_u32", S(sF3), S(sF3), FLAG_OFF)
        one_lane_store(k, sW, sWS, [sFL, sFA, sF2, sF3], 0, 188)
        k.op("s_mov_b32", S(sDb), S(96))
        k.op("s_and_b32", S(sDb + 1), S(97), "0xffff")
        k.op("s_mov_b32", S(sDb + 2), 256)
        k.op("s_mov_b32", S(sDb + 3), "0x20000")

    def pf_k2():
        k.op("s_lshr_b32", S(sT1), "s2", 3)
        k.op("s_lshl_b32", S(sT1), S(sT1), 2)
        k.op("s_add_u32", S(sT1), S(sT1), S(sW))
        k.op("s_and_b32", S(sT0), "s2", 7)
        load_srd(k, sP, "wq", 98)
        k.op("v_bfe_u32", V(12), V(vL), 3, 2)
        k.op("v_lshlrev_b32", V(13), 13, V(12))
        k.op("v_lshl_add_u32", V(13), V(p8), 7, V(13))
        k.op("s_lshl_b32", S(57), S(sT1), 15)
        k.op("s_lshl_b32", S(sT2), S(sT0), 10)
        k.op("s_add_u32", S(57), S(57), S(sT2))
        k.op("buffer_load_dword", V(15), V(13), S(sP, 4), S(57), mods="offen", dummy=True); vq.issue()
        load_srd(k, sWm, "w1", 100)
        k.op("v_mul_u32_u24", V(13), 2752, V(12))
        k.op("v_lshl_add_u32", V(13), V(p8), 6, V(13))
        k.op("s_mul_i32", S(57), S(sT1), 4 * 2752)
        k.op("s_mul_i32", S(sT2), S(sT0), 384)
        k.op("s_add_u32", S(57), S(57), S(sT2))
        k.op("buffer_load_dword", V(15), V(13), S(sWm, 4), S(57), mods="offen", dummy=True); vq.issue()
        k.op("s_lshl_b32", S(57), S(sT1), 13)
        pf_code(k, sX, "k2_kernel", "k2_slow_0-k2_kernel", 13, vL, 57, 15); vq.issue()

    k.op("s_cmp_lg_u32", S(sKV), 0)
    k.op("s_cbranch_scc1", "k1_V")
    import copy
    vq0, lq0, n0 = copy.deepcopy((vq.q, vq.ever)), copy.deepcopy((lq.q, lq.ever)), stp.n
    for kv in range(2):
        if kv:
            k.label("k1_V")
            vq.q, vq.ever = copy.deepcopy(vq0); lq.q, lq.ever = copy.deepcopy(lq0); stp.n = n0
        onst = lambda i: vq.issue() if i.kind == "vstore" else None
        q1, q2, lnq = FillQ(k), FillQ(k, on_emit=onst), FillQ(k, on_emit=lambda i: vq.issue("lnst") if i.kind == "vstore" else None)
        flst = {"fl": False}
        if not noln:
            lnq.add(lambda: vq.need("ln"))
            for r, X in enumerate((X0, X1)):
                ln = Kern("ln")
                layernorm(ln, X, LNR + 4, LNR + 8, LNR + 16)
                layernorm(ln, LNR + 4, LNR + 24, LNR + 8, LNR + 16, stats_only=True)
                ln.op("buffer_store_dwordx4", V(LNR + 4, 4), V(vLd), S(sWS, 4), S(sR + 1), mods=f"offen offset:{16*r}" + (" sc1" if fuse else ""))
                ln.op("buffer_store_dwordx2", V(LNR + 24, 2), V(vLz), S(sWS, 4), S(sR + 2), mods=f"offen offset:{8*r}" + (" sc1" if fuse else ""))
                ln.nop(2)
                lnq.add_kern(ln)
        def acc(st, nb): return ACC + 16 * (st % 4) + 4 * nb
        def pack(e, a, b):
            e.op("v_cvt_pk_bf16_f32", V(a), V(a), V(a + 1))
            e.op("v_cvt_pk_bf16_f32", V(a + 1), V(a + 2), V(a + 3))
            e.op("v_cvt_pk_bf16_f32", V(a + 2), V(b), V(b + 1))
            e.op("v_cvt_pk_bf16_f32", V(a + 3), V(b + 2), V(b + 3))
        def epi(st):
            e = Kern("e")
            if kv == 0:
                e.op("s_lshr_b32", S(sSo2), S(CHA + (st >> 1)), 2)
                e.op("s_add_u32", S(sSo2), S(sSo2), S(sSt))
                if st & 1: e.op("s_add_u32", S(sSo2), S(sSo2), 4096)
                for p in range(2):
                    pack(e, acc(st, 2 * p), acc(st, 2 * p + 1))
                    e.op("buffer_store_dwordx4", V(acc(st, 2 * p), 4), V(vL16), S(sWS, 4), S(sSo2), mods=f"offen offset:{p*1024}{store_mods}")
            elif st & 1:
                e.op("s_lshr_b32", S(sSo2), S(CHA + (st >> 1)), 2)
                e.op("s_add_u32", S(sSo2), S(sSo2), S(sSt))
                for nb in range(4):
                    pack(e, acc(st - 1, nb), acc(st, nb))
                    e.op("buffer_store_dwordx4", V(acc(st - 1, nb), 4), V(vL16), S(sWS, 4), S(sSo2), mods=f"offen offset:{nb*1024}{store_mods}")
            if nostore: e.ins = [i for i in e.ins if i.kind != "vstore"]
            return e
        AF2 = 192
        def afr(n, alt=False): return (AF2 if alt else AF) + (n % 8) * 4
        def rd_act(n, alt=False):
            st, ks = n >> 4, n & 15
            if ks == 0 and st > 1:
                if st == 2: assert len(lq.q) == 0
                vq.need(("A", st), cnt=[8])
                if fuse and len(lnq) == 0: flst["n"] = flst.get("n", 0) + 1
                dofl = fuse and flst.get("n", 0) == fldelay and not flst["fl"]
                if dofl: vq.need("lnst", cnt=[4])
                k.op("s_barrier")
                if dofl:
                    one_lane_store(k, sW, sWS, [sFL], 1, 188); flst["fl"] = True
                if fuse and st == 2:
                    lab = k.newlabel("noz")
                    k.op("v_mov_b32", V(189), 1)
                    k.op("s_cmp_lg_u32", S(sW), 0); k.op("s_cbranch_scc1", lab)
                    k.op("s_mov_b64", "exec", 1)
                    k.op("buffer_store_byte", V(189), V(vLz), S(sDb, 4), "s2", mods="offen sc1")
                    k.op("s_mov_b64", "exec", -1)
                    k.label(lab)
                if fuse and st == 11:
                    k.op("v_lshlrev_b32", V(229), 2, V(vL))
                    k.op("buffer_load_dword", V(228), V(229), S(sDb, 4), 0, mods="offen sc1"); vq.issue("pz")
                if fuse and st == 13:
                    vq.need("pz")
                    spin_until(k, f"k1_sz{kv}", lambda: k.op("buffer_load_dword", V(228), V(229), S(sDb, 4), 0, mods="offen sc1"),
                               lambda: k.op("v_cmp_ne_u32", "vcc", "0x01010101", V(228)), sT1)
                if fuse and st == 15:
                    assert flst["fl"]
                    k.op("s_lshr_b32", S(sT1), "s2", 5)
                    k.op("s_lshl_b32", S(sT1), S(sT1), 6)
                    k.op("s_sub_u32", S(sT2), 960, S(sT1))
                    k.op("v_mov_b32", V(226), S(sT1))
                    k.op("v_mov_b32", V(227), S(sT2))
                    k.op("v_cmp_eq_u32", "vcc", 0, V(g1))
                    k.op("s_mov_b32", S(sFL), FL_OFF)
                    k.nop(1)
                    k.op("v_cndmask_b32", V(226), V(227), V(226), "vcc")
                    k.op("v_lshl_add_u32", V(226), V(l15), 2, V(226))
                    k.op("buffer_load_dword", V(227), V(226), S(sWS, 4), S(sFL), mods="offen sc1"); vq.issue("pp")
                q1.flush()
                if st == 2:
                    for f in dma_a_items(4): q1.add(f)
                if st >= 3 and st + 2 < 16:
                    pass
                if st >= 2 and st + 3 < 16:
                    for f in dma_a_items(st + 3): q1.add(f)
            off = aslot(st)
            wn = off // 65536
            k.op("ds_read_b128", V(afr(n, alt), 4), V(AAr + 4 * wn + (ks & 3)), mods=f"offset:{off - wn*65536 + (ks>>2)*256}")
            lq.issue(("a", n))
        def mf(st, ks, nb, n, alt=False):
            d = V(acc(st, nb), 4); wf = A((ks * 4 + nb) * 4, 4); af = V(afr(n, alt), 4)
            if kv == 0: k.op("v_mfma_f32_16x16x32_bf16", d, wf, af, "0" if ks == 0 else d)
            else: k.op("v_mfma_f32_16x16x32_bf16", d, af, wf, "0" if ks == 0 else d)
        def wread_items(s):
            it = []
            for ks in (2 * s, 2 * s + 1):
                for nb in range(4):
                    for i in range(2):
                        def f(ks=ks, nb=nb, i=i):
                            off = wslot(s) + (ks & 1) * 8192 + i * 1024
                            wn = off // 65536
                            k.op("ds_read_b64_tr_b16", A((ks * 4 + nb) * 4 + 2 * i, 2), V(TA + 4 * wn + nb), mods=f"offset:{off - wn*65536}")
                            lq.issue(("w", ks))
                        it.append(f)
                it.append(lambda ks=ks: rd_act(ks))
                it.append(lambda ks=ks: rd_act(16 + ks, True))
            return it
        for f in dma_w_items(2) + dma_w_items(3): f()
        qr = FillQ(k)
        for s in range(9):
            if s < 8:
                vq.need(("W", s), ("A", 0), ("A", 1), cnt=[4, 8, 8])
                k.op("s_barrier")
                if s == 0: stp.stamp()
                for f in wread_items(s): qr.add(f)
                if s + 4 < 8:
                    for f in dma_w_items(s + 4): q1.add(f)
                if s == 5:
                    for f in dma_a_items(2): q1.add(f)
                if s == 7:
                    for f in dma_a_items(3): q1.add(f)
            if s == 0:
                qr.flush(); q1.flush(); continue
            for ks in (2 * s - 2, 2 * s - 1):
                lq.need(("w", ks), ("a", ks), ("a", 16 + ks), cnt=[8, 1, 1])
                if ks == 15:
                    for n in range(32, 32 + D): qr.add(lambda n=n: rd_act(n))
                for alt in range(2):
                    for nb in range(4):
                        mf(alt, ks, nb, 16 * alt + ks, bool(alt))
                        qr.emit(2)
                        if len(qr) == 0: q1.emit(1)
            qr.flush()
            if s < 8: q1.flush()
        stp.stamp()
        nxt = 32 + D
        for n in range(32, 256):
            st, ks = n >> 4, n & 15
            if n in (64, 128, 192): stp.stamp()
            if n == 34: q2.add_kern(epi(0))
            if ks == 2: q2.add_kern(epi(st - 1))
            if pf2 and n == pf2at * 16 + 8: pf_k2()
            if n % 2 == 0: lq.need(("a", n), ("a", n + 1), cnt=[1, 1])
            for nb in range(4):
                mf(st, ks, nb, n)
                cap = 1
                if nb == 0 and nxt < 256:
                    rd_act(nxt); nxt += 1; cap = 0
                cap -= q1.emit(cap)
                cap -= q2.emit(cap)
                if st >= LN0: cap -= lnq.emit(cap + (1 if fuse else 0))
        stp.stamp()
        q2.flush(); lnq.flush()
        if fuse:
            vq.need("pp")
            spin_until(k, f"k1_sp{kv}", lambda: k.op("buffer_load_dword", V(227), V(226), S(sWS, 4), S(sFL), mods="offen sc1"),
                       lambda: k.op("v_cmp_ne_u32", "vcc", 1, V(227)), sT1)
        k.nop(8)
        q2.add_kern(epi(15)); q2.flush()
        if pf2 and pf2at >= 16: pf_k2()
        if stamps:
            if not fuse: k.wait(vm=0)
            stp.stamp()
            stp.flush(sWS, sW, 4)
        if fuse:
            k.wait(lgkm=0)
            k.op("s_barrier")
            k.op("s_mov_b32", "s3", S(sFA))
            k.raw("  s_branch k2_kernel")
        k.op("s_endpgm")
    k.label("k1_end")
    k.op("s_endpgm")
    return k

if __name__ == "__main__":
    k = build_k1()
    for e in k.check_hazards(): print(e)
    for e in k.check_waits(): print(e)
    print(k.maxregs(), len(k.ins))
```

```python
from common import *
import struct
def f32(x): return hex(struct.unpack("<I", struct.pack("<f", x))[0])
LOG2E = 1.4426950408889634
QSCALE = LOG2E / (128 ** 0.5)
STAT_OFF = YF_OFF

def build_k2(stamps=False, D=6, DA=8, thr=2.0 ** 60, pf3=True, fuse3=False, xnobar=False, xnodma=False, oolmask=True, pfself=True, fused1=False):
    k = Kern("k2_kernel")
    SC = " sc1" if fused1 else ""
    vq, lq = Q(k, "vmcnt", 63), Q(k, "lgkmcnt", 15)
    stp = Stamps(k, stamps, 62, 1, lq, maxn=8)
    sWS, sWQ, sW1, sK, sV, sB1 = 8, 12, 16, 20, 24, 28
    sW, sH, sP, sNa, sNb, sT = 32, 33, 34, 35, 36, 37
    sT0, sT1, sT2, sSo = 38, 39, 40, 41
    sP2, sP1, sRd, sNx = 42, 43, 44, 45
    sTK, sTV, sW4k, sThr, sRet = 46, 47, 48, 49, 50
    sXa, sXb = 51, 52
    sCa, sCb = 53, 54
    sM = 56
    sLd = 98
    vL, vL16, vA, vD, vZ, vNinf = 1, 2, 3, 4, 5, 6
    vPs = [7, 8]; vLs = [9, 10]; vMx = [11, 12]
    vT = 13
    vCo = 20
    QR, NEGM, SR = 32, 96, 128
    def Sreg(sub, par): return SR + sub * 64 + par * 32
    OA, FR = 64, 192
    TA, TB, VW, VW1 = 96, 104, 108, 112
    vXo = 21
    MACC = 32
    ONES = 116
    XR = 0

    k.op("s_cmp_ge_u32", "s2", 256)
    k.op("s_cbranch_scc1", "k2_end")
    if pfself:
        pf_self(k, "k2_slow_0", vt=254); vq.issue()
    k.op("s_load_dwordx2", S(84, 2), S(0, 2), KA["wq"])
    k.op("s_load_dwordx4", S(88, 4), S(0, 2), KA["w1"])
    k.op("s_load_dwordx2", S(92, 2), S(0, 2), KA["ws"])
    k.op("s_load_dwordx2", S(86, 2), S(0, 2), KA["wo"])
    k.op("s_load_dwordx2", S(96, 2), S(0, 2), KA["w2"])
    k.op("v_and_b32", V(vL), 63, "v0")
    k.op("v_lshrrev_b32", V(13), 6, "v0")
    k.op("s_and_b32", S(sT0), "s2", 7)
    k.op("v_readfirstlane_b32", S(sW), V(13))
    k.op("s_lshr_b32", S(sT1), "s2", 3)
    k.op("s_and_b32", S(sT2), S(sT1), 3)
    k.op("s_lshl_b32", S(sH), S(sT0), 2)
    k.op("s_add_u32", S(sH), S(sH), S(sT2))
    k.op("s_lshr_b32", S(sP), S(sT1), 2)
    k.op("v_lshlrev_b32", V(vL16), 4, V(vL))
    k.op("s_lshl_b32", S(sW4k), S(sW), 12)
    k.op("v_add_u32", V(vD), S(sW4k), V(vL16))
    g, l15, p8, l3, r_, cc, g1, t7 = 22, 23, 24, 25, 26, 27, 28, 29
    k.op("v_lshrrev_b32", V(g), 4, V(vL))
    k.op("v_and_b32", V(l15), 15, V(vL))
    k.op("v_and_b32", V(p8), 7, V(vL))
    k.op("v_lshrrev_b32", V(l3), 3, V(vL))
    k.op("v_bfe_u32", V(r_), V(vL), 2, 2)
    k.op("v_and_b32", V(cc), 3, V(vL))
    k.op("v_and_b32", V(g1), 1, V(g))
    k.op("v_lshlrev_b32", V(t7), 1, V(g))
    k.op("v_xor_b32", V(t7), V(t7), V(l15))
    k.op("v_lshlrev_b32", V(t7), 4, V(t7))
    k.op("v_lshl_add_u32", V(t7), V(g), 13, V(t7))
    k.op("s_lshl_b32", S(sT0), S(sW), 17)
    k.op("s_lshl_b32", S(sT1), S(sH), 8)
    k.op("s_add_u32", S(sT0), S(sT0), S(sT1))
    k.op("v_add_u32", V(VW), S(sT0), V(t7))
    k.op("v_add_u32", V(VW + 1), 32768 - 1024, V(VW))
    k.op("v_xor_b32", V(VW + 2), 128, V(VW))
    k.op("v_add_u32", V(VW + 2), 2 * (32768 - 1024), V(VW + 2))
    k.op("v_add_u32", V(VW + 3), 32768 - 1024, V(VW + 2))
    k.op("v_lshlrev_b32", V(t7), 1, V(g1))
    k.op("v_xor_b32", V(t7), V(t7), V(p8))
    k.op("v_lshlrev_b32", V(t7), 4, V(t7))
    k.op("v_mul_u32_u24", V(30), 2752, V(l3))
    k.op("s_mul_i32", S(sT0), S(sW), 32 * 2752)
    k.op("s_mul_i32", S(sT1), S(sH), 96)
    k.op("s_add_u32", S(sT0), S(sT0), S(sT1))
    k.op("v_add_u32", V(30), S(sT0), V(30))
    k.op("v_add_u32", V(VW1), V(30), V(t7))
    k.op("v_xor_b32", V(t7), 64, V(t7))
    k.op("v_add_u32", V(VW1 + 1), V(30), V(t7))
    k.op("v_add_u32", V(VW1 + 1), 8 * 2752 - 1024, V(VW1 + 1))
    k.op("v_add_u32", V(VW1 + 2), 2 * (8 * 2752 - 1024), V(VW1))
    k.op("v_add_u32", V(VW1 + 3), 2 * (8 * 2752 - 1024), V(VW1 + 1))
    k.op("s_lshl_b32", S(sT0), S(sP), 7)
    k.op("s_lshl_b32", S(sT1), S(sW), 5)
    k.op("s_add_u32", S(sXa), S(sT0), S(sT1))
    k.op("s_sub_u32", S(sXb), 1920, S(sT0))
    k.op("s_add_u32", S(sXb), S(sXb), S(sT1))
    k.op("s_lshl_b32", S(sT2), S(sH), 12)
    k.op("s_add_u32", S(sT2), S(sT2), CTX_OFF)
    k.op("s_lshl_b32", S(sCa), S(sXa), 13)
    k.op("s_add_u32", S(sCa), S(sCa), S(sT2))
    k.op("s_lshl_b32", S(sCb), S(sXb), 13)
    k.op("s_add_u32", S(sCb), S(sCb), S(sT2))
    sRa, sRb = 94, 95
    k.op("s_mov_b32", S(sRa), S(sXa)); k.op("s_mov_b32", S(sRb), S(sXb))
    sHr = 56
    for rb in range(4):
        k.op("s_lshr_b32", S(sHr + rb), S(sRa if rb < 2 else sRb), 4)
        k.op("s_add_u32", S(sHr + rb), S(sHr + rb), rb & 1)
        k.op("s_mul_i32", S(sHr + rb), S(sHr + rb), 43 * 1024)
    k.op("s_lshl_b32", S(sXa), S(sXa), 10)
    k.op("s_lshl_b32", S(sXb), S(sXb), 10)
    k.op("s_lshr_b32", S(sT1), S(sW), 1)
    k.op("s_lshl_b32", S(sT0), S(sP), 1)
    k.op("s_add_u32", S(sNa), S(sT0), S(sT1))
    k.op("s_add_u32", S(sNa), S(sNa), 1)
    k.op("s_sub_u32", S(sNb), 31, S(sT0))
    k.op("s_add_u32", S(sNb), S(sNb), S(sT1))
    k.wait(lgkm=0)
    stp.stamp()
    load_srd(k, sWQ, "wq", 84); load_srd(k, sW1, "w1", 88); load_srd(k, sWS, "ws", 92)

    pages = {}
    order = []
    for j in range(4):
        order += [("W1", j), ("WQ", 2 * j), ("WQ", 2 * j + 1)]
    for i, p in enumerate(order): pages[p] = i
    for t in range(6): pages[("K", t)] = 12 + 2 * t; pages[("V", t)] = 15 + 2 * t
    def slot(p): return (pages[p] % 10) * 16384
    def dma_items(p):
        kind, j = p
        def setup():
            k.op("s_add_u32", "m0", S(sW4k), slot(p))
            k.op("s_mov_b32", S(sSo), {"W1": j * 128 * 2752, "WQ": j * 524288, "K": j * 16384, "V": (j + 1) * 16384}[kind])
        def ld(i):
            def f():
                if kind == "WQ": k.op("buffer_load_dwordx4", V(VW + i), S(sWQ, 4), S(sSo), mods=f"offen offset:{i*1024} lds")
                elif kind == "W1": k.op("buffer_load_dwordx4", V(VW1 + i), S(sW1, 4), S(sSo), mods=f"offen offset:{i*1024} lds")
                else: k.op("buffer_load_dwordx4", V(vD), S(sK if kind == "K" else sV, 4), S(sSo), mods=f"offen offset:{i*1024}{SC} lds")
                vq.issue(p)
            return f
        return [setup] + [ld(i) for i in range(4)]
    def xn_load(ks, rb):
        def f():
            r = XR + ((ks % 12) * 4 + rb) * 4
            if ks & 3 == 0: k.op("s_add_u32", S(sLd + rb), S(sXa if rb < 2 else sXb), (rb & 1) * 16384 + (ks >> 2) * 4096)
            k.op("buffer_load_dwordx4", A(r, 4), V(vL16), S(sWS, 4), S(sLd + rb), mods=f"offen offset:{(ks&3)*1024}" + SC)
            vq.issue(("x", ks))
        return f
    for p in (("W1", 0), ("WQ", 0)):
        for f in dma_items(p): f()
    for ks in range(2):
        for rb in range(4): xn_load(ks, rb)()
    for f in dma_items(("WQ", 1)): f()
    for ks in range(2, 4):
        for rb in range(4): xn_load(ks, rb)()
    load_srd(k, sB1, "b1", 90)
    k.op("s_lshl_b32", S(sT0), S(sH), 19)
    k.op("s_add_u32", S(sT1), S(sT0), KF_OFF)
    k.op("s_add_u32", S(sK), S(92), S(sT1))
    k.op("s_addc_u32", S(sK + 1), S(93), 0)
    k.op("s_and_b32", S(sK + 1), S(sK + 1), "0xffff")
    k.op("s_lshl_b32", S(sT2), S(sP), 15)
    k.op("s_sub_u32", S(sK + 2), 32 * 16384, S(sT2))
    k.op("s_mov_b32", S(sK + 3), "0x20000")
    k.op("s_add_u32", S(sT1), S(sT0), VF_OFF - 16384)
    k.op("s_add_u32", S(sV), S(92), S(sT1))
    k.op("s_addc_u32", S(sV + 1), S(93), 0)
    k.op("s_and_b32", S(sV + 1), S(sV + 1), "0xffff")
    k.op("s_add_u32", S(sV + 2), S(sK + 2), 16384)
    k.op("s_mov_b32", S(sV + 3), "0x20000")
    k.op("v_lshl_or_b32", V(30), V(g1), 2, V(r_))
    k.op("v_lshl_add_u32", V(31), V(g), 3, V(r_))
    k.op("v_lshlrev_b32", V(t7), 8, V(31))
    k.op("v_lshl_add_u32", V(t7), V(cc), 3, V(t7))
    for nb in range(8):
        k.op("v_xor_b32", V(13), nb, V(30))
        k.op("v_lshl_add_u32", V(TA + nb), V(13), 5, V(t7))
    k.op("v_lshrrev_b32", V(13), 1, V(r_))
    k.op("v_lshl_or_b32", V(30), V(g1), 1, V(13))
    k.op("v_lshlrev_b32", V(t7), 7, V(31))
    k.op("v_lshl_add_u32", V(t7), V(cc), 3, V(t7))
    for nb in range(3):
        k.op("v_xor_b32", V(13), nb, V(30))
        k.op("v_lshl_add_u32", V(TB + nb), V(13), 5, V(t7))
    for i in range(4): k.op("v_mov_b32", V(ONES + i), "0x3f803f80")
    ST = 120
    B1 = [92, 94, 30]
    k.op("v_lshlrev_b32", V(13), 3, V(l15))
    for rb in range(4):
        k.op("s_lshl_b32", S(sT0), S(sRa if rb < 2 else sRb), 3)
        k.op("s_add_u32", S(sT0), S(sT0), STAT_OFF + (rb & 1) * 128)
        k.op("buffer_load_dwordx2", V(ST + 2 * rb, 2), V(13), S(sWS, 4), S(sT0), mods="offen" + SC); vq.issue("st")
    k.op("v_lshlrev_b32", V(14), 3, V(g))
    k.op("s_mul_i32", S(sT1), S(sH), 96)
    for nb in range(3):
        k.op("buffer_load_dwordx2", V(B1[nb], 2), V(14), S(sB1, 4), S(sT1), mods=f"offen offset:{nb*32}"); vq.issue("st")
    win = {"TA": 0, "TB": 0}
    def set_window(name, base, n, off):
        w = off // 65536
        if win[name] != w:
            d = (w - win[name]) * 65536
            for i in range(n): k.op("v_add_u32", V(base + i), hex(d & 0xffffffff), V(base + i))
            win[name] = w
        return off - w * 65536
    frs = []
    for ks in range(16):
        for nb in range(3): frs.append(("W1", ks, nb))
        for nb in range(8): frs.append(("WQ", ks, nb))
    NF = len(frs)
    q1 = FillQ(k)
    plan = {0: [("W1", 1), ("WQ", 2)], 1: [("WQ", 3)], 2: [("W1", 2), ("WQ", 4)], 3: [("WQ", 5)], 4: [("W1", 3), ("WQ", 6)],
            5: [("WQ", 7)], 6: [("K", 0), ("K", 1)], 7: [("V", 0), ("K", 2)]}
    def stage_switch(s):
        need = [("WQ", s)] + ([("W1", s // 2)] if s % 2 == 0 else [])
        vq.need(*need, cnt=[4] * len(need))
        k.op("s_barrier")
        q1.flush()
        if fused1 and s == 0:
            one_lane_store(k, sW, sWS, [3], 1, 18)
        if fused1 and s == 5:
            k.op("s_lshl_b32", S(55), S(sH), 7)
            k.op("s_add_u32", S(55), S(55), FA_OFF)
            k.op("v_lshlrev_b32", V(18), 2, V(p8))
            k.op("buffer_load_dword", V(19), V(18), S(sWS, 4), S(55), mods="offen sc1"); vq.issue("pp")
        if fused1 and s == 6:
            vq.need("pp")
            spin_until(k, "k2_sp", lambda: k.op("buffer_load_dword", V(19), V(18), S(sWS, 4), S(55), mods="offen sc1"),
                       lambda: k.op("v_cmp_ne_u32", "vcc", 1, V(19)), sT1)
        for ks in (2 * s + 4, 2 * s + 5):
            if ks < 16:
                for rb in range(4): q1.add(xn_load(ks, rb))
        for p in plan[s]:
            for f in dma_items(p): q1.add(f)
    def read_frag(n, which):
        kind, ks, nb = frs[n]
        if n % 22 == 0 and which == 0: stage_switch(n // 22)
        r = FR + (n % 16) * 4
        if kind == "WQ":
            off = slot(("WQ", ks // 2)) + (ks & 1) * 8192 + which * 1024
            off = set_window("TA", TA, 8, slot(("WQ", ks // 2))) + (ks & 1) * 8192 + which * 1024
            k.op("ds_read_b64_tr_b16", A(r + 2 * which, 2), V(TA + nb), mods=f"offset:{off}")
        else:
            off = set_window("TB", TB, 3, slot(("W1", ks // 4))) + (ks & 3) * 4096 + which * 512
            k.op("ds_read_b64_tr_b16", A(r + 2 * which, 2), V(TB + nb), mods=f"offset:{off}")
        lq.issue(("w", n))
    def qacc(nb, rb): return SR + 4 * (nb * 4 + rb)
    def macc(nb, rb): return MACC + 4 * (nb * 4 + rb)
    for n in range(D):
        read_frag(n, 0); read_frag(n, 1)
    stp.stamp()
    for n in range(NF):
        kind, ks, nb = frs[n]
        if n % 11 == 0: vq.need(("x", ks), cnt=[4])
        if n % 2 == 0: lq.need(("w", n), ("w", n + 1), cnt=[2, 2])
        wf = A(FR + (n % 16) * 4, 4)
        first = ks == 0
        ms = []
        for rb in range(4):
            d = V(qacc(nb, rb) if kind == "WQ" else macc(nb, rb), 4)
            ms.append((d, A(XR + ((ks % 12) * 4 + rb) * 4, 4)))
        if kind == "W1": ms.append((V(MACC + 48 + 4 * nb, 4), V(ONES, 4)))
        for c, (d, b) in enumerate(ms):
            k.op("v_mfma_f32_16x16x32_bf16", d, wf, b, "0" if first else d)
            if c < 2 and n + D < NF: read_frag(n + D, c)
            else: q1.emit(2 if len(q1) > 12 else 1)
    q1.flush()
    stp.stamp()
    vq.need(("K", 0), cnt=[4])
    k.op("s_barrier")
    for p in (("V", 1), ("K", 3), ("V", 2)):
        for f in dma_items(p): f()
    k.op("v_mul_u32_u24", V(15), 44032, V(g1))
    k.op("v_lshrrev_b32", V(16), 5, V(vL))
    k.op("v_lshl_add_u32", V(15), V(16), 8, V(15))
    k.op("v_lshl_add_u32", V(15), V(l15), 4, V(15))
    C1, C2 = -2 * LOG2E * 0.7978845608028654, -2 * LOG2E * 0.7978845608028654 * 0.044715
    k.op("v_mov_b32", V(16), f32(C1)); k.op("v_mov_b32", V(17), f32(C2))
    k.op("v_mov_b32", V(18), "1.0"); k.op("v_mov_b32", V(19), "1.0")
    def P(r): return V(r, 2)
    bb, t = 96, 100
    for nb in range(3):
        k.op("v_lshlrev_b32", V(bb), 16, V(B1[nb]))
        k.op("v_and_b32", V(bb + 1), "0xffff0000", V(B1[nb]))
        k.op("v_lshlrev_b32", V(bb + 2), 16, V(B1[nb] + 1))
        k.op("v_and_b32", V(bb + 3), "0xffff0000", V(B1[nb] + 1))
        cs = MACC + 48 + 4 * nb
        k.op("s_mul_i32", S(sT1), S(sH), 3)
        k.op("s_add_u32", S(sT1), S(sT1), nb)
        k.op("s_lshl_b32", S(sT2), S(sT1), 9)
        k.op("s_add_u32", S(sT2), S(sT2), HF_OFF)
        lab = k.newlabel("skiph")
        k.op("s_cmp_ge_u32", S(sT1), 86)
        k.op("s_cbranch_scc1", lab)
        for rp in range(2):
            rbs = (2 * rp, 2 * rp + 1)
            def each(fn):
                for j, rb in enumerate(rbs):
                    for i in (0, 2): fn(macc(nb, rb) + i, t + 4 * j + i, ST + 2 * rb, i)
            each(lambda a, tt, st, i: k.op("v_pk_fma_f32", P(a), P(cs + i), P(st), P(a), mods="op_sel_hi:[1,0,1] neg_lo:[1,0,0] neg_hi:[1,0,0]"))
            each(lambda a, tt, st, i: k.op("v_pk_fma_f32", P(a), P(a), P(st), P(bb + i), mods="op_sel:[0,1,0]"))
            each(lambda a, tt, st, i: k.op("v_pk_mul_f32", P(tt), P(a), P(a)))
            each(lambda a, tt, st, i: k.op("v_pk_fma_f32", P(tt), P(tt), P(16), P(16), mods="op_sel:[0,1,0] op_sel_hi:[1,1,0]"))
            each(lambda a, tt, st, i: k.op("v_pk_mul_f32", P(tt), P(tt), P(a)))
            for i in range(8): k.op("v_exp_f32", V(t + i), V(t + i))
            each(lambda a, tt, st, i: k.op("v_pk_add_f32", P(tt), P(tt), P(18)))
            for i in range(8): k.op("v_rcp_f32", V(t + i), V(t + i))
            each(lambda a, tt, st, i: k.op("v_pk_mul_f32", P(a), P(a), P(tt)))
            a0, a1 = macc(nb, rbs[0]), macc(nb, rbs[1])
            k.op("v_cvt_pk_bf16_f32", V(a0), V(a0), V(a0 + 1))
            k.op("v_cvt_pk_bf16_f32", V(a0 + 1), V(a0 + 2), V(a0 + 3))
            k.op("v_cvt_pk_bf16_f32", V(a0 + 2), V(a1), V(a1 + 1))
            k.op("v_cvt_pk_bf16_f32", V(a0 + 3), V(a1 + 2), V(a1 + 3))
            k.op("s_add_u32", S(sT0), S(sHr + 2 * rp), S(sT2))
            k.nop(1)
            k.op("v_permlane16_swap_b32", V(a0), V(a0 + 2))
            k.op("v_permlane16_swap_b32", V(a0 + 1), V(a0 + 3))
            k.op("buffer_store_dwordx4", V(a0, 4), V(15), S(sWS, 4), S(sT0), mods="offen" + (" sc1" if fuse3 else ""))
        k.label(lab)
    k.op("v_mov_b32", V(16), f32(QSCALE)); k.op("v_mov_b32", V(17), f32(QSCALE))
    def Qreg(sub, qb, ds): return QR + sub * 32 + qb * 16 + ds * 4
    for rb in range(4):
        for ds in range(4):
            X = Qreg(rb >> 1, rb & 1, ds)
            for half in range(2):
                a = qacc(2 * ds + half, rb)
                for i in (0, 2): k.op("v_pk_mul_f32", P(a + i), P(a + i), P(16))
                k.op("v_cvt_pk_bf16_f32", V(X + 2 * half), V(a), V(a + 1))
                k.op("v_cvt_pk_bf16_f32", V(X + 2 * half + 1), V(a + 2), V(a + 3))
    stp.stamp()
    def Ngm(sub, qb): return NEGM + sub * 8 + qb * 4
    def Lac(sub, qb): return 112 + sub * 8 + qb * 4
    ON1 = 24
    k.op("s_and_b32", S(sT0), S(sW), 1)
    k.op("s_lshl_b32", S(sT0), S(sT0), 5)
    k.op("v_add_u32", V(vZ), S(sT0), V(l15))
    k.op("v_lshlrev_b32", V(15), 2, V(g))
    k.op("v_sub_u32", V(vZ), V(vZ), V(15))
    k.op("v_mov_b32", V(vNinf), f32(-1e30))
    for i in range(4): k.op("v_mov_b32", V(ON1 + i), "0x3f803f80")
    for i in range(16): k.op("v_mov_b32", V(112 + i), 0)
    k.op("s_mov_b32", S(sThr), f32(thr))
    k.op("s_mov_b32", S(sP2), 0)
    k.op("s_mov_b32", S(sNx), 98304)
    k.op("s_mov_b32", S(sTK), 4 * 16384)
    k.op("s_mov_b32", S(sT), 2)

    def mf(d, a, b, c): k.op("v_mfma_f32_16x16x32_bf16", d, a, b, c)
    def mask_block(sub, par):
        s0 = Sreg(sub, par)
        for e0 in range(0, 32, 2):
            for u in range(2):
                e = e0 + u; qb, kb, r = e >> 4, (e >> 2) & 3, e & 3
                k.op("v_cmp_gt_i32", S(sM + 2 * u, 2), 16 * kb + r - 16 * qb, V(vZ))
            k.nop(1)
            for u in range(2):
                k.op("v_cndmask_b32", V(s0 + e0 + u), V(s0 + e0 + u), V(vNinf), S(sM + 2 * u, 2))
    def ereg(n):
        k32, qb, j = n >> 4, (n >> 3) & 1, n & 7
        return qb * 16 + k32 * 8 + j
    def soft_exp(sub, par, n):
        r = Sreg(sub, par) + ereg(n)
        k.op("v_exp_f32", V(r), V(r))
    def soft_cvt(sub, par, n):
        e = n - 2
        r = Sreg(sub, par) + ereg(e)
        d = Sreg(sub, par) + (ereg(e) & ~7) + ((e & 7) >> 1)
        k.op("v_cvt_pk_bf16_f32", V(d), V(r), V(r + 1))
    def rd(frag, isV):
        k.op("ds_read_b128", A(FR + frag * 4, 4), V(vA), mods=f"offset:{(16384 if isV else 0) + frag*1024}")
    def ldK(i): return lambda: k.op("buffer_load_dwordx4", V(vD), S(sK, 4), S(sTK), mods=f"offen offset:{i*1024}{SC} lds")
    def ldV(i): return lambda: k.op("buffer_load_dwordx4", V(vD), S(sV, 4), S(sTK), mods=f"offen offset:{i*1024}{SC} lds")
    m0K = lambda: k.op("s_add_u32", "m0", S(sP2), S(sW4k))
    m0V = lambda: k.op("s_add_u32", "m0", "m0", 16384)
    advT = lambda: k.op("s_add_u32", S(sTK), S(sTK), 16384)
    advP = lambda: k.op("s_add_u32", S(sP2), S(sP2), 32768)
    wrapP = lambda: (k.op("s_cmp_eq_u32", S(sP2), 163840), k.op("s_cselect_b32", S(sP2), 0, S(sP2)))
    XA = {1: [ldK(2)], 5: [ldK(3)], 7: [m0V], 9: [ldV(0)], 13: [ldV(1)]}
    XB = {1: [ldV(2)], 5: [ldV(3)], 7: [advT, advP], 9: [wrapP, m0K], 11: [ldK(0)], 15: [ldK(1)]}
    WP = 4
    def phaseA(par, qk, ex):
        if not qk:
            k.wait(lgkm=0)
            for f in range(DA): rd(f, True)
            for n in range(16, 32):
                for sub in ex:
                    soft_exp(sub, par, n)
                    if n % 2 == 0: soft_cvt(sub, par, n)
            return
        for f in range(16):
            kb, ds = f >> 2, f & 3
            if f % WP == 0: k.wait(lgkm=DA - WP)
            for j, sub in enumerate(qk):
                xs = ex if len(qk) == 1 else [sub]
                for qb in range(2):
                    d = V(Sreg(sub, 1 - par) + qb * 16 + kb * 4, 4)
                    mf(d, A(FR + f * 4, 4), V(Qreg(sub, qb, ds), 4), V(Ngm(sub, qb), 4) if ds == 0 else d)
                    if qb == 0:
                        for x in xs: soft_exp(x, par, 16 + f)
                if j == 0:
                    nf = f + DA
                    if nf < 16: rd(nf, False)
                    else: rd(nf - 16, True)
                if f % 2 == 0:
                    for x in xs: soft_cvt(x, par, 16 + f)
                if j == len(qk) - 1:
                    for fn in XA.get(f, []): fn()
    def phaseB(par, pv, exn, bar="always", tailops=()):
        extra = list(tailops)
        for f in range(16):
            k32, db = f >> 3, f & 7
            if f % WP == 0: k.wait(lgkm=DA - WP if bar == "always" else max(0, min(DA - WP, 16 - f - WP)))
            for j, sub in enumerate(pv):
                for qb in range(2):
                    d = A(OA + sub * 64 + (db * 2 + qb) * 4, 4)
                    mf(d, A(FR + f * 4, 4), V(Sreg(sub, par) + qb * 16 + k32 * 8, 4), d)
                    if qb == 0 and sub in exn: soft_exp(sub, 1 - par, f)
                if j == 0:
                    nf = f + DA
                    if nf == 16:
                        if bar == "always":
                            k.wait(vm=16); k.op("s_barrier")
                        elif bar == "w01":
                            lab = k.newlabel("nobar")
                            k.op("s_cmp_ge_u32", S(sW), 2); k.op("s_cbranch_scc1", lab)
                            k.wait(vm=8); k.op("s_barrier")
                            k.label(lab)
                        k.op("v_add_u32", V(vA), S(sNx), V(vL16))
                    if bar == "always" or nf < 16:
                        if nf < 16: rd(nf, True)
                        else: rd(nf - 16, False)
                if f == 0: soft_cvt(sub, par, 32)
                elif f % 2 == 0 and sub in exn: soft_cvt(sub, 1 - par, f)
                if f % 4 == 3:
                    qb = (f >> 2) & 1
                    d = V(Lac(sub, qb), 4)
                    mf(d, V(ON1, 4), V(Sreg(sub, par) + qb * 16 + k32 * 8, 4), d)
                if j == len(pv) - 1 and bar == "always":
                    for fn in XB.get(f, []): fn()
                    if f in (3, 13, 14) and extra: extra.pop(0)()
        for fn in extra: fn()
    def nx_items():
        return [lambda: k.op("s_add_u32", S(sT), S(sT), 1),
                lambda: k.op("s_add_u32", S(sNx), S(sNx), 32768),
                lambda: (k.op("s_cmp_eq_u32", S(sNx), 163840), k.op("s_cselect_b32", S(sNx), 0, S(sNx)))]
    def rowmax(sub, par, qb, dst):
        s0 = Sreg(sub, par) + 16 * qb
        k.op("v_max3_f32", V(dst), V(s0), V(s0 + 1), V(s0 + 2))
        for e in range(3, 15, 2): k.op("v_max3_f32", V(dst), V(dst), V(s0 + e), V(s0 + e + 1))
        k.op("v_max_f32", V(dst), V(dst), V(s0 + 15))
        for sw in ("v_permlane16_swap_b32", "v_permlane32_swap_b32"):
            k.op("v_mov_b32", V(vT + 1), V(dst))
            k.nop(2)
            k.op(sw, V(dst), V(vT + 1))
            k.op("v_max_f32", V(dst), V(dst), V(vT + 1))
    slow_sites = {}
    def epilogue(sub, site):
        t = Sreg(sub, 0)
        k.nop(8)
        k.op("v_max_f32", V(vT), V(Lac(sub, 0)), V(Lac(sub, 1)))
        k.op("v_add_f32", V(vT + 1), V(Lac(sub, 0)), V(Lac(sub, 1)))
        k.op("v_cmp_nle_f32", "vcc", V(vT + 1), V(21))
        k.op("s_mov_b32", S(sRet), site)
        k.op("s_cbranch_vccnz", f"k2_slow_{sub}")
        lab = f"k2_ret_{sub}_{site}"
        k.label(lab)
        slow_sites.setdefault(sub, []).append((site, lab))
        k.op("v_rcp_f32", V(vT + 3), V(Lac(sub, 0)))
        k.op("v_rcp_f32", V(vT + 4), V(Lac(sub, 1)))
        for qb in range(2):
            if qb: k.op("s_add_u32", S(sT0), S(sCa if sub == 0 else sCb), 131072)
            for ks in range(4):
                b = t + (qb * 4 + ks) * 8
                for half in range(2):
                    for i in range(4):
                        k.op("v_accvgpr_read_b32", V(b + 4 * half + i), A(OA + sub * 64 + ((2 * ks + half) * 2 + qb) * 4 + i))
                for i in range(0, 8, 2):
                    k.op("v_pk_mul_f32", P(b + i), P(b + i), P(vT + 3), mods="op_sel_hi:[1,0]" if qb == 0 else "op_sel:[0,1]")
                for i in range(4): k.op("v_cvt_pk_bf16_f32", V(b + i), V(b + 2 * i), V(b + 2 * i + 1))
                k.op("buffer_store_dwordx4", V(b, 4), V(vL16), S(sWS, 4), S(sT0 if qb else (sCa if sub == 0 else sCb)),
                     mods=f"offen offset:{ks*1024}" + (" sc1" if fuse3 else ""))
    k.op("v_mov_b32", V(21), S(sThr))
    k.op("v_add_u32", V(vT), 32768, V(vL16))
    for f in range(16): k.op("ds_read_b128", A(f * 4, 4), V(vT), mods=f"offset:{f*1024}")
    zi = 0
    for f in range(16):
        kb, ds = f >> 2, f & 3
        k.wait(lgkm=15 - f)
        for sub in range(2):
            for qb in range(2):
                d = V(Sreg(sub, 0) + qb * 16 + kb * 4, 4)
                mf(d, A(f * 4, 4), V(Qreg(sub, qb, ds), 4), "0" if ds == 0 else d)
                for _ in range(2):
                    k.op("v_accvgpr_write_b32", A(OA + zi), 0); zi += 1
    k.wait(vm=12)
    k.op("s_barrier")
    m0K()
    k.op("v_add_u32", V(vA), 65536, V(vL16))
    ldK(0)(); ldK(1)()
    for f in range(DA): rd(f, False)
    lab = k.newlabel("nomask0")
    k.op("s_cmp_lg_u32", S(sNa), 1); k.op("s_cbranch_scc1", lab)
    mask_block(0, 0)
    k.label(lab)
    for sub in range(2):
        for qb in range(2):
            rowmax(sub, 0, qb, vT + 2)
            n0 = Ngm(sub, qb)
            for i in range(4): k.op("v_sub_f32", V(n0 + i), 0, V(vT + 2))
            for e in range(0, 16, 2): k.op("v_pk_add_f32", P(Sreg(sub, 0) + 16 * qb + e), P(Sreg(sub, 0) + 16 * qb + e), P(n0))
    for n in range(16):
        for sub in range(2):
            soft_exp(sub, 0, n)
        for sub in range(2):
            if n % 2 == 0 and n: soft_cvt(sub, 0, n)
    stp.stamp()
    k.op("s_cmp_lt_u32", 1, S(sNa))
    k.op("s_cbranch_scc0", "k2_DL0")
    def pf_k3():
        sp = sWQ
        k.op("s_and_b32", S(sT0), "s2", 7)
        k.op("s_lshr_b32", S(sT0), S(sT0), 1)
        k.op("s_mul_i32", S(sT1), S(sT0), 43 * 32768)
        k.op("s_cmp_lt_u32", S(sT0), 3)
        k.op("s_cselect_b32", S(sp), S(86), S(96))
        k.op("s_cselect_b32", S(sp + 1), S(87), S(97))
        k.op("s_mov_b32", S(sp + 2), hex(SZ["w2"]))
        k.op("s_cselect_b32", S(sp + 2), hex(SZ["wo"]), S(sp + 2))
        k.op("s_cselect_b32", S(sT1), S(sT1), 0)
        k.op("s_and_b32", S(sp + 1), S(sp + 1), "0xffff")
        k.op("s_mov_b32", S(sp + 3), "0x20000")
        k.op("s_lshr_b32", S(sT2), "s2", 3)
        k.op("s_lshl_b32", S(sT2), S(sT2), 2)
        k.op("s_add_u32", S(sT2), S(sT2), S(sW))
        k.op("s_mul_i32", S(sT0), S(sT2), 11264)
        k.op("s_add_u32", S(sT1), S(sT1), S(sT0))
        k.op("v_lshlrev_b32", V(vT), 7, V(vL))
        k.op("buffer_load_dword", V(130), V(vT), S(sp, 4), S(sT1), mods="offen", dummy=True)
        k.op("v_and_b32", V(vT + 2), 31, V(vL))
        k.op("v_lshlrev_b32", V(vT + 2), 7, V(vT + 2))
        k.op("s_add_u32", S(sT1), S(sT1), 8192)
        k.op("buffer_load_dword", V(130), V(vT + 2), S(sp, 4), S(sT1), mods="offen", dummy=True)
        k.op("s_lshl_b32", S(sT2), S(sT2), 13)
        pf_code(k, sW1, "k3_kernel", "k3_end-k3_kernel", vT, vL, sT2, 130)
    ool = []
    def maskif(sub, par):
        lab, lab2 = k.newlabel("nomask"), k.newlabel("domask")
        k.op("s_cmp_eq_u32", S(sT), S(sNa if sub == 0 else sNb)); k.op("s_cbranch_scc1", lab2)
        k.label(lab)
        ool.append((lab2, lab, sub, par))
    for par in range(2):
        k.label(f"k2_DD{par}")
        phaseA(par, [0, 1], [0, 1])
        maskif(0, 1 - par)
        phaseB(par, [0, 1], [0, 1], tailops=nx_items())
        k.op("s_cmp_le_u32", S(sT), S(sNa))
        k.op("s_cbranch_scc0", f"k2_DL{1-par}")
        if par == 1: k.op("s_branch", "k2_DD0")
    for par in range(2):
        k.label(f"k2_DL{par}")
        phaseA(par, [1], [0, 1])
        phaseB(par, [0, 1], [1], tailops=nx_items())
        epilogue(0, par)
        k.op("s_branch", f"k2_SS{1-par}")
    for par in range(2):
        k.label(f"k2_SS{par}")
        phaseA(par, [1], [1])
        maskif(1, 1 - par)
        phaseB(par, [1], [1], tailops=nx_items())
        k.op("s_cmp_le_u32", S(sT), S(sNb))
        k.op("s_cbranch_scc0", f"k2_SL{1-par}")
        if par == 1: k.op("s_branch", "k2_SS0")
    for par in range(2):
        k.label(f"k2_SL{par}")
        if pf3: pf_k3()
        phaseA(par, [], [1])
        k.nop(2)
        phaseB(par, [1], [], bar="w01")
        if par == 0: k.op("s_branch", "k2_fin")
    k.label("k2_fin")
    stp.stamp()
    epilogue(1, 0)
    if stamps:
        k.wait(vm=0, lgkm=0)
        stp.stamp()
        stp.flush(sWS, sW, 13)
    if fuse3:
        k.op("s_lshl_b32", S(sT0), S(sP), 8)
        k.op("s_lshl_b32", S(sT1), S(sH), 2)
        k.op("s_add_u32", S(sT0), S(sT0), S(sT1))
        k.op("s_add_u32", S(96), S(sT0), FLAG2_OFF)
        k.wait(lgkm=0)
        k.raw("  s_branch k3_kernel")
    k.op("s_endpgm")
    for (lab2, lab, sub, par) in ool:
        k.label(lab2)
        k.nop(8)
        mask_block(sub, par)
        k.op("s_branch", lab)
    sU, sUo = 60, 61
    for sub, sites in sorted(slow_sites.items()):
        s0 = Sreg(sub, 0)
        m = [Ngm(sub, 0), Ngm(sub, 1)]
        k.label(f"k2_slow_{sub}")
        k.nop(8)
        for i in range(64): k.op("v_accvgpr_write_b32", A(OA + sub * 64 + i), 0)
        for qb in range(2):
            k.op("v_mov_b32", V(m[qb]), f32(-1e30))
            for i in range(4): k.op("v_mov_b32", V(Lac(sub, qb) + i), 0)
        k.op("s_mov_b32", S(sU), 1)
        k.op("s_mov_b32", S(sUo), 0)
        loop = f"k2_slowloop_{sub}"
        k.label(loop)
        for c in range(4):
            k.op("s_add_u32", S(sLd), S(sUo), c * 4096)
            for i in range(4): k.op("buffer_load_dwordx4", A((c * 4 + i) * 4, 4), V(vL16), S(sK, 4), S(sLd), mods=f"offen offset:{i*1024}" + SC)
        k.wait(vm=0)
        for f in range(16):
            kb, ds = f >> 2, f & 3
            for qb in range(2):
                d = V(s0 + qb * 16 + kb * 4, 4)
                mf(d, A(f * 4, 4), V(Qreg(sub, qb, ds), 4), "0" if ds == 0 else d)
        for c in range(4):
            k.op("s_add_u32", S(sLd), S(sUo), c * 4096 + 16384)
            for i in range(4): k.op("buffer_load_dwordx4", A((c * 4 + i) * 4, 4), V(vL16), S(sV, 4), S(sLd), mods=f"offen offset:{i*1024}" + SC)
        lab = k.newlabel("snomask")
        k.op("s_cmp_lg_u32", S(sU), S(sNa if sub == 0 else sNb)); k.op("s_cbranch_scc1", lab)
        mask_block(sub, 0)
        k.label(lab)
        for qb in range(2):
            al = m[qb] + 1
            rowmax(sub, 0, qb, vT + 3)
            k.op("v_max_f32", V(vT + 3), V(vT + 3), V(m[qb]))
            k.op("v_sub_f32", V(al), V(m[qb]), V(vT + 3))
            k.op("v_mov_b32", V(m[qb]), V(vT + 3))
            k.op("v_exp_f32", V(al), V(al))
            for e in range(16): k.op("v_sub_f32", V(s0 + 16 * qb + e), V(s0 + 16 * qb + e), V(m[qb]))
            for i in range(4): k.op("v_mul_f32", V(Lac(sub, qb) + i), V(Lac(sub, qb) + i), V(al))
            for db in range(8):
                for i in range(4):
                    ar = OA + sub * 64 + (db * 2 + qb) * 4 + i
                    k.op("v_accvgpr_read_b32", V(vT + (i & 1)), A(ar))
                    k.op("v_mul_f32", V(vT + (i & 1)), V(vT + (i & 1)), V(al))
                    k.op("v_accvgpr_write_b32", A(ar), V(vT + (i & 1)))
        for n in range(33):
            if n < 32: soft_exp(sub, 0, n)
            else: k.nop(1)
            if n % 2 == 0 and n: soft_cvt(sub, 0, n)
        k.wait(vm=0)
        k.nop(1)
        for f in range(16):
            k32, db = f >> 3, f & 7
            for qb in range(2):
                d = A(OA + sub * 64 + (db * 2 + qb) * 4, 4)
                mf(d, A(f * 4, 4), V(s0 + qb * 16 + k32 * 8, 4), d)
            if f % 4 == 3:
                qb = (f >> 2) & 1
                d = V(Lac(sub, qb), 4)
                mf(d, V(ON1, 4), V(s0 + qb * 16 + k32 * 8, 4), d)
        k.op("s_add_u32", S(sUo), S(sUo), 16384)
        k.op("s_add_u32", S(sU), S(sU), 1)
        k.nop(8)
        k.op("s_cmp_le_u32", S(sU), S(sNa if sub == 0 else sNb))
        k.op("s_cbranch_scc1", loop)
        for (site, lab) in sites[:-1]:
            k.op("s_cmp_eq_u32", S(sRet), site); k.op("s_cbranch_scc1", lab)
        k.op("s_branch", sites[-1][1])
    k.label("k2_end")
    k.op("s_endpgm")
    return k

if __name__ == "__main__":
    k = build_k2()
    for e in k.check_hazards(): print(e)
    for e in k.check_waits(): print(e)
    print(k.maxregs(), len(k.ins))
```

```python
from common import *
from k1_v1 import layernorm

def build_k1(store_mods="", stamps=False, prefetch=True, twice=False, noln=False, pf2=True, pf2at=13, D=6, LN0=2, nostore=False, skew=True, pfself=True, fuse=False, fldelay=3, early=True):
    k = Kern("k1_kernel")
    vq, lq = Q(k, "vmcnt", 63), Q(k, "lgkmcnt", 15)
    stp = Stamps(k, stamps, 60, 0, lq, maxn=10)
    sWS, sC, sWm, sP, sX = 8, 12, 16, 20, 24
    sT0, sT1, sT2, sKV, sW, sH, sRq = 28, 29, 30, 31, 32, 33, 35
    sSo, sSo2, sAo, sSt, sW8k, sR, sW4k = 36, 37, 42, 43, 44, 45, 48
    vL, vL16 = 1, 2
    TA = 16
    VA = 28
    VW = 36
    AAr = 40
    AF = 52
    ACC = 128
    LNR = 192
    X0, X1 = 224, 228
    VZ = 232
    g, l15, r_, cc, g1, t0, t1, p8 = 4, 5, 6, 7, 8, 9, 10, 11
    k.op("s_cmp_ge_u32", "s2", 256)
    k.op("s_cbranch_scc1", "k1_end")
    if pfself:
        pf_self(k, "k1_end", vt=14); vq.issue()
    k.op("s_load_dwordx4", S(84, 4), S(0, 2), KA["x"])
    k.op("s_load_dwordx4", S(88, 4), S(0, 2), KA["wuk"])
    k.op("s_load_dwordx4", S(92, 4), S(0, 2), KA["dbg"])
    k.op("s_load_dwordx2", S(96, 2), S(0, 2), KA["wq"])
    k.op("s_load_dwordx2", S(98, 2), S(0, 2), KA["w1"])
    k.op("v_and_b32", V(vL), 63, "v0")
    k.op("v_lshrrev_b32", V(t0), 6, "v0")
    k.op("s_and_b32", S(sT0), "s2", 7)
    k.op("v_readfirstlane_b32", S(sW), V(t0))
    k.op("s_lshr_b32", S(sT1), "s2", 3)
    k.op("s_and_b32", S(sT2), S(sT1), 3)
    k.op("s_lshl_b32", S(sH), S(sT0), 2)
    k.op("s_add_u32", S(sH), S(sH), S(sT2))
    k.op("s_bfe_u32", S(sKV), S(sT1), "0x10002")
    k.op("s_lshr_b32", S(sRq), S(sT1), 3)
    k.op("v_lshlrev_b32", V(vL16), 4, V(vL))
    k.op("v_lshrrev_b32", V(g), 4, V(vL))
    k.op("v_and_b32", V(l15), 15, V(vL))
    k.op("v_bfe_u32", V(r_), V(vL), 2, 2)
    k.op("v_and_b32", V(cc), 3, V(vL))
    k.op("v_and_b32", V(g1), 1, V(g))
    k.op("v_and_b32", V(p8), 7, V(vL))
    k.op("s_lshl_b32", S(sW4k), S(sW), 12)
    k.op("s_lshl_b32", S(sW8k), S(sW), 13)
    k.op("v_lshlrev_b32", V(t0), 1, V(g))
    k.op("v_xor_b32", V(t0), V(t0), V(l15))
    k.op("v_lshlrev_b32", V(t0), 4, V(t0))
    k.op("v_lshl_add_u32", V(t0), V(g), 13, V(t0))
    k.op("s_lshl_b32", S(sT0), S(sW), 17)
    k.op("s_lshl_b32", S(sT1), S(sH), 8)
    k.op("s_add_u32", S(sT0), S(sT0), S(sT1))
    k.op("v_add_u32", V(VW), S(sT0), V(t0))
    k.op("v_add_u32", V(VW + 1), 32768 - 1024, V(VW))
    k.op("v_xor_b32", V(VW + 2), 128, V(VW))
    k.op("v_add_u32", V(VW + 2), 2 * (32768 - 1024), V(VW + 2))
    k.op("v_add_u32", V(VW + 3), 32768 - 1024, V(VW + 2))
    k.op("s_and_b32", S(sT0), S(sW), 1)
    k.op("s_lshl_b32", S(sT0), S(sT0), 7)
    k.op("v_xor_b32", V(t0), S(sT0), V(vL16))
    for i in range(8): k.op("v_xor_b32", V(VA + i), i * 16, V(t0))
    k.op("s_lshl_b32", S(sAo), S(sRq), 19)
    k.op("s_lshr_b32", S(sT1), S(sW), 1)
    k.op("s_lshl_b32", S(sT1), S(sT1), 15)
    k.op("s_add_u32", S(sAo), S(sAo), S(sT1))
    k.op("s_lshl_b32", S(sT0), S(sT0), 6)
    k.op("s_add_u32", S(sAo), S(sAo), S(sT0))
    k.wait(lgkm=0)
    stp.stamp()
    load_srd(k, sC, "ckv", 86)
    k.op("s_cmp_eq_u32", S(sKV), 0)
    k.op("s_cselect_b32", S(sWm), S(88), S(90))
    k.op("s_cselect_b32", S(sWm + 1), S(89), S(91))
    k.op("s_and_b32", S(sWm + 1), S(sWm + 1), "0xffff")
    k.op("s_mov_b32", S(sWm + 2), hex(4 << 20))
    k.op("s_mov_b32", S(sWm + 3), "0x20000")
    load_srd(k, sX, "x", 84)
    CHA = 84
    def cha(i):
        if skew: skew_stage(k, CHA + i, sT2, i, 8, sT1)
        else: k.op("s_mov_b32", S(CHA + i), i)
        k.op("s_lshl_b32", S(CHA + i), S(CHA + i), 16)
        k.op("s_add_u32", S(CHA + i), S(CHA + i), S(sAo))
    cha(0)
    def aslot(st): return [1, 2, 3, 4, 0][(st - 2) % 5] * 32768
    def wslot(s): return [3, 1, 2][(s % 6) // 2] * 32768 + (s & 1) * 16384
    def dma_w_items(s):
        def setup():
            k.op("s_add_u32", "m0", S(sW4k), wslot(s))
            k.op("s_mov_b32", S(sSo), s * 524288)
        def ld(i):
            def f():
                k.op("buffer_load_dwordx4", V(VW + i), S(sWm, 4), S(sSo), mods=f"offen offset:{i*1024} lds"); vq.issue(("W", s))
            return f
        return [setup] + [ld(i) for i in range(4)]
    def dma_a_items(st):
        it = []
        for u in range(2):
            def setup(u=u):
                k.op("s_add_u32", "m0", S(sW8k), aslot(st) + u * 4096)
                k.op("s_add_u32", S(sSo), S(CHA + (st >> 1)), (st & 1) * 16384 + u * 4096)
            it.append(setup)
            for i in range(4):
                def f(i=i, u=u):
                    k.op("buffer_load_dwordx4", V(VA + 4 * u + i), S(sC, 4), S(sSo), mods=f"offen offset:{i*1024} lds"); vq.issue(("A", st))
                it.append(f)
        return it
    for f in dma_w_items(0) + dma_a_items(0) + dma_w_items(1) + dma_a_items(1): f()
    stp.stamp()
    for i in range(1, 8): cha(i)
    load_srd(k, sWS, "ws", 94)
    k.op("v_lshl_or_b32", V(t1), V(g1), 2, V(r_))
    k.op("s_and_b32", S(sT0), S(sW), 1)
    k.op("s_lshl_b32", S(sT0), S(sT0), 2)
    k.op("v_xor_b32", V(t1), S(sT0), V(t1))
    k.op("v_lshl_add_u32", V(t0), V(g), 3, V(r_))
    k.op("v_lshlrev_b32", V(t0), 8, V(t0))
    k.op("v_lshl_add_u32", V(t0), V(cc), 3, V(t0))
    for nb in range(4):
        k.op("v_xor_b32", V(12), nb, V(t1))
        k.op("v_lshl_add_u32", V(TA + nb), V(12), 5, V(t0))
        k.op("v_add_u32", V(TA + 4 + nb), 65536, V(TA + nb))
    k.op("s_lshr_b32", S(sT0), S(sW), 1)
    k.op("s_lshl_b32", S(sT0), S(sT0), 14)
    k.op("v_lshlrev_b32", V(t0), 10, V(l15))
    k.op("v_add_u32", V(t0), S(sT0), V(t0))
    k.op("v_xor_b32", V(t1), V(g), V(l15))
    for q in range(4):
        k.op("v_xor_b32", V(12), 4 * q, V(t1))
        k.op("v_lshl_add_u32", V(AAr + q), V(12), 4, V(t0))
        k.op("v_add_u32", V(AAr + 4 + q), 65536, V(AAr + q))
        k.op("v_add_u32", V(AAr + 8 + q), 131072, V(AAr + q))
    k.op("s_lshl_b32", S(sSt), S(sH), 19)
    k.op("s_lshl_b32", S(sT1), S(sRq), 17)
    k.op("s_add_u32", S(sSt), S(sSt), S(sT1))
    k.op("s_lshr_b32", S(sT1), S(sW), 1)
    k.op("s_lshl_b32", S(sT1), S(sT1), 13)
    k.op("s_add_u32", S(sSt), S(sSt), S(sT1))
    k.op("s_and_b32", S(sT1), S(sW), 1)
    k.op("s_lshl_b32", S(sT2), S(sT1), 12)
    k.op("s_add_u32", S(sT2), S(sT2), VF_OFF)
    k.op("s_lshl_b32", S(sT1), S(sT1), 11)
    k.op("s_add_u32", S(sT1), S(sT1), KF_OFF)
    k.op("s_cmp_eq_u32", S(sKV), 0)
    k.op("s_cselect_b32", S(sT1), S(sT1), S(sT2))
    k.op("s_add_u32", S(sSt), S(sSt), S(sT1))
    k.op("s_lshr_b32", S(sT1), S(sAo), 2)
    k.op("s_sub_u32", S(sSt), S(sSt), S(sT1))
    k.op("s_lshl_b32", S(sR), "s2", 3)
    k.op("s_lshl_b32", S(sT1), S(sW), 1)
    k.op("s_add_u32", S(sR), S(sR), S(sT1))
    k.op("s_lshr_b32", S(sR + 1), S(sR), 4)
    k.op("s_lshl_b32", S(sR + 1), S(sR + 1), 14)
    k.op("s_and_b32", S(sR + 2), S(sR), 15)
    k.op("s_lshl_b32", S(sR + 2), S(sR + 2), 4)
    k.op("s_add_u32", S(sR + 1), S(sR + 1), S(sR + 2))
    k.op("s_lshl_b32", S(sR + 2), S(sR), 3)
    k.op("s_add_u32", S(sR + 2), S(sR + 2), YF_OFF)
    k.op("s_lshl_b32", S(sR), S(sR), 10)
    vLd, vLz = VZ, VZ + 1
    k.op("v_mov_b32", V(vLz), 0)
    k.op("v_lshrrev_b32", V(vLd), 2, V(vL))
    k.op("v_lshlrev_b32", V(vLd), 10, V(vLd))
    k.op("v_lshl_add_u32", V(vLd), V(cc), 8, V(vLd))
    k.op("buffer_load_dwordx4", V(X0, 4), V(vL16), S(sX, 4), S(sR), mods="offen"); vq.issue("ln")
    k.op("buffer_load_dwordx4", V(X1, 4), V(vL16), S(sX, 4), S(sR), mods="offen offset:1024"); vq.issue("ln")
    sFL, sFA, sF2, sF3, sDb = 53, 54, 55, 56, 4
    if not fuse:
        k.op("s_lshl_b32", S(sT1), "s2", 8)
        k.op("s_add_u32", S(sT1), S(sT1), FLAG_OFF)
        for i in range(4): k.op("v_mov_b32", V(VZ + 4 + i), 0)
        k.op("buffer_store_dwordx4", V(VZ + 4, 4), V(vLz), S(sWS, 4), S(sT1), mods="offen" + (" sc1" if fuse else "")); vq.issue()
        k.op("s_lshl_b32", S(sT1), "s2", 4)
        k.op("s_add_u32", S(sT1), S(sT1), FLAG2_OFF)
        k.op("buffer_store_dwordx4", V(VZ + 4, 4), V(vLz), S(sWS, 4), S(sT1), mods="offen" + (" sc1" if fuse else "")); vq.issue()
    else:
        k.op("s_lshl_b32", S(sFL), "s2", 2)
        k.op("s_add_u32", S(sFL), S(sFL), FL_OFF)
        k.op("s_lshl_b32", S(sFA), S(sH), 7)
        k.op("s_lshl_b32", S(sT1), S(sKV), 4)
        k.op("s_add_u32", S(sFA), S(sFA), S(sT1))
        k.op("s_lshl_b32", S(sT1), S(sRq), 2)
        k.op("s_add_u32", S(sFA), S(sFA), S(sT1))
        k.op("s_add_u32", S(sFA), S(sFA), FA_OFF)
        k.op("s_lshr_b32", S(sT1), "s2", 5)
        k.op("s_lshl_b32", S(sF2), S(sT1), 8)
        k.op("s_lshl_b32", S(sT1), S(sH), 2)
        k.op("s_add_u32", S(sF2), S(sF2), S(sT1))
        k.op("s_add_u32", S(sF2), S(sF2), FLAG2_OFF)
        k.op("s_and_b32", S(sT1), "s2", 1)
        k.op("s_lshl_b32", S(sF3), S(sT1), 13)
        k.op("s_bfe_u32", S(sT1), "s2", "0x30003")
        k.op("s_lshl_b32", S(sT1), S(sT1), 10)
        k.op("s_add_u32", S(sF3), S(sF3), S(sT1))
        k.op("s_lshr_b32", S(sT1), "s2", 6)
        k.op("s_lshl_b32", S(sT1), S(sT1), 8)
        k.op("s_add_u32", S(sF3), S(sF3), S(sT1))
        k.op("s_and_b32", S(sT1), "s2", 6)
        k.op("s_lshl_b32", S(sT1), S(sT1), 1)
        k.op("s_add_u32", S(sF3), S(sF3), S(sT1))
        k.op("s_add_u32", S(sF3), S(sF3), FLAG_OFF)
        one_lane_store(k, sW, sWS, [sFL, sFA, sF2, sF3], 0, VZ + 4)
        k.op("s_mov_b32", S(sDb), S(92))
        k.op("s_and_b32", S(sDb + 1), S(93), "0xffff")
        k.op("s_mov_b32", S(sDb + 2), 256)
        k.op("s_mov_b32", S(sDb + 3), "0x20000")

    def pf_k2():
        k.op("s_lshr_b32", S(sT1), "s2", 3)
        k.op("s_lshl_b32", S(sT1), S(sT1), 2)
        k.op("s_add_u32", S(sT1), S(sT1), S(sW))
        k.op("s_and_b32", S(sT0), "s2", 7)
        load_srd(k, sP, "wq", 96)
        k.op("v_bfe_u32", V(12), V(vL), 3, 2)
        k.op("v_lshlrev_b32", V(13), 13, V(12))
        k.op("v_lshl_add_u32", V(13), V(p8), 7, V(13))
        k.op("s_lshl_b32", S(57), S(sT1), 15)
        k.op("s_lshl_b32", S(sT2), S(sT0), 10)
        k.op("s_add_u32", S(57), S(57), S(sT2))
        k.op("buffer_load_dword", V(15), V(13), S(sP, 4), S(57), mods="offen", dummy=True); vq.issue()
        load_srd(k, sWm, "w1", 98)
        k.op("v_mul_u32_u24", V(13), 2752, V(12))
        k.op("v_lshl_add_u32", V(13), V(p8), 6, V(13))
        k.op("s_mul_i32", S(57), S(sT1), 4 * 2752)
        k.op("s_mul_i32", S(sT2), S(sT0), 384)
        k.op("s_add_u32", S(57), S(57), S(sT2))
        k.op("buffer_load_dword", V(15), V(13), S(sWm, 4), S(57), mods="offen", dummy=True); vq.issue()
        k.op("s_lshl_b32", S(57), S(sT1), 13)
        pf_code(k, sX, "k2_kernel", "k2_slow_0-k2_kernel", 13, vL, 57, 15); vq.issue()

    k.op("s_cmp_lg_u32", S(sKV), 0)
    k.op("s_cbranch_scc1", "k1_V")
    import copy
    vq0, lq0, n0 = copy.deepcopy((vq.q, vq.ever)), copy.deepcopy((lq.q, lq.ever)), stp.n
    for kv in range(2):
        if kv:
            k.label("k1_V")
            vq.q, vq.ever = copy.deepcopy(vq0); lq.q, lq.ever = copy.deepcopy(lq0); stp.n = n0
        onst = lambda i: vq.issue() if i.kind == "vstore" else None
        q1, q2, lnq = FillQ(k), FillQ(k, on_emit=onst), FillQ(k, on_emit=lambda i: vq.issue("lnst") if i.kind == "vstore" else None)
        flst = {"fl": False}
        if not noln:
            lnq.add(lambda: vq.need("ln"))
            for r, X in enumerate((X0, X1)):
                ln = Kern("ln")
                layernorm(ln, X, LNR + 4, LNR + 8, LNR + 16)
                layernorm(ln, LNR + 4, LNR + 24, LNR + 8, LNR + 16, stats_only=True)
                ln.op("buffer_store_dwordx4", V(LNR + 4, 4), V(vLd), S(sWS, 4), S(sR + 1), mods=f"offen offset:{16*r}" + (" sc1" if fuse else ""))
                ln.op("buffer_store_dwordx2", V(LNR + 24, 2), V(vLz), S(sWS, 4), S(sR + 2), mods=f"offen offset:{8*r}" + (" sc1" if fuse else ""))
                ln.nop(2)
                lnq.add_kern(ln)
        early2 = fuse and early
        K2VW, K2VW1, sXa, sXb, sLd = 108, 112, 51, 52, 98
        def k2_setup():
            e = Kern("e")
            load_srd(e, 12, "wq", 96); load_srd(e, 16, "w1", 98)
            for i in range(4): e.op("v_mov_b32", V(K2VW + i), V(VW + i))
            e.op("v_lshlrev_b32", V(84), 1, V(g1))
            e.op("v_xor_b32", V(84), V(84), V(p8))
            e.op("v_lshlrev_b32", V(84), 4, V(84))
            e.op("v_lshrrev_b32", V(85), 3, V(vL))
            e.op("v_mul_u32_u24", V(85), 2752, V(85))
            e.op("s_mul_i32", S(38), S(sW), 32 * 2752)
            e.op("s_mul_i32", S(39), S(sH), 96)
            e.op("s_add_u32", S(38), S(38), S(39))
            e.op("v_add_u32", V(85), S(38), V(85))
            e.op("v_add_u32", V(K2VW1), V(85), V(84))
            e.op("v_xor_b32", V(84), 64, V(84))
            e.op("v_add_u32", V(K2VW1 + 1), V(85), V(84))
            e.op("v_add_u32", V(K2VW1 + 1), 8 * 2752 - 1024, V(K2VW1 + 1))
            e.op("v_add_u32", V(K2VW1 + 2), 2 * (8 * 2752 - 1024), V(K2VW1))
            e.op("v_add_u32", V(K2VW1 + 3), 2 * (8 * 2752 - 1024), V(K2VW1 + 1))
            e.op("s_lshr_b32", S(38), "s2", 5)
            e.op("s_lshl_b32", S(38), S(38), 17)
            e.op("s_lshl_b32", S(39), S(sW), 15)
            e.op("s_add_u32", S(sLd), S(38), S(39))
            e.op("s_add_u32", S(sLd + 1), S(sLd), 16384)
            e.op("s_sub_u32", S(sLd + 2), 1920 * 1024, S(38))
            e.op("s_add_u32", S(sLd + 2), S(sLd + 2), S(39))
            e.op("s_add_u32", S(sLd + 3), S(sLd + 2), 16384)
            return e
        def k2_pages():
            it = []
            for pg, (srd, vb, so) in enumerate([(16, K2VW1, 0), (12, K2VW, 0), (12, K2VW, 524288)]):
                def setup(pg=pg, so=so):
                    k.op("s_add_u32", "m0", S(sW4k), pg * 16384)
                    k.op("s_mov_b32", S(41), so)
                it.append(setup)
                for i in range(4):
                    def f(i=i, srd=srd, vb=vb):
                        k.op("buffer_load_dwordx4", V(vb + i), S(srd, 4), S(41), mods=f"offen offset:{i*1024} lds"); vq.issue()
                    it.append(f)
            return it
        def k2_xn(ks):
            it = []
            for rb in range(4):
                def f(rb=rb):
                    k.op("buffer_load_dwordx4", A((ks * 4 + rb) * 4, 4), V(vL16), S(sWS, 4), S(sLd + rb), mods=f"offen offset:{ks*1024} sc1"); vq.issue()
                it.append(f)
            return it
        def acc(st, nb): return ACC + 16 * (st % 4) + 4 * nb
        def pack(e, a, b):
            e.op("v_cvt_pk_bf16_f32", V(a), V(a), V(a + 1))
            e.op("v_cvt_pk_bf16_f32", V(a + 1), V(a + 2), V(a + 3))
            e.op("v_cvt_pk_bf16_f32", V(a + 2), V(b), V(b + 1))
            e.op("v_cvt_pk_bf16_f32", V(a + 3), V(b + 2), V(b + 3))
        def epi(st):
            e = Kern("e")
            if kv == 0:
                e.op("s_lshr_b32", S(sSo2), S(CHA + (st >> 1)), 2)
                e.op("s_add_u32", S(sSo2), S(sSo2), S(sSt))
                if st & 1: e.op("s_add_u32", S(sSo2), S(sSo2), 4096)
                for p in range(2):
                    pack(e, acc(st, 2 * p), acc(st, 2 * p + 1))
                    e.op("buffer_store_dwordx4", V(acc(st, 2 * p), 4), V(vL16), S(sWS, 4), S(sSo2), mods=f"offen offset:{p*1024}{store_mods}")
            elif st & 1:
                e.op("s_lshr_b32", S(sSo2), S(CHA + (st >> 1)), 2)
                e.op("s_add_u32", S(sSo2), S(sSo2), S(sSt))
                for nb in range(4):
                    pack(e, acc(st - 1, nb), acc(st, nb))
                    e.op("buffer_store_dwordx4", V(acc(st - 1, nb), 4), V(vL16), S(sWS, 4), S(sSo2), mods=f"offen offset:{nb*1024}{store_mods}")
            if nostore: e.ins = [i for i in e.ins if i.kind != "vstore"]
            return e
        AF2 = 192
        def afr(n, alt=False): return (AF2 if alt else AF) + (n % 8) * 4
        def rd_act(n, alt=False):
            st, ks = n >> 4, n & 15
            if ks == 0 and st > 1:
                if st == 2: assert len(lq.q) == 0
                vq.need(("A", st), cnt=[8])
                if fuse and len(lnq) == 0: flst["n"] = flst.get("n", 0) + 1
                dofl = fuse and flst.get("n", 0) == fldelay and not flst["fl"]
                if dofl: vq.need("lnst", cnt=[4])
                k.op("s_barrier")
                if dofl:
                    one_lane_store(k, sW, sWS, [sFL], 1, VZ + 4); flst["fl"] = True
                if fuse and st == 2:
                    lab = k.newlabel("noz")
                    k.op("v_mov_b32", V(VZ + 5), 1)
                    k.op("s_cmp_lg_u32", S(sW), 0); k.op("s_cbranch_scc1", lab)
                    k.op("s_mov_b64", "exec", 1)
                    k.op("buffer_store_byte", V(VZ + 5), V(vLz), S(sDb, 4), "s2", mods="offen sc1")
                    k.op("s_mov_b64", "exec", -1)
                    k.label(lab)
                if fuse and st == 10:
                    k.op("v_lshlrev_b32", V(243), 2, V(vL))
                    k.op("buffer_load_dword", V(242), V(243), S(sDb, 4), 0, mods="offen sc1"); vq.issue("pz")
                if fuse and st == 12:
                    vq.need("pz")
                    spin_until(k, f"k1_sz{kv}", lambda: k.op("buffer_load_dword", V(242), V(243), S(sDb, 4), 0, mods="offen sc1"),
                               lambda: k.op("v_cmp_ne_u32", "vcc", "0x01010101", V(242)), sT1)
                if fuse and st == 14:
                    assert flst["fl"]
                    k.op("s_lshr_b32", S(sT1), "s2", 5)
                    k.op("s_lshl_b32", S(sT1), S(sT1), 6)
                    k.op("s_sub_u32", S(sT2), 960, S(sT1))
                    k.op("v_mov_b32", V(240), S(sT1))
                    k.op("v_mov_b32", V(241), S(sT2))
                    k.op("v_cmp_eq_u32", "vcc", 0, V(g1))
                    k.op("s_mov_b32", S(sFL), FL_OFF)
                    k.nop(1)
                    k.op("v_cndmask_b32", V(240), V(241), V(240), "vcc")
                    k.op("v_lshl_add_u32", V(240), V(l15), 2, V(240))
                    k.op("buffer_load_dword", V(241), V(240), S(sWS, 4), S(sFL), mods="offen sc1"); vq.issue("pp")
                if fuse and st == 15:
                    vq.need("pp")
                    spin_until(k, f"k1_sp{kv}", lambda: k.op("buffer_load_dword", V(241), V(240), S(sWS, 4), S(sFL), mods="offen sc1"),
                               lambda: k.op("v_cmp_ne_u32", "vcc", 1, V(241)), sT1)
                q1.flush()
                if early2 and st == 14: q1.add_kern(k2_setup())
                if early2 and st == 15:
                    for f in k2_pages(): q1.add(f)
                if st == 2:
                    for f in dma_a_items(4): q1.add(f)
                if st >= 3 and st + 2 < 16:
                    pass
                if st >= 2 and st + 3 < 16:
                    for f in dma_a_items(st + 3): q1.add(f)
            off = aslot(st)
            wn = off // 65536
            k.op("ds_read_b128", V(afr(n, alt), 4), V(AAr + 4 * wn + (ks & 3)), mods=f"offset:{off - wn*65536 + (ks>>2)*256}")
            lq.issue(("a", n))
        def mf(st, ks, nb, n, alt=False):
            d = V(acc(st, nb), 4); wf = A((ks * 4 + nb) * 4, 4); af = V(afr(n, alt), 4)
            if kv == 0: k.op("v_mfma_f32_16x16x32_bf16", d, wf, af, "0" if ks == 0 else d)
            else: k.op("v_mfma_f32_16x16x32_bf16", d, af, wf, "0" if ks == 0 else d)
        def wread_items(s):
            it = []
            for ks in (2 * s, 2 * s + 1):
                for nb in range(4):
                    for i in range(2):
                        def f(ks=ks, nb=nb, i=i):
                            off = wslot(s) + (ks & 1) * 8192 + i * 1024
                            wn = off // 65536
                            k.op("ds_read_b64_tr_b16", A((ks * 4 + nb) * 4 + 2 * i, 2), V(TA + 4 * wn + nb), mods=f"offset:{off - wn*65536}")
                            lq.issue(("w", ks))
                        it.append(f)
                it.append(lambda ks=ks: rd_act(ks))
                it.append(lambda ks=ks: rd_act(16 + ks, True))
            return it
        for f in dma_w_items(2) + dma_w_items(3): f()
        qr = FillQ(k)
        for s in range(9):
            if s < 8:
                vq.need(("W", s), ("A", 0), ("A", 1), cnt=[4, 8, 8])
                k.op("s_barrier")
                if s == 0: stp.stamp()
                for f in wread_items(s): qr.add(f)
                if s + 4 < 8:
                    for f in dma_w_items(s + 4): q1.add(f)
                if s == 5:
                    for f in dma_a_items(2): q1.add(f)
                if s == 7:
                    for f in dma_a_items(3): q1.add(f)
            if s == 0:
                qr.flush(); q1.flush(); continue
            for ks in (2 * s - 2, 2 * s - 1):
                lq.need(("w", ks), ("a", ks), ("a", 16 + ks), cnt=[8, 1, 1])
                if ks == 15:
                    for n in range(32, 32 + D): qr.add(lambda n=n: rd_act(n))
                for alt in range(2):
                    for nb in range(4):
                        mf(alt, ks, nb, 16 * alt + ks, bool(alt))
                        qr.emit(2)
                        if len(qr) == 0: q1.emit(1)
            qr.flush()
            if s < 8: q1.flush()
        stp.stamp()
        nxt = 32 + D
        for n in range(32, 256):
            st, ks = n >> 4, n & 15
            if n in (64, 128, 192): stp.stamp()
            if n == 34: q2.add_kern(epi(0))
            if ks == 2: q2.add_kern(epi(st - 1))
            if pf2 and n == pf2at * 16 + 8: pf_k2()
            if early2 and st == 15 and 2 <= ks < 6:
                for f in k2_xn(ks - 2): q1.add(f)
            if n % 2 == 0: lq.need(("a", n), ("a", n + 1), cnt=[1, 1])
            for nb in range(4):
                mf(st, ks, nb, n)
                cap = 1
                if nb == 0 and nxt < 256:
                    rd_act(nxt); nxt += 1; cap = 0
                cap -= q1.emit(cap)
                cap -= q2.emit(cap)
                if st >= LN0: cap -= lnq.emit(cap + (1 if fuse else 0))
        stp.stamp()
        q1.flush(); q2.flush(); lnq.flush()
        k.nop(8)
        q2.add_kern(epi(15)); q2.flush()
        if pf2 and pf2at >= 16: pf_k2()
        if stamps:
            if not fuse: k.wait(vm=0)
            stp.stamp()
            stp.flush(sWS, sW, 4)
        if fuse:
            k.wait(lgkm=0)
            k.op("s_barrier")
            k.op("s_mov_b32", "s3", S(sFA))
            k.raw("  s_branch k2_kernel")
        k.op("s_endpgm")
    k.label("k1_end")
    k.op("s_endpgm")
    return k

if __name__ == "__main__":
    k = build_k1()
    for e in k.check_hazards(): print(e)
    for e in k.check_waits(): print(e)
    print(k.maxregs(), len(k.ins))
```

```python
from common import *
import struct
def f32(x): return hex(struct.unpack("<I", struct.pack("<f", x))[0])
LOG2E = 1.4426950408889634
QSCALE = LOG2E / (128 ** 0.5)
STAT_OFF = YF_OFF

def build_k2(stamps=False, D=6, DA=8, thr=2.0 ** 60, pf3=True, fuse3=False, xnobar=False, xnodma=False, oolmask=True, pfself=True, fused1=False, early1=False, pace=True):
    k = Kern("k2_kernel")
    SC = " sc1" if fused1 else ""
    vq, lq = Q(k, "vmcnt", 63), Q(k, "lgkmcnt", 15)
    stp = Stamps(k, stamps, 62, 1, lq, maxn=8)
    sWS, sWQ, sW1, sK, sV, sB1 = 8, 12, 16, 20, 24, 28
    sW, sH, sP, sNa, sNb, sT = 32, 33, 34, 35, 36, 37
    sT0, sT1, sT2, sSo = 38, 39, 40, 41
    sP2, sP1, sRd, sNx = 42, 43, 44, 45
    sTK, sTV, sW4k, sThr, sRet = 46, 47, 48, 49, 50
    sXa, sXb = 51, 52
    sCa, sCb = 53, 54
    sM = 56
    sLd = 98
    vL, vL16, vA, vD, vZ, vNinf = 1, 2, 3, 4, 5, 6
    vPs = [7, 8]; vLs = [9, 10]; vMx = [11, 12]
    vT = 13
    vCo = 20
    QR, NEGM, SR = 32, 96, 128
    def Sreg(sub, par): return SR + sub * 64 + par * 32
    OA, FR = 64, 192
    TA, TB, VW, VW1 = 96, 104, 108, 112
    vXo = 21
    MACC = 32
    ONES = 116
    XR = 0

    k.op("s_cmp_ge_u32", "s2", 256)
    k.op("s_cbranch_scc1", "k2_end")
    if pfself:
        pf_self(k, "k2_slow_0", vt=254); vq.issue()
    k.op("s_load_dwordx2", S(84, 2), S(0, 2), KA["wq"])
    k.op("s_load_dwordx4", S(88, 4), S(0, 2), KA["w1"])
    k.op("s_load_dwordx2", S(92, 2), S(0, 2), KA["ws"])
    k.op("s_load_dwordx2", S(86, 2), S(0, 2), KA["wo"])
    k.op("s_load_dwordx2", S(96, 2), S(0, 2), KA["w2"])
    k.op("v_and_b32", V(vL), 63, "v0")
    k.op("v_lshrrev_b32", V(13), 6, "v0")
    k.op("s_and_b32", S(sT0), "s2", 7)
    k.op("v_readfirstlane_b32", S(sW), V(13))
    k.op("s_lshr_b32", S(sT1), "s2", 3)
    k.op("s_and_b32", S(sT2), S(sT1), 3)
    k.op("s_lshl_b32", S(sH), S(sT0), 2)
    k.op("s_add_u32", S(sH), S(sH), S(sT2))
    k.op("s_lshr_b32", S(sP), S(sT1), 2)
    k.op("v_lshlrev_b32", V(vL16), 4, V(vL))
    k.op("s_lshl_b32", S(sW4k), S(sW), 12)
    k.op("v_add_u32", V(vD), S(sW4k), V(vL16))
    g, l15, p8, l3, r_, cc, g1, t7 = 22, 23, 24, 25, 26, 27, 28, 29
    k.op("v_lshrrev_b32", V(g), 4, V(vL))
    k.op("v_and_b32", V(l15), 15, V(vL))
    k.op("v_and_b32", V(p8), 7, V(vL))
    k.op("v_lshrrev_b32", V(l3), 3, V(vL))
    k.op("v_bfe_u32", V(r_), V(vL), 2, 2)
    k.op("v_and_b32", V(cc), 3, V(vL))
    k.op("v_and_b32", V(g1), 1, V(g))
    k.op("v_lshlrev_b32", V(t7), 1, V(g))
    k.op("v_xor_b32", V(t7), V(t7), V(l15))
    k.op("v_lshlrev_b32", V(t7), 4, V(t7))
    k.op("v_lshl_add_u32", V(t7), V(g), 13, V(t7))
    k.op("s_lshl_b32", S(sT0), S(sW), 17)
    k.op("s_lshl_b32", S(sT1), S(sH), 8)
    k.op("s_add_u32", S(sT0), S(sT0), S(sT1))
    k.op("v_add_u32", V(VW), S(sT0), V(t7))
    k.op("v_add_u32", V(VW + 1), 32768 - 1024, V(VW))
    k.op("v_xor_b32", V(VW + 2), 128, V(VW))
    k.op("v_add_u32", V(VW + 2), 2 * (32768 - 1024), V(VW + 2))
    k.op("v_add_u32", V(VW + 3), 32768 - 1024, V(VW + 2))
    k.op("v_lshlrev_b32", V(t7), 1, V(g1))
    k.op("v_xor_b32", V(t7), V(t7), V(p8))
    k.op("v_lshlrev_b32", V(t7), 4, V(t7))
    k.op("v_mul_u32_u24", V(30), 2752, V(l3))
    k.op("s_mul_i32", S(sT0), S(sW), 32 * 2752)
    k.op("s_mul_i32", S(sT1), S(sH), 96)
    k.op("s_add_u32", S(sT0), S(sT0), S(sT1))
    k.op("v_add_u32", V(30), S(sT0), V(30))
    k.op("v_add_u32", V(VW1), V(30), V(t7))
    k.op("v_xor_b32", V(t7), 64, V(t7))
    k.op("v_add_u32", V(VW1 + 1), V(30), V(t7))
    k.op("v_add_u32", V(VW1 + 1), 8 * 2752 - 1024, V(VW1 + 1))
    k.op("v_add_u32", V(VW1 + 2), 2 * (8 * 2752 - 1024), V(VW1))
    k.op("v_add_u32", V(VW1 + 3), 2 * (8 * 2752 - 1024), V(VW1 + 1))
    k.op("s_lshl_b32", S(sT0), S(sP), 7)
    k.op("s_lshl_b32", S(sT1), S(sW), 5)
    k.op("s_add_u32", S(sXa), S(sT0), S(sT1))
    k.op("s_sub_u32", S(sXb), 1920, S(sT0))
    k.op("s_add_u32", S(sXb), S(sXb), S(sT1))
    k.op("s_lshl_b32", S(sT2), S(sH), 12)
    k.op("s_add_u32", S(sT2), S(sT2), CTX_OFF)
    k.op("s_lshl_b32", S(sCa), S(sXa), 13)
    k.op("s_add_u32", S(sCa), S(sCa), S(sT2))
    k.op("s_lshl_b32", S(sCb), S(sXb), 13)
    k.op("s_add_u32", S(sCb), S(sCb), S(sT2))
    sRa, sRb = 94, 95
    k.op("s_mov_b32", S(sRa), S(sXa)); k.op("s_mov_b32", S(sRb), S(sXb))
    sHr = 56
    for rb in range(4):
        k.op("s_lshr_b32", S(sHr + rb), S(sRa if rb < 2 else sRb), 4)
        k.op("s_add_u32", S(sHr + rb), S(sHr + rb), rb & 1)
        k.op("s_mul_i32", S(sHr + rb), S(sHr + rb), 43 * 1024)
    k.op("s_lshl_b32", S(sXa), S(sXa), 10)
    k.op("s_lshl_b32", S(sXb), S(sXb), 10)
    k.op("s_lshr_b32", S(sT1), S(sW), 1)
    k.op("s_lshl_b32", S(sT0), S(sP), 1)
    k.op("s_add_u32", S(sNa), S(sT0), S(sT1))
    k.op("s_add_u32", S(sNa), S(sNa), 1)
    k.op("s_sub_u32", S(sNb), 31, S(sT0))
    k.op("s_add_u32", S(sNb), S(sNb), S(sT1))
    k.wait(lgkm=0)
    stp.stamp()
    load_srd(k, sWQ, "wq", 84); load_srd(k, sW1, "w1", 88); load_srd(k, sWS, "ws", 92)

    pages = {}
    order = []
    for j in range(4):
        order += [("W1", j), ("WQ", 2 * j), ("WQ", 2 * j + 1)]
    for i, p in enumerate(order): pages[p] = i
    for t in range(6): pages[("K", t)] = 12 + 2 * t; pages[("V", t)] = 15 + 2 * t
    def slot(p): return (pages[p] % 10) * 16384
    def dma_items(p):
        kind, j = p
        def setup():
            k.op("s_add_u32", "m0", S(sW4k), slot(p))
            k.op("s_mov_b32", S(sSo), {"W1": j * 128 * 2752, "WQ": j * 524288, "K": j * 16384, "V": (j + 1) * 16384}[kind])
        def ld(i):
            def f():
                if kind == "WQ": k.op("buffer_load_dwordx4", V(VW + i), S(sWQ, 4), S(sSo), mods=f"offen offset:{i*1024} lds")
                elif kind == "W1": k.op("buffer_load_dwordx4", V(VW1 + i), S(sW1, 4), S(sSo), mods=f"offen offset:{i*1024} lds")
                else: k.op("buffer_load_dwordx4", V(vD), S(sK if kind == "K" else sV, 4), S(sSo), mods=f"offen offset:{i*1024}{SC} lds")
                vq.issue(p)
            return f
        return [setup] + [ld(i) for i in range(4)]
    def xn_load(ks, rb):
        def f():
            r = XR + ((ks % 12) * 4 + rb) * 4
            if ks & 3 == 0: k.op("s_add_u32", S(sLd + rb), S(sXa if rb < 2 else sXb), (rb & 1) * 16384 + (ks >> 2) * 4096)
            k.op("buffer_load_dwordx4", A(r, 4), V(vL16), S(sWS, 4), S(sLd + rb), mods=f"offen offset:{(ks&3)*1024}" + SC)
            vq.issue(("x", ks))
        return f
    if early1:
        for p in (("W1", 0), ("WQ", 0), ("WQ", 1)):
            for _ in range(4): vq.issue(p)
        for ks in range(4):
            for _ in range(4): vq.issue(("x", ks))
        vq.issue(); vq.issue()
    else:
        for p in (("W1", 0), ("WQ", 0)):
            for f in dma_items(p): f()
        for ks in range(2):
            for rb in range(4): xn_load(ks, rb)()
        for f in dma_items(("WQ", 1)): f()
        for ks in range(2, 4):
            for rb in range(4): xn_load(ks, rb)()
    load_srd(k, sB1, "b1", 90)
    k.op("s_lshl_b32", S(sT0), S(sH), 19)
    k.op("s_add_u32", S(sT1), S(sT0), KF_OFF)
    k.op("s_add_u32", S(sK), S(92), S(sT1))
    k.op("s_addc_u32", S(sK + 1), S(93), 0)
    k.op("s_and_b32", S(sK + 1), S(sK + 1), "0xffff")
    k.op("s_lshl_b32", S(sT2), S(sP), 15)
    k.op("s_sub_u32", S(sK + 2), 32 * 16384, S(sT2))
    k.op("s_mov_b32", S(sK + 3), "0x20000")
    k.op("s_add_u32", S(sT1), S(sT0), VF_OFF - 16384)
    k.op("s_add_u32", S(sV), S(92), S(sT1))
    k.op("s_addc_u32", S(sV + 1), S(93), 0)
    k.op("s_and_b32", S(sV + 1), S(sV + 1), "0xffff")
    k.op("s_add_u32", S(sV + 2), S(sK + 2), 16384)
    k.op("s_mov_b32", S(sV + 3), "0x20000")
    k.op("v_lshl_or_b32", V(30), V(g1), 2, V(r_))
    k.op("v_lshl_add_u32", V(31), V(g), 3, V(r_))
    k.op("v_lshlrev_b32", V(t7), 8, V(31))
    k.op("v_lshl_add_u32", V(t7), V(cc), 3, V(t7))
    for nb in range(8):
        k.op("v_xor_b32", V(13), nb, V(30))
        k.op("v_lshl_add_u32", V(TA + nb), V(13), 5, V(t7))
    k.op("v_lshrrev_b32", V(13), 1, V(r_))
    k.op("v_lshl_or_b32", V(30), V(g1), 1, V(13))
    k.op("v_lshlrev_b32", V(t7), 7, V(31))
    k.op("v_lshl_add_u32", V(t7), V(cc), 3, V(t7))
    for nb in range(3):
        k.op("v_xor_b32", V(13), nb, V(30))
        k.op("v_lshl_add_u32", V(TB + nb), V(13), 5, V(t7))
    for i in range(4): k.op("v_mov_b32", V(ONES + i), "0x3f803f80")
    ST = 120
    B1 = [92, 94, 30]
    k.op("v_lshlrev_b32", V(13), 3, V(l15))
    for rb in range(4):
        k.op("s_lshl_b32", S(sT0), S(sRa if rb < 2 else sRb), 3)
        k.op("s_add_u32", S(sT0), S(sT0), STAT_OFF + (rb & 1) * 128)
        k.op("buffer_load_dwordx2", V(ST + 2 * rb, 2), V(13), S(sWS, 4), S(sT0), mods="offen" + SC); vq.issue("st")
    k.op("v_lshlrev_b32", V(14), 3, V(g))
    k.op("s_mul_i32", S(sT1), S(sH), 96)
    for nb in range(3):
        k.op("buffer_load_dwordx2", V(B1[nb], 2), V(14), S(sB1, 4), S(sT1), mods=f"offen offset:{nb*32}"); vq.issue("st")
    win = {"TA": 0, "TB": 0}
    def set_window(name, base, n, off):
        w = off // 65536
        if win[name] != w:
            d = (w - win[name]) * 65536
            for i in range(n): k.op("v_add_u32", V(base + i), hex(d & 0xffffffff), V(base + i))
            win[name] = w
        return off - w * 65536
    frs = []
    for ks in range(16):
        for nb in range(3): frs.append(("W1", ks, nb))
        for nb in range(8): frs.append(("WQ", ks, nb))
    NF = len(frs)
    q1 = FillQ(k)
    plan = {0: [("W1", 1), ("WQ", 2)], 1: [("WQ", 3)], 2: [("W1", 2), ("WQ", 4)], 3: [("WQ", 5)], 4: [("W1", 3), ("WQ", 6)],
            5: [("WQ", 7)], 6: [("K", 0), ("K", 1)], 7: [("V", 0), ("K", 2)]}
    def stage_switch(s):
        need = [("WQ", s)] + ([("W1", s // 2)] if s % 2 == 0 else [])
        vq.need(*need, cnt=[4] * len(need))
        k.op("s_barrier")
        q1.flush()
        if fused1 and s == 2:
            one_lane_store(k, sW, sWS, [3], 1, 18)
        if fused1 and s == 5:
            k.op("s_lshl_b32", S(55), S(sH), 7)
            k.op("s_add_u32", S(55), S(55), FA_OFF)
            k.op("v_lshlrev_b32", V(18), 2, V(p8))
            k.op("buffer_load_dword", V(19), V(18), S(sWS, 4), S(55), mods="offen sc1"); vq.issue("pp")
        if fused1 and s == 6:
            vq.need("pp")
            spin_until(k, "k2_sp", lambda: k.op("buffer_load_dword", V(19), V(18), S(sWS, 4), S(55), mods="offen sc1"),
                       lambda: k.op("v_cmp_ne_u32", "vcc", 1, V(19)), sT1)
        for ks in (2 * s + 4, 2 * s + 5):
            if ks < 16:
                for rb in range(4): q1.add(xn_load(ks, rb))
        for p in plan[s]:
            for f in dma_items(p): q1.add(f)
    def read_frag(n, which):
        kind, ks, nb = frs[n]
        if n % 22 == 0 and which == 0: stage_switch(n // 22)
        r = FR + (n % 16) * 4
        if kind == "WQ":
            off = slot(("WQ", ks // 2)) + (ks & 1) * 8192 + which * 1024
            off = set_window("TA", TA, 8, slot(("WQ", ks // 2))) + (ks & 1) * 8192 + which * 1024
            k.op("ds_read_b64_tr_b16", A(r + 2 * which, 2), V(TA + nb), mods=f"offset:{off}")
        else:
            off = set_window("TB", TB, 3, slot(("W1", ks // 4))) + (ks & 3) * 4096 + which * 512
            k.op("ds_read_b64_tr_b16", A(r + 2 * which, 2), V(TB + nb), mods=f"offset:{off}")
        lq.issue(("w", n))
    def qacc(nb, rb): return SR + 4 * (nb * 4 + rb)
    def macc(nb, rb): return MACC + 4 * (nb * 4 + rb)
    for n in range(D):
        read_frag(n, 0); read_frag(n, 1)
    stp.stamp()
    for n in range(NF):
        kind, ks, nb = frs[n]
        if n % 11 == 0: vq.need(("x", ks), cnt=[4])
        if n % 2 == 0: lq.need(("w", n), ("w", n + 1), cnt=[2, 2])
        wf = A(FR + (n % 16) * 4, 4)
        first = ks == 0
        ms = []
        for rb in range(4):
            d = V(qacc(nb, rb) if kind == "WQ" else macc(nb, rb), 4)
            ms.append((d, A(XR + ((ks % 12) * 4 + rb) * 4, 4)))
        if kind == "W1": ms.append((V(MACC + 48 + 4 * nb, 4), V(ONES, 4)))
        for c, (d, b) in enumerate(ms):
            k.op("v_mfma_f32_16x16x32_bf16", d, wf, b, "0" if first else d)
            if c < 2 and n + D < NF: read_frag(n + D, c)
            elif not pace or c == 2: q1.emit(2 if (len(q1) > 12 and not pace) else 1)
    q1.flush()
    stp.stamp()
    vq.need(("K", 0), cnt=[4])
    k.op("s_barrier")
    for p in (("V", 1), ("K", 3), ("V", 2)):
        for f in dma_items(p): f()
    k.op("v_mul_u32_u24", V(15), 44032, V(g1))
    k.op("v_lshrrev_b32", V(16), 5, V(vL))
    k.op("v_lshl_add_u32", V(15), V(16), 8, V(15))
    k.op("v_lshl_add_u32", V(15), V(l15), 4, V(15))
    C1, C2 = -2 * LOG2E * 0.7978845608028654, -2 * LOG2E * 0.7978845608028654 * 0.044715
    k.op("v_mov_b32", V(16), f32(C1)); k.op("v_mov_b32", V(17), f32(C2))
    k.op("v_mov_b32", V(18), "1.0"); k.op("v_mov_b32", V(19), "1.0")
    def P(r): return V(r, 2)
    bb, t = 96, 100
    for nb in range(3):
        k.op("v_lshlrev_b32", V(bb), 16, V(B1[nb]))
        k.op("v_and_b32", V(bb + 1), "0xffff0000", V(B1[nb]))
        k.op("v_lshlrev_b32", V(bb + 2), 16, V(B1[nb] + 1))
        k.op("v_and_b32", V(bb + 3), "0xffff0000", V(B1[nb] + 1))
        cs = MACC + 48 + 4 * nb
        k.op("s_mul_i32", S(sT1), S(sH), 3)
        k.op("s_add_u32", S(sT1), S(sT1), nb)
        k.op("s_lshl_b32", S(sT2), S(sT1), 9)
        k.op("s_add_u32", S(sT2), S(sT2), HF_OFF)
        lab = k.newlabel("skiph")
        k.op("s_cmp_ge_u32", S(sT1), 86)
        k.op("s_cbranch_scc1", lab)
        for rp in range(2):
            rbs = (2 * rp, 2 * rp + 1)
            def each(fn):
                for j, rb in enumerate(rbs):
                    for i in (0, 2): fn(macc(nb, rb) + i, t + 4 * j + i, ST + 2 * rb, i)
            each(lambda a, tt, st, i: k.op("v_pk_fma_f32", P(a), P(cs + i), P(st), P(a), mods="op_sel_hi:[1,0,1] neg_lo:[1,0,0] neg_hi:[1,0,0]"))
            each(lambda a, tt, st, i: k.op("v_pk_fma_f32", P(a), P(a), P(st), P(bb + i), mods="op_sel:[0,1,0]"))
            each(lambda a, tt, st, i: k.op("v_pk_mul_f32", P(tt), P(a), P(a)))
            each(lambda a, tt, st, i: k.op("v_pk_fma_f32", P(tt), P(tt), P(16), P(16), mods="op_sel:[0,1,0] op_sel_hi:[1,1,0]"))
            each(lambda a, tt, st, i: k.op("v_pk_mul_f32", P(tt), P(tt), P(a)))
            for i in range(8): k.op("v_exp_f32", V(t + i), V(t + i))
            each(lambda a, tt, st, i: k.op("v_pk_add_f32", P(tt), P(tt), P(18)))
            for i in range(8): k.op("v_rcp_f32", V(t + i), V(t + i))
            each(lambda a, tt, st, i: k.op("v_pk_mul_f32", P(a), P(a), P(tt)))
            a0, a1 = macc(nb, rbs[0]), macc(nb, rbs[1])
            k.op("v_cvt_pk_bf16_f32", V(a0), V(a0), V(a0 + 1))
            k.op("v_cvt_pk_bf16_f32", V(a0 + 1), V(a0 + 2), V(a0 + 3))
            k.op("v_cvt_pk_bf16_f32", V(a0 + 2), V(a1), V(a1 + 1))
            k.op("v_cvt_pk_bf16_f32", V(a0 + 3), V(a1 + 2), V(a1 + 3))
            k.op("s_add_u32", S(sT0), S(sHr + 2 * rp), S(sT2))
            k.nop(1)
            k.op("v_permlane16_swap_b32", V(a0), V(a0 + 2))
            k.op("v_permlane16_swap_b32", V(a0 + 1), V(a0 + 3))
            k.op("buffer_store_dwordx4", V(a0, 4), V(15), S(sWS, 4), S(sT0), mods="offen" + (" sc1" if fuse3 else ""))
        k.label(lab)
    k.op("v_mov_b32", V(16), f32(QSCALE)); k.op("v_mov_b32", V(17), f32(QSCALE))
    def Qreg(sub, qb, ds): return QR + sub * 32 + qb * 16 + ds * 4
    for rb in range(4):
        for ds in range(4):
            X = Qreg(rb >> 1, rb & 1, ds)
            for half in range(2):
                a = qacc(2 * ds + half, rb)
                for i in (0, 2): k.op("v_pk_mul_f32", P(a + i), P(a + i), P(16))
                k.op("v_cvt_pk_bf16_f32", V(X + 2 * half), V(a), V(a + 1))
                k.op("v_cvt_pk_bf16_f32", V(X + 2 * half + 1), V(a + 2), V(a + 3))
    stp.stamp()
    def Ngm(sub, qb): return NEGM + sub * 8 + qb * 4
    def Lac(sub, qb): return 112 + sub * 8 + qb * 4
    ON1 = 24
    k.op("s_and_b32", S(sT0), S(sW), 1)
    k.op("s_lshl_b32", S(sT0), S(sT0), 5)
    k.op("v_add_u32", V(vZ), S(sT0), V(l15))
    k.op("v_lshlrev_b32", V(15), 2, V(g))
    k.op("v_sub_u32", V(vZ), V(vZ), V(15))
    k.op("v_mov_b32", V(vNinf), f32(-1e30))
    for i in range(4): k.op("v_mov_b32", V(ON1 + i), "0x3f803f80")
    for i in range(16): k.op("v_mov_b32", V(112 + i), 0)
    k.op("s_mov_b32", S(sThr), f32(thr))
    k.op("s_mov_b32", S(sP2), 0)
    k.op("s_mov_b32", S(sNx), 98304)
    k.op("s_mov_b32", S(sTK), 4 * 16384)
    k.op("s_mov_b32", S(sT), 2)

    def mf(d, a, b, c): k.op("v_mfma_f32_16x16x32_bf16", d, a, b, c)
    def mask_block(sub, par):
        s0 = Sreg(sub, par)
        for e0 in range(0, 32, 2):
            for u in range(2):
                e = e0 + u; qb, kb, r = e >> 4, (e >> 2) & 3, e & 3
                k.op("v_cmp_gt_i32", S(sM + 2 * u, 2), 16 * kb + r - 16 * qb, V(vZ))
            k.nop(1)
            for u in range(2):
                k.op("v_cndmask_b32", V(s0 + e0 + u), V(s0 + e0 + u), V(vNinf), S(sM + 2 * u, 2))
    def ereg(n):
        k32, qb, j = n >> 4, (n >> 3) & 1, n & 7
        return qb * 16 + k32 * 8 + j
    def soft_exp(sub, par, n):
        r = Sreg(sub, par) + ereg(n)
        k.op("v_exp_f32", V(r), V(r))
    def soft_cvt(sub, par, n):
        e = n - 2
        r = Sreg(sub, par) + ereg(e)
        d = Sreg(sub, par) + (ereg(e) & ~7) + ((e & 7) >> 1)
        k.op("v_cvt_pk_bf16_f32", V(d), V(r), V(r + 1))
    def rd(frag, isV):
        k.op("ds_read_b128", A(FR + frag * 4, 4), V(vA), mods=f"offset:{(16384 if isV else 0) + frag*1024}")
    def ldK(i): return lambda: k.op("buffer_load_dwordx4", V(vD), S(sK, 4), S(sTK), mods=f"offen offset:{i*1024}{SC} lds")
    def ldV(i): return lambda: k.op("buffer_load_dwordx4", V(vD), S(sV, 4), S(sTK), mods=f"offen offset:{i*1024}{SC} lds")
    m0K = lambda: k.op("s_add_u32", "m0", S(sP2), S(sW4k))
    m0V = lambda: k.op("s_add_u32", "m0", "m0", 16384)
    advT = lambda: k.op("s_add_u32", S(sTK), S(sTK), 16384)
    advP = lambda: k.op("s_add_u32", S(sP2), S(sP2), 32768)
    wrapP = lambda: (k.op("s_cmp_eq_u32", S(sP2), 163840), k.op("s_cselect_b32", S(sP2), 0, S(sP2)))
    XA = {1: [ldK(2)], 5: [ldK(3)], 7: [m0V], 9: [ldV(0)], 13: [ldV(1)]}
    XB = {1: [ldV(2)], 5: [ldV(3)], 7: [advT, advP], 9: [wrapP, m0K], 11: [ldK(0)], 15: [ldK(1)]}
    WP = 4
    def phaseA(par, qk, ex):
        if not qk:
            k.wait(lgkm=0)
            for f in range(DA): rd(f, True)
            for n in range(16, 32):
                for sub in ex:
                    soft_exp(sub, par, n)
                    if n % 2 == 0: soft_cvt(sub, par, n)
            return
        for f in range(16):
            kb, ds = f >> 2, f & 3
            if f % WP == 0: k.wait(lgkm=DA - WP)
            for j, sub in enumerate(qk):
                xs = ex if len(qk) == 1 else [sub]
                for qb in range(2):
                    d = V(Sreg(sub, 1 - par) + qb * 16 + kb * 4, 4)
                    mf(d, A(FR + f * 4, 4), V(Qreg(sub, qb, ds), 4), V(Ngm(sub, qb), 4) if ds == 0 else d)
                    if qb == 0:
                        for x in xs: soft_exp(x, par, 16 + f)
                if j == 0:
                    nf = f + DA
                    if nf < 16: rd(nf, False)
                    else: rd(nf - 16, True)
                if f % 2 == 0:
                    for x in xs: soft_cvt(x, par, 16 + f)
                if j == len(qk) - 1:
                    for fn in XA.get(f, []): fn()
    def phaseB(par, pv, exn, bar="always", tailops=()):
        extra = list(tailops)
        for f in range(16):
            k32, db = f >> 3, f & 7
            if f % WP == 0: k.wait(lgkm=DA - WP if bar == "always" else max(0, min(DA - WP, 16 - f - WP)))
            for j, sub in enumerate(pv):
                for qb in range(2):
                    d = A(OA + sub * 64 + (db * 2 + qb) * 4, 4)
                    mf(d, A(FR + f * 4, 4), V(Sreg(sub, par) + qb * 16 + k32 * 8, 4), d)
                    if qb == 0 and sub in exn: soft_exp(sub, 1 - par, f)
                if j == 0:
                    nf = f + DA
                    if nf == 16:
                        if bar == "always":
                            k.wait(vm=16); k.op("s_barrier")
                        elif bar == "w01":
                            lab = k.newlabel("nobar")
                            k.op("s_cmp_ge_u32", S(sW), 2); k.op("s_cbranch_scc1", lab)
                            k.wait(vm=8); k.op("s_barrier")
                            k.label(lab)
                        k.op("v_add_u32", V(vA), S(sNx), V(vL16))
                    if bar == "always" or nf < 16:
                        if nf < 16: rd(nf, True)
                        else: rd(nf - 16, False)
                if f == 0: soft_cvt(sub, par, 32)
                elif f % 2 == 0 and sub in exn: soft_cvt(sub, 1 - par, f)
                if f % 4 == 3:
                    qb = (f >> 2) & 1
                    d = V(Lac(sub, qb), 4)
                    mf(d, V(ON1, 4), V(Sreg(sub, par) + qb * 16 + k32 * 8, 4), d)
                if j == len(pv) - 1 and bar == "always":
                    for fn in XB.get(f, []): fn()
                    if f in (3, 13, 14) and extra: extra.pop(0)()
        for fn in extra: fn()
    def nx_items():
        return [lambda: k.op("s_add_u32", S(sT), S(sT), 1),
                lambda: k.op("s_add_u32", S(sNx), S(sNx), 32768),
                lambda: (k.op("s_cmp_eq_u32", S(sNx), 163840), k.op("s_cselect_b32", S(sNx), 0, S(sNx)))]
    def rowmax(sub, par, qb, dst):
        s0 = Sreg(sub, par) + 16 * qb
        k.op("v_max3_f32", V(dst), V(s0), V(s0 + 1), V(s0 + 2))
        for e in range(3, 15, 2): k.op("v_max3_f32", V(dst), V(dst), V(s0 + e), V(s0 + e + 1))
        k.op("v_max_f32", V(dst), V(dst), V(s0 + 15))
        for sw in ("v_permlane16_swap_b32", "v_permlane32_swap_b32"):
            k.op("v_mov_b32", V(vT + 1), V(dst))
            k.nop(2)
            k.op(sw, V(dst), V(vT + 1))
            k.op("v_max_f32", V(dst), V(dst), V(vT + 1))
    slow_sites = {}
    def epilogue(sub, site):
        t = Sreg(sub, 0)
        k.nop(8)
        k.op("v_max_f32", V(vT), V(Lac(sub, 0)), V(Lac(sub, 1)))
        k.op("v_add_f32", V(vT + 1), V(Lac(sub, 0)), V(Lac(sub, 1)))
        k.op("v_cmp_nle_f32", "vcc", V(vT + 1), V(21))
        k.op("s_mov_b32", S(sRet), site)
        k.op("s_cbranch_vccnz", f"k2_slow_{sub}")
        lab = f"k2_ret_{sub}_{site}"
        k.label(lab)
        slow_sites.setdefault(sub, []).append((site, lab))
        k.op("v_rcp_f32", V(vT + 3), V(Lac(sub, 0)))
        k.op("v_rcp_f32", V(vT + 4), V(Lac(sub, 1)))
        for qb in range(2):
            if qb: k.op("s_add_u32", S(sT0), S(sCa if sub == 0 else sCb), 131072)
            for ks in range(4):
                b = t + (qb * 4 + ks) * 8
                for half in range(2):
                    for i in range(4):
                        k.op("v_accvgpr_read_b32", V(b + 4 * half + i), A(OA + sub * 64 + ((2 * ks + half) * 2 + qb) * 4 + i))
                for i in range(0, 8, 2):
                    k.op("v_pk_mul_f32", P(b + i), P(b + i), P(vT + 3), mods="op_sel_hi:[1,0]" if qb == 0 else "op_sel:[0,1]")
                for i in range(4): k.op("v_cvt_pk_bf16_f32", V(b + i), V(b + 2 * i), V(b + 2 * i + 1))
                k.op("buffer_store_dwordx4", V(b, 4), V(vL16), S(sWS, 4), S(sT0 if qb else (sCa if sub == 0 else sCb)),
                     mods=f"offen offset:{ks*1024}" + (" sc1" if fuse3 else ""))
    k.op("v_mov_b32", V(21), S(sThr))
    k.op("v_add_u32", V(vT), 32768, V(vL16))
    for f in range(16): k.op("ds_read_b128", A(f * 4, 4), V(vT), mods=f"offset:{f*1024}")
    zi = 0
    for f in range(16):
        kb, ds = f >> 2, f & 3
        k.wait(lgkm=15 - f)
        for sub in range(2):
            for qb in range(2):
                d = V(Sreg(sub, 0) + qb * 16 + kb * 4, 4)
                mf(d, A(f * 4, 4), V(Qreg(sub, qb, ds), 4), "0" if ds == 0 else d)
                for _ in range(2):
                    k.op("v_accvgpr_write_b32", A(OA + zi), 0); zi += 1
    k.wait(vm=12)
    k.op("s_barrier")
    m0K()
    k.op("v_add_u32", V(vA), 65536, V(vL16))
    ldK(0)(); ldK(1)()
    for f in range(DA): rd(f, False)
    lab = k.newlabel("nomask0")
    k.op("s_cmp_lg_u32", S(sNa), 1); k.op("s_cbranch_scc1", lab)
    mask_block(0, 0)
    k.label(lab)
    for sub in range(2):
        for qb in range(2):
            rowmax(sub, 0, qb, vT + 2)
            n0 = Ngm(sub, qb)
            for i in range(4): k.op("v_sub_f32", V(n0 + i), 0, V(vT + 2))
            for e in range(0, 16, 2): k.op("v_pk_add_f32", P(Sreg(sub, 0) + 16 * qb + e), P(Sreg(sub, 0) + 16 * qb + e), P(n0))
    for n in range(16):
        for sub in range(2):
            soft_exp(sub, 0, n)
        for sub in range(2):
            if n % 2 == 0 and n: soft_cvt(sub, 0, n)
    stp.stamp()
    k.op("s_cmp_lt_u32", 1, S(sNa))
    k.op("s_cbranch_scc0", "k2_DL0")
    def pf_k3():
        sp = sWQ
        k.op("s_and_b32", S(sT0), "s2", 7)
        k.op("s_lshr_b32", S(sT0), S(sT0), 1)
        k.op("s_mul_i32", S(sT1), S(sT0), 43 * 32768)
        k.op("s_cmp_lt_u32", S(sT0), 3)
        k.op("s_cselect_b32", S(sp), S(86), S(96))
        k.op("s_cselect_b32", S(sp + 1), S(87), S(97))
        k.op("s_mov_b32", S(sp + 2), hex(SZ["w2"]))
        k.op("s_cselect_b32", S(sp + 2), hex(SZ["wo"]), S(sp + 2))
        k.op("s_cselect_b32", S(sT1), S(sT1), 0)
        k.op("s_and_b32", S(sp + 1), S(sp + 1), "0xffff")
        k.op("s_mov_b32", S(sp + 3), "0x20000")
        k.op("s_lshr_b32", S(sT2), "s2", 3)
        k.op("s_lshl_b32", S(sT2), S(sT2), 2)
        k.op("s_add_u32", S(sT2), S(sT2), S(sW))
        k.op("s_mul_i32", S(sT0), S(sT2), 11264)
        k.op("s_add_u32", S(sT1), S(sT1), S(sT0))
        k.op("v_lshlrev_b32", V(vT), 7, V(vL))
        k.op("buffer_load_dword", V(130), V(vT), S(sp, 4), S(sT1), mods="offen", dummy=True)
        k.op("v_and_b32", V(vT + 2), 31, V(vL))
        k.op("v_lshlrev_b32", V(vT + 2), 7, V(vT + 2))
        k.op("s_add_u32", S(sT1), S(sT1), 8192)
        k.op("buffer_load_dword", V(130), V(vT + 2), S(sp, 4), S(sT1), mods="offen", dummy=True)
        k.op("s_lshl_b32", S(sT2), S(sT2), 13)
        pf_code(k, sW1, "k3_kernel", "k3_end-k3_kernel", vT, vL, sT2, 130)
    ool = []
    def maskif(sub, par):
        lab, lab2 = k.newlabel("nomask"), k.newlabel("domask")
        k.op("s_cmp_eq_u32", S(sT), S(sNa if sub == 0 else sNb)); k.op("s_cbranch_scc1", lab2)
        k.label(lab)
        ool.append((lab2, lab, sub, par))
    for par in range(2):
        k.label(f"k2_DD{par}")
        phaseA(par, [0, 1], [0, 1])
        maskif(0, 1 - par)
        phaseB(par, [0, 1], [0, 1], tailops=nx_items())
        k.op("s_cmp_le_u32", S(sT), S(sNa))
        k.op("s_cbranch_scc0", f"k2_DL{1-par}")
        if par == 1: k.op("s_branch", "k2_DD0")
    for par in range(2):
        k.label(f"k2_DL{par}")
        phaseA(par, [1], [0, 1])
        phaseB(par, [0, 1], [1], tailops=nx_items())
        epilogue(0, par)
        k.op("s_branch", f"k2_SS{1-par}")
    for par in range(2):
        k.label(f"k2_SS{par}")
        phaseA(par, [1], [1])
        maskif(1, 1 - par)
        phaseB(par, [1], [1], tailops=nx_items())
        k.op("s_cmp_le_u32", S(sT), S(sNb))
        k.op("s_cbranch_scc0", f"k2_SL{1-par}")
        if par == 1: k.op("s_branch", "k2_SS0")
    for par in range(2):
        k.label(f"k2_SL{par}")
        if pf3: pf_k3()
        phaseA(par, [], [1])
        k.nop(2)
        phaseB(par, [1], [], bar="w01")
        if par == 0: k.op("s_branch", "k2_fin")
    k.label("k2_fin")
    stp.stamp()
    epilogue(1, 0)
    if stamps:
        k.wait(vm=0, lgkm=0)
        stp.stamp()
        stp.flush(sWS, sW, 13)
    if fuse3:
        k.op("s_lshl_b32", S(sT0), S(sP), 8)
        k.op("s_lshl_b32", S(sT1), S(sH), 2)
        k.op("s_add_u32", S(sT0), S(sT0), S(sT1))
        k.op("s_add_u32", S(96), S(sT0), FLAG2_OFF)
        k.wait(lgkm=0)
        k.raw("  s_branch k3_kernel")
    k.op("s_endpgm")
    for (lab2, lab, sub, par) in ool:
        k.label(lab2)
        k.nop(8)
        mask_block(sub, par)
        k.op("s_branch", lab)
    sU, sUo = 60, 61
    for sub, sites in sorted(slow_sites.items()):
        s0 = Sreg(sub, 0)
        m = [Ngm(sub, 0), Ngm(sub, 1)]
        k.label(f"k2_slow_{sub}")
        k.nop(8)
        for i in range(64): k.op("v_accvgpr_write_b32", A(OA + sub * 64 + i), 0)
        for qb in range(2):
            k.op("v_mov_b32", V(m[qb]), f32(-1e30))
            for i in range(4): k.op("v_mov_b32", V(Lac(sub, qb) + i), 0)
        k.op("s_mov_b32", S(sU), 1)
        k.op("s_mov_b32", S(sUo), 0)
        loop = f"k2_slowloop_{sub}"
        k.label(loop)
        for c in range(4):
            k.op("s_add_u32", S(sLd), S(sUo), c * 4096)
            for i in range(4): k.op("buffer_load_dwordx4", A((c * 4 + i) * 4, 4), V(vL16), S(sK, 4), S(sLd), mods=f"offen offset:{i*1024}" + SC)
        k.wait(vm=0)
        for f in range(16):
            kb, ds = f >> 2, f & 3
            for qb in range(2):
                d = V(s0 + qb * 16 + kb * 4, 4)
                mf(d, A(f * 4, 4), V(Qreg(sub, qb, ds), 4), "0" if ds == 0 else d)
        for c in range(4):
            k.op("s_add_u32", S(sLd), S(sUo), c * 4096 + 16384)
            for i in range(4): k.op("buffer_load_dwordx4", A((c * 4 + i) * 4, 4), V(vL16), S(sV, 4), S(sLd), mods=f"offen offset:{i*1024}" + SC)
        lab = k.newlabel("snomask")
        k.op("s_cmp_lg_u32", S(sU), S(sNa if sub == 0 else sNb)); k.op("s_cbranch_scc1", lab)
        mask_block(sub, 0)
        k.label(lab)
        for qb in range(2):
            al = m[qb] + 1
            rowmax(sub, 0, qb, vT + 3)
            k.op("v_max_f32", V(vT + 3), V(vT + 3), V(m[qb]))
            k.op("v_sub_f32", V(al), V(m[qb]), V(vT + 3))
            k.op("v_mov_b32", V(m[qb]), V(vT + 3))
            k.op("v_exp_f32", V(al), V(al))
            for e in range(16): k.op("v_sub_f32", V(s0 + 16 * qb + e), V(s0 + 16 * qb + e), V(m[qb]))
            for i in range(4): k.op("v_mul_f32", V(Lac(sub, qb) + i), V(Lac(sub, qb) + i), V(al))
            for db in range(8):
                for i in range(4):
                    ar = OA + sub * 64 + (db * 2 + qb) * 4 + i
                    k.op("v_accvgpr_read_b32", V(vT + (i & 1)), A(ar))
                    k.op("v_mul_f32", V(vT + (i & 1)), V(vT + (i & 1)), V(al))
                    k.op("v_accvgpr_write_b32", A(ar), V(vT + (i & 1)))
        for n in range(33):
            if n < 32: soft_exp(sub, 0, n)
            else: k.nop(1)
            if n % 2 == 0 and n: soft_cvt(sub, 0, n)
        k.wait(vm=0)
        k.nop(1)
        for f in range(16):
            k32, db = f >> 3, f & 7
            for qb in range(2):
                d = A(OA + sub * 64 + (db * 2 + qb) * 4, 4)
                mf(d, A(f * 4, 4), V(s0 + qb * 16 + k32 * 8, 4), d)
            if f % 4 == 3:
                qb = (f >> 2) & 1
                d = V(Lac(sub, qb), 4)
                mf(d, V(ON1, 4), V(s0 + qb * 16 + k32 * 8, 4), d)
        k.op("s_add_u32", S(sUo), S(sUo), 16384)
        k.op("s_add_u32", S(sU), S(sU), 1)
        k.nop(8)
        k.op("s_cmp_le_u32", S(sU), S(sNa if sub == 0 else sNb))
        k.op("s_cbranch_scc1", loop)
        for (site, lab) in sites[:-1]:
            k.op("s_cmp_eq_u32", S(sRet), site); k.op("s_cbranch_scc1", lab)
        k.op("s_branch", sites[-1][1])
    k.label("k2_end")
    k.op("s_endpgm")
    return k

if __name__ == "__main__":
    k = build_k2()
    for e in k.check_hazards(): print(e)
    for e in k.check_waits(): print(e)
    print(k.maxregs(), len(k.ins))
```

```python
from common import *
from k1_v1 import layernorm

def build_k1(store_mods="", stamps=False, prefetch=True, twice=False, noln=False, pf2=True, pf2at=13, D=6, LN0=2, nostore=False, skew=True, pfself=True, fuse=False, fldelay=3, early=True, lnfirst=True):
    k = Kern("k1_kernel")
    vq, lq = Q(k, "vmcnt", 63), Q(k, "lgkmcnt", 15)
    stp = Stamps(k, stamps, 60, 0, lq, maxn=10)
    sWS, sC, sWm, sP, sX = 8, 12, 16, 20, 24
    sT0, sT1, sT2, sKV, sW, sH, sRq = 28, 29, 30, 31, 32, 33, 35
    sSo, sSo2, sAo, sSt, sW8k, sR, sW4k = 36, 37, 42, 43, 44, 45, 48
    vL, vL16 = 1, 2
    TA = 16
    VA = 28
    VW = 36
    AAr = 40
    AF = 52
    ACC = 128
    LNR = 192
    X0, X1 = 224, 228
    VZ = 232
    g, l15, r_, cc, g1, t0, t1, p8 = 4, 5, 6, 7, 8, 9, 10, 11
    k.op("s_cmp_ge_u32", "s2", 256)
    k.op("s_cbranch_scc1", "k1_end")
    if pfself:
        pf_self(k, "k1_end", vt=14); vq.issue()
    k.op("s_load_dwordx4", S(84, 4), S(0, 2), KA["x"])
    k.op("s_load_dwordx4", S(88, 4), S(0, 2), KA["wuk"])
    k.op("s_load_dwordx4", S(92, 4), S(0, 2), KA["dbg"])
    k.op("s_load_dwordx2", S(96, 2), S(0, 2), KA["wq"])
    k.op("s_load_dwordx2", S(98, 2), S(0, 2), KA["w1"])
    k.op("v_and_b32", V(vL), 63, "v0")
    k.op("v_lshrrev_b32", V(t0), 6, "v0")
    k.op("s_and_b32", S(sT0), "s2", 7)
    k.op("v_readfirstlane_b32", S(sW), V(t0))
    k.op("s_lshr_b32", S(sT1), "s2", 3)
    k.op("s_and_b32", S(sT2), S(sT1), 3)
    k.op("s_lshl_b32", S(sH), S(sT0), 2)
    k.op("s_add_u32", S(sH), S(sH), S(sT2))
    k.op("s_bfe_u32", S(sKV), S(sT1), "0x10002")
    k.op("s_lshr_b32", S(sRq), S(sT1), 3)
    k.op("v_lshlrev_b32", V(vL16), 4, V(vL))
    k.op("v_lshrrev_b32", V(g), 4, V(vL))
    k.op("v_and_b32", V(l15), 15, V(vL))
    k.op("v_bfe_u32", V(r_), V(vL), 2, 2)
    k.op("v_and_b32", V(cc), 3, V(vL))
    k.op("v_and_b32", V(g1), 1, V(g))
    k.op("v_and_b32", V(p8), 7, V(vL))
    k.op("s_lshl_b32", S(sW4k), S(sW), 12)
    k.op("s_lshl_b32", S(sW8k), S(sW), 13)
    k.op("v_lshlrev_b32", V(t0), 1, V(g))
    k.op("v_xor_b32", V(t0), V(t0), V(l15))
    k.op("v_lshlrev_b32", V(t0), 4, V(t0))
    k.op("v_lshl_add_u32", V(t0), V(g), 13, V(t0))
    k.op("s_lshl_b32", S(sT0), S(sW), 17)
    k.op("s_lshl_b32", S(sT1), S(sH), 8)
    k.op("s_add_u32", S(sT0), S(sT0), S(sT1))
    k.op("v_add_u32", V(VW), S(sT0), V(t0))
    k.op("v_add_u32", V(VW + 1), 32768 - 1024, V(VW))
    k.op("v_xor_b32", V(VW + 2), 128, V(VW))
    k.op("v_add_u32", V(VW + 2), 2 * (32768 - 1024), V(VW + 2))
    k.op("v_add_u32", V(VW + 3), 32768 - 1024, V(VW + 2))
    k.op("s_and_b32", S(sT0), S(sW), 1)
    k.op("s_lshl_b32", S(sT0), S(sT0), 7)
    k.op("v_xor_b32", V(t0), S(sT0), V(vL16))
    for i in range(8): k.op("v_xor_b32", V(VA + i), i * 16, V(t0))
    k.op("s_lshl_b32", S(sAo), S(sRq), 19)
    k.op("s_lshr_b32", S(sT1), S(sW), 1)
    k.op("s_lshl_b32", S(sT1), S(sT1), 15)
    k.op("s_add_u32", S(sAo), S(sAo), S(sT1))
    k.op("s_lshl_b32", S(sT0), S(sT0), 6)
    k.op("s_add_u32", S(sAo), S(sAo), S(sT0))
    k.op("s_lshl_b32", S(sR), "s2", 3)
    k.op("s_lshl_b32", S(sT1), S(sW), 1)
    k.op("s_add_u32", S(sR), S(sR), S(sT1))
    k.op("s_lshr_b32", S(sR + 1), S(sR), 4)
    k.op("s_lshl_b32", S(sR + 1), S(sR + 1), 14)
    k.op("s_and_b32", S(sR + 2), S(sR), 15)
    k.op("s_lshl_b32", S(sR + 2), S(sR + 2), 4)
    k.op("s_add_u32", S(sR + 1), S(sR + 1), S(sR + 2))
    k.op("s_lshl_b32", S(sR + 2), S(sR), 3)
    k.op("s_add_u32", S(sR + 2), S(sR + 2), YF_OFF)
    k.op("s_lshl_b32", S(sR), S(sR), 10)
    k.wait(lgkm=0)
    stp.stamp()
    load_srd(k, sX, "x", 84)
    k.op("buffer_load_dwordx4", V(X0, 4), V(vL16), S(sX, 4), S(sR), mods="offen"); vq.issue("ln")
    k.op("buffer_load_dwordx4", V(X1, 4), V(vL16), S(sX, 4), S(sR), mods="offen offset:1024"); vq.issue("ln")
    load_srd(k, sC, "ckv", 86)
    k.op("s_cmp_eq_u32", S(sKV), 0)
    k.op("s_cselect_b32", S(sWm), S(88), S(90))
    k.op("s_cselect_b32", S(sWm + 1), S(89), S(91))
    k.op("s_and_b32", S(sWm + 1), S(sWm + 1), "0xffff")
    k.op("s_mov_b32", S(sWm + 2), hex(4 << 20))
    k.op("s_mov_b32", S(sWm + 3), "0x20000")
    CHA = 84
    def cha(i):
        if skew: skew_stage(k, CHA + i, sT2, i, 8, sT1)
        else: k.op("s_mov_b32", S(CHA + i), i)
        k.op("s_lshl_b32", S(CHA + i), S(CHA + i), 16)
        k.op("s_add_u32", S(CHA + i), S(CHA + i), S(sAo))
    cha(0)
    def aslot(st): return [1, 2, 3, 4, 0][(st - 2) % 5] * 32768
    def wslot(s): return [3, 1, 2][(s % 6) // 2] * 32768 + (s & 1) * 16384
    def dma_w_items(s):
        def setup():
            k.op("s_add_u32", "m0", S(sW4k), wslot(s))
            k.op("s_mov_b32", S(sSo), s * 524288)
        def ld(i):
            def f():
                k.op("buffer_load_dwordx4", V(VW + i), S(sWm, 4), S(sSo), mods=f"offen offset:{i*1024} lds"); vq.issue(("W", s))
            return f
        return [setup] + [ld(i) for i in range(4)]
    def dma_a_items(st):
        it = []
        for u in range(2):
            def setup(u=u):
                k.op("s_add_u32", "m0", S(sW8k), aslot(st) + u * 4096)
                k.op("s_add_u32", S(sSo), S(CHA + (st >> 1)), (st & 1) * 16384 + u * 4096)
            it.append(setup)
            for i in range(4):
                def f(i=i, u=u):
                    k.op("buffer_load_dwordx4", V(VA + 4 * u + i), S(sC, 4), S(sSo), mods=f"offen offset:{i*1024} lds"); vq.issue(("A", st))
                it.append(f)
        return it
    for f in dma_w_items(0) + dma_a_items(0) + dma_w_items(1) + dma_a_items(1): f()
    stp.stamp()
    for i in range(1, 8): cha(i)
    load_srd(k, sWS, "ws", 94)
    k.op("v_lshl_or_b32", V(t1), V(g1), 2, V(r_))
    k.op("s_and_b32", S(sT0), S(sW), 1)
    k.op("s_lshl_b32", S(sT0), S(sT0), 2)
    k.op("v_xor_b32", V(t1), S(sT0), V(t1))
    k.op("v_lshl_add_u32", V(t0), V(g), 3, V(r_))
    k.op("v_lshlrev_b32", V(t0), 8, V(t0))
    k.op("v_lshl_add_u32", V(t0), V(cc), 3, V(t0))
    for nb in range(4):
        k.op("v_xor_b32", V(12), nb, V(t1))
        k.op("v_lshl_add_u32", V(TA + nb), V(12), 5, V(t0))
        k.op("v_add_u32", V(TA + 4 + nb), 65536, V(TA + nb))
    k.op("s_lshr_b32", S(sT0), S(sW), 1)
    k.op("s_lshl_b32", S(sT0), S(sT0), 14)
    k.op("v_lshlrev_b32", V(t0), 10, V(l15))
    k.op("v_add_u32", V(t0), S(sT0), V(t0))
    k.op("v_xor_b32", V(t1), V(g), V(l15))
    for q in range(4):
        k.op("v_xor_b32", V(12), 4 * q, V(t1))
        k.op("v_lshl_add_u32", V(AAr + q), V(12), 4, V(t0))
        k.op("v_add_u32", V(AAr + 4 + q), 65536, V(AAr + q))
        k.op("v_add_u32", V(AAr + 8 + q), 131072, V(AAr + q))
    k.op("s_lshl_b32", S(sSt), S(sH), 19)
    k.op("s_lshl_b32", S(sT1), S(sRq), 17)
    k.op("s_add_u32", S(sSt), S(sSt), S(sT1))
    k.op("s_lshr_b32", S(sT1), S(sW), 1)
    k.op("s_lshl_b32", S(sT1), S(sT1), 13)
    k.op("s_add_u32", S(sSt), S(sSt), S(sT1))
    k.op("s_and_b32", S(sT1), S(sW), 1)
    k.op("s_lshl_b32", S(sT2), S(sT1), 12)
    k.op("s_add_u32", S(sT2), S(sT2), VF_OFF)
    k.op("s_lshl_b32", S(sT1), S(sT1), 11)
    k.op("s_add_u32", S(sT1), S(sT1), KF_OFF)
    k.op("s_cmp_eq_u32", S(sKV), 0)
    k.op("s_cselect_b32", S(sT1), S(sT1), S(sT2))
    k.op("s_add_u32", S(sSt), S(sSt), S(sT1))
    k.op("s_lshr_b32", S(sT1), S(sAo), 2)
    k.op("s_sub_u32", S(sSt), S(sSt), S(sT1))
    vLd, vLz = VZ, VZ + 1
    k.op("v_mov_b32", V(vLz), 0)
    k.op("v_lshrrev_b32", V(vLd), 2, V(vL))
    k.op("v_lshlrev_b32", V(vLd), 10, V(vLd))
    k.op("v_lshl_add_u32", V(vLd), V(cc), 8, V(vLd))
    sFL, sFA, sF2, sF3, sDb = 53, 54, 55, 56, 4
    if not fuse:
        k.op("s_lshl_b32", S(sT1), "s2", 8)
        k.op("s_add_u32", S(sT1), S(sT1), FLAG_OFF)
        for i in range(4): k.op("v_mov_b32", V(VZ + 4 + i), 0)
        k.op("buffer_store_dwordx4", V(VZ + 4, 4), V(vLz), S(sWS, 4), S(sT1), mods="offen" + (" sc1" if fuse else "")); vq.issue()
        k.op("s_lshl_b32", S(sT1), "s2", 4)
        k.op("s_add_u32", S(sT1), S(sT1), FLAG2_OFF)
        k.op("buffer_store_dwordx4", V(VZ + 4, 4), V(vLz), S(sWS, 4), S(sT1), mods="offen" + (" sc1" if fuse else "")); vq.issue()
    else:
        k.op("s_lshl_b32", S(sFL), "s2", 2)
        k.op("s_add_u32", S(sFL), S(sFL), FL_OFF)
        k.op("s_lshl_b32", S(sFA), S(sH), 7)
        k.op("s_lshl_b32", S(sT1), S(sKV), 4)
        k.op("s_add_u32", S(sFA), S(sFA), S(sT1))
        k.op("s_lshl_b32", S(sT1), S(sRq), 2)
        k.op("s_add_u32", S(sFA), S(sFA), S(sT1))
        k.op("s_add_u32", S(sFA), S(sFA), FA_OFF)
        k.op("s_lshr_b32", S(sT1), "s2", 5)
        k.op("s_lshl_b32", S(sF2), S(sT1), 8)
        k.op("s_lshl_b32", S(sT1), S(sH), 2)
        k.op("s_add_u32", S(sF2), S(sF2), S(sT1))
        k.op("s_add_u32", S(sF2), S(sF2), FLAG2_OFF)
        k.op("s_and_b32", S(sT1), "s2", 1)
        k.op("s_lshl_b32", S(sF3), S(sT1), 13)
        k.op("s_bfe_u32", S(sT1), "s2", "0x30003")
        k.op("s_lshl_b32", S(sT1), S(sT1), 10)
        k.op("s_add_u32", S(sF3), S(sF3), S(sT1))
        k.op("s_lshr_b32", S(sT1), "s2", 6)
        k.op("s_lshl_b32", S(sT1), S(sT1), 8)
        k.op("s_add_u32", S(sF3), S(sF3), S(sT1))
        k.op("s_and_b32", S(sT1), "s2", 6)
        k.op("s_lshl_b32", S(sT1), S(sT1), 1)
        k.op("s_add_u32", S(sF3), S(sF3), S(sT1))
        k.op("s_add_u32", S(sF3), S(sF3), FLAG_OFF)
        one_lane_store(k, sW, sWS, [sFL, sFA, sF2, sF3], 0, VZ + 4)
        k.op("s_mov_b32", S(sDb), S(92))
        k.op("s_and_b32", S(sDb + 1), S(93), "0xffff")
        k.op("s_mov_b32", S(sDb + 2), 256)
        k.op("s_mov_b32", S(sDb + 3), "0x20000")

    def pf_k2():
        k.op("s_lshr_b32", S(sT1), "s2", 3)
        k.op("s_lshl_b32", S(sT1), S(sT1), 2)
        k.op("s_add_u32", S(sT1), S(sT1), S(sW))
        k.op("s_and_b32", S(sT0), "s2", 7)
        load_srd(k, sP, "wq", 96)
        k.op("v_bfe_u32", V(12), V(vL), 3, 2)
        k.op("v_lshlrev_b32", V(13), 13, V(12))
        k.op("v_lshl_add_u32", V(13), V(p8), 7, V(13))
        k.op("s_lshl_b32", S(57), S(sT1), 15)
        k.op("s_lshl_b32", S(sT2), S(sT0), 10)
        k.op("s_add_u32", S(57), S(57), S(sT2))
        k.op("buffer_load_dword", V(15), V(13), S(sP, 4), S(57), mods="offen", dummy=True); vq.issue()
        load_srd(k, sWm, "w1", 98)
        k.op("v_mul_u32_u24", V(13), 2752, V(12))
        k.op("v_lshl_add_u32", V(13), V(p8), 6, V(13))
        k.op("s_mul_i32", S(57), S(sT1), 4 * 2752)
        k.op("s_mul_i32", S(sT2), S(sT0), 384)
        k.op("s_add_u32", S(57), S(57), S(sT2))
        k.op("buffer_load_dword", V(15), V(13), S(sWm, 4), S(57), mods="offen", dummy=True); vq.issue()
        k.op("s_lshl_b32", S(57), S(sT1), 13)
        pf_code(k, sX, "k2_kernel", "k2_slow_0-k2_kernel", 13, vL, 57, 15); vq.issue()

    for f in dma_w_items(2) + dma_w_items(3): f()
    GB = 2 * 32768 + 16384
    LN2 = 84
    if lnfirst:
        vq.need("ln")
        k.op("s_lshl_b32", S(sT1), S(sW), 5)
        k.op("s_add_u32", S(sT1), S(sT1), GB)
        k.op("v_lshlrev_b32", V(vLd), 7, V(vL))
        k.op("v_add_u32", V(vLd), S(sT1), V(vLd))
        k.op("s_lshl_b32", S(sT1), S(sW), 4)
        k.op("s_add_u32", S(sT1), S(sT1), GB + 8192)
        k.op("v_mov_b32", V(VZ + 2), S(sT1))
        for r, X in enumerate((X0, X1)):
            layernorm(k, X, LN2 + 4, LN2 + 8, LN2 + 16)
            layernorm(k, LN2 + 4, LN2 + 24, LN2 + 8, LN2 + 16, stats_only=True)
            k.op("ds_write_b128", V(vLd), V(LN2 + 4, 4), mods=f"offset:{16*r}")
            k.op("ds_write_b64", V(VZ + 2), V(LN2 + 24, 2), mods=f"offset:{8*r}")
            k.wait(lgkm=0)
        k.op("s_lshl_b32", S(sT1), S(sW), 11)
        k.op("s_add_u32", S(sT1), S(sT1), GB)
        k.op("v_add_u32", V(vLd), S(sT1), V(vL16))
        k.op("v_lshrrev_b32", V(VZ + 3), 3, V(vL))
        k.op("v_lshlrev_b32", V(VZ + 3), 8, V(VZ + 3))
        k.op("v_lshl_add_u32", V(VZ + 3), V(p8), 4, V(VZ + 3))
        k.op("s_lshr_b32", S(sR + 1), "s2", 1)
        k.op("s_lshl_b32", S(sR + 1), S(sR + 1), 14)
        k.op("s_and_b32", S(sT1), "s2", 1)
        k.op("s_lshl_b32", S(sT1), S(sT1), 7)
        k.op("s_add_u32", S(sR + 1), S(sR + 1), S(sT1))
        k.op("s_add_u32", S(sR + 1), S(sR + 1), S(sW4k))
        k.op("s_lshl_b32", S(sR + 2), "s2", 6)
        k.op("s_add_u32", S(sR + 2), S(sR + 2), YF_OFF)
        k.op("v_and_b32", V(VZ + 2), 48, V(vL16))
        k.op("v_add_u32", V(LN2 + 30), GB + 8192, V(VZ + 2))
    def ln_out():
        sc = " sc1" if fuse else ""
        k.op("ds_read_b128", V(LN2, 4), V(vLd)); lq.issue("lo")
        k.op("ds_read_b128", V(LN2 + 4, 4), V(vLd), mods="offset:1024"); lq.issue("lo")
        k.op("ds_read_b128", V(LN2 + 8, 4), V(LN2 + 30)); lq.issue("lo")
        lq.need("lo")
        k.op("buffer_store_dwordx4", V(LN2, 4), V(VZ + 3), S(sWS, 4), S(sR + 1), mods="offen" + sc); vq.issue("lnst")
        k.op("buffer_store_dwordx4", V(LN2 + 4, 4), V(VZ + 3), S(sWS, 4), S(sR + 1), mods="offen offset:2048" + sc); vq.issue("lnst")
        k.op("buffer_store_dwordx4", V(LN2 + 8, 4), V(VZ + 2), S(sWS, 4), S(sR + 2), mods="offen" + sc); vq.issue("lnst")
    k.op("s_cmp_lg_u32", S(sKV), 0)
    k.op("s_cbranch_scc1", "k1_V")
    import copy
    vq0, lq0, n0 = copy.deepcopy((vq.q, vq.ever)), copy.deepcopy((lq.q, lq.ever)), stp.n
    for kv in range(2):
        if kv:
            k.label("k1_V")
            vq.q, vq.ever = copy.deepcopy(vq0); lq.q, lq.ever = copy.deepcopy(lq0); stp.n = n0
        onst = lambda i: vq.issue() if i.kind == "vstore" else None
        q1, q2, lnq = FillQ(k), FillQ(k, on_emit=onst), FillQ(k, on_emit=lambda i: vq.issue("lnst") if i.kind == "vstore" else None)
        flst = {"fl": False}
        if not noln and not lnfirst:
            lnq.add(lambda: vq.need("ln"))
            for r, X in enumerate((X0, X1)):
                ln = Kern("ln")
                layernorm(ln, X, LNR + 4, LNR + 8, LNR + 16)
                layernorm(ln, LNR + 4, LNR + 24, LNR + 8, LNR + 16, stats_only=True)
                ln.op("buffer_store_dwordx4", V(LNR + 4, 4), V(vLd), S(sWS, 4), S(sR + 1), mods=f"offen offset:{16*r}" + (" sc1" if fuse else ""))
                ln.op("buffer_store_dwordx2", V(LNR + 24, 2), V(vLz), S(sWS, 4), S(sR + 2), mods=f"offen offset:{8*r}" + (" sc1" if fuse else ""))
                ln.nop(2)
                lnq.add_kern(ln)
        early2 = fuse and early
        K2VW, K2VW1, sXa, sXb, sLd = 108, 112, 51, 52, 98
        def k2_setup():
            e = Kern("e")
            load_srd(e, 12, "wq", 96); load_srd(e, 16, "w1", 98)
            for i in range(4): e.op("v_mov_b32", V(K2VW + i), V(VW + i))
            e.op("v_lshlrev_b32", V(84), 1, V(g1))
            e.op("v_xor_b32", V(84), V(84), V(p8))
            e.op("v_lshlrev_b32", V(84), 4, V(84))
            e.op("v_lshrrev_b32", V(85), 3, V(vL))
            e.op("v_mul_u32_u24", V(85), 2752, V(85))
            e.op("s_mul_i32", S(38), S(sW), 32 * 2752)
            e.op("s_mul_i32", S(39), S(sH), 96)
            e.op("s_add_u32", S(38), S(38), S(39))
            e.op("v_add_u32", V(85), S(38), V(85))
            e.op("v_add_u32", V(K2VW1), V(85), V(84))
            e.op("v_xor_b32", V(84), 64, V(84))
            e.op("v_add_u32", V(K2VW1 + 1), V(85), V(84))
            e.op("v_add_u32", V(K2VW1 + 1), 8 * 2752 - 1024, V(K2VW1 + 1))
            e.op("v_add_u32", V(K2VW1 + 2), 2 * (8 * 2752 - 1024), V(K2VW1))
            e.op("v_add_u32", V(K2VW1 + 3), 2 * (8 * 2752 - 1024), V(K2VW1 + 1))
            e.op("s_lshr_b32", S(38), "s2", 5)
            e.op("s_lshl_b32", S(38), S(38), 17)
            e.op("s_lshl_b32", S(39), S(sW), 15)
            e.op("s_add_u32", S(sLd), S(38), S(39))
            e.op("s_add_u32", S(sLd + 1), S(sLd), 16384)
            e.op("s_sub_u32", S(sLd + 2), 1920 * 1024, S(38))
            e.op("s_add_u32", S(sLd + 2), S(sLd + 2), S(39))
            e.op("s_add_u32", S(sLd + 3), S(sLd + 2), 16384)
            return e
        def k2_pages():
            it = []
            for pg, (srd, vb, so) in enumerate([(16, K2VW1, 0), (12, K2VW, 0), (12, K2VW, 524288)]):
                def setup(pg=pg, so=so):
                    k.op("s_add_u32", "m0", S(sW4k), pg * 16384)
                    k.op("s_mov_b32", S(41), so)
                it.append(setup)
                for i in range(4):
                    def f(i=i, srd=srd, vb=vb):
                        k.op("buffer_load_dwordx4", V(vb + i), S(srd, 4), S(41), mods=f"offen offset:{i*1024} lds"); vq.issue()
                    it.append(f)
            return it
        def k2_xn(ks):
            it = []
            for rb in range(4):
                def f(rb=rb):
                    k.op("buffer_load_dwordx4", A((ks * 4 + rb) * 4, 4), V(vL16), S(sWS, 4), S(sLd + rb), mods=f"offen offset:{ks*1024} sc1"); vq.issue()
                it.append(f)
            return it
        def acc(st, nb): return ACC + 16 * (st % 4) + 4 * nb
        def pack(e, a, b):
            e.op("v_cvt_pk_bf16_f32", V(a), V(a), V(a + 1))
            e.op("v_cvt_pk_bf16_f32", V(a + 1), V(a + 2), V(a + 3))
            e.op("v_cvt_pk_bf16_f32", V(a + 2), V(b), V(b + 1))
            e.op("v_cvt_pk_bf16_f32", V(a + 3), V(b + 2), V(b + 3))
        def epi(st):
            e = Kern("e")
            if kv == 0:
                e.op("s_lshr_b32", S(sSo2), S(CHA + (st >> 1)), 2)
                e.op("s_add_u32", S(sSo2), S(sSo2), S(sSt))
                if st & 1: e.op("s_add_u32", S(sSo2), S(sSo2), 4096)
                for p in range(2):
                    pack(e, acc(st, 2 * p), acc(st, 2 * p + 1))
                    e.op("buffer_store_dwordx4", V(acc(st, 2 * p), 4), V(vL16), S(sWS, 4), S(sSo2), mods=f"offen offset:{p*1024}{store_mods}")
            elif st & 1:
                e.op("s_lshr_b32", S(sSo2), S(CHA + (st >> 1)), 2)
                e.op("s_add_u32", S(sSo2), S(sSo2), S(sSt))
                for nb in range(4):
                    pack(e, acc(st - 1, nb), acc(st, nb))
                    e.op("buffer_store_dwordx4", V(acc(st - 1, nb), 4), V(vL16), S(sWS, 4), S(sSo2), mods=f"offen offset:{nb*1024}{store_mods}")
            if nostore: e.ins = [i for i in e.ins if i.kind != "vstore"]
            return e
        AF2 = 192
        def afr(n, alt=False): return (AF2 if alt else AF) + (n % 8) * 4
        def rd_act(n, alt=False):
            st, ks = n >> 4, n & 15
            if ks == 0 and st > 1:
                if st == 2: assert len(lq.q) == 0
                vq.need(("A", st), cnt=[8])
                if fuse and len(lnq) == 0: flst["n"] = flst.get("n", 0) + 1
                dofl = fuse and flst.get("n", 0) == fldelay and not flst["fl"]
                if dofl: vq.need("lnst", cnt=[3 if lnfirst else 4])
                k.op("s_barrier")
                if dofl:
                    one_lane_store(k, sW, sWS, [sFL], 1, VZ + 4); flst["fl"] = True
                if fuse and st == 2:
                    lab = k.newlabel("noz")
                    k.op("v_mov_b32", V(VZ + 5), 1)
                    k.op("s_cmp_lg_u32", S(sW), 0); k.op("s_cbranch_scc1", lab)
                    k.op("s_mov_b64", "exec", 1)
                    k.op("buffer_store_byte", V(VZ + 5), V(vLz), S(sDb, 4), "s2", mods="offen sc1")
                    k.op("s_mov_b64", "exec", -1)
                    k.label(lab)
                if fuse and st == 10:
                    k.op("v_lshlrev_b32", V(243), 2, V(vL))
                    k.op("buffer_load_dword", V(242), V(243), S(sDb, 4), 0, mods="offen sc1"); vq.issue("pz")
                if fuse and st == 12:
                    vq.need("pz")
                    spin_until(k, f"k1_sz{kv}", lambda: k.op("buffer_load_dword", V(242), V(243), S(sDb, 4), 0, mods="offen sc1"),
                               lambda: k.op("v_cmp_ne_u32", "vcc", "0x01010101", V(242)), sT1)
                if fuse and st == 14:
                    assert flst["fl"]
                    k.op("s_lshr_b32", S(sT1), "s2", 5)
                    k.op("s_lshl_b32", S(sT1), S(sT1), 6)
                    k.op("s_sub_u32", S(sT2), 960, S(sT1))
                    k.op("v_mov_b32", V(240), S(sT1))
                    k.op("v_mov_b32", V(241), S(sT2))
                    k.op("v_cmp_eq_u32", "vcc", 0, V(g1))
                    k.op("s_mov_b32", S(sFL), FL_OFF)
                    k.nop(1)
                    k.op("v_cndmask_b32", V(240), V(241), V(240), "vcc")
                    k.op("v_lshl_add_u32", V(240), V(l15), 2, V(240))
                    k.op("buffer_load_dword", V(241), V(240), S(sWS, 4), S(sFL), mods="offen sc1"); vq.issue("pp")
                if fuse and st == 15:
                    vq.need("pp")
                    spin_until(k, f"k1_sp{kv}", lambda: k.op("buffer_load_dword", V(241), V(240), S(sWS, 4), S(sFL), mods="offen sc1"),
                               lambda: k.op("v_cmp_ne_u32", "vcc", 1, V(241)), sT1)
                q1.flush()
                if early2 and st == 14: q1.add_kern(k2_setup())
                if early2 and st == 15:
                    for f in k2_pages(): q1.add(f)
                if st == 2:
                    for f in dma_a_items(4): q1.add(f)
                if st >= 3 and st + 2 < 16:
                    pass
                if st >= 2 and st + 3 < 16:
                    for f in dma_a_items(st + 3): q1.add(f)
            off = aslot(st)
            wn = off // 65536
            k.op("ds_read_b128", V(afr(n, alt), 4), V(AAr + 4 * wn + (ks & 3)), mods=f"offset:{off - wn*65536 + (ks>>2)*256}")
            lq.issue(("a", n))
        def mf(st, ks, nb, n, alt=False):
            d = V(acc(st, nb), 4); wf = A((ks * 4 + nb) * 4, 4); af = V(afr(n, alt), 4)
            if kv == 0: k.op("v_mfma_f32_16x16x32_bf16", d, wf, af, "0" if ks == 0 else d)
            else: k.op("v_mfma_f32_16x16x32_bf16", d, af, wf, "0" if ks == 0 else d)
        def wread_items(s):
            it = []
            for ks in (2 * s, 2 * s + 1):
                for nb in range(4):
                    for i in range(2):
                        def f(ks=ks, nb=nb, i=i):
                            off = wslot(s) + (ks & 1) * 8192 + i * 1024
                            wn = off // 65536
                            k.op("ds_read_b64_tr_b16", A((ks * 4 + nb) * 4 + 2 * i, 2), V(TA + 4 * wn + nb), mods=f"offset:{off - wn*65536}")
                            lq.issue(("w", ks))
                        it.append(f)
                it.append(lambda ks=ks: rd_act(ks))
                it.append(lambda ks=ks: rd_act(16 + ks, True))
            return it
        qr = FillQ(k)
        for s in range(9):
            if s < 8:
                vq.need(("W", s), ("A", 0), ("A", 1), cnt=[4, 8, 8])
                k.op("s_barrier")
                if s == 0: stp.stamp()
                if s == 0 and lnfirst: ln_out()
                for f in wread_items(s): qr.add(f)
                if s + 4 < 8:
                    for f in dma_w_items(s + 4): q1.add(f)
                if s == 5:
                    for f in dma_a_items(2): q1.add(f)
                if s == 7:
                    for f in dma_a_items(3): q1.add(f)
            if s == 0:
                qr.flush(); q1.flush(); continue
            for ks in (2 * s - 2, 2 * s - 1):
                lq.need(("w", ks), ("a", ks), ("a", 16 + ks), cnt=[8, 1, 1])
                if ks == 15:
                    for n in range(32, 32 + D): qr.add(lambda n=n: rd_act(n))
                for alt in range(2):
                    for nb in range(4):
                        mf(alt, ks, nb, 16 * alt + ks, bool(alt))
                        qr.emit(2)
                        if len(qr) == 0: q1.emit(1)
            qr.flush()
            if s < 8: q1.flush()
        stp.stamp()
        nxt = 32 + D
        for n in range(32, 256):
            st, ks = n >> 4, n & 15
            if n in (64, 128, 192): stp.stamp()
            if n == 34: q2.add_kern(epi(0))
            if ks == 2: q2.add_kern(epi(st - 1))
            if pf2 and n == pf2at * 16 + 8: pf_k2()
            if early2 and st == 15 and 2 <= ks < 6:
                for f in k2_xn(ks - 2): q1.add(f)
            if n % 2 == 0: lq.need(("a", n), ("a", n + 1), cnt=[1, 1])
            for nb in range(4):
                mf(st, ks, nb, n)
                cap = 1
                if nb == 0 and nxt < 256:
                    rd_act(nxt); nxt += 1; cap = 0
                cap -= q1.emit(cap)
                cap -= q2.emit(cap)
                if st >= LN0: cap -= lnq.emit(cap + (1 if fuse else 0))
        stp.stamp()
        q1.flush(); q2.flush(); lnq.flush()
        k.nop(8)
        q2.add_kern(epi(15)); q2.flush()
        if pf2 and pf2at >= 16: pf_k2()
        if stamps:
            if not fuse: k.wait(vm=0)
            stp.stamp()
            stp.flush(sWS, sW, 4)
        if fuse:
            k.wait(lgkm=0)
            k.op("s_barrier")
            k.op("s_mov_b32", "s3", S(sFA))
            k.raw("  s_branch k2_kernel")
        k.op("s_endpgm")
    k.label("k1_end")
    k.op("s_endpgm")
    return k

if __name__ == "__main__":
    k = build_k1()
    for e in k.check_hazards(): print(e)
    for e in k.check_waits(): print(e)
    print(k.maxregs(), len(k.ins))
```

```python
from common import *
LDS = 163840
PART_OFF = 64 << 20
NKS = 43
def build_k3(stamps=False, WIN=0, NR=5, q2rate=2, nodma=False, nomma=False, fused=False, pfself=True, psleep=8, dbgout=None):
    k = Kern("k3_kernel")
    vq, lq = Q(k, "vmcnt", 63), Q(k, "lgkmcnt", 15)
    stp = Stamps(k, stamps, 62, 2, lq, maxn=8)
    sWS, sWm, sX, sO, sB2, sDb = 8, 12, 16, 20, 24, 84
    sW, sMt, sNt, sT0, sT1, sT2 = 28, 29, 30, 31, 32, 33
    sAo, sS, sWo, sCnt, sMa, sMw = 34, 35, 36, 37, 38, 39
    sRot, sSt, sAc, sWc, sPw, sPr, sTile = 52, 53, 54, 55, 56, 57, 58
    vL, vL16 = 1, 2
    VA, VW = 4, 6
    TA = 8
    AA = 24
    g, l15, r_, cc, g1, t0, t1 = 26, 27, 28, 29, 30, 31, 3
    vOo = 32
    XV, BV = 34, 42
    ACC = 52
    AF = 116
    WF = 148
    k.op("s_cmp_ge_u32", "s2", 256)
    k.op("s_cbranch_scc1", "k3_end")
    if pfself:
        pf_self(k, "k3_end", vt=188); vq.issue()
    k.op("s_load_dwordx2", S(40, 2), S(0, 2), KA["x"])
    k.op("s_load_dwordx2", S(42, 2), S(0, 2), KA["wo"])
    k.op("s_load_dwordx4", S(44, 4), S(0, 2), KA["w2"])
    k.op("s_load_dwordx4", S(48, 4), S(0, 2), KA["out"])
    k.op("s_load_dwordx2", S(88, 2), S(0, 2), KA["ws"])
    k.op("v_and_b32", V(vL), 63, "v0")
    k.op("v_lshrrev_b32", V(t0), 6, "v0")
    k.op("s_and_b32", S(sT0), "s2", 7)
    k.op("v_readfirstlane_b32", S(sW), V(t0))
    k.op("s_lshr_b32", S(sS), S(sT0), 1)
    k.op("s_and_b32", S(sT0), S(sT0), 1)
    k.op("s_lshr_b32", S(sT1), "s2", 3)
    k.op("s_and_b32", S(sT2), S(sT1), 7)
    k.op("s_lshl_b32", S(sMt), S(sT0), 3)
    k.op("s_add_u32", S(sMt), S(sMt), S(sT2))
    k.op("s_lshr_b32", S(sNt), S(sT1), 3)
    k.op("s_add_u32", S(sRot), S(sMt), S(sNt))
    k.op("s_and_b32", S(sRot), S(sRot), 3)
    k.op("s_lshl_b32", S(sTile), S(sMt), 2)
    k.op("s_add_u32", S(sTile), S(sTile), S(sNt))
    k.op("v_lshlrev_b32", V(vL16), 4, V(vL))
    k.op("v_lshrrev_b32", V(g), 4, V(vL))
    k.op("v_and_b32", V(l15), 15, V(vL))
    k.op("v_bfe_u32", V(r_), V(vL), 2, 2)
    k.op("v_and_b32", V(cc), 3, V(vL))
    k.op("v_and_b32", V(g1), 1, V(g))
    k.op("s_mul_i32", S(sWo), S(sS), NKS)
    k.op("s_mov_b32", S(sT0), 44032)
    k.op("s_mov_b32", S(sAo), HF_OFF)
    k.op("s_cmp_lt_u32", S(sS), 3)
    k.op("s_cselect_b32", S(sT0), 131072, S(sT0))
    k.op("s_cselect_b32", S(sAo), CTX_OFF, S(sAo))
    k.op("s_cselect_b32", S(sWo), S(sWo), 0)
    k.op("s_cselect_b64", "vcc", "-1", "0")
    k.op("s_cmp_eq_u32", S(sS), 2)
    k.op("s_cselect_b32", S(sCnt), 41, 42)
    k.op("s_lshl_b32", S(sT1), S(sWo), 10)
    k.op("s_add_u32", S(sAo), S(sAo), S(sT1))
    k.op("s_lshl_b32", S(sWo), S(sWo), 15)
    k.op("s_lshl_b32", S(sT2), S(sMt), 3)
    k.op("s_lshl_b32", S(sT1), S(sW), 1)
    k.op("s_add_u32", S(sT2), S(sT2), S(sT1))
    k.op("s_mul_i32", S(sT2), S(sT2), S(sT0))
    k.op("s_add_u32", S(sAo), S(sAo), S(sT2))
    k.op("v_mov_b32", V(VA), V(vL16))
    k.op("s_sub_u32", S(sT0), S(sT0), 1024)
    k.op("v_add_u32", V(VA + 1), S(sT0), V(vL16))
    k.op("v_lshlrev_b32", V(t0), 1, V(g))
    k.op("v_xor_b32", V(t0), V(t0), V(l15))
    k.op("v_lshlrev_b32", V(t0), 4, V(t0))
    k.op("v_lshl_add_u32", V(t0), V(g), 10, V(t0))
    k.op("s_lshl_b32", S(sT1), S(sNt), 8)
    k.op("s_lshl_b32", S(sT2), S(sW), 13)
    k.op("s_add_u32", S(sT1), S(sT1), S(sT2))
    k.op("v_add_u32", V(VW), S(sT1), V(t0))
    k.op("s_and_b32", S(sT1), S(sW), 1)
    k.op("s_lshl_b32", S(sT1), S(sT1), 7)
    k.op("s_cmp_lt_u32", S(sS), 3)
    k.op("s_cselect_b32", S(sT2), 128, S(sT1))
    k.op("s_cselect_b32", S(sT1), 0, S(sT1))
    k.op("v_xor_b32", V(VW + 1), S(sT2), V(VW))
    k.op("v_xor_b32", V(VW), S(sT1), V(VW))
    k.op("v_add_u32", V(VW + 1), 4096 - 1024, V(VW + 1))
    k.op("s_lshl_b32", S(sMa), S(sW), 11)
    k.op("s_add_u32", S(sMw), S(sMa), 8192)
    k.wait(lgkm=0)
    stp.stamp()
    k.op("s_mov_b32", S(sWS), S(88))
    k.op("s_and_b32", S(sWS + 1), S(89), "0xffff")
    k.op("s_mov_b32", S(sWS + 2), hex(80 << 20))
    k.op("s_mov_b32", S(sWS + 3), "0x20000")
    k.op("s_cmp_lt_u32", S(sS), 3)
    k.op("s_cselect_b32", S(sWm), S(42), S(44))
    k.op("s_cselect_b32", S(sWm + 1), S(43), S(45))
    k.op("s_mov_b32", S(sWm + 2), hex(SZ["w2"]))
    k.op("s_cselect_b32", S(sWm + 2), hex(SZ["wo"]), S(sWm + 2))
    k.op("s_and_b32", S(sWm + 1), S(sWm + 1), "0xffff")
    k.op("s_mov_b32", S(sWm + 3), "0x20000")
    NST = 22
    def nks_of(st): return 2 if st < 21 else 1
    def issue_items(st, part="both"):
        it = []
        sl = (st % NR) * 32768
        def addr():
            if st < 21:
                if WIN == 0:
                    skew_stage(k, sSt, sRot, st, 21, sWc)
                elif st < 20:
                    k.op("s_add_u32", S(sSt), S(sRot), st % WIN)
                    k.op("s_and_b32", S(sSt), S(sSt), WIN - 1)
                    k.op("s_add_u32", S(sSt), S(sSt), st // WIN * WIN)
                else:
                    k.op("s_mov_b32", S(sSt), 20)
                k.op("s_lshl_b32", S(sWc), S(sSt), 16)
                k.op("s_add_u32", S(sWc), S(sWc), S(sWo))
                k.op("s_lshl_b32", S(sAc), S(sSt), 11)
                k.op("s_add_u32", S(sAc), S(sAc), S(sAo))
            else:
                k.op("s_add_u32", S(sWc), S(sWo), st * 65536)
                k.op("s_lshl_b32", S(sAc), S(sCnt), 10)
                k.op("s_add_u32", S(sAc), S(sAc), S(sAo))
        it.append(addr)
        for u in range(nks_of(st)):
            if part != "a":
                it.append(lambda u=u: k.op("s_add_u32", "m0", S(sMw), sl + u * 16384))
                if u: it.append(lambda: k.op("s_add_u32", S(sWc), S(sWc), 32768))
                else: it.append(lambda: k.op("s_nop", 0))
                for j in range(2):
                    def w(j=j):
                        k.op("buffer_load_dwordx4", V(VW + j), S(sWm, 4), S(sWc), mods=f"offen offset:{j*1024} lds"); vq.issue(("s", st))
                    it.append(w)
            if part != "w":
                it.append(lambda u=u: k.op("s_add_u32", "m0", S(sMa), sl + u * 16384))
                if u: it.append(lambda: k.op("s_add_u32", S(sAc), S(sAc), 1024))
                else: it.append(lambda: k.op("s_nop", 0))
                for j in range(2):
                    def a(j=j):
                        k.op("buffer_load_dwordx4", V(VA + j), S(sWS, 4), S(sAc), mods=f"offen offset:{j*1024}{' sc1' if fused else ''} lds"); vq.issue(("s", st))
                    it.append(a)
        return it
    if not fused:
        for st in range(NR - 2):
            for f in issue_items(st): f()
    load_srd(k, sX, "x", 40); load_srd(k, sO, "out", 48); load_srd(k, sB2, "b2", 46)
    k.op("s_mov_b32", S(sDb), S(50))
    k.op("s_and_b32", S(sDb + 1), S(51), "0xffff")
    k.op("s_mov_b32", S(sDb + 2), 256)
    k.op("s_mov_b32", S(sDb + 3), "0x20000")
    k.op("v_lshlrev_b32", V(t0), 2, V(g))
    k.op("v_lshlrev_b32", V(t1), 3, V(g))
    k.op("v_cndmask_b32", V(t0), V(t1), V(t0), "vcc")
    k.op("v_add_u32", V(t0), V(t0), V(r_))
    k.op("v_lshlrev_b32", V(t0), 8, V(t0))
    k.op("v_lshl_add_u32", V(t0), V(cc), 3, V(t0))
    k.op("v_add_u32", V(t0), 8192, V(t0))
    k.op("v_lshl_or_b32", V(t1), V(g1), 2, V(r_))
    k.op("s_and_b32", S(sT1), S(sW), 1)
    k.op("s_lshl_b32", S(sT1), S(sT1), 2)
    k.op("v_xor_b32", V(t1), S(sT1), V(t1))
    k.op("s_mov_b32", S(sT0), 1024)
    k.op("s_cmp_lt_u32", S(sS), 3)
    k.op("s_cselect_b32", S(sT0), 4096, S(sT0))
    for nb in range(4):
        k.op("v_xor_b32", V(33), nb, V(t1))
        k.op("v_lshl_add_u32", V(TA + 2 * nb), V(33), 5, V(t0))
        k.op("v_add_u32", V(TA + 2 * nb + 1), S(sT0), V(TA + 2 * nb))
    for i in range(8): k.op("v_add_u32", V(TA + 8 + i), 65536, V(TA + i))
    for i in range(8): k.op("v_add_u32", V(180 + i), 131072, V(TA + i))
    k.op("s_lshr_b32", S(sT1), S(sW), 1)
    k.op("s_lshl_b32", S(sT1), S(sT1), 12)
    k.op("v_add_u32", V(AA), S(sT1), V(vL16))
    k.op("v_add_u32", V(AA + 1), 65536, V(AA))
    k.op("v_add_u32", V(50), 131072, V(AA))
    k.op("s_lshl_b32", S(sT0), S(sMt), 17)
    k.op("s_lshr_b32", S(sT1), S(sW), 1)
    k.op("s_lshl_b32", S(sT1), S(sT1), 16)
    k.op("s_add_u32", S(sT0), S(sT0), S(sT1))
    k.op("s_lshl_b32", S(sT1), S(sS), 14)
    k.op("s_add_u32", S(sT0), S(sT0), S(sT1))
    k.op("s_lshl_b32", S(sT1), S(sNt), 8)
    k.op("s_and_b32", S(sT2), S(sW), 1)
    k.op("s_lshl_b32", S(sT2), S(sT2), 7)
    k.op("s_add_u32", S(sT1), S(sT1), S(sT2))
    k.op("s_add_u32", S(sT0), S(sT0), S(sT1))
    k.op("v_lshlrev_b32", V(vOo), 10, V(l15))
    k.op("v_lshl_add_u32", V(vOo), V(g), 3, V(vOo))
    k.op("v_add_u32", V(vOo), S(sT0), V(vOo))
    k.op("v_lshlrev_b32", V(33), 3, V(g))
    def xb_loads():
        for u in range(4):
            k.op("buffer_load_dwordx2", V(XV + 2 * u, 2), V(vOo), S(sX, 4), 0, mods=f"offen offset:{32*u}"); vq.issue("xb")
            k.op("buffer_load_dwordx2", V(BV + 2 * u, 2), V(33), S(sB2, 4), S(59), mods=f"offen offset:{32*u}"); vq.issue("xb")
    k.op("s_mov_b32", S(59), S(sT1))
    if not fused: xb_loads()
    k.op("s_lshl_b32", S(sPr), S(sTile), 17)
    k.op("s_lshl_b32", S(sT1), S(sW), 13)
    k.op("s_add_u32", S(sPr), S(sPr), S(sT1))
    k.op("s_add_u32", S(sPr), S(sPr), PART_OFF)
    k.op("s_lshl_b32", S(sT1), S(sS), 15)
    k.op("s_add_u32", S(sPw), S(sPr), S(sT1))
    k.op("s_lshl_b32", S(sT1), S(sS), 11)
    k.op("s_add_u32", S(sPr), S(sPr), S(sT1))
    if fused:
        k.wait(vm=0)
        k.op("s_barrier")
        lab = k.newlabel("noflag")
        k.op("s_cmp_lg_u32", S(sW), 0); k.op("s_cbranch_scc1", lab)
        k.op("v_mov_b32", V(ACC), 0)
        k.op("v_mov_b32", V(ACC + 1), 1)
        k.op("s_mov_b64", "exec", 1)
        k.op("buffer_store_dword", V(ACC + 1), V(ACC), S(sWS, 4), S(96), mods="offen sc1")
        k.op("s_mov_b64", "exec", -1)
        k.op("buffer_inv", mods="sc1")
        k.label(lab)
        stp.stamp()
        for st in range(NR - 2):
            for f in issue_items(st, "w"): f()
        xb_loads()
        lab = k.newlabel("nopoll")
        k.op("s_cmp_lg_u32", S(sW), 0); k.op("s_cbranch_scc1", lab)
        k.op("s_sub_u32", S(sT1), 15, S(sMt))
        k.op("s_min_u32", S(sT0), S(sMt), S(sT1))
        k.op("s_lshl_b32", S(sT0), S(sT0), 8)
        k.op("s_add_u32", S(sT0), S(sT0), FLAG2_OFF)
        k.op("s_mov_b32", S(92), "0x1fffffff")
        k.op("s_cmp_eq_u32", S(sS), 0); k.op("s_cselect_b32", S(92), "0x7ff", S(92))
        k.op("s_cmp_eq_u32", S(sS), 1); k.op("s_cselect_b32", S(92), "0x3ffc00", S(92))
        k.op("s_cmp_eq_u32", S(sS), 2); k.op("s_cselect_b32", S(92), "0xffe00000", S(92))
        k.op("s_mov_b32", S(93), 0)
        k.op("v_lshlrev_b32", V(t0), 2, V(vL))
        k.op("s_mov_b32", S(sT1), 0)
        k.op("s_mov_b64", "exec", S(92, 2))
        k.label("k3_poll2")
        k.op("buffer_load_dword", V(t1), V(t0), S(sWS, 4), S(sT0), mods="offen sc1")
        k.op("s_add_u32", S(sT1), S(sT1), 1)
        k.wait(vm=0)
        k.op("v_cmp_ne_u32", "vcc", 1, V(t1))
        k.op("s_cmp_gt_u32", S(sT1), SPIN_MAX)
        k.op("s_cbranch_scc1", "k3_p2done")
        k.op("s_cbranch_vccz", "k3_p2done")
        k.op("s_sleep", psleep)
        k.op("s_branch", "k3_poll2")
        k.label("k3_p2done")
        k.op("s_mov_b64", "exec", -1)
        k.label(lab)
        k.op("s_barrier")
        stp.stamp()
        for st in range(NR - 2):
            for f in issue_items(st, "a"): f()
    steps = [(st, u) for st in range(NST) for u in range(nks_of(st))]
    q = FillQ(k)
    def rd_items(i):
        st, u = steps[i]
        off = (st % NR) * 32768 + u * 16384
        hi = off // 65536
        off -= 65536 * hi
        it = []
        if u == 0:
            def sw():
                vq.need(("s", st), cnt=None if nodma else [4 * nks_of(st)])
                k.op("s_barrier")
                q2.flush()
                if st + NR - 2 < NST and not nodma:
                    for f in issue_items(st + NR - 2): q2.add(f)
            it.append(sw)
        for x in range(4):
            def fa(rb=x):
                k.op("ds_read_b128", V(AF + (i % 2) * 16 + rb * 4, 4), V(AA + hi if hi < 2 else 50), mods=f"offset:{off + rb*1024}")
                lq.issue(("a", i))
            def fw(nb=x, j=0):
                k.op("ds_read_b64_tr_b16", V(WF + (i % 2) * 16 + nb * 4 + 2 * j, 2), V((TA + 8 * hi if hi < 2 else 180) + 2 * nb + j), mods=f"offset:{off}")
                lq.issue(("r", i, nb))
            if not nomma: it.append(fa)
        for nb in range(4):
            for j in range(2):
                if not nomma: it.append(lambda nb=nb, j=j: fw(nb, j))
        return it
    q2 = FillQ(k)
    for f in rd_items(0): f()
    stp.stamp()
    for i in range(len(steps)):
        if i + 1 < len(steps):
            for f in rd_items(i + 1): q.add(f)
        n = 0
        for nb in range(4):
            lq.need(("r", i, nb), ("a", i), cnt=None if nomma else [2, 4])
            for rb in range(4):
                d = V(ACC + 4 * (rb * 4 + nb), 4)
                if not nomma: k.op("v_mfma_f32_16x16x32_bf16", d, V(WF + (i % 2) * 16 + nb * 4, 4), V(AF + (i % 2) * 16 + rb * 4, 4), "0" if i == 0 else d)
                q.emit(1)
                if n % q2rate == q2rate - 1 or len(q) == 0: q2.emit(1)
                n += 1
        q.flush()
    q2.flush()
    stp.stamp()
    OWN = WF
    k.nop(8)
    for rb in range(4):
        l1, l2 = k.newlabel("own"), k.newlabel("nxt")
        a0 = ACC + 16 * rb
        k.op("s_cmp_eq_u32", S(sS), rb)
        k.op("s_cbranch_scc1", l1)
        for i in range(8): k.op("v_cvt_pk_bf16_f32", V(a0 + i), V(a0 + 2 * i), V(a0 + 2 * i + 1))
        if rb >= 2: k.op("s_add_u32", S(sT0), S(sPw), 4096)
        for p in range(2):
            k.op("buffer_store_dwordx4", V(a0 + 4 * p, 4), V(vL16), S(sWS, 4), S(sPw if rb < 2 else sT0), mods=f"offen offset:{(rb&1)*2048 + p*1024} sc1")
        k.op("s_branch", l2)
        k.label(l1)
        for i in range(16): k.op("v_mov_b32", V(OWN + i), V(a0 + i))
        k.label(l2)
    k.wait(vm=0)
    k.op("s_barrier")
    stp.stamp()
    k.op("s_cmp_lg_u32", S(sW), 0)
    k.op("s_cbranch_scc1", "k3_wait")
    k.op("s_lshl_b32", S(sT0), S(sTile), 8)
    k.op("s_add_u32", S(sT0), S(sT0), FLAG_OFF)
    k.op("s_lshl_b32", S(sT2), S(sS), 2)
    k.op("v_mov_b32", V(t0), 0)
    k.op("v_mov_b32", V(t1), 1)
    k.op("v_mov_b32", V(4), S(sT2))
    k.op("s_mov_b64", S(90, 2), "exec")
    k.op("s_mov_b64", "exec", 1)
    k.op("buffer_store_dword", V(t1), V(4), S(sWS, 4), S(sT0), mods="offen sc1")
    k.op("s_mov_b32", S(sT1), 0)
    k.label("k3_poll")
    k.op("buffer_load_dwordx4", V(4, 4), V(t0), S(sWS, 4), S(sT0), mods="offen sc1")
    k.op("s_add_u32", S(sT1), S(sT1), 1)
    k.wait(vm=0)
    k.op("v_and_b32", V(4), V(4), V(5))
    k.op("v_and_b32", V(6), V(6), V(7))
    k.op("v_and_b32", V(4), V(4), V(6))
    k.op("s_cmp_gt_u32", S(sT1), SPIN_MAX)
    k.op("v_readfirstlane_b32", S(sT2), V(4))
    k.op("s_cbranch_scc1", "k3_pdone")
    k.op("s_cmp_lg_u32", S(sT2), 1)
    k.op("s_cbranch_scc1", "k3_poll")
    k.label("k3_pdone")
    k.op("s_mov_b64", "exec", S(90, 2))
    k.label("k3_wait")
    k.op("s_barrier")
    stp.stamp()
    R = 8
    R = AF
    for src in range(4):
        l1 = k.newlabel("skp")
        k.op("s_cmp_eq_u32", S(sS), src)
        k.op("s_cbranch_scc1", l1)
        for p in range(2):
            k.op("buffer_load_dwordx4", V(R + src * 8 + 4 * p, 4), V(vL16), S(sWS, 4), S(sPr), mods=f"offen offset:{p*1024} sc1")
        k.label(l1)
        k.op("s_add_u32", S(sPr), S(sPr), 32768)
    def rb2(a):
        k.op("v_cvt_pk_bf16_f32", V(33), V(a), V(a + 1))
        k.op("v_lshlrev_b32", V(a), 16, V(33))
        k.op("v_and_b32", V(a + 1), "0xffff0000", V(33))
    def unpack(dst, src):
        k.op("v_lshlrev_b32", V(dst), 16, V(src))
        k.op("v_and_b32", V(dst + 1), "0xffff0000", V(src))
    XF, BF = 8, 164
    for i in range(8):
        unpack(XF + 2 * i, XV + i); unpack(BF + 2 * i, BV + i)
    k.wait(vm=0)
    F = ACC
    for src in range(4):
        l1, l2 = k.newlabel("own"), k.newlabel("nxt")
        k.op("s_cmp_eq_u32", S(sS), src)
        k.op("s_cbranch_scc1", l1)
        for i in range(8): unpack(F + 16 * src + 2 * i, R + src * 8 + i)
        k.op("s_branch", l2)
        k.label(l1)
        for i in range(16): k.op("v_mov_b32", V(F + 16 * src + i), V(OWN + i))
        k.label(l2)
    for i in range(16):
        k.op("v_add_f32", V(F + i), V(F + i), V(F + 16 + i))
        k.op("v_add_f32", V(F + i), V(F + i), V(F + 32 + i))
    for h in range(8):
        rb2(F + 2 * h); rb2(F + 48 + 2 * h)
    for i in range(16):
        k.op("v_add_f32", V(F + i), V(F + i), V(XF + i))
        k.op("v_add_f32", V(F + 48 + i), V(F + 48 + i), V(BF + i))
    for h in range(8):
        rb2(F + 2 * h); rb2(F + 48 + 2 * h)
    for i in range(16):
        k.op("v_add_f32", V(F + i), V(F + i), V(F + 48 + i))
    for nb in range(4):
        k.op("v_cvt_pk_bf16_f32", V(F + 4 * nb), V(F + 4 * nb), V(F + 4 * nb + 1))
        k.op("v_cvt_pk_bf16_f32", V(F + 4 * nb + 1), V(F + 4 * nb + 2), V(F + 4 * nb + 3))
        k.op("buffer_store_dwordx2", V(F + 4 * nb, 2), V(vOo), S(sO, 4), 0, mods=f"offen offset:{32*nb}")
    if stamps:
        k.wait(vm=0)
        stp.stamp()
        stp.flush(sWS, sW, 3)
        if dbgout is not None:
            k.wait(vm=0)
            lab = k.newlabel("nodbg")
            k.op("s_cmp_lg_u32", "s2", dbgout); k.op("s_cbranch_scc1", lab)
            k.op("s_cmp_lg_u32", S(sW), 0); k.op("s_cbranch_scc1", lab)
            sel = [(0, 0), (0, 2), (0, 3), (0, 5), (0, 8), (1, 1), (1, 2), (1, 4), (1, 5), (1, 6), (2, 1), (2, 2), (2, 4), (2, 5), (2, 6), (2, 7)]
            k.op("v_mov_b32", V(5), 0)
            for i, (ki, si) in enumerate(sel):
                k.op("s_mov_b32", S(sT0), STAMP_OFF + ki * (1 << 18) + dbgout * 1024 + si * 4)
                k.op("buffer_load_dword", V(8 + i), V(5), S(sWS, 4), S(sT0), mods="offen sc1")
            k.wait(vm=0)
            for i in range(16):
                k.op("v_sub_u32", V(30), V(8 + i), V(8))
                k.op("buffer_store_dword", V(30), V(5), S(sDb, 4), 0, mods=f"offen offset:{4*i}")
                k.nop(1)
            k.label(lab)
    k.label("k3_end")
    k.op("s_endpgm")
    return k

if __name__ == "__main__":
    k = build_k3()
    for e in k.check_hazards(): print(e)
    for e in k.check_waits(): print(e)
    print(k.maxregs(), len(k.ins))
```

```python
from common import *
from k1_v1 import layernorm

def build_k1(store_mods="", stamps=False, prefetch=True, twice=False, noln=False, pf2=True, pf2at=13, D=6, LN0=2, nostore=False, skew=True, pfself=True, fuse=False, fldelay=3, early=True, lnfirst=True, zat=3, spread0=True, q1cap=13, xno=''):
    k = Kern("k1_kernel")
    vq, lq = Q(k, "vmcnt", 63), Q(k, "lgkmcnt", 15)
    stp = Stamps(k, stamps, 60, 0, lq, maxn=10)
    sWS, sC, sWm, sP, sX = 8, 12, 16, 20, 24
    sT0, sT1, sT2, sKV, sW, sH, sRq = 28, 29, 30, 31, 32, 33, 35
    sSo, sSo2, sAo, sSt, sW8k, sR, sW4k = 36, 37, 42, 43, 44, 45, 48
    vL, vL16 = 1, 2
    TA = 16
    VA = 28
    VW = 36
    AAr = 40
    AF = 52
    ACC = 128
    LNR = 192
    X0, X1 = 224, 228
    VZ = 232
    g, l15, r_, cc, g1, t0, t1, p8 = 4, 5, 6, 7, 8, 9, 10, 11
    k.op("s_cmp_ge_u32", "s2", 256)
    k.op("s_cbranch_scc1", "k1_end")
    if pfself:
        pf_self(k, "k1_end", vt=14); vq.issue()
    k.op("s_load_dwordx4", S(84, 4), S(0, 2), KA["x"])
    k.op("s_load_dwordx4", S(88, 4), S(0, 2), KA["wuk"])
    k.op("s_load_dwordx4", S(92, 4), S(0, 2), KA["dbg"])
    k.op("s_load_dwordx2", S(96, 2), S(0, 2), KA["wq"])
    k.op("s_load_dwordx2", S(98, 2), S(0, 2), KA["w1"])
    k.op("v_and_b32", V(vL), 63, "v0")
    k.op("v_lshrrev_b32", V(t0), 6, "v0")
    k.op("s_and_b32", S(sT0), "s2", 7)
    k.op("v_readfirstlane_b32", S(sW), V(t0))
    k.op("s_lshr_b32", S(sT1), "s2", 3)
    k.op("s_and_b32", S(sT2), S(sT1), 3)
    k.op("s_lshl_b32", S(sH), S(sT0), 2)
    k.op("s_add_u32", S(sH), S(sH), S(sT2))
    k.op("s_bfe_u32", S(sKV), S(sT1), "0x10002")
    k.op("s_lshr_b32", S(sRq), S(sT1), 3)
    k.op("v_lshlrev_b32", V(vL16), 4, V(vL))
    k.op("v_lshrrev_b32", V(g), 4, V(vL))
    k.op("v_and_b32", V(l15), 15, V(vL))
    k.op("v_bfe_u32", V(r_), V(vL), 2, 2)
    k.op("v_and_b32", V(cc), 3, V(vL))
    k.op("v_and_b32", V(g1), 1, V(g))
    k.op("v_and_b32", V(p8), 7, V(vL))
    k.op("s_lshl_b32", S(sW4k), S(sW), 12)
    k.op("s_lshl_b32", S(sW8k), S(sW), 13)
    k.op("v_lshlrev_b32", V(t0), 1, V(g))
    k.op("v_xor_b32", V(t0), V(t0), V(l15))
    k.op("v_lshlrev_b32", V(t0), 4, V(t0))
    k.op("v_lshl_add_u32", V(t0), V(g), 13, V(t0))
    k.op("s_lshl_b32", S(sT0), S(sW), 17)
    k.op("s_lshl_b32", S(sT1), S(sH), 8)
    k.op("s_add_u32", S(sT0), S(sT0), S(sT1))
    k.op("v_add_u32", V(VW), S(sT0), V(t0))
    k.op("v_add_u32", V(VW + 1), 32768 - 1024, V(VW))
    k.op("v_xor_b32", V(VW + 2), 128, V(VW))
    k.op("v_add_u32", V(VW + 2), 2 * (32768 - 1024), V(VW + 2))
    k.op("v_add_u32", V(VW + 3), 32768 - 1024, V(VW + 2))
    k.op("s_and_b32", S(sT0), S(sW), 1)
    k.op("s_lshl_b32", S(sT0), S(sT0), 7)
    k.op("v_xor_b32", V(t0), S(sT0), V(vL16))
    for i in range(8): k.op("v_xor_b32", V(VA + i), i * 16, V(t0))
    k.op("s_lshl_b32", S(sAo), S(sRq), 19)
    k.op("s_lshr_b32", S(sT1), S(sW), 1)
    k.op("s_lshl_b32", S(sT1), S(sT1), 15)
    k.op("s_add_u32", S(sAo), S(sAo), S(sT1))
    k.op("s_lshl_b32", S(sT0), S(sT0), 6)
    k.op("s_add_u32", S(sAo), S(sAo), S(sT0))
    k.op("s_lshl_b32", S(sR), "s2", 3)
    k.op("s_lshl_b32", S(sT1), S(sW), 1)
    k.op("s_add_u32", S(sR), S(sR), S(sT1))
    k.op("s_lshr_b32", S(sR + 1), S(sR), 4)
    k.op("s_lshl_b32", S(sR + 1), S(sR + 1), 14)
    k.op("s_and_b32", S(sR + 2), S(sR), 15)
    k.op("s_lshl_b32", S(sR + 2), S(sR + 2), 4)
    k.op("s_add_u32", S(sR + 1), S(sR + 1), S(sR + 2))
    k.op("s_lshl_b32", S(sR + 2), S(sR), 3)
    k.op("s_add_u32", S(sR + 2), S(sR + 2), YF_OFF)
    k.op("s_lshl_b32", S(sR), S(sR), 10)
    k.wait(lgkm=0)
    stp.stamp()
    load_srd(k, sX, "x", 84)
    k.op("buffer_load_dwordx4", V(X0, 4), V(vL16), S(sX, 4), S(sR), mods="offen"); vq.issue("ln")
    k.op("buffer_load_dwordx4", V(X1, 4), V(vL16), S(sX, 4), S(sR), mods="offen offset:1024"); vq.issue("ln")
    load_srd(k, sC, "ckv", 86)
    k.op("s_cmp_eq_u32", S(sKV), 0)
    k.op("s_cselect_b32", S(sWm), S(88), S(90))
    k.op("s_cselect_b32", S(sWm + 1), S(89), S(91))
    k.op("s_and_b32", S(sWm + 1), S(sWm + 1), "0xffff")
    k.op("s_mov_b32", S(sWm + 2), hex(4 << 20))
    k.op("s_mov_b32", S(sWm + 3), "0x20000")
    CHA = 84
    def cha(i):
        if skew == 2:
            k.op("s_add_u32", S(CHA + i), S(sT2), i & 3)
            k.op("s_and_b32", S(CHA + i), S(CHA + i), 3)
            if i >= 4: k.op("s_add_u32", S(CHA + i), S(CHA + i), 4)
        elif skew == 3:
            k.op("s_lshr_b32", S(sT1), "s2", 3)
            k.op("s_add_u32", S(CHA + i), S(sT1), i)
            k.op("s_and_b32", S(CHA + i), S(CHA + i), 7)
        elif skew: skew_stage(k, CHA + i, sT2, i, 8, sT1)
        else: k.op("s_mov_b32", S(CHA + i), i)
        k.op("s_lshl_b32", S(CHA + i), S(CHA + i), 16)
        k.op("s_add_u32", S(CHA + i), S(CHA + i), S(sAo))
    cha(0)
    def aslot(st): return [1, 2, 3, 4, 0][(st - 2) % 5] * 32768
    def wslot(s): return [3, 1, 2][(s % 6) // 2] * 32768 + (s & 1) * 16384
    def dma_w_items(s):
        def setup():
            k.op("s_add_u32", "m0", S(sW4k), wslot(s))
            k.op("s_mov_b32", S(sSo), s * 524288)
        def ld(i):
            def f():
                k.op("buffer_load_dwordx4", V(VW + i), S(sWm, 4), S(sSo), mods=f"offen offset:{i*1024} lds"); vq.issue(("W", s))
            return f
        return [setup] + [ld(i) for i in range(4)]
    def dma_a_items(st):
        it = []
        for u in range(2):
            def setup(u=u):
                k.op("s_add_u32", "m0", S(sW8k), aslot(st) + u * 4096)
                k.op("s_add_u32", S(sSo), S(CHA + (st >> 1)), (st & 1) * 16384 + u * 4096)
            it.append(setup)
            for i in range(4):
                def f(i=i, u=u):
                    k.op("buffer_load_dwordx4", V(VA + 4 * u + i), S(sC, 4), S(sSo), mods=f"offen offset:{i*1024} lds"); vq.issue(("A", st))
                it.append(f)
        return it
    for f in dma_w_items(0) + dma_a_items(0): f()
    late = dma_a_items(1) + dma_w_items(1) + dma_w_items(2) + dma_w_items(3)
    if not spread0:
        for f in late: f()
        late = []
    stp.stamp()
    for i in range(1, 8): cha(i)
    load_srd(k, sWS, "ws", 94)
    k.op("v_lshl_or_b32", V(t1), V(g1), 2, V(r_))
    k.op("s_and_b32", S(sT0), S(sW), 1)
    k.op("s_lshl_b32", S(sT0), S(sT0), 2)
    k.op("v_xor_b32", V(t1), S(sT0), V(t1))
    k.op("v_lshl_add_u32", V(t0), V(g), 3, V(r_))
    k.op("v_lshlrev_b32", V(t0), 8, V(t0))
    k.op("v_lshl_add_u32", V(t0), V(cc), 3, V(t0))
    for nb in range(4):
        k.op("v_xor_b32", V(12), nb, V(t1))
        k.op("v_lshl_add_u32", V(TA + nb), V(12), 5, V(t0))
        k.op("v_add_u32", V(TA + 4 + nb), 65536, V(TA + nb))
    k.op("s_lshr_b32", S(sT0), S(sW), 1)
    k.op("s_lshl_b32", S(sT0), S(sT0), 14)
    k.op("v_lshlrev_b32", V(t0), 10, V(l15))
    k.op("v_add_u32", V(t0), S(sT0), V(t0))
    k.op("v_xor_b32", V(t1), V(g), V(l15))
    for q in range(4):
        k.op("v_xor_b32", V(12), 4 * q, V(t1))
        k.op("v_lshl_add_u32", V(AAr + q), V(12), 4, V(t0))
        k.op("v_add_u32", V(AAr + 4 + q), 65536, V(AAr + q))
        k.op("v_add_u32", V(AAr + 8 + q), 131072, V(AAr + q))
    k.op("s_lshl_b32", S(sSt), S(sH), 19)
    k.op("s_lshl_b32", S(sT1), S(sRq), 17)
    k.op("s_add_u32", S(sSt), S(sSt), S(sT1))
    k.op("s_lshr_b32", S(sT1), S(sW), 1)
    k.op("s_lshl_b32", S(sT1), S(sT1), 13)
    k.op("s_add_u32", S(sSt), S(sSt), S(sT1))
    k.op("s_and_b32", S(sT1), S(sW), 1)
    k.op("s_lshl_b32", S(sT2), S(sT1), 12)
    k.op("s_add_u32", S(sT2), S(sT2), VF_OFF)
    k.op("s_lshl_b32", S(sT1), S(sT1), 11)
    k.op("s_add_u32", S(sT1), S(sT1), KF_OFF)
    k.op("s_cmp_eq_u32", S(sKV), 0)
    k.op("s_cselect_b32", S(sT1), S(sT1), S(sT2))
    k.op("s_add_u32", S(sSt), S(sSt), S(sT1))
    k.op("s_lshr_b32", S(sT1), S(sAo), 2)
    k.op("s_sub_u32", S(sSt), S(sSt), S(sT1))
    vLd, vLz = VZ, VZ + 1
    k.op("v_mov_b32", V(vLz), 0)
    k.op("v_lshrrev_b32", V(vLd), 2, V(vL))
    k.op("v_lshlrev_b32", V(vLd), 10, V(vLd))
    k.op("v_lshl_add_u32", V(vLd), V(cc), 8, V(vLd))
    sFL, sFA, sF2, sF3, sDb = 53, 54, 55, 56, 4
    if not fuse:
        k.op("s_lshl_b32", S(sT1), "s2", 8)
        k.op("s_add_u32", S(sT1), S(sT1), FLAG_OFF)
        for i in range(4): k.op("v_mov_b32", V(VZ + 4 + i), 0)
        k.op("buffer_store_dwordx4", V(VZ + 4, 4), V(vLz), S(sWS, 4), S(sT1), mods="offen" + (" sc1" if fuse else "")); vq.issue()
        k.op("s_lshl_b32", S(sT1), "s2", 4)
        k.op("s_add_u32", S(sT1), S(sT1), FLAG2_OFF)
        k.op("buffer_store_dwordx4", V(VZ + 4, 4), V(vLz), S(sWS, 4), S(sT1), mods="offen" + (" sc1" if fuse else "")); vq.issue()
    else:
        k.op("s_lshl_b32", S(sFL), "s2", 2)
        k.op("s_add_u32", S(sFL), S(sFL), FL_OFF)
        k.op("s_lshl_b32", S(sFA), S(sH), 7)
        k.op("s_lshl_b32", S(sT1), S(sKV), 4)
        k.op("s_add_u32", S(sFA), S(sFA), S(sT1))
        k.op("s_lshl_b32", S(sT1), S(sRq), 2)
        k.op("s_add_u32", S(sFA), S(sFA), S(sT1))
        k.op("s_add_u32", S(sFA), S(sFA), FA_OFF)
        k.op("s_lshr_b32", S(sT1), "s2", 5)
        k.op("s_lshl_b32", S(sF2), S(sT1), 8)
        k.op("s_lshl_b32", S(sT1), S(sH), 2)
        k.op("s_add_u32", S(sF2), S(sF2), S(sT1))
        k.op("s_add_u32", S(sF2), S(sF2), FLAG2_OFF)
        k.op("s_and_b32", S(sT1), "s2", 1)
        k.op("s_lshl_b32", S(sF3), S(sT1), 13)
        k.op("s_bfe_u32", S(sT1), "s2", "0x30003")
        k.op("s_lshl_b32", S(sT1), S(sT1), 10)
        k.op("s_add_u32", S(sF3), S(sF3), S(sT1))
        k.op("s_lshr_b32", S(sT1), "s2", 6)
        k.op("s_lshl_b32", S(sT1), S(sT1), 8)
        k.op("s_add_u32", S(sF3), S(sF3), S(sT1))
        k.op("s_and_b32", S(sT1), "s2", 6)
        k.op("s_lshl_b32", S(sT1), S(sT1), 1)
        k.op("s_add_u32", S(sF3), S(sF3), S(sT1))
        k.op("s_add_u32", S(sF3), S(sF3), FLAG_OFF)
        k.op("s_add_u32", S(57), S(sF2), 128)
        one_lane_store(k, sW, sWS, [sFL, sFA, sF2, sF3, 57], 0, VZ + 4)
        k.op("s_mov_b32", S(sDb), S(92))
        k.op("s_and_b32", S(sDb + 1), S(93), "0xffff")
        k.op("s_mov_b32", S(sDb + 2), 256)
        k.op("s_mov_b32", S(sDb + 3), "0x20000")

    def pf_k2():
        k.op("s_lshr_b32", S(sT1), "s2", 3)
        k.op("s_lshl_b32", S(sT1), S(sT1), 2)
        k.op("s_add_u32", S(sT1), S(sT1), S(sW))
        k.op("s_and_b32", S(sT0), "s2", 7)
        load_srd(k, sP, "wq", 96)
        k.op("v_bfe_u32", V(12), V(vL), 3, 2)
        k.op("v_lshlrev_b32", V(13), 13, V(12))
        k.op("v_lshl_add_u32", V(13), V(p8), 7, V(13))
        k.op("s_lshl_b32", S(57), S(sT1), 15)
        k.op("s_lshl_b32", S(sT2), S(sT0), 10)
        k.op("s_add_u32", S(57), S(57), S(sT2))
        k.op("buffer_load_dword", V(15), V(13), S(sP, 4), S(57), mods="offen", dummy=True); vq.issue()
        load_srd(k, sWm, "w1", 98)
        k.op("v_mul_u32_u24", V(13), 2752, V(12))
        k.op("v_lshl_add_u32", V(13), V(p8), 6, V(13))
        k.op("s_mul_i32", S(57), S(sT1), 4 * 2752)
        k.op("s_mul_i32", S(sT2), S(sT0), 384)
        k.op("s_add_u32", S(57), S(57), S(sT2))
        k.op("buffer_load_dword", V(15), V(13), S(sWm, 4), S(57), mods="offen", dummy=True); vq.issue()
        k.op("s_lshl_b32", S(57), S(sT1), 13)
        pf_code(k, sX, "k2_kernel", "k2_slow_0-k2_kernel", 13, vL, 57, 15); vq.issue()

    GB = 2 * 32768 + 16384
    LN2 = 84
    if lnfirst:
        vq.need("ln")
        k.op("s_lshl_b32", S(sT1), S(sW), 5)
        k.op("s_add_u32", S(sT1), S(sT1), GB)
        k.op("v_lshlrev_b32", V(vLd), 7, V(vL))
        k.op("v_add_u32", V(vLd), S(sT1), V(vLd))
        k.op("s_lshl_b32", S(sT1), S(sW), 4)
        k.op("s_add_u32", S(sT1), S(sT1), GB + 8192)
        k.op("v_mov_b32", V(VZ + 2), S(sT1))
        ln = Kern("ln")
        for r, X in enumerate((X0, X1)):
            layernorm(ln, X, LN2 + 4, LN2 + 8, LN2 + 16)
            layernorm(ln, LN2 + 4, LN2 + 24, LN2 + 8, LN2 + 16, stats_only=True)
            ln.op("ds_write_b128", V(vLd), V(LN2 + 4, 4), mods=f"offset:{16*r}")
            ln.op("ds_write_b64", V(VZ + 2), V(LN2 + 24, 2), mods=f"offset:{8*r}")
            ln.wait(lgkm=0)
        for i, ins in enumerate(ln.ins):
            k.ins.append(ins)
            if i % 12 == 5 and late: late.pop(0)()
        k.op("s_lshl_b32", S(sT1), S(sW), 11)
        k.op("s_add_u32", S(sT1), S(sT1), GB)
        k.op("v_add_u32", V(vLd), S(sT1), V(vL16))
        k.op("v_lshrrev_b32", V(VZ + 3), 3, V(vL))
        k.op("v_lshlrev_b32", V(VZ + 3), 8, V(VZ + 3))
        k.op("v_lshl_add_u32", V(VZ + 3), V(p8), 4, V(VZ + 3))
        k.op("s_lshr_b32", S(sR + 1), "s2", 1)
        k.op("s_lshl_b32", S(sR + 1), S(sR + 1), 14)
        k.op("s_and_b32", S(sT1), "s2", 1)
        k.op("s_lshl_b32", S(sT1), S(sT1), 7)
        k.op("s_add_u32", S(sR + 1), S(sR + 1), S(sT1))
        k.op("s_add_u32", S(sR + 1), S(sR + 1), S(sW4k))
        k.op("s_lshl_b32", S(sR + 2), "s2", 6)
        k.op("s_add_u32", S(sR + 2), S(sR + 2), YF_OFF)
        k.op("v_and_b32", V(VZ + 2), 48, V(vL16))
        k.op("v_add_u32", V(LN2 + 30), GB + 8192, V(VZ + 2))
    for f in late: f()
    def ln_out():
        sc = " sc1" if fuse else ""
        k.op("ds_read_b128", V(LN2, 4), V(vLd)); lq.issue("lo")
        k.op("ds_read_b128", V(LN2 + 4, 4), V(vLd), mods="offset:1024"); lq.issue("lo")
        k.op("ds_read_b128", V(LN2 + 8, 4), V(LN2 + 30)); lq.issue("lo")
        lq.need("lo")
        k.op("buffer_store_dwordx4", V(LN2, 4), V(VZ + 3), S(sWS, 4), S(sR + 1), mods="offen" + sc); vq.issue("lnst")
        k.op("buffer_store_dwordx4", V(LN2 + 4, 4), V(VZ + 3), S(sWS, 4), S(sR + 1), mods="offen offset:2048" + sc); vq.issue("lnst")
        k.op("buffer_store_dwordx4", V(LN2 + 8, 4), V(VZ + 2), S(sWS, 4), S(sR + 2), mods="offen" + sc); vq.issue("lnst")
    k.op("s_cmp_lg_u32", S(sKV), 0)
    k.op("s_cbranch_scc1", "k1_V")
    import copy
    vq0, lq0, n0 = copy.deepcopy((vq.q, vq.ever)), copy.deepcopy((lq.q, lq.ever)), stp.n
    for kv in range(2):
        if kv:
            k.label("k1_V")
            vq.q, vq.ever = copy.deepcopy(vq0); lq.q, lq.ever = copy.deepcopy(lq0); stp.n = n0
        onst = lambda i: vq.issue() if i.kind == "vstore" else None
        q1, q2, lnq = FillQ(k), FillQ(k, on_emit=onst), FillQ(k, on_emit=lambda i: vq.issue("lnst") if i.kind == "vstore" else None)
        flst = {"fl": False}
        if not noln and not lnfirst:
            lnq.add(lambda: vq.need("ln"))
            for r, X in enumerate((X0, X1)):
                ln = Kern("ln")
                layernorm(ln, X, LNR + 4, LNR + 8, LNR + 16)
                layernorm(ln, LNR + 4, LNR + 24, LNR + 8, LNR + 16, stats_only=True)
                ln.op("buffer_store_dwordx4", V(LNR + 4, 4), V(vLd), S(sWS, 4), S(sR + 1), mods=f"offen offset:{16*r}" + (" sc1" if fuse else ""))
                ln.op("buffer_store_dwordx2", V(LNR + 24, 2), V(vLz), S(sWS, 4), S(sR + 2), mods=f"offen offset:{8*r}" + (" sc1" if fuse else ""))
                ln.nop(2)
                lnq.add_kern(ln)
        early2 = fuse and early
        K2VW, K2VW1, sXa, sXb, sLd = 108, 112, 51, 52, 98
        def k2_setup():
            e = Kern("e")
            load_srd(e, 12, "wq", 96); load_srd(e, 16, "w1", 98)
            for i in range(4): e.op("v_mov_b32", V(K2VW + i), V(VW + i))
            e.op("v_lshlrev_b32", V(84), 1, V(g1))
            e.op("v_xor_b32", V(84), V(84), V(p8))
            e.op("v_lshlrev_b32", V(84), 4, V(84))
            e.op("v_lshrrev_b32", V(85), 3, V(vL))
            e.op("v_mul_u32_u24", V(85), 2752, V(85))
            e.op("s_mul_i32", S(38), S(sW), 32 * 2752)
            e.op("s_mul_i32", S(39), S(sH), 96)
            e.op("s_add_u32", S(38), S(38), S(39))
            e.op("v_add_u32", V(85), S(38), V(85))
            e.op("v_add_u32", V(K2VW1), V(85), V(84))
            e.op("v_xor_b32", V(84), 64, V(84))
            e.op("v_add_u32", V(K2VW1 + 1), V(85), V(84))
            e.op("v_add_u32", V(K2VW1 + 1), 8 * 2752 - 1024, V(K2VW1 + 1))
            e.op("v_add_u32", V(K2VW1 + 2), 2 * (8 * 2752 - 1024), V(K2VW1))
            e.op("v_add_u32", V(K2VW1 + 3), 2 * (8 * 2752 - 1024), V(K2VW1 + 1))
            e.op("s_lshr_b32", S(38), "s2", 5)
            e.op("s_lshl_b32", S(38), S(38), 17)
            e.op("s_lshl_b32", S(39), S(sW), 15)
            e.op("s_add_u32", S(sLd), S(38), S(39))
            e.op("s_add_u32", S(sLd + 1), S(sLd), 16384)
            e.op("s_sub_u32", S(sLd + 2), 1920 * 1024, S(38))
            e.op("s_add_u32", S(sLd + 2), S(sLd + 2), S(39))
            e.op("s_add_u32", S(sLd + 3), S(sLd + 2), 16384)
            return e
        def k2_pages():
            it = []
            for pg, (srd, vb, so) in enumerate([(16, K2VW1, 0), (12, K2VW, 0), (12, K2VW, 524288)]):
                def setup(pg=pg, so=so):
                    k.op("s_add_u32", "m0", S(sW4k), pg * 16384)
                    k.op("s_mov_b32", S(41), so)
                it.append(setup)
                for i in range(4):
                    def f(i=i, srd=srd, vb=vb):
                        k.op("buffer_load_dwordx4", V(vb + i), S(srd, 4), S(41), mods=f"offen offset:{i*1024} lds"); vq.issue()
                    it.append(f)
            return it
        def k2_xn(ks):
            it = []
            for rb in range(4):
                def f(rb=rb):
                    k.op("buffer_load_dwordx4", A((ks * 4 + rb) * 4, 4), V(vL16), S(sWS, 4), S(sLd + rb), mods=f"offen offset:{ks*1024} sc1"); vq.issue()
                it.append(f)
            return it
        def acc(st, nb): return ACC + 16 * (st % 4) + 4 * nb
        def pack(e, a, b):
            e.op("v_cvt_pk_bf16_f32", V(a), V(a), V(a + 1))
            e.op("v_cvt_pk_bf16_f32", V(a + 1), V(a + 2), V(a + 3))
            e.op("v_cvt_pk_bf16_f32", V(a + 2), V(b), V(b + 1))
            e.op("v_cvt_pk_bf16_f32", V(a + 3), V(b + 2), V(b + 3))
        def epi(st):
            e = Kern("e")
            if kv == 0:
                e.op("s_lshr_b32", S(sSo2), S(CHA + (st >> 1)), 2)
                e.op("s_add_u32", S(sSo2), S(sSo2), S(sSt))
                if st & 1: e.op("s_add_u32", S(sSo2), S(sSo2), 4096)
                for p in range(2):
                    pack(e, acc(st, 2 * p), acc(st, 2 * p + 1))
                    e.op("buffer_store_dwordx4", V(acc(st, 2 * p), 4), V(vL16), S(sWS, 4), S(sSo2), mods=f"offen offset:{p*1024}{store_mods}")
            elif st & 1:
                e.op("s_lshr_b32", S(sSo2), S(CHA + (st >> 1)), 2)
                e.op("s_add_u32", S(sSo2), S(sSo2), S(sSt))
                for nb in range(4):
                    pack(e, acc(st - 1, nb), acc(st, nb))
                    e.op("buffer_store_dwordx4", V(acc(st - 1, nb), 4), V(vL16), S(sWS, 4), S(sSo2), mods=f"offen offset:{nb*1024}{store_mods}")
            if nostore: e.ins = [i for i in e.ins if i.kind != "vstore"]
            return e
        AF2 = 192
        def afr(n, alt=False): return (AF2 if alt else AF) + (n % 8) * 4
        def rd_act(n, alt=False):
            st, ks = n >> 4, n & 15
            if ks == 0 and st > 1:
                if st == 2: assert len(lq.q) == 0
                vq.need(("A", st), cnt=[8])
                if fuse and len(lnq) == 0: flst["n"] = flst.get("n", 0) + 1
                dofl = fuse and flst.get("n", 0) == fldelay and not flst["fl"]
                if dofl: vq.need("lnst", cnt=[3 if lnfirst else 4])
                k.op("s_barrier")
                if fuse and st == 10 and "z" not in xno:
                    k.op("v_lshlrev_b32", V(243), 2, V(vL))
                    k.op("buffer_load_dword", V(242), V(243), S(sDb, 4), 0, mods="offen sc1"); vq.issue("pz")
                if fuse and st == 12 and "z" not in xno:
                    vq.need("pz")
                    spin_until(k, f"k1_sz{kv}", lambda: k.op("buffer_load_dword", V(242), V(243), S(sDb, 4), 0, mods="offen sc1"),
                               lambda: k.op("v_cmp_ne_u32", "vcc", "0x01010101", V(242)), sT1)
                if fuse and st == 14 and "f" not in xno:
                    assert flst["fl"]
                    k.op("s_lshr_b32", S(sT1), "s2", 5)
                    k.op("s_lshl_b32", S(sT1), S(sT1), 6)
                    k.op("s_sub_u32", S(sT2), 960, S(sT1))
                    k.op("v_mov_b32", V(240), S(sT1))
                    k.op("v_mov_b32", V(241), S(sT2))
                    k.op("v_cmp_eq_u32", "vcc", 0, V(g1))
                    k.op("s_mov_b32", S(sFL), FL_OFF)
                    k.nop(1)
                    k.op("v_cndmask_b32", V(240), V(241), V(240), "vcc")
                    k.op("v_lshl_add_u32", V(240), V(l15), 2, V(240))
                    k.op("buffer_load_dword", V(241), V(240), S(sWS, 4), S(sFL), mods="offen sc1"); vq.issue("pp")
                if fuse and st == 15 and "f" not in xno:
                    vq.need("pp")
                    spin_until(k, f"k1_sp{kv}", lambda: k.op("buffer_load_dword", V(241), V(240), S(sWS, 4), S(sFL), mods="offen sc1"),
                               lambda: k.op("v_cmp_ne_u32", "vcc", 1, V(241)), sT1)
                q1.flush()
                if early2 and st == 14: q1.add_kern(k2_setup())
                if early2 and st == 15:
                    for f in k2_pages(): q1.add(f)
                if st == 2:
                    for f in dma_a_items(4): q1.add(f)
                if st >= 3 and st + 2 < 16:
                    pass
                if st >= 2 and st + 3 < 16:
                    for f in dma_a_items(st + 3): q1.add(f)
                if dofl:
                    if "f" not in xno: q1.add(lambda: one_lane_store(k, sW, sWS, [sFL], 1, VZ + 4))
                    flst["fl"] = True
                if fuse and st == zat:
                    def zst():
                        lab = k.newlabel("noz")
                        k.op("v_mov_b32", V(VZ + 5), 1)
                        k.op("s_cmp_lg_u32", S(sW), 0); k.op("s_cbranch_scc1", lab)
                        k.op("s_mov_b64", "exec", 1)
                        k.op("buffer_store_byte", V(VZ + 5), V(vLz), S(sDb, 4), "s2", mods="offen sc1")
                        k.op("s_mov_b64", "exec", -1)
                        k.label(lab)
                    if "z" not in xno: q1.add(zst)
            off = aslot(st)
            wn = off // 65536
            k.op("ds_read_b128", V(afr(n, alt), 4), V(AAr + 4 * wn + (ks & 3)), mods=f"offset:{off - wn*65536 + (ks>>2)*256}")
            lq.issue(("a", n))
        def mf(st, ks, nb, n, alt=False):
            d = V(acc(st, nb), 4); wf = A((ks * 4 + nb) * 4, 4); af = V(afr(n, alt), 4)
            if kv == 0: k.op("v_mfma_f32_16x16x32_bf16", d, wf, af, "0" if ks == 0 else d)
            else: k.op("v_mfma_f32_16x16x32_bf16", d, af, wf, "0" if ks == 0 else d)
        def wread_items(s):
            it = []
            for ks in (2 * s, 2 * s + 1):
                for nb in range(4):
                    for i in range(2):
                        def f(ks=ks, nb=nb, i=i):
                            off = wslot(s) + (ks & 1) * 8192 + i * 1024
                            wn = off // 65536
                            k.op("ds_read_b64_tr_b16", A((ks * 4 + nb) * 4 + 2 * i, 2), V(TA + 4 * wn + nb), mods=f"offset:{off - wn*65536}")
                            lq.issue(("w", ks))
                        it.append(f)
                it.append(lambda ks=ks: rd_act(ks))
                it.append(lambda ks=ks: rd_act(16 + ks, True))
            return it
        qr = FillQ(k)
        for s in range(9):
            if s < 8:
                vq.need(("W", s), ("A", 0), ("A", 1), cnt=[4, 8, 8])
                k.op("s_barrier")
                if s == 0: stp.stamp()
                if s == 0 and lnfirst: ln_out()
                for f in wread_items(s): qr.add(f)
                if s + 4 < 8:
                    for f in dma_w_items(s + 4): q1.add(f)
                if s == 5:
                    for f in dma_a_items(2): q1.add(f)
                if s == 7:
                    for f in dma_a_items(3): q1.add(f)
            if s == 0:
                qr.flush(); q1.flush(); continue
            for ks in (2 * s - 2, 2 * s - 1):
                lq.need(("w", ks), ("a", ks), ("a", 16 + ks), cnt=[8, 1, 1])
                if ks == 15:
                    for n in range(32, 32 + D): qr.add(lambda n=n: rd_act(n))
                for alt in range(2):
                    for nb in range(4):
                        mf(alt, ks, nb, 16 * alt + ks, bool(alt))
                        qr.emit(2)
                        if len(qr) == 0: q1.emit(1)
            qr.flush()
            if s < 8: q1.flush()
        stp.stamp()
        nxt = 32 + D
        for n in range(32, 256):
            st, ks = n >> 4, n & 15
            if n in (64, 128, 192): stp.stamp()
            if n == 34: q2.add_kern(epi(0))
            if ks == 2: q2.add_kern(epi(st - 1))
            if pf2 and n == pf2at * 16 + 8: pf_k2()
            if early2 and st == 15 and 2 <= ks < 6:
                for f in k2_xn(ks - 2): q1.add(f)
            if n % 2 == 0: lq.need(("a", n), ("a", n + 1), cnt=[1, 1])
            for nb in range(4):
                mf(st, ks, nb, n)
                cap = 1
                if nb == 0 and nxt < 256:
                    rd_act(nxt); nxt += 1; cap = 0
                if nb == 2 or (len(q1) > q1cap and nb != 0) or st >= 14: cap -= q1.emit(cap)
                cap -= q2.emit(cap)
                if st >= LN0: cap -= lnq.emit(cap + (1 if fuse else 0))
        stp.stamp()
        q1.flush(); q2.flush(); lnq.flush()
        k.nop(8)
        q2.add_kern(epi(15)); q2.flush()
        if pf2 and pf2at >= 16: pf_k2()
        if stamps:
            if not fuse: k.wait(vm=0)
            stp.stamp()
            stp.flush(sWS, sW, 4)
        if fuse:
            k.wait(lgkm=0)
            k.op("s_barrier")
            k.op("s_mov_b32", "s3", S(sFA))
            k.raw("  s_branch k2_kernel")
        k.op("s_endpgm")
    k.label("k1_end")
    k.op("s_endpgm")
    return k

if __name__ == "__main__":
    k = build_k1()
    for e in k.check_hazards(): print(e)
    for e in k.check_waits(): print(e)
    print(k.maxregs(), len(k.ins))
```

```python
from common import *
import struct
def f32(x): return hex(struct.unpack("<I", struct.pack("<f", x))[0])
LOG2E = 1.4426950408889634
QSCALE = LOG2E / (128 ** 0.5)
STAT_OFF = YF_OFF

def build_k2(stamps=False, D=6, DA=8, thr=2.0 ** 60, pf3=True, fuse3=False, xnobar=False, xnodma=False, oolmask=True, pfself=True, fused1=False, early1=False, pace=True, wp=4):
    k = Kern("k2_kernel")
    SC = " sc1" if fused1 else ""
    vq, lq = Q(k, "vmcnt", 63), Q(k, "lgkmcnt", 15)
    stp = Stamps(k, stamps, 62, 1, lq, maxn=8)
    sWS, sWQ, sW1, sK, sV, sB1 = 8, 12, 16, 20, 24, 28
    sW, sH, sP, sNa, sNb, sT = 32, 33, 34, 35, 36, 37
    sT0, sT1, sT2, sSo = 38, 39, 40, 41
    sP2, sP1, sRd, sNx = 42, 43, 44, 45
    sTK, sTV, sW4k, sThr, sRet = 46, 47, 48, 49, 50
    sXa, sXb = 51, 52
    sCa, sCb = 53, 54
    sM = 56
    sLd = 98
    vL, vL16, vA, vD, vZ, vNinf = 1, 2, 3, 4, 5, 6
    vPs = [7, 8]; vLs = [9, 10]; vMx = [11, 12]
    vT = 13
    vCo = 20
    QR, NEGM, SR = 32, 96, 128
    def Sreg(sub, par): return SR + sub * 64 + par * 32
    OA, FR = 64, 192
    TA, TB, VW, VW1 = 96, 104, 108, 112
    vXo = 21
    MACC = 32
    ONES = 116
    XR = 0

    k.op("s_cmp_ge_u32", "s2", 256)
    k.op("s_cbranch_scc1", "k2_end")
    if pfself:
        pf_self(k, "k2_slow_0", vt=254); vq.issue()
    k.op("s_load_dwordx2", S(84, 2), S(0, 2), KA["wq"])
    k.op("s_load_dwordx4", S(88, 4), S(0, 2), KA["w1"])
    k.op("s_load_dwordx2", S(92, 2), S(0, 2), KA["ws"])
    k.op("s_load_dwordx2", S(86, 2), S(0, 2), KA["wo"])
    k.op("s_load_dwordx2", S(96, 2), S(0, 2), KA["w2"])
    k.op("v_and_b32", V(vL), 63, "v0")
    k.op("v_lshrrev_b32", V(13), 6, "v0")
    k.op("s_and_b32", S(sT0), "s2", 7)
    k.op("v_readfirstlane_b32", S(sW), V(13))
    k.op("s_lshr_b32", S(sT1), "s2", 3)
    k.op("s_and_b32", S(sT2), S(sT1), 3)
    k.op("s_lshl_b32", S(sH), S(sT0), 2)
    k.op("s_add_u32", S(sH), S(sH), S(sT2))
    k.op("s_lshr_b32", S(sP), S(sT1), 2)
    k.op("v_lshlrev_b32", V(vL16), 4, V(vL))
    k.op("s_lshl_b32", S(sW4k), S(sW), 12)
    k.op("v_add_u32", V(vD), S(sW4k), V(vL16))
    g, l15, p8, l3, r_, cc, g1, t7 = 22, 23, 24, 25, 26, 27, 28, 29
    k.op("v_lshrrev_b32", V(g), 4, V(vL))
    k.op("v_and_b32", V(l15), 15, V(vL))
    k.op("v_and_b32", V(p8), 7, V(vL))
    k.op("v_lshrrev_b32", V(l3), 3, V(vL))
    k.op("v_bfe_u32", V(r_), V(vL), 2, 2)
    k.op("v_and_b32", V(cc), 3, V(vL))
    k.op("v_and_b32", V(g1), 1, V(g))
    k.op("v_lshlrev_b32", V(t7), 1, V(g))
    k.op("v_xor_b32", V(t7), V(t7), V(l15))
    k.op("v_lshlrev_b32", V(t7), 4, V(t7))
    k.op("v_lshl_add_u32", V(t7), V(g), 13, V(t7))
    k.op("s_lshl_b32", S(sT0), S(sW), 17)
    k.op("s_lshl_b32", S(sT1), S(sH), 8)
    k.op("s_add_u32", S(sT0), S(sT0), S(sT1))
    k.op("v_add_u32", V(VW), S(sT0), V(t7))
    k.op("v_add_u32", V(VW + 1), 32768 - 1024, V(VW))
    k.op("v_xor_b32", V(VW + 2), 128, V(VW))
    k.op("v_add_u32", V(VW + 2), 2 * (32768 - 1024), V(VW + 2))
    k.op("v_add_u32", V(VW + 3), 32768 - 1024, V(VW + 2))
    k.op("v_lshlrev_b32", V(t7), 1, V(g1))
    k.op("v_xor_b32", V(t7), V(t7), V(p8))
    k.op("v_lshlrev_b32", V(t7), 4, V(t7))
    k.op("v_mul_u32_u24", V(30), 2752, V(l3))
    k.op("s_mul_i32", S(sT0), S(sW), 32 * 2752)
    k.op("s_mul_i32", S(sT1), S(sH), 96)
    k.op("s_add_u32", S(sT0), S(sT0), S(sT1))
    k.op("v_add_u32", V(30), S(sT0), V(30))
    k.op("v_add_u32", V(VW1), V(30), V(t7))
    k.op("v_xor_b32", V(t7), 64, V(t7))
    k.op("v_add_u32", V(VW1 + 1), V(30), V(t7))
    k.op("v_add_u32", V(VW1 + 1), 8 * 2752 - 1024, V(VW1 + 1))
    k.op("v_add_u32", V(VW1 + 2), 2 * (8 * 2752 - 1024), V(VW1))
    k.op("v_add_u32", V(VW1 + 3), 2 * (8 * 2752 - 1024), V(VW1 + 1))
    k.op("s_lshl_b32", S(sT0), S(sP), 7)
    k.op("s_lshl_b32", S(sT1), S(sW), 5)
    k.op("s_add_u32", S(sXa), S(sT0), S(sT1))
    k.op("s_sub_u32", S(sXb), 1920, S(sT0))
    k.op("s_add_u32", S(sXb), S(sXb), S(sT1))
    k.op("s_lshl_b32", S(sT2), S(sH), 12)
    k.op("s_add_u32", S(sT2), S(sT2), CTX_OFF)
    k.op("s_lshl_b32", S(sCa), S(sXa), 13)
    k.op("s_add_u32", S(sCa), S(sCa), S(sT2))
    k.op("s_lshl_b32", S(sCb), S(sXb), 13)
    k.op("s_add_u32", S(sCb), S(sCb), S(sT2))
    sRa, sRb = 94, 95
    k.op("s_mov_b32", S(sRa), S(sXa)); k.op("s_mov_b32", S(sRb), S(sXb))
    sHr = 56
    for rb in range(4):
        k.op("s_lshr_b32", S(sHr + rb), S(sRa if rb < 2 else sRb), 4)
        k.op("s_add_u32", S(sHr + rb), S(sHr + rb), rb & 1)
        k.op("s_mul_i32", S(sHr + rb), S(sHr + rb), 43 * 1024)
    k.op("s_lshl_b32", S(sXa), S(sXa), 10)
    k.op("s_lshl_b32", S(sXb), S(sXb), 10)
    k.op("s_lshr_b32", S(sT1), S(sW), 1)
    k.op("s_lshl_b32", S(sT0), S(sP), 1)
    k.op("s_add_u32", S(sNa), S(sT0), S(sT1))
    k.op("s_add_u32", S(sNa), S(sNa), 1)
    k.op("s_sub_u32", S(sNb), 31, S(sT0))
    k.op("s_add_u32", S(sNb), S(sNb), S(sT1))
    k.wait(lgkm=0)
    stp.stamp()
    load_srd(k, sWQ, "wq", 84); load_srd(k, sW1, "w1", 88); load_srd(k, sWS, "ws", 92)

    pages = {}
    order = []
    for j in range(4):
        order += [("W1", j), ("WQ", 2 * j), ("WQ", 2 * j + 1)]
    for i, p in enumerate(order): pages[p] = i
    for t in range(6): pages[("K", t)] = 12 + 2 * t; pages[("V", t)] = 15 + 2 * t
    def slot(p): return (pages[p] % 10) * 16384
    def dma_items(p):
        kind, j = p
        def setup():
            k.op("s_add_u32", "m0", S(sW4k), slot(p))
            k.op("s_mov_b32", S(sSo), {"W1": j * 128 * 2752, "WQ": j * 524288, "K": j * 16384, "V": (j + 1) * 16384}[kind])
        def ld(i):
            def f():
                if kind == "WQ": k.op("buffer_load_dwordx4", V(VW + i), S(sWQ, 4), S(sSo), mods=f"offen offset:{i*1024} lds")
                elif kind == "W1": k.op("buffer_load_dwordx4", V(VW1 + i), S(sW1, 4), S(sSo), mods=f"offen offset:{i*1024} lds")
                else: k.op("buffer_load_dwordx4", V(vD), S(sK if kind == "K" else sV, 4), S(sSo), mods=f"offen offset:{i*1024}{SC} lds")
                vq.issue(p)
            return f
        return [setup] + [ld(i) for i in range(4)]
    def xn_load(ks, rb):
        def f():
            r = XR + ((ks % 12) * 4 + rb) * 4
            if ks & 3 == 0: k.op("s_add_u32", S(sLd + rb), S(sXa if rb < 2 else sXb), (rb & 1) * 16384 + (ks >> 2) * 4096)
            k.op("buffer_load_dwordx4", A(r, 4), V(vL16), S(sWS, 4), S(sLd + rb), mods=f"offen offset:{(ks&3)*1024}" + SC)
            vq.issue(("x", ks))
        return f
    if early1:
        for p in (("W1", 0), ("WQ", 0), ("WQ", 1)):
            for _ in range(4): vq.issue(p)
        for ks in range(4):
            for _ in range(4): vq.issue(("x", ks))
        vq.issue(); vq.issue()
    else:
        for p in (("W1", 0), ("WQ", 0)):
            for f in dma_items(p): f()
        for ks in range(2):
            for rb in range(4): xn_load(ks, rb)()
        for f in dma_items(("WQ", 1)): f()
        for ks in range(2, 4):
            for rb in range(4): xn_load(ks, rb)()
    load_srd(k, sB1, "b1", 90)
    k.op("s_lshl_b32", S(sT0), S(sH), 19)
    k.op("s_add_u32", S(sT1), S(sT0), KF_OFF)
    k.op("s_add_u32", S(sK), S(92), S(sT1))
    k.op("s_addc_u32", S(sK + 1), S(93), 0)
    k.op("s_and_b32", S(sK + 1), S(sK + 1), "0xffff")
    k.op("s_lshl_b32", S(sT2), S(sP), 15)
    k.op("s_sub_u32", S(sK + 2), 32 * 16384, S(sT2))
    k.op("s_mov_b32", S(sK + 3), "0x20000")
    k.op("s_add_u32", S(sT1), S(sT0), VF_OFF - 16384)
    k.op("s_add_u32", S(sV), S(92), S(sT1))
    k.op("s_addc_u32", S(sV + 1), S(93), 0)
    k.op("s_and_b32", S(sV + 1), S(sV + 1), "0xffff")
    k.op("s_add_u32", S(sV + 2), S(sK + 2), 16384)
    k.op("s_mov_b32", S(sV + 3), "0x20000")
    k.op("v_lshl_or_b32", V(30), V(g1), 2, V(r_))
    k.op("v_lshl_add_u32", V(31), V(g), 3, V(r_))
    k.op("v_lshlrev_b32", V(t7), 8, V(31))
    k.op("v_lshl_add_u32", V(t7), V(cc), 3, V(t7))
    for nb in range(8):
        k.op("v_xor_b32", V(13), nb, V(30))
        k.op("v_lshl_add_u32", V(TA + nb), V(13), 5, V(t7))
    k.op("v_lshrrev_b32", V(13), 1, V(r_))
    k.op("v_lshl_or_b32", V(30), V(g1), 1, V(13))
    k.op("v_lshlrev_b32", V(t7), 7, V(31))
    k.op("v_lshl_add_u32", V(t7), V(cc), 3, V(t7))
    for nb in range(3):
        k.op("v_xor_b32", V(13), nb, V(30))
        k.op("v_lshl_add_u32", V(TB + nb), V(13), 5, V(t7))
    for i in range(4): k.op("v_mov_b32", V(ONES + i), "0x3f803f80")
    ST = 120
    B1 = [92, 94, 30]
    k.op("v_lshlrev_b32", V(13), 3, V(l15))
    for rb in range(4):
        k.op("s_lshl_b32", S(sT0), S(sRa if rb < 2 else sRb), 3)
        k.op("s_add_u32", S(sT0), S(sT0), STAT_OFF + (rb & 1) * 128)
        k.op("buffer_load_dwordx2", V(ST + 2 * rb, 2), V(13), S(sWS, 4), S(sT0), mods="offen" + SC); vq.issue("st")
    k.op("v_lshlrev_b32", V(14), 3, V(g))
    k.op("s_mul_i32", S(sT1), S(sH), 96)
    for nb in range(3):
        k.op("buffer_load_dwordx2", V(B1[nb], 2), V(14), S(sB1, 4), S(sT1), mods=f"offen offset:{nb*32}"); vq.issue("st")
    win = {"TA": 0, "TB": 0}
    def set_window(name, base, n, off):
        w = off // 65536
        if win[name] != w:
            d = (w - win[name]) * 65536
            for i in range(n): k.op("v_add_u32", V(base + i), hex(d & 0xffffffff), V(base + i))
            win[name] = w
        return off - w * 65536
    frs = []
    for ks in range(16):
        for nb in range(3): frs.append(("W1", ks, nb))
        for nb in range(8): frs.append(("WQ", ks, nb))
    NF = len(frs)
    q1 = FillQ(k)
    plan = {0: [("W1", 1), ("WQ", 2)], 1: [("WQ", 3)], 2: [("W1", 2), ("WQ", 4)], 3: [("WQ", 5)], 4: [("W1", 3), ("WQ", 6)],
            5: [("WQ", 7)], 6: [("K", 0), ("K", 1)], 7: [("V", 0), ("K", 2)]}
    def stage_switch(s):
        need = [("WQ", s)] + ([("W1", s // 2)] if s % 2 == 0 else [])
        vq.need(*need, cnt=[4] * len(need))
        k.op("s_barrier")
        q1.flush()
        if fused1 and s == 2:
            one_lane_store(k, sW, sWS, [3], 1, 18)
        if fused1 and s == 5:
            k.op("s_lshl_b32", S(55), S(sH), 7)
            k.op("s_add_u32", S(55), S(55), FA_OFF)
            k.op("v_lshlrev_b32", V(18), 2, V(p8))
            k.op("buffer_load_dword", V(19), V(18), S(sWS, 4), S(55), mods="offen sc1"); vq.issue("pp")
        if fused1 and s == 6:
            vq.need("pp")
            spin_until(k, "k2_sp", lambda: k.op("buffer_load_dword", V(19), V(18), S(sWS, 4), S(55), mods="offen sc1"),
                       lambda: k.op("v_cmp_ne_u32", "vcc", 1, V(19)), sT1)
        for ks in (2 * s + 4, 2 * s + 5):
            if ks < 16:
                for rb in range(4): q1.add(xn_load(ks, rb))
        for p in plan[s]:
            for f in dma_items(p): q1.add(f)
    def read_frag(n, which):
        kind, ks, nb = frs[n]
        if n % 22 == 0 and which == 0: stage_switch(n // 22)
        r = FR + (n % 16) * 4
        if kind == "WQ":
            off = slot(("WQ", ks // 2)) + (ks & 1) * 8192 + which * 1024
            off = set_window("TA", TA, 8, slot(("WQ", ks // 2))) + (ks & 1) * 8192 + which * 1024
            k.op("ds_read_b64_tr_b16", A(r + 2 * which, 2), V(TA + nb), mods=f"offset:{off}")
        else:
            off = set_window("TB", TB, 3, slot(("W1", ks // 4))) + (ks & 3) * 4096 + which * 512
            k.op("ds_read_b64_tr_b16", A(r + 2 * which, 2), V(TB + nb), mods=f"offset:{off}")
        lq.issue(("w", n))
    def qacc(nb, rb): return SR + 4 * (nb * 4 + rb)
    def macc(nb, rb): return MACC + 4 * (nb * 4 + rb)
    for n in range(D):
        read_frag(n, 0); read_frag(n, 1)
    stp.stamp()
    for n in range(NF):
        kind, ks, nb = frs[n]
        if n % 11 == 0: vq.need(("x", ks), cnt=[4])
        if n % 2 == 0: lq.need(("w", n), ("w", n + 1), cnt=[2, 2])
        wf = A(FR + (n % 16) * 4, 4)
        first = ks == 0
        ms = []
        for rb in range(4):
            d = V(qacc(nb, rb) if kind == "WQ" else macc(nb, rb), 4)
            ms.append((d, A(XR + ((ks % 12) * 4 + rb) * 4, 4)))
        if kind == "W1": ms.append((V(MACC + 48 + 4 * nb, 4), V(ONES, 4)))
        for c, (d, b) in enumerate(ms):
            k.op("v_mfma_f32_16x16x32_bf16", d, wf, b, "0" if first else d)
            if c < 2 and n + D < NF: read_frag(n + D, c)
            elif not pace or c == 2: q1.emit(2 if (len(q1) > 12 and not pace) else 1)
    q1.flush()
    stp.stamp()
    vq.need(("K", 0), cnt=[4])
    k.op("s_barrier")
    for p in (("V", 1), ("K", 3), ("V", 2)):
        for f in dma_items(p): f()
    k.op("v_mul_u32_u24", V(15), 44032, V(g1))
    k.op("v_lshrrev_b32", V(16), 5, V(vL))
    k.op("v_lshl_add_u32", V(15), V(16), 8, V(15))
    k.op("v_lshl_add_u32", V(15), V(l15), 4, V(15))
    C1, C2 = -2 * LOG2E * 0.7978845608028654, -2 * LOG2E * 0.7978845608028654 * 0.044715
    k.op("v_mov_b32", V(16), f32(C1)); k.op("v_mov_b32", V(17), f32(C2))
    k.op("v_mov_b32", V(18), "1.0"); k.op("v_mov_b32", V(19), "1.0")
    def P(r): return V(r, 2)
    bb, t = 96, 100
    for nb in range(3):
        k.op("v_lshlrev_b32", V(bb), 16, V(B1[nb]))
        k.op("v_and_b32", V(bb + 1), "0xffff0000", V(B1[nb]))
        k.op("v_lshlrev_b32", V(bb + 2), 16, V(B1[nb] + 1))
        k.op("v_and_b32", V(bb + 3), "0xffff0000", V(B1[nb] + 1))
        cs = MACC + 48 + 4 * nb
        k.op("s_mul_i32", S(sT1), S(sH), 3)
        k.op("s_add_u32", S(sT1), S(sT1), nb)
        k.op("s_lshl_b32", S(sT2), S(sT1), 9)
        k.op("s_add_u32", S(sT2), S(sT2), HF_OFF)
        lab = k.newlabel("skiph")
        k.op("s_cmp_ge_u32", S(sT1), 86)
        k.op("s_cbranch_scc1", lab)
        for rp in range(2):
            rbs = (2 * rp, 2 * rp + 1)
            def each(fn):
                for j, rb in enumerate(rbs):
                    for i in (0, 2): fn(macc(nb, rb) + i, t + 4 * j + i, ST + 2 * rb, i)
            each(lambda a, tt, st, i: k.op("v_pk_fma_f32", P(a), P(cs + i), P(st), P(a), mods="op_sel_hi:[1,0,1] neg_lo:[1,0,0] neg_hi:[1,0,0]"))
            each(lambda a, tt, st, i: k.op("v_pk_fma_f32", P(a), P(a), P(st), P(bb + i), mods="op_sel:[0,1,0]"))
            each(lambda a, tt, st, i: k.op("v_pk_mul_f32", P(tt), P(a), P(a)))
            each(lambda a, tt, st, i: k.op("v_pk_fma_f32", P(tt), P(tt), P(16), P(16), mods="op_sel:[0,1,0] op_sel_hi:[1,1,0]"))
            each(lambda a, tt, st, i: k.op("v_pk_mul_f32", P(tt), P(tt), P(a)))
            for i in range(8): k.op("v_exp_f32", V(t + i), V(t + i))
            each(lambda a, tt, st, i: k.op("v_pk_add_f32", P(tt), P(tt), P(18)))
            for i in range(8): k.op("v_rcp_f32", V(t + i), V(t + i))
            each(lambda a, tt, st, i: k.op("v_pk_mul_f32", P(a), P(a), P(tt)))
            a0, a1 = macc(nb, rbs[0]), macc(nb, rbs[1])
            k.op("v_cvt_pk_bf16_f32", V(a0), V(a0), V(a0 + 1))
            k.op("v_cvt_pk_bf16_f32", V(a0 + 1), V(a0 + 2), V(a0 + 3))
            k.op("v_cvt_pk_bf16_f32", V(a0 + 2), V(a1), V(a1 + 1))
            k.op("v_cvt_pk_bf16_f32", V(a0 + 3), V(a1 + 2), V(a1 + 3))
            k.op("s_add_u32", S(sT0), S(sHr + 2 * rp), S(sT2))
            k.nop(1)
            k.op("v_permlane16_swap_b32", V(a0), V(a0 + 2))
            k.op("v_permlane16_swap_b32", V(a0 + 1), V(a0 + 3))
            k.op("buffer_store_dwordx4", V(a0, 4), V(15), S(sWS, 4), S(sT0), mods="offen" + (" sc1" if fuse3 else ""))
        k.label(lab)
    k.op("v_mov_b32", V(16), f32(QSCALE)); k.op("v_mov_b32", V(17), f32(QSCALE))
    def Qreg(sub, qb, ds): return QR + sub * 32 + qb * 16 + ds * 4
    for rb in range(4):
        for ds in range(4):
            X = Qreg(rb >> 1, rb & 1, ds)
            for half in range(2):
                a = qacc(2 * ds + half, rb)
                for i in (0, 2): k.op("v_pk_mul_f32", P(a + i), P(a + i), P(16))
                k.op("v_cvt_pk_bf16_f32", V(X + 2 * half), V(a), V(a + 1))
                k.op("v_cvt_pk_bf16_f32", V(X + 2 * half + 1), V(a + 2), V(a + 3))
    stp.stamp()
    def Ngm(sub, qb): return NEGM + sub * 8 + qb * 4
    def Lac(sub, qb): return 112 + sub * 8 + qb * 4
    ON1 = 24
    k.op("s_and_b32", S(sT0), S(sW), 1)
    k.op("s_lshl_b32", S(sT0), S(sT0), 5)
    k.op("v_add_u32", V(vZ), S(sT0), V(l15))
    k.op("v_lshlrev_b32", V(15), 2, V(g))
    k.op("v_sub_u32", V(vZ), V(vZ), V(15))
    k.op("v_mov_b32", V(vNinf), f32(-1e30))
    for i in range(4): k.op("v_mov_b32", V(ON1 + i), "0x3f803f80")
    for i in range(16): k.op("v_mov_b32", V(112 + i), 0)
    k.op("s_mov_b32", S(sThr), f32(thr))
    k.op("s_mov_b32", S(sP2), 0)
    k.op("s_mov_b32", S(sNx), 98304)
    k.op("s_mov_b32", S(sTK), 4 * 16384)
    k.op("s_mov_b32", S(sT), 2)

    def mf(d, a, b, c): k.op("v_mfma_f32_16x16x32_bf16", d, a, b, c)
    def mask_block(sub, par):
        s0 = Sreg(sub, par)
        for e0 in range(0, 32, 2):
            for u in range(2):
                e = e0 + u; qb, kb, r = e >> 4, (e >> 2) & 3, e & 3
                k.op("v_cmp_gt_i32", S(sM + 2 * u, 2), 16 * kb + r - 16 * qb, V(vZ))
            k.nop(1)
            for u in range(2):
                k.op("v_cndmask_b32", V(s0 + e0 + u), V(s0 + e0 + u), V(vNinf), S(sM + 2 * u, 2))
    def ereg(n):
        k32, qb, j = n >> 4, (n >> 3) & 1, n & 7
        return qb * 16 + k32 * 8 + j
    def soft_exp(sub, par, n):
        r = Sreg(sub, par) + ereg(n)
        k.op("v_exp_f32", V(r), V(r))
    def soft_cvt(sub, par, n):
        e = n - 2
        r = Sreg(sub, par) + ereg(e)
        d = Sreg(sub, par) + (ereg(e) & ~7) + ((e & 7) >> 1)
        k.op("v_cvt_pk_bf16_f32", V(d), V(r), V(r + 1))
    def rd(frag, isV):
        k.op("ds_read_b128", A(FR + frag * 4, 4), V(vA), mods=f"offset:{(16384 if isV else 0) + frag*1024}")
    def ldK(i): return lambda: k.op("buffer_load_dwordx4", V(vD), S(sK, 4), S(sTK), mods=f"offen offset:{i*1024}{SC} lds")
    def ldV(i): return lambda: k.op("buffer_load_dwordx4", V(vD), S(sV, 4), S(sTK), mods=f"offen offset:{i*1024}{SC} lds")
    m0K = lambda: k.op("s_add_u32", "m0", S(sP2), S(sW4k))
    m0V = lambda: k.op("s_add_u32", "m0", "m0", 16384)
    advT = lambda: k.op("s_add_u32", S(sTK), S(sTK), 16384)
    advP = lambda: k.op("s_add_u32", S(sP2), S(sP2), 32768)
    wrapP = lambda: (k.op("s_cmp_eq_u32", S(sP2), 163840), k.op("s_cselect_b32", S(sP2), 0, S(sP2)))
    XA = {1: [ldK(2)], 5: [ldK(3)], 7: [m0V], 9: [ldV(0)], 13: [ldV(1)]}
    XB = {1: [ldV(2)], 5: [ldV(3)], 7: [advT, advP], 9: [wrapP, m0K], 11: [ldK(0)], 15: [ldK(1)]}
    if DA == 6:
        XB = {1: [ldV(2)], 5: [ldV(3)], 7: [advT, advP], 9: [wrapP], 11: [m0K], 13: [ldK(0)], 15: [ldK(1)]}
    WP = wp
    def phaseA(par, qk, ex):
        if not qk:
            k.wait(lgkm=0)
            for f in range(DA): rd(f, True)
            for n in range(16, 32):
                for sub in ex:
                    soft_exp(sub, par, n)
                    if n % 2 == 0: soft_cvt(sub, par, n)
            return
        for f in range(16):
            kb, ds = f >> 2, f & 3
            if f % WP == 0: k.wait(lgkm=DA - WP)
            for j, sub in enumerate(qk):
                xs = ex if len(qk) == 1 else [sub]
                for qb in range(2):
                    d = V(Sreg(sub, 1 - par) + qb * 16 + kb * 4, 4)
                    mf(d, A(FR + f * 4, 4), V(Qreg(sub, qb, ds), 4), V(Ngm(sub, qb), 4) if ds == 0 else d)
                    if qb == 0:
                        for x in xs: soft_exp(x, par, 16 + f)
                if j == 0:
                    nf = f + DA
                    if nf < 16: rd(nf, False)
                    else: rd(nf - 16, True)
                if f % 2 == 0:
                    for x in xs: soft_cvt(x, par, 16 + f)
                if j == len(qk) - 1:
                    for fn in XA.get(f, []): fn()
    def phaseB(par, pv, exn, bar="always", tailops=()):
        extra = list(tailops)
        for f in range(16):
            k32, db = f >> 3, f & 7
            if f % WP == 0: k.wait(lgkm=DA - WP if bar == "always" else max(0, min(DA - WP, 16 - f - WP)))
            for j, sub in enumerate(pv):
                for qb in range(2):
                    d = A(OA + sub * 64 + (db * 2 + qb) * 4, 4)
                    mf(d, A(FR + f * 4, 4), V(Sreg(sub, par) + qb * 16 + k32 * 8, 4), d)
                    if qb == 0 and sub in exn: soft_exp(sub, 1 - par, f)
                if j == 0:
                    nf = f + DA
                    if nf == 16:
                        if bar == "always":
                            k.wait(vm=16); k.op("s_barrier")
                        elif bar == "w01":
                            lab = k.newlabel("nobar")
                            k.op("s_cmp_ge_u32", S(sW), 2); k.op("s_cbranch_scc1", lab)
                            k.wait(vm=8); k.op("s_barrier")
                            k.label(lab)
                        k.op("v_add_u32", V(vA), S(sNx), V(vL16))
                    if bar == "always" or nf < 16:
                        if nf < 16: rd(nf, True)
                        else: rd(nf - 16, False)
                if f == 0: soft_cvt(sub, par, 32)
                elif f % 2 == 0 and sub in exn: soft_cvt(sub, 1 - par, f)
                if f % 4 == 3:
                    qb = (f >> 2) & 1
                    d = V(Lac(sub, qb), 4)
                    mf(d, V(ON1, 4), V(Sreg(sub, par) + qb * 16 + k32 * 8, 4), d)
                if j == len(pv) - 1 and bar == "always":
                    for fn in XB.get(f, []): fn()
                    if f in (3, 13, 14) and extra: extra.pop(0)()
        for fn in extra: fn()
    def nx_items():
        return [lambda: k.op("s_add_u32", S(sT), S(sT), 1),
                lambda: k.op("s_add_u32", S(sNx), S(sNx), 32768),
                lambda: (k.op("s_cmp_eq_u32", S(sNx), 163840), k.op("s_cselect_b32", S(sNx), 0, S(sNx)))]
    def rowmax(sub, par, qb, dst):
        s0 = Sreg(sub, par) + 16 * qb
        k.op("v_max3_f32", V(dst), V(s0), V(s0 + 1), V(s0 + 2))
        for e in range(3, 15, 2): k.op("v_max3_f32", V(dst), V(dst), V(s0 + e), V(s0 + e + 1))
        k.op("v_max_f32", V(dst), V(dst), V(s0 + 15))
        for sw in ("v_permlane16_swap_b32", "v_permlane32_swap_b32"):
            k.op("v_mov_b32", V(vT + 1), V(dst))
            k.nop(2)
            k.op(sw, V(dst), V(vT + 1))
            k.op("v_max_f32", V(dst), V(dst), V(vT + 1))
    slow_sites = {}
    def epilogue(sub, site):
        t = Sreg(sub, 0)
        k.nop(8)
        k.op("v_max_f32", V(vT), V(Lac(sub, 0)), V(Lac(sub, 1)))
        k.op("v_add_f32", V(vT + 1), V(Lac(sub, 0)), V(Lac(sub, 1)))
        k.op("v_cmp_nle_f32", "vcc", V(vT + 1), V(21))
        k.op("s_mov_b32", S(sRet), site)
        k.op("s_cbranch_vccnz", f"k2_slow_{sub}")
        lab = f"k2_ret_{sub}_{site}"
        k.label(lab)
        slow_sites.setdefault(sub, []).append((site, lab))
        k.op("v_rcp_f32", V(vT + 3), V(Lac(sub, 0)))
        k.op("v_rcp_f32", V(vT + 4), V(Lac(sub, 1)))
        for qb in range(2):
            if qb: k.op("s_add_u32", S(sT0), S(sCa if sub == 0 else sCb), 131072)
            for ks in range(4):
                b = t + (qb * 4 + ks) * 8
                for half in range(2):
                    for i in range(4):
                        k.op("v_accvgpr_read_b32", V(b + 4 * half + i), A(OA + sub * 64 + ((2 * ks + half) * 2 + qb) * 4 + i))
                for i in range(0, 8, 2):
                    k.op("v_pk_mul_f32", P(b + i), P(b + i), P(vT + 3), mods="op_sel_hi:[1,0]" if qb == 0 else "op_sel:[0,1]")
                for i in range(4): k.op("v_cvt_pk_bf16_f32", V(b + i), V(b + 2 * i), V(b + 2 * i + 1))
                k.op("buffer_store_dwordx4", V(b, 4), V(vL16), S(sWS, 4), S(sT0 if qb else (sCa if sub == 0 else sCb)),
                     mods=f"offen offset:{ks*1024}" + (" sc1" if fuse3 else ""))
    k.op("v_mov_b32", V(21), S(sThr))
    k.op("v_add_u32", V(vT), 32768, V(vL16))
    for f in range(16): k.op("ds_read_b128", A(f * 4, 4), V(vT), mods=f"offset:{f*1024}")
    zi = 0
    for f in range(16):
        kb, ds = f >> 2, f & 3
        k.wait(lgkm=15 - f)
        for sub in range(2):
            for qb in range(2):
                d = V(Sreg(sub, 0) + qb * 16 + kb * 4, 4)
                mf(d, A(f * 4, 4), V(Qreg(sub, qb, ds), 4), "0" if ds == 0 else d)
                for _ in range(2):
                    k.op("v_accvgpr_write_b32", A(OA + zi), 0); zi += 1
    k.wait(vm=12)
    k.op("s_barrier")
    m0K()
    k.op("v_add_u32", V(vA), 65536, V(vL16))
    ldK(0)(); ldK(1)()
    for f in range(DA): rd(f, False)
    lab = k.newlabel("nomask0")
    k.op("s_cmp_lg_u32", S(sNa), 1); k.op("s_cbranch_scc1", lab)
    mask_block(0, 0)
    k.label(lab)
    for sub in range(2):
        for qb in range(2):
            rowmax(sub, 0, qb, vT + 2)
            n0 = Ngm(sub, qb)
            for i in range(4): k.op("v_sub_f32", V(n0 + i), 0, V(vT + 2))
            for e in range(0, 16, 2): k.op("v_pk_add_f32", P(Sreg(sub, 0) + 16 * qb + e), P(Sreg(sub, 0) + 16 * qb + e), P(n0))
    for n in range(16):
        for sub in range(2):
            soft_exp(sub, 0, n)
        for sub in range(2):
            if n % 2 == 0 and n: soft_cvt(sub, 0, n)
    def pf_k3():
        sp = sWQ
        k.op("s_and_b32", S(sT0), "s2", 7)
        k.op("s_lshr_b32", S(sT0), S(sT0), 1)
        k.op("s_mul_i32", S(sT1), S(sT0), 43 * 32768)
        k.op("s_cmp_lt_u32", S(sT0), 3)
        k.op("s_cselect_b32", S(sp), S(86), S(96))
        k.op("s_cselect_b32", S(sp + 1), S(87), S(97))
        k.op("s_mov_b32", S(sp + 2), hex(SZ["w2"]))
        k.op("s_cselect_b32", S(sp + 2), hex(SZ["wo"]), S(sp + 2))
        k.op("s_cselect_b32", S(sT1), S(sT1), 0)
        k.op("s_and_b32", S(sp + 1), S(sp + 1), "0xffff")
        k.op("s_mov_b32", S(sp + 3), "0x20000")
        k.op("s_lshr_b32", S(sT2), "s2", 3)
        k.op("s_lshl_b32", S(sT2), S(sT2), 2)
        k.op("s_add_u32", S(sT2), S(sT2), S(sW))
        k.op("s_mul_i32", S(sT0), S(sT2), 11264)
        k.op("s_add_u32", S(sT1), S(sT1), S(sT0))
        k.op("v_lshlrev_b32", V(vT), 7, V(vL))
        k.op("buffer_load_dword", V(130), V(vT), S(sp, 4), S(sT1), mods="offen", dummy=True)
        k.op("v_and_b32", V(vT + 2), 31, V(vL))
        k.op("v_lshlrev_b32", V(vT + 2), 7, V(vT + 2))
        k.op("s_add_u32", S(sT1), S(sT1), 8192)
        k.op("buffer_load_dword", V(130), V(vT + 2), S(sp, 4), S(sT1), mods="offen", dummy=True)
        k.op("s_lshl_b32", S(sT2), S(sT2), 13)
        pf_code(k, sW1, "k3_kernel", "k3_end-k3_kernel", vT, vL, sT2, 130)
    if pf3 == 3: pf_k3()
    stp.stamp()
    k.op("s_cmp_lt_u32", 1, S(sNa))
    k.op("s_cbranch_scc0", "k2_DL0")
    ool = []
    def maskif(sub, par):
        lab, lab2 = k.newlabel("nomask"), k.newlabel("domask")
        k.op("s_cmp_eq_u32", S(sT), S(sNa if sub == 0 else sNb)); k.op("s_cbranch_scc1", lab2)
        k.label(lab)
        ool.append((lab2, lab, sub, par))
    for par in range(2):
        k.label(f"k2_DD{par}")
        phaseA(par, [0, 1], [0, 1])
        maskif(0, 1 - par)
        phaseB(par, [0, 1], [0, 1], tailops=nx_items())
        k.op("s_cmp_le_u32", S(sT), S(sNa))
        k.op("s_cbranch_scc0", f"k2_DL{1-par}")
        if par == 1: k.op("s_branch", "k2_DD0")
    for par in range(2):
        k.label(f"k2_DL{par}")
        phaseA(par, [1], [0, 1])
        phaseB(par, [0, 1], [1], tailops=nx_items())
        epilogue(0, par)
        if pf3 == 2: pf_k3()
        k.op("s_branch", f"k2_SS{1-par}")
    for par in range(2):
        k.label(f"k2_SS{par}")
        phaseA(par, [1], [1])
        maskif(1, 1 - par)
        phaseB(par, [1], [1], tailops=nx_items())
        k.op("s_cmp_le_u32", S(sT), S(sNb))
        k.op("s_cbranch_scc0", f"k2_SL{1-par}")
        if par == 1: k.op("s_branch", "k2_SS0")
    for par in range(2):
        k.label(f"k2_SL{par}")
        if pf3 == 1: pf_k3()
        phaseA(par, [], [1])
        k.nop(2)
        phaseB(par, [1], [], bar="w01")
        if par == 0: k.op("s_branch", "k2_fin")
    k.label("k2_fin")
    stp.stamp()
    epilogue(1, 0)
    if stamps:
        k.wait(vm=0, lgkm=0)
        stp.stamp()
        stp.flush(sWS, sW, 13)
    if fuse3:
        k.op("s_lshl_b32", S(sT0), S(sP), 8)
        k.op("s_lshl_b32", S(sT1), S(sH), 2)
        k.op("s_add_u32", S(sT0), S(sT0), S(sT1))
        k.op("s_add_u32", S(96), S(sT0), FLAG2_OFF)
        k.wait(lgkm=0)
        k.raw("  s_branch k3_kernel")
    k.op("s_endpgm")
    for (lab2, lab, sub, par) in ool:
        k.label(lab2)
        k.nop(8)
        mask_block(sub, par)
        k.op("s_branch", lab)
    sU, sUo = 60, 61
    for sub, sites in sorted(slow_sites.items()):
        s0 = Sreg(sub, 0)
        m = [Ngm(sub, 0), Ngm(sub, 1)]
        k.label(f"k2_slow_{sub}")
        k.nop(8)
        for i in range(64): k.op("v_accvgpr_write_b32", A(OA + sub * 64 + i), 0)
        for qb in range(2):
            k.op("v_mov_b32", V(m[qb]), f32(-1e30))
            for i in range(4): k.op("v_mov_b32", V(Lac(sub, qb) + i), 0)
        k.op("s_mov_b32", S(sU), 1)
        k.op("s_mov_b32", S(sUo), 0)
        loop = f"k2_slowloop_{sub}"
        k.label(loop)
        for c in range(4):
            k.op("s_add_u32", S(sLd), S(sUo), c * 4096)
            for i in range(4): k.op("buffer_load_dwordx4", A((c * 4 + i) * 4, 4), V(vL16), S(sK, 4), S(sLd), mods=f"offen offset:{i*1024}" + SC)
        k.wait(vm=0)
        for f in range(16):
            kb, ds = f >> 2, f & 3
            for qb in range(2):
                d = V(s0 + qb * 16 + kb * 4, 4)
                mf(d, A(f * 4, 4), V(Qreg(sub, qb, ds), 4), "0" if ds == 0 else d)
        for c in range(4):
            k.op("s_add_u32", S(sLd), S(sUo), c * 4096 + 16384)
            for i in range(4): k.op("buffer_load_dwordx4", A((c * 4 + i) * 4, 4), V(vL16), S(sV, 4), S(sLd), mods=f"offen offset:{i*1024}" + SC)
        lab = k.newlabel("snomask")
        k.op("s_cmp_lg_u32", S(sU), S(sNa if sub == 0 else sNb)); k.op("s_cbranch_scc1", lab)
        mask_block(sub, 0)
        k.label(lab)
        for qb in range(2):
            al = m[qb] + 1
            rowmax(sub, 0, qb, vT + 3)
            k.op("v_max_f32", V(vT + 3), V(vT + 3), V(m[qb]))
            k.op("v_sub_f32", V(al), V(m[qb]), V(vT + 3))
            k.op("v_mov_b32", V(m[qb]), V(vT + 3))
            k.op("v_exp_f32", V(al), V(al))
            for e in range(16): k.op("v_sub_f32", V(s0 + 16 * qb + e), V(s0 + 16 * qb + e), V(m[qb]))
            for i in range(4): k.op("v_mul_f32", V(Lac(sub, qb) + i), V(Lac(sub, qb) + i), V(al))
            for db in range(8):
                for i in range(4):
                    ar = OA + sub * 64 + (db * 2 + qb) * 4 + i
                    k.op("v_accvgpr_read_b32", V(vT + (i & 1)), A(ar))
                    k.op("v_mul_f32", V(vT + (i & 1)), V(vT + (i & 1)), V(al))
                    k.op("v_accvgpr_write_b32", A(ar), V(vT + (i & 1)))
        for n in range(33):
            if n < 32: soft_exp(sub, 0, n)
            else: k.nop(1)
            if n % 2 == 0 and n: soft_cvt(sub, 0, n)
        k.wait(vm=0)
        k.nop(1)
        for f in range(16):
            k32, db = f >> 3, f & 7
            for qb in range(2):
                d = A(OA + sub * 64 + (db * 2 + qb) * 4, 4)
                mf(d, A(f * 4, 4), V(s0 + qb * 16 + k32 * 8, 4), d)
            if f % 4 == 3:
                qb = (f >> 2) & 1
                d = V(Lac(sub, qb), 4)
                mf(d, V(ON1, 4), V(s0 + qb * 16 + k32 * 8, 4), d)
        k.op("s_add_u32", S(sUo), S(sUo), 16384)
        k.op("s_add_u32", S(sU), S(sU), 1)
        k.nop(8)
        k.op("s_cmp_le_u32", S(sU), S(sNa if sub == 0 else sNb))
        k.op("s_cbranch_scc1", loop)
        for (site, lab) in sites[:-1]:
            k.op("s_cmp_eq_u32", S(sRet), site); k.op("s_cbranch_scc1", lab)
        k.op("s_branch", sites[-1][1])
    k.label("k2_end")
    k.op("s_endpgm")
    return k

if __name__ == "__main__":
    k = build_k2()
    for e in k.check_hazards(): print(e)
    for e in k.check_waits(): print(e)
    print(k.maxregs(), len(k.ins))
```

```python
from common import *
LDS = 163840
PART_OFF = 64 << 20
NKS = 43
def build_k3(stamps=False, WIN=0, NR=5, q2rate=2, nodma=False, nomma=False, fused=False, pfself=True, psleep=8, dbgout=None):
    k = Kern("k3_kernel")
    vq, lq = Q(k, "vmcnt", 63), Q(k, "lgkmcnt", 15)
    stp = Stamps(k, stamps, 62, 2, lq, maxn=8)
    sWS, sWm, sX, sO, sB2, sDb = 8, 12, 16, 20, 24, 84
    sW, sMt, sNt, sT0, sT1, sT2 = 28, 29, 30, 31, 32, 33
    sAo, sS, sWo, sCnt, sMa, sMw = 34, 35, 36, 37, 38, 39
    sRot, sSt, sAc, sWc, sPw, sPr, sTile = 52, 53, 54, 55, 56, 57, 58
    vL, vL16 = 1, 2
    VA, VW = 4, 6
    TA = 8
    AA = 24
    g, l15, r_, cc, g1, t0, t1 = 26, 27, 28, 29, 30, 31, 3
    vOo = 32
    XV, BV = 34, 42
    ACC = 52
    AF = 116
    WF = 148
    k.op("s_cmp_ge_u32", "s2", 256)
    k.op("s_cbranch_scc1", "k3_end")
    if pfself:
        pf_self(k, "k3_end", vt=188); vq.issue()
    k.op("s_load_dwordx2", S(40, 2), S(0, 2), KA["x"])
    k.op("s_load_dwordx2", S(42, 2), S(0, 2), KA["wo"])
    k.op("s_load_dwordx4", S(44, 4), S(0, 2), KA["w2"])
    k.op("s_load_dwordx4", S(48, 4), S(0, 2), KA["out"])
    k.op("s_load_dwordx2", S(88, 2), S(0, 2), KA["ws"])
    k.op("v_and_b32", V(vL), 63, "v0")
    k.op("v_lshrrev_b32", V(t0), 6, "v0")
    k.op("s_and_b32", S(sT0), "s2", 7)
    k.op("v_readfirstlane_b32", S(sW), V(t0))
    k.op("s_lshr_b32", S(sS), S(sT0), 1)
    k.op("s_and_b32", S(sT0), S(sT0), 1)
    k.op("s_lshr_b32", S(sT1), "s2", 3)
    k.op("s_and_b32", S(sT2), S(sT1), 7)
    k.op("s_lshl_b32", S(sMt), S(sT0), 3)
    k.op("s_add_u32", S(sMt), S(sMt), S(sT2))
    k.op("s_lshr_b32", S(sNt), S(sT1), 3)
    k.op("s_add_u32", S(sRot), S(sMt), S(sNt))
    k.op("s_and_b32", S(sRot), S(sRot), 3)
    k.op("s_lshl_b32", S(sTile), S(sMt), 2)
    k.op("s_add_u32", S(sTile), S(sTile), S(sNt))
    k.op("v_lshlrev_b32", V(vL16), 4, V(vL))
    k.op("v_lshrrev_b32", V(g), 4, V(vL))
    k.op("v_and_b32", V(l15), 15, V(vL))
    k.op("v_bfe_u32", V(r_), V(vL), 2, 2)
    k.op("v_and_b32", V(cc), 3, V(vL))
    k.op("v_and_b32", V(g1), 1, V(g))
    k.op("s_mul_i32", S(sWo), S(sS), NKS)
    k.op("s_mov_b32", S(sT0), 44032)
    k.op("s_mov_b32", S(sAo), HF_OFF)
    k.op("s_cmp_lt_u32", S(sS), 3)
    k.op("s_cselect_b32", S(sT0), 131072, S(sT0))
    k.op("s_cselect_b32", S(sAo), CTX_OFF, S(sAo))
    k.op("s_cselect_b32", S(sWo), S(sWo), 0)
    k.op("s_cselect_b64", "vcc", "-1", "0")
    k.op("s_cmp_eq_u32", S(sS), 2)
    k.op("s_cselect_b32", S(sCnt), 41, 42)
    k.op("s_lshl_b32", S(sT1), S(sWo), 10)
    k.op("s_add_u32", S(sAo), S(sAo), S(sT1))
    k.op("s_lshl_b32", S(sWo), S(sWo), 15)
    k.op("s_lshl_b32", S(sT2), S(sMt), 3)
    k.op("s_lshl_b32", S(sT1), S(sW), 1)
    k.op("s_add_u32", S(sT2), S(sT2), S(sT1))
    k.op("s_mul_i32", S(sT2), S(sT2), S(sT0))
    k.op("s_add_u32", S(sAo), S(sAo), S(sT2))
    k.op("v_mov_b32", V(VA), V(vL16))
    k.op("s_sub_u32", S(sT0), S(sT0), 1024)
    k.op("v_add_u32", V(VA + 1), S(sT0), V(vL16))
    k.op("v_lshlrev_b32", V(t0), 1, V(g))
    k.op("v_xor_b32", V(t0), V(t0), V(l15))
    k.op("v_lshlrev_b32", V(t0), 4, V(t0))
    k.op("v_lshl_add_u32", V(t0), V(g), 10, V(t0))
    k.op("s_lshl_b32", S(sT1), S(sNt), 8)
    k.op("s_lshl_b32", S(sT2), S(sW), 13)
    k.op("s_add_u32", S(sT1), S(sT1), S(sT2))
    k.op("v_add_u32", V(VW), S(sT1), V(t0))
    k.op("s_and_b32", S(sT1), S(sW), 1)
    k.op("s_lshl_b32", S(sT1), S(sT1), 7)
    k.op("s_cmp_lt_u32", S(sS), 3)
    k.op("s_cselect_b32", S(sT2), 128, S(sT1))
    k.op("s_cselect_b32", S(sT1), 0, S(sT1))
    k.op("v_xor_b32", V(VW + 1), S(sT2), V(VW))
    k.op("v_xor_b32", V(VW), S(sT1), V(VW))
    k.op("v_add_u32", V(VW + 1), 4096 - 1024, V(VW + 1))
    k.op("s_lshl_b32", S(sMa), S(sW), 11)
    k.op("s_add_u32", S(sMw), S(sMa), 8192)
    k.wait(lgkm=0)
    stp.stamp()
    k.op("s_mov_b32", S(sWS), S(88))
    k.op("s_and_b32", S(sWS + 1), S(89), "0xffff")
    k.op("s_mov_b32", S(sWS + 2), hex(80 << 20))
    k.op("s_mov_b32", S(sWS + 3), "0x20000")
    k.op("s_cmp_lt_u32", S(sS), 3)
    k.op("s_cselect_b32", S(sWm), S(42), S(44))
    k.op("s_cselect_b32", S(sWm + 1), S(43), S(45))
    k.op("s_mov_b32", S(sWm + 2), hex(SZ["w2"]))
    k.op("s_cselect_b32", S(sWm + 2), hex(SZ["wo"]), S(sWm + 2))
    k.op("s_and_b32", S(sWm + 1), S(sWm + 1), "0xffff")
    k.op("s_mov_b32", S(sWm + 3), "0x20000")
    NST = 22
    def nks_of(st): return 2 if st < 21 else 1
    def issue_items(st, part="both", direct=True):
        it = []
        sl = (st % NR) * 32768
        def addr():
            if st < 21:
                if WIN == 0:
                    skew_stage(k, sSt, sRot, st, 21, sWc)
                elif st < 20:
                    k.op("s_add_u32", S(sSt), S(sRot), st % WIN)
                    k.op("s_and_b32", S(sSt), S(sSt), WIN - 1)
                    k.op("s_add_u32", S(sSt), S(sSt), st // WIN * WIN)
                else:
                    k.op("s_mov_b32", S(sSt), 20)
                k.op("s_lshl_b32", S(sWc), S(sSt), 16)
                k.op("s_add_u32", S(sWc), S(sWc), S(sWo))
                k.op("s_lshl_b32", S(sAc), S(sSt), 11)
                k.op("s_add_u32", S(sAc), S(sAc), S(sAo))
            else:
                k.op("s_add_u32", S(sWc), S(sWo), st * 65536)
                k.op("s_lshl_b32", S(sAc), S(sCnt), 10)
                k.op("s_add_u32", S(sAc), S(sAc), S(sAo))
        it.append(addr)
        for u in range(nks_of(st)):
            if part != "a":
                it.append(lambda u=u: k.op("s_add_u32", "m0", S(sMw), sl + u * 16384))
                if u: it.append(lambda: k.op("s_add_u32", S(sWc), S(sWc), 32768))
                elif direct: it.append(lambda: k.op("s_nop", 0))
                for j in range(2):
                    def w(j=j):
                        k.op("buffer_load_dwordx4", V(VW + j), S(sWm, 4), S(sWc), mods=f"offen offset:{j*1024} lds"); vq.issue(("s", st))
                    it.append(w)
            if part != "w":
                it.append(lambda u=u: k.op("s_add_u32", "m0", S(sMa), sl + u * 16384))
                if u: it.append(lambda: k.op("s_add_u32", S(sAc), S(sAc), 1024))
                elif direct: it.append(lambda: k.op("s_nop", 0))
                for j in range(2):
                    def a(j=j):
                        k.op("buffer_load_dwordx4", V(VA + j), S(sWS, 4), S(sAc), mods=f"offen offset:{j*1024}{' sc1' if fused else ''} lds"); vq.issue(("s", st))
                    it.append(a)
        return it
    if not fused:
        for st in range(NR - 2):
            for f in issue_items(st): f()
    load_srd(k, sX, "x", 40); load_srd(k, sO, "out", 48); load_srd(k, sB2, "b2", 46)
    k.op("s_mov_b32", S(sDb), S(50))
    k.op("s_and_b32", S(sDb + 1), S(51), "0xffff")
    k.op("s_mov_b32", S(sDb + 2), 256)
    k.op("s_mov_b32", S(sDb + 3), "0x20000")
    k.op("v_lshlrev_b32", V(t0), 2, V(g))
    k.op("v_lshlrev_b32", V(t1), 3, V(g))
    k.op("v_cndmask_b32", V(t0), V(t1), V(t0), "vcc")
    k.op("v_add_u32", V(t0), V(t0), V(r_))
    k.op("v_lshlrev_b32", V(t0), 8, V(t0))
    k.op("v_lshl_add_u32", V(t0), V(cc), 3, V(t0))
    k.op("v_add_u32", V(t0), 8192, V(t0))
    k.op("v_lshl_or_b32", V(t1), V(g1), 2, V(r_))
    k.op("s_and_b32", S(sT1), S(sW), 1)
    k.op("s_lshl_b32", S(sT1), S(sT1), 2)
    k.op("v_xor_b32", V(t1), S(sT1), V(t1))
    k.op("s_mov_b32", S(sT0), 1024)
    k.op("s_cmp_lt_u32", S(sS), 3)
    k.op("s_cselect_b32", S(sT0), 4096, S(sT0))
    for nb in range(4):
        k.op("v_xor_b32", V(33), nb, V(t1))
        k.op("v_lshl_add_u32", V(TA + 2 * nb), V(33), 5, V(t0))
        k.op("v_add_u32", V(TA + 2 * nb + 1), S(sT0), V(TA + 2 * nb))
    for i in range(8): k.op("v_add_u32", V(TA + 8 + i), 65536, V(TA + i))
    for i in range(8): k.op("v_add_u32", V(180 + i), 131072, V(TA + i))
    k.op("s_lshr_b32", S(sT1), S(sW), 1)
    k.op("s_lshl_b32", S(sT1), S(sT1), 12)
    k.op("v_add_u32", V(AA), S(sT1), V(vL16))
    k.op("v_add_u32", V(AA + 1), 65536, V(AA))
    k.op("v_add_u32", V(50), 131072, V(AA))
    k.op("s_lshl_b32", S(sT0), S(sMt), 17)
    k.op("s_lshr_b32", S(sT1), S(sW), 1)
    k.op("s_lshl_b32", S(sT1), S(sT1), 16)
    k.op("s_add_u32", S(sT0), S(sT0), S(sT1))
    k.op("s_lshl_b32", S(sT1), S(sS), 14)
    k.op("s_add_u32", S(sT0), S(sT0), S(sT1))
    k.op("s_lshl_b32", S(sT1), S(sNt), 8)
    k.op("s_and_b32", S(sT2), S(sW), 1)
    k.op("s_lshl_b32", S(sT2), S(sT2), 7)
    k.op("s_add_u32", S(sT1), S(sT1), S(sT2))
    k.op("s_add_u32", S(sT0), S(sT0), S(sT1))
    k.op("v_lshlrev_b32", V(vOo), 10, V(l15))
    k.op("v_lshl_add_u32", V(vOo), V(g), 3, V(vOo))
    k.op("v_add_u32", V(vOo), S(sT0), V(vOo))
    k.op("v_lshlrev_b32", V(33), 3, V(g))
    def xb_loads():
        for u in range(4):
            k.op("buffer_load_dwordx2", V(XV + 2 * u, 2), V(vOo), S(sX, 4), 0, mods=f"offen offset:{32*u}"); vq.issue("xb")
            k.op("buffer_load_dwordx2", V(BV + 2 * u, 2), V(33), S(sB2, 4), S(59), mods=f"offen offset:{32*u}"); vq.issue("xb")
    k.op("s_mov_b32", S(59), S(sT1))
    if not fused: xb_loads()
    k.op("s_lshl_b32", S(sPr), S(sTile), 17)
    k.op("s_lshl_b32", S(sT1), S(sW), 13)
    k.op("s_add_u32", S(sPr), S(sPr), S(sT1))
    k.op("s_add_u32", S(sPr), S(sPr), PART_OFF)
    k.op("s_lshl_b32", S(sT1), S(sS), 15)
    k.op("s_add_u32", S(sPw), S(sPr), S(sT1))
    k.op("s_lshl_b32", S(sT1), S(sS), 11)
    k.op("s_add_u32", S(sPr), S(sPr), S(sT1))
    if fused:
        k.wait(vm=0)
        k.op("s_barrier")
        lab = k.newlabel("noflag")
        k.op("s_cmp_lg_u32", S(sW), 0); k.op("s_cbranch_scc1", lab)
        k.op("v_mov_b32", V(ACC), 0)
        k.op("v_mov_b32", V(ACC + 1), 1)
        k.op("s_mov_b64", "exec", 1)
        k.op("buffer_store_dword", V(ACC + 1), V(ACC), S(sWS, 4), S(96), mods="offen sc1")
        k.op("s_mov_b64", "exec", -1)
        k.op("buffer_inv", mods="sc1")
        k.label(lab)
        stp.stamp()
        for st in range(NR - 2):
            for f in issue_items(st, "w"): f()
        xb_loads()
        lab = k.newlabel("nopoll")
        k.op("s_cmp_lg_u32", S(sW), 0); k.op("s_cbranch_scc1", lab)
        k.op("s_sub_u32", S(sT1), 15, S(sMt))
        k.op("s_min_u32", S(sT0), S(sMt), S(sT1))
        k.op("s_lshl_b32", S(sT0), S(sT0), 8)
        k.op("s_add_u32", S(sT0), S(sT0), FLAG2_OFF)
        k.op("s_mov_b32", S(92), "0x1fffffff")
        k.op("s_cmp_eq_u32", S(sS), 0); k.op("s_cselect_b32", S(92), "0x7ff", S(92))
        k.op("s_cmp_eq_u32", S(sS), 1); k.op("s_cselect_b32", S(92), "0x3ffc00", S(92))
        k.op("s_cmp_eq_u32", S(sS), 2); k.op("s_cselect_b32", S(92), "0xffe00000", S(92))
        k.op("s_mov_b32", S(93), 0)
        k.op("v_lshlrev_b32", V(t0), 2, V(vL))
        k.op("s_mov_b32", S(sT1), 0)
        k.op("s_mov_b64", "exec", S(92, 2))
        k.label("k3_poll2")
        k.op("buffer_load_dword", V(t1), V(t0), S(sWS, 4), S(sT0), mods="offen sc1")
        k.op("s_add_u32", S(sT1), S(sT1), 1)
        k.wait(vm=0)
        k.op("v_cmp_ne_u32", "vcc", 1, V(t1))
        k.op("s_cmp_gt_u32", S(sT1), SPIN_MAX)
        k.op("s_cbranch_scc1", "k3_p2done")
        k.op("s_cbranch_vccz", "k3_p2done")
        k.op("s_sleep", psleep)
        k.op("s_branch", "k3_poll2")
        k.label("k3_p2done")
        k.op("s_mov_b64", "exec", -1)
        k.label(lab)
        k.op("s_barrier")
        stp.stamp()
        for st in range(NR - 2):
            for f in issue_items(st, "a"): f()
    steps = [(st, u) for st in range(NST) for u in range(nks_of(st))]
    q = FillQ(k)
    def rd_items(i):
        st, u = steps[i]
        off = (st % NR) * 32768 + u * 16384
        hi = off // 65536
        off -= 65536 * hi
        it = []
        if u == 0:
            def sw():
                vq.need(("s", st), cnt=None if nodma else [4 * nks_of(st)])
                k.op("s_barrier")
                q2.flush()
                if st + NR - 2 < NST and not nodma:
                    for f in issue_items(st + NR - 2, direct=False): q2.add(f)
            it.append(sw)
        for x in range(4):
            def fa(rb=x):
                k.op("ds_read_b128", V(AF + (i % 2) * 16 + rb * 4, 4), V(AA + hi if hi < 2 else 50), mods=f"offset:{off + rb*1024}")
                lq.issue(("a", i))
            def fw(nb=x, j=0):
                k.op("ds_read_b64_tr_b16", V(WF + (i % 2) * 16 + nb * 4 + 2 * j, 2), V((TA + 8 * hi if hi < 2 else 180) + 2 * nb + j), mods=f"offset:{off}")
                lq.issue(("r", i, nb))
            if not nomma: it.append(fa)
        for nb in range(4):
            for j in range(2):
                if not nomma: it.append(lambda nb=nb, j=j: fw(nb, j))
        return it
    q2 = FillQ(k)
    for f in rd_items(0): f()
    stp.stamp()
    for i in range(len(steps)):
        if i + 1 < len(steps):
            for f in rd_items(i + 1): q.add(f)
        n = 0
        for nb in range(4):
            lq.need(("r", i, nb), ("a", i), cnt=None if nomma else [2, 4])
            for rb in range(4):
                d = V(ACC + 4 * (rb * 4 + nb), 4)
                if not nomma: k.op("v_mfma_f32_16x16x32_bf16", d, V(WF + (i % 2) * 16 + nb * 4, 4), V(AF + (i % 2) * 16 + rb * 4, 4), "0" if i == 0 else d)
                q.emit(1)
                if n % q2rate == q2rate - 1 or len(q) == 0: q2.emit(1)
                n += 1
        q.flush()
    q2.flush()
    stp.stamp()
    OWN = WF
    k.nop(8)
    for rb in range(4):
        l1, l2 = k.newlabel("own"), k.newlabel("nxt")
        a0 = ACC + 16 * rb
        k.op("s_cmp_eq_u32", S(sS), rb)
        k.op("s_cbranch_scc1", l1)
        for i in range(8): k.op("v_cvt_pk_bf16_f32", V(a0 + i), V(a0 + 2 * i), V(a0 + 2 * i + 1))
        if rb >= 2: k.op("s_add_u32", S(sT0), S(sPw), 4096)
        for p in range(2):
            k.op("buffer_store_dwordx4", V(a0 + 4 * p, 4), V(vL16), S(sWS, 4), S(sPw if rb < 2 else sT0), mods=f"offen offset:{(rb&1)*2048 + p*1024} sc1")
        k.op("s_branch", l2)
        k.label(l1)
        for i in range(16): k.op("v_mov_b32", V(OWN + i), V(a0 + i))
        k.label(l2)
    k.wait(vm=0)
    k.op("s_barrier")
    stp.stamp()
    k.op("s_cmp_lg_u32", S(sW), 0)
    k.op("s_cbranch_scc1", "k3_wait")
    k.op("s_lshl_b32", S(sT0), S(sTile), 8)
    k.op("s_add_u32", S(sT0), S(sT0), FLAG_OFF)
    k.op("s_lshl_b32", S(sT2), S(sS), 2)
    k.op("v_mov_b32", V(t0), 0)
    k.op("v_mov_b32", V(t1), 1)
    k.op("v_mov_b32", V(4), S(sT2))
    k.op("s_mov_b64", S(90, 2), "exec")
    k.op("s_mov_b64", "exec", 1)
    k.op("buffer_store_dword", V(t1), V(4), S(sWS, 4), S(sT0), mods="offen sc1")
    k.op("s_mov_b32", S(sT1), 0)
    k.label("k3_poll")
    k.op("buffer_load_dwordx4", V(4, 4), V(t0), S(sWS, 4), S(sT0), mods="offen sc1")
    k.op("s_add_u32", S(sT1), S(sT1), 1)
    k.wait(vm=0)
    k.op("v_and_b32", V(4), V(4), V(5))
    k.op("v_and_b32", V(6), V(6), V(7))
    k.op("v_and_b32", V(4), V(4), V(6))
    k.op("s_cmp_gt_u32", S(sT1), SPIN_MAX)
    k.op("v_readfirstlane_b32", S(sT2), V(4))
    k.op("s_cbranch_scc1", "k3_pdone")
    k.op("s_cmp_lg_u32", S(sT2), 1)
    k.op("s_cbranch_scc1", "k3_poll")
    k.label("k3_pdone")
    k.op("s_mov_b64", "exec", S(90, 2))
    k.label("k3_wait")
    k.op("s_barrier")
    stp.stamp()
    R = 8
    R = AF
    for src in range(4):
        l1 = k.newlabel("skp")
        k.op("s_cmp_eq_u32", S(sS), src)
        k.op("s_cbranch_scc1", l1)
        for p in range(2):
            k.op("buffer_load_dwordx4", V(R + src * 8 + 4 * p, 4), V(vL16), S(sWS, 4), S(sPr), mods=f"offen offset:{p*1024} sc1")
        k.label(l1)
        k.op("s_add_u32", S(sPr), S(sPr), 32768)
    def rb2(a):
        k.op("v_cvt_pk_bf16_f32", V(33), V(a), V(a + 1))
        k.op("v_lshlrev_b32", V(a), 16, V(33))
        k.op("v_and_b32", V(a + 1), "0xffff0000", V(33))
    def unpack(dst, src):
        k.op("v_lshlrev_b32", V(dst), 16, V(src))
        k.op("v_and_b32", V(dst + 1), "0xffff0000", V(src))
    XF, BF = 8, 164
    for i in range(8):
        unpack(XF + 2 * i, XV + i); unpack(BF + 2 * i, BV + i)
    k.wait(vm=0)
    F = ACC
    for src in range(4):
        l1, l2 = k.newlabel("own"), k.newlabel("nxt")
        k.op("s_cmp_eq_u32", S(sS), src)
        k.op("s_cbranch_scc1", l1)
        for i in range(8): unpack(F + 16 * src + 2 * i, R + src * 8 + i)
        k.op("s_branch", l2)
        k.label(l1)
        for i in range(16): k.op("v_mov_b32", V(F + 16 * src + i), V(OWN + i))
        k.label(l2)
    for i in range(16):
        k.op("v_add_f32", V(F + i), V(F + i), V(F + 16 + i))
        k.op("v_add_f32", V(F + i), V(F + i), V(F + 32 + i))
    for h in range(8):
        rb2(F + 2 * h); rb2(F + 48 + 2 * h)
    for i in range(16):
        k.op("v_add_f32", V(F + i), V(F + i), V(XF + i))
        k.op("v_add_f32", V(F + 48 + i), V(F + 48 + i), V(BF + i))
    for h in range(8):
        rb2(F + 2 * h); rb2(F + 48 + 2 * h)
    for i in range(16):
        k.op("v_add_f32", V(F + i), V(F + i), V(F + 48 + i))
    for nb in range(4):
        k.op("v_cvt_pk_bf16_f32", V(F + 4 * nb), V(F + 4 * nb), V(F + 4 * nb + 1))
        k.op("v_cvt_pk_bf16_f32", V(F + 4 * nb + 1), V(F + 4 * nb + 2), V(F + 4 * nb + 3))
        k.op("buffer_store_dwordx2", V(F + 4 * nb, 2), V(vOo), S(sO, 4), 0, mods=f"offen offset:{32*nb}")
    if stamps:
        k.wait(vm=0)
        stp.stamp()
        stp.flush(sWS, sW, 3)
        if dbgout is not None:
            k.wait(vm=0)
            lab = k.newlabel("nodbg")
            k.op("s_cmp_lg_u32", "s2", dbgout); k.op("s_cbranch_scc1", lab)
            k.op("s_cmp_lg_u32", S(sW), 0); k.op("s_cbranch_scc1", lab)
            sel = [(0, 0), (0, 2), (0, 3), (0, 5), (0, 8), (1, 1), (1, 2), (1, 4), (1, 5), (1, 6), (2, 1), (2, 2), (2, 4), (2, 5), (2, 6), (2, 7)]
            k.op("v_mov_b32", V(5), 0)
            for i, (ki, si) in enumerate(sel):
                k.op("s_mov_b32", S(sT0), STAMP_OFF + ki * (1 << 18) + dbgout * 1024 + si * 4)
                k.op("buffer_load_dword", V(8 + i), V(5), S(sWS, 4), S(sT0), mods="offen sc1")
            k.wait(vm=0)
            for i in range(16):
                k.op("v_sub_u32", V(30), V(8 + i), V(8))
                k.op("buffer_store_dword", V(30), V(5), S(sDb, 4), 0, mods=f"offen offset:{4*i}")
                k.nop(1)
            k.label(lab)
    k.label("k3_end")
    k.op("s_endpgm")
    return k

if __name__ == "__main__":
    k = build_k3()
    for e in k.check_hazards(): print(e)
    for e in k.check_waits(): print(e)
    print(k.maxregs(), len(k.ins))
```

```python
from common import *
import struct
def f32(x): return hex(struct.unpack("<I", struct.pack("<f", x))[0])
LOG2E = 1.4426950408889634
QSCALE = LOG2E / (128 ** 0.5)
STAT_OFF = YF_OFF

def build_k2(stamps=False, D=6, DA=8, thr=2.0 ** 60, pf3=True, fuse3=False, xnobar=False, xnodma=False, oolmask=True, pfself=True, fused1=False, early1=False, pace=True, wp=4):
    k = Kern("k2_kernel")
    SC = " sc1" if fused1 else ""
    vq, lq = Q(k, "vmcnt", 63), Q(k, "lgkmcnt", 15)
    stp = Stamps(k, stamps, 62, 1, lq, maxn=8)
    sWS, sWQ, sW1, sK, sV, sB1 = 8, 12, 16, 20, 24, 28
    sW, sH, sP, sNa, sNb, sT = 32, 33, 34, 35, 36, 37
    sT0, sT1, sT2, sSo = 38, 39, 40, 41
    sP2, sP1, sRd, sNx = 42, 43, 44, 45
    sTK, sTV, sW4k, sThr, sRet = 46, 47, 48, 49, 50
    sXa, sXb = 51, 52
    sCa, sCb = 53, 54
    sM = 56
    sLd = 98
    vL, vL16, vA, vD, vZ, vNinf = 1, 2, 3, 4, 5, 6
    vPs = [7, 8]; vLs = [9, 10]; vMx = [11, 12]
    vT = 13
    vCo = 20
    QR, NEGM, SR = 32, 96, 128
    def Sreg(sub, par): return SR + sub * 64 + par * 32
    OA, FR = 64, 192
    TA, TB, VW, VW1 = 96, 104, 108, 112
    vXo = 21
    MACC = 32
    ONES = 116
    XR = 0

    k.op("s_cmp_ge_u32", "s2", 256)
    k.op("s_cbranch_scc1", "k2_end")
    if pfself:
        pf_self(k, "k2_slow_0", vt=254); vq.issue()
    k.op("s_load_dwordx2", S(84, 2), S(0, 2), KA["wq"])
    k.op("s_load_dwordx4", S(88, 4), S(0, 2), KA["w1"])
    k.op("s_load_dwordx2", S(92, 2), S(0, 2), KA["ws"])
    k.op("s_load_dwordx2", S(86, 2), S(0, 2), KA["wo"])
    k.op("s_load_dwordx2", S(96, 2), S(0, 2), KA["w2"])
    k.op("v_and_b32", V(vL), 63, "v0")
    k.op("v_lshrrev_b32", V(13), 6, "v0")
    k.op("s_and_b32", S(sT0), "s2", 7)
    k.op("v_readfirstlane_b32", S(sW), V(13))
    k.op("s_lshr_b32", S(sT1), "s2", 3)
    k.op("s_and_b32", S(sT2), S(sT1), 3)
    k.op("s_lshl_b32", S(sH), S(sT0), 2)
    k.op("s_add_u32", S(sH), S(sH), S(sT2))
    k.op("s_lshr_b32", S(sP), S(sT1), 2)
    k.op("v_lshlrev_b32", V(vL16), 4, V(vL))
    k.op("s_lshl_b32", S(sW4k), S(sW), 12)
    k.op("v_add_u32", V(vD), S(sW4k), V(vL16))
    g, l15, p8, l3, r_, cc, g1, t7 = 22, 23, 24, 25, 26, 27, 28, 29
    k.op("v_lshrrev_b32", V(g), 4, V(vL))
    k.op("v_and_b32", V(l15), 15, V(vL))
    k.op("v_and_b32", V(p8), 7, V(vL))
    k.op("v_lshrrev_b32", V(l3), 3, V(vL))
    k.op("v_bfe_u32", V(r_), V(vL), 2, 2)
    k.op("v_and_b32", V(cc), 3, V(vL))
    k.op("v_and_b32", V(g1), 1, V(g))
    k.op("v_lshlrev_b32", V(t7), 1, V(g))
    k.op("v_xor_b32", V(t7), V(t7), V(l15))
    k.op("v_lshlrev_b32", V(t7), 4, V(t7))
    k.op("v_lshl_add_u32", V(t7), V(g), 13, V(t7))
    k.op("s_lshl_b32", S(sT0), S(sW), 17)
    k.op("s_lshl_b32", S(sT1), S(sH), 8)
    k.op("s_add_u32", S(sT0), S(sT0), S(sT1))
    k.op("v_add_u32", V(VW), S(sT0), V(t7))
    k.op("v_add_u32", V(VW + 1), 32768 - 1024, V(VW))
    k.op("v_xor_b32", V(VW + 2), 128, V(VW))
    k.op("v_add_u32", V(VW + 2), 2 * (32768 - 1024), V(VW + 2))
    k.op("v_add_u32", V(VW + 3), 32768 - 1024, V(VW + 2))
    k.op("v_lshlrev_b32", V(t7), 1, V(g1))
    k.op("v_xor_b32", V(t7), V(t7), V(p8))
    k.op("v_lshlrev_b32", V(t7), 4, V(t7))
    k.op("v_mul_u32_u24", V(30), 2752, V(l3))
    k.op("s_mul_i32", S(sT0), S(sW), 32 * 2752)
    k.op("s_mul_i32", S(sT1), S(sH), 96)
    k.op("s_add_u32", S(sT0), S(sT0), S(sT1))
    k.op("v_add_u32", V(30), S(sT0), V(30))
    k.op("v_add_u32", V(VW1), V(30), V(t7))
    k.op("v_xor_b32", V(t7), 64, V(t7))
    k.op("v_add_u32", V(VW1 + 1), V(30), V(t7))
    k.op("v_add_u32", V(VW1 + 1), 8 * 2752 - 1024, V(VW1 + 1))
    k.op("v_add_u32", V(VW1 + 2), 2 * (8 * 2752 - 1024), V(VW1))
    k.op("v_add_u32", V(VW1 + 3), 2 * (8 * 2752 - 1024), V(VW1 + 1))
    k.op("s_lshl_b32", S(sT0), S(sP), 7)
    k.op("s_lshl_b32", S(sT1), S(sW), 5)
    k.op("s_add_u32", S(sXa), S(sT0), S(sT1))
    k.op("s_sub_u32", S(sXb), 1920, S(sT0))
    k.op("s_add_u32", S(sXb), S(sXb), S(sT1))
    k.op("s_lshl_b32", S(sT2), S(sH), 12)
    k.op("s_add_u32", S(sT2), S(sT2), CTX_OFF)
    k.op("s_lshl_b32", S(sCa), S(sXa), 13)
    k.op("s_add_u32", S(sCa), S(sCa), S(sT2))
    k.op("s_lshl_b32", S(sCb), S(sXb), 13)
    k.op("s_add_u32", S(sCb), S(sCb), S(sT2))
    sRa, sRb = 94, 95
    k.op("s_mov_b32", S(sRa), S(sXa)); k.op("s_mov_b32", S(sRb), S(sXb))
    sHr = 56
    for rb in range(4):
        k.op("s_lshr_b32", S(sHr + rb), S(sRa if rb < 2 else sRb), 4)
        k.op("s_add_u32", S(sHr + rb), S(sHr + rb), rb & 1)
        k.op("s_mul_i32", S(sHr + rb), S(sHr + rb), 43 * 1024)
    k.op("s_lshl_b32", S(sXa), S(sXa), 10)
    k.op("s_lshl_b32", S(sXb), S(sXb), 10)
    k.op("s_lshr_b32", S(sT1), S(sW), 1)
    k.op("s_lshl_b32", S(sT0), S(sP), 1)
    k.op("s_add_u32", S(sNa), S(sT0), S(sT1))
    k.op("s_add_u32", S(sNa), S(sNa), 1)
    k.op("s_sub_u32", S(sNb), 31, S(sT0))
    k.op("s_add_u32", S(sNb), S(sNb), S(sT1))
    k.wait(lgkm=0)
    stp.stamp()
    load_srd(k, sWQ, "wq", 84); load_srd(k, sW1, "w1", 88); load_srd(k, sWS, "ws", 92)

    pages = {}
    order = []
    for j in range(4):
        order += [("W1", j), ("WQ", 2 * j), ("WQ", 2 * j + 1)]
    for i, p in enumerate(order): pages[p] = i
    for t in range(6): pages[("K", t)] = 12 + 2 * t; pages[("V", t)] = 15 + 2 * t
    def slot(p): return (pages[p] % 10) * 16384
    def dma_items(p):
        kind, j = p
        def setup():
            k.op("s_add_u32", "m0", S(sW4k), slot(p))
            k.op("s_mov_b32", S(sSo), {"W1": j * 128 * 2752, "WQ": j * 524288, "K": j * 16384, "V": (j + 1) * 16384}[kind])
        def ld(i):
            def f():
                if kind == "WQ": k.op("buffer_load_dwordx4", V(VW + i), S(sWQ, 4), S(sSo), mods=f"offen offset:{i*1024} lds")
                elif kind == "W1": k.op("buffer_load_dwordx4", V(VW1 + i), S(sW1, 4), S(sSo), mods=f"offen offset:{i*1024} lds")
                else: k.op("buffer_load_dwordx4", V(vD), S(sK if kind == "K" else sV, 4), S(sSo), mods=f"offen offset:{i*1024}{SC} lds")
                vq.issue(p)
            return f
        return [setup] + [ld(i) for i in range(4)]
    def xn_load(ks, rb):
        def f():
            r = XR + ((ks % 12) * 4 + rb) * 4
            if ks & 3 == 0: k.op("s_add_u32", S(sLd + rb), S(sXa if rb < 2 else sXb), (rb & 1) * 16384 + (ks >> 2) * 4096)
            k.op("buffer_load_dwordx4", A(r, 4), V(vL16), S(sWS, 4), S(sLd + rb), mods=f"offen offset:{(ks&3)*1024}" + SC)
            vq.issue(("x", ks))
        return f
    if early1:
        for p in (("W1", 0), ("WQ", 0), ("WQ", 1)):
            for _ in range(4): vq.issue(p)
        for ks in range(4):
            for _ in range(4): vq.issue(("x", ks))
        vq.issue(); vq.issue()
    else:
        for p in (("W1", 0), ("WQ", 0)):
            for f in dma_items(p): f()
        for ks in range(2):
            for rb in range(4): xn_load(ks, rb)()
        for f in dma_items(("WQ", 1)): f()
        for ks in range(2, 4):
            for rb in range(4): xn_load(ks, rb)()
    load_srd(k, sB1, "b1", 90)
    k.op("s_lshl_b32", S(sT0), S(sH), 19)
    k.op("s_add_u32", S(sT1), S(sT0), KF_OFF)
    k.op("s_add_u32", S(sK), S(92), S(sT1))
    k.op("s_addc_u32", S(sK + 1), S(93), 0)
    k.op("s_and_b32", S(sK + 1), S(sK + 1), "0xffff")
    k.op("s_lshl_b32", S(sT2), S(sP), 15)
    k.op("s_sub_u32", S(sK + 2), 32 * 16384, S(sT2))
    k.op("s_mov_b32", S(sK + 3), "0x20000")
    k.op("s_add_u32", S(sT1), S(sT0), VF_OFF - 16384)
    k.op("s_add_u32", S(sV), S(92), S(sT1))
    k.op("s_addc_u32", S(sV + 1), S(93), 0)
    k.op("s_and_b32", S(sV + 1), S(sV + 1), "0xffff")
    k.op("s_add_u32", S(sV + 2), S(sK + 2), 16384)
    k.op("s_mov_b32", S(sV + 3), "0x20000")
    k.op("v_lshl_or_b32", V(30), V(g1), 2, V(r_))
    k.op("v_lshl_add_u32", V(31), V(g), 3, V(r_))
    k.op("v_lshlrev_b32", V(t7), 8, V(31))
    k.op("v_lshl_add_u32", V(t7), V(cc), 3, V(t7))
    for nb in range(8):
        k.op("v_xor_b32", V(13), nb, V(30))
        k.op("v_lshl_add_u32", V(TA + nb), V(13), 5, V(t7))
    k.op("v_lshrrev_b32", V(13), 1, V(r_))
    k.op("v_lshl_or_b32", V(30), V(g1), 1, V(13))
    k.op("v_lshlrev_b32", V(t7), 7, V(31))
    k.op("v_lshl_add_u32", V(t7), V(cc), 3, V(t7))
    for nb in range(3):
        k.op("v_xor_b32", V(13), nb, V(30))
        k.op("v_lshl_add_u32", V(TB + nb), V(13), 5, V(t7))
    for i in range(4): k.op("v_mov_b32", V(ONES + i), "0x3f803f80")
    ST = 120
    B1 = [92, 94, 30]
    k.op("v_lshlrev_b32", V(13), 3, V(l15))
    for rb in range(4):
        k.op("s_lshl_b32", S(sT0), S(sRa if rb < 2 else sRb), 3)
        k.op("s_add_u32", S(sT0), S(sT0), STAT_OFF + (rb & 1) * 128)
        k.op("buffer_load_dwordx2", V(ST + 2 * rb, 2), V(13), S(sWS, 4), S(sT0), mods="offen" + SC); vq.issue("st")
    k.op("v_lshlrev_b32", V(14), 3, V(g))
    k.op("s_mul_i32", S(sT1), S(sH), 96)
    for nb in range(3):
        k.op("buffer_load_dwordx2", V(B1[nb], 2), V(14), S(sB1, 4), S(sT1), mods=f"offen offset:{nb*32}"); vq.issue("st")
    win = {"TA": 0, "TB": 0}
    def set_window(name, base, n, off):
        w = off // 65536
        if win[name] != w:
            d = (w - win[name]) * 65536
            for i in range(n): k.op("v_add_u32", V(base + i), hex(d & 0xffffffff), V(base + i))
            win[name] = w
        return off - w * 65536
    frs = []
    for ks in range(16):
        for nb in range(3): frs.append(("W1", ks, nb))
        for nb in range(8): frs.append(("WQ", ks, nb))
    NF = len(frs)
    q1 = FillQ(k)
    plan = {0: [("W1", 1), ("WQ", 2)], 1: [("WQ", 3)], 2: [("W1", 2), ("WQ", 4)], 3: [("WQ", 5)], 4: [("W1", 3), ("WQ", 6)],
            5: [("WQ", 7)], 6: [("K", 0), ("K", 1)], 7: [("V", 0), ("K", 2)]}
    def stage_switch(s):
        need = [("WQ", s)] + ([("W1", s // 2)] if s % 2 == 0 else [])
        vq.need(*need, cnt=[4] * len(need))
        k.op("s_barrier")
        q1.flush()
        if fused1 and s == 2:
            one_lane_store(k, sW, sWS, [3], 1, 18)
        if fused1 and s == 5:
            k.op("s_lshl_b32", S(55), S(sH), 7)
            k.op("s_add_u32", S(55), S(55), FA_OFF)
            k.op("v_lshlrev_b32", V(18), 2, V(p8))
            k.op("buffer_load_dword", V(19), V(18), S(sWS, 4), S(55), mods="offen sc1"); vq.issue("pp")
        if fused1 and s == 6:
            vq.need("pp")
            spin_until(k, "k2_sp", lambda: k.op("buffer_load_dword", V(19), V(18), S(sWS, 4), S(55), mods="offen sc1"),
                       lambda: k.op("v_cmp_ne_u32", "vcc", 1, V(19)), sT1)
        for ks in (2 * s + 4, 2 * s + 5):
            if ks < 16:
                for rb in range(4): q1.add(xn_load(ks, rb))
        for p in plan[s]:
            for f in dma_items(p): q1.add(f)
    def read_frag(n, which):
        kind, ks, nb = frs[n]
        if n % 22 == 0 and which == 0: stage_switch(n // 22)
        r = FR + (n % 16) * 4
        if kind == "WQ":
            off = slot(("WQ", ks // 2)) + (ks & 1) * 8192 + which * 1024
            off = set_window("TA", TA, 8, slot(("WQ", ks // 2))) + (ks & 1) * 8192 + which * 1024
            k.op("ds_read_b64_tr_b16", A(r + 2 * which, 2), V(TA + nb), mods=f"offset:{off}")
        else:
            off = set_window("TB", TB, 3, slot(("W1", ks // 4))) + (ks & 3) * 4096 + which * 512
            k.op("ds_read_b64_tr_b16", A(r + 2 * which, 2), V(TB + nb), mods=f"offset:{off}")
        lq.issue(("w", n))
    def qacc(nb, rb): return SR + 4 * (nb * 4 + rb)
    def macc(nb, rb): return MACC + 4 * (nb * 4 + rb)
    for n in range(D):
        read_frag(n, 0); read_frag(n, 1)
    stp.stamp()
    for n in range(NF):
        kind, ks, nb = frs[n]
        if n % 11 == 0: vq.need(("x", ks), cnt=[4])
        if n % 2 == 0: lq.need(("w", n), ("w", n + 1), cnt=[2, 2])
        wf = A(FR + (n % 16) * 4, 4)
        first = ks == 0
        ms = []
        for rb in range(4):
            d = V(qacc(nb, rb) if kind == "WQ" else macc(nb, rb), 4)
            ms.append((d, A(XR + ((ks % 12) * 4 + rb) * 4, 4)))
        if kind == "W1": ms.append((V(MACC + 48 + 4 * nb, 4), V(ONES, 4)))
        for c, (d, b) in enumerate(ms):
            k.op("v_mfma_f32_16x16x32_bf16", d, wf, b, "0" if first else d)
            if c < 2 and n + D < NF: read_frag(n + D, c)
            elif not pace or c == 2: q1.emit(2 if (len(q1) > 12 and not pace) else 1)
    q1.flush()
    stp.stamp()
    vq.need(("K", 0), cnt=[4])
    k.op("s_barrier")
    for p in (("V", 1), ("K", 3), ("V", 2)):
        for f in dma_items(p): f()
    k.op("v_mul_u32_u24", V(15), 44032, V(g1))
    k.op("v_lshrrev_b32", V(16), 5, V(vL))
    k.op("v_lshl_add_u32", V(15), V(16), 8, V(15))
    k.op("v_lshl_add_u32", V(15), V(l15), 4, V(15))
    C1, C2 = -2 * LOG2E * 0.7978845608028654, -2 * LOG2E * 0.7978845608028654 * 0.044715
    k.op("v_mov_b32", V(16), f32(C1)); k.op("v_mov_b32", V(17), f32(C2))
    k.op("v_mov_b32", V(18), "1.0"); k.op("v_mov_b32", V(19), "1.0")
    def P(r): return V(r, 2)
    bb, t = 96, 100
    for nb in range(3):
        k.op("v_lshlrev_b32", V(bb), 16, V(B1[nb]))
        k.op("v_and_b32", V(bb + 1), "0xffff0000", V(B1[nb]))
        k.op("v_lshlrev_b32", V(bb + 2), 16, V(B1[nb] + 1))
        k.op("v_and_b32", V(bb + 3), "0xffff0000", V(B1[nb] + 1))
        cs = MACC + 48 + 4 * nb
        k.op("s_mul_i32", S(sT1), S(sH), 3)
        k.op("s_add_u32", S(sT1), S(sT1), nb)
        k.op("s_lshl_b32", S(sT2), S(sT1), 9)
        k.op("s_add_u32", S(sT2), S(sT2), HF_OFF)
        lab = k.newlabel("skiph")
        k.op("s_cmp_ge_u32", S(sT1), 86)
        k.op("s_cbranch_scc1", lab)
        for rp in range(2):
            rbs = (2 * rp, 2 * rp + 1)
            def each(fn):
                for j, rb in enumerate(rbs):
                    for i in (0, 2): fn(macc(nb, rb) + i, t + 4 * j + i, ST + 2 * rb, i)
            each(lambda a, tt, st, i: k.op("v_pk_fma_f32", P(a), P(cs + i), P(st), P(a), mods="op_sel_hi:[1,0,1] neg_lo:[1,0,0] neg_hi:[1,0,0]"))
            each(lambda a, tt, st, i: k.op("v_pk_fma_f32", P(a), P(a), P(st), P(bb + i), mods="op_sel:[0,1,0]"))
            each(lambda a, tt, st, i: k.op("v_pk_mul_f32", P(tt), P(a), P(a)))
            each(lambda a, tt, st, i: k.op("v_pk_fma_f32", P(tt), P(tt), P(16), P(16), mods="op_sel:[0,1,0] op_sel_hi:[1,1,0]"))
            each(lambda a, tt, st, i: k.op("v_pk_mul_f32", P(tt), P(tt), P(a)))
            for i in range(8): k.op("v_exp_f32", V(t + i), V(t + i))
            each(lambda a, tt, st, i: k.op("v_pk_add_f32", P(tt), P(tt), P(18)))
            for i in range(8): k.op("v_rcp_f32", V(t + i), V(t + i))
            each(lambda a, tt, st, i: k.op("v_pk_mul_f32", P(a), P(a), P(tt)))
            a0, a1 = macc(nb, rbs[0]), macc(nb, rbs[1])
            k.op("v_cvt_pk_bf16_f32", V(a0), V(a0), V(a0 + 1))
            k.op("v_cvt_pk_bf16_f32", V(a0 + 1), V(a0 + 2), V(a0 + 3))
            k.op("v_cvt_pk_bf16_f32", V(a0 + 2), V(a1), V(a1 + 1))
            k.op("v_cvt_pk_bf16_f32", V(a0 + 3), V(a1 + 2), V(a1 + 3))
            k.op("s_add_u32", S(sT0), S(sHr + 2 * rp), S(sT2))
            k.nop(1)
            k.op("v_permlane16_swap_b32", V(a0), V(a0 + 2))
            k.op("v_permlane16_swap_b32", V(a0 + 1), V(a0 + 3))
            k.op("buffer_store_dwordx4", V(a0, 4), V(15), S(sWS, 4), S(sT0), mods="offen" + (" sc1" if fuse3 else ""))
        k.label(lab)
    k.op("v_mov_b32", V(16), f32(QSCALE)); k.op("v_mov_b32", V(17), f32(QSCALE))
    def Qreg(sub, qb, ds): return QR + sub * 32 + qb * 16 + ds * 4
    for rb in range(4):
        for ds in range(4):
            X = Qreg(rb >> 1, rb & 1, ds)
            for half in range(2):
                a = qacc(2 * ds + half, rb)
                for i in (0, 2): k.op("v_pk_mul_f32", P(a + i), P(a + i), P(16))
                k.op("v_cvt_pk_bf16_f32", V(X + 2 * half), V(a), V(a + 1))
                k.op("v_cvt_pk_bf16_f32", V(X + 2 * half + 1), V(a + 2), V(a + 3))
    stp.stamp()
    def Ngm(sub, qb): return NEGM + sub * 8 + qb * 4
    def Lac(sub, qb): return 112 + sub * 8 + qb * 4
    ON1 = 24
    k.op("s_and_b32", S(sT0), S(sW), 1)
    k.op("s_lshl_b32", S(sT0), S(sT0), 5)
    k.op("v_add_u32", V(vZ), S(sT0), V(l15))
    k.op("v_lshlrev_b32", V(15), 2, V(g))
    k.op("v_sub_u32", V(vZ), V(vZ), V(15))
    k.op("v_mov_b32", V(vNinf), f32(-1e30))
    for i in range(4): k.op("v_mov_b32", V(ON1 + i), "0x3f803f80")
    for i in range(16): k.op("v_mov_b32", V(112 + i), 0)
    k.op("s_mov_b32", S(sThr), f32(thr))
    k.op("s_mov_b32", S(sP2), 0)
    k.op("s_mov_b32", S(sNx), 98304)
    k.op("s_mov_b32", S(sTK), 4 * 16384)
    k.op("s_mov_b32", S(sT), 2)

    def mf(d, a, b, c): k.op("v_mfma_f32_16x16x32_bf16", d, a, b, c)
    def mask_block(sub, par):
        s0 = Sreg(sub, par)
        for e0 in range(0, 32, 2):
            for u in range(2):
                e = e0 + u; qb, kb, r = e >> 4, (e >> 2) & 3, e & 3
                k.op("v_cmp_gt_i32", S(sM + 2 * u, 2), 16 * kb + r - 16 * qb, V(vZ))
            k.nop(1)
            for u in range(2):
                k.op("v_cndmask_b32", V(s0 + e0 + u), V(s0 + e0 + u), V(vNinf), S(sM + 2 * u, 2))
    def ereg(n):
        k32, qb, j = n >> 4, (n >> 3) & 1, n & 7
        return qb * 16 + k32 * 8 + j
    def soft_exp(sub, par, n):
        r = Sreg(sub, par) + ereg(n)
        k.op("v_exp_f32", V(r), V(r))
    def soft_cvt(sub, par, n):
        e = n - 2
        r = Sreg(sub, par) + ereg(e)
        d = Sreg(sub, par) + (ereg(e) & ~7) + ((e & 7) >> 1)
        k.op("v_cvt_pk_bf16_f32", V(d), V(r), V(r + 1))
    def rd(frag, isV):
        k.op("ds_read_b128", A(FR + frag * 4, 4), V(vA), mods=f"offset:{(16384 if isV else 0) + frag*1024}")
    def ldK(i): return lambda: k.op("buffer_load_dwordx4", V(vD), S(sK, 4), S(sTK), mods=f"offen offset:{i*1024}{SC} lds")
    def ldV(i): return lambda: k.op("buffer_load_dwordx4", V(vD), S(sV, 4), S(sTK), mods=f"offen offset:{i*1024}{SC} lds")
    m0K = lambda: k.op("s_add_u32", "m0", S(sP2), S(sW4k))
    m0V = lambda: k.op("s_add_u32", "m0", "m0", 16384)
    advT = lambda: k.op("s_add_u32", S(sTK), S(sTK), 16384)
    advP = lambda: k.op("s_add_u32", S(sP2), S(sP2), 32768)
    wrapP = lambda: (k.op("s_cmp_eq_u32", S(sP2), 163840), k.op("s_cselect_b32", S(sP2), 0, S(sP2)))
    XA = {1: [ldK(2)], 5: [ldK(3)], 7: [m0V], 9: [ldV(0)], 13: [ldV(1)]}
    XB = {1: [ldV(2)], 5: [ldV(3)], 7: [advT, advP], 9: [wrapP, m0K], 11: [ldK(0)], 15: [ldK(1)]}
    if DA == 6:
        XB = {1: [ldV(2)], 5: [ldV(3)], 7: [advT, advP], 9: [wrapP], 11: [m0K], 13: [ldK(0)], 15: [ldK(1)]}
    WP = wp
    def phaseA(par, qk, ex):
        if not qk:
            k.wait(lgkm=0)
            for f in range(DA): rd(f, True)
            for n in range(16, 32):
                for sub in ex:
                    soft_exp(sub, par, n)
                    if n % 2 == 0: soft_cvt(sub, par, n)
            return
        for f in range(16):
            kb, ds = f >> 2, f & 3
            if f % WP == 0: k.wait(lgkm=DA - WP)
            for j, sub in enumerate(qk):
                xs = ex if len(qk) == 1 else [sub]
                for qb in range(2):
                    d = V(Sreg(sub, 1 - par) + qb * 16 + kb * 4, 4)
                    mf(d, A(FR + f * 4, 4), V(Qreg(sub, qb, ds), 4), V(Ngm(sub, qb), 4) if ds == 0 else d)
                    if qb == 0:
                        for x in xs: soft_exp(x, par, 16 + f)
                if j == 0:
                    nf = f + DA
                    if nf < 16: rd(nf, False)
                    else: rd(nf - 16, True)
                if f % 2 == 0:
                    for x in xs: soft_cvt(x, par, 16 + f)
                if j == len(qk) - 1:
                    for fn in XA.get(f, []): fn()
    def phaseB(par, pv, exn, bar="always", tailops=()):
        extra = list(tailops)
        for f in range(16):
            k32, db = f >> 3, f & 7
            if f % WP == 0: k.wait(lgkm=DA - WP if bar == "always" else max(0, min(DA - WP, 16 - f - WP)))
            for j, sub in enumerate(pv):
                for qb in range(2):
                    d = A(OA + sub * 64 + (db * 2 + qb) * 4, 4)
                    mf(d, A(FR + f * 4, 4), V(Sreg(sub, par) + qb * 16 + k32 * 8, 4), d)
                    if qb == 0 and sub in exn: soft_exp(sub, 1 - par, f)
                if j == 0:
                    nf = f + DA
                    if nf == 16:
                        if bar == "always":
                            k.wait(vm=16); k.op("s_barrier")
                        elif bar == "w01":
                            lab = k.newlabel("nobar")
                            k.op("s_cmp_ge_u32", S(sW), 2); k.op("s_cbranch_scc1", lab)
                            k.wait(vm=8); k.op("s_barrier")
                            k.label(lab)
                        k.op("v_add_u32", V(vA), S(sNx), V(vL16))
                    if bar == "always" or nf < 16:
                        if nf < 16: rd(nf, True)
                        else: rd(nf - 16, False)
                if f == 0: soft_cvt(sub, par, 32)
                elif f % 2 == 0 and sub in exn: soft_cvt(sub, 1 - par, f)
                if f % 4 == 3:
                    qb = (f >> 2) & 1
                    d = V(Lac(sub, qb), 4)
                    mf(d, V(ON1, 4), V(Sreg(sub, par) + qb * 16 + k32 * 8, 4), d)
                if j == len(pv) - 1 and bar == "always":
                    for fn in XB.get(f, []): fn()
                    if f in (3, 13, 14) and extra: extra.pop(0)()
        for fn in extra: fn()
    def nx_items():
        return [lambda: k.op("s_add_u32", S(sT), S(sT), 1),
                lambda: k.op("s_add_u32", S(sNx), S(sNx), 32768),
                lambda: (k.op("s_cmp_eq_u32", S(sNx), 163840), k.op("s_cselect_b32", S(sNx), 0, S(sNx)))]
    def rowmax(sub, par, qb, dst):
        s0 = Sreg(sub, par) + 16 * qb
        k.op("v_max3_f32", V(dst), V(s0), V(s0 + 1), V(s0 + 2))
        for e in range(3, 15, 2): k.op("v_max3_f32", V(dst), V(dst), V(s0 + e), V(s0 + e + 1))
        k.op("v_max_f32", V(dst), V(dst), V(s0 + 15))
        for sw in ("v_permlane16_swap_b32", "v_permlane32_swap_b32"):
            k.op("v_mov_b32", V(vT + 1), V(dst))
            k.nop(2)
            k.op(sw, V(dst), V(vT + 1))
            k.op("v_max_f32", V(dst), V(dst), V(vT + 1))
    slow_sites = {}
    def epilogue(sub, site):
        t = Sreg(sub, 0)
        k.nop(8)
        k.op("v_max_f32", V(vT), V(Lac(sub, 0)), V(Lac(sub, 1)))
        k.op("v_add_f32", V(vT + 1), V(Lac(sub, 0)), V(Lac(sub, 1)))
        k.op("v_cmp_nle_f32", "vcc", V(vT + 1), V(21))
        k.op("s_mov_b32", S(sRet), site)
        k.op("s_cbranch_vccnz", f"k2_slow_{sub}")
        lab = f"k2_ret_{sub}_{site}"
        k.label(lab)
        slow_sites.setdefault(sub, []).append((site, lab))
        k.op("v_rcp_f32", V(vT + 3), V(Lac(sub, 0)))
        k.op("v_rcp_f32", V(vT + 4), V(Lac(sub, 1)))
        for qb in range(2):
            if qb: k.op("s_add_u32", S(sT0), S(sCa if sub == 0 else sCb), 131072)
            for ks in range(4):
                b = t + (qb * 4 + ks) * 8
                for half in range(2):
                    for i in range(4):
                        k.op("v_accvgpr_read_b32", V(b + 4 * half + i), A(OA + sub * 64 + ((2 * ks + half) * 2 + qb) * 4 + i))
                for i in range(0, 8, 2):
                    k.op("v_pk_mul_f32", P(b + i), P(b + i), P(vT + 3), mods="op_sel_hi:[1,0]" if qb == 0 else "op_sel:[0,1]")
                for i in range(4): k.op("v_cvt_pk_bf16_f32", V(b + i), V(b + 2 * i), V(b + 2 * i + 1))
                k.op("buffer_store_dwordx4", V(b, 4), V(vL16), S(sWS, 4), S(sT0 if qb else (sCa if sub == 0 else sCb)),
                     mods=f"offen offset:{ks*1024}" + (" sc1" if fuse3 else ""))
    k.op("v_mov_b32", V(21), S(sThr))
    k.op("v_add_u32", V(vT), 32768, V(vL16))
    for f in range(16): k.op("ds_read_b128", A(f * 4, 4), V(vT), mods=f"offset:{f*1024}")
    zi = 0
    for f in range(16):
        kb, ds = f >> 2, f & 3
        k.wait(lgkm=15 - f)
        for sub in range(2):
            for qb in range(2):
                d = V(Sreg(sub, 0) + qb * 16 + kb * 4, 4)
                mf(d, A(f * 4, 4), V(Qreg(sub, qb, ds), 4), "0" if ds == 0 else d)
                for _ in range(2):
                    k.op("v_accvgpr_write_b32", A(OA + zi), 0); zi += 1
    k.wait(vm=0 if fuse3 else 12)
    k.op("s_barrier")
    if fuse3:
        k.op("s_lshl_b32", S(sT0), S(sP), 8)
        k.op("s_lshl_b32", S(sT1), S(sH), 2)
        k.op("s_add_u32", S(sT0), S(sT0), S(sT1))
        k.op("s_add_u32", S(sT0), S(sT0), FLAG2_OFF + 128)
        one_lane_store(k, sW, sWS, [sT0], 1, vT + 4)
    m0K()
    k.op("v_add_u32", V(vA), 65536, V(vL16))
    ldK(0)(); ldK(1)()
    for f in range(DA): rd(f, False)
    lab = k.newlabel("nomask0")
    k.op("s_cmp_lg_u32", S(sNa), 1); k.op("s_cbranch_scc1", lab)
    mask_block(0, 0)
    k.label(lab)
    for sub in range(2):
        for qb in range(2):
            rowmax(sub, 0, qb, vT + 2)
            n0 = Ngm(sub, qb)
            for i in range(4): k.op("v_sub_f32", V(n0 + i), 0, V(vT + 2))
            for e in range(0, 16, 2): k.op("v_pk_add_f32", P(Sreg(sub, 0) + 16 * qb + e), P(Sreg(sub, 0) + 16 * qb + e), P(n0))
    for n in range(16):
        for sub in range(2):
            soft_exp(sub, 0, n)
        for sub in range(2):
            if n % 2 == 0 and n: soft_cvt(sub, 0, n)
    def pf_k3():
        sp = sWQ
        k.op("s_and_b32", S(sT0), "s2", 7)
        k.op("s_lshr_b32", S(sT0), S(sT0), 1)
        k.op("s_mul_i32", S(sT1), S(sT0), 43 * 32768)
        k.op("s_cmp_lt_u32", S(sT0), 3)
        k.op("s_cselect_b32", S(sp), S(86), S(96))
        k.op("s_cselect_b32", S(sp + 1), S(87), S(97))
        k.op("s_mov_b32", S(sp + 2), hex(SZ["w2"]))
        k.op("s_cselect_b32", S(sp + 2), hex(SZ["wo"]), S(sp + 2))
        k.op("s_cselect_b32", S(sT1), S(sT1), 0)
        k.op("s_and_b32", S(sp + 1), S(sp + 1), "0xffff")
        k.op("s_mov_b32", S(sp + 3), "0x20000")
        k.op("s_lshr_b32", S(sT2), "s2", 3)
        k.op("s_lshl_b32", S(sT2), S(sT2), 2)
        k.op("s_add_u32", S(sT2), S(sT2), S(sW))
        k.op("s_mul_i32", S(sT0), S(sT2), 11264)
        k.op("s_add_u32", S(sT1), S(sT1), S(sT0))
        k.op("v_lshlrev_b32", V(vT), 7, V(vL))
        k.op("buffer_load_dword", V(130), V(vT), S(sp, 4), S(sT1), mods="offen", dummy=True)
        k.op("v_and_b32", V(vT + 2), 31, V(vL))
        k.op("v_lshlrev_b32", V(vT + 2), 7, V(vT + 2))
        k.op("s_add_u32", S(sT1), S(sT1), 8192)
        k.op("buffer_load_dword", V(130), V(vT + 2), S(sp, 4), S(sT1), mods="offen", dummy=True)
        k.op("s_lshl_b32", S(sT2), S(sT2), 13)
        pf_code(k, sW1, "k3_kernel", "k3_end-k3_kernel", vT, vL, sT2, 130)
    if pf3 == 3: pf_k3()
    stp.stamp()
    k.op("s_cmp_lt_u32", 1, S(sNa))
    k.op("s_cbranch_scc0", "k2_DL0")
    ool = []
    def maskif(sub, par):
        lab, lab2 = k.newlabel("nomask"), k.newlabel("domask")
        k.op("s_cmp_eq_u32", S(sT), S(sNa if sub == 0 else sNb)); k.op("s_cbranch_scc1", lab2)
        k.label(lab)
        ool.append((lab2, lab, sub, par))
    for par in range(2):
        k.label(f"k2_DD{par}")
        phaseA(par, [0, 1], [0, 1])
        maskif(0, 1 - par)
        phaseB(par, [0, 1], [0, 1], tailops=nx_items())
        k.op("s_cmp_le_u32", S(sT), S(sNa))
        k.op("s_cbranch_scc0", f"k2_DL{1-par}")
        if par == 1: k.op("s_branch", "k2_DD0")
    for par in range(2):
        k.label(f"k2_DL{par}")
        phaseA(par, [1], [0, 1])
        phaseB(par, [0, 1], [1], tailops=nx_items())
        epilogue(0, par)
        if pf3 == 2: pf_k3()
        k.op("s_branch", f"k2_SS{1-par}")
    for par in range(2):
        k.label(f"k2_SS{par}")
        phaseA(par, [1], [1])
        maskif(1, 1 - par)
        phaseB(par, [1], [1], tailops=nx_items())
        k.op("s_cmp_le_u32", S(sT), S(sNb))
        k.op("s_cbranch_scc0", f"k2_SL{1-par}")
        if par == 1: k.op("s_branch", "k2_SS0")
    for par in range(2):
        k.label(f"k2_SL{par}")
        if pf3 == 1: pf_k3()
        phaseA(par, [], [1])
        k.nop(2)
        phaseB(par, [1], [], bar="w01")
        if par == 0: k.op("s_branch", "k2_fin")
    k.label("k2_fin")
    stp.stamp()
    epilogue(1, 0)
    if stamps:
        k.wait(vm=0, lgkm=0)
        stp.stamp()
        stp.flush(sWS, sW, 13)
    if fuse3:
        k.op("s_lshl_b32", S(sT0), S(sP), 8)
        k.op("s_lshl_b32", S(sT1), S(sH), 2)
        k.op("s_add_u32", S(sT0), S(sT0), S(sT1))
        k.op("s_add_u32", S(96), S(sT0), FLAG2_OFF)
        k.wait(lgkm=0)
        k.raw("  s_branch k3_kernel")
    k.op("s_endpgm")
    for (lab2, lab, sub, par) in ool:
        k.label(lab2)
        k.nop(8)
        mask_block(sub, par)
        k.op("s_branch", lab)
    sU, sUo = 60, 61
    for sub, sites in sorted(slow_sites.items()):
        s0 = Sreg(sub, 0)
        m = [Ngm(sub, 0), Ngm(sub, 1)]
        k.label(f"k2_slow_{sub}")
        k.nop(8)
        for i in range(64): k.op("v_accvgpr_write_b32", A(OA + sub * 64 + i), 0)
        for qb in range(2):
            k.op("v_mov_b32", V(m[qb]), f32(-1e30))
            for i in range(4): k.op("v_mov_b32", V(Lac(sub, qb) + i), 0)
        k.op("s_mov_b32", S(sU), 1)
        k.op("s_mov_b32", S(sUo), 0)
        loop = f"k2_slowloop_{sub}"
        k.label(loop)
        for c in range(4):
            k.op("s_add_u32", S(sLd), S(sUo), c * 4096)
            for i in range(4): k.op("buffer_load_dwordx4", A((c * 4 + i) * 4, 4), V(vL16), S(sK, 4), S(sLd), mods=f"offen offset:{i*1024}" + SC)
        k.wait(vm=0)
        for f in range(16):
            kb, ds = f >> 2, f & 3
            for qb in range(2):
                d = V(s0 + qb * 16 + kb * 4, 4)
                mf(d, A(f * 4, 4), V(Qreg(sub, qb, ds), 4), "0" if ds == 0 else d)
        for c in range(4):
            k.op("s_add_u32", S(sLd), S(sUo), c * 4096 + 16384)
            for i in range(4): k.op("buffer_load_dwordx4", A((c * 4 + i) * 4, 4), V(vL16), S(sV, 4), S(sLd), mods=f"offen offset:{i*1024}" + SC)
        lab = k.newlabel("snomask")
        k.op("s_cmp_lg_u32", S(sU), S(sNa if sub == 0 else sNb)); k.op("s_cbranch_scc1", lab)
        mask_block(sub, 0)
        k.label(lab)
        for qb in range(2):
            al = m[qb] + 1
            rowmax(sub, 0, qb, vT + 3)
            k.op("v_max_f32", V(vT + 3), V(vT + 3), V(m[qb]))
            k.op("v_sub_f32", V(al), V(m[qb]), V(vT + 3))
            k.op("v_mov_b32", V(m[qb]), V(vT + 3))
            k.op("v_exp_f32", V(al), V(al))
            for e in range(16): k.op("v_sub_f32", V(s0 + 16 * qb + e), V(s0 + 16 * qb + e), V(m[qb]))
            for i in range(4): k.op("v_mul_f32", V(Lac(sub, qb) + i), V(Lac(sub, qb) + i), V(al))
            for db in range(8):
                for i in range(4):
                    ar = OA + sub * 64 + (db * 2 + qb) * 4 + i
                    k.op("v_accvgpr_read_b32", V(vT + (i & 1)), A(ar))
                    k.op("v_mul_f32", V(vT + (i & 1)), V(vT + (i & 1)), V(al))
                    k.op("v_accvgpr_write_b32", A(ar), V(vT + (i & 1)))
        for n in range(33):
            if n < 32: soft_exp(sub, 0, n)
            else: k.nop(1)
            if n % 2 == 0 and n: soft_cvt(sub, 0, n)
        k.wait(vm=0)
        k.nop(1)
        for f in range(16):
            k32, db = f >> 3, f & 7
            for qb in range(2):
                d = A(OA + sub * 64 + (db * 2 + qb) * 4, 4)
                mf(d, A(f * 4, 4), V(s0 + qb * 16 + k32 * 8, 4), d)
            if f % 4 == 3:
                qb = (f >> 2) & 1
                d = V(Lac(sub, qb), 4)
                mf(d, V(ON1, 4), V(s0 + qb * 16 + k32 * 8, 4), d)
        k.op("s_add_u32", S(sUo), S(sUo), 16384)
        k.op("s_add_u32", S(sU), S(sU), 1)
        k.nop(8)
        k.op("s_cmp_le_u32", S(sU), S(sNa if sub == 0 else sNb))
        k.op("s_cbranch_scc1", loop)
        for (site, lab) in sites[:-1]:
            k.op("s_cmp_eq_u32", S(sRet), site); k.op("s_cbranch_scc1", lab)
        k.op("s_branch", sites[-1][1])
    k.label("k2_end")
    k.op("s_endpgm")
    return k

if __name__ == "__main__":
    k = build_k2()
    for e in k.check_hazards(): print(e)
    for e in k.check_waits(): print(e)
    print(k.maxregs(), len(k.ins))
```

```python
from common import *
LDS = 163840
PART_OFF = 64 << 20
NB_ST, NA_ST = 6, 16
def build_k3(stamps=False, NR=5, q2rate=2, fused=True, pfself=False, psleep=8, dbgout=None, **_):
    k = Kern("k3_kernel")
    vq, lq = Q(k, "vmcnt", 63), Q(k, "lgkmcnt", 15)
    stp = Stamps(k, stamps, 62, 2, lq, maxn=8)
    sWS, sWO, sX, sO, sB2, sW2, sDb = 8, 12, 16, 20, 24, 84, 4
    sW, sMt, sNt, sT0, sT1, sT2 = 28, 29, 30, 31, 32, 33
    sAoA, sS, sAoB, sMa, sMw = 34, 35, 36, 38, 39
    sRot, sSt, sAc, sWc, sPw, sPr, sTile, sFp = 52, 53, 54, 55, 56, 57, 58, 60
    vL, vL16 = 1, 2
    VA, VW = 4, 8
    AA = 12
    g, l15, r_, cc, g1, t0, t1 = 26, 27, 28, 29, 30, 31, 3
    vOo, vPf, vPo = 32, 15, 16
    XV, BV = 34, 42
    ACC = 52
    AF = 116
    WF = 148
    TA = 180
    k.op("s_load_dwordx2", S(40, 2), S(0, 2), KA["x"])
    k.op("s_load_dwordx2", S(42, 2), S(0, 2), KA["wo"])
    k.op("s_load_dwordx4", S(44, 4), S(0, 2), KA["w2"])
    k.op("s_load_dwordx4", S(48, 4), S(0, 2), KA["out"])
    k.op("s_load_dwordx2", S(88, 2), S(0, 2), KA["ws"])
    k.op("v_and_b32", V(vL), 63, "v0")
    k.op("v_lshrrev_b32", V(t0), 6, "v0")
    k.op("s_and_b32", S(sT0), "s2", 7)
    k.op("v_readfirstlane_b32", S(sW), V(t0))
    k.op("s_lshr_b32", S(sS), S(sT0), 1)
    k.op("s_and_b32", S(sT0), S(sT0), 1)
    k.op("s_lshr_b32", S(sT1), "s2", 3)
    k.op("s_and_b32", S(sT2), S(sT1), 7)
    k.op("s_lshl_b32", S(sMt), S(sT0), 3)
    k.op("s_add_u32", S(sMt), S(sMt), S(sT2))
    k.op("s_lshr_b32", S(sNt), S(sT1), 3)
    k.op("s_add_u32", S(sRot), S(sMt), S(sNt))
    k.op("s_and_b32", S(sRot), S(sRot), 3)
    k.op("s_lshl_b32", S(sTile), S(sMt), 2)
    k.op("s_add_u32", S(sTile), S(sTile), S(sNt))
    k.op("v_lshlrev_b32", V(vL16), 4, V(vL))
    k.op("v_lshrrev_b32", V(g), 4, V(vL))
    k.op("v_and_b32", V(l15), 15, V(vL))
    k.op("v_bfe_u32", V(r_), V(vL), 2, 2)
    k.op("v_and_b32", V(cc), 3, V(vL))
    k.op("v_and_b32", V(g1), 1, V(g))
    k.op("s_lshl_b32", S(sT2), S(sMt), 3)
    k.op("s_lshl_b32", S(sT1), S(sW), 1)
    k.op("s_add_u32", S(sT2), S(sT2), S(sT1))
    k.op("s_lshl_b32", S(sAoA), S(sT2), 17)
    k.op("s_lshl_b32", S(sT1), S(sS), 15)
    k.op("s_add_u32", S(sAoA), S(sAoA), S(sT1))
    k.op("s_add_u32", S(sAoA), S(sAoA), CTX_OFF)
    k.op("s_mul_i32", S(sAoB), S(sT2), 44032)
    k.op("s_add_u32", S(sAoB), S(sAoB), HF_OFF)
    k.op("v_mov_b32", V(VA), V(vL16))
    k.op("v_add_u32", V(VA + 1), 131072 - 1024, V(vL16))
    k.op("v_mov_b32", V(VA + 2), V(vL16))
    k.op("v_add_u32", V(VA + 3), 44032 - 1024, V(vL16))
    k.op("v_lshlrev_b32", V(t0), 1, V(g))
    k.op("v_xor_b32", V(t0), V(t0), V(l15))
    k.op("v_lshlrev_b32", V(t0), 4, V(t0))
    k.op("v_lshl_add_u32", V(t0), V(g), 10, V(t0))
    k.op("s_lshl_b32", S(sT1), S(sNt), 8)
    k.op("s_lshl_b32", S(sT2), S(sW), 13)
    k.op("s_add_u32", S(sT1), S(sT1), S(sT2))
    k.op("v_add_u32", V(VW), S(sT1), V(t0))
    k.op("v_xor_b32", V(VW + 1), 128, V(VW))
    k.op("v_add_u32", V(VW + 1), 4096 - 1024, V(VW + 1))
    k.op("s_and_b32", S(sT1), S(sW), 1)
    k.op("s_lshl_b32", S(sT1), S(sT1), 7)
    k.op("v_xor_b32", V(VW + 2), S(sT1), V(VW))
    k.op("v_add_u32", V(VW + 3), 4096 - 1024, V(VW + 2))
    k.op("s_lshl_b32", S(sMa), S(sW), 11)
    k.op("s_add_u32", S(sMw), S(sMa), 8192)
    k.op("v_lshl_or_b32", V(t1), V(g1), 2, V(r_))
    k.op("s_and_b32", S(sT1), S(sW), 1)
    k.op("s_lshl_b32", S(sT1), S(sT1), 2)
    k.op("v_xor_b32", V(t1), S(sT1), V(t1))
    for ty in range(2):
        k.op("v_lshl_add_u32", V(t0), V(g), 2 + ty, V(r_))
        k.op("v_lshlrev_b32", V(t0), 8, V(t0))
        k.op("v_lshl_add_u32", V(t0), V(cc), 3, V(t0))
        k.op("v_add_u32", V(t0), 8192, V(t0))
        b = TA + 24 * ty
        for nb in range(4):
            k.op("v_xor_b32", V(33), nb, V(t1))
            k.op("v_lshl_add_u32", V(b + 2 * nb), V(33), 5, V(t0))
            k.op("v_add_u32", V(b + 2 * nb + 1), 4096 if ty == 0 else 1024, V(b + 2 * nb))
        for i in range(8):
            k.op("v_add_u32", V(b + 8 + i), 65536, V(b + i))
            k.op("v_add_u32", V(b + 16 + i), 131072, V(b + i))
    k.op("s_lshr_b32", S(sT1), S(sW), 1)
    k.op("s_lshl_b32", S(sT1), S(sT1), 12)
    k.op("v_add_u32", V(AA), S(sT1), V(vL16))
    k.op("v_add_u32", V(AA + 1), 65536, V(AA))
    k.op("v_add_u32", V(AA + 2), 131072, V(AA))
    k.op("s_lshl_b32", S(sT0), S(sMt), 17)
    k.op("s_lshr_b32", S(sT1), S(sW), 1)
    k.op("s_lshl_b32", S(sT1), S(sT1), 16)
    k.op("s_add_u32", S(sT0), S(sT0), S(sT1))
    k.op("s_lshl_b32", S(sT1), S(sS), 14)
    k.op("s_add_u32", S(sT0), S(sT0), S(sT1))
    k.op("s_lshl_b32", S(59), S(sNt), 8)
    k.op("s_and_b32", S(sT2), S(sW), 1)
    k.op("s_lshl_b32", S(sT2), S(sT2), 7)
    k.op("s_add_u32", S(59), S(59), S(sT2))
    k.op("s_add_u32", S(sT0), S(sT0), S(59))
    k.op("v_lshlrev_b32", V(vOo), 10, V(l15))
    k.op("v_lshl_add_u32", V(vOo), V(g), 3, V(vOo))
    k.op("v_add_u32", V(vOo), S(sT0), V(vOo))
    k.op("v_lshlrev_b32", V(33), 3, V(g))
    k.op("s_lshl_b32", S(sPr), S(sTile), 17)
    k.op("s_lshl_b32", S(sT1), S(sW), 13)
    k.op("s_add_u32", S(sPr), S(sPr), S(sT1))
    k.op("s_add_u32", S(sPr), S(sPr), PART_OFF)
    k.op("s_lshl_b32", S(sT1), S(sS), 15)
    k.op("s_add_u32", S(sPw), S(sPr), S(sT1))
    k.op("s_lshl_b32", S(sT1), S(sS), 11)
    k.op("s_add_u32", S(sPr), S(sPr), S(sT1))
    k.op("s_sub_u32", S(sT1), 15, S(sMt))
    k.op("s_min_u32", S(sFp), S(sMt), S(sT1))
    k.op("s_lshl_b32", S(sFp), S(sFp), 8)
    k.op("s_add_u32", S(sFp), S(sFp), FLAG2_OFF)
    k.op("v_and_b32", V(vPo), 7, V(vL))
    k.op("s_lshl_b32", S(sT1), S(sS), 3)
    k.op("v_add_u32", V(vPo), S(sT1), V(vPo))
    k.op("v_lshlrev_b32", V(vPo), 2, V(vPo))
    k.wait(lgkm=0)
    stp.stamp()
    k.op("s_mov_b32", S(sWS), S(88))
    k.op("s_and_b32", S(sWS + 1), S(89), "0xffff")
    k.op("s_mov_b32", S(sWS + 2), hex(80 << 20))
    k.op("s_mov_b32", S(sWS + 3), "0x20000")
    load_srd(k, sWO, "wo", 42); load_srd(k, sW2, "w2", 44)
    load_srd(k, sX, "x", 40); load_srd(k, sO, "out", 48); load_srd(k, sB2, "b2", 46)
    if dbgout is not None:
        k.op("s_mov_b32", S(sDb), S(50)); k.op("s_and_b32", S(sDb + 1), S(51), "0xffff")
        k.op("s_mov_b32", S(sDb + 2), 256); k.op("s_mov_b32", S(sDb + 3), "0x20000")
    NST = NB_ST + NA_ST
    def issue_items(st, direct=True):
        it = []
        sl = (st % NR) * 32768
        ty = 1 if st < NB_ST else 0
        def addr():
            if ty:
                base, j = st // 3 * 3, st % 3
                k.op("s_add_u32", S(sSt), S(sRot), j)
                k.op("s_cmp_ge_u32", S(sSt), 3)
                k.op("s_cselect_b32", S(sWc), 3, 0)
                k.op("s_sub_u32", S(sSt), S(sSt), S(sWc))
                k.op("s_add_u32", S(sSt), S(sSt), base)
                k.op("s_mul_i32", S(sWc), S(sS), 6)
                k.op("s_add_u32", S(sSt), S(sSt), S(sWc))
                k.op("s_lshl_b32", S(sWc), S(sSt), 16)
                k.op("s_lshl_b32", S(sSt), S(sSt), 1)
            else:
                skew_stage(k, sSt, sRot, st - NB_ST, NA_ST, sWc)
                k.op("s_lshl_b32", S(sAc), S(sSt), 11)
                k.op("s_add_u32", S(sAc), S(sAc), S(sAoA))
                k.op("s_lshl_b32", S(sWc), S(sS), 4)
                k.op("s_add_u32", S(sWc), S(sWc), S(sSt))
                k.op("s_lshl_b32", S(sWc), S(sWc), 16)
        it.append(addr)
        for u in range(2):
            it.append(lambda u=u: k.op("s_add_u32", "m0", S(sMw), sl + u * 16384))
            if u: it.append(lambda: k.op("s_add_u32", S(sWc), S(sWc), 32768))
            elif direct: it.append(lambda: k.op("s_nop", 0))
            for j in range(2):
                def w(j=j):
                    k.op("buffer_load_dwordx4", V(VW + 2 * ty + j), S(sW2 if ty else sWO, 4), S(sWc), mods=f"offen offset:{j*1024} lds"); vq.issue(("s", st))
                it.append(w)
            it.append(lambda u=u: k.op("s_add_u32", "m0", S(sMa), sl + u * 16384))
            if ty:
                def ac(u=u):
                    k.op("s_add_u32", S(sAc), S(sSt), u)
                    k.op("s_min_u32", S(sAc), S(sAc), 42)
                    k.op("s_lshl_b32", S(sAc), S(sAc), 10)
                    k.op("s_add_u32", S(sAc), S(sAc), S(sAoB))
                it.append(ac)
            elif u: it.append(lambda: k.op("s_add_u32", S(sAc), S(sAc), 1024))
            elif direct: it.append(lambda: k.op("s_nop", 0))
            for j in range(2):
                def a(j=j):
                    k.op("buffer_load_dwordx4", V(VA + 2 * ty + j), S(sWS, 4), S(sAc), mods=f"offen offset:{j*1024} sc1 lds"); vq.issue(("s", st))
                it.append(a)
        return it
    def poll(off): return lambda: k.op("buffer_load_dword", V(vPf), V(vPo), S(sWS, 4), S(sFp), mods=f"offen offset:{off} sc1")
    chk = lambda: k.op("v_cmp_ne_u32", "vcc", 1, V(vPf))
    poll(128)()
    k.wait(vm=0)
    k.op("s_barrier")
    one_lane_store(k, sW, sWS, [96], 1, ACC)
    stp.stamp()
    spin_until(k, "k3_sh", poll(128), chk, sT1, sleep=psleep)
    for st in range(NR - 2):
        for f in issue_items(st): f()
    for u in range(4):
        k.op("buffer_load_dwordx2", V(XV + 2 * u, 2), V(vOo), S(sX, 4), 0, mods=f"offen offset:{32*u}"); vq.issue("xb")
        k.op("buffer_load_dwordx2", V(BV + 2 * u, 2), V(33), S(sB2, 4), S(59), mods=f"offen offset:{32*u}"); vq.issue("xb")
    steps = [(st, u) for st in range(NST) for u in range(2)]
    q, q2 = FillQ(k), FillQ(k)
    def rd_items(i):
        st, u = steps[i]
        ty = 1 if st < NB_ST else 0
        off = (st % NR) * 32768 + u * 16384
        hi = off // 65536
        off -= 65536 * hi
        it = []
        if u == 0:
            def sw():
                vq.need(("s", st), cnt=[8])
                k.op("s_barrier")
                q2.flush()
                nx = st + NR - 2
                if nx == NB_ST - 1:
                    poll(0)(); vq.issue("pp")
                if nx == NB_ST:
                    vq.need("pp")
                    spin_until(k, "k3_sc", poll(0), chk, sT1, sleep=psleep)
                    stp.stamp()
                if nx < NST:
                    for f in issue_items(nx, direct=False): q2.add(f)
            it.append(sw)
        for rb in range(4):
            def fa(rb=rb):
                k.op("ds_read_b128", V(AF + (i % 2) * 16 + rb * 4, 4), V(AA + hi), mods=f"offset:{off + rb*1024}")
                lq.issue(("a", i))
            it.append(fa)
        for nb in range(4):
            for j in range(2):
                def fw(nb=nb, j=j):
                    k.op("ds_read_b64_tr_b16", V(WF + (i % 2) * 16 + nb * 4 + 2 * j, 2), V(TA + 24 * ty + 8 * hi + 2 * nb + j), mods=f"offset:{off}")
                    lq.issue(("r", i, nb))
                it.append(fw)
        return it
    for f in rd_items(0): f()
    stp.stamp()
    for i in range(len(steps)):
        if i + 1 < len(steps):
            for f in rd_items(i + 1): q.add(f)
        n = 0
        for nb in range(4):
            if nb % 2 == 0: lq.need(("r", i, nb), ("r", i, nb + 1), ("a", i), cnt=[2, 2, 4])
            for rb in range(4):
                d = V(ACC + 4 * (rb * 4 + nb), 4)
                k.op("v_mfma_f32_16x16x32_bf16", d, V(WF + (i % 2) * 16 + nb * 4, 4), V(AF + (i % 2) * 16 + rb * 4, 4), "0" if i == 0 else d)
                q.emit(1)
                if n % q2rate == q2rate - 1 or len(q) == 0: q2.emit(1)
                n += 1
        q.flush()
    q2.flush()
    stp.stamp()
    OWN = WF
    k.nop(8)
    for rb in range(4):
        l1, l2 = k.newlabel("own"), k.newlabel("nxt")
        a0 = ACC + 16 * rb
        k.op("s_cmp_eq_u32", S(sS), rb)
        k.op("s_cbranch_scc1", l1)
        for i in range(8): k.op("v_cvt_pk_bf16_f32", V(a0 + i), V(a0 + 2 * i), V(a0 + 2 * i + 1))
        if rb >= 2: k.op("s_add_u32", S(sT0), S(sPw), 4096)
        for p in range(2):
            k.op("buffer_store_dwordx4", V(a0 + 4 * p, 4), V(vL16), S(sWS, 4), S(sPw if rb < 2 else sT0), mods=f"offen offset:{(rb&1)*2048 + p*1024} sc1")
        k.op("s_branch", l2)
        k.label(l1)
        for i in range(16): k.op("v_mov_b32", V(OWN + i), V(a0 + i))
        k.label(l2)
    def unpack(dst, src):
        k.op("v_lshlrev_b32", V(dst), 16, V(src))
        k.op("v_and_b32", V(dst + 1), "0xffff0000", V(src))
    for i in range(8):
        unpack(180 + 2 * i, XV + i); unpack(196 + 2 * i, BV + i)
    for i in range(0, 16, 2):
        k.op("v_pk_add_f32", V(OWN + i, 2), V(OWN + i, 2), V(180 + i, 2))
        k.op("v_pk_add_f32", V(OWN + i, 2), V(OWN + i, 2), V(196 + i, 2))
    k.op("s_lshl_b32", S(sT0), S(sTile), 8)
    k.op("s_add_u32", S(sT0), S(sT0), FLAG_OFF)
    k.op("s_lshl_b32", S(sT2), S(sS), 2)
    k.op("s_add_u32", S(sT2), S(sT2), S(sT0))
    k.op("v_and_b32", V(vPo), 3, V(vL))
    k.op("v_lshlrev_b32", V(vPo), 2, V(vPo))
    R = AF
    for i in range(32): k.op("v_mov_b32", V(R + i), 0)
    k.wait(vm=0)
    k.op("s_barrier")
    one_lane_store(k, sW, sWS, [sT2], 1, ACC)
    stp.stamp()
    p3 = lambda: k.op("buffer_load_dword", V(vPf), V(vPo), S(sWS, 4), S(sT0), mods="offen sc1")
    p3(); k.wait(vm=0)
    spin_until(k, "k3_sx", p3, chk, sT1, sleep=1)
    stp.stamp()
    for src in range(4):
        l1 = k.newlabel("skp")
        k.op("s_cmp_eq_u32", S(sS), src)
        k.op("s_cbranch_scc1", l1)
        for p in range(2):
            k.op("buffer_load_dwordx4", V(R + src * 8 + 4 * p, 4), V(vL16), S(sWS, 4), S(sPr), mods=f"offen offset:{p*1024} sc1")
        k.label(l1)
        k.op("s_add_u32", S(sPr), S(sPr), 32768)
    k.wait(vm=0)
    for src in range(4):
        for i in range(8):
            unpack(180 + 2 * (i & 3), R + src * 8 + i)
            k.op("v_pk_add_f32", V(OWN + 2 * i, 2), V(OWN + 2 * i, 2), V(180 + 2 * (i & 3), 2))
    for nb in range(4):
        k.op("v_cvt_pk_bf16_f32", V(OWN + 4 * nb), V(OWN + 4 * nb), V(OWN + 4 * nb + 1))
        k.op("v_cvt_pk_bf16_f32", V(OWN + 4 * nb + 1), V(OWN + 4 * nb + 2), V(OWN + 4 * nb + 3))
        k.op("buffer_store_dwordx2", V(OWN + 4 * nb, 2), V(vOo), S(sO, 4), 0, mods=f"offen offset:{32*nb}")
    if stamps:
        k.wait(vm=0)
        stp.stamp()
        stp.flush(sWS, sW, 3)
    k.label("k3_end")
    k.op("s_endpgm")
    return k

if __name__ == "__main__":
    k = build_k3()
    for e in k.check_hazards(): print(e)
    for e in k.check_waits(): print(e)
    print(k.maxregs(), len(k.ins))
```

```python
from common import *
from k1_v1 import layernorm
import copy

def build_k1(store_mods=" sc1", stamps=False, pf2=True, pf2at=5, D=6, skew=3, pfself=True, krot=7, **_):
    k = Kern("k1_kernel")
    vq, lq = Q(k, "vmcnt", 63), Q(k, "lgkmcnt", 15)
    stp = Stamps(k, stamps, 60, 0, lq, maxn=10)
    sWS, sC, sWK, sWV, sX = 8, 12, 16, 20, 24
    sT0, sT1, sT2, sKV, sW, sH, sJ = 28, 29, 30, 31, 32, 33, 35
    sSo, sSo2, sAo, sSt, sW8k, sR, sW4k = 36, 37, 42, 43, 44, 45, 48
    sFL, sFA, sF2, sF3, sDb = 53, 54, 55, 56, 4
    CHA = 84
    vL, vL16 = 1, 2
    TA, VA, VW, AAr, AF = 16, 28, 36, 40, 52
    ACC, AF2, X0, X1, VZ = 128, 192, 224, 228, 232
    g, l15, r_, cc, g1, t0, t1, p8 = 4, 5, 6, 7, 8, 9, 10, 11
    k.op("s_cmp_ge_u32", "s2", 256)
    k.op("s_cbranch_scc1", "k1_end")
    if pfself:
        pf_self(k, "k1_end", vt=14); vq.issue()
    k.op("s_load_dwordx4", S(84, 4), S(0, 2), KA["x"])
    k.op("s_load_dwordx4", S(88, 4), S(0, 2), KA["wuk"])
    k.op("s_load_dwordx4", S(92, 4), S(0, 2), KA["dbg"])
    k.op("s_load_dwordx2", S(96, 2), S(0, 2), KA["wq"])
    k.op("s_load_dwordx2", S(98, 2), S(0, 2), KA["w1"])
    k.op("v_and_b32", V(vL), 63, "v0")
    k.op("v_lshrrev_b32", V(t0), 6, "v0")
    k.op("s_and_b32", S(sT0), "s2", 7)
    k.op("v_readfirstlane_b32", S(sW), V(t0))
    k.op("s_lshr_b32", S(sT1), "s2", 3)
    k.op("s_and_b32", S(sT2), S(sT1), 3)
    k.op("s_lshl_b32", S(sH), S(sT0), 2)
    k.op("s_add_u32", S(sH), S(sH), S(sT2))
    k.op("s_lshr_b32", S(sJ), S(sT1), 2)
    k.op("s_lshr_b32", S(sKV), S(sW), 1)
    k.op("v_lshlrev_b32", V(vL16), 4, V(vL))
    k.op("v_lshrrev_b32", V(g), 4, V(vL))
    k.op("v_and_b32", V(l15), 15, V(vL))
    k.op("v_bfe_u32", V(r_), V(vL), 2, 2)
    k.op("v_and_b32", V(cc), 3, V(vL))
    k.op("v_and_b32", V(g1), 1, V(g))
    k.op("v_and_b32", V(p8), 7, V(vL))
    k.op("s_lshl_b32", S(sW4k), S(sW), 12)
    k.op("s_lshl_b32", S(sW8k), S(sW), 13)
    k.op("v_lshlrev_b32", V(t0), 1, V(g))
    k.op("v_xor_b32", V(t0), V(t0), V(l15))
    k.op("v_lshlrev_b32", V(t0), 4, V(t0))
    k.op("v_lshl_add_u32", V(t0), V(g), 13, V(t0))
    k.op("s_lshl_b32", S(sT0), S(sW), 17)
    k.op("s_lshl_b32", S(sT1), S(sH), 8)
    k.op("s_add_u32", S(sT0), S(sT0), S(sT1))
    k.op("v_add_u32", V(VW), S(sT0), V(t0))
    k.op("v_add_u32", V(VW + 1), 32768 - 1024, V(VW))
    k.op("v_xor_b32", V(VW + 2), 128, V(VW))
    k.op("v_add_u32", V(VW + 2), 2 * (32768 - 1024), V(VW + 2))
    k.op("v_add_u32", V(VW + 3), 32768 - 1024, V(VW + 2))
    k.op("s_and_b32", S(sT0), S(sW), 1)
    k.op("s_lshl_b32", S(sT0), S(sT0), 7)
    k.op("v_xor_b32", V(t0), S(sT0), V(vL16))
    sKr = 49
    if krot:
        k.op("s_and_b32", S(sKr), S(sJ), krot)
        k.op("s_lshl_b32", S(sT0), S(sKr), 7)
        k.op("v_xor_b32", V(t0), S(sT0), V(t0))
        k.op("s_lshl_b32", S(sKr), S(sKr), 19)
    else:
        k.op("s_mov_b32", S(sKr), 0)
    for i in range(8): k.op("v_xor_b32", V(VA + i), i * 16, V(t0))
    k.op("s_lshl_b32", S(sAo), S(sJ), 18)
    k.op("s_add_u32", S(sAo), S(sAo), S(sW8k))
    k.op("s_lshl_b32", S(sR), "s2", 3)
    k.op("s_lshl_b32", S(sT1), S(sW), 1)
    k.op("s_add_u32", S(sR), S(sR), S(sT1))
    k.op("s_lshl_b32", S(sR), S(sR), 10)
    k.wait(lgkm=0)
    stp.stamp()
    load_srd(k, sX, "x", 84)
    k.op("buffer_load_dwordx4", V(X0, 4), V(vL16), S(sX, 4), S(sR), mods="offen"); vq.issue("ln")
    k.op("buffer_load_dwordx4", V(X1, 4), V(vL16), S(sX, 4), S(sR), mods="offen offset:1024"); vq.issue("ln")
    load_srd(k, sC, "ckv", 86); load_srd(k, sWK, "wuk", 88); load_srd(k, sWV, "wuv", 90)
    def cha(i):
        if skew:
            k.op("s_and_b32", S(CHA + i), S(sT2), skew)
            k.op("s_lshl_b32", S(CHA + i), S(CHA + i), 1)
            k.op("s_xor_b32", S(CHA + i), S(CHA + i), i)
        else: k.op("s_mov_b32", S(CHA + i), i)
        k.op("s_lshl_b32", S(CHA + i), S(CHA + i), 15)
        k.op("s_add_u32", S(CHA + i), S(CHA + i), S(sAo))
    cha(0); cha(1)
    def aslot(st): return [3, 4, 2, 0, 1, 3, 4, 2][st] * 32768
    def wslot(s): return (s % 3) * 32768
    def dma_w_items(s):
        it = []
        for kv in range(2):
            def setup(kv=kv):
                k.op("s_add_u32", "m0", S(sW4k), wslot(s) + kv * 16384)
                k.op("s_xor_b32", S(sSo), S(sKr), s * 524288)
            it.append(setup)
            for i in range(4):
                def f(i=i, kv=kv):
                    k.op("buffer_load_dwordx4", V(VW + i), S(sWV if kv else sWK, 4), S(sSo), mods=f"offen offset:{i*1024} lds"); vq.issue(("W", s))
                it.append(f)
        return it
    def dma_a_items(st):
        it = []
        for u in range(2):
            def setup(u=u):
                k.op("s_add_u32", "m0", S(sW8k), aslot(st) + u * 4096)
                k.op("s_add_u32", S(sSo), S(CHA + st), u * 4096)
            it.append(setup)
            for i in range(4):
                def f(i=i, u=u):
                    k.op("buffer_load_dwordx4", V(VA + 4 * u + i), S(sC, 4), S(sSo), mods=f"offen offset:{i*1024} lds"); vq.issue(("A", st))
                it.append(f)
        return it
    for f in dma_w_items(0) + dma_a_items(0)[:5]: f()
    late = dma_a_items(0)[5:] + dma_a_items(1) + dma_w_items(1)
    stp.stamp()
    for i in range(2, 8): cha(i)
    load_srd(k, sWS, "ws", 94)
    k.op("v_lshl_or_b32", V(t1), V(g1), 2, V(r_))
    k.op("s_and_b32", S(sT0), S(sW), 1)
    k.op("s_lshl_b32", S(sT0), S(sT0), 2)
    k.op("v_xor_b32", V(t1), S(sT0), V(t1))
    k.op("v_lshl_add_u32", V(t0), V(g), 3, V(r_))
    k.op("v_lshlrev_b32", V(t0), 8, V(t0))
    k.op("v_lshl_add_u32", V(t0), V(cc), 3, V(t0))
    k.op("s_lshl_b32", S(sT0), S(sKV), 14)
    k.op("v_add_u32", V(t0), S(sT0), V(t0))
    for nb in range(4):
        k.op("v_xor_b32", V(12), nb, V(t1))
        k.op("v_lshl_add_u32", V(TA + nb), V(12), 5, V(t0))
        k.op("v_add_u32", V(TA + 4 + nb), 65536, V(TA + nb))
    k.op("v_lshlrev_b32", V(t0), 10, V(l15))
    k.op("v_xor_b32", V(t1), V(g), V(l15))
    for q in range(4):
        k.op("v_xor_b32", V(12), 4 * q, V(t1))
        k.op("v_lshl_add_u32", V(AAr + q), V(12), 4, V(t0))
        k.op("v_add_u32", V(AAr + 4 + q), 65536, V(AAr + q))
        k.op("v_add_u32", V(AAr + 8 + q), 131072, V(AAr + q))
    k.op("s_lshl_b32", S(sSt), S(sH), 19)
    k.op("s_and_b32", S(sT1), S(sW), 1)
    k.op("s_lshl_b32", S(sT0), S(sT1), 12)
    k.op("s_add_u32", S(sT0), S(sT0), VF_OFF)
    k.op("s_lshl_b32", S(sT1), S(sT1), 11)
    k.op("s_add_u32", S(sT1), S(sT1), KF_OFF)
    k.op("s_cmp_eq_u32", S(sKV), 0)
    k.op("s_cselect_b32", S(sT1), S(sT1), S(sT0))
    k.op("s_add_u32", S(sSt), S(sSt), S(sT1))
    k.op("s_lshr_b32", S(sT1), S(sW8k), 2)
    k.op("s_sub_u32", S(sSt), S(sSt), S(sT1))
    vLd, vLz = VZ, VZ + 1
    k.op("v_mov_b32", V(vLz), 0)
    k.op("s_lshl_b32", S(sFL), "s2", 2)
    k.op("s_add_u32", S(sFL), S(sFL), FL_OFF)
    k.op("s_lshl_b32", S(sFA), S(sH), 7)
    k.op("s_lshl_b32", S(sT1), S(sJ), 2)
    k.op("s_add_u32", S(sFA), S(sFA), S(sT1))
    k.op("s_add_u32", S(sFA), S(sFA), FA_OFF)
    k.op("s_lshl_b32", S(sF2), S(sJ), 8)
    k.op("s_lshl_b32", S(sT1), S(sH), 2)
    k.op("s_add_u32", S(sF2), S(sF2), S(sT1))
    k.op("s_add_u32", S(sF2), S(sF2), FLAG2_OFF)
    k.op("s_and_b32", S(sT1), "s2", 1)
    k.op("s_lshl_b32", S(sF3), S(sT1), 13)
    k.op("s_bfe_u32", S(sT1), "s2", "0x30003")
    k.op("s_lshl_b32", S(sT1), S(sT1), 10)
    k.op("s_add_u32", S(sF3), S(sF3), S(sT1))
    k.op("s_lshr_b32", S(sT1), "s2", 6)
    k.op("s_lshl_b32", S(sT1), S(sT1), 8)
    k.op("s_add_u32", S(sF3), S(sF3), S(sT1))
    k.op("s_and_b32", S(sT1), "s2", 6)
    k.op("s_lshl_b32", S(sT1), S(sT1), 1)
    k.op("s_add_u32", S(sF3), S(sF3), S(sT1))
    k.op("s_add_u32", S(sF3), S(sF3), FLAG_OFF)
    k.op("s_add_u32", S(57), S(sF2), 128)
    one_lane_store(k, sW, sWS, [sFL, sFA, sF2, sF3, 57], 0, VZ + 4)
    k.op("s_mov_b32", S(sDb), S(92))
    k.op("s_and_b32", S(sDb + 1), S(93), "0xffff")
    k.op("s_mov_b32", S(sDb + 2), 256)
    k.op("s_mov_b32", S(sDb + 3), "0x20000")
    GB = 2 * 32768
    LN2 = 84
    vq.need("ln")
    k.op("s_lshl_b32", S(sT1), S(sW), 5)
    k.op("s_add_u32", S(sT1), S(sT1), GB)
    k.op("v_lshlrev_b32", V(vLd), 7, V(vL))
    k.op("v_add_u32", V(vLd), S(sT1), V(vLd))
    k.op("s_lshl_b32", S(sT1), S(sW), 4)
    k.op("s_add_u32", S(sT1), S(sT1), GB + 8192)
    k.op("v_mov_b32", V(VZ + 2), S(sT1))
    ln = Kern("ln")
    for r, X in enumerate((X0, X1)):
        layernorm(ln, X, LN2 + 4, LN2 + 8, LN2 + 16)
        layernorm(ln, LN2 + 4, LN2 + 24, LN2 + 8, LN2 + 16, stats_only=True)
        ln.op("ds_write_b128", V(vLd), V(LN2 + 4, 4), mods=f"offset:{16*r}")
        ln.op("ds_write_b64", V(VZ + 2), V(LN2 + 24, 2), mods=f"offset:{8*r}")
        ln.wait(lgkm=0)
    for i, ins in enumerate(ln.ins):
        k.ins.append(ins)
        if i % 12 == 5 and late: late.pop(0)()
    for f in late: f()
    k.op("s_lshl_b32", S(sT1), S(sW), 11)
    k.op("s_add_u32", S(sT1), S(sT1), GB)
    k.op("v_add_u32", V(vLd), S(sT1), V(vL16))
    k.op("v_lshrrev_b32", V(VZ + 3), 3, V(vL))
    k.op("v_lshlrev_b32", V(VZ + 3), 8, V(VZ + 3))
    k.op("v_lshl_add_u32", V(VZ + 3), V(p8), 4, V(VZ + 3))
    k.op("s_lshr_b32", S(sR + 1), "s2", 1)
    k.op("s_lshl_b32", S(sR + 1), S(sR + 1), 14)
    k.op("s_and_b32", S(sT1), "s2", 1)
    k.op("s_lshl_b32", S(sT1), S(sT1), 7)
    k.op("s_add_u32", S(sR + 1), S(sR + 1), S(sT1))
    k.op("s_add_u32", S(sR + 1), S(sR + 1), S(sW4k))
    k.op("s_lshl_b32", S(sR + 2), "s2", 6)
    k.op("s_add_u32", S(sR + 2), S(sR + 2), YF_OFF)
    k.op("v_and_b32", V(VZ + 2), 48, V(vL16))
    k.op("v_add_u32", V(LN2 + 30), GB + 8192, V(VZ + 2))
    k.op("s_barrier")
    k.op("ds_read_b128", V(LN2, 4), V(vLd))
    k.op("ds_read_b128", V(LN2 + 4, 4), V(vLd), mods="offset:1024")
    k.op("ds_read_b128", V(LN2 + 8, 4), V(LN2 + 30))
    k.wait(lgkm=0)
    k.op("s_barrier")
    for f in dma_w_items(2): f()
    k.op("buffer_store_dwordx4", V(LN2, 4), V(VZ + 3), S(sWS, 4), S(sR + 1), mods="offen sc1"); vq.issue("lnst")
    k.op("buffer_store_dwordx4", V(LN2 + 4, 4), V(VZ + 3), S(sWS, 4), S(sR + 1), mods="offen offset:2048 sc1"); vq.issue("lnst")
    k.op("buffer_store_dwordx4", V(LN2 + 8, 4), V(VZ + 2), S(sWS, 4), S(sR + 2), mods="offen sc1"); vq.issue("lnst")

    def pf_k2():
        k.op("s_lshr_b32", S(sT1), "s2", 3)
        k.op("s_lshl_b32", S(sT1), S(sT1), 2)
        k.op("s_add_u32", S(sT1), S(sT1), S(sW))
        k.op("s_and_b32", S(sT0), "s2", 7)
        load_srd(k, sWV, "wq", 96)
        k.op("v_bfe_u32", V(12), V(vL), 3, 2)
        k.op("v_lshlrev_b32", V(13), 13, V(12))
        k.op("v_lshl_add_u32", V(13), V(p8), 7, V(13))
        k.op("s_lshl_b32", S(57), S(sT1), 15)
        k.op("s_lshl_b32", S(sT2), S(sT0), 10)
        k.op("s_add_u32", S(57), S(57), S(sT2))
        k.op("buffer_load_dword", V(15), V(13), S(sWV, 4), S(57), mods="offen", dummy=True); vq.issue()
        load_srd(k, sWK, "w1", 98)
        k.op("v_mul_u32_u24", V(13), 2752, V(12))
        k.op("v_lshl_add_u32", V(13), V(p8), 6, V(13))
        k.op("s_mul_i32", S(57), S(sT1), 4 * 2752)
        k.op("s_mul_i32", S(sT2), S(sT0), 384)
        k.op("s_add_u32", S(57), S(57), S(sT2))
        k.op("buffer_load_dword", V(15), V(13), S(sWK, 4), S(57), mods="offen", dummy=True); vq.issue()
        k.op("s_lshl_b32", S(57), S(sT1), 13)
        pf_code(k, sX, "k2_kernel", "k2_slow_0-k2_kernel", 13, vL, 57, 15); vq.issue()

    k.op("s_cmp_lg_u32", S(sKV), 0)
    k.op("s_cbranch_scc1", "k1_V")
    vq0, lq0, n0 = copy.deepcopy((vq.q, vq.ever)), copy.deepcopy((lq.q, lq.ever)), stp.n
    for kv in range(2):
        if kv:
            k.label("k1_V")
            vq.q, vq.ever = copy.deepcopy(vq0); lq.q, lq.ever = copy.deepcopy(lq0); stp.n = n0
        onst = lambda i: vq.issue() if i.kind == "vstore" else None
        q1, q2 = FillQ(k), FillQ(k, on_emit=onst)
        K2VW, K2VW1, sLd = 108, 112, 98
        def k2_setup():
            e = Kern("e")
            load_srd(e, 12, "wq", 96); load_srd(e, 16, "w1", 98)
            for i in range(4): e.op("v_mov_b32", V(K2VW + i), V(VW + i))
            e.op("v_lshlrev_b32", V(84), 1, V(g1))
            e.op("v_xor_b32", V(84), V(84), V(p8))
            e.op("v_lshlrev_b32", V(84), 4, V(84))
            e.op("v_lshrrev_b32", V(85), 3, V(vL))
            e.op("v_mul_u32_u24", V(85), 2752, V(85))
            e.op("s_mul_i32", S(38), S(sW), 32 * 2752)
            e.op("s_mul_i32", S(39), S(sH), 96)
            e.op("s_add_u32", S(38), S(38), S(39))
            e.op("v_add_u32", V(85), S(38), V(85))
            e.op("v_add_u32", V(K2VW1), V(85), V(84))
            e.op("v_xor_b32", V(84), 64, V(84))
            e.op("v_add_u32", V(K2VW1 + 1), V(85), V(84))
            e.op("v_add_u32", V(K2VW1 + 1), 8 * 2752 - 1024, V(K2VW1 + 1))
            e.op("v_add_u32", V(K2VW1 + 2), 2 * (8 * 2752 - 1024), V(K2VW1))
            e.op("v_add_u32", V(K2VW1 + 3), 2 * (8 * 2752 - 1024), V(K2VW1 + 1))
            e.op("s_lshl_b32", S(38), S(sJ), 17)
            e.op("s_lshl_b32", S(39), S(sW), 15)
            e.op("s_add_u32", S(sLd), S(38), S(39))
            e.op("s_add_u32", S(sLd + 1), S(sLd), 16384)
            e.op("s_sub_u32", S(sLd + 2), 1920 * 1024, S(38))
            e.op("s_add_u32", S(sLd + 2), S(sLd + 2), S(39))
            e.op("s_add_u32", S(sLd + 3), S(sLd + 2), 16384)
            return e
        def k2_pages():
            it = []
            for pg, (srd, vb, so) in enumerate([(16, K2VW1, 0), (12, K2VW, 0), (12, K2VW, 524288)]):
                def setup(pg=pg, so=so):
                    k.op("s_add_u32", "m0", S(sW4k), pg * 16384)
                    k.op("s_mov_b32", S(41), so)
                it.append(setup)
                for i in range(4):
                    def f(i=i, srd=srd, vb=vb):
                        k.op("buffer_load_dwordx4", V(vb + i), S(srd, 4), S(41), mods=f"offen offset:{i*1024} lds"); vq.issue()
                    it.append(f)
            return it
        def k2_xn(ks):
            it = []
            for rb in range(4):
                def f(rb=rb):
                    k.op("buffer_load_dwordx4", A((ks * 4 + rb) * 4, 4), V(vL16), S(sWS, 4), S(sLd + rb), mods=f"offen offset:{ks*1024} sc1"); vq.issue()
                it.append(f)
            return it
        def acc(st, rb, nb): return ACC + 32 * (st % 2) + 16 * rb + 4 * nb
        def pack(e, a, b):
            e.op("v_cvt_pk_bf16_f32", V(a), V(a), V(a + 1))
            e.op("v_cvt_pk_bf16_f32", V(a + 1), V(a + 2), V(a + 3))
            e.op("v_cvt_pk_bf16_f32", V(a + 2), V(b), V(b + 1))
            e.op("v_cvt_pk_bf16_f32", V(a + 3), V(b + 2), V(b + 3))
        def epi(st, rb):
            e = Kern("e")
            if kv == 0 or rb == 1:
                e.op("s_lshr_b32", S(sSo2), S(CHA + st), 2)
                e.op("s_add_u32", S(sSo2), S(sSo2), S(sSt))
            if kv == 0:
                if rb: e.op("s_add_u32", S(sSo2), S(sSo2), 4096)
                for p in range(2):
                    pack(e, acc(st, rb, 2 * p), acc(st, rb, 2 * p + 1))
                    e.op("buffer_store_dwordx4", V(acc(st, rb, 2 * p), 4), V(vL16), S(sWS, 4), S(sSo2), mods=f"offen offset:{p*1024}{store_mods}")
            elif rb == 1:
                for nb in range(4):
                    pack(e, acc(st, 0, nb), acc(st, 1, nb))
                    e.op("buffer_store_dwordx4", V(acc(st, 0, nb), 4), V(vL16), S(sWS, 4), S(sSo2), mods=f"offen offset:{nb*1024}{store_mods}")
            return e
        def zst():
            lab = k.newlabel("noz")
            k.op("v_mov_b32", V(VZ + 5), 1)
            k.op("s_cmp_lg_u32", S(sW), 0); k.op("s_cbranch_scc1", lab)
            k.op("s_mov_b64", "exec", 1)
            k.op("buffer_store_byte", V(VZ + 5), V(vLz), S(sDb, 4), "s2", mods="offen sc1")
            k.op("s_mov_b64", "exec", -1)
            k.label(lab)
        pz = lambda: k.op("buffer_load_dword", V(242), V(243), S(sDb, 4), 0, mods="offen sc1")
        pl = lambda: k.op("buffer_load_dword", V(241), V(240), S(sWS, 4), S(sFL), mods="offen sc1")
        def stage_switch(st):
            if st == 2: assert len(lq.q) == 0
            vq.need(("A", st), cnt=[8])
            if st == 2: vq.need("lnst", cnt=[3])
            k.op("s_barrier")
            if st == 6:
                vq.need("pz")
                spin_until(k, f"k1_sz{kv}", pz, lambda: k.op("v_cmp_ne_u32", "vcc", "0x01010101", V(242)), sT1)
            if st == 7:
                vq.need("pp")
                spin_until(k, f"k1_sp{kv}", pl, lambda: k.op("v_cmp_ne_u32", "vcc", 1, V(241)), sT1)
            q1.flush()
            if st == 2:
                for f in dma_a_items(4) + dma_a_items(5): q1.add(f)
                q1.add(lambda: one_lane_store(k, sW, sWS, [sFL], 1, VZ + 4))
            if st == 3:
                for f in dma_a_items(6): q1.add(f)
            if st == 4:
                for f in dma_a_items(7): q1.add(f)
                def a():
                    k.op("v_lshlrev_b32", V(243), 2, V(vL)); pz(); vq.issue("pz")
                q1.add(a)
            if st == 6:
                def a():
                    k.op("s_lshl_b32", S(sT1), S(sJ), 6)
                    k.op("s_sub_u32", S(sT2), 960, S(sT1))
                    k.op("v_mov_b32", V(240), S(sT1))
                    k.op("v_mov_b32", V(241), S(sT2))
                    k.op("v_cmp_eq_u32", "vcc", 0, V(g1))
                    k.op("s_mov_b32", S(sFL), FL_OFF)
                    k.nop(1)
                    k.op("v_cndmask_b32", V(240), V(241), V(240), "vcc")
                    k.op("v_lshl_add_u32", V(240), V(l15), 2, V(240))
                    pl(); vq.issue("pp")
                q1.add(a)
                q2.add_kern(k2_setup())
            if st == 7:
                for f in k2_pages(): q1.add(f)
        def rd_act(st, rb, ks, dst, tag):
            off = aslot(st) + rb * 16384
            wn = off // 65536
            k.op("ds_read_b128", V(dst, 4), V(AAr + 4 * wn + (ks & 3)), mods=f"offset:{off - wn*65536 + (ks>>2)*256}")
            lq.issue(tag)
        def rd_main(n):
            st, rb, ks = n >> 5, (n >> 4) & 1, n & 15
            if n % 32 == 0: stage_switch(st)
            rd_act(st, rb, ks, AF + (n % 8) * 4, ("a", n))
        def mf(st, rb, ks, nb, af):
            d = V(acc(st, rb, nb), 4); wf = A((ks * 4 + nb) * 4, 4)
            if kv == 0: k.op("v_mfma_f32_16x16x32_bf16", d, wf, V(af, 4), "0" if ks == 0 else d)
            else: k.op("v_mfma_f32_16x16x32_bf16", d, V(af, 4), wf, "0" if ks == 0 else d)
        def waf(s, ks, x): return (AF2 if s % 2 == 0 else 84) + ((ks & 1) * 4 + x) * 4
        def wread_items(s):
            it = []
            for ks in (2 * s, 2 * s + 1):
                for nb in range(4):
                    for i in range(2):
                        def f(ks=ks, nb=nb, i=i):
                            off = wslot(s) + (ks & 1) * 8192 + i * 1024
                            wn = off // 65536
                            k.op("ds_read_b64_tr_b16", A((ks * 4 + nb) * 4 + 2 * i, 2), V(TA + 4 * wn + nb), mods=f"offset:{off - wn*65536}")
                            lq.issue(("w", s))
                        it.append(f)
                for x in range(4):
                    it.append(lambda ks=ks, x=x: rd_act(x >> 1, x & 1, ks, waf(s, ks, x), ("w", s)))
            return it
        qr = FillQ(k)
        for s in range(9):
            if s > 0: lq.need(("w", s - 1), cnt=[24])
            if s < 8:
                vq.need(("W", s), ("A", 0), ("A", 1), cnt=[8, 8, 8])
                k.op("s_barrier")
                if s == 0: stp.stamp()
                for f in wread_items(s): qr.add(f)
                if 1 <= s and s + 2 < 8:
                    for f in dma_w_items(s + 2): q1.add(f)
                if s == 1: q1.add(zst)
                if s == 6:
                    for f in dma_a_items(2): q1.add(f)
                if s == 7:
                    for f in dma_a_items(3): q1.add(f)
            else:
                for n in range(64, 64 + D): qr.add(lambda n=n: rd_main(n))
            if s == 0:
                qr.flush(); continue
            c = 0
            for ks in (2 * s - 2, 2 * s - 1):
                for x in range(4):
                    for nb in range(4):
                        mf(x >> 1, x & 1, ks, nb, waf(s - 1, ks, x))
                        if s < 8 or c >= 16: qr.emit(1)
                        if c % 3 == 1: q1.emit(1)
                        c += 1
            qr.flush()
            if s < 8: q1.flush()
        stp.stamp()
        k.nop(4)
        for rb in range(2): q2.add_kern(epi(0, rb))
        q2.flush()
        for rb in range(2): q2.add_kern(epi(1, rb))
        nxt = 64 + D
        for n in range(64, 256):
            st, rb, ks = n >> 5, (n >> 4) & 1, n & 15
            if n in (128, 192): stp.stamp()
            if ks == 2 and n > 80:
                q2.add_kern(epi(st, 0) if rb else epi(st - 1, 1))
            if pf2 and n == pf2at * 32 + 8: pf_k2()
            if st == 7 and rb == 1 and 2 <= ks < 6:
                for f in k2_xn(ks - 2): q1.add(f)
            if n % 2 == 0: lq.need(("a", n), ("a", n + 1), cnt=[1, 1])
            for nb in range(4):
                mf(st, rb, ks, nb, AF + (n % 8) * 4)
                cap = 1
                if nb == 0 and nxt < 256:
                    rd_main(nxt); nxt += 1; cap = 0
                if nb == 2 or n >= 240: cap -= q1.emit(cap)
                cap -= q2.emit(cap)
        stp.stamp()
        q1.flush(); q2.flush()
        k.nop(8)
        q2.add_kern(epi(7, 1)); q2.flush()
        if stamps:
            stp.stamp()
            stp.flush(sWS, sW, 4)
        k.wait(lgkm=0)
        k.op("s_barrier")
        k.op("s_mov_b32", "s3", S(sFA))
        k.raw("  s_branch k2_kernel")
        k.op("s_endpgm")
    k.label("k1_end")
    k.op("s_endpgm")
    return k

if __name__ == "__main__":
    k = build_k1()
    for e in k.check_hazards(): print(e)
    for e in k.check_waits(): print(e)
    print(k.maxregs(), len(k.ins))
```

```python
from common import *
import struct
def f32(x): return hex(struct.unpack("<I", struct.pack("<f", x))[0])
LOG2E = 1.4426950408889634
QSCALE = LOG2E / (128 ** 0.5)
STAT_OFF = YF_OFF

def build_k2(stamps=False, D=6, DA=8, thr=2.0 ** 80, pf3=True, fuse3=False, xnobar=False, xnodma=False, oolmask=True, pfself=True, fused1=False, early1=False, pace=True, wp=4, early3=False):
    k = Kern("k2_kernel")
    SC = " sc1" if fused1 else ""
    vq, lq = Q(k, "vmcnt", 63), Q(k, "lgkmcnt", 15)
    stp = Stamps(k, stamps, 62, 1, lq, maxn=8)
    sWS, sWQ, sW1, sK, sV, sB1 = 8, 12, 16, 20, 24, 28
    sW, sH, sP, sNa, sNb, sT = 32, 33, 34, 35, 36, 37
    sT0, sT1, sT2, sSo = 38, 39, 40, 41
    sP2, sP1, sRd, sNx = 42, 43, 44, 45
    sTK, sTV, sW4k, sThr, sRet = 46, 47, 48, 49, 50
    sXa, sXb = 51, 52
    sCa, sCb = 53, 54
    sM = 56
    sLd = 98
    vL, vL16, vA, vD, vZ, vNinf = 1, 2, 3, 4, 5, 6
    vPs = [7, 8]; vLs = [9, 10]; vMx = [11, 12]
    vT = 13
    vCo = 20
    QR, NEGM, SR = 32, 96, 128
    def Sreg(sub, par): return SR + sub * 64 + par * 32
    OA, FR = 64, 192
    TA, TB, VW, VW1 = 96, 104, 108, 112
    vXo = 21
    MACC = 32
    ONES = 116
    XR = 0

    k.op("s_cmp_ge_u32", "s2", 256)
    k.op("s_cbranch_scc1", "k2_end")
    if pfself:
        pf_self(k, "k2_slow_0", vt=254); vq.issue()
    k.op("s_load_dwordx2", S(84, 2), S(0, 2), KA["wq"])
    k.op("s_load_dwordx4", S(88, 4), S(0, 2), KA["w1"])
    k.op("s_load_dwordx2", S(92, 2), S(0, 2), KA["ws"])
    k.op("s_load_dwordx2", S(86, 2), S(0, 2), KA["wo"])
    k.op("s_load_dwordx2", S(96, 2), S(0, 2), KA["w2"])
    k.op("v_and_b32", V(vL), 63, "v0")
    k.op("v_lshrrev_b32", V(13), 6, "v0")
    k.op("s_and_b32", S(sT0), "s2", 7)
    k.op("v_readfirstlane_b32", S(sW), V(13))
    k.op("s_lshr_b32", S(sT1), "s2", 3)
    k.op("s_and_b32", S(sT2), S(sT1), 3)
    k.op("s_lshl_b32", S(sH), S(sT0), 2)
    k.op("s_add_u32", S(sH), S(sH), S(sT2))
    k.op("s_lshr_b32", S(sP), S(sT1), 2)
    k.op("v_lshlrev_b32", V(vL16), 4, V(vL))
    k.op("s_lshl_b32", S(sW4k), S(sW), 12)
    k.op("v_add_u32", V(vD), S(sW4k), V(vL16))
    g, l15, p8, l3, r_, cc, g1, t7 = 22, 23, 24, 25, 26, 27, 28, 29
    k.op("v_lshrrev_b32", V(g), 4, V(vL))
    k.op("v_and_b32", V(l15), 15, V(vL))
    k.op("v_and_b32", V(p8), 7, V(vL))
    k.op("v_lshrrev_b32", V(l3), 3, V(vL))
    k.op("v_bfe_u32", V(r_), V(vL), 2, 2)
    k.op("v_and_b32", V(cc), 3, V(vL))
    k.op("v_and_b32", V(g1), 1, V(g))
    k.op("v_lshlrev_b32", V(t7), 1, V(g))
    k.op("v_xor_b32", V(t7), V(t7), V(l15))
    k.op("v_lshlrev_b32", V(t7), 4, V(t7))
    k.op("v_lshl_add_u32", V(t7), V(g), 13, V(t7))
    k.op("s_lshl_b32", S(sT0), S(sW), 17)
    k.op("s_lshl_b32", S(sT1), S(sH), 8)
    k.op("s_add_u32", S(sT0), S(sT0), S(sT1))
    k.op("v_add_u32", V(VW), S(sT0), V(t7))
    k.op("v_add_u32", V(VW + 1), 32768 - 1024, V(VW))
    k.op("v_xor_b32", V(VW + 2), 128, V(VW))
    k.op("v_add_u32", V(VW + 2), 2 * (32768 - 1024), V(VW + 2))
    k.op("v_add_u32", V(VW + 3), 32768 - 1024, V(VW + 2))
    k.op("v_lshlrev_b32", V(t7), 1, V(g1))
    k.op("v_xor_b32", V(t7), V(t7), V(p8))
    k.op("v_lshlrev_b32", V(t7), 4, V(t7))
    k.op("v_mul_u32_u24", V(30), 2752, V(l3))
    k.op("s_mul_i32", S(sT0), S(sW), 32 * 2752)
    k.op("s_mul_i32", S(sT1), S(sH), 96)
    k.op("s_add_u32", S(sT0), S(sT0), S(sT1))
    k.op("v_add_u32", V(30), S(sT0), V(30))
    k.op("v_add_u32", V(VW1), V(30), V(t7))
    k.op("v_xor_b32", V(t7), 64, V(t7))
    k.op("v_add_u32", V(VW1 + 1), V(30), V(t7))
    k.op("v_add_u32", V(VW1 + 1), 8 * 2752 - 1024, V(VW1 + 1))
    k.op("v_add_u32", V(VW1 + 2), 2 * (8 * 2752 - 1024), V(VW1))
    k.op("v_add_u32", V(VW1 + 3), 2 * (8 * 2752 - 1024), V(VW1 + 1))
    k.op("s_lshl_b32", S(sT0), S(sP), 7)
    k.op("s_lshl_b32", S(sT1), S(sW), 5)
    k.op("s_add_u32", S(sXa), S(sT0), S(sT1))
    k.op("s_sub_u32", S(sXb), 1920, S(sT0))
    k.op("s_add_u32", S(sXb), S(sXb), S(sT1))
    k.op("s_lshl_b32", S(sT2), S(sH), 12)
    k.op("s_add_u32", S(sT2), S(sT2), CTX_OFF)
    k.op("s_lshl_b32", S(sCa), S(sXa), 13)
    k.op("s_add_u32", S(sCa), S(sCa), S(sT2))
    k.op("s_lshl_b32", S(sCb), S(sXb), 13)
    k.op("s_add_u32", S(sCb), S(sCb), S(sT2))
    sRa, sRb = 94, 95
    k.op("s_mov_b32", S(sRa), S(sXa)); k.op("s_mov_b32", S(sRb), S(sXb))
    sHr = 56
    for rb in range(4):
        k.op("s_lshr_b32", S(sHr + rb), S(sRa if rb < 2 else sRb), 4)
        k.op("s_add_u32", S(sHr + rb), S(sHr + rb), rb & 1)
        k.op("s_mul_i32", S(sHr + rb), S(sHr + rb), 43 * 1024)
    k.op("s_lshl_b32", S(sXa), S(sXa), 10)
    k.op("s_lshl_b32", S(sXb), S(sXb), 10)
    k.op("s_lshr_b32", S(sT1), S(sW), 1)
    k.op("s_lshl_b32", S(sT0), S(sP), 1)
    k.op("s_add_u32", S(sNa), S(sT0), S(sT1))
    k.op("s_add_u32", S(sNa), S(sNa), 1)
    k.op("s_sub_u32", S(sNb), 31, S(sT0))
    k.op("s_add_u32", S(sNb), S(sNb), S(sT1))
    k.wait(lgkm=0)
    stp.stamp()
    load_srd(k, sWQ, "wq", 84); load_srd(k, sW1, "w1", 88); load_srd(k, sWS, "ws", 92)

    pages = {}
    order = []
    for j in range(4):
        order += [("W1", j), ("WQ", 2 * j), ("WQ", 2 * j + 1)]
    for i, p in enumerate(order): pages[p] = i
    for t in range(6): pages[("K", t)] = 12 + 2 * t; pages[("V", t)] = 15 + 2 * t
    def slot(p): return (pages[p] % 10) * 16384
    def dma_items(p):
        kind, j = p
        def setup():
            k.op("s_add_u32", "m0", S(sW4k), slot(p))
            k.op("s_mov_b32", S(sSo), {"W1": j * 128 * 2752, "WQ": j * 524288, "K": j * 16384, "V": (j + 1) * 16384}[kind])
        def ld(i):
            def f():
                if kind == "WQ": k.op("buffer_load_dwordx4", V(VW + i), S(sWQ, 4), S(sSo), mods=f"offen offset:{i*1024} lds")
                elif kind == "W1": k.op("buffer_load_dwordx4", V(VW1 + i), S(sW1, 4), S(sSo), mods=f"offen offset:{i*1024} lds")
                else: k.op("buffer_load_dwordx4", V(vD), S(sK if kind == "K" else sV, 4), S(sSo), mods=f"offen offset:{i*1024}{SC} lds")
                vq.issue(p)
            return f
        return [setup] + [ld(i) for i in range(4)]
    def xn_load(ks, rb):
        def f():
            r = XR + ((ks % 12) * 4 + rb) * 4
            if ks & 3 == 0: k.op("s_add_u32", S(sLd + rb), S(sXa if rb < 2 else sXb), (rb & 1) * 16384 + (ks >> 2) * 4096)
            k.op("buffer_load_dwordx4", A(r, 4), V(vL16), S(sWS, 4), S(sLd + rb), mods=f"offen offset:{(ks&3)*1024}" + SC)
            vq.issue(("x", ks))
        return f
    if early1:
        for p in (("W1", 0), ("WQ", 0), ("WQ", 1)):
            for _ in range(4): vq.issue(p)
        for ks in range(4):
            for _ in range(4): vq.issue(("x", ks))
        vq.issue(); vq.issue()
    else:
        for p in (("W1", 0), ("WQ", 0)):
            for f in dma_items(p): f()
        for ks in range(2):
            for rb in range(4): xn_load(ks, rb)()
        for f in dma_items(("WQ", 1)): f()
        for ks in range(2, 4):
            for rb in range(4): xn_load(ks, rb)()
    load_srd(k, sB1, "b1", 90)
    k.op("s_lshl_b32", S(sT0), S(sH), 19)
    k.op("s_add_u32", S(sT1), S(sT0), KF_OFF)
    k.op("s_add_u32", S(sK), S(92), S(sT1))
    k.op("s_addc_u32", S(sK + 1), S(93), 0)
    k.op("s_and_b32", S(sK + 1), S(sK + 1), "0xffff")
    k.op("s_lshl_b32", S(sT2), S(sP), 15)
    k.op("s_sub_u32", S(sK + 2), 32 * 16384, S(sT2))
    k.op("s_mov_b32", S(sK + 3), "0x20000")
    k.op("s_add_u32", S(sT1), S(sT0), VF_OFF - 16384)
    k.op("s_add_u32", S(sV), S(92), S(sT1))
    k.op("s_addc_u32", S(sV + 1), S(93), 0)
    k.op("s_and_b32", S(sV + 1), S(sV + 1), "0xffff")
    k.op("s_add_u32", S(sV + 2), S(sK + 2), 16384)
    k.op("s_mov_b32", S(sV + 3), "0x20000")
    k.op("v_lshl_or_b32", V(30), V(g1), 2, V(r_))
    k.op("v_lshl_add_u32", V(31), V(g), 3, V(r_))
    k.op("v_lshlrev_b32", V(t7), 8, V(31))
    k.op("v_lshl_add_u32", V(t7), V(cc), 3, V(t7))
    for nb in range(8):
        k.op("v_xor_b32", V(13), nb, V(30))
        k.op("v_lshl_add_u32", V(TA + nb), V(13), 5, V(t7))
    k.op("v_lshrrev_b32", V(13), 1, V(r_))
    k.op("v_lshl_or_b32", V(30), V(g1), 1, V(13))
    k.op("v_lshlrev_b32", V(t7), 7, V(31))
    k.op("v_lshl_add_u32", V(t7), V(cc), 3, V(t7))
    for nb in range(3):
        k.op("v_xor_b32", V(13), nb, V(30))
        k.op("v_lshl_add_u32", V(TB + nb), V(13), 5, V(t7))
    for i in range(4): k.op("v_mov_b32", V(ONES + i), "0x3f803f80")
    ST = 120
    B1 = [92, 94, 30]
    k.op("v_lshlrev_b32", V(13), 3, V(l15))
    for rb in range(4):
        k.op("s_lshl_b32", S(sT0), S(sRa if rb < 2 else sRb), 3)
        k.op("s_add_u32", S(sT0), S(sT0), STAT_OFF + (rb & 1) * 128)
        k.op("buffer_load_dwordx2", V(ST + 2 * rb, 2), V(13), S(sWS, 4), S(sT0), mods="offen" + SC); vq.issue("st")
    k.op("v_lshlrev_b32", V(14), 3, V(g))
    k.op("s_mul_i32", S(sT1), S(sH), 96)
    for nb in range(3):
        k.op("buffer_load_dwordx2", V(B1[nb], 2), V(14), S(sB1, 4), S(sT1), mods=f"offen offset:{nb*32}"); vq.issue("st")
    win = {"TA": 0, "TB": 0}
    def set_window(name, base, n, off):
        w = off // 65536
        if win[name] != w:
            d = (w - win[name]) * 65536
            for i in range(n): k.op("v_add_u32", V(base + i), hex(d & 0xffffffff), V(base + i))
            win[name] = w
        return off - w * 65536
    frs = []
    for ks in range(16):
        for nb in range(3): frs.append(("W1", ks, nb))
        for nb in range(8): frs.append(("WQ", ks, nb))
    NF = len(frs)
    q1 = FillQ(k)
    plan = {0: [("W1", 1), ("WQ", 2)], 1: [("WQ", 3)], 2: [("W1", 2), ("WQ", 4)], 3: [("WQ", 5)], 4: [("W1", 3), ("WQ", 6)],
            5: [("WQ", 7)], 6: [("K", 0), ("K", 1)], 7: [("V", 0), ("K", 2)]}
    def stage_switch(s):
        need = [("WQ", s)] + ([("W1", s // 2)] if s % 2 == 0 else [])
        vq.need(*need, cnt=[4] * len(need))
        k.op("s_barrier")
        q1.flush()
        if fused1 and s == 2:
            one_lane_store(k, sW, sWS, [3], 1, 18)
        if fused1 and s == 5:
            k.op("s_lshl_b32", S(55), S(sH), 7)
            k.op("s_add_u32", S(55), S(55), FA_OFF)
            k.op("v_lshlrev_b32", V(18), 2, V(p8))
            k.op("buffer_load_dword", V(19), V(18), S(sWS, 4), S(55), mods="offen sc1"); vq.issue("pp")
        if fused1 and s == 6:
            vq.need("pp")
            spin_until(k, "k2_sp", lambda: k.op("buffer_load_dword", V(19), V(18), S(sWS, 4), S(55), mods="offen sc1"),
                       lambda: k.op("v_cmp_ne_u32", "vcc", 1, V(19)), sT1)
        for ks in (2 * s + 4, 2 * s + 5):
            if ks < 16:
                for rb in range(4): q1.add(xn_load(ks, rb))
        for p in plan[s]:
            for f in dma_items(p): q1.add(f)
    def read_frag(n, which):
        kind, ks, nb = frs[n]
        if n % 22 == 0 and which == 0: stage_switch(n // 22)
        r = FR + (n % 16) * 4
        if kind == "WQ":
            off = slot(("WQ", ks // 2)) + (ks & 1) * 8192 + which * 1024
            off = set_window("TA", TA, 8, slot(("WQ", ks // 2))) + (ks & 1) * 8192 + which * 1024
            k.op("ds_read_b64_tr_b16", A(r + 2 * which, 2), V(TA + nb), mods=f"offset:{off}")
        else:
            off = set_window("TB", TB, 3, slot(("W1", ks // 4))) + (ks & 3) * 4096 + which * 512
            k.op("ds_read_b64_tr_b16", A(r + 2 * which, 2), V(TB + nb), mods=f"offset:{off}")
        lq.issue(("w", n))
    def qacc(nb, rb): return SR + 4 * (nb * 4 + rb)
    def macc(nb, rb): return MACC + 4 * (nb * 4 + rb)
    for n in range(D):
        read_frag(n, 0); read_frag(n, 1)
    stp.stamp()
    for n in range(NF):
        kind, ks, nb = frs[n]
        if n % 11 == 0: vq.need(("x", ks), cnt=[4])
        if n % 2 == 0: lq.need(("w", n), ("w", n + 1), cnt=[2, 2])
        wf = A(FR + (n % 16) * 4, 4)
        first = ks == 0
        ms = []
        for rb in range(4):
            d = V(qacc(nb, rb) if kind == "WQ" else macc(nb, rb), 4)
            ms.append((d, A(XR + ((ks % 12) * 4 + rb) * 4, 4)))
        if kind == "W1": ms.append((V(MACC + 48 + 4 * nb, 4), V(ONES, 4)))
        for c, (d, b) in enumerate(ms):
            k.op("v_mfma_f32_16x16x32_bf16", d, wf, b, "0" if first else d)
            if c < 2 and n + D < NF: read_frag(n + D, c)
            elif not pace or c == 2: q1.emit(2 if (len(q1) > 12 and not pace) else 1)
    q1.flush()
    stp.stamp()
    vq.need(("K", 0), cnt=[4])
    k.op("s_barrier")
    for p in (("V", 1), ("K", 3), ("V", 2)):
        for f in dma_items(p): f()
    k.op("v_mul_u32_u24", V(15), 44032, V(g1))
    k.op("v_lshrrev_b32", V(16), 5, V(vL))
    k.op("v_lshl_add_u32", V(15), V(16), 8, V(15))
    k.op("v_lshl_add_u32", V(15), V(l15), 4, V(15))
    C1, C2 = -2 * LOG2E * 0.7978845608028654, -2 * LOG2E * 0.7978845608028654 * 0.044715
    k.op("v_mov_b32", V(16), f32(C1)); k.op("v_mov_b32", V(17), f32(C2))
    k.op("v_mov_b32", V(18), "1.0"); k.op("v_mov_b32", V(19), "1.0")
    def P(r): return V(r, 2)
    bb, t = 96, 100
    for nb in range(3):
        k.op("v_lshlrev_b32", V(bb), 16, V(B1[nb]))
        k.op("v_and_b32", V(bb + 1), "0xffff0000", V(B1[nb]))
        k.op("v_lshlrev_b32", V(bb + 2), 16, V(B1[nb] + 1))
        k.op("v_and_b32", V(bb + 3), "0xffff0000", V(B1[nb] + 1))
        cs = MACC + 48 + 4 * nb
        k.op("s_mul_i32", S(sT1), S(sH), 3)
        k.op("s_add_u32", S(sT1), S(sT1), nb)
        k.op("s_lshl_b32", S(sT2), S(sT1), 9)
        k.op("s_add_u32", S(sT2), S(sT2), HF_OFF)
        lab = k.newlabel("skiph")
        k.op("s_cmp_ge_u32", S(sT1), 86)
        k.op("s_cbranch_scc1", lab)
        for rp in range(2):
            rbs = (2 * rp, 2 * rp + 1)
            def each(fn):
                for j, rb in enumerate(rbs):
                    for i in (0, 2): fn(macc(nb, rb) + i, t + 4 * j + i, ST + 2 * rb, i)
            each(lambda a, tt, st, i: k.op("v_pk_fma_f32", P(a), P(cs + i), P(st), P(a), mods="op_sel_hi:[1,0,1] neg_lo:[1,0,0] neg_hi:[1,0,0]"))
            each(lambda a, tt, st, i: k.op("v_pk_fma_f32", P(a), P(a), P(st), P(bb + i), mods="op_sel:[0,1,0]"))
            each(lambda a, tt, st, i: k.op("v_pk_mul_f32", P(tt), P(a), P(a)))
            each(lambda a, tt, st, i: k.op("v_pk_fma_f32", P(tt), P(tt), P(16), P(16), mods="op_sel:[0,1,0] op_sel_hi:[1,1,0]"))
            each(lambda a, tt, st, i: k.op("v_pk_mul_f32", P(tt), P(tt), P(a)))
            for i in range(8): k.op("v_exp_f32", V(t + i), V(t + i))
            each(lambda a, tt, st, i: k.op("v_pk_add_f32", P(tt), P(tt), P(18)))
            for i in range(8): k.op("v_rcp_f32", V(t + i), V(t + i))
            each(lambda a, tt, st, i: k.op("v_pk_mul_f32", P(a), P(a), P(tt)))
            a0, a1 = macc(nb, rbs[0]), macc(nb, rbs[1])
            k.op("v_cvt_pk_bf16_f32", V(a0), V(a0), V(a0 + 1))
            k.op("v_cvt_pk_bf16_f32", V(a0 + 1), V(a0 + 2), V(a0 + 3))
            k.op("v_cvt_pk_bf16_f32", V(a0 + 2), V(a1), V(a1 + 1))
            k.op("v_cvt_pk_bf16_f32", V(a0 + 3), V(a1 + 2), V(a1 + 3))
            k.op("s_add_u32", S(sT0), S(sHr + 2 * rp), S(sT2))
            k.nop(1)
            k.op("v_permlane16_swap_b32", V(a0), V(a0 + 2))
            k.op("v_permlane16_swap_b32", V(a0 + 1), V(a0 + 3))
            k.op("buffer_store_dwordx4", V(a0, 4), V(15), S(sWS, 4), S(sT0), mods="offen" + (" sc1" if fuse3 else ""))
        k.label(lab)
    k.op("v_mov_b32", V(16), f32(QSCALE)); k.op("v_mov_b32", V(17), f32(QSCALE))
    def Qreg(sub, qb, ds): return QR + sub * 32 + qb * 16 + ds * 4
    for rb in range(4):
        for ds in range(4):
            X = Qreg(rb >> 1, rb & 1, ds)
            for half in range(2):
                a = qacc(2 * ds + half, rb)
                for i in (0, 2): k.op("v_pk_mul_f32", P(a + i), P(a + i), P(16))
                k.op("v_cvt_pk_bf16_f32", V(X + 2 * half), V(a), V(a + 1))
                k.op("v_cvt_pk_bf16_f32", V(X + 2 * half + 1), V(a + 2), V(a + 3))
    stp.stamp()
    def Ngm(sub, qb): return NEGM + sub * 8 + qb * 4
    def Lac(sub, qb): return 112 + sub * 8 + qb * 4
    ON1 = 24
    k.op("s_and_b32", S(sT0), S(sW), 1)
    k.op("s_lshl_b32", S(sT0), S(sT0), 5)
    k.op("v_add_u32", V(vZ), S(sT0), V(l15))
    k.op("v_lshlrev_b32", V(15), 2, V(g))
    k.op("v_sub_u32", V(vZ), V(vZ), V(15))
    k.op("v_mov_b32", V(vNinf), f32(-1e30))
    for i in range(4): k.op("v_mov_b32", V(ON1 + i), "0x3f803f80")
    for i in range(16): k.op("v_mov_b32", V(112 + i), 0)
    k.op("s_mov_b32", S(sThr), f32(thr))
    k.op("s_mov_b32", S(sP2), 0)
    k.op("s_mov_b32", S(sNx), 98304)
    k.op("s_mov_b32", S(sTK), 4 * 16384)
    k.op("s_mov_b32", S(sT), 2)

    def mf(d, a, b, c): k.op("v_mfma_f32_16x16x32_bf16", d, a, b, c)
    def mask_block(sub, par):
        s0 = Sreg(sub, par)
        for e0 in range(0, 32, 2):
            for u in range(2):
                e = e0 + u; qb, kb, r = e >> 4, (e >> 2) & 3, e & 3
                k.op("v_cmp_gt_i32", S(sM + 2 * u, 2), 16 * kb + r - 16 * qb, V(vZ))
            k.nop(1)
            for u in range(2):
                k.op("v_cndmask_b32", V(s0 + e0 + u), V(s0 + e0 + u), V(vNinf), S(sM + 2 * u, 2))
    def ereg(n):
        k32, qb, j = n >> 4, (n >> 3) & 1, n & 7
        return qb * 16 + k32 * 8 + j
    def soft_exp(sub, par, n):
        r = Sreg(sub, par) + ereg(n)
        k.op("v_exp_f32", V(r), V(r))
    def soft_cvt(sub, par, n):
        e = n - 2
        r = Sreg(sub, par) + ereg(e)
        d = Sreg(sub, par) + (ereg(e) & ~7) + ((e & 7) >> 1)
        k.op("v_cvt_pk_bf16_f32", V(d), V(r), V(r + 1))
    def rd(frag, isV):
        k.op("ds_read_b128", A(FR + frag * 4, 4), V(vA), mods=f"offset:{(16384 if isV else 0) + frag*1024}")
    def ldK(i): return lambda: k.op("buffer_load_dwordx4", V(vD), S(sK, 4), S(sTK), mods=f"offen offset:{i*1024}{SC} lds")
    def ldV(i): return lambda: k.op("buffer_load_dwordx4", V(vD), S(sV, 4), S(sTK), mods=f"offen offset:{i*1024}{SC} lds")
    m0K = lambda: k.op("s_add_u32", "m0", S(sP2), S(sW4k))
    m0V = lambda: k.op("s_add_u32", "m0", "m0", 16384)
    advT = lambda: k.op("s_add_u32", S(sTK), S(sTK), 16384)
    advP = lambda: k.op("s_add_u32", S(sP2), S(sP2), 32768)
    wrapP = lambda: (k.op("s_cmp_eq_u32", S(sP2), 163840), k.op("s_cselect_b32", S(sP2), 0, S(sP2)))
    XA = {1: [ldK(2)], 5: [ldK(3)], 7: [m0V], 9: [ldV(0)], 13: [ldV(1)]}
    XB = {1: [ldV(2)], 5: [ldV(3)], 7: [advT, advP], 9: [wrapP, m0K], 11: [ldK(0)], 15: [ldK(1)]}
    if DA == 6:
        XB = {1: [ldV(2)], 5: [ldV(3)], 7: [advT, advP], 9: [wrapP], 11: [m0K], 13: [ldK(0)], 15: [ldK(1)]}
    WP = wp
    def phaseA(par, qk, ex):
        if not qk:
            k.wait(lgkm=0)
            for f in range(DA): rd(f, True)
            for n in range(16, 32):
                for sub in ex:
                    soft_exp(sub, par, n)
                    if n % 2 == 0: soft_cvt(sub, par, n)
            return
        for f in range(16):
            kb, ds = f >> 2, f & 3
            if f % WP == 0: k.wait(lgkm=DA - WP)
            for j, sub in enumerate(qk):
                xs = ex if len(qk) == 1 else [sub]
                for qb in range(2):
                    d = V(Sreg(sub, 1 - par) + qb * 16 + kb * 4, 4)
                    mf(d, A(FR + f * 4, 4), V(Qreg(sub, qb, ds), 4), V(Ngm(sub, qb), 4) if ds == 0 else d)
                    if qb == 0:
                        for x in xs: soft_exp(x, par, 16 + f)
                if j == 0:
                    nf = f + DA
                    if nf < 16: rd(nf, False)
                    else: rd(nf - 16, True)
                if f % 2 == 0:
                    for x in xs: soft_cvt(x, par, 16 + f)
                if j == len(qk) - 1:
                    for fn in XA.get(f, []): fn()
    def phaseB(par, pv, exn, bar="always", tailops=()):
        extra = list(tailops)
        for f in range(16):
            k32, db = f >> 3, f & 7
            if f % WP == 0: k.wait(lgkm=DA - WP if bar == "always" else max(0, min(DA - WP, 16 - f - WP)))
            for j, sub in enumerate(pv):
                for qb in range(2):
                    d = A(OA + sub * 64 + (db * 2 + qb) * 4, 4)
                    mf(d, A(FR + f * 4, 4), V(Sreg(sub, par) + qb * 16 + k32 * 8, 4), d)
                    if qb == 0 and sub in exn: soft_exp(sub, 1 - par, f)
                if j == 0:
                    nf = f + DA
                    if nf == 16:
                        if bar == "always":
                            k.wait(vm=16); k.op("s_barrier")
                        elif bar == "w01":
                            lab = k.newlabel("nobar")
                            k.op("s_cmp_ge_u32", S(sW), 2); k.op("s_cbranch_scc1", lab)
                            k.wait(vm=8); k.op("s_barrier")
                            k.label(lab)
                        k.op("v_add_u32", V(vA), S(sNx), V(vL16))
                    if bar == "always" or nf < 16:
                        if nf < 16: rd(nf, True)
                        else: rd(nf - 16, False)
                if f == 0: soft_cvt(sub, par, 32)
                elif f % 2 == 0 and sub in exn: soft_cvt(sub, 1 - par, f)
                if f % 4 == 3:
                    qb = (f >> 2) & 1
                    d = V(Lac(sub, qb), 4)
                    mf(d, V(ON1, 4), V(Sreg(sub, par) + qb * 16 + k32 * 8, 4), d)
                if j == len(pv) - 1 and bar == "always":
                    for fn in XB.get(f, []): fn()
                    if f in (3, 13, 14) and extra: extra.pop(0)()
        for fn in extra: fn()
    def nx_items():
        return [lambda: k.op("s_add_u32", S(sT), S(sT), 1),
                lambda: k.op("s_add_u32", S(sNx), S(sNx), 32768),
                lambda: (k.op("s_cmp_eq_u32", S(sNx), 163840), k.op("s_cselect_b32", S(sNx), 0, S(sNx)))]
    def rowmax(sub, par, qb, dst):
        s0 = Sreg(sub, par) + 16 * qb
        k.op("v_max3_f32", V(dst), V(s0), V(s0 + 1), V(s0 + 2))
        for e in range(3, 15, 2): k.op("v_max3_f32", V(dst), V(dst), V(s0 + e), V(s0 + e + 1))
        k.op("v_max_f32", V(dst), V(dst), V(s0 + 15))
        for sw in ("v_permlane16_swap_b32", "v_permlane32_swap_b32"):
            k.op("v_mov_b32", V(vT + 1), V(dst))
            k.nop(2)
            k.op(sw, V(dst), V(vT + 1))
            k.op("v_max_f32", V(dst), V(dst), V(vT + 1))
    slow_sites = {}
    def epilogue(sub, site):
        t = Sreg(sub, 0)
        k.nop(8)
        k.op("v_max_f32", V(vT), V(Lac(sub, 0)), V(Lac(sub, 1)))
        k.op("v_add_f32", V(vT + 1), V(Lac(sub, 0)), V(Lac(sub, 1)))
        k.op("v_cmp_nle_f32", "vcc", V(vT + 1), V(21))
        k.op("s_mov_b32", S(sRet), site)
        k.op("s_cbranch_vccnz", f"k2_slow_{sub}")
        lab = f"k2_ret_{sub}_{site}"
        k.label(lab)
        slow_sites.setdefault(sub, []).append((site, lab))
        k.op("v_rcp_f32", V(vT + 3), V(Lac(sub, 0)))
        k.op("v_rcp_f32", V(vT + 4), V(Lac(sub, 1)))
        for qb in range(2):
            if qb: k.op("s_add_u32", S(sT0), S(sCa if sub == 0 else sCb), 131072)
            for ks in range(4):
                b = t + (qb * 4 + ks) * 8
                for half in range(2):
                    for i in range(4):
                        k.op("v_accvgpr_read_b32", V(b + 4 * half + i), A(OA + sub * 64 + ((2 * ks + half) * 2 + qb) * 4 + i))
                for i in range(0, 8, 2):
                    k.op("v_pk_mul_f32", P(b + i), P(b + i), P(vT + 3), mods="op_sel_hi:[1,0]" if qb == 0 else "op_sel:[0,1]")
                for i in range(4): k.op("v_cvt_pk_bf16_f32", V(b + i), V(b + 2 * i), V(b + 2 * i + 1))
                k.op("buffer_store_dwordx4", V(b, 4), V(vL16), S(sWS, 4), S(sT0 if qb else (sCa if sub == 0 else sCb)),
                     mods=f"offen offset:{ks*1024}" + (" sc1" if fuse3 else ""))
    k.op("v_mov_b32", V(21), S(sThr))
    k.op("v_add_u32", V(vT), 32768, V(vL16))
    for f in range(16): k.op("ds_read_b128", A(f * 4, 4), V(vT), mods=f"offset:{f*1024}")
    zi = 0
    for f in range(16):
        kb, ds = f >> 2, f & 3
        k.wait(lgkm=15 - f)
        for sub in range(2):
            for qb in range(2):
                d = V(Sreg(sub, 0) + qb * 16 + kb * 4, 4)
                mf(d, A(f * 4, 4), V(Qreg(sub, qb, ds), 4), "0" if ds == 0 else d)
                for _ in range(2):
                    k.op("v_accvgpr_write_b32", A(OA + zi), 0); zi += 1
    k.wait(vm=0 if fuse3 else 12)
    k.op("s_barrier")
    if fuse3:
        k.op("s_lshl_b32", S(sT0), S(sP), 8)
        k.op("s_lshl_b32", S(sT1), S(sH), 2)
        k.op("s_add_u32", S(sT0), S(sT0), S(sT1))
        k.op("s_add_u32", S(sT0), S(sT0), FLAG2_OFF + 128)
        one_lane_store(k, sW, sWS, [sT0], 1, vT + 4)
    m0K()
    k.op("v_add_u32", V(vA), 65536, V(vL16))
    ldK(0)(); ldK(1)()
    for f in range(DA): rd(f, False)
    lab = k.newlabel("nomask0")
    k.op("s_cmp_lg_u32", S(sNa), 1); k.op("s_cbranch_scc1", lab)
    mask_block(0, 0)
    k.label(lab)
    for sub in range(2):
        for qb in range(2):
            rowmax(sub, 0, qb, vT + 2)
            n0 = Ngm(sub, qb)
            for i in range(4): k.op("v_sub_f32", V(n0 + i), 0, V(vT + 2))
            for e in range(0, 16, 2): k.op("v_pk_add_f32", P(Sreg(sub, 0) + 16 * qb + e), P(Sreg(sub, 0) + 16 * qb + e), P(n0))
    for n in range(16):
        for sub in range(2):
            soft_exp(sub, 0, n)
        for sub in range(2):
            if n % 2 == 0 and n: soft_cvt(sub, 0, n)
    def pf_k3():
        load_srd(k, sWQ, "wo", 86); load_srd(k, sW1, "w2", 96)
        k.op("s_bfe_u32", S(sT0), "s2", "0x20001")
        k.op("s_lshr_b32", S(sT2), "s2", 3)
        k.op("s_lshl_b32", S(sT2), S(sT2), 2)
        k.op("s_add_u32", S(sT2), S(sT2), S(sW))
        k.op("s_lshl_b32", S(sT1), S(sT0), 20)
        k.op("s_lshl_b32", S(sSo), S(sT2), 13)
        k.op("s_add_u32", S(sT1), S(sT1), S(sSo))
        k.op("v_lshlrev_b32", V(vT), 7, V(vL))
        k.op("buffer_load_dword", V(12), V(vT), S(sWQ, 4), S(sT1), mods="offen", dummy=True)
        k.op("s_mul_i32", S(sT1), S(sT0), 384 * 1024)
        k.op("s_mul_i32", S(sT0), S(sT2), 3072)
        k.op("s_add_u32", S(sT1), S(sT1), S(sT0))
        k.op("v_and_b32", V(vT + 2), 31, V(vL))
        k.op("v_lshlrev_b32", V(vT + 2), 7, V(vT + 2))
        k.op("buffer_load_dword", V(12), V(vT + 2), S(sW1, 4), S(sT1), mods="offen", dummy=True)
        pf_code(k, sB1, "k3_kernel", "k3_end-k3_kernel", vT, vL, sSo, 12)
    if pf3 == 3: pf_k3()
    stp.stamp()
    k.op("s_cmp_lt_u32", 1, S(sNa))
    k.op("s_cbranch_scc0", "k2_DL0")
    ool = []
    sl_hooks = []
    def maskif(sub, par):
        lab, lab2 = k.newlabel("nomask"), k.newlabel("domask")
        k.op("s_cmp_eq_u32", S(sT), S(sNa if sub == 0 else sNb)); k.op("s_cbranch_scc1", lab2)
        k.label(lab)
        ool.append((lab2, lab, sub, par))
    for par in range(2):
        k.label(f"k2_DD{par}")
        phaseA(par, [0, 1], [0, 1])
        maskif(0, 1 - par)
        phaseB(par, [0, 1], [0, 1], tailops=nx_items())
        k.op("s_cmp_le_u32", S(sT), S(sNa))
        k.op("s_cbranch_scc0", f"k2_DL{1-par}")
        if par == 1: k.op("s_branch", "k2_DD0")
    for par in range(2):
        k.label(f"k2_DL{par}")
        phaseA(par, [1], [0, 1])
        phaseB(par, [0, 1], [1], tailops=nx_items())
        epilogue(0, par)
        if pf3 == 2: pf_k3()
        k.op("s_branch", f"k2_SS{1-par}")
    for par in range(2):
        k.label(f"k2_SS{par}")
        phaseA(par, [1], [1])
        maskif(1, 1 - par)
        phaseB(par, [1], [1], tailops=nx_items())
        k.op("s_cmp_le_u32", S(sT), S(sNb))
        k.op("s_cbranch_scc0", f"k2_SL{1-par}")
        if par == 1: k.op("s_branch", "k2_SS0")
    for par in range(2):
        k.label(f"k2_SL{par}")
        if pf3 == 1: pf_k3()
        if early3: sl_hooks.append(len(k.ins))
        phaseA(par, [], [1])
        k.nop(2)
        phaseB(par, [1], [], bar="w01")
        if par == 0: k.op("s_branch", "k2_fin")
    k.label("k2_fin")
    stp.stamp()
    if early3:
        e2, eMt, eNt, eS, eRot, eAo, eWc, eAc, eMa = 12, 16, 17, 18, 19, 28, 29, 30, 31
        ev = 7
        def e_setup():
            load_srd(k, e2, "w2", 96)
            k.op("s_bfe_u32", S(eS), "s2", "0x20001")
            k.op("s_and_b32", S(eMt), "s2", 1)
            k.op("s_lshl_b32", S(eMt), S(eMt), 3)
            k.op("s_bfe_u32", S(eNt), "s2", "0x30003")
            k.op("s_add_u32", S(eMt), S(eMt), S(eNt))
            k.op("s_lshr_b32", S(eNt), "s2", 6)
            k.op("s_add_u32", S(eRot), S(eMt), S(eNt))
            k.op("s_and_b32", S(eRot), S(eRot), 3)
            k.op("s_lshl_b32", S(eAo), S(eMt), 3)
            k.op("s_lshl_b32", S(eWc), S(sW), 1)
            k.op("s_add_u32", S(eAo), S(eAo), S(eWc))
            k.op("s_mul_i32", S(eAo), S(eAo), 44032)
            k.op("s_add_u32", S(eAo), S(eAo), HF_OFF)
            k.op("v_mov_b32", V(ev), V(vL16))
            k.op("v_add_u32", V(ev + 1), 44032 - 1024, V(vL16))
            k.op("v_lshlrev_b32", V(ev + 2), 1, V(g))
            k.op("v_xor_b32", V(ev + 2), V(ev + 2), V(l15))
            k.op("v_lshlrev_b32", V(ev + 2), 4, V(ev + 2))
            k.op("v_lshl_add_u32", V(ev + 2), V(g), 10, V(ev + 2))
            k.op("s_lshl_b32", S(eWc), S(eNt), 8)
            k.op("s_lshl_b32", S(eAc), S(sW), 13)
            k.op("s_add_u32", S(eWc), S(eWc), S(eAc))
            k.op("v_add_u32", V(ev + 2), S(eWc), V(ev + 2))
            k.op("s_and_b32", S(eWc), S(sW), 1)
            k.op("s_lshl_b32", S(eWc), S(eWc), 7)
            k.op("v_xor_b32", V(ev + 2), S(eWc), V(ev + 2))
            k.op("v_add_u32", V(ev + 3), 4096 - 1024, V(ev + 2))
            k.op("s_lshl_b32", S(eMa), S(sW), 11)
            k.op("s_sub_u32", S(eWc), 15, S(eMt))
            k.op("s_min_u32", S(eMt), S(eMt), S(eWc))
            k.op("s_lshl_b32", S(eMt), S(eMt), 8)
            k.op("s_add_u32", S(eMt), S(eMt), FLAG2_OFF + 128)
            k.op("v_and_b32", V(ev + 4), 7, V(vL))
            k.op("s_lshl_b32", S(eWc), S(eS), 3)
            k.op("v_add_u32", V(ev + 4), S(eWc), V(ev + 4))
            k.op("v_lshlrev_b32", V(ev + 4), 2, V(ev + 4))
        e_poll = lambda: k.op("buffer_load_dword", V(ev + 5), V(ev + 4), S(sWS, 4), S(eMt), mods="offen sc1")
        def e_issue(tag):
            k.wait(vm=0, lgkm=0)
            spin_until(k, f"k2_sh{tag}", e_poll, lambda: k.op("v_cmp_ne_u32", "vcc", 1, V(ev + 5)), eAc, sleep=8)
            k.op("s_barrier")
            for st in range(3):
                k.op("s_add_u32", S(eNt), S(eRot), st)
                k.op("s_cmp_ge_u32", S(eNt), 3)
                k.op("s_cselect_b32", S(eWc), 3, 0)
                k.op("s_sub_u32", S(eNt), S(eNt), S(eWc))
                k.op("s_mul_i32", S(eWc), S(eS), 6)
                k.op("s_add_u32", S(eNt), S(eNt), S(eWc))
                k.op("s_lshl_b32", S(eWc), S(eNt), 16)
                k.op("s_lshl_b32", S(eNt), S(eNt), 1)
                for u in range(2):
                    k.op("s_add_u32", "m0", S(eMa), st * 32768 + u * 16384 + 8192)
                    k.op("s_add_u32", S(eAc), S(eNt), u)
                    for j in range(2):
                        k.op("buffer_load_dwordx4", V(ev + 2 + j), S(e2, 4), S(eWc), mods=f"offen offset:{j*1024} lds")
                    k.op("s_add_u32", "m0", S(eMa), st * 32768 + u * 16384)
                    k.op("s_add_u32", S(eWc), S(eWc), 32768)
                    k.op("s_min_u32", S(eAc), S(eAc), 42)
                    k.op("s_lshl_b32", S(eAc), S(eAc), 10)
                    k.op("s_add_u32", S(eAc), S(eAc), S(eAo))
                    for j in range(2):
                        k.op("buffer_load_dwordx4", V(ev + j), S(sWS, 4), S(eAc), mods=f"offen offset:{j*1024} sc1 lds")
        for pos in reversed(sl_hooks):
            n0 = len(k.ins)
            e_setup(); e_poll()
            blk = k.ins[n0:]; del k.ins[n0:]
            k.ins[pos:pos] = blk
        k.op("s_cmp_ge_u32", S(sW), 2)
        k.op("s_cbranch_scc1", "k2_fin23")
        epilogue(1, 0)
        e_issue(0)
        k.op("s_branch", "k2_fin2")
        k.label("k2_fin23")
        e_issue(1)
        epilogue(1, 1)
        k.label("k2_fin2")
    else:
        epilogue(1, 0)
    if stamps:
        k.wait(vm=0, lgkm=0)
        stp.stamp()
        stp.flush(sWS, sW, 13)
    if fuse3:
        k.op("s_lshl_b32", S(sT0), S(sP), 8)
        k.op("s_lshl_b32", S(sT1), S(sH), 2)
        k.op("s_add_u32", S(sT0), S(sT0), S(sT1))
        k.op("s_add_u32", S(96), S(sT0), FLAG2_OFF)
        k.wait(lgkm=0)
        k.raw("  s_branch k3_kernel")
    k.op("s_endpgm")
    for (lab2, lab, sub, par) in ool:
        k.label(lab2)
        k.nop(8)
        mask_block(sub, par)
        k.op("s_branch", lab)
    sU, sUo = 60, 61
    for sub, sites in sorted(slow_sites.items()):
        s0 = Sreg(sub, 0)
        m = [Ngm(sub, 0), Ngm(sub, 1)]
        k.label(f"k2_slow_{sub}")
        k.nop(8)
        for i in range(64): k.op("v_accvgpr_write_b32", A(OA + sub * 64 + i), 0)
        for qb in range(2):
            k.op("v_mov_b32", V(m[qb]), f32(-1e30))
            for i in range(4): k.op("v_mov_b32", V(Lac(sub, qb) + i), 0)
        k.op("s_mov_b32", S(sU), 1)
        k.op("s_mov_b32", S(sUo), 0)
        loop = f"k2_slowloop_{sub}"
        k.label(loop)
        for c in range(4):
            k.op("s_add_u32", S(sLd), S(sUo), c * 4096)
            for i in range(4): k.op("buffer_load_dwordx4", A((c * 4 + i) * 4, 4), V(vL16), S(sK, 4), S(sLd), mods=f"offen offset:{i*1024}" + SC)
        k.wait(vm=0)
        for f in range(16):
            kb, ds = f >> 2, f & 3
            for qb in range(2):
                d = V(s0 + qb * 16 + kb * 4, 4)
                mf(d, A(f * 4, 4), V(Qreg(sub, qb, ds), 4), "0" if ds == 0 else d)
        for c in range(4):
            k.op("s_add_u32", S(sLd), S(sUo), c * 4096 + 16384)
            for i in range(4): k.op("buffer_load_dwordx4", A((c * 4 + i) * 4, 4), V(vL16), S(sV, 4), S(sLd), mods=f"offen offset:{i*1024}" + SC)
        lab = k.newlabel("snomask")
        k.op("s_cmp_lg_u32", S(sU), S(sNa if sub == 0 else sNb)); k.op("s_cbranch_scc1", lab)
        mask_block(sub, 0)
        k.label(lab)
        for qb in range(2):
            al = m[qb] + 1
            rowmax(sub, 0, qb, vT + 3)
            k.op("v_max_f32", V(vT + 3), V(vT + 3), V(m[qb]))
            k.op("v_sub_f32", V(al), V(m[qb]), V(vT + 3))
            k.op("v_mov_b32", V(m[qb]), V(vT + 3))
            k.op("v_exp_f32", V(al), V(al))
            for e in range(16): k.op("v_sub_f32", V(s0 + 16 * qb + e), V(s0 + 16 * qb + e), V(m[qb]))
            for i in range(4): k.op("v_mul_f32", V(Lac(sub, qb) + i), V(Lac(sub, qb) + i), V(al))
            for db in range(8):
                for i in range(4):
                    ar = OA + sub * 64 + (db * 2 + qb) * 4 + i
                    k.op("v_accvgpr_read_b32", V(vT + (i & 1)), A(ar))
                    k.op("v_mul_f32", V(vT + (i & 1)), V(vT + (i & 1)), V(al))
                    k.op("v_accvgpr_write_b32", A(ar), V(vT + (i & 1)))
        for n in range(33):
            if n < 32: soft_exp(sub, 0, n)
            else: k.nop(1)
            if n % 2 == 0 and n: soft_cvt(sub, 0, n)
        k.wait(vm=0)
        k.nop(1)
        for f in range(16):
            k32, db = f >> 3, f & 7
            for qb in range(2):
                d = A(OA + sub * 64 + (db * 2 + qb) * 4, 4)
                mf(d, A(f * 4, 4), V(s0 + qb * 16 + k32 * 8, 4), d)
            if f % 4 == 3:
                qb = (f >> 2) & 1
                d = V(Lac(sub, qb), 4)
                mf(d, V(ON1, 4), V(s0 + qb * 16 + k32 * 8, 4), d)
        k.op("s_add_u32", S(sUo), S(sUo), 16384)
        k.op("s_add_u32", S(sU), S(sU), 1)
        k.nop(8)
        k.op("s_cmp_le_u32", S(sU), S(sNa if sub == 0 else sNb))
        k.op("s_cbranch_scc1", loop)
        for (site, lab) in sites[:-1]:
            k.op("s_cmp_eq_u32", S(sRet), site); k.op("s_cbranch_scc1", lab)
        k.op("s_branch", sites[-1][1])
    k.label("k2_end")
    k.op("s_endpgm")
    return k

if __name__ == "__main__":
    k = build_k2()
    for e in k.check_hazards(): print(e)
    for e in k.check_waits(): print(e)
    print(k.maxregs(), len(k.ins))
```

```python
from common import *
LDS = 163840
PART_OFF = 64 << 20
NB_ST, NA_ST = 6, 16
def build_k3(stamps=False, NR=5, q2rate=2, fused=True, pfself=False, psleep=8, dbgout=None, early=False, tagged=False, **_):
    k = Kern("k3_kernel")
    vq, lq = Q(k, "vmcnt", 63), Q(k, "lgkmcnt", 15)
    stp = Stamps(k, stamps, 62, 2, lq, maxn=8)
    sWS, sWO, sX, sO, sB2, sW2, sDb = 8, 12, 16, 20, 24, 84, 4
    sW, sMt, sNt, sT0, sT1, sT2 = 28, 29, 30, 31, 32, 33
    sAoA, sS, sAoB, sMa, sMw = 34, 35, 36, 38, 39
    sRot, sSt, sAc, sWc, sPw, sPr, sTile, sFp = 52, 53, 54, 55, 56, 57, 58, 60
    vL, vL16 = 1, 2
    VA, VW = 4, 8
    AA = 12
    g, l15, r_, cc, g1, t0, t1 = 26, 27, 28, 29, 30, 31, 3
    vOo, vPf, vPo = 32, 15, 16
    XV, BV = 34, 42
    ACC = 52
    AF = 116
    WF = 148
    TA = 180
    k.op("s_load_dwordx2", S(40, 2), S(0, 2), KA["x"])
    k.op("s_load_dwordx2", S(42, 2), S(0, 2), KA["wo"])
    k.op("s_load_dwordx4", S(44, 4), S(0, 2), KA["w2"])
    k.op("s_load_dwordx4", S(48, 4), S(0, 2), KA["out"])
    k.op("s_load_dwordx2", S(88, 2), S(0, 2), KA["ws"])
    k.op("v_and_b32", V(vL), 63, "v0")
    k.op("v_lshrrev_b32", V(t0), 6, "v0")
    k.op("s_and_b32", S(sT0), "s2", 7)
    k.op("v_readfirstlane_b32", S(sW), V(t0))
    k.op("s_lshr_b32", S(sS), S(sT0), 1)
    k.op("s_and_b32", S(sT0), S(sT0), 1)
    k.op("s_lshr_b32", S(sT1), "s2", 3)
    k.op("s_and_b32", S(sT2), S(sT1), 7)
    k.op("s_lshl_b32", S(sMt), S(sT0), 3)
    k.op("s_add_u32", S(sMt), S(sMt), S(sT2))
    k.op("s_lshr_b32", S(sNt), S(sT1), 3)
    k.op("s_add_u32", S(sRot), S(sMt), S(sNt))
    k.op("s_and_b32", S(sRot), S(sRot), 3)
    k.op("s_lshl_b32", S(sTile), S(sMt), 2)
    k.op("s_add_u32", S(sTile), S(sTile), S(sNt))
    k.op("v_lshlrev_b32", V(vL16), 4, V(vL))
    k.op("v_lshrrev_b32", V(g), 4, V(vL))
    k.op("v_and_b32", V(l15), 15, V(vL))
    k.op("v_bfe_u32", V(r_), V(vL), 2, 2)
    k.op("v_and_b32", V(cc), 3, V(vL))
    k.op("v_and_b32", V(g1), 1, V(g))
    k.op("s_lshl_b32", S(sT2), S(sMt), 3)
    k.op("s_lshl_b32", S(sT1), S(sW), 1)
    k.op("s_add_u32", S(sT2), S(sT2), S(sT1))
    k.op("s_lshl_b32", S(sAoA), S(sT2), 17)
    k.op("s_lshl_b32", S(sT1), S(sS), 15)
    k.op("s_add_u32", S(sAoA), S(sAoA), S(sT1))
    k.op("s_add_u32", S(sAoA), S(sAoA), CTX_OFF)
    k.op("s_mul_i32", S(sAoB), S(sT2), 44032)
    k.op("s_add_u32", S(sAoB), S(sAoB), HF_OFF)
    k.op("v_mov_b32", V(VA), V(vL16))
    k.op("v_add_u32", V(VA + 1), 131072 - 1024, V(vL16))
    k.op("v_mov_b32", V(VA + 2), V(vL16))
    k.op("v_add_u32", V(VA + 3), 44032 - 1024, V(vL16))
    k.op("v_lshlrev_b32", V(t0), 1, V(g))
    k.op("v_xor_b32", V(t0), V(t0), V(l15))
    k.op("v_lshlrev_b32", V(t0), 4, V(t0))
    k.op("v_lshl_add_u32", V(t0), V(g), 10, V(t0))
    k.op("s_lshl_b32", S(sT1), S(sNt), 8)
    k.op("s_lshl_b32", S(sT2), S(sW), 13)
    k.op("s_add_u32", S(sT1), S(sT1), S(sT2))
    k.op("v_add_u32", V(VW), S(sT1), V(t0))
    k.op("v_xor_b32", V(VW + 1), 128, V(VW))
    k.op("v_add_u32", V(VW + 1), 4096 - 1024, V(VW + 1))
    k.op("s_and_b32", S(sT1), S(sW), 1)
    k.op("s_lshl_b32", S(sT1), S(sT1), 7)
    k.op("v_xor_b32", V(VW + 2), S(sT1), V(VW))
    k.op("v_add_u32", V(VW + 3), 4096 - 1024, V(VW + 2))
    k.op("s_lshl_b32", S(sMa), S(sW), 11)
    k.op("s_add_u32", S(sMw), S(sMa), 8192)
    k.op("v_lshl_or_b32", V(t1), V(g1), 2, V(r_))
    k.op("s_and_b32", S(sT1), S(sW), 1)
    k.op("s_lshl_b32", S(sT1), S(sT1), 2)
    k.op("v_xor_b32", V(t1), S(sT1), V(t1))
    for ty in range(2):
        k.op("v_lshl_add_u32", V(t0), V(g), 2 + ty, V(r_))
        k.op("v_lshlrev_b32", V(t0), 8, V(t0))
        k.op("v_lshl_add_u32", V(t0), V(cc), 3, V(t0))
        k.op("v_add_u32", V(t0), 8192, V(t0))
        b = TA + 24 * ty
        for nb in range(4):
            k.op("v_xor_b32", V(33), nb, V(t1))
            k.op("v_lshl_add_u32", V(b + 2 * nb), V(33), 5, V(t0))
            k.op("v_add_u32", V(b + 2 * nb + 1), 4096 if ty == 0 else 1024, V(b + 2 * nb))
        for i in range(8):
            k.op("v_add_u32", V(b + 8 + i), 65536, V(b + i))
            k.op("v_add_u32", V(b + 16 + i), 131072, V(b + i))
    k.op("s_lshr_b32", S(sT1), S(sW), 1)
    k.op("s_lshl_b32", S(sT1), S(sT1), 12)
    k.op("v_add_u32", V(AA), S(sT1), V(vL16))
    k.op("v_add_u32", V(AA + 1), 65536, V(AA))
    k.op("v_add_u32", V(AA + 2), 131072, V(AA))
    k.op("s_lshl_b32", S(sT0), S(sMt), 17)
    k.op("s_lshr_b32", S(sT1), S(sW), 1)
    k.op("s_lshl_b32", S(sT1), S(sT1), 16)
    k.op("s_add_u32", S(sT0), S(sT0), S(sT1))
    k.op("s_lshl_b32", S(sT1), S(sS), 14)
    k.op("s_add_u32", S(sT0), S(sT0), S(sT1))
    k.op("s_lshl_b32", S(59), S(sNt), 8)
    k.op("s_and_b32", S(sT2), S(sW), 1)
    k.op("s_lshl_b32", S(sT2), S(sT2), 7)
    k.op("s_add_u32", S(59), S(59), S(sT2))
    k.op("s_add_u32", S(sT0), S(sT0), S(59))
    k.op("v_lshlrev_b32", V(vOo), 10, V(l15))
    k.op("v_lshl_add_u32", V(vOo), V(g), 3, V(vOo))
    k.op("v_add_u32", V(vOo), S(sT0), V(vOo))
    k.op("v_lshlrev_b32", V(33), 3, V(g))
    k.op("s_lshl_b32", S(sPr), S(sTile), 17)
    k.op("s_lshl_b32", S(sT1), S(sW), 13)
    k.op("s_add_u32", S(sPr), S(sPr), S(sT1))
    k.op("s_add_u32", S(sPr), S(sPr), PART_OFF)
    k.op("s_lshl_b32", S(sT1), S(sS), 15)
    k.op("s_add_u32", S(sPw), S(sPr), S(sT1))
    k.op("s_lshl_b32", S(sT1), S(sS), 11)
    k.op("s_add_u32", S(sPr), S(sPr), S(sT1))
    k.op("s_sub_u32", S(sT1), 15, S(sMt))
    k.op("s_min_u32", S(sFp), S(sMt), S(sT1))
    k.op("s_lshl_b32", S(sFp), S(sFp), 8)
    k.op("s_add_u32", S(sFp), S(sFp), FLAG2_OFF)
    k.op("v_and_b32", V(vPo), 7, V(vL))
    k.op("s_lshl_b32", S(sT1), S(sS), 3)
    k.op("v_add_u32", V(vPo), S(sT1), V(vPo))
    k.op("v_lshlrev_b32", V(vPo), 2, V(vPo))
    k.wait(lgkm=0)
    stp.stamp()
    k.op("s_mov_b32", S(sWS), S(88))
    k.op("s_and_b32", S(sWS + 1), S(89), "0xffff")
    k.op("s_mov_b32", S(sWS + 2), hex(80 << 20))
    k.op("s_mov_b32", S(sWS + 3), "0x20000")
    load_srd(k, sWO, "wo", 42); load_srd(k, sW2, "w2", 44)
    load_srd(k, sX, "x", 40); load_srd(k, sO, "out", 48); load_srd(k, sB2, "b2", 46)
    if dbgout is not None:
        k.op("s_mov_b32", S(sDb), S(50)); k.op("s_and_b32", S(sDb + 1), S(51), "0xffff")
        k.op("s_mov_b32", S(sDb + 2), 256); k.op("s_mov_b32", S(sDb + 3), "0x20000")
    NST = NB_ST + NA_ST
    def issue_items(st, direct=True):
        it = []
        sl = (st % NR) * 32768
        ty = 1 if st < NB_ST else 0
        def addr():
            if ty:
                base, j = st // 3 * 3, st % 3
                k.op("s_add_u32", S(sSt), S(sRot), j)
                k.op("s_cmp_ge_u32", S(sSt), 3)
                k.op("s_cselect_b32", S(sWc), 3, 0)
                k.op("s_sub_u32", S(sSt), S(sSt), S(sWc))
                k.op("s_add_u32", S(sSt), S(sSt), base)
                k.op("s_mul_i32", S(sWc), S(sS), 6)
                k.op("s_add_u32", S(sSt), S(sSt), S(sWc))
                k.op("s_lshl_b32", S(sWc), S(sSt), 16)
                k.op("s_lshl_b32", S(sSt), S(sSt), 1)
            else:
                skew_stage(k, sSt, sRot, st - NB_ST, NA_ST, sWc)
                k.op("s_lshl_b32", S(sAc), S(sSt), 11)
                k.op("s_add_u32", S(sAc), S(sAc), S(sAoA))
                k.op("s_lshl_b32", S(sWc), S(sS), 4)
                k.op("s_add_u32", S(sWc), S(sWc), S(sSt))
                k.op("s_lshl_b32", S(sWc), S(sWc), 16)
        it.append(addr)
        for u in range(2):
            it.append(lambda u=u: k.op("s_add_u32", "m0", S(sMw), sl + u * 16384))
            if u: it.append(lambda: k.op("s_add_u32", S(sWc), S(sWc), 32768))
            elif direct: it.append(lambda: k.op("s_nop", 0))
            for j in range(2):
                def w(j=j):
                    k.op("buffer_load_dwordx4", V(VW + 2 * ty + j), S(sW2 if ty else sWO, 4), S(sWc), mods=f"offen offset:{j*1024} lds"); vq.issue(("s", st))
                it.append(w)
            it.append(lambda u=u: k.op("s_add_u32", "m0", S(sMa), sl + u * 16384))
            if ty:
                def ac(u=u):
                    k.op("s_add_u32", S(sAc), S(sSt), u)
                    k.op("s_min_u32", S(sAc), S(sAc), 42)
                    k.op("s_lshl_b32", S(sAc), S(sAc), 10)
                    k.op("s_add_u32", S(sAc), S(sAc), S(sAoB))
                it.append(ac)
            elif u: it.append(lambda: k.op("s_add_u32", S(sAc), S(sAc), 1024))
            elif direct: it.append(lambda: k.op("s_nop", 0))
            for j in range(2):
                def a(j=j):
                    k.op("buffer_load_dwordx4", V(VA + 2 * ty + j), S(sWS, 4), S(sAc), mods=f"offen offset:{j*1024} sc1 lds"); vq.issue(("s", st))
                it.append(a)
        return it
    def poll(off): return lambda: k.op("buffer_load_dword", V(vPf), V(vPo), S(sWS, 4), S(sFp), mods=f"offen offset:{off} sc1")
    chk = lambda: k.op("v_cmp_ne_u32", "vcc", 1, V(vPf))
    if not early: poll(128)()
    k.wait(vm=0)
    k.op("s_barrier")
    one_lane_store(k, sW, sWS, [96], 1, ACC)
    stp.stamp()
    if early:
        for st in range(NR - 2): vq.ever[("s", st)] = 8
    else:
        spin_until(k, "k3_sh", poll(128), chk, sT1, sleep=psleep)
        for st in range(NR - 2):
            for f in issue_items(st): f()
    for u in range(4):
        k.op("buffer_load_dwordx2", V(XV + 2 * u, 2), V(vOo), S(sX, 4), 0, mods=f"offen offset:{32*u}"); vq.issue("xb")
        k.op("buffer_load_dwordx2", V(BV + 2 * u, 2), V(33), S(sB2, 4), S(59), mods=f"offen offset:{32*u}"); vq.issue("xb")
    if tagged:
        for i in range(4): k.op("v_mov_b32", V(228 + i), -1)
        k.op("s_mov_b32", S(sT0), S(sPr))
        for src in range(4):
            for p in range(2):
                k.op("buffer_store_dwordx4", V(228, 4), V(vL16), S(sWS, 4), S(sT0), mods=f"offen offset:{p*1024} sc1"); vq.issue("rs")
            k.op("s_add_u32", S(sT0), S(sT0), 32768)
        k.op("s_lshl_b32", S(61), S(sTile), 8)
        k.op("s_add_u32", S(61), S(61), FLAG_OFF)
        k.op("s_lshl_b32", S(sT2), S(sS), 2)
        k.op("s_add_u32", S(37), S(61), S(sT2))
        k.op("v_and_b32", V(17), 3, V(vL))
        k.op("v_lshlrev_b32", V(17), 2, V(17))
    p3 = lambda: k.op("buffer_load_dword", V(18), V(17), S(sWS, 4), S(61), mods="offen sc1")
    steps = [(st, u) for st in range(NST) for u in range(2)]
    q, q2 = FillQ(k), FillQ(k)
    def rd_items(i):
        st, u = steps[i]
        ty = 1 if st < NB_ST else 0
        off = (st % NR) * 32768 + u * 16384
        hi = off // 65536
        off -= 65536 * hi
        it = []
        if u == 0:
            def sw():
                vq.need(("s", st), cnt=[8])
                if tagged and st == 4: vq.need("rs")
                k.op("s_barrier")
                q2.flush()
                if tagged and st == 4: one_lane_store(k, sW, sWS, [37], 1, 232)
                if tagged and st == NST - 2:
                    p3(); vq.issue("p3")
                nx = st + NR - 2
                if nx == NB_ST - 1:
                    poll(0)(); vq.issue("pp")
                if nx == NB_ST:
                    vq.need("pp")
                    spin_until(k, "k3_sc", poll(0), chk, sT1, sleep=psleep)
                    stp.stamp()
                if nx < NST:
                    for f in issue_items(nx, direct=False): q2.add(f)
            it.append(sw)
        for rb in range(4):
            def fa(rb=rb):
                k.op("ds_read_b128", V(AF + (i % 2) * 16 + rb * 4, 4), V(AA + hi), mods=f"offset:{off + rb*1024}")
                lq.issue(("a", i))
            it.append(fa)
        for nb in range(4):
            for j in range(2):
                def fw(nb=nb, j=j):
                    k.op("ds_read_b64_tr_b16", V(WF + (i % 2) * 16 + nb * 4 + 2 * j, 2), V(TA + 24 * ty + 8 * hi + 2 * nb + j), mods=f"offset:{off}")
                    lq.issue(("r", i, nb))
                it.append(fw)
        return it
    for f in rd_items(0): f()
    stp.stamp()
    for i in range(len(steps)):
        if i + 1 < len(steps):
            for f in rd_items(i + 1): q.add(f)
        n = 0
        for nb in range(4):
            if nb % 2 == 0: lq.need(("r", i, nb), ("r", i, nb + 1), ("a", i), cnt=[2, 2, 4])
            for rb in range(4):
                d = V(ACC + 4 * (rb * 4 + nb), 4)
                k.op("v_mfma_f32_16x16x32_bf16", d, V(WF + (i % 2) * 16 + nb * 4, 4), V(AF + (i % 2) * 16 + rb * 4, 4), "0" if i == 0 else d)
                q.emit(1)
                if n % q2rate == q2rate - 1 or len(q) == 0: q2.emit(1)
                n += 1
        q.flush()
    q2.flush()
    stp.stamp()
    OWN = WF
    if tagged:
        vq.need("p3")
        spin_until(k, "k3_si", p3, lambda: k.op("v_cmp_ne_u32", "vcc", 1, V(18)), sT1, sleep=2)
    k.nop(8)
    for rb in range(4):
        l1, l2 = k.newlabel("own"), k.newlabel("nxt")
        a0 = ACC + 16 * rb
        k.op("s_cmp_eq_u32", S(sS), rb)
        k.op("s_cbranch_scc1", l1)
        for i in range(8): k.op("v_cvt_pk_bf16_f32", V(a0 + i), V(a0 + 2 * i), V(a0 + 2 * i + 1))
        if rb >= 2: k.op("s_add_u32", S(sT0), S(sPw), 4096)
        for p in range(2):
            k.op("buffer_store_dwordx4", V(a0 + 4 * p, 4), V(vL16), S(sWS, 4), S(sPw if rb < 2 else sT0), mods=f"offen offset:{(rb&1)*2048 + p*1024} sc1")
        k.op("s_branch", l2)
        k.label(l1)
        for i in range(16): k.op("v_mov_b32", V(OWN + i), V(a0 + i))
        k.label(l2)
    def unpack(dst, src):
        k.op("v_lshlrev_b32", V(dst), 16, V(src))
        k.op("v_and_b32", V(dst + 1), "0xffff0000", V(src))
    for i in range(8):
        unpack(180 + 2 * i, XV + i); unpack(196 + 2 * i, BV + i)
    for i in range(0, 16, 2):
        k.op("v_pk_add_f32", V(OWN + i, 2), V(OWN + i, 2), V(180 + i, 2))
        k.op("v_pk_add_f32", V(OWN + i, 2), V(OWN + i, 2), V(196 + i, 2))
    R = AF
    if tagged:
        stp.stamp()
        for i in range(32): k.op("v_mov_b32", V(R + i), 0)
        def lds_():
            k.op("s_mov_b32", S(sT0), S(sPr))
            for src in range(4):
                l1 = k.newlabel("skp")
                k.op("s_cmp_eq_u32", S(sS), src)
                k.op("s_cbranch_scc1", l1)
                for p in range(2):
                    k.op("buffer_load_dwordx4", V(R + src * 8 + 4 * p, 4), V(vL16), S(sWS, 4), S(sT0), mods=f"offen offset:{p*1024} sc1")
                k.label(l1)
                k.op("s_add_u32", S(sT0), S(sT0), 32768)
        def chk3():
            k.op("v_max3_u32", V(vPf), V(R), V(R + 1), V(R + 2))
            for i in range(3, 31, 2): k.op("v_max3_u32", V(vPf), V(vPf), V(R + i), V(R + i + 1))
            k.op("v_max_u32", V(vPf), V(vPf), V(R + 31))
            k.op("v_cmp_eq_u32", "vcc", -1, V(vPf))
        lds_(); k.wait(vm=0)
        spin_until(k, "k3_sx", lds_, chk3, sT1, sleep=1)
        stp.stamp()
    else:
        k.op("s_lshl_b32", S(sT0), S(sTile), 8)
        k.op("s_add_u32", S(sT0), S(sT0), FLAG_OFF)
        k.op("s_lshl_b32", S(sT2), S(sS), 2)
        k.op("s_add_u32", S(sT2), S(sT2), S(sT0))
        k.op("v_and_b32", V(vPo), 3, V(vL))
        k.op("v_lshlrev_b32", V(vPo), 2, V(vPo))
        R = AF
        for i in range(32): k.op("v_mov_b32", V(R + i), 0)
        k.wait(vm=0)
        k.op("s_barrier")
        one_lane_store(k, sW, sWS, [sT2], 1, ACC)
        stp.stamp()
        p3 = lambda: k.op("buffer_load_dword", V(vPf), V(vPo), S(sWS, 4), S(sT0), mods="offen sc1")
        p3(); k.wait(vm=0)
        spin_until(k, "k3_sx", p3, chk, sT1, sleep=1)
        stp.stamp()
        for src in range(4):
            l1 = k.newlabel("skp")
            k.op("s_cmp_eq_u32", S(sS), src)
            k.op("s_cbranch_scc1", l1)
            for p in range(2):
                k.op("buffer_load_dwordx4", V(R + src * 8 + 4 * p, 4), V(vL16), S(sWS, 4), S(sPr), mods=f"offen offset:{p*1024} sc1")
            k.label(l1)
            k.op("s_add_u32", S(sPr), S(sPr), 32768)
        k.wait(vm=0)
    for src in range(4):
        for i in range(8):
            unpack(180 + 2 * (i & 3), R + src * 8 + i)
            k.op("v_pk_add_f32", V(OWN + 2 * i, 2), V(OWN + 2 * i, 2), V(180 + 2 * (i & 3), 2))
    for nb in range(4):
        k.op("v_cvt_pk_bf16_f32", V(OWN + 4 * nb), V(OWN + 4 * nb), V(OWN + 4 * nb + 1))
        k.op("v_cvt_pk_bf16_f32", V(OWN + 4 * nb + 1), V(OWN + 4 * nb + 2), V(OWN + 4 * nb + 3))
        k.op("buffer_store_dwordx2", V(OWN + 4 * nb, 2), V(vOo), S(sO, 4), 0, mods=f"offen offset:{32*nb}")
    if stamps:
        k.wait(vm=0)
        stp.stamp()
        stp.flush(sWS, sW, 3)
    k.label("k3_end")
    k.op("s_endpgm")
    return k

if __name__ == "__main__":
    k = build_k3()
    for e in k.check_hazards(): print(e)
    for e in k.check_waits(): print(e)
    print(k.maxregs(), len(k.ins))
```

```python
from common import *
LDS = 163840
PART_OFF = 64 << 20
NB_ST, NA_ST = 6, 16
def build_k3(stamps=False, NR=5, q2rate=2, fused=True, pfself=False, psleep=8, dbgout=None, early=False, tagged=False, wide=True, omods='', **_):
    k = Kern("k3_kernel")
    vq, lq = Q(k, "vmcnt", 63), Q(k, "lgkmcnt", 15)
    stp = Stamps(k, stamps, 62, 2, lq, maxn=8)
    sWS, sWO, sX, sO, sB2, sW2, sDb = 8, 12, 16, 20, 24, 84, 4
    sW, sMt, sNt, sT0, sT1, sT2 = 28, 29, 30, 31, 32, 33
    sAoA, sS, sAoB, sMa, sMw = 34, 35, 36, 38, 39
    sRot, sSt, sAc, sWc, sPw, sPr, sTile, sFp = 52, 53, 54, 55, 56, 57, 58, 60
    vL, vL16 = 1, 2
    VA, VW = 4, 8
    AA = 12
    g, l15, r_, cc, g1, t0, t1 = 26, 27, 28, 29, 30, 31, 3
    vOo, vPf, vPo = 32, 15, 16
    XV, BV = 34, 42
    ACC = 52
    AF = 116
    WF = 148
    TA = 180
    k.op("s_load_dwordx2", S(40, 2), S(0, 2), KA["x"])
    k.op("s_load_dwordx2", S(42, 2), S(0, 2), KA["wo"])
    k.op("s_load_dwordx4", S(44, 4), S(0, 2), KA["w2"])
    k.op("s_load_dwordx4", S(48, 4), S(0, 2), KA["out"])
    k.op("s_load_dwordx2", S(88, 2), S(0, 2), KA["ws"])
    k.op("v_and_b32", V(vL), 63, "v0")
    k.op("v_lshrrev_b32", V(t0), 6, "v0")
    k.op("s_and_b32", S(sT0), "s2", 7)
    k.op("v_readfirstlane_b32", S(sW), V(t0))
    k.op("s_lshr_b32", S(sS), S(sT0), 1)
    k.op("s_and_b32", S(sT0), S(sT0), 1)
    k.op("s_lshr_b32", S(sT1), "s2", 3)
    k.op("s_and_b32", S(sT2), S(sT1), 7)
    k.op("s_lshl_b32", S(sMt), S(sT0), 3)
    k.op("s_add_u32", S(sMt), S(sMt), S(sT2))
    k.op("s_lshr_b32", S(sNt), S(sT1), 3)
    k.op("s_add_u32", S(sRot), S(sMt), S(sNt))
    k.op("s_and_b32", S(sRot), S(sRot), 3)
    k.op("s_lshl_b32", S(sTile), S(sMt), 2)
    k.op("s_add_u32", S(sTile), S(sTile), S(sNt))
    k.op("v_lshlrev_b32", V(vL16), 4, V(vL))
    k.op("v_lshrrev_b32", V(g), 4, V(vL))
    k.op("v_and_b32", V(l15), 15, V(vL))
    k.op("v_bfe_u32", V(r_), V(vL), 2, 2)
    k.op("v_and_b32", V(cc), 3, V(vL))
    k.op("v_and_b32", V(g1), 1, V(g))
    k.op("s_lshl_b32", S(sT2), S(sMt), 3)
    k.op("s_lshl_b32", S(sT1), S(sW), 1)
    k.op("s_add_u32", S(sT2), S(sT2), S(sT1))
    k.op("s_lshl_b32", S(sAoA), S(sT2), 17)
    k.op("s_lshl_b32", S(sT1), S(sS), 15)
    k.op("s_add_u32", S(sAoA), S(sAoA), S(sT1))
    k.op("s_add_u32", S(sAoA), S(sAoA), CTX_OFF)
    k.op("s_mul_i32", S(sAoB), S(sT2), 44032)
    k.op("s_add_u32", S(sAoB), S(sAoB), HF_OFF)
    k.op("v_mov_b32", V(VA), V(vL16))
    k.op("v_add_u32", V(VA + 1), 131072 - 1024, V(vL16))
    k.op("v_mov_b32", V(VA + 2), V(vL16))
    k.op("v_add_u32", V(VA + 3), 44032 - 1024, V(vL16))
    k.op("v_lshlrev_b32", V(t0), 1, V(g))
    k.op("v_xor_b32", V(t0), V(t0), V(l15))
    k.op("v_lshlrev_b32", V(t0), 4, V(t0))
    k.op("v_lshl_add_u32", V(t0), V(g), 10, V(t0))
    k.op("s_lshl_b32", S(sT1), S(sNt), 8)
    k.op("s_lshl_b32", S(sT2), S(sW), 13)
    k.op("s_add_u32", S(sT1), S(sT1), S(sT2))
    k.op("v_add_u32", V(VW), S(sT1), V(t0))
    k.op("v_xor_b32", V(VW + 1), 128, V(VW))
    k.op("v_add_u32", V(VW + 1), 4096 - 1024, V(VW + 1))
    k.op("s_and_b32", S(sT1), S(sW), 1)
    k.op("s_lshl_b32", S(sT1), S(sT1), 7)
    k.op("v_xor_b32", V(VW + 2), S(sT1), V(VW))
    k.op("v_add_u32", V(VW + 3), 4096 - 1024, V(VW + 2))
    k.op("s_lshl_b32", S(sMa), S(sW), 11)
    k.op("s_add_u32", S(sMw), S(sMa), 8192)
    k.op("v_lshl_or_b32", V(t1), V(g1), 2, V(r_))
    k.op("s_and_b32", S(sT1), S(sW), 1)
    k.op("s_lshl_b32", S(sT1), S(sT1), 2)
    k.op("v_xor_b32", V(t1), S(sT1), V(t1))
    for ty in range(2):
        k.op("v_lshl_add_u32", V(t0), V(g), 2 + ty, V(r_))
        k.op("v_lshlrev_b32", V(t0), 8, V(t0))
        k.op("v_lshl_add_u32", V(t0), V(cc), 3, V(t0))
        k.op("v_add_u32", V(t0), 8192, V(t0))
        b = TA + 24 * ty
        for nb in range(4):
            k.op("v_xor_b32", V(33), nb, V(t1))
            k.op("v_lshl_add_u32", V(b + 2 * nb), V(33), 5, V(t0))
            k.op("v_add_u32", V(b + 2 * nb + 1), 4096 if ty == 0 else 1024, V(b + 2 * nb))
        for i in range(8):
            k.op("v_add_u32", V(b + 8 + i), 65536, V(b + i))
            k.op("v_add_u32", V(b + 16 + i), 131072, V(b + i))
    k.op("s_lshr_b32", S(sT1), S(sW), 1)
    k.op("s_lshl_b32", S(sT1), S(sT1), 12)
    k.op("v_add_u32", V(AA), S(sT1), V(vL16))
    k.op("v_add_u32", V(AA + 1), 65536, V(AA))
    k.op("v_add_u32", V(AA + 2), 131072, V(AA))
    k.op("s_lshl_b32", S(sT0), S(sMt), 17)
    k.op("s_lshr_b32", S(sT1), S(sW), 1)
    k.op("s_lshl_b32", S(sT1), S(sT1), 16)
    k.op("s_add_u32", S(sT0), S(sT0), S(sT1))
    k.op("s_lshl_b32", S(sT1), S(sS), 14)
    k.op("s_add_u32", S(sT0), S(sT0), S(sT1))
    k.op("s_lshl_b32", S(59), S(sNt), 8)
    k.op("s_and_b32", S(sT2), S(sW), 1)
    k.op("s_lshl_b32", S(sT2), S(sT2), 7)
    k.op("s_add_u32", S(59), S(59), S(sT2))
    k.op("s_add_u32", S(sT0), S(sT0), S(59))
    k.op("v_lshlrev_b32", V(vOo), 10, V(l15))
    k.op("v_lshl_add_u32", V(vOo), V(g), 3, V(vOo))
    k.op("v_add_u32", V(vOo), S(sT0), V(vOo))
    k.op("v_lshlrev_b32", V(33), 3, V(g))
    k.op("s_lshl_b32", S(sPr), S(sTile), 17)
    k.op("s_lshl_b32", S(sT1), S(sW), 13)
    k.op("s_add_u32", S(sPr), S(sPr), S(sT1))
    k.op("s_add_u32", S(sPr), S(sPr), PART_OFF)
    k.op("s_lshl_b32", S(sT1), S(sS), 15)
    k.op("s_add_u32", S(sPw), S(sPr), S(sT1))
    k.op("s_lshl_b32", S(sT1), S(sS), 11)
    k.op("s_add_u32", S(sPr), S(sPr), S(sT1))
    k.op("s_sub_u32", S(sT1), 15, S(sMt))
    k.op("s_min_u32", S(sFp), S(sMt), S(sT1))
    k.op("s_lshl_b32", S(sFp), S(sFp), 8)
    k.op("s_add_u32", S(sFp), S(sFp), FLAG2_OFF)
    k.op("v_and_b32", V(vPo), 7, V(vL))
    k.op("s_lshl_b32", S(sT1), S(sS), 3)
    k.op("v_add_u32", V(vPo), S(sT1), V(vPo))
    k.op("v_lshlrev_b32", V(vPo), 2, V(vPo))
    k.wait(lgkm=0)
    stp.stamp()
    k.op("s_mov_b32", S(sWS), S(88))
    k.op("s_and_b32", S(sWS + 1), S(89), "0xffff")
    k.op("s_mov_b32", S(sWS + 2), hex(80 << 20))
    k.op("s_mov_b32", S(sWS + 3), "0x20000")
    load_srd(k, sWO, "wo", 42); load_srd(k, sW2, "w2", 44)
    load_srd(k, sX, "x", 40); load_srd(k, sO, "out", 48); load_srd(k, sB2, "b2", 46)
    if dbgout is not None:
        k.op("s_mov_b32", S(sDb), S(50)); k.op("s_and_b32", S(sDb + 1), S(51), "0xffff")
        k.op("s_mov_b32", S(sDb + 2), 256); k.op("s_mov_b32", S(sDb + 3), "0x20000")
    NST = NB_ST + NA_ST
    def issue_items(st, direct=True):
        it = []
        sl = (st % NR) * 32768
        ty = 1 if st < NB_ST else 0
        def addr():
            if ty:
                base, j = st // 3 * 3, st % 3
                k.op("s_add_u32", S(sSt), S(sRot), j)
                k.op("s_cmp_ge_u32", S(sSt), 3)
                k.op("s_cselect_b32", S(sWc), 3, 0)
                k.op("s_sub_u32", S(sSt), S(sSt), S(sWc))
                k.op("s_add_u32", S(sSt), S(sSt), base)
                k.op("s_mul_i32", S(sWc), S(sS), 6)
                k.op("s_add_u32", S(sSt), S(sSt), S(sWc))
                k.op("s_lshl_b32", S(sWc), S(sSt), 16)
                k.op("s_lshl_b32", S(sSt), S(sSt), 1)
            else:
                skew_stage(k, sSt, sRot, st - NB_ST, NA_ST, sWc)
                k.op("s_lshl_b32", S(sAc), S(sSt), 11)
                k.op("s_add_u32", S(sAc), S(sAc), S(sAoA))
                k.op("s_lshl_b32", S(sWc), S(sS), 4)
                k.op("s_add_u32", S(sWc), S(sWc), S(sSt))
                k.op("s_lshl_b32", S(sWc), S(sWc), 16)
        it.append(addr)
        for u in range(2):
            it.append(lambda u=u: k.op("s_add_u32", "m0", S(sMw), sl + u * 16384))
            if u: it.append(lambda: k.op("s_add_u32", S(sWc), S(sWc), 32768))
            elif direct: it.append(lambda: k.op("s_nop", 0))
            for j in range(2):
                def w(j=j):
                    k.op("buffer_load_dwordx4", V(VW + 2 * ty + j), S(sW2 if ty else sWO, 4), S(sWc), mods=f"offen offset:{j*1024} lds"); vq.issue(("s", st))
                it.append(w)
            it.append(lambda u=u: k.op("s_add_u32", "m0", S(sMa), sl + u * 16384))
            if ty:
                def ac(u=u):
                    k.op("s_add_u32", S(sAc), S(sSt), u)
                    k.op("s_min_u32", S(sAc), S(sAc), 42)
                    k.op("s_lshl_b32", S(sAc), S(sAc), 10)
                    k.op("s_add_u32", S(sAc), S(sAc), S(sAoB))
                it.append(ac)
            elif u: it.append(lambda: k.op("s_add_u32", S(sAc), S(sAc), 1024))
            elif direct: it.append(lambda: k.op("s_nop", 0))
            for j in range(2):
                def a(j=j):
                    k.op("buffer_load_dwordx4", V(VA + 2 * ty + j), S(sWS, 4), S(sAc), mods=f"offen offset:{j*1024} sc1 lds"); vq.issue(("s", st))
                it.append(a)
        return it
    def poll(off): return lambda: k.op("buffer_load_dword", V(vPf), V(vPo), S(sWS, 4), S(sFp), mods=f"offen offset:{off} sc1")
    chk = lambda: k.op("v_cmp_ne_u32", "vcc", 1, V(vPf))
    if not early: poll(128)()
    k.wait(vm=24 if early else 0)
    k.op("s_barrier")
    one_lane_store(k, sW, sWS, [96], 1, ACC)
    stp.stamp()
    if early:
        for st in range(NR - 2):
            for _ in range(8): vq.issue(("s", st))
    else:
        spin_until(k, "k3_sh", poll(128), chk, sT1, sleep=psleep)
        for st in range(NR - 2):
            for f in issue_items(st): f()
    for u in range(4):
        k.op("buffer_load_dwordx2", V(XV + 2 * u, 2), V(vOo), S(sX, 4), 0, mods=f"offen offset:{32*u}"); vq.issue("xb")
        k.op("buffer_load_dwordx2", V(BV + 2 * u, 2), V(33), S(sB2, 4), S(59), mods=f"offen offset:{32*u}"); vq.issue("xb")
    if tagged:
        for i in range(4): k.op("v_mov_b32", V(228 + i), -1)
        k.op("s_mov_b32", S(sT0), S(sPr))
        for src in range(4):
            for p in range(2):
                k.op("buffer_store_dwordx4", V(228, 4), V(vL16), S(sWS, 4), S(sT0), mods=f"offen offset:{p*1024} sc1"); vq.issue("rs")
            k.op("s_add_u32", S(sT0), S(sT0), 32768)
        k.op("s_lshl_b32", S(61), S(sTile), 8)
        k.op("s_add_u32", S(61), S(61), FLAG_OFF)
        k.op("s_lshl_b32", S(sT2), S(sS), 2)
        k.op("s_add_u32", S(37), S(61), S(sT2))
        k.op("v_and_b32", V(17), 3, V(vL))
        k.op("v_lshlrev_b32", V(17), 2, V(17))
    p3 = lambda: k.op("buffer_load_dword", V(18), V(17), S(sWS, 4), S(61), mods="offen sc1")
    steps = [(st, u) for st in range(NST) for u in range(2)]
    q, q2 = FillQ(k), FillQ(k)
    def rd_items(i):
        st, u = steps[i]
        ty = 1 if st < NB_ST else 0
        off = (st % NR) * 32768 + u * 16384
        hi = off // 65536
        off -= 65536 * hi
        it = []
        if u == 0:
            def sw():
                vq.need(("s", st), cnt=[8])
                if tagged and st == 4: vq.need("rs")
                k.op("s_barrier")
                q2.flush()
                if tagged and st == 4: one_lane_store(k, sW, sWS, [37], 1, 232)
                if tagged and st == NST - 2:
                    p3(); vq.issue("p3")
                nx = st + NR - 2
                if nx == NB_ST - 1:
                    poll(0)(); vq.issue("pp")
                if nx == NB_ST:
                    vq.need("pp")
                    spin_until(k, "k3_sc", poll(0), chk, sT1, sleep=psleep)
                    stp.stamp()
                if nx < NST:
                    for f in issue_items(nx, direct=False): q2.add(f)
            it.append(sw)
        for rb in range(4):
            def fa(rb=rb):
                k.op("ds_read_b128", V(AF + (i % 2) * 16 + rb * 4, 4), V(AA + hi), mods=f"offset:{off + rb*1024}")
                lq.issue(("a", i))
            it.append(fa)
        for nb in range(4):
            for j in range(2):
                def fw(nb=nb, j=j):
                    k.op("ds_read_b64_tr_b16", V(WF + (i % 2) * 16 + nb * 4 + 2 * j, 2), V(TA + 24 * ty + 8 * hi + 2 * nb + j), mods=f"offset:{off}")
                    lq.issue(("r", i, nb))
                it.append(fw)
        return it
    for f in rd_items(0): f()
    stp.stamp()
    for i in range(len(steps)):
        if i + 1 < len(steps):
            for f in rd_items(i + 1): q.add(f)
        n = 0
        for nb in range(4):
            if nb % 2 == 0: lq.need(("r", i, nb), ("r", i, nb + 1), ("a", i), cnt=[2, 2, 4])
            for rb in range(4):
                d = V(ACC + 4 * (rb * 4 + nb), 4)
                k.op("v_mfma_f32_16x16x32_bf16", d, V(WF + (i % 2) * 16 + nb * 4, 4), V(AF + (i % 2) * 16 + rb * 4, 4), "0" if i == 0 else d)
                q.emit(1)
                if n % q2rate == q2rate - 1 or len(q) == 0: q2.emit(1)
                n += 1
        q.flush()
    q2.flush()
    stp.stamp()
    OWN = WF
    if tagged:
        vq.need("p3")
        spin_until(k, "k3_si", p3, lambda: k.op("v_cmp_ne_u32", "vcc", 1, V(18)), sT1, sleep=2)
    k.nop(8)
    for rb in range(4):
        l1, l2 = k.newlabel("own"), k.newlabel("nxt")
        a0 = ACC + 16 * rb
        k.op("s_cmp_eq_u32", S(sS), rb)
        k.op("s_cbranch_scc1", l1)
        for i in range(8): k.op("v_cvt_pk_bf16_f32", V(a0 + i), V(a0 + 2 * i), V(a0 + 2 * i + 1))
        if rb >= 2: k.op("s_add_u32", S(sT0), S(sPw), 4096)
        for p in range(2):
            k.op("buffer_store_dwordx4", V(a0 + 4 * p, 4), V(vL16), S(sWS, 4), S(sPw if rb < 2 else sT0), mods=f"offen offset:{(rb&1)*2048 + p*1024} sc1")
        k.op("s_branch", l2)
        k.label(l1)
        for i in range(16): k.op("v_mov_b32", V(OWN + i), V(a0 + i))
        k.label(l2)
    def unpack(dst, src):
        k.op("v_lshlrev_b32", V(dst), 16, V(src))
        k.op("v_and_b32", V(dst + 1), "0xffff0000", V(src))
    for i in range(8):
        unpack(180 + 2 * i, XV + i); unpack(196 + 2 * i, BV + i)
    for i in range(0, 16, 2):
        k.op("v_pk_add_f32", V(OWN + i, 2), V(OWN + i, 2), V(180 + i, 2))
        k.op("v_pk_add_f32", V(OWN + i, 2), V(OWN + i, 2), V(196 + i, 2))
    R = AF
    if tagged:
        stp.stamp()
        for i in range(32): k.op("v_mov_b32", V(R + i), 0)
        def lds_():
            k.op("s_mov_b32", S(sT0), S(sPr))
            for src in range(4):
                l1 = k.newlabel("skp")
                k.op("s_cmp_eq_u32", S(sS), src)
                k.op("s_cbranch_scc1", l1)
                for p in range(2):
                    k.op("buffer_load_dwordx4", V(R + src * 8 + 4 * p, 4), V(vL16), S(sWS, 4), S(sT0), mods=f"offen offset:{p*1024} sc1")
                k.label(l1)
                k.op("s_add_u32", S(sT0), S(sT0), 32768)
        def chk3():
            k.op("v_max3_u32", V(vPf), V(R), V(R + 1), V(R + 2))
            for i in range(3, 31, 2): k.op("v_max3_u32", V(vPf), V(vPf), V(R + i), V(R + i + 1))
            k.op("v_max_u32", V(vPf), V(vPf), V(R + 31))
            k.op("v_cmp_eq_u32", "vcc", -1, V(vPf))
        lds_(); k.wait(vm=0)
        spin_until(k, "k3_sx", lds_, chk3, sT1, sleep=1)
        stp.stamp()
    else:
        k.op("s_lshl_b32", S(sT0), S(sTile), 8)
        k.op("s_add_u32", S(sT0), S(sT0), FLAG_OFF)
        k.op("s_lshl_b32", S(sT2), S(sS), 2)
        k.op("s_add_u32", S(sT2), S(sT2), S(sT0))
        k.op("v_and_b32", V(vPo), 3, V(vL))
        k.op("v_lshlrev_b32", V(vPo), 2, V(vPo))
        R = AF
        for i in range(32): k.op("v_mov_b32", V(R + i), 0)
        k.wait(vm=0)
        k.op("s_barrier")
        one_lane_store(k, sW, sWS, [sT2], 1, ACC)
        stp.stamp()
        p3 = lambda: k.op("buffer_load_dword", V(vPf), V(vPo), S(sWS, 4), S(sT0), mods="offen sc1")
        p3(); k.wait(vm=0)
        spin_until(k, "k3_sx", p3, chk, sT1, sleep=1)
        stp.stamp()
        for src in range(4):
            l1 = k.newlabel("skp")
            k.op("s_cmp_eq_u32", S(sS), src)
            k.op("s_cbranch_scc1", l1)
            for p in range(2):
                k.op("buffer_load_dwordx4", V(R + src * 8 + 4 * p, 4), V(vL16), S(sWS, 4), S(sPr), mods=f"offen offset:{p*1024} sc1")
            k.label(l1)
            k.op("s_add_u32", S(sPr), S(sPr), 32768)
        k.wait(vm=0)
    for src in range(4):
        for i in range(8):
            unpack(180 + 2 * (i & 3), R + src * 8 + i)
            k.op("v_pk_add_f32", V(OWN + 2 * i, 2), V(OWN + 2 * i, 2), V(180 + 2 * (i & 3), 2))
    if wide:
        for pr in range(2):
            b0 = OWN + 8 * pr
            k.op("v_cvt_pk_bf16_f32", V(b0), V(b0), V(b0 + 1))
            k.op("v_cvt_pk_bf16_f32", V(b0 + 1), V(b0 + 2), V(b0 + 3))
            k.op("v_cvt_pk_bf16_f32", V(b0 + 2), V(b0 + 4), V(b0 + 5))
            k.op("v_cvt_pk_bf16_f32", V(b0 + 3), V(b0 + 6), V(b0 + 7))
        k.op("v_mul_u32_u24", V(vPf), 24, V(g1))
        k.op("v_add_u32", V(vOo), V(vOo), V(vPf))
        for pr in range(2):
            b0 = OWN + 8 * pr
            k.op("v_permlane16_swap_b32", V(b0), V(b0 + 2))
            k.op("v_permlane16_swap_b32", V(b0 + 1), V(b0 + 3))
            k.op("buffer_store_dwordx4", V(b0, 4), V(vOo), S(sO, 4), 0, mods=f"offen offset:{64*pr}{omods}")
    else:
        for nb in range(4):
            k.op("v_cvt_pk_bf16_f32", V(OWN + 4 * nb), V(OWN + 4 * nb), V(OWN + 4 * nb + 1))
            k.op("v_cvt_pk_bf16_f32", V(OWN + 4 * nb + 1), V(OWN + 4 * nb + 2), V(OWN + 4 * nb + 3))
            k.op("buffer_store_dwordx2", V(OWN + 4 * nb, 2), V(vOo), S(sO, 4), 0, mods=f"offen offset:{32*nb}{omods}")
    if stamps:
        k.wait(vm=0)
        stp.stamp()
        stp.flush(sWS, sW, 3)
    k.label("k3_end")
    k.op("s_endpgm")
    return k

if __name__ == "__main__":
    k = build_k3()
    for e in k.check_hazards(): print(e)
    for e in k.check_waits(): print(e)
    print(k.maxregs(), len(k.ins))
```

```python
import sys, os
from common import *
import k1, k2, k3
NAME = "parallel_sum__compressed_kv_cla__mixer_channel_mlp__prompt_kernel"
HEADER = open("parallel_sum__compressed_kv_cla__mixer_channel_mlp__prompt.s.ref").read().split("; Override launch")[0]
def build(path, k1a={}, k2a={}, k3a={}):
    a = k1.build_k1(**k1a)
    b = k2.build_k2(**dict(dict(fuse3=True, pfself=False, fused1=True, early1=True, pf3=0), **k2a))
    c = k3.build_k3(**dict(dict(psleep=8), **k3a))
    bad = False
    for k in (a, b, c):
        errs = k.check_hazards() + k.check_waits()
        for e in errs: print(k.name, e); bad = True
    assert not bad
    out = [HEADER.rstrip(),
           "; One persistent launch, 256 workgroups (one per CU), three phases linked by flags in d_ws / d_debug:",
           ";   phase 1: layernorm rows + K/V projection   phase 2: Q projection + MLP hidden + causal attention",
           ";   phase 3: output projection (split-K x4 with bf16 partial exchange) + residual",
           "; Generated by the author's own python generator.",
           "; @launch grid=(256,1,1) block=(256,1,1) lds=163840",
           '.amdgcn_target "amdgcn-amd-amdhsa--gfx950"', ".text",
           f".globl {NAME}\n.p2align 8\n.type {NAME},@function\n{NAME}:", a.text(),
           ".p2align 6\nk2_kernel:", b.text(), ".p2align 6\nk3_kernel:", c.text(),
           '.section .rodata,"a"', ".p2align 6"]
    a.name = NAME
    out.append(descriptor(a, vgpr=512, sgpr=102, accum=256))
    open(path, "w").write("\n".join(out) + "\n")
    print("wrote", path)
if __name__ == "__main__":
    build(sys.argv[1], eval(os.environ.get("K1ARGS", "{}")), eval(os.environ.get("K2X", "{}")), eval(os.environ.get("K3X", "{}")))
```

```python
from common import *
from k1_v1 import layernorm
import copy

def build_k1(store_mods=" sc1", stamps=False, pf2=True, pf2at=5, D=6, skew=True, pfself=True, krot=True, **_):
    k = Kern("k1_kernel")
    vq, lq = Q(k, "vmcnt", 63), Q(k, "lgkmcnt", 15)
    stp = Stamps(k, stamps, 60, 0, lq, maxn=10)
    sWS, sC, sWK, sWV, sX = 8, 12, 16, 20, 24
    sT0, sT1, sT2, sKV, sW, sH, sJ = 28, 29, 30, 31, 32, 33, 35
    sSo, sSo2, sAo, sSt, sW8k, sR, sW4k = 36, 37, 42, 43, 44, 45, 48
    sFL, sFA, sF2, sF3, sDb = 53, 54, 55, 56, 4
    CHA = 84
    vL, vL16 = 1, 2
    TA, VA, VW, AAr, AF = 16, 28, 36, 40, 52
    ACC, AF2, X0, X1, VZ = 128, 192, 224, 228, 232
    g, l15, r_, cc, g1, t0, t1, p8 = 4, 5, 6, 7, 8, 9, 10, 11
    k.op("s_cmp_ge_u32", "s2", 256)
    k.op("s_cbranch_scc1", "k1_end")
    if pfself:
        pf_self(k, "k1_end", vt=14); vq.issue()
    k.op("s_load_dwordx4", S(84, 4), S(0, 2), KA["x"])
    k.op("s_load_dwordx4", S(88, 4), S(0, 2), KA["wuk"])
    k.op("s_load_dwordx4", S(92, 4), S(0, 2), KA["dbg"])
    k.op("s_load_dwordx2", S(96, 2), S(0, 2), KA["wq"])
    k.op("s_load_dwordx2", S(98, 2), S(0, 2), KA["w1"])
    k.op("v_and_b32", V(vL), 63, "v0")
    k.op("v_lshrrev_b32", V(t0), 6, "v0")
    k.op("s_and_b32", S(sT0), "s2", 7)
    k.op("v_readfirstlane_b32", S(sW), V(t0))
    k.op("s_lshr_b32", S(sT1), "s2", 3)
    k.op("s_and_b32", S(sT2), S(sT1), 3)
    k.op("s_lshl_b32", S(sH), S(sT0), 2)
    k.op("s_add_u32", S(sH), S(sH), S(sT2))
    k.op("s_lshr_b32", S(sJ), S(sT1), 2)
    k.op("s_lshr_b32", S(sKV), S(sW), 1)
    k.op("v_lshlrev_b32", V(vL16), 4, V(vL))
    k.op("v_lshrrev_b32", V(g), 4, V(vL))
    k.op("v_and_b32", V(l15), 15, V(vL))
    k.op("v_bfe_u32", V(r_), V(vL), 2, 2)
    k.op("v_and_b32", V(cc), 3, V(vL))
    k.op("v_and_b32", V(g1), 1, V(g))
    k.op("v_and_b32", V(p8), 7, V(vL))
    k.op("s_lshl_b32", S(sW4k), S(sW), 12)
    k.op("s_lshl_b32", S(sW8k), S(sW), 13)
    k.op("v_lshlrev_b32", V(t0), 1, V(g))
    k.op("v_xor_b32", V(t0), V(t0), V(l15))
    k.op("v_lshlrev_b32", V(t0), 4, V(t0))
    k.op("v_lshl_add_u32", V(t0), V(g), 13, V(t0))
    k.op("s_lshl_b32", S(sT0), S(sW), 17)
    k.op("s_lshl_b32", S(sT1), S(sH), 8)
    k.op("s_add_u32", S(sT0), S(sT0), S(sT1))
    k.op("v_add_u32", V(VW), S(sT0), V(t0))
    k.op("v_add_u32", V(VW + 1), 32768 - 1024, V(VW))
    k.op("v_xor_b32", V(VW + 2), 128, V(VW))
    k.op("v_add_u32", V(VW + 2), 2 * (32768 - 1024), V(VW + 2))
    k.op("v_add_u32", V(VW + 3), 32768 - 1024, V(VW + 2))
    k.op("s_and_b32", S(sT0), S(sW), 1)
    k.op("s_lshl_b32", S(sT0), S(sT0), 7)
    k.op("v_xor_b32", V(t0), S(sT0), V(vL16))
    sKr = 49
    if krot:
        k.op("s_lshl_b32", S(sT0), S(sJ), 7)
        k.op("v_xor_b32", V(t0), S(sT0), V(t0))
        k.op("s_lshl_b32", S(sKr), S(sJ), 19)
    else:
        k.op("s_mov_b32", S(sKr), 0)
    for i in range(8): k.op("v_xor_b32", V(VA + i), i * 16, V(t0))
    k.op("s_lshl_b32", S(sAo), S(sJ), 18)
    k.op("s_add_u32", S(sAo), S(sAo), S(sW8k))
    k.op("s_lshl_b32", S(sR), "s2", 3)
    k.op("s_lshl_b32", S(sT1), S(sW), 1)
    k.op("s_add_u32", S(sR), S(sR), S(sT1))
    k.op("s_lshl_b32", S(sR), S(sR), 10)
    k.wait(lgkm=0)
    stp.stamp()
    load_srd(k, sX, "x", 84)
    k.op("buffer_load_dwordx4", V(X0, 4), V(vL16), S(sX, 4), S(sR), mods="offen"); vq.issue("ln")
    k.op("buffer_load_dwordx4", V(X1, 4), V(vL16), S(sX, 4), S(sR), mods="offen offset:1024"); vq.issue("ln")
    load_srd(k, sC, "ckv", 86); load_srd(k, sWK, "wuk", 88); load_srd(k, sWV, "wuv", 90)
    def cha(i):
        if skew:
            k.op("s_lshl_b32", S(CHA + i), S(sT2), 1)
            k.op("s_add_u32", S(CHA + i), S(CHA + i), i)
            k.op("s_and_b32", S(CHA + i), S(CHA + i), 7)
        else: k.op("s_mov_b32", S(CHA + i), i)
        k.op("s_lshl_b32", S(CHA + i), S(CHA + i), 15)
        k.op("s_add_u32", S(CHA + i), S(CHA + i), S(sAo))
    cha(0); cha(1)
    def aslot(st): return [3, 4, 2, 0, 1, 3, 4, 2][st] * 32768
    def wslot(s): return (s % 3) * 32768
    def dma_w_items(s):
        it = []
        for kv in range(2):
            def setup(kv=kv):
                k.op("s_add_u32", "m0", S(sW4k), wslot(s) + kv * 16384)
                k.op("s_xor_b32", S(sSo), S(sKr), s * 524288)
            it.append(setup)
            for i in range(4):
                def f(i=i, kv=kv):
                    k.op("buffer_load_dwordx4", V(VW + i), S(sWV if kv else sWK, 4), S(sSo), mods=f"offen offset:{i*1024} lds"); vq.issue(("W", s))
                it.append(f)
        return it
    def dma_a_items(st):
        it = []
        for u in range(2):
            def setup(u=u):
                k.op("s_add_u32", "m0", S(sW8k), aslot(st) + u * 4096)
                k.op("s_add_u32", S(sSo), S(CHA + st), u * 4096)
            it.append(setup)
            for i in range(4):
                def f(i=i, u=u):
                    k.op("buffer_load_dwordx4", V(VA + 4 * u + i), S(sC, 4), S(sSo), mods=f"offen offset:{i*1024} lds"); vq.issue(("A", st))
                it.append(f)
        return it
    for f in dma_w_items(0) + dma_a_items(0)[:5]: f()
    late = dma_a_items(0)[5:] + dma_a_items(1) + dma_w_items(1)
    stp.stamp()
    for i in range(2, 8): cha(i)
    load_srd(k, sWS, "ws", 94)
    k.op("v_lshl_or_b32", V(t1), V(g1), 2, V(r_))
    k.op("s_and_b32", S(sT0), S(sW), 1)
    k.op("s_lshl_b32", S(sT0), S(sT0), 2)
    k.op("v_xor_b32", V(t1), S(sT0), V(t1))
    k.op("v_lshl_add_u32", V(t0), V(g), 3, V(r_))
    k.op("v_lshlrev_b32", V(t0), 8, V(t0))
    k.op("v_lshl_add_u32", V(t0), V(cc), 3, V(t0))
    k.op("s_lshl_b32", S(sT0), S(sKV), 14)
    k.op("v_add_u32", V(t0), S(sT0), V(t0))
    for nb in range(4):
        k.op("v_xor_b32", V(12), nb, V(t1))
        k.op("v_lshl_add_u32", V(TA + nb), V(12), 5, V(t0))
        k.op("v_add_u32", V(TA + 4 + nb), 65536, V(TA + nb))
    k.op("v_lshlrev_b32", V(t0), 10, V(l15))
    k.op("v_xor_b32", V(t1), V(g), V(l15))
    for q in range(4):
        k.op("v_xor_b32", V(12), 4 * q, V(t1))
        k.op("v_lshl_add_u32", V(AAr + q), V(12), 4, V(t0))
        k.op("v_add_u32", V(AAr + 4 + q), 65536, V(AAr + q))
        k.op("v_add_u32", V(AAr + 8 + q), 131072, V(AAr + q))
    k.op("s_lshl_b32", S(sSt), S(sH), 19)
    k.op("s_and_b32", S(sT1), S(sW), 1)
    k.op("s_lshl_b32", S(sT0), S(sT1), 12)
    k.op("s_add_u32", S(sT0), S(sT0), VF_OFF)
    k.op("s_lshl_b32", S(sT1), S(sT1), 11)
    k.op("s_add_u32", S(sT1), S(sT1), KF_OFF)
    k.op("s_cmp_eq_u32", S(sKV), 0)
    k.op("s_cselect_b32", S(sT1), S(sT1), S(sT0))
    k.op("s_add_u32", S(sSt), S(sSt), S(sT1))
    k.op("s_lshr_b32", S(sT1), S(sW8k), 2)
    k.op("s_sub_u32", S(sSt), S(sSt), S(sT1))
    vLd, vLz = VZ, VZ + 1
    k.op("v_mov_b32", V(vLz), 0)
    k.op("s_lshl_b32", S(sFL), "s2", 2)
    k.op("s_add_u32", S(sFL), S(sFL), FL_OFF)
    k.op("s_lshl_b32", S(sFA), S(sH), 7)
    k.op("s_lshl_b32", S(sT1), S(sJ), 2)
    k.op("s_add_u32", S(sFA), S(sFA), S(sT1))
    k.op("s_add_u32", S(sFA), S(sFA), FA_OFF)
    k.op("s_lshl_b32", S(sF2), S(sJ), 8)
    k.op("s_lshl_b32", S(sT1), S(sH), 2)
    k.op("s_add_u32", S(sF2), S(sF2), S(sT1))
    k.op("s_add_u32", S(sF2), S(sF2), FLAG2_OFF)
    k.op("s_and_b32", S(sT1), "s2", 1)
    k.op("s_lshl_b32", S(sF3), S(sT1), 13)
    k.op("s_bfe_u32", S(sT1), "s2", "0x30003")
    k.op("s_lshl_b32", S(sT1), S(sT1), 10)
    k.op("s_add_u32", S(sF3), S(sF3), S(sT1))
    k.op("s_lshr_b32", S(sT1), "s2", 6)
    k.op("s_lshl_b32", S(sT1), S(sT1), 8)
    k.op("s_add_u32", S(sF3), S(sF3), S(sT1))
    k.op("s_and_b32", S(sT1), "s2", 6)
    k.op("s_lshl_b32", S(sT1), S(sT1), 1)
    k.op("s_add_u32", S(sF3), S(sF3), S(sT1))
    k.op("s_add_u32", S(sF3), S(sF3), FLAG_OFF)
    k.op("s_add_u32", S(57), S(sF2), 128)
    one_lane_store(k, sW, sWS, [sFL, sFA, sF2, sF3, 57], 0, VZ + 4)
    k.op("s_mov_b32", S(sDb), S(92))
    k.op("s_and_b32", S(sDb + 1), S(93), "0xffff")
    k.op("s_mov_b32", S(sDb + 2), 256)
    k.op("s_mov_b32", S(sDb + 3), "0x20000")
    GB = 2 * 32768
    LN2 = 84
    vq.need("ln")
    k.op("s_lshl_b32", S(sT1), S(sW), 5)
    k.op("s_add_u32", S(sT1), S(sT1), GB)
    k.op("v_lshlrev_b32", V(vLd), 7, V(vL))
    k.op("v_add_u32", V(vLd), S(sT1), V(vLd))
    k.op("s_lshl_b32", S(sT1), S(sW), 4)
    k.op("s_add_u32", S(sT1), S(sT1), GB + 8192)
    k.op("v_mov_b32", V(VZ + 2), S(sT1))
    ln = Kern("ln")
    for r, X in enumerate((X0, X1)):
        layernorm(ln, X, LN2 + 4, LN2 + 8, LN2 + 16)
        layernorm(ln, LN2 + 4, LN2 + 24, LN2 + 8, LN2 + 16, stats_only=True)
        ln.op("ds_write_b128", V(vLd), V(LN2 + 4, 4), mods=f"offset:{16*r}")
        ln.op("ds_write_b64", V(VZ + 2), V(LN2 + 24, 2), mods=f"offset:{8*r}")
        ln.wait(lgkm=0)
    for i, ins in enumerate(ln.ins):
        k.ins.append(ins)
        if i % 12 == 5 and late: late.pop(0)()
    for f in late: f()
    k.op("s_lshl_b32", S(sT1), S(sW), 11)
    k.op("s_add_u32", S(sT1), S(sT1), GB)
    k.op("v_add_u32", V(vLd), S(sT1), V(vL16))
    k.op("v_lshrrev_b32", V(VZ + 3), 3, V(vL))
    k.op("v_lshlrev_b32", V(VZ + 3), 8, V(VZ + 3))
    k.op("v_lshl_add_u32", V(VZ + 3), V(p8), 4, V(VZ + 3))
    k.op("s_lshr_b32", S(sR + 1), "s2", 1)
    k.op("s_lshl_b32", S(sR + 1), S(sR + 1), 14)
    k.op("s_and_b32", S(sT1), "s2", 1)
    k.op("s_lshl_b32", S(sT1), S(sT1), 7)
    k.op("s_add_u32", S(sR + 1), S(sR + 1), S(sT1))
    k.op("s_add_u32", S(sR + 1), S(sR + 1), S(sW4k))
    k.op("s_lshl_b32", S(sR + 2), "s2", 6)
    k.op("s_add_u32", S(sR + 2), S(sR + 2), YF_OFF)
    k.op("v_and_b32", V(VZ + 2), 48, V(vL16))
    k.op("v_add_u32", V(LN2 + 30), GB + 8192, V(VZ + 2))
    k.op("s_barrier")
    k.op("ds_read_b128", V(LN2, 4), V(vLd))
    k.op("ds_read_b128", V(LN2 + 4, 4), V(vLd), mods="offset:1024")
    k.op("ds_read_b128", V(LN2 + 8, 4), V(LN2 + 30))
    k.wait(lgkm=0)
    k.op("s_barrier")
    for f in dma_w_items(2): f()
    k.op("buffer_store_dwordx4", V(LN2, 4), V(VZ + 3), S(sWS, 4), S(sR + 1), mods="offen sc1"); vq.issue("lnst")
    k.op("buffer_store_dwordx4", V(LN2 + 4, 4), V(VZ + 3), S(sWS, 4), S(sR + 1), mods="offen offset:2048 sc1"); vq.issue("lnst")
    k.op("buffer_store_dwordx4", V(LN2 + 8, 4), V(VZ + 2), S(sWS, 4), S(sR + 2), mods="offen sc1"); vq.issue("lnst")

    def pf_k2():
        k.op("s_lshr_b32", S(sT1), "s2", 3)
        k.op("s_lshl_b32", S(sT1), S(sT1), 2)
        k.op("s_add_u32", S(sT1), S(sT1), S(sW))
        k.op("s_and_b32", S(sT0), "s2", 7)
        load_srd(k, sWV, "wq", 96)
        k.op("v_bfe_u32", V(12), V(vL), 3, 2)
        k.op("v_lshlrev_b32", V(13), 13, V(12))
        k.op("v_lshl_add_u32", V(13), V(p8), 7, V(13))
        k.op("s_lshl_b32", S(57), S(sT1), 15)
        k.op("s_lshl_b32", S(sT2), S(sT0), 10)
        k.op("s_add_u32", S(57), S(57), S(sT2))
        k.op("buffer_load_dword", V(15), V(13), S(sWV, 4), S(57), mods="offen", dummy=True); vq.issue()
        load_srd(k, sWK, "w1", 98)
        k.op("v_mul_u32_u24", V(13), 2752, V(12))
        k.op("v_lshl_add_u32", V(13), V(p8), 6, V(13))
        k.op("s_mul_i32", S(57), S(sT1), 4 * 2752)
        k.op("s_mul_i32", S(sT2), S(sT0), 384)
        k.op("s_add_u32", S(57), S(57), S(sT2))
        k.op("buffer_load_dword", V(15), V(13), S(sWK, 4), S(57), mods="offen", dummy=True); vq.issue()
        k.op("s_lshl_b32", S(57), S(sT1), 13)
        pf_code(k, sX, "k2_kernel", "k2_slow_0-k2_kernel", 13, vL, 57, 15); vq.issue()

    k.op("s_cmp_lg_u32", S(sKV), 0)
    k.op("s_cbranch_scc1", "k1_V")
    vq0, lq0, n0 = copy.deepcopy((vq.q, vq.ever)), copy.deepcopy((lq.q, lq.ever)), stp.n
    for kv in range(2):
        if kv:
            k.label("k1_V")
            vq.q, vq.ever = copy.deepcopy(vq0); lq.q, lq.ever = copy.deepcopy(lq0); stp.n = n0
        onst = lambda i: vq.issue() if i.kind == "vstore" else None
        q1, q2 = FillQ(k), FillQ(k, on_emit=onst)
        K2VW, K2VW1, sLd = 108, 112, 98
        def k2_setup():
            e = Kern("e")
            load_srd(e, 12, "wq", 96); load_srd(e, 16, "w1", 98)
            for i in range(4): e.op("v_mov_b32", V(K2VW + i), V(VW + i))
            e.op("v_lshlrev_b32", V(84), 1, V(g1))
            e.op("v_xor_b32", V(84), V(84), V(p8))
            e.op("v_lshlrev_b32", V(84), 4, V(84))
            e.op("v_lshrrev_b32", V(85), 3, V(vL))
            e.op("v_mul_u32_u24", V(85), 2752, V(85))
            e.op("s_mul_i32", S(38), S(sW), 32 * 2752)
            e.op("s_mul_i32", S(39), S(sH), 96)
            e.op("s_add_u32", S(38), S(38), S(39))
            e.op("v_add_u32", V(85), S(38), V(85))
            e.op("v_add_u32", V(K2VW1), V(85), V(84))
            e.op("v_xor_b32", V(84), 64, V(84))
            e.op("v_add_u32", V(K2VW1 + 1), V(85), V(84))
            e.op("v_add_u32", V(K2VW1 + 1), 8 * 2752 - 1024, V(K2VW1 + 1))
            e.op("v_add_u32", V(K2VW1 + 2), 2 * (8 * 2752 - 1024), V(K2VW1))
            e.op("v_add_u32", V(K2VW1 + 3), 2 * (8 * 2752 - 1024), V(K2VW1 + 1))
            e.op("s_lshl_b32", S(38), S(sJ), 17)
            e.op("s_lshl_b32", S(39), S(sW), 15)
            e.op("s_add_u32", S(sLd), S(38), S(39))
            e.op("s_add_u32", S(sLd + 1), S(sLd), 16384)
            e.op("s_sub_u32", S(sLd + 2), 1920 * 1024, S(38))
            e.op("s_add_u32", S(sLd + 2), S(sLd + 2), S(39))
            e.op("s_add_u32", S(sLd + 3), S(sLd + 2), 16384)
            return e
        def k2_pages():
            it = []
            for pg, (srd, vb, so) in enumerate([(16, K2VW1, 0), (12, K2VW, 0), (12, K2VW, 524288)]):
                def setup(pg=pg, so=so):
                    k.op("s_add_u32", "m0", S(sW4k), pg * 16384)
                    k.op("s_mov_b32", S(41), so)
                it.append(setup)
                for i in range(4):
                    def f(i=i, srd=srd, vb=vb):
                        k.op("buffer_load_dwordx4", V(vb + i), S(srd, 4), S(41), mods=f"offen offset:{i*1024} lds"); vq.issue()
                    it.append(f)
            return it
        def k2_xn(ks):
            it = []
            for rb in range(4):
                def f(rb=rb):
                    k.op("buffer_load_dwordx4", A((ks * 4 + rb) * 4, 4), V(vL16), S(sWS, 4), S(sLd + rb), mods=f"offen offset:{ks*1024} sc1"); vq.issue()
                it.append(f)
            return it
        def acc(st, rb, nb): return ACC + 32 * (st % 2) + 16 * rb + 4 * nb
        def pack(e, a, b):
            e.op("v_cvt_pk_bf16_f32", V(a), V(a), V(a + 1))
            e.op("v_cvt_pk_bf16_f32", V(a + 1), V(a + 2), V(a + 3))
            e.op("v_cvt_pk_bf16_f32", V(a + 2), V(b), V(b + 1))
            e.op("v_cvt_pk_bf16_f32", V(a + 3), V(b + 2), V(b + 3))
        def epi(st, rb):
            e = Kern("e")
            if kv == 0 or rb == 1:
                e.op("s_lshr_b32", S(sSo2), S(CHA + st), 2)
                e.op("s_add_u32", S(sSo2), S(sSo2), S(sSt))
            if kv == 0:
                if rb: e.op("s_add_u32", S(sSo2), S(sSo2), 4096)
                for p in range(2):
                    pack(e, acc(st, rb, 2 * p), acc(st, rb, 2 * p + 1))
                    e.op("buffer_store_dwordx4", V(acc(st, rb, 2 * p), 4), V(vL16), S(sWS, 4), S(sSo2), mods=f"offen offset:{p*1024}{store_mods}")
            elif rb == 1:
                for nb in range(4):
                    pack(e, acc(st, 0, nb), acc(st, 1, nb))
                    e.op("buffer_store_dwordx4", V(acc(st, 0, nb), 4), V(vL16), S(sWS, 4), S(sSo2), mods=f"offen offset:{nb*1024}{store_mods}")
            return e
        def zst():
            lab = k.newlabel("noz")
            k.op("v_mov_b32", V(VZ + 5), 1)
            k.op("s_cmp_lg_u32", S(sW), 0); k.op("s_cbranch_scc1", lab)
            k.op("s_mov_b64", "exec", 1)
            k.op("buffer_store_byte", V(VZ + 5), V(vLz), S(sDb, 4), "s2", mods="offen sc1")
            k.op("s_mov_b64", "exec", -1)
            k.label(lab)
        pz = lambda: k.op("buffer_load_dword", V(242), V(243), S(sDb, 4), 0, mods="offen sc1")
        pl = lambda: k.op("buffer_load_dword", V(241), V(240), S(sWS, 4), S(sFL), mods="offen sc1")
        def stage_switch(st):
            if st == 2: assert len(lq.q) == 0
            vq.need(("A", st), cnt=[8])
            if st == 2: vq.need("lnst", cnt=[3])
            k.op("s_barrier")
            if st == 6:
                vq.need("pz")
                spin_until(k, f"k1_sz{kv}", pz, lambda: k.op("v_cmp_ne_u32", "vcc", "0x01010101", V(242)), sT1)
            if st == 7:
                vq.need("pp")
                spin_until(k, f"k1_sp{kv}", pl, lambda: k.op("v_cmp_ne_u32", "vcc", 1, V(241)), sT1)
            q1.flush()
            if st == 2:
                for f in dma_a_items(4) + dma_a_items(5): q1.add(f)
                q1.add(lambda: one_lane_store(k, sW, sWS, [sFL], 1, VZ + 4))
            if st == 3:
                for f in dma_a_items(6): q1.add(f)
            if st == 4:
                for f in dma_a_items(7): q1.add(f)
                def a():
                    k.op("v_lshlrev_b32", V(243), 2, V(vL)); pz(); vq.issue("pz")
                q1.add(a)
            if st == 6:
                def a():
                    k.op("s_lshl_b32", S(sT1), S(sJ), 6)
                    k.op("s_sub_u32", S(sT2), 960, S(sT1))
                    k.op("v_mov_b32", V(240), S(sT1))
                    k.op("v_mov_b32", V(241), S(sT2))
                    k.op("v_cmp_eq_u32", "vcc", 0, V(g1))
                    k.op("s_mov_b32", S(sFL), FL_OFF)
                    k.nop(1)
                    k.op("v_cndmask_b32", V(240), V(241), V(240), "vcc")
                    k.op("v_lshl_add_u32", V(240), V(l15), 2, V(240))
                    pl(); vq.issue("pp")
                q1.add(a)
                q2.add_kern(k2_setup())
            if st == 7:
                for f in k2_pages(): q1.add(f)
        def rd_act(st, rb, ks, dst, tag):
            off = aslot(st) + rb * 16384
            wn = off // 65536
            k.op("ds_read_b128", V(dst, 4), V(AAr + 4 * wn + (ks & 3)), mods=f"offset:{off - wn*65536 + (ks>>2)*256}")
            lq.issue(tag)
        def rd_main(n):
            st, rb, ks = n >> 5, (n >> 4) & 1, n & 15
            if n % 32 == 0: stage_switch(st)
            rd_act(st, rb, ks, AF + (n % 8) * 4, ("a", n))
        def mf(st, rb, ks, nb, af):
            d = V(acc(st, rb, nb), 4); wf = A((ks * 4 + nb) * 4, 4)
            if kv == 0: k.op("v_mfma_f32_16x16x32_bf16", d, wf, V(af, 4), "0" if ks == 0 else d)
            else: k.op("v_mfma_f32_16x16x32_bf16", d, V(af, 4), wf, "0" if ks == 0 else d)
        def waf(s, ks, x): return (AF2 if s % 2 == 0 else 84) + ((ks & 1) * 4 + x) * 4
        def wread_items(s):
            it = []
            for ks in (2 * s, 2 * s + 1):
                for nb in range(4):
                    for i in range(2):
                        def f(ks=ks, nb=nb, i=i):
                            off = wslot(s) + (ks & 1) * 8192 + i * 1024
                            wn = off // 65536
                            k.op("ds_read_b64_tr_b16", A((ks * 4 + nb) * 4 + 2 * i, 2), V(TA + 4 * wn + nb), mods=f"offset:{off - wn*65536}")
                            lq.issue(("w", s))
                        it.append(f)
                for x in range(4):
                    it.append(lambda ks=ks, x=x: rd_act(x >> 1, x & 1, ks, waf(s, ks, x), ("w", s)))
            return it
        qr = FillQ(k)
        for s in range(9):
            if s > 0: lq.need(("w", s - 1), cnt=[24])
            if s < 8:
                vq.need(("W", s), ("A", 0), ("A", 1), cnt=[8, 8, 8])
                k.op("s_barrier")
                if s == 0: stp.stamp()
                for f in wread_items(s): qr.add(f)
                if 1 <= s and s + 2 < 8:
                    for f in dma_w_items(s + 2): q1.add(f)
                if s == 1: q1.add(zst)
                if s == 6:
                    for f in dma_a_items(2): q1.add(f)
                if s == 7:
                    for f in dma_a_items(3): q1.add(f)
            else:
                for n in range(64, 64 + D): qr.add(lambda n=n: rd_main(n))
            if s == 0:
                qr.flush(); continue
            c = 0
            for ks in (2 * s - 2, 2 * s - 1):
                for x in range(4):
                    for nb in range(4):
                        mf(x >> 1, x & 1, ks, nb, waf(s - 1, ks, x))
                        if s < 8 or c >= 16: qr.emit(1)
                        if c % 3 == 1: q1.emit(1)
                        c += 1
            qr.flush()
            if s < 8: q1.flush()
        stp.stamp()
        k.nop(4)
        for rb in range(2): q2.add_kern(epi(0, rb))
        q2.flush()
        for rb in range(2): q2.add_kern(epi(1, rb))
        nxt = 64 + D
        for n in range(64, 256):
            st, rb, ks = n >> 5, (n >> 4) & 1, n & 15
            if n in (128, 192): stp.stamp()
            if ks == 2 and n > 80:
                q2.add_kern(epi(st, 0) if rb else epi(st - 1, 1))
            if pf2 and n == pf2at * 32 + 8: pf_k2()
            if st == 7 and rb == 1 and 2 <= ks < 6:
                for f in k2_xn(ks - 2): q1.add(f)
            if n % 2 == 0: lq.need(("a", n), ("a", n + 1), cnt=[1, 1])
            for nb in range(4):
                mf(st, rb, ks, nb, AF + (n % 8) * 4)
                cap = 1
                if nb == 0 and nxt < 256:
                    rd_main(nxt); nxt += 1; cap = 0
                if nb == 2 or n >= 240: cap -= q1.emit(cap)
                cap -= q2.emit(cap)
        stp.stamp()
        q1.flush(); q2.flush()
        k.nop(8)
        q2.add_kern(epi(7, 1)); q2.flush()
        if stamps:
            stp.stamp()
            stp.flush(sWS, sW, 4)
        k.wait(lgkm=0)
        k.op("s_barrier")
        k.op("s_mov_b32", "s3", S(sFA))
        k.raw("  s_branch k2_kernel")
        k.op("s_endpgm")
    k.label("k1_end")
    k.op("s_endpgm")
    return k

if __name__ == "__main__":
    k = build_k1()
    for e in k.check_hazards(): print(e)
    for e in k.check_waits(): print(e)
    print(k.maxregs(), len(k.ins))
```

```python
from common import *
import struct
def f32(x): return hex(struct.unpack("<I", struct.pack("<f", x))[0])
LOG2E = 1.4426950408889634
QSCALE = LOG2E / (128 ** 0.5)
STAT_OFF = YF_OFF

def build_k2(stamps=False, D=6, DA=8, thr=2.0 ** 80, pf3=True, fuse3=False, xnobar=False, xnodma=False, oolmask=True, pfself=True, fused1=False, early1=False, pace=True, wp=4, early3=False):
    k = Kern("k2_kernel")
    SC = " sc1" if fused1 else ""
    vq, lq = Q(k, "vmcnt", 63), Q(k, "lgkmcnt", 15)
    stp = Stamps(k, stamps, 62, 1, lq, maxn=8)
    sWS, sWQ, sW1, sK, sV, sB1 = 8, 12, 16, 20, 24, 28
    sW, sH, sP, sNa, sNb, sT = 32, 33, 34, 35, 36, 37
    sT0, sT1, sT2, sSo = 38, 39, 40, 41
    sP2, sP1, sRd, sNx = 42, 43, 44, 45
    sTK, sTV, sW4k, sThr, sRet = 46, 47, 48, 49, 50
    sXa, sXb = 51, 52
    sCa, sCb = 53, 54
    sM = 56
    sLd = 98
    vL, vL16, vA, vD, vZ, vNinf = 1, 2, 3, 4, 5, 6
    vPs = [7, 8]; vLs = [9, 10]; vMx = [11, 12]
    vT = 13
    vCo = 20
    QR, NEGM, SR = 32, 96, 128
    def Sreg(sub, par): return SR + sub * 64 + par * 32
    OA, FR = 64, 192
    TA, TB, VW, VW1 = 96, 104, 108, 112
    vXo = 21
    MACC = 32
    ONES = 116
    XR = 0

    k.op("s_cmp_ge_u32", "s2", 256)
    k.op("s_cbranch_scc1", "k2_end")
    if pfself:
        pf_self(k, "k2_slow_0", vt=254); vq.issue()
    k.op("s_load_dwordx2", S(84, 2), S(0, 2), KA["wq"])
    k.op("s_load_dwordx4", S(88, 4), S(0, 2), KA["w1"])
    k.op("s_load_dwordx2", S(92, 2), S(0, 2), KA["ws"])
    k.op("s_load_dwordx2", S(86, 2), S(0, 2), KA["wo"])
    k.op("s_load_dwordx2", S(96, 2), S(0, 2), KA["w2"])
    k.op("v_and_b32", V(vL), 63, "v0")
    k.op("v_lshrrev_b32", V(13), 6, "v0")
    k.op("s_and_b32", S(sT0), "s2", 7)
    k.op("v_readfirstlane_b32", S(sW), V(13))
    k.op("s_lshr_b32", S(sT1), "s2", 3)
    k.op("s_and_b32", S(sT2), S(sT1), 3)
    k.op("s_lshl_b32", S(sH), S(sT0), 2)
    k.op("s_add_u32", S(sH), S(sH), S(sT2))
    k.op("s_lshr_b32", S(sP), S(sT1), 2)
    k.op("v_lshlrev_b32", V(vL16), 4, V(vL))
    k.op("s_lshl_b32", S(sW4k), S(sW), 12)
    k.op("v_add_u32", V(vD), S(sW4k), V(vL16))
    g, l15, p8, l3, r_, cc, g1, t7 = 22, 23, 24, 25, 26, 27, 28, 29
    k.op("v_lshrrev_b32", V(g), 4, V(vL))
    k.op("v_and_b32", V(l15), 15, V(vL))
    k.op("v_and_b32", V(p8), 7, V(vL))
    k.op("v_lshrrev_b32", V(l3), 3, V(vL))
    k.op("v_bfe_u32", V(r_), V(vL), 2, 2)
    k.op("v_and_b32", V(cc), 3, V(vL))
    k.op("v_and_b32", V(g1), 1, V(g))
    k.op("v_lshlrev_b32", V(t7), 1, V(g))
    k.op("v_xor_b32", V(t7), V(t7), V(l15))
    k.op("v_lshlrev_b32", V(t7), 4, V(t7))
    k.op("v_lshl_add_u32", V(t7), V(g), 13, V(t7))
    k.op("s_lshl_b32", S(sT0), S(sW), 17)
    k.op("s_lshl_b32", S(sT1), S(sH), 8)
    k.op("s_add_u32", S(sT0), S(sT0), S(sT1))
    k.op("v_add_u32", V(VW), S(sT0), V(t7))
    k.op("v_add_u32", V(VW + 1), 32768 - 1024, V(VW))
    k.op("v_xor_b32", V(VW + 2), 128, V(VW))
    k.op("v_add_u32", V(VW + 2), 2 * (32768 - 1024), V(VW + 2))
    k.op("v_add_u32", V(VW + 3), 32768 - 1024, V(VW + 2))
    k.op("v_lshlrev_b32", V(t7), 1, V(g1))
    k.op("v_xor_b32", V(t7), V(t7), V(p8))
    k.op("v_lshlrev_b32", V(t7), 4, V(t7))
    k.op("v_mul_u32_u24", V(30), 2752, V(l3))
    k.op("s_mul_i32", S(sT0), S(sW), 32 * 2752)
    k.op("s_mul_i32", S(sT1), S(sH), 96)
    k.op("s_add_u32", S(sT0), S(sT0), S(sT1))
    k.op("v_add_u32", V(30), S(sT0), V(30))
    k.op("v_add_u32", V(VW1), V(30), V(t7))
    k.op("v_xor_b32", V(t7), 64, V(t7))
    k.op("v_add_u32", V(VW1 + 1), V(30), V(t7))
    k.op("v_add_u32", V(VW1 + 1), 8 * 2752 - 1024, V(VW1 + 1))
    k.op("v_add_u32", V(VW1 + 2), 2 * (8 * 2752 - 1024), V(VW1))
    k.op("v_add_u32", V(VW1 + 3), 2 * (8 * 2752 - 1024), V(VW1 + 1))
    k.op("s_lshl_b32", S(sT0), S(sP), 7)
    k.op("s_lshl_b32", S(sT1), S(sW), 5)
    k.op("s_add_u32", S(sXa), S(sT0), S(sT1))
    k.op("s_sub_u32", S(sXb), 1920, S(sT0))
    k.op("s_add_u32", S(sXb), S(sXb), S(sT1))
    k.op("s_lshl_b32", S(sT2), S(sH), 12)
    k.op("s_add_u32", S(sT2), S(sT2), CTX_OFF)
    k.op("s_lshl_b32", S(sCa), S(sXa), 13)
    k.op("s_add_u32", S(sCa), S(sCa), S(sT2))
    k.op("s_lshl_b32", S(sCb), S(sXb), 13)
    k.op("s_add_u32", S(sCb), S(sCb), S(sT2))
    sRa, sRb = 94, 95
    k.op("s_mov_b32", S(sRa), S(sXa)); k.op("s_mov_b32", S(sRb), S(sXb))
    sHr = 56
    for rb in range(4):
        k.op("s_lshr_b32", S(sHr + rb), S(sRa if rb < 2 else sRb), 4)
        k.op("s_add_u32", S(sHr + rb), S(sHr + rb), rb & 1)
        k.op("s_mul_i32", S(sHr + rb), S(sHr + rb), 43 * 1024)
    k.op("s_lshl_b32", S(sXa), S(sXa), 10)
    k.op("s_lshl_b32", S(sXb), S(sXb), 10)
    k.op("s_lshr_b32", S(sT1), S(sW), 1)
    k.op("s_lshl_b32", S(sT0), S(sP), 1)
    k.op("s_add_u32", S(sNa), S(sT0), S(sT1))
    k.op("s_add_u32", S(sNa), S(sNa), 1)
    k.op("s_sub_u32", S(sNb), 31, S(sT0))
    k.op("s_add_u32", S(sNb), S(sNb), S(sT1))
    k.wait(lgkm=0)
    stp.stamp()
    load_srd(k, sWQ, "wq", 84); load_srd(k, sW1, "w1", 88); load_srd(k, sWS, "ws", 92)

    pages = {}
    order = []
    for j in range(4):
        order += [("W1", j), ("WQ", 2 * j), ("WQ", 2 * j + 1)]
    for i, p in enumerate(order): pages[p] = i
    for t in range(6): pages[("K", t)] = 12 + 2 * t; pages[("V", t)] = 15 + 2 * t
    def slot(p): return (pages[p] % 10) * 16384
    def dma_items(p):
        kind, j = p
        def setup():
            k.op("s_add_u32", "m0", S(sW4k), slot(p))
            k.op("s_mov_b32", S(sSo), {"W1": j * 128 * 2752, "WQ": j * 524288, "K": j * 16384, "V": (j + 1) * 16384}[kind])
        def ld(i):
            def f():
                if kind == "WQ": k.op("buffer_load_dwordx4", V(VW + i), S(sWQ, 4), S(sSo), mods=f"offen offset:{i*1024} lds")
                elif kind == "W1": k.op("buffer_load_dwordx4", V(VW1 + i), S(sW1, 4), S(sSo), mods=f"offen offset:{i*1024} lds")
                else: k.op("buffer_load_dwordx4", V(vD), S(sK if kind == "K" else sV, 4), S(sSo), mods=f"offen offset:{i*1024}{SC} lds")
                vq.issue(p)
            return f
        return [setup] + [ld(i) for i in range(4)]
    def xn_load(ks, rb):
        def f():
            r = XR + ((ks % 12) * 4 + rb) * 4
            if ks & 3 == 0: k.op("s_add_u32", S(sLd + rb), S(sXa if rb < 2 else sXb), (rb & 1) * 16384 + (ks >> 2) * 4096)
            k.op("buffer_load_dwordx4", A(r, 4), V(vL16), S(sWS, 4), S(sLd + rb), mods=f"offen offset:{(ks&3)*1024}" + SC)
            vq.issue(("x", ks))
        return f
    if early1:
        for p in (("W1", 0), ("WQ", 0), ("WQ", 1)):
            for _ in range(4): vq.issue(p)
        for ks in range(4):
            for _ in range(4): vq.issue(("x", ks))
        vq.issue(); vq.issue()
    else:
        for p in (("W1", 0), ("WQ", 0)):
            for f in dma_items(p): f()
        for ks in range(2):
            for rb in range(4): xn_load(ks, rb)()
        for f in dma_items(("WQ", 1)): f()
        for ks in range(2, 4):
            for rb in range(4): xn_load(ks, rb)()
    load_srd(k, sB1, "b1", 90)
    k.op("s_lshl_b32", S(sT0), S(sH), 19)
    k.op("s_add_u32", S(sT1), S(sT0), KF_OFF)
    k.op("s_add_u32", S(sK), S(92), S(sT1))
    k.op("s_addc_u32", S(sK + 1), S(93), 0)
    k.op("s_and_b32", S(sK + 1), S(sK + 1), "0xffff")
    k.op("s_lshl_b32", S(sT2), S(sP), 15)
    k.op("s_sub_u32", S(sK + 2), 32 * 16384, S(sT2))
    k.op("s_mov_b32", S(sK + 3), "0x20000")
    k.op("s_add_u32", S(sT1), S(sT0), VF_OFF - 16384)
    k.op("s_add_u32", S(sV), S(92), S(sT1))
    k.op("s_addc_u32", S(sV + 1), S(93), 0)
    k.op("s_and_b32", S(sV + 1), S(sV + 1), "0xffff")
    k.op("s_add_u32", S(sV + 2), S(sK + 2), 16384)
    k.op("s_mov_b32", S(sV + 3), "0x20000")
    k.op("v_lshl_or_b32", V(30), V(g1), 2, V(r_))
    k.op("v_lshl_add_u32", V(31), V(g), 3, V(r_))
    k.op("v_lshlrev_b32", V(t7), 8, V(31))
    k.op("v_lshl_add_u32", V(t7), V(cc), 3, V(t7))
    for nb in range(8):
        k.op("v_xor_b32", V(13), nb, V(30))
        k.op("v_lshl_add_u32", V(TA + nb), V(13), 5, V(t7))
    k.op("v_lshrrev_b32", V(13), 1, V(r_))
    k.op("v_lshl_or_b32", V(30), V(g1), 1, V(13))
    k.op("v_lshlrev_b32", V(t7), 7, V(31))
    k.op("v_lshl_add_u32", V(t7), V(cc), 3, V(t7))
    for nb in range(3):
        k.op("v_xor_b32", V(13), nb, V(30))
        k.op("v_lshl_add_u32", V(TB + nb), V(13), 5, V(t7))
    for i in range(4): k.op("v_mov_b32", V(ONES + i), "0x3f803f80")
    ST = 120
    B1 = [92, 94, 30]
    k.op("v_lshlrev_b32", V(13), 3, V(l15))
    for rb in range(4):
        k.op("s_lshl_b32", S(sT0), S(sRa if rb < 2 else sRb), 3)
        k.op("s_add_u32", S(sT0), S(sT0), STAT_OFF + (rb & 1) * 128)
        k.op("buffer_load_dwordx2", V(ST + 2 * rb, 2), V(13), S(sWS, 4), S(sT0), mods="offen" + SC); vq.issue("st")
    k.op("v_lshlrev_b32", V(14), 3, V(g))
    k.op("s_mul_i32", S(sT1), S(sH), 96)
    for nb in range(3):
        k.op("buffer_load_dwordx2", V(B1[nb], 2), V(14), S(sB1, 4), S(sT1), mods=f"offen offset:{nb*32}"); vq.issue("st")
    win = {"TA": 0, "TB": 0}
    def set_window(name, base, n, off):
        w = off // 65536
        if win[name] != w:
            d = (w - win[name]) * 65536
            for i in range(n): k.op("v_add_u32", V(base + i), hex(d & 0xffffffff), V(base + i))
            win[name] = w
        return off - w * 65536
    frs = []
    for ks in range(16):
        for nb in range(3): frs.append(("W1", ks, nb))
        for nb in range(8): frs.append(("WQ", ks, nb))
    NF = len(frs)
    q1 = FillQ(k)
    plan = {0: [("W1", 1), ("WQ", 2)], 1: [("WQ", 3)], 2: [("W1", 2), ("WQ", 4)], 3: [("WQ", 5)], 4: [("W1", 3), ("WQ", 6)],
            5: [("WQ", 7)], 6: [("K", 0), ("K", 1)], 7: [("V", 0), ("K", 2)]}
    def stage_switch(s):
        need = [("WQ", s)] + ([("W1", s // 2)] if s % 2 == 0 else [])
        vq.need(*need, cnt=[4] * len(need))
        k.op("s_barrier")
        q1.flush()
        if fused1 and s == 2:
            one_lane_store(k, sW, sWS, [3], 1, 18)
        if fused1 and s == 5:
            k.op("s_lshl_b32", S(55), S(sH), 7)
            k.op("s_add_u32", S(55), S(55), FA_OFF)
            k.op("v_lshlrev_b32", V(18), 2, V(p8))
            k.op("buffer_load_dword", V(19), V(18), S(sWS, 4), S(55), mods="offen sc1"); vq.issue("pp")
        if fused1 and s == 6:
            vq.need("pp")
            spin_until(k, "k2_sp", lambda: k.op("buffer_load_dword", V(19), V(18), S(sWS, 4), S(55), mods="offen sc1"),
                       lambda: k.op("v_cmp_ne_u32", "vcc", 1, V(19)), sT1)
        for ks in (2 * s + 4, 2 * s + 5):
            if ks < 16:
                for rb in range(4): q1.add(xn_load(ks, rb))
        for p in plan[s]:
            for f in dma_items(p): q1.add(f)
    def read_frag(n, which):
        kind, ks, nb = frs[n]
        if n % 22 == 0 and which == 0: stage_switch(n // 22)
        r = FR + (n % 16) * 4
        if kind == "WQ":
            off = slot(("WQ", ks // 2)) + (ks & 1) * 8192 + which * 1024
            off = set_window("TA", TA, 8, slot(("WQ", ks // 2))) + (ks & 1) * 8192 + which * 1024
            k.op("ds_read_b64_tr_b16", A(r + 2 * which, 2), V(TA + nb), mods=f"offset:{off}")
        else:
            off = set_window("TB", TB, 3, slot(("W1", ks // 4))) + (ks & 3) * 4096 + which * 512
            k.op("ds_read_b64_tr_b16", A(r + 2 * which, 2), V(TB + nb), mods=f"offset:{off}")
        lq.issue(("w", n))
    def qacc(nb, rb): return SR + 4 * (nb * 4 + rb)
    def macc(nb, rb): return MACC + 4 * (nb * 4 + rb)
    for n in range(D):
        read_frag(n, 0); read_frag(n, 1)
    stp.stamp()
    for n in range(NF):
        kind, ks, nb = frs[n]
        if n % 11 == 0: vq.need(("x", ks), cnt=[4])
        if n % 2 == 0: lq.need(("w", n), ("w", n + 1), cnt=[2, 2])
        wf = A(FR + (n % 16) * 4, 4)
        first = ks == 0
        ms = []
        for rb in range(4):
            d = V(qacc(nb, rb) if kind == "WQ" else macc(nb, rb), 4)
            ms.append((d, A(XR + ((ks % 12) * 4 + rb) * 4, 4)))
        if kind == "W1": ms.append((V(MACC + 48 + 4 * nb, 4), V(ONES, 4)))
        for c, (d, b) in enumerate(ms):
            k.op("v_mfma_f32_16x16x32_bf16", d, wf, b, "0" if first else d)
            if c < 2 and n + D < NF: read_frag(n + D, c)
            elif not pace or c == 2: q1.emit(2 if (len(q1) > 12 and not pace) else 1)
    q1.flush()
    stp.stamp()
    vq.need(("K", 0), cnt=[4])
    k.op("s_barrier")
    for p in (("V", 1), ("K", 3), ("V", 2)):
        for f in dma_items(p): f()
    k.op("v_mul_u32_u24", V(15), 44032, V(g1))
    k.op("v_lshrrev_b32", V(16), 5, V(vL))
    k.op("v_lshl_add_u32", V(15), V(16), 8, V(15))
    k.op("v_lshl_add_u32", V(15), V(l15), 4, V(15))
    C1, C2 = -2 * LOG2E * 0.7978845608028654, -2 * LOG2E * 0.7978845608028654 * 0.044715
    k.op("v_mov_b32", V(16), f32(C1)); k.op("v_mov_b32", V(17), f32(C2))
    k.op("v_mov_b32", V(18), "1.0"); k.op("v_mov_b32", V(19), "1.0")
    def P(r): return V(r, 2)
    bb, t = 96, 100
    for nb in range(3):
        k.op("v_lshlrev_b32", V(bb), 16, V(B1[nb]))
        k.op("v_and_b32", V(bb + 1), "0xffff0000", V(B1[nb]))
        k.op("v_lshlrev_b32", V(bb + 2), 16, V(B1[nb] + 1))
        k.op("v_and_b32", V(bb + 3), "0xffff0000", V(B1[nb] + 1))
        cs = MACC + 48 + 4 * nb
        k.op("s_mul_i32", S(sT1), S(sH), 3)
        k.op("s_add_u32", S(sT1), S(sT1), nb)
        k.op("s_lshl_b32", S(sT2), S(sT1), 9)
        k.op("s_add_u32", S(sT2), S(sT2), HF_OFF)
        lab = k.newlabel("skiph")
        k.op("s_cmp_ge_u32", S(sT1), 86)
        k.op("s_cbranch_scc1", lab)
        for rp in range(2):
            rbs = (2 * rp, 2 * rp + 1)
            def each(fn):
                for j, rb in enumerate(rbs):
                    for i in (0, 2): fn(macc(nb, rb) + i, t + 4 * j + i, ST + 2 * rb, i)
            each(lambda a, tt, st, i: k.op("v_pk_fma_f32", P(a), P(cs + i), P(st), P(a), mods="op_sel_hi:[1,0,1] neg_lo:[1,0,0] neg_hi:[1,0,0]"))
            each(lambda a, tt, st, i: k.op("v_pk_fma_f32", P(a), P(a), P(st), P(bb + i), mods="op_sel:[0,1,0]"))
            each(lambda a, tt, st, i: k.op("v_pk_mul_f32", P(tt), P(a), P(a)))
            each(lambda a, tt, st, i: k.op("v_pk_fma_f32", P(tt), P(tt), P(16), P(16), mods="op_sel:[0,1,0] op_sel_hi:[1,1,0]"))
            each(lambda a, tt, st, i: k.op("v_pk_mul_f32", P(tt), P(tt), P(a)))
            for i in range(8): k.op("v_exp_f32", V(t + i), V(t + i))
            each(lambda a, tt, st, i: k.op("v_pk_add_f32", P(tt), P(tt), P(18)))
            for i in range(8): k.op("v_rcp_f32", V(t + i), V(t + i))
            each(lambda a, tt, st, i: k.op("v_pk_mul_f32", P(a), P(a), P(tt)))
            a0, a1 = macc(nb, rbs[0]), macc(nb, rbs[1])
            k.op("v_cvt_pk_bf16_f32", V(a0), V(a0), V(a0 + 1))
            k.op("v_cvt_pk_bf16_f32", V(a0 + 1), V(a0 + 2), V(a0 + 3))
            k.op("v_cvt_pk_bf16_f32", V(a0 + 2), V(a1), V(a1 + 1))
            k.op("v_cvt_pk_bf16_f32", V(a0 + 3), V(a1 + 2), V(a1 + 3))
            k.op("s_add_u32", S(sT0), S(sHr + 2 * rp), S(sT2))
            k.nop(1)
            k.op("v_permlane16_swap_b32", V(a0), V(a0 + 2))
            k.op("v_permlane16_swap_b32", V(a0 + 1), V(a0 + 3))
            k.op("buffer_store_dwordx4", V(a0, 4), V(15), S(sWS, 4), S(sT0), mods="offen" + (" sc1" if fuse3 else ""))
        k.label(lab)
    k.op("v_mov_b32", V(16), f32(QSCALE)); k.op("v_mov_b32", V(17), f32(QSCALE))
    def Qreg(sub, qb, ds): return QR + sub * 32 + qb * 16 + ds * 4
    for rb in range(4):
        for ds in range(4):
            X = Qreg(rb >> 1, rb & 1, ds)
            for half in range(2):
                a = qacc(2 * ds + half, rb)
                for i in (0, 2): k.op("v_pk_mul_f32", P(a + i), P(a + i), P(16))
                k.op("v_cvt_pk_bf16_f32", V(X + 2 * half), V(a), V(a + 1))
                k.op("v_cvt_pk_bf16_f32", V(X + 2 * half + 1), V(a + 2), V(a + 3))
    stp.stamp()
    def Ngm(sub, qb): return NEGM + sub * 8 + qb * 4
    def Lac(sub, qb): return 112 + sub * 8 + qb * 4
    ON1 = 24
    k.op("s_and_b32", S(sT0), S(sW), 1)
    k.op("s_lshl_b32", S(sT0), S(sT0), 5)
    k.op("v_add_u32", V(vZ), S(sT0), V(l15))
    k.op("v_lshlrev_b32", V(15), 2, V(g))
    k.op("v_sub_u32", V(vZ), V(vZ), V(15))
    k.op("v_mov_b32", V(vNinf), f32(-1e30))
    for i in range(4): k.op("v_mov_b32", V(ON1 + i), "0x3f803f80")
    for i in range(16): k.op("v_mov_b32", V(112 + i), 0)
    k.op("s_mov_b32", S(sThr), f32(thr))
    k.op("s_mov_b32", S(sP2), 0)
    k.op("s_mov_b32", S(sNx), 98304)
    k.op("s_mov_b32", S(sTK), 4 * 16384)
    k.op("s_mov_b32", S(sT), 2)

    def mf(d, a, b, c): k.op("v_mfma_f32_16x16x32_bf16", d, a, b, c)
    def mask_block(sub, par):
        s0 = Sreg(sub, par)
        for e0 in range(0, 32, 2):
            for u in range(2):
                e = e0 + u; qb, kb, r = e >> 4, (e >> 2) & 3, e & 3
                k.op("v_cmp_gt_i32", S(sM + 2 * u, 2), 16 * kb + r - 16 * qb, V(vZ))
            k.nop(1)
            for u in range(2):
                k.op("v_cndmask_b32", V(s0 + e0 + u), V(s0 + e0 + u), V(vNinf), S(sM + 2 * u, 2))
    def ereg(n):
        k32, qb, j = n >> 4, (n >> 3) & 1, n & 7
        return qb * 16 + k32 * 8 + j
    def soft_exp(sub, par, n):
        r = Sreg(sub, par) + ereg(n)
        k.op("v_exp_f32", V(r), V(r))
    def soft_cvt(sub, par, n):
        e = n - 2
        r = Sreg(sub, par) + ereg(e)
        d = Sreg(sub, par) + (ereg(e) & ~7) + ((e & 7) >> 1)
        k.op("v_cvt_pk_bf16_f32", V(d), V(r), V(r + 1))
    def rd(frag, isV):
        k.op("ds_read_b128", A(FR + frag * 4, 4), V(vA), mods=f"offset:{(16384 if isV else 0) + frag*1024}")
    def ldK(i): return lambda: k.op("buffer_load_dwordx4", V(vD), S(sK, 4), S(sTK), mods=f"offen offset:{i*1024}{SC} lds")
    def ldV(i): return lambda: k.op("buffer_load_dwordx4", V(vD), S(sV, 4), S(sTK), mods=f"offen offset:{i*1024}{SC} lds")
    m0K = lambda: k.op("s_add_u32", "m0", S(sP2), S(sW4k))
    m0V = lambda: k.op("s_add_u32", "m0", "m0", 16384)
    advT = lambda: k.op("s_add_u32", S(sTK), S(sTK), 16384)
    advP = lambda: k.op("s_add_u32", S(sP2), S(sP2), 32768)
    wrapP = lambda: (k.op("s_cmp_eq_u32", S(sP2), 163840), k.op("s_cselect_b32", S(sP2), 0, S(sP2)))
    XA = {1: [ldK(2)], 5: [ldK(3)], 7: [m0V], 9: [ldV(0)], 13: [ldV(1)]}
    XB = {1: [ldV(2)], 5: [ldV(3)], 7: [advT, advP], 9: [wrapP, m0K], 11: [ldK(0)], 15: [ldK(1)]}
    if DA == 6:
        XB = {1: [ldV(2)], 5: [ldV(3)], 7: [advT, advP], 9: [wrapP], 11: [m0K], 13: [ldK(0)], 15: [ldK(1)]}
    WP = wp
    def phaseA(par, qk, ex):
        if not qk:
            k.wait(lgkm=0)
            for f in range(DA): rd(f, True)
            for n in range(16, 32):
                for sub in ex:
                    soft_exp(sub, par, n)
                    if n % 2 == 0: soft_cvt(sub, par, n)
            return
        for f in range(16):
            kb, ds = f >> 2, f & 3
            if f % WP == 0: k.wait(lgkm=DA - WP)
            for j, sub in enumerate(qk):
                xs = ex if len(qk) == 1 else [sub]
                for qb in range(2):
                    d = V(Sreg(sub, 1 - par) + qb * 16 + kb * 4, 4)
                    mf(d, A(FR + f * 4, 4), V(Qreg(sub, qb, ds), 4), V(Ngm(sub, qb), 4) if ds == 0 else d)
                    if qb == 0:
                        for x in xs: soft_exp(x, par, 16 + f)
                if j == 0:
                    nf = f + DA
                    if nf < 16: rd(nf, False)
                    else: rd(nf - 16, True)
                if f % 2 == 0:
                    for x in xs: soft_cvt(x, par, 16 + f)
                if j == len(qk) - 1:
                    for fn in XA.get(f, []): fn()
    def phaseB(par, pv, exn, bar="always", tailops=()):
        extra = list(tailops)
        for f in range(16):
            k32, db = f >> 3, f & 7
            if f % WP == 0: k.wait(lgkm=DA - WP if bar == "always" else max(0, min(DA - WP, 16 - f - WP)))
            for j, sub in enumerate(pv):
                for qb in range(2):
                    d = A(OA + sub * 64 + (db * 2 + qb) * 4, 4)
                    mf(d, A(FR + f * 4, 4), V(Sreg(sub, par) + qb * 16 + k32 * 8, 4), d)
                    if qb == 0 and sub in exn: soft_exp(sub, 1 - par, f)
                if j == 0:
                    nf = f + DA
                    if nf == 16:
                        if bar == "always":
                            k.wait(vm=16); k.op("s_barrier")
                        elif bar == "w01":
                            lab = k.newlabel("nobar")
                            k.op("s_cmp_ge_u32", S(sW), 2); k.op("s_cbranch_scc1", lab)
                            k.wait(vm=8); k.op("s_barrier")
                            k.label(lab)
                        k.op("v_add_u32", V(vA), S(sNx), V(vL16))
                    if bar == "always" or nf < 16:
                        if nf < 16: rd(nf, True)
                        else: rd(nf - 16, False)
                if f == 0: soft_cvt(sub, par, 32)
                elif f % 2 == 0 and sub in exn: soft_cvt(sub, 1 - par, f)
                if f % 4 == 3:
                    qb = (f >> 2) & 1
                    d = V(Lac(sub, qb), 4)
                    mf(d, V(ON1, 4), V(Sreg(sub, par) + qb * 16 + k32 * 8, 4), d)
                if j == len(pv) - 1 and bar == "always":
                    for fn in XB.get(f, []): fn()
                    if f in (3, 13, 14) and extra: extra.pop(0)()
        for fn in extra: fn()
    def nx_items():
        return [lambda: k.op("s_add_u32", S(sT), S(sT), 1),
                lambda: k.op("s_add_u32", S(sNx), S(sNx), 32768),
                lambda: (k.op("s_cmp_eq_u32", S(sNx), 163840), k.op("s_cselect_b32", S(sNx), 0, S(sNx)))]
    def rowmax(sub, par, qb, dst):
        s0 = Sreg(sub, par) + 16 * qb
        k.op("v_max3_f32", V(dst), V(s0), V(s0 + 1), V(s0 + 2))
        for e in range(3, 15, 2): k.op("v_max3_f32", V(dst), V(dst), V(s0 + e), V(s0 + e + 1))
        k.op("v_max_f32", V(dst), V(dst), V(s0 + 15))
        for sw in ("v_permlane16_swap_b32", "v_permlane32_swap_b32"):
            k.op("v_mov_b32", V(vT + 1), V(dst))
            k.nop(2)
            k.op(sw, V(dst), V(vT + 1))
            k.op("v_max_f32", V(dst), V(dst), V(vT + 1))
    slow_sites = {}
    def epilogue(sub, site):
        t = Sreg(sub, 0)
        k.nop(8)
        k.op("v_max_f32", V(vT), V(Lac(sub, 0)), V(Lac(sub, 1)))
        k.op("v_add_f32", V(vT + 1), V(Lac(sub, 0)), V(Lac(sub, 1)))
        k.op("v_cmp_nle_f32", "vcc", V(vT + 1), V(21))
        k.op("s_mov_b32", S(sRet), site)
        k.op("s_cbranch_vccnz", f"k2_slow_{sub}")
        lab = f"k2_ret_{sub}_{site}"
        k.label(lab)
        slow_sites.setdefault(sub, []).append((site, lab))
        k.op("v_rcp_f32", V(vT + 3), V(Lac(sub, 0)))
        k.op("v_rcp_f32", V(vT + 4), V(Lac(sub, 1)))
        for qb in range(2):
            if qb: k.op("s_add_u32", S(sT0), S(sCa if sub == 0 else sCb), 131072)
            for ks in range(4):
                b = t + (qb * 4 + ks) * 8
                for half in range(2):
                    for i in range(4):
                        k.op("v_accvgpr_read_b32", V(b + 4 * half + i), A(OA + sub * 64 + ((2 * ks + half) * 2 + qb) * 4 + i))
                for i in range(0, 8, 2):
                    k.op("v_pk_mul_f32", P(b + i), P(b + i), P(vT + 3), mods="op_sel_hi:[1,0]" if qb == 0 else "op_sel:[0,1]")
                for i in range(4): k.op("v_cvt_pk_bf16_f32", V(b + i), V(b + 2 * i), V(b + 2 * i + 1))
                k.op("buffer_store_dwordx4", V(b, 4), V(vL16), S(sWS, 4), S(sT0 if qb else (sCa if sub == 0 else sCb)),
                     mods=f"offen offset:{ks*1024}" + (" sc1" if fuse3 else ""))
    k.op("v_mov_b32", V(21), S(sThr))
    k.op("v_add_u32", V(vT), 32768, V(vL16))
    for f in range(16): k.op("ds_read_b128", A(f * 4, 4), V(vT), mods=f"offset:{f*1024}")
    zi = 0
    for f in range(16):
        kb, ds = f >> 2, f & 3
        k.wait(lgkm=15 - f)
        for sub in range(2):
            for qb in range(2):
                d = V(Sreg(sub, 0) + qb * 16 + kb * 4, 4)
                mf(d, A(f * 4, 4), V(Qreg(sub, qb, ds), 4), "0" if ds == 0 else d)
                for _ in range(2):
                    k.op("v_accvgpr_write_b32", A(OA + zi), 0); zi += 1
    k.wait(vm=0 if fuse3 else 12)
    k.op("s_barrier")
    if fuse3:
        k.op("s_lshl_b32", S(sT0), S(sP), 8)
        k.op("s_lshl_b32", S(sT1), S(sH), 2)
        k.op("s_add_u32", S(sT0), S(sT0), S(sT1))
        k.op("s_add_u32", S(sT0), S(sT0), FLAG2_OFF + 128)
        one_lane_store(k, sW, sWS, [sT0], 1, vT + 4)
    m0K()
    k.op("v_add_u32", V(vA), 65536, V(vL16))
    ldK(0)(); ldK(1)()
    for f in range(DA): rd(f, False)
    lab = k.newlabel("nomask0")
    k.op("s_cmp_lg_u32", S(sNa), 1); k.op("s_cbranch_scc1", lab)
    mask_block(0, 0)
    k.label(lab)
    for sub in range(2):
        for qb in range(2):
            rowmax(sub, 0, qb, vT + 2)
            n0 = Ngm(sub, qb)
            for i in range(4): k.op("v_sub_f32", V(n0 + i), 0, V(vT + 2))
            for e in range(0, 16, 2): k.op("v_pk_add_f32", P(Sreg(sub, 0) + 16 * qb + e), P(Sreg(sub, 0) + 16 * qb + e), P(n0))
    for n in range(16):
        for sub in range(2):
            soft_exp(sub, 0, n)
        for sub in range(2):
            if n % 2 == 0 and n: soft_cvt(sub, 0, n)
    def pf_k3():
        load_srd(k, sWQ, "wo", 86); load_srd(k, sW1, "w2", 96)
        k.op("s_bfe_u32", S(sT0), "s2", "0x20001")
        k.op("s_lshr_b32", S(sT2), "s2", 3)
        k.op("s_lshl_b32", S(sT2), S(sT2), 2)
        k.op("s_add_u32", S(sT2), S(sT2), S(sW))
        k.op("s_lshl_b32", S(sT1), S(sT0), 20)
        k.op("s_lshl_b32", S(sSo), S(sT2), 13)
        k.op("s_add_u32", S(sT1), S(sT1), S(sSo))
        k.op("v_lshlrev_b32", V(vT), 7, V(vL))
        k.op("buffer_load_dword", V(12), V(vT), S(sWQ, 4), S(sT1), mods="offen", dummy=True)
        k.op("s_mul_i32", S(sT1), S(sT0), 384 * 1024)
        k.op("s_mul_i32", S(sT0), S(sT2), 3072)
        k.op("s_add_u32", S(sT1), S(sT1), S(sT0))
        k.op("v_and_b32", V(vT + 2), 31, V(vL))
        k.op("v_lshlrev_b32", V(vT + 2), 7, V(vT + 2))
        k.op("buffer_load_dword", V(12), V(vT + 2), S(sW1, 4), S(sT1), mods="offen", dummy=True)
        pf_code(k, sB1, "k3_kernel", "k3_end-k3_kernel", vT, vL, sSo, 12)
    if pf3 == 3: pf_k3()
    stp.stamp()
    k.op("s_cmp_lt_u32", 1, S(sNa))
    k.op("s_cbranch_scc0", "k2_DL0")
    ool = []
    sl_hooks = []
    def maskif(sub, par):
        lab, lab2 = k.newlabel("nomask"), k.newlabel("domask")
        k.op("s_cmp_eq_u32", S(sT), S(sNa if sub == 0 else sNb)); k.op("s_cbranch_scc1", lab2)
        k.label(lab)
        ool.append((lab2, lab, sub, par))
    for par in range(2):
        k.label(f"k2_DD{par}")
        phaseA(par, [0, 1], [0, 1])
        maskif(0, 1 - par)
        phaseB(par, [0, 1], [0, 1], tailops=nx_items())
        k.op("s_cmp_le_u32", S(sT), S(sNa))
        k.op("s_cbranch_scc0", f"k2_DL{1-par}")
        if par == 1: k.op("s_branch", "k2_DD0")
    for par in range(2):
        k.label(f"k2_DL{par}")
        phaseA(par, [1], [0, 1])
        phaseB(par, [0, 1], [1], tailops=nx_items())
        epilogue(0, par)
        if pf3 == 2: pf_k3()
        k.op("s_branch", f"k2_SS{1-par}")
    for par in range(2):
        k.label(f"k2_SS{par}")
        phaseA(par, [1], [1])
        maskif(1, 1 - par)
        phaseB(par, [1], [1], tailops=nx_items())
        k.op("s_cmp_le_u32", S(sT), S(sNb))
        k.op("s_cbranch_scc0", f"k2_SL{1-par}")
        if par == 1: k.op("s_branch", "k2_SS0")
    for par in range(2):
        k.label(f"k2_SL{par}")
        if pf3 == 1: pf_k3()
        if early3: sl_hooks.append(len(k.ins))
        phaseA(par, [], [1])
        k.nop(2)
        phaseB(par, [1], [], bar="w01")
        if par == 0: k.op("s_branch", "k2_fin")
    k.label("k2_fin")
    stp.stamp()
    if early3:
        e2, eMt, eNt, eS, eRot, eAo, eWc, eAc, eMa = 12, 16, 17, 18, 19, 28, 29, 30, 31
        ev = 7
        def e_setup():
            load_srd(k, e2, "w2", 96)
            k.op("s_bfe_u32", S(eS), "s2", "0x20001")
            k.op("s_and_b32", S(eMt), "s2", 1)
            k.op("s_lshl_b32", S(eMt), S(eMt), 3)
            k.op("s_bfe_u32", S(eNt), "s2", "0x30003")
            k.op("s_add_u32", S(eMt), S(eMt), S(eNt))
            k.op("s_lshr_b32", S(eNt), "s2", 6)
            k.op("s_add_u32", S(eRot), S(eMt), S(eNt))
            k.op("s_and_b32", S(eRot), S(eRot), 3)
            k.op("s_lshl_b32", S(eAo), S(eMt), 3)
            k.op("s_lshl_b32", S(eWc), S(sW), 1)
            k.op("s_add_u32", S(eAo), S(eAo), S(eWc))
            k.op("s_mul_i32", S(eAo), S(eAo), 44032)
            k.op("s_add_u32", S(eAo), S(eAo), HF_OFF)
            k.op("v_mov_b32", V(ev), V(vL16))
            k.op("v_add_u32", V(ev + 1), 44032 - 1024, V(vL16))
            k.op("v_lshlrev_b32", V(ev + 2), 1, V(g))
            k.op("v_xor_b32", V(ev + 2), V(ev + 2), V(l15))
            k.op("v_lshlrev_b32", V(ev + 2), 4, V(ev + 2))
            k.op("v_lshl_add_u32", V(ev + 2), V(g), 10, V(ev + 2))
            k.op("s_lshl_b32", S(eWc), S(eNt), 8)
            k.op("s_lshl_b32", S(eAc), S(sW), 13)
            k.op("s_add_u32", S(eWc), S(eWc), S(eAc))
            k.op("v_add_u32", V(ev + 2), S(eWc), V(ev + 2))
            k.op("s_and_b32", S(eWc), S(sW), 1)
            k.op("s_lshl_b32", S(eWc), S(eWc), 7)
            k.op("v_xor_b32", V(ev + 2), S(eWc), V(ev + 2))
            k.op("v_add_u32", V(ev + 3), 4096 - 1024, V(ev + 2))
            k.op("s_lshl_b32", S(eMa), S(sW), 11)
            k.op("s_sub_u32", S(eWc), 15, S(eMt))
            k.op("s_min_u32", S(eMt), S(eMt), S(eWc))
            k.op("s_lshl_b32", S(eMt), S(eMt), 8)
            k.op("s_add_u32", S(eMt), S(eMt), FLAG2_OFF + 128)
            k.op("v_and_b32", V(ev + 4), 7, V(vL))
            k.op("s_lshl_b32", S(eWc), S(eS), 3)
            k.op("v_add_u32", V(ev + 4), S(eWc), V(ev + 4))
            k.op("v_lshlrev_b32", V(ev + 4), 2, V(ev + 4))
        e_poll = lambda: k.op("buffer_load_dword", V(ev + 5), V(ev + 4), S(sWS, 4), S(eMt), mods="offen sc1")
        def e_issue(tag):
            k.wait(vm=8, lgkm=0)
            spin_until(k, f"k2_sh{tag}", e_poll, lambda: k.op("v_cmp_ne_u32", "vcc", 1, V(ev + 5)), eAc, sleep=8)
            k.op("s_barrier")
            for st in range(3):
                k.op("s_add_u32", S(eNt), S(eRot), st)
                k.op("s_cmp_ge_u32", S(eNt), 3)
                k.op("s_cselect_b32", S(eWc), 3, 0)
                k.op("s_sub_u32", S(eNt), S(eNt), S(eWc))
                k.op("s_mul_i32", S(eWc), S(eS), 6)
                k.op("s_add_u32", S(eNt), S(eNt), S(eWc))
                k.op("s_lshl_b32", S(eWc), S(eNt), 16)
                k.op("s_lshl_b32", S(eNt), S(eNt), 1)
                for u in range(2):
                    k.op("s_add_u32", "m0", S(eMa), st * 32768 + u * 16384 + 8192)
                    k.op("s_add_u32", S(eAc), S(eNt), u)
                    for j in range(2):
                        k.op("buffer_load_dwordx4", V(ev + 2 + j), S(e2, 4), S(eWc), mods=f"offen offset:{j*1024} lds")
                    k.op("s_add_u32", "m0", S(eMa), st * 32768 + u * 16384)
                    k.op("s_add_u32", S(eWc), S(eWc), 32768)
                    k.op("s_min_u32", S(eAc), S(eAc), 42)
                    k.op("s_lshl_b32", S(eAc), S(eAc), 10)
                    k.op("s_add_u32", S(eAc), S(eAc), S(eAo))
                    for j in range(2):
                        k.op("buffer_load_dwordx4", V(ev + j), S(sWS, 4), S(eAc), mods=f"offen offset:{j*1024} sc1 lds")
        for pos in reversed(sl_hooks):
            n0 = len(k.ins)
            e_setup(); e_poll()
            blk = k.ins[n0:]; del k.ins[n0:]
            k.ins[pos:pos] = blk
        epilogue(1, 0)
        e_issue(0)
    else:
        epilogue(1, 0)
    if stamps:
        k.wait(vm=0, lgkm=0)
        stp.stamp()
        stp.flush(sWS, sW, 13)
    if fuse3:
        k.op("s_lshl_b32", S(sT0), S(sP), 8)
        k.op("s_lshl_b32", S(sT1), S(sH), 2)
        k.op("s_add_u32", S(sT0), S(sT0), S(sT1))
        k.op("s_add_u32", S(96), S(sT0), FLAG2_OFF)
        k.wait(lgkm=0)
        k.raw("  s_branch k3_kernel")
    k.op("s_endpgm")
    for (lab2, lab, sub, par) in ool:
        k.label(lab2)
        k.nop(8)
        mask_block(sub, par)
        k.op("s_branch", lab)
    sU, sUo = 60, 61
    for sub, sites in sorted(slow_sites.items()):
        s0 = Sreg(sub, 0)
        m = [Ngm(sub, 0), Ngm(sub, 1)]
        k.label(f"k2_slow_{sub}")
        k.nop(8)
        for i in range(64): k.op("v_accvgpr_write_b32", A(OA + sub * 64 + i), 0)
        for qb in range(2):
            k.op("v_mov_b32", V(m[qb]), f32(-1e30))
            for i in range(4): k.op("v_mov_b32", V(Lac(sub, qb) + i), 0)
        k.op("s_mov_b32", S(sU), 1)
        k.op("s_mov_b32", S(sUo), 0)
        loop = f"k2_slowloop_{sub}"
        k.label(loop)
        for c in range(4):
            k.op("s_add_u32", S(sLd), S(sUo), c * 4096)
            for i in range(4): k.op("buffer_load_dwordx4", A((c * 4 + i) * 4, 4), V(vL16), S(sK, 4), S(sLd), mods=f"offen offset:{i*1024}" + SC)
        k.wait(vm=0)
        for f in range(16):
            kb, ds = f >> 2, f & 3
            for qb in range(2):
                d = V(s0 + qb * 16 + kb * 4, 4)
                mf(d, A(f * 4, 4), V(Qreg(sub, qb, ds), 4), "0" if ds == 0 else d)
        for c in range(4):
            k.op("s_add_u32", S(sLd), S(sUo), c * 4096 + 16384)
            for i in range(4): k.op("buffer_load_dwordx4", A((c * 4 + i) * 4, 4), V(vL16), S(sV, 4), S(sLd), mods=f"offen offset:{i*1024}" + SC)
        lab = k.newlabel("snomask")
        k.op("s_cmp_lg_u32", S(sU), S(sNa if sub == 0 else sNb)); k.op("s_cbranch_scc1", lab)
        mask_block(sub, 0)
        k.label(lab)
        for qb in range(2):
            al = m[qb] + 1
            rowmax(sub, 0, qb, vT + 3)
            k.op("v_max_f32", V(vT + 3), V(vT + 3), V(m[qb]))
            k.op("v_sub_f32", V(al), V(m[qb]), V(vT + 3))
            k.op("v_mov_b32", V(m[qb]), V(vT + 3))
            k.op("v_exp_f32", V(al), V(al))
            for e in range(16): k.op("v_sub_f32", V(s0 + 16 * qb + e), V(s0 + 16 * qb + e), V(m[qb]))
            for i in range(4): k.op("v_mul_f32", V(Lac(sub, qb) + i), V(Lac(sub, qb) + i), V(al))
            for db in range(8):
                for i in range(4):
                    ar = OA + sub * 64 + (db * 2 + qb) * 4 + i
                    k.op("v_accvgpr_read_b32", V(vT + (i & 1)), A(ar))
                    k.op("v_mul_f32", V(vT + (i & 1)), V(vT + (i & 1)), V(al))
                    k.op("v_accvgpr_write_b32", A(ar), V(vT + (i & 1)))
        for n in range(33):
            if n < 32: soft_exp(sub, 0, n)
            else: k.nop(1)
            if n % 2 == 0 and n: soft_cvt(sub, 0, n)
        k.wait(vm=0)
        k.nop(1)
        for f in range(16):
            k32, db = f >> 3, f & 7
            for qb in range(2):
                d = A(OA + sub * 64 + (db * 2 + qb) * 4, 4)
                mf(d, A(f * 4, 4), V(s0 + qb * 16 + k32 * 8, 4), d)
            if f % 4 == 3:
                qb = (f >> 2) & 1
                d = V(Lac(sub, qb), 4)
                mf(d, V(ON1, 4), V(s0 + qb * 16 + k32 * 8, 4), d)
        k.op("s_add_u32", S(sUo), S(sUo), 16384)
        k.op("s_add_u32", S(sU), S(sU), 1)
        k.nop(8)
        k.op("s_cmp_le_u32", S(sU), S(sNa if sub == 0 else sNb))
        k.op("s_cbranch_scc1", loop)
        for (site, lab) in sites[:-1]:
            k.op("s_cmp_eq_u32", S(sRet), site); k.op("s_cbranch_scc1", lab)
        k.op("s_branch", sites[-1][1])
    k.label("k2_end")
    k.op("s_endpgm")
    return k

if __name__ == "__main__":
    k = build_k2()
    for e in k.check_hazards(): print(e)
    for e in k.check_waits(): print(e)
    print(k.maxregs(), len(k.ins))
```

```python
from common import *
from k1_v1 import layernorm
import copy

def build_k1(store_mods=" sc1", stamps=False, pf2=True, pf2at=9, D=5, pfself=True, krot=3, npark=16, **_):
    k = Kern("k1_kernel")
    vq, lq = Q(k, "vmcnt", 63), Q(k, "lgkmcnt", 15)
    stp = Stamps(k, stamps, 60, 0, lq, maxn=10)
    sWS, sC, sWK, sWV, sX = 8, 12, 16, 20, 24
    sT0, sT1, sT2, sKV, sW, sH, sJ = 28, 29, 30, 31, 32, 33, 35
    sSo, sSo2, sAo, sSt, sW8k, sR, sW4k = 36, 37, 42, 43, 44, 45, 48
    sFL, sFA, sF2, sF3, sDb = 53, 54, 55, 56, 4
    CHA = 84
    vL, vL16 = 1, 2
    TA, VA, VW, AAr, WF = 16, 32, 36, 40, 52
    AFB, X0, X1, VZ, VW2 = 128, 224, 228, 232, 46
    PK = 192
    g, l15, r_, cc, g1, t0, t1, p8 = 4, 5, 6, 7, 8, 9, 10, 11
    k.op("s_cmp_ge_u32", "s2", 256)
    k.op("s_cbranch_scc1", "k1_end")
    if pfself:
        pf_self(k, "k1_end", vt=14); vq.issue()
    k.op("s_load_dwordx4", S(84, 4), S(0, 2), KA["x"])
    k.op("s_load_dwordx4", S(88, 4), S(0, 2), KA["wuk"])
    k.op("s_load_dwordx4", S(92, 4), S(0, 2), KA["dbg"])
    k.op("s_load_dwordx2", S(96, 2), S(0, 2), KA["wq"])
    k.op("s_load_dwordx2", S(98, 2), S(0, 2), KA["w1"])
    k.op("v_and_b32", V(vL), 63, "v0")
    k.op("v_lshrrev_b32", V(t0), 6, "v0")
    k.op("s_and_b32", S(sT0), "s2", 7)
    k.op("v_readfirstlane_b32", S(sW), V(t0))
    k.op("s_lshr_b32", S(sT1), "s2", 3)
    k.op("s_and_b32", S(sT2), S(sT1), 3)
    k.op("s_lshl_b32", S(sH), S(sT0), 2)
    k.op("s_add_u32", S(sH), S(sH), S(sT2))
    k.op("s_lshr_b32", S(sJ), S(sT1), 2)
    k.op("s_lshr_b32", S(sKV), S(sW), 1)
    k.op("v_lshlrev_b32", V(vL16), 4, V(vL))
    k.op("v_lshrrev_b32", V(g), 4, V(vL))
    k.op("v_and_b32", V(l15), 15, V(vL))
    k.op("v_bfe_u32", V(r_), V(vL), 2, 2)
    k.op("v_and_b32", V(cc), 3, V(vL))
    k.op("v_and_b32", V(g1), 1, V(g))
    k.op("v_and_b32", V(p8), 7, V(vL))
    k.op("s_lshl_b32", S(sW4k), S(sW), 12)
    k.op("s_lshl_b32", S(sW8k), S(sW), 13)
    k.op("v_lshlrev_b32", V(t0), 1, V(g))
    k.op("v_xor_b32", V(t0), V(t0), V(l15))
    k.op("v_lshlrev_b32", V(t0), 4, V(t0))
    k.op("v_lshl_add_u32", V(t0), V(g), 13, V(t0))
    k.op("s_lshl_b32", S(sT0), S(sW), 17)
    k.op("s_lshl_b32", S(sT1), S(sH), 8)
    k.op("s_add_u32", S(sT0), S(sT0), S(sT1))
    k.op("v_add_u32", V(VW), S(sT0), V(t0))
    k.op("v_add_u32", V(VW + 1), 32768 - 1024, V(VW))
    k.op("v_xor_b32", V(VW + 2), 128, V(VW))
    k.op("v_add_u32", V(VW + 2), 2 * (32768 - 1024), V(VW + 2))
    k.op("v_add_u32", V(VW + 3), 32768 - 1024, V(VW + 2))
    k.op("s_and_b32", S(sT0), S(sW), 1)
    k.op("s_lshl_b32", S(sT0), S(sT0), 7)
    k.op("v_xor_b32", V(t0), S(sT0), V(t0))
    k.op("s_lshl_b32", S(sT0), S(sW), 16)
    k.op("s_add_u32", S(sT0), S(sT0), S(sT1))
    k.op("v_add_u32", V(VW2), S(sT0), V(t0))
    k.op("v_add_u32", V(VW2 + 1), 32768 - 1024, V(VW2))
    k.op("v_lshrrev_b32", V(t1), 3, V(vL))
    k.op("v_xor_b32", V(t0), V(p8), V(g))
    k.op("v_lshlrev_b32", V(t0), 4, V(t0))
    k.op("v_lshl_add_u32", V(t0), V(t1), 10, V(t0))
    k.op("s_lshl_b32", S(sAo), S(sJ), 18)
    k.op("s_lshl_b32", S(sT0), S(sW), 16)
    k.op("s_add_u32", S(sAo), S(sAo), S(sT0))
    k.op("v_add_u32", V(VA), S(sAo), V(t0))
    k.op("v_xor_b32", V(VA + 1), 64, V(VA))
    k.op("v_add_u32", V(VA + 1), 7168, V(VA + 1))
    k.op("v_add_u32", V(VA + 2), 2 * 7168, V(VA))
    k.op("v_add_u32", V(VA + 3), 2 * 7168, V(VA + 1))
    sKr, sW2k = 49, 50
    k.op("s_add_u32", S(sKr), S(sJ), S(sT2))
    k.op("s_and_b32", S(sKr), S(sKr), krot)
    k.op("s_lshl_b32", S(sW2k), S(sW), 11)
    k.op("s_lshl_b32", S(sR), "s2", 3)
    k.op("s_lshl_b32", S(sT1), S(sW), 1)
    k.op("s_add_u32", S(sR), S(sR), S(sT1))
    k.op("s_lshl_b32", S(sR), S(sR), 10)
    k.wait(lgkm=0)
    stp.stamp()
    load_srd(k, sX, "x", 84)
    k.op("buffer_load_dwordx4", V(X0, 4), V(vL16), S(sX, 4), S(sR), mods="offen"); vq.issue("ln")
    k.op("buffer_load_dwordx4", V(X1, 4), V(vL16), S(sX, 4), S(sR), mods="offen offset:1024"); vq.issue("ln")
    load_srd(k, sC, "ckv", 86); load_srd(k, sWK, "wuk", 88); load_srd(k, sWV, "wuv", 90)
    def aslot(s): return 65536 + (s % 3) * 32768
    def wslot(ks): return (ks % 4) * 16384
    def dma_w_items(ks):
        it = []
        for kv in range(2):
            def setup(kv=kv):
                k.op("s_add_u32", "m0", S(sW2k), wslot(ks) + kv * 8192)
                if kv == 0:
                    k.op("s_xor_b32", S(sSo), S(sKr), ks >> 1)
                    k.op("s_lshl_b32", S(sSo), S(sSo), 19)
                    if ks & 1: k.op("s_add_u32", S(sSo), S(sSo), 262144)
                else: k.op("s_nop", 0)
            it.append(setup)
            for i in range(2):
                def f(i=i, kv=kv):
                    k.op("buffer_load_dwordx4", V(VW2 + i), S(sWV if kv else sWK, 4), S(sSo), mods=f"offen offset:{i*1024} lds"); vq.issue(("W", ks))
                it.append(f)
        return it
    def dma_a_items(s, u):
        it = []
        def setup():
            k.op("s_add_u32", "m0", S(sW8k), aslot(s) + u * 4096)
            k.op("s_xor_b32", S(sSo), S(sKr), s)
            k.op("s_lshl_b32", S(sSo), S(sSo), 7)
            if u: k.op("s_add_u32", S(sSo), S(sSo), 32768)
        it.append(setup)
        for i in range(4):
            def f(i=i):
                k.op("buffer_load_dwordx4", V(VA + i), S(sC, 4), S(sSo), mods=f"offen offset:{i*1024} lds"); vq.issue(("A", s))
            it.append(f)
        return it
    for f in dma_w_items(0) + dma_a_items(0, 0) + dma_a_items(0, 1): f()
    late = dma_w_items(1) + dma_w_items(2) + dma_a_items(1, 0) + dma_a_items(1, 1)
    stp.stamp()
    load_srd(k, sWS, "ws", 94)
    k.op("v_lshl_or_b32", V(t1), V(g1), 2, V(r_))
    k.op("v_lshl_add_u32", V(t0), V(g), 3, V(r_))
    k.op("v_lshlrev_b32", V(t0), 8, V(t0))
    k.op("v_lshl_add_u32", V(t0), V(cc), 3, V(t0))
    k.op("s_lshl_b32", S(sT0), S(sKV), 13)
    k.op("v_add_u32", V(t0), S(sT0), V(t0))
    for nb in range(8):
        k.op("v_xor_b32", V(12), nb, V(t1))
        k.op("v_lshl_add_u32", V(TA + nb), V(12), 5, V(t0))
    k.op("v_lshrrev_b32", V(t1), 1, V(l15))
    k.op("v_xor_b32", V(t1), V(t1), V(g))
    k.op("v_lshlrev_b32", V(t1), 4, V(t1))
    k.op("v_lshl_add_u32", V(t1), V(l15), 7, V(t1))
    k.op("s_and_b32", S(sT0), S(sW), 1)
    k.op("s_lshl_b32", S(sT0), S(sT0), 14)
    k.op("s_add_u32", S(sT0), S(sT0), 65536)
    k.op("v_add_u32", V(AAr), S(sT0), V(t1))
    k.op("v_xor_b32", V(AAr + 1), 64, V(AAr))
    k.op("v_add_u32", V(AAr + 2), 65536, V(AAr))
    k.op("v_add_u32", V(AAr + 3), 65536, V(AAr + 1))
    k.op("s_lshl_b32", S(sSt), S(sH), 19)
    k.op("s_lshl_b32", S(sT1), S(sJ), 16)
    k.op("s_add_u32", S(sSt), S(sSt), S(sT1))
    k.op("s_and_b32", S(sT1), S(sW), 1)
    k.op("s_lshl_b32", S(sT1), S(sT1), 15)
    k.op("s_add_u32", S(sSt), S(sSt), S(sT1))
    k.op("s_mov_b32", S(sT1), VF_OFF)
    k.op("s_cmp_eq_u32", S(sKV), 0)
    k.op("s_cselect_b32", S(sT1), KF_OFF, S(sT1))
    k.op("s_add_u32", S(sSt), S(sSt), S(sT1))
    vLd, vLz = VZ, VZ + 1
    k.op("v_mov_b32", V(vLz), 0)
    k.op("s_lshl_b32", S(sFL), "s2", 2)
    k.op("s_add_u32", S(sFL), S(sFL), FL_OFF)
    k.op("s_lshl_b32", S(sFA), S(sH), 7)
    k.op("s_lshl_b32", S(sT1), S(sJ), 2)
    k.op("s_add_u32", S(sFA), S(sFA), S(sT1))
    k.op("s_add_u32", S(sFA), S(sFA), FA_OFF)
    k.op("s_lshl_b32", S(sF2), S(sJ), 8)
    k.op("s_lshl_b32", S(sT1), S(sH), 2)
    k.op("s_add_u32", S(sF2), S(sF2), S(sT1))
    k.op("s_add_u32", S(sF2), S(sF2), FLAG2_OFF)
    k.op("s_and_b32", S(sT1), "s2", 1)
    k.op("s_lshl_b32", S(sF3), S(sT1), 13)
    k.op("s_bfe_u32", S(sT1), "s2", "0x30003")
    k.op("s_lshl_b32", S(sT1), S(sT1), 10)
    k.op("s_add_u32", S(sF3), S(sF3), S(sT1))
    k.op("s_lshr_b32", S(sT1), "s2", 6)
    k.op("s_lshl_b32", S(sT1), S(sT1), 8)
    k.op("s_add_u32", S(sF3), S(sF3), S(sT1))
    k.op("s_and_b32", S(sT1), "s2", 6)
    k.op("s_lshl_b32", S(sT1), S(sT1), 1)
    k.op("s_add_u32", S(sF3), S(sF3), S(sT1))
    k.op("s_add_u32", S(sF3), S(sF3), FLAG_OFF)
    k.op("s_add_u32", S(57), S(sF2), 128)
    one_lane_store(k, sW, sWS, [sFL, sFA, sF2, sF3, 57], 0, VZ + 4)
    k.op("s_mov_b32", S(sDb), S(92))
    k.op("s_and_b32", S(sDb + 1), S(93), "0xffff")
    k.op("s_mov_b32", S(sDb + 2), 256)
    k.op("s_mov_b32", S(sDb + 3), "0x20000")
    GB = 131072
    LN2 = 84
    vq.need("ln")
    k.op("s_lshl_b32", S(sT1), S(sW), 5)
    k.op("s_add_u32", S(sT1), S(sT1), GB)
    k.op("v_lshlrev_b32", V(vLd), 7, V(vL))
    k.op("v_add_u32", V(vLd), S(sT1), V(vLd))
    k.op("s_lshl_b32", S(sT1), S(sW), 4)
    k.op("s_add_u32", S(sT1), S(sT1), GB + 8192)
    k.op("v_mov_b32", V(VZ + 2), S(sT1))
    ln = Kern("ln")
    for r, X in enumerate((X0, X1)):
        layernorm(ln, X, LN2 + 4, LN2 + 8, LN2 + 16)
        layernorm(ln, LN2 + 4, LN2 + 24, LN2 + 8, LN2 + 16, stats_only=True)
        ln.op("ds_write_b128", V(vLd), V(LN2 + 4, 4), mods=f"offset:{16*r}")
        ln.op("ds_write_b64", V(VZ + 2), V(LN2 + 24, 2), mods=f"offset:{8*r}")
        ln.wait(lgkm=0)
    for i, ins in enumerate(ln.ins):
        k.ins.append(ins)
        if i % 12 == 5 and late: late.pop(0)()
    for f in late: f()
    k.op("s_lshl_b32", S(sT1), S(sW), 11)
    k.op("s_add_u32", S(sT1), S(sT1), GB)
    k.op("v_add_u32", V(vLd), S(sT1), V(vL16))
    k.op("v_lshrrev_b32", V(VZ + 3), 3, V(vL))
    k.op("v_lshlrev_b32", V(VZ + 3), 8, V(VZ + 3))
    k.op("v_lshl_add_u32", V(VZ + 3), V(p8), 4, V(VZ + 3))
    k.op("s_lshr_b32", S(sR + 1), "s2", 1)
    k.op("s_lshl_b32", S(sR + 1), S(sR + 1), 14)
    k.op("s_and_b32", S(sT1), "s2", 1)
    k.op("s_lshl_b32", S(sT1), S(sT1), 7)
    k.op("s_add_u32", S(sR + 1), S(sR + 1), S(sT1))
    k.op("s_add_u32", S(sR + 1), S(sR + 1), S(sW4k))
    k.op("s_lshl_b32", S(sR + 2), "s2", 6)
    k.op("s_add_u32", S(sR + 2), S(sR + 2), YF_OFF)
    k.op("v_and_b32", V(VZ + 2), 48, V(vL16))
    k.op("v_add_u32", V(LN2 + 30), GB + 8192, V(VZ + 2))
    k.op("s_barrier")
    k.op("ds_read_b128", V(LN2, 4), V(vLd))
    k.op("ds_read_b128", V(LN2 + 4, 4), V(vLd), mods="offset:1024")
    k.op("ds_read_b128", V(LN2 + 8, 4), V(LN2 + 30))
    k.wait(lgkm=0)
    k.op("buffer_store_dwordx4", V(LN2, 4), V(VZ + 3), S(sWS, 4), S(sR + 1), mods="offen sc1"); vq.issue("lnst")
    k.op("buffer_store_dwordx4", V(LN2 + 4, 4), V(VZ + 3), S(sWS, 4), S(sR + 1), mods="offen offset:2048 sc1"); vq.issue("lnst")
    k.op("buffer_store_dwordx4", V(LN2 + 8, 4), V(VZ + 2), S(sWS, 4), S(sR + 2), mods="offen sc1"); vq.issue("lnst")

    def pf_k2():
        k.op("s_lshr_b32", S(sT1), "s2", 3)
        k.op("s_lshl_b32", S(sT1), S(sT1), 2)
        k.op("s_add_u32", S(sT1), S(sT1), S(sW))
        k.op("s_and_b32", S(sT0), "s2", 7)
        load_srd(k, sX, "wq", 96)
        k.op("v_bfe_u32", V(12), V(vL), 3, 2)
        k.op("v_lshlrev_b32", V(13), 13, V(12))
        k.op("v_lshl_add_u32", V(13), V(p8), 7, V(13))
        k.op("s_lshl_b32", S(57), S(sT1), 15)
        k.op("s_lshl_b32", S(sT2), S(sT0), 10)
        k.op("s_add_u32", S(57), S(57), S(sT2))
        k.op("buffer_load_dword", V(15), V(13), S(sX, 4), S(57), mods="offen", dummy=True); vq.issue()
        load_srd(k, sX, "w1", 98)
        k.op("v_mul_u32_u24", V(13), 2752, V(12))
        k.op("v_lshl_add_u32", V(13), V(p8), 6, V(13))
        k.op("s_mul_i32", S(57), S(sT1), 4 * 2752)
        k.op("s_mul_i32", S(sT2), S(sT0), 384)
        k.op("s_add_u32", S(57), S(57), S(sT2))
        k.op("buffer_load_dword", V(15), V(13), S(sX, 4), S(57), mods="offen", dummy=True); vq.issue()
        k.op("s_lshl_b32", S(57), S(sT1), 13)
        pf_code(k, sX, "k2_kernel", "k2_slow_0-k2_kernel", 13, vL, 57, 15); vq.issue()

    k.op("s_cmp_lg_u32", S(sKV), 0)
    k.op("s_cbranch_scc1", "k1_V")
    vq0, lq0, n0 = copy.deepcopy((vq.q, vq.ever)), copy.deepcopy((lq.q, lq.ever)), stp.n
    for kv in range(2):
        if kv:
            k.label("k1_V")
            vq.q, vq.ever = copy.deepcopy(vq0); lq.q, lq.ever = copy.deepcopy(lq0); stp.n = n0
        onst = lambda i: vq.issue() if i.kind == "vstore" else None
        q1, q2 = FillQ(k), FillQ(k, on_emit=onst)
        K2VW, K2VW1, sLd = 108, 112, 98
        def k2_setup():
            e = Kern("e")
            load_srd(e, 12, "wq", 96); load_srd(e, 16, "w1", 98)
            for i in range(4): e.op("v_mov_b32", V(K2VW + i), V(VW + i))
            e.op("v_lshlrev_b32", V(84), 1, V(g1))
            e.op("v_xor_b32", V(84), V(84), V(p8))
            e.op("v_lshlrev_b32", V(84), 4, V(84))
            e.op("v_lshrrev_b32", V(85), 3, V(vL))
            e.op("v_mul_u32_u24", V(85), 2752, V(85))
            e.op("s_mul_i32", S(38), S(sW), 32 * 2752)
            e.op("s_mul_i32", S(39), S(sH), 96)
            e.op("s_add_u32", S(38), S(38), S(39))
            e.op("v_add_u32", V(85), S(38), V(85))
            e.op("v_add_u32", V(K2VW1), V(85), V(84))
            e.op("v_xor_b32", V(84), 64, V(84))
            e.op("v_add_u32", V(K2VW1 + 1), V(85), V(84))
            e.op("v_add_u32", V(K2VW1 + 1), 8 * 2752 - 1024, V(K2VW1 + 1))
            e.op("v_add_u32", V(K2VW1 + 2), 2 * (8 * 2752 - 1024), V(K2VW1))
            e.op("v_add_u32", V(K2VW1 + 3), 2 * (8 * 2752 - 1024), V(K2VW1 + 1))
            e.op("s_lshl_b32", S(38), S(sJ), 17)
            e.op("s_lshl_b32", S(39), S(sW), 15)
            e.op("s_add_u32", S(sLd), S(38), S(39))
            e.op("s_add_u32", S(sLd + 1), S(sLd), 16384)
            e.op("s_sub_u32", S(sLd + 2), 1920 * 1024, S(38))
            e.op("s_add_u32", S(sLd + 2), S(sLd + 2), S(39))
            e.op("s_add_u32", S(sLd + 3), S(sLd + 2), 16384)
            return e
        def k2_pages():
            it = []
            for pg, (srd, vb, so) in enumerate([(16, K2VW1, 0), (12, K2VW, 0), (12, K2VW, 524288)]):
                def setup(pg=pg, so=so):
                    k.op("s_add_u32", "m0", S(sW4k), pg * 16384)
                    k.op("s_mov_b32", S(41), so)
                it.append(setup)
                for i in range(4):
                    def f(i=i, srd=srd, vb=vb):
                        k.op("buffer_load_dwordx4", V(vb + i), S(srd, 4), S(41), mods=f"offen offset:{i*1024} lds"); vq.issue()
                    it.append(f)
            return it
        def k2_xn(ks):
            it = []
            for rb in range(4):
                def f(rb=rb):
                    k.op("buffer_load_dwordx4", A((ks * 4 + rb) * 4, 4), V(vL16), S(sWS, 4), S(sLd + rb), mods=f"offen offset:{ks*1024} sc1"); vq.issue()
                it.append(f)
            return it
        def acc(rb, nb): return (rb * 8 + nb) * 4
        def chunk(c):
            if kv == 0: rb, ds = c >> 2, c & 3; return acc(rb, 2 * ds), acc(rb, 2 * ds + 1)
            kb, db = c >> 3, c & 7; return acc(2 * kb, db), acc(2 * kb + 1, db)
        def epi_kern(c, park=None):
            e = Kern("e")
            a, b = chunk(c)
            t = PK + 8 * (epi_n[0] % 4); epi_n[0] += 1
            for i in range(4): e.op("v_accvgpr_read_b32", V(t + i), A(a + i))
            for i in range(4): e.op("v_accvgpr_read_b32", V(t + 4 + i), A(b + i))
            d = t if park is None else park
            for i in range(4): e.op("v_cvt_pk_bf16_f32", V(d + i), V(t + 2 * i), V(t + 2 * i + 1))
            if park is None:
                e.op("s_add_u32", S(sSo2), S(sSt), c * 1024)
                e.op("buffer_store_dwordx4", V(t, 4), V(vL16), S(sWS, 4), S(sSo2), mods=f"offen{store_mods}")
            return e
        epi_n = [0]
        def ready_nb(c): return (2 * (c & 3) + 1) if kv == 0 else (c & 7)
        def zst():
            lab = k.newlabel("noz")
            k.op("v_mov_b32", V(VZ + 5), 1)
            k.op("s_cmp_lg_u32", S(sW), 0); k.op("s_cbranch_scc1", lab)
            k.op("s_mov_b64", "exec", 1)
            k.op("buffer_store_byte", V(VZ + 5), V(vLz), S(sDb, 4), "s2", mods="offen sc1")
            k.op("s_mov_b64", "exec", -1)
            k.label(lab)
        pz = lambda: k.op("buffer_load_dword", V(242), V(243), S(sDb, 4), 0, mods="offen sc1")
        pl = lambda: k.op("buffer_load_dword", V(241), V(240), S(sWS, 4), S(sFL), mods="offen sc1")
        def switch(ks):
            need = [("W", ks)] + ([("A", ks >> 1)] if ks % 2 == 0 else [])
            vq.need(*need, cnt=[4, 8][:len(need)])
            if ks == 3: vq.need("lnst", cnt=[3])
            k.op("s_barrier")
            if ks == 0: stp.stamp()
            if ks == 12:
                vq.need("pz")
                spin_until(k, f"k1_sz{kv}", pz, lambda: k.op("v_cmp_ne_u32", "vcc", "0x01010101", V(242)), sT1)
            if ks == 15:
                vq.need("pp")
                spin_until(k, f"k1_sp{kv}", pl, lambda: k.op("v_cmp_ne_u32", "vcc", 1, V(241)), sT1)
            q1.flush()
            if ks >= 1 and ks + 2 < 16:
                for f in dma_w_items(ks + 2): q1.add(f)
            sN = ((ks + 1) >> 1) + 1
            if ks >= 1 and sN < 8 and sN >= 2:
                for f in dma_a_items(sN, (ks + 1) & 1): q1.add(f)
            if ks == 2: q1.add(zst)
            if ks == 3: q1.add(lambda: one_lane_store(k, sW, sWS, [sFL], 1, VZ + 4))
            if ks == 10:
                def a():
                    k.op("v_lshlrev_b32", V(243), 2, V(vL)); pz(); vq.issue("pz")
                q1.add(a)
            if ks == 13:
                def a():
                    k.op("s_lshl_b32", S(sT1), S(sJ), 6)
                    k.op("s_sub_u32", S(sT2), 960, S(sT1))
                    k.op("v_mov_b32", V(240), S(sT1))
                    k.op("v_mov_b32", V(241), S(sT2))
                    k.op("v_cmp_eq_u32", "vcc", 0, V(g1))
                    k.op("s_mov_b32", S(sFL), FL_OFF)
                    k.nop(1)
                    k.op("v_cndmask_b32", V(240), V(241), V(240), "vcc")
                    k.op("v_lshl_add_u32", V(240), V(l15), 2, V(240))
                    pl(); vq.issue("pp")
                q1.add(a)
            if ks == 14: q1.add_kern(k2_setup())
            for rb in range(8):
                def f(rb=rb):
                    off = aslot(ks >> 1) - 65536
                    wn = off // 65536
                    k.op("ds_read_b128", V(AFB + (ks % 2) * 32 + rb * 4, 4), V(AAr + 2 * wn + (ks & 1)), mods=f"offset:{off - wn*65536 + rb*2048}")
                    lq.issue(("a", ks))
                qa.add(f)
        qa = FillQ(k)
        def rd_w(n, i):
            ks, nb = n >> 3, n & 7
            if nb == 0 and i == 0: switch(ks)
            k.op("ds_read_b64_tr_b16", V(WF + (n % 8) * 4 + 2 * i, 2), V(TA + nb), mods=f"offset:{wslot(ks) + i*1024}")
            lq.issue(("w", n))
        rd_w(0, 0); rd_w(0, 1); qa.flush()
        for n in range(1, D):
            rd_w(n, 0); rd_w(n, 1)
        direct = list(range(32 - npark))
        done = set()
        for n in range(128):
            ks, nb = n >> 3, n & 7
            if n in (32, 64, 96): stp.stamp()
            if pf2 and n == pf2at * 8 + 4: pf_k2()
            if ks == 15:
                for c in direct:
                    if c not in done and ready_nb(c) + 2 <= nb:
                        q2.add_kern(epi_kern(c)); done.add(c)
            lq.need(("w", n), ("a", ks), cnt=[2, 8])
            wf = V(WF + (n % 8) * 4, 4)
            for rb in range(8):
                d = A(acc(rb, nb), 4); af = V(AFB + (ks % 2) * 32 + rb * 4, 4)
                if kv == 0: k.op("v_mfma_f32_16x16x32_bf16", d, wf, af, "0" if ks == 0 else d)
                else: k.op("v_mfma_f32_16x16x32_bf16", d, af, wf, "0" if ks == 0 else d)
                if rb < 2 and n + D < 128: rd_w(n + D, rb)
                elif rb in (2, 4, 6) and len(qa): qa.emit(1)
                elif rb in (3, 7) or ks >= 14: q1.emit(1)
                if ks == 15: q2.emit(2)
        stp.stamp()
        q1.flush()
        k.op("s_barrier")
        rest = [c for c in direct if c not in done]
        for c in [c for c in rest if c < 8]: q2.add_kern(epi_kern(c))
        pages = k2_pages()
        while len(q2):
            q2.emit(5)
            if pages: pages.pop(0)()
        loads = pages + [f for ks in range(4) for f in k2_xn(ks)]
        for i, c in enumerate(range(32 - npark, 32)): q2.add_kern(epi_kern(c, park=AFB + 4 * i))
        w = Kern("w")
        for i in range(4 * npark): w.op("v_accvgpr_write_b32", A(128 + i), V(AFB + i))
        q2.add_kern(w)
        while len(q2) or loads:
            q2.emit(9)
            if loads: loads.pop(0)()
        for c in [c for c in rest if c >= 8]: q2.add_kern(epi_kern(c))
        q2.flush()
        k.op("s_add_u32", S(50), S(sSt), (32 - npark) * 1024)
        if stamps:
            stp.stamp()
            stp.flush(sWS, sW, 4)
        k.op("s_mov_b32", "s3", S(sFA))
        k.raw("  s_branch k2_kernel")
        k.op("s_endpgm")
    k.label("k1_end")
    k.op("s_endpgm")
    return k

if __name__ == "__main__":
    k = build_k1()
    for e in k.check_hazards(): print(e)
    for e in k.check_waits(): print(e)
    print(k.maxregs(), len(k.ins))
```

```python
from common import *
import struct
def f32(x): return hex(struct.unpack("<I", struct.pack("<f", x))[0])
LOG2E = 1.4426950408889634
QSCALE = LOG2E / (128 ** 0.5)
STAT_OFF = YF_OFF

def build_k2(stamps=False, D=6, DA=8, thr=2.0 ** 80, pf3=True, fuse3=False, xnobar=False, xnodma=False, oolmask=True, pfself=True, fused1=False, early1=False, pace=True, wp=4, early3=False, park=0):
    k = Kern("k2_kernel")
    SC = " sc1" if fused1 else ""
    XN = 8 if park else 12
    vq, lq = Q(k, "vmcnt", 63), Q(k, "lgkmcnt", 15)
    stp = Stamps(k, stamps, 62, 1, lq, maxn=8)
    sWS, sWQ, sW1, sK, sV, sB1 = 8, 12, 16, 20, 24, 28
    sW, sH, sP, sNa, sNb, sT = 32, 33, 34, 35, 36, 37
    sT0, sT1, sT2, sSo = 38, 39, 40, 41
    sP2, sP1, sRd, sNx = 42, 43, 44, 45
    sTK, sTV, sW4k, sThr, sRet = 46, 47, 48, 49, 50
    sXa, sXb = 51, 52
    sCa, sCb = 53, 54
    sM = 56
    sLd = 98
    vL, vL16, vA, vD, vZ, vNinf = 1, 2, 3, 4, 5, 6
    vPs = [7, 8]; vLs = [9, 10]; vMx = [11, 12]
    vT = 13
    vCo = 20
    QR, NEGM, SR = 32, 96, 128
    def Sreg(sub, par): return SR + sub * 64 + par * 32
    OA, FR = 64, 192
    TA, TB, VW, VW1 = 96, 104, 108, 112
    vXo = 21
    MACC = 32
    ONES = 116
    XR = 0

    k.op("s_cmp_ge_u32", "s2", 256)
    k.op("s_cbranch_scc1", "k2_end")
    if pfself:
        pf_self(k, "k2_slow_0", vt=254); vq.issue()
    k.op("s_load_dwordx2", S(84, 2), S(0, 2), KA["wq"])
    k.op("s_load_dwordx4", S(88, 4), S(0, 2), KA["w1"])
    k.op("s_load_dwordx2", S(92, 2), S(0, 2), KA["ws"])
    k.op("s_load_dwordx2", S(86, 2), S(0, 2), KA["wo"])
    k.op("s_load_dwordx2", S(96, 2), S(0, 2), KA["w2"])
    k.op("v_and_b32", V(vL), 63, "v0")
    k.op("v_lshrrev_b32", V(13), 6, "v0")
    k.op("s_and_b32", S(sT0), "s2", 7)
    k.op("v_readfirstlane_b32", S(sW), V(13))
    k.op("s_lshr_b32", S(sT1), "s2", 3)
    k.op("s_and_b32", S(sT2), S(sT1), 3)
    k.op("s_lshl_b32", S(sH), S(sT0), 2)
    k.op("s_add_u32", S(sH), S(sH), S(sT2))
    k.op("s_lshr_b32", S(sP), S(sT1), 2)
    k.op("v_lshlrev_b32", V(vL16), 4, V(vL))
    k.op("s_lshl_b32", S(sW4k), S(sW), 12)
    k.op("v_add_u32", V(vD), S(sW4k), V(vL16))
    g, l15, p8, l3, r_, cc, g1, t7 = 22, 23, 24, 25, 26, 27, 28, 29
    k.op("v_lshrrev_b32", V(g), 4, V(vL))
    k.op("v_and_b32", V(l15), 15, V(vL))
    k.op("v_and_b32", V(p8), 7, V(vL))
    k.op("v_lshrrev_b32", V(l3), 3, V(vL))
    k.op("v_bfe_u32", V(r_), V(vL), 2, 2)
    k.op("v_and_b32", V(cc), 3, V(vL))
    k.op("v_and_b32", V(g1), 1, V(g))
    k.op("v_lshlrev_b32", V(t7), 1, V(g))
    k.op("v_xor_b32", V(t7), V(t7), V(l15))
    k.op("v_lshlrev_b32", V(t7), 4, V(t7))
    k.op("v_lshl_add_u32", V(t7), V(g), 13, V(t7))
    k.op("s_lshl_b32", S(sT0), S(sW), 17)
    k.op("s_lshl_b32", S(sT1), S(sH), 8)
    k.op("s_add_u32", S(sT0), S(sT0), S(sT1))
    k.op("v_add_u32", V(VW), S(sT0), V(t7))
    k.op("v_add_u32", V(VW + 1), 32768 - 1024, V(VW))
    k.op("v_xor_b32", V(VW + 2), 128, V(VW))
    k.op("v_add_u32", V(VW + 2), 2 * (32768 - 1024), V(VW + 2))
    k.op("v_add_u32", V(VW + 3), 32768 - 1024, V(VW + 2))
    k.op("v_lshlrev_b32", V(t7), 1, V(g1))
    k.op("v_xor_b32", V(t7), V(t7), V(p8))
    k.op("v_lshlrev_b32", V(t7), 4, V(t7))
    k.op("v_mul_u32_u24", V(30), 2752, V(l3))
    k.op("s_mul_i32", S(sT0), S(sW), 32 * 2752)
    k.op("s_mul_i32", S(sT1), S(sH), 96)
    k.op("s_add_u32", S(sT0), S(sT0), S(sT1))
    k.op("v_add_u32", V(30), S(sT0), V(30))
    k.op("v_add_u32", V(VW1), V(30), V(t7))
    k.op("v_xor_b32", V(t7), 64, V(t7))
    k.op("v_add_u32", V(VW1 + 1), V(30), V(t7))
    k.op("v_add_u32", V(VW1 + 1), 8 * 2752 - 1024, V(VW1 + 1))
    k.op("v_add_u32", V(VW1 + 2), 2 * (8 * 2752 - 1024), V(VW1))
    k.op("v_add_u32", V(VW1 + 3), 2 * (8 * 2752 - 1024), V(VW1 + 1))
    k.op("s_lshl_b32", S(sT0), S(sP), 7)
    k.op("s_lshl_b32", S(sT1), S(sW), 5)
    k.op("s_add_u32", S(sXa), S(sT0), S(sT1))
    k.op("s_sub_u32", S(sXb), 1920, S(sT0))
    k.op("s_add_u32", S(sXb), S(sXb), S(sT1))
    k.op("s_lshl_b32", S(sT2), S(sH), 12)
    k.op("s_add_u32", S(sT2), S(sT2), CTX_OFF)
    k.op("s_lshl_b32", S(sCa), S(sXa), 13)
    k.op("s_add_u32", S(sCa), S(sCa), S(sT2))
    k.op("s_lshl_b32", S(sCb), S(sXb), 13)
    k.op("s_add_u32", S(sCb), S(sCb), S(sT2))
    sRa, sRb = 94, 95
    k.op("s_mov_b32", S(sRa), S(sXa)); k.op("s_mov_b32", S(sRb), S(sXb))
    sHr = 56
    for rb in range(4):
        k.op("s_lshr_b32", S(sHr + rb), S(sRa if rb < 2 else sRb), 4)
        k.op("s_add_u32", S(sHr + rb), S(sHr + rb), rb & 1)
        k.op("s_mul_i32", S(sHr + rb), S(sHr + rb), 43 * 1024)
    k.op("s_lshl_b32", S(sXa), S(sXa), 10)
    k.op("s_lshl_b32", S(sXb), S(sXb), 10)
    k.op("s_lshr_b32", S(sT1), S(sW), 1)
    k.op("s_lshl_b32", S(sT0), S(sP), 1)
    k.op("s_add_u32", S(sNa), S(sT0), S(sT1))
    k.op("s_add_u32", S(sNa), S(sNa), 1)
    k.op("s_sub_u32", S(sNb), 31, S(sT0))
    k.op("s_add_u32", S(sNb), S(sNb), S(sT1))
    k.wait(lgkm=0)
    stp.stamp()
    load_srd(k, sWQ, "wq", 84); load_srd(k, sW1, "w1", 88); load_srd(k, sWS, "ws", 92)

    pages = {}
    order = []
    for j in range(4):
        order += [("W1", j), ("WQ", 2 * j), ("WQ", 2 * j + 1)]
    for i, p in enumerate(order): pages[p] = i
    for t in range(6): pages[("K", t)] = 12 + 2 * t; pages[("V", t)] = 15 + 2 * t
    def slot(p): return (pages[p] % 10) * 16384
    def dma_items(p):
        kind, j = p
        def setup():
            k.op("s_add_u32", "m0", S(sW4k), slot(p))
            k.op("s_mov_b32", S(sSo), {"W1": j * 128 * 2752, "WQ": j * 524288, "K": j * 16384, "V": (j + 1) * 16384}[kind])
        def ld(i):
            def f():
                if kind == "WQ": k.op("buffer_load_dwordx4", V(VW + i), S(sWQ, 4), S(sSo), mods=f"offen offset:{i*1024} lds")
                elif kind == "W1": k.op("buffer_load_dwordx4", V(VW1 + i), S(sW1, 4), S(sSo), mods=f"offen offset:{i*1024} lds")
                else: k.op("buffer_load_dwordx4", V(vD), S(sK if kind == "K" else sV, 4), S(sSo), mods=f"offen offset:{i*1024}{SC} lds")
                vq.issue(p)
            return f
        return [setup] + [ld(i) for i in range(4)]
    def xn_load(ks, rb):
        def f():
            r = XR + ((ks % XN) * 4 + rb) * 4
            if ks & 3 == 0: k.op("s_add_u32", S(sLd + rb), S(sXa if rb < 2 else sXb), (rb & 1) * 16384 + (ks >> 2) * 4096)
            k.op("buffer_load_dwordx4", A(r, 4), V(vL16), S(sWS, 4), S(sLd + rb), mods=f"offen offset:{(ks&3)*1024}" + SC)
            vq.issue(("x", ks))
        return f
    if early1:
        for p in (("W1", 0), ("WQ", 0), ("WQ", 1)):
            for _ in range(4): vq.issue(p)
        for ks in range(4):
            for _ in range(4): vq.issue(("x", ks))
        for _ in range(0 if park else 2): vq.issue()
    else:
        for p in (("W1", 0), ("WQ", 0)):
            for f in dma_items(p): f()
        for ks in range(2):
            for rb in range(4): xn_load(ks, rb)()
        for f in dma_items(("WQ", 1)): f()
        for ks in range(2, 4):
            for rb in range(4): xn_load(ks, rb)()
    load_srd(k, sB1, "b1", 90)
    k.op("s_lshl_b32", S(sT0), S(sH), 19)
    k.op("s_add_u32", S(sT1), S(sT0), KF_OFF)
    k.op("s_add_u32", S(sK), S(92), S(sT1))
    k.op("s_addc_u32", S(sK + 1), S(93), 0)
    k.op("s_and_b32", S(sK + 1), S(sK + 1), "0xffff")
    k.op("s_lshl_b32", S(sT2), S(sP), 15)
    k.op("s_sub_u32", S(sK + 2), 32 * 16384, S(sT2))
    k.op("s_mov_b32", S(sK + 3), "0x20000")
    k.op("s_add_u32", S(sT1), S(sT0), VF_OFF - 16384)
    k.op("s_add_u32", S(sV), S(92), S(sT1))
    k.op("s_addc_u32", S(sV + 1), S(93), 0)
    k.op("s_and_b32", S(sV + 1), S(sV + 1), "0xffff")
    k.op("s_add_u32", S(sV + 2), S(sK + 2), 16384)
    k.op("s_mov_b32", S(sV + 3), "0x20000")
    k.op("v_lshl_or_b32", V(30), V(g1), 2, V(r_))
    k.op("v_lshl_add_u32", V(31), V(g), 3, V(r_))
    k.op("v_lshlrev_b32", V(t7), 8, V(31))
    k.op("v_lshl_add_u32", V(t7), V(cc), 3, V(t7))
    for nb in range(8):
        k.op("v_xor_b32", V(13), nb, V(30))
        k.op("v_lshl_add_u32", V(TA + nb), V(13), 5, V(t7))
    k.op("v_lshrrev_b32", V(13), 1, V(r_))
    k.op("v_lshl_or_b32", V(30), V(g1), 1, V(13))
    k.op("v_lshlrev_b32", V(t7), 7, V(31))
    k.op("v_lshl_add_u32", V(t7), V(cc), 3, V(t7))
    for nb in range(3):
        k.op("v_xor_b32", V(13), nb, V(30))
        k.op("v_lshl_add_u32", V(TB + nb), V(13), 5, V(t7))
    for i in range(4): k.op("v_mov_b32", V(ONES + i), "0x3f803f80")
    ST = 120
    B1 = [92, 94, 30]
    k.op("v_lshlrev_b32", V(13), 3, V(l15))
    for rb in range(4):
        k.op("s_lshl_b32", S(sT0), S(sRa if rb < 2 else sRb), 3)
        k.op("s_add_u32", S(sT0), S(sT0), STAT_OFF + (rb & 1) * 128)
        k.op("buffer_load_dwordx2", V(ST + 2 * rb, 2), V(13), S(sWS, 4), S(sT0), mods="offen" + SC); vq.issue("st")
    k.op("v_lshlrev_b32", V(14), 3, V(g))
    k.op("s_mul_i32", S(sT1), S(sH), 96)
    for nb in range(3):
        k.op("buffer_load_dwordx2", V(B1[nb], 2), V(14), S(sB1, 4), S(sT1), mods=f"offen offset:{nb*32}"); vq.issue("st")
    win = {"TA": 0, "TB": 0}
    def set_window(name, base, n, off):
        w = off // 65536
        if win[name] != w:
            d = (w - win[name]) * 65536
            for i in range(n): k.op("v_add_u32", V(base + i), hex(d & 0xffffffff), V(base + i))
            win[name] = w
        return off - w * 65536
    frs = []
    for ks in range(16):
        for nb in range(3): frs.append(("W1", ks, nb))
        for nb in range(8): frs.append(("WQ", ks, nb))
    NF = len(frs)
    q1 = FillQ(k)
    plan = {0: [("W1", 1), ("WQ", 2)], 1: [("WQ", 3)], 2: [("W1", 2), ("WQ", 4)], 3: [("WQ", 5)], 4: [("W1", 3), ("WQ", 6)],
            5: [("WQ", 7)], 6: [("K", 0), ("K", 1)], 7: [("V", 0), ("K", 2)]}
    def stage_switch(s):
        need = [("WQ", s)] + ([("W1", s // 2)] if s % 2 == 0 else [])
        vq.need(*need, cnt=[4] * len(need))
        k.op("s_barrier")
        q1.flush()
        if fused1 and s == (6 if park else 2):
            one_lane_store(k, sW, sWS, [3], 1, 18)
        if fused1 and s == (7 if park else 5):
            k.op("s_lshl_b32", S(55), S(sH), 7)
            k.op("s_add_u32", S(55), S(55), FA_OFF)
            k.op("v_lshlrev_b32", V(18), 2, V(p8))
            k.op("buffer_load_dword", V(19), V(18), S(sWS, 4), S(55), mods="offen sc1"); vq.issue("pp")
        if fused1 and s == 6 and not park:
            vq.need("pp")
            spin_until(k, "k2_sp", lambda: k.op("buffer_load_dword", V(19), V(18), S(sWS, 4), S(55), mods="offen sc1"),
                       lambda: k.op("v_cmp_ne_u32", "vcc", 1, V(19)), sT1)
        for ks in (2 * s + 4, 2 * s + 5):
            if ks < 16:
                for rb in range(4): q1.add(xn_load(ks, rb))
        for p in plan[s]:
            if park and p[0] in "KV": continue
            for f in dma_items(p): q1.add(f)
        if park and s < park // 4:
            for i in range(4):
                def st_(i=i):
                    k.op("buffer_store_dwordx4", A(128 + (s * 4 + i) * 4, 4), V(vL16), S(sWS, 4), S(50), mods=f"offen offset:{i*1024} sc1"); vq.issue()
                    if i == 3: k.op("s_add_u32", S(50), S(50), 4096)
                q1.add(st_)
    def read_frag(n, which):
        kind, ks, nb = frs[n]
        if n % 22 == 0 and which == 0: stage_switch(n // 22)
        r = FR + (n % 16) * 4
        if kind == "WQ":
            off = slot(("WQ", ks // 2)) + (ks & 1) * 8192 + which * 1024
            off = set_window("TA", TA, 8, slot(("WQ", ks // 2))) + (ks & 1) * 8192 + which * 1024
            k.op("ds_read_b64_tr_b16", A(r + 2 * which, 2), V(TA + nb), mods=f"offset:{off}")
        else:
            off = set_window("TB", TB, 3, slot(("W1", ks // 4))) + (ks & 3) * 4096 + which * 512
            k.op("ds_read_b64_tr_b16", A(r + 2 * which, 2), V(TB + nb), mods=f"offset:{off}")
        lq.issue(("w", n))
    def qacc(nb, rb): return SR + 4 * (nb * 4 + rb)
    def macc(nb, rb): return MACC + 4 * (nb * 4 + rb)
    for n in range(D):
        read_frag(n, 0); read_frag(n, 1)
    stp.stamp()
    for n in range(NF):
        kind, ks, nb = frs[n]
        if n % 11 == 0: vq.need(("x", ks), cnt=[4])
        if n % 2 == 0: lq.need(("w", n), ("w", n + 1), cnt=[2, 2])
        wf = A(FR + (n % 16) * 4, 4)
        first = ks == 0
        ms = []
        for rb in range(4):
            d = V(qacc(nb, rb) if kind == "WQ" else macc(nb, rb), 4)
            ms.append((d, A(XR + ((ks % XN) * 4 + rb) * 4, 4)))
        if kind == "W1": ms.append((V(MACC + 48 + 4 * nb, 4), V(ONES, 4)))
        for c, (d, b) in enumerate(ms):
            k.op("v_mfma_f32_16x16x32_bf16", d, wf, b, "0" if first else d)
            if c < 2 and n + D < NF: read_frag(n + D, c)
            elif not pace or c == 2: q1.emit(2 if (len(q1) > 12 and not pace) else 1)
    q1.flush()
    stp.stamp()
    if park:
        vq.need("pp")
        spin_until(k, "k2_sp", lambda: k.op("buffer_load_dword", V(19), V(18), S(sWS, 4), S(55), mods="offen sc1"),
                   lambda: k.op("v_cmp_ne_u32", "vcc", 1, V(19)), sT1)
        k.op("s_barrier")
        for p in (("K", 0), ("K", 1), ("V", 0), ("K", 2)):
            for f in dma_items(p): f()
    else:
        vq.need(("K", 0), cnt=[4])
        k.op("s_barrier")
        for p in (("V", 1), ("K", 3), ("V", 2)):
            for f in dma_items(p): f()
    k.op("v_mul_u32_u24", V(15), 44032, V(g1))
    k.op("v_lshrrev_b32", V(16), 5, V(vL))
    k.op("v_lshl_add_u32", V(15), V(16), 8, V(15))
    k.op("v_lshl_add_u32", V(15), V(l15), 4, V(15))
    C1, C2 = -2 * LOG2E * 0.7978845608028654, -2 * LOG2E * 0.7978845608028654 * 0.044715
    k.op("v_mov_b32", V(16), f32(C1)); k.op("v_mov_b32", V(17), f32(C2))
    k.op("v_mov_b32", V(18), "1.0"); k.op("v_mov_b32", V(19), "1.0")
    def P(r): return V(r, 2)
    bb, t = 96, 100
    for nb in range(3):
        k.op("v_lshlrev_b32", V(bb), 16, V(B1[nb]))
        k.op("v_and_b32", V(bb + 1), "0xffff0000", V(B1[nb]))
        k.op("v_lshlrev_b32", V(bb + 2), 16, V(B1[nb] + 1))
        k.op("v_and_b32", V(bb + 3), "0xffff0000", V(B1[nb] + 1))
        cs = MACC + 48 + 4 * nb
        k.op("s_mul_i32", S(sT1), S(sH), 3)
        k.op("s_add_u32", S(sT1), S(sT1), nb)
        k.op("s_lshl_b32", S(sT2), S(sT1), 9)
        k.op("s_add_u32", S(sT2), S(sT2), HF_OFF)
        lab = k.newlabel("skiph")
        k.op("s_cmp_ge_u32", S(sT1), 86)
        k.op("s_cbranch_scc1", lab)
        for rp in range(2):
            rbs = (2 * rp, 2 * rp + 1)
            def each(fn):
                for j, rb in enumerate(rbs):
                    for i in (0, 2): fn(macc(nb, rb) + i, t + 4 * j + i, ST + 2 * rb, i)
            each(lambda a, tt, st, i: k.op("v_pk_fma_f32", P(a), P(cs + i), P(st), P(a), mods="op_sel_hi:[1,0,1] neg_lo:[1,0,0] neg_hi:[1,0,0]"))
            each(lambda a, tt, st, i: k.op("v_pk_fma_f32", P(a), P(a), P(st), P(bb + i), mods="op_sel:[0,1,0]"))
            each(lambda a, tt, st, i: k.op("v_pk_mul_f32", P(tt), P(a), P(a)))
            each(lambda a, tt, st, i: k.op("v_pk_fma_f32", P(tt), P(tt), P(16), P(16), mods="op_sel:[0,1,0] op_sel_hi:[1,1,0]"))
            each(lambda a, tt, st, i: k.op("v_pk_mul_f32", P(tt), P(tt), P(a)))
            for i in range(8): k.op("v_exp_f32", V(t + i), V(t + i))
            each(lambda a, tt, st, i: k.op("v_pk_add_f32", P(tt), P(tt), P(18)))
            for i in range(8): k.op("v_rcp_f32", V(t + i), V(t + i))
            each(lambda a, tt, st, i: k.op("v_pk_mul_f32", P(a), P(a), P(tt)))
            a0, a1 = macc(nb, rbs[0]), macc(nb, rbs[1])
            k.op("v_cvt_pk_bf16_f32", V(a0), V(a0), V(a0 + 1))
            k.op("v_cvt_pk_bf16_f32", V(a0 + 1), V(a0 + 2), V(a0 + 3))
            k.op("v_cvt_pk_bf16_f32", V(a0 + 2), V(a1), V(a1 + 1))
            k.op("v_cvt_pk_bf16_f32", V(a0 + 3), V(a1 + 2), V(a1 + 3))
            k.op("s_add_u32", S(sT0), S(sHr + 2 * rp), S(sT2))
            k.nop(1)
            k.op("v_permlane16_swap_b32", V(a0), V(a0 + 2))
            k.op("v_permlane16_swap_b32", V(a0 + 1), V(a0 + 3))
            k.op("buffer_store_dwordx4", V(a0, 4), V(15), S(sWS, 4), S(sT0), mods="offen" + (" sc1" if fuse3 else ""))
        k.label(lab)
    if park:
        for p in (("V", 1), ("K", 3), ("V", 2)):
            for f in dma_items(p): f()
    k.op("v_mov_b32", V(16), f32(QSCALE)); k.op("v_mov_b32", V(17), f32(QSCALE))
    def Qreg(sub, qb, ds): return QR + sub * 32 + qb * 16 + ds * 4
    for rb in range(4):
        for ds in range(4):
            X = Qreg(rb >> 1, rb & 1, ds)
            for half in range(2):
                a = qacc(2 * ds + half, rb)
                for i in (0, 2): k.op("v_pk_mul_f32", P(a + i), P(a + i), P(16))
                k.op("v_cvt_pk_bf16_f32", V(X + 2 * half), V(a), V(a + 1))
                k.op("v_cvt_pk_bf16_f32", V(X + 2 * half + 1), V(a + 2), V(a + 3))
    stp.stamp()
    def Ngm(sub, qb): return NEGM + sub * 8 + qb * 4
    def Lac(sub, qb): return 112 + sub * 8 + qb * 4
    ON1 = 24
    k.op("s_and_b32", S(sT0), S(sW), 1)
    k.op("s_lshl_b32", S(sT0), S(sT0), 5)
    k.op("v_add_u32", V(vZ), S(sT0), V(l15))
    k.op("v_lshlrev_b32", V(15), 2, V(g))
    k.op("v_sub_u32", V(vZ), V(vZ), V(15))
    k.op("v_mov_b32", V(vNinf), f32(-1e30))
    for i in range(4): k.op("v_mov_b32", V(ON1 + i), "0x3f803f80")
    for i in range(16): k.op("v_mov_b32", V(112 + i), 0)
    k.op("s_mov_b32", S(sThr), f32(thr))
    k.op("s_mov_b32", S(sP2), 0)
    k.op("s_mov_b32", S(sNx), 98304)
    k.op("s_mov_b32", S(sTK), 4 * 16384)
    k.op("s_mov_b32", S(sT), 2)

    def mf(d, a, b, c): k.op("v_mfma_f32_16x16x32_bf16", d, a, b, c)
    def mask_block(sub, par):
        s0 = Sreg(sub, par)
        for e0 in range(0, 32, 2):
            for u in range(2):
                e = e0 + u; qb, kb, r = e >> 4, (e >> 2) & 3, e & 3
                k.op("v_cmp_gt_i32", S(sM + 2 * u, 2), 16 * kb + r - 16 * qb, V(vZ))
            k.nop(1)
            for u in range(2):
                k.op("v_cndmask_b32", V(s0 + e0 + u), V(s0 + e0 + u), V(vNinf), S(sM + 2 * u, 2))
    def ereg(n):
        k32, qb, j = n >> 4, (n >> 3) & 1, n & 7
        return qb * 16 + k32 * 8 + j
    def soft_exp(sub, par, n):
        r = Sreg(sub, par) + ereg(n)
        k.op("v_exp_f32", V(r), V(r))
    def soft_cvt(sub, par, n):
        e = n - 2
        r = Sreg(sub, par) + ereg(e)
        d = Sreg(sub, par) + (ereg(e) & ~7) + ((e & 7) >> 1)
        k.op("v_cvt_pk_bf16_f32", V(d), V(r), V(r + 1))
    def rd(frag, isV):
        k.op("ds_read_b128", A(FR + frag * 4, 4), V(vA), mods=f"offset:{(16384 if isV else 0) + frag*1024}")
    def ldK(i): return lambda: k.op("buffer_load_dwordx4", V(vD), S(sK, 4), S(sTK), mods=f"offen offset:{i*1024}{SC} lds")
    def ldV(i): return lambda: k.op("buffer_load_dwordx4", V(vD), S(sV, 4), S(sTK), mods=f"offen offset:{i*1024}{SC} lds")
    m0K = lambda: k.op("s_add_u32", "m0", S(sP2), S(sW4k))
    m0V = lambda: k.op("s_add_u32", "m0", "m0", 16384)
    advT = lambda: k.op("s_add_u32", S(sTK), S(sTK), 16384)
    advP = lambda: k.op("s_add_u32", S(sP2), S(sP2), 32768)
    wrapP = lambda: (k.op("s_cmp_eq_u32", S(sP2), 163840), k.op("s_cselect_b32", S(sP2), 0, S(sP2)))
    XA = {1: [ldK(2)], 5: [ldK(3)], 7: [m0V], 9: [ldV(0)], 13: [ldV(1)]}
    XB = {1: [ldV(2)], 5: [ldV(3)], 7: [advT, advP], 9: [wrapP, m0K], 11: [ldK(0)], 15: [ldK(1)]}
    if DA == 6:
        XB = {1: [ldV(2)], 5: [ldV(3)], 7: [advT, advP], 9: [wrapP], 11: [m0K], 13: [ldK(0)], 15: [ldK(1)]}
    WP = wp
    def phaseA(par, qk, ex):
        if not qk:
            k.wait(lgkm=0)
            for f in range(DA): rd(f, True)
            for n in range(16, 32):
                for sub in ex:
                    soft_exp(sub, par, n)
                    if n % 2 == 0: soft_cvt(sub, par, n)
            return
        for f in range(16):
            kb, ds = f >> 2, f & 3
            if f % WP == 0: k.wait(lgkm=DA - WP)
            for j, sub in enumerate(qk):
                xs = ex if len(qk) == 1 else [sub]
                for qb in range(2):
                    d = V(Sreg(sub, 1 - par) + qb * 16 + kb * 4, 4)
                    mf(d, A(FR + f * 4, 4), V(Qreg(sub, qb, ds), 4), V(Ngm(sub, qb), 4) if ds == 0 else d)
                    if qb == 0:
                        for x in xs: soft_exp(x, par, 16 + f)
                if j == 0:
                    nf = f + DA
                    if nf < 16: rd(nf, False)
                    else: rd(nf - 16, True)
                if f % 2 == 0:
                    for x in xs: soft_cvt(x, par, 16 + f)
                if j == len(qk) - 1:
                    for fn in XA.get(f, []): fn()
    def phaseB(par, pv, exn, bar="always", tailops=()):
        extra = list(tailops)
        for f in range(16):
            k32, db = f >> 3, f & 7
            if f % WP == 0: k.wait(lgkm=DA - WP if bar == "always" else max(0, min(DA - WP, 16 - f - WP)))
            for j, sub in enumerate(pv):
                for qb in range(2):
                    d = A(OA + sub * 64 + (db * 2 + qb) * 4, 4)
                    mf(d, A(FR + f * 4, 4), V(Sreg(sub, par) + qb * 16 + k32 * 8, 4), d)
                    if qb == 0 and sub in exn: soft_exp(sub, 1 - par, f)
                if j == 0:
                    nf = f + DA
                    if nf == 16:
                        if bar == "always":
                            k.wait(vm=16); k.op("s_barrier")
                        elif bar == "w01":
                            lab = k.newlabel("nobar")
                            k.op("s_cmp_ge_u32", S(sW), 2); k.op("s_cbranch_scc1", lab)
                            k.wait(vm=8); k.op("s_barrier")
                            k.label(lab)
                        k.op("v_add_u32", V(vA), S(sNx), V(vL16))
                    if bar == "always" or nf < 16:
                        if nf < 16: rd(nf, True)
                        else: rd(nf - 16, False)
                if f == 0: soft_cvt(sub, par, 32)
                elif f % 2 == 0 and sub in exn: soft_cvt(sub, 1 - par, f)
                if f % 4 == 3:
                    qb = (f >> 2) & 1
                    d = V(Lac(sub, qb), 4)
                    mf(d, V(ON1, 4), V(Sreg(sub, par) + qb * 16 + k32 * 8, 4), d)
                if j == len(pv) - 1 and bar == "always":
                    for fn in XB.get(f, []): fn()
                    if f in (3, 13, 14) and extra: extra.pop(0)()
        for fn in extra: fn()
    def nx_items():
        return [lambda: k.op("s_add_u32", S(sT), S(sT), 1),
                lambda: k.op("s_add_u32", S(sNx), S(sNx), 32768),
                lambda: (k.op("s_cmp_eq_u32", S(sNx), 163840), k.op("s_cselect_b32", S(sNx), 0, S(sNx)))]
    def rowmax(sub, par, qb, dst):
        s0 = Sreg(sub, par) + 16 * qb
        k.op("v_max3_f32", V(dst), V(s0), V(s0 + 1), V(s0 + 2))
        for e in range(3, 15, 2): k.op("v_max3_f32", V(dst), V(dst), V(s0 + e), V(s0 + e + 1))
        k.op("v_max_f32", V(dst), V(dst), V(s0 + 15))
        for sw in ("v_permlane16_swap_b32", "v_permlane32_swap_b32"):
            k.op("v_mov_b32", V(vT + 1), V(dst))
            k.nop(2)
            k.op(sw, V(dst), V(vT + 1))
            k.op("v_max_f32", V(dst), V(dst), V(vT + 1))
    slow_sites = {}
    def epilogue(sub, site):
        t = Sreg(sub, 0)
        k.nop(8)
        k.op("v_max_f32", V(vT), V(Lac(sub, 0)), V(Lac(sub, 1)))
        k.op("v_add_f32", V(vT + 1), V(Lac(sub, 0)), V(Lac(sub, 1)))
        k.op("v_cmp_nle_f32", "vcc", V(vT + 1), V(21))
        k.op("s_mov_b32", S(sRet), site)
        k.op("s_cbranch_vccnz", f"k2_slow_{sub}")
        lab = f"k2_ret_{sub}_{site}"
        k.label(lab)
        slow_sites.setdefault(sub, []).append((site, lab))
        k.op("v_rcp_f32", V(vT + 3), V(Lac(sub, 0)))
        k.op("v_rcp_f32", V(vT + 4), V(Lac(sub, 1)))
        for qb in range(2):
            if qb: k.op("s_add_u32", S(sT0), S(sCa if sub == 0 else sCb), 131072)
            for ks in range(4):
                b = t + (qb * 4 + ks) * 8
                for half in range(2):
                    for i in range(4):
                        k.op("v_accvgpr_read_b32", V(b + 4 * half + i), A(OA + sub * 64 + ((2 * ks + half) * 2 + qb) * 4 + i))
                for i in range(0, 8, 2):
                    k.op("v_pk_mul_f32", P(b + i), P(b + i), P(vT + 3), mods="op_sel_hi:[1,0]" if qb == 0 else "op_sel:[0,1]")
                for i in range(4): k.op("v_cvt_pk_bf16_f32", V(b + i), V(b + 2 * i), V(b + 2 * i + 1))
                k.op("buffer_store_dwordx4", V(b, 4), V(vL16), S(sWS, 4), S(sT0 if qb else (sCa if sub == 0 else sCb)),
                     mods=f"offen offset:{ks*1024}" + (" sc1" if fuse3 else ""))
    k.op("v_mov_b32", V(21), S(sThr))
    k.op("v_add_u32", V(vT), 32768, V(vL16))
    if park:
        k.wait(vm=24)
        k.op("s_barrier")
    for f in range(16): k.op("ds_read_b128", A(f * 4, 4), V(vT), mods=f"offset:{f*1024}")
    zi = 0
    for f in range(16):
        kb, ds = f >> 2, f & 3
        k.wait(lgkm=15 - f)
        for sub in range(2):
            for qb in range(2):
                d = V(Sreg(sub, 0) + qb * 16 + kb * 4, 4)
                mf(d, A(f * 4, 4), V(Qreg(sub, qb, ds), 4), "0" if ds == 0 else d)
                for _ in range(2):
                    k.op("v_accvgpr_write_b32", A(OA + zi), 0); zi += 1
    k.wait(vm=0 if fuse3 else 12)
    k.op("s_barrier")
    if fuse3:
        k.op("s_lshl_b32", S(sT0), S(sP), 8)
        k.op("s_lshl_b32", S(sT1), S(sH), 2)
        k.op("s_add_u32", S(sT0), S(sT0), S(sT1))
        k.op("s_add_u32", S(sT0), S(sT0), FLAG2_OFF + 128)
        one_lane_store(k, sW, sWS, [sT0], 1, vT + 4)
    m0K()
    k.op("v_add_u32", V(vA), 65536, V(vL16))
    ldK(0)(); ldK(1)()
    for f in range(DA): rd(f, False)
    lab = k.newlabel("nomask0")
    k.op("s_cmp_lg_u32", S(sNa), 1); k.op("s_cbranch_scc1", lab)
    mask_block(0, 0)
    k.label(lab)
    for sub in range(2):
        for qb in range(2):
            rowmax(sub, 0, qb, vT + 2)
            n0 = Ngm(sub, qb)
            for i in range(4): k.op("v_sub_f32", V(n0 + i), 0, V(vT + 2))
            for e in range(0, 16, 2): k.op("v_pk_add_f32", P(Sreg(sub, 0) + 16 * qb + e), P(Sreg(sub, 0) + 16 * qb + e), P(n0))
    for n in range(16):
        for sub in range(2):
            soft_exp(sub, 0, n)
        for sub in range(2):
            if n % 2 == 0 and n: soft_cvt(sub, 0, n)
    def pf_k3():
        load_srd(k, sWQ, "wo", 86); load_srd(k, sW1, "w2", 96)
        k.op("s_bfe_u32", S(sT0), "s2", "0x20001")
        k.op("s_lshr_b32", S(sT2), "s2", 3)
        k.op("s_lshl_b32", S(sT2), S(sT2), 2)
        k.op("s_add_u32", S(sT2), S(sT2), S(sW))
        k.op("s_lshl_b32", S(sT1), S(sT0), 20)
        k.op("s_lshl_b32", S(sSo), S(sT2), 13)
        k.op("s_add_u32", S(sT1), S(sT1), S(sSo))
        k.op("v_lshlrev_b32", V(vT), 7, V(vL))
        k.op("buffer_load_dword", V(12), V(vT), S(sWQ, 4), S(sT1), mods="offen", dummy=True)
        k.op("s_mul_i32", S(sT1), S(sT0), 384 * 1024)
        k.op("s_mul_i32", S(sT0), S(sT2), 3072)
        k.op("s_add_u32", S(sT1), S(sT1), S(sT0))
        k.op("v_and_b32", V(vT + 2), 31, V(vL))
        k.op("v_lshlrev_b32", V(vT + 2), 7, V(vT + 2))
        k.op("buffer_load_dword", V(12), V(vT + 2), S(sW1, 4), S(sT1), mods="offen", dummy=True)
        pf_code(k, sB1, "k3_kernel", "k3_end-k3_kernel", vT, vL, sSo, 12)
    if pf3 == 3: pf_k3()
    stp.stamp()
    k.op("s_cmp_lt_u32", 1, S(sNa))
    k.op("s_cbranch_scc0", "k2_DL0")
    ool = []
    sl_hooks = []
    def maskif(sub, par):
        lab, lab2 = k.newlabel("nomask"), k.newlabel("domask")
        k.op("s_cmp_eq_u32", S(sT), S(sNa if sub == 0 else sNb)); k.op("s_cbranch_scc1", lab2)
        k.label(lab)
        ool.append((lab2, lab, sub, par))
    for par in range(2):
        k.label(f"k2_DD{par}")
        phaseA(par, [0, 1], [0, 1])
        maskif(0, 1 - par)
        phaseB(par, [0, 1], [0, 1], tailops=nx_items())
        k.op("s_cmp_le_u32", S(sT), S(sNa))
        k.op("s_cbranch_scc0", f"k2_DL{1-par}")
        if par == 1: k.op("s_branch", "k2_DD0")
    for par in range(2):
        k.label(f"k2_DL{par}")
        phaseA(par, [1], [0, 1])
        phaseB(par, [0, 1], [1], tailops=nx_items())
        epilogue(0, par)
        if pf3 == 2: pf_k3()
        k.op("s_branch", f"k2_SS{1-par}")
    for par in range(2):
        k.label(f"k2_SS{par}")
        phaseA(par, [1], [1])
        maskif(1, 1 - par)
        phaseB(par, [1], [1], tailops=nx_items())
        k.op("s_cmp_le_u32", S(sT), S(sNb))
        k.op("s_cbranch_scc0", f"k2_SL{1-par}")
        if par == 1: k.op("s_branch", "k2_SS0")
    for par in range(2):
        k.label(f"k2_SL{par}")
        if pf3 == 1: pf_k3()
        if early3: sl_hooks.append(len(k.ins))
        phaseA(par, [], [1])
        k.nop(2)
        phaseB(par, [1], [], bar="w01")
        if par == 0: k.op("s_branch", "k2_fin")
    k.label("k2_fin")
    stp.stamp()
    if early3:
        e2, eMt, eNt, eS, eRot, eAo, eWc, eAc, eMa = 12, 16, 17, 18, 19, 28, 29, 30, 31
        ev = 7
        def e_setup():
            load_srd(k, e2, "w2", 96)
            k.op("s_bfe_u32", S(eS), "s2", "0x20001")
            k.op("s_and_b32", S(eMt), "s2", 1)
            k.op("s_lshl_b32", S(eMt), S(eMt), 3)
            k.op("s_bfe_u32", S(eNt), "s2", "0x30003")
            k.op("s_add_u32", S(eMt), S(eMt), S(eNt))
            k.op("s_lshr_b32", S(eNt), "s2", 6)
            k.op("s_add_u32", S(eRot), S(eMt), S(eNt))
            k.op("s_and_b32", S(eRot), S(eRot), 3)
            k.op("s_lshl_b32", S(eAo), S(eMt), 3)
            k.op("s_lshl_b32", S(eWc), S(sW), 1)
            k.op("s_add_u32", S(eAo), S(eAo), S(eWc))
            k.op("s_mul_i32", S(eAo), S(eAo), 44032)
            k.op("s_add_u32", S(eAo), S(eAo), HF_OFF)
            k.op("v_mov_b32", V(ev), V(vL16))
            k.op("v_add_u32", V(ev + 1), 44032 - 1024, V(vL16))
            k.op("v_lshlrev_b32", V(ev + 2), 1, V(g))
            k.op("v_xor_b32", V(ev + 2), V(ev + 2), V(l15))
            k.op("v_lshlrev_b32", V(ev + 2), 4, V(ev + 2))
            k.op("v_lshl_add_u32", V(ev + 2), V(g), 10, V(ev + 2))
            k.op("s_lshl_b32", S(eWc), S(eNt), 8)
            k.op("s_lshl_b32", S(eAc), S(sW), 13)
            k.op("s_add_u32", S(eWc), S(eWc), S(eAc))
            k.op("v_add_u32", V(ev + 2), S(eWc), V(ev + 2))
            k.op("s_and_b32", S(eWc), S(sW), 1)
            k.op("s_lshl_b32", S(eWc), S(eWc), 7)
            k.op("v_xor_b32", V(ev + 2), S(eWc), V(ev + 2))
            k.op("v_add_u32", V(ev + 3), 4096 - 1024, V(ev + 2))
            k.op("s_lshl_b32", S(eMa), S(sW), 11)
            k.op("s_sub_u32", S(eWc), 15, S(eMt))
            k.op("s_min_u32", S(eMt), S(eMt), S(eWc))
            k.op("s_lshl_b32", S(eMt), S(eMt), 8)
            k.op("s_add_u32", S(eMt), S(eMt), FLAG2_OFF + 128)
            k.op("v_and_b32", V(ev + 4), 7, V(vL))
            k.op("s_lshl_b32", S(eWc), S(eS), 3)
            k.op("v_add_u32", V(ev + 4), S(eWc), V(ev + 4))
            k.op("v_lshlrev_b32", V(ev + 4), 2, V(ev + 4))
        e_poll = lambda: k.op("buffer_load_dword", V(ev + 5), V(ev + 4), S(sWS, 4), S(eMt), mods="offen sc1")
        def e_issue(tag):
            k.wait(vm=8, lgkm=0)
            spin_until(k, f"k2_sh{tag}", e_poll, lambda: k.op("v_cmp_ne_u32", "vcc", 1, V(ev + 5)), eAc, sleep=8)
            k.op("s_barrier")
            for st in range(3):
                k.op("s_add_u32", S(eNt), S(eRot), st)
                k.op("s_cmp_ge_u32", S(eNt), 3)
                k.op("s_cselect_b32", S(eWc), 3, 0)
                k.op("s_sub_u32", S(eNt), S(eNt), S(eWc))
                k.op("s_mul_i32", S(eWc), S(eS), 6)
                k.op("s_add_u32", S(eNt), S(eNt), S(eWc))
                k.op("s_lshl_b32", S(eWc), S(eNt), 16)
                k.op("s_lshl_b32", S(eNt), S(eNt), 1)
                for u in range(2):
                    k.op("s_add_u32", "m0", S(eMa), st * 32768 + u * 16384 + 8192)
                    k.op("s_add_u32", S(eAc), S(eNt), u)
                    for j in range(2):
                        k.op("buffer_load_dwordx4", V(ev + 2 + j), S(e2, 4), S(eWc), mods=f"offen offset:{j*1024} lds")
                    k.op("s_add_u32", "m0", S(eMa), st * 32768 + u * 16384)
                    k.op("s_add_u32", S(eWc), S(eWc), 32768)
                    k.op("s_min_u32", S(eAc), S(eAc), 42)
                    k.op("s_lshl_b32", S(eAc), S(eAc), 10)
                    k.op("s_add_u32", S(eAc), S(eAc), S(eAo))
                    for j in range(2):
                        k.op("buffer_load_dwordx4", V(ev + j), S(sWS, 4), S(eAc), mods=f"offen offset:{j*1024} sc1 lds")
        for pos in reversed(sl_hooks):
            n0 = len(k.ins)
            e_setup(); e_poll()
            blk = k.ins[n0:]; del k.ins[n0:]
            k.ins[pos:pos] = blk
        epilogue(1, 0)
        e_issue(0)
    else:
        epilogue(1, 0)
    if stamps:
        k.wait(vm=0, lgkm=0)
        stp.stamp()
        stp.flush(sWS, sW, 13)
    if fuse3:
        k.op("s_lshl_b32", S(sT0), S(sP), 8)
        k.op("s_lshl_b32", S(sT1), S(sH), 2)
        k.op("s_add_u32", S(sT0), S(sT0), S(sT1))
        k.op("s_add_u32", S(96), S(sT0), FLAG2_OFF)
        k.wait(lgkm=0)
        k.raw("  s_branch k3_kernel")
    k.op("s_endpgm")
    for (lab2, lab, sub, par) in ool:
        k.label(lab2)
        k.nop(8)
        mask_block(sub, par)
        k.op("s_branch", lab)
    sU, sUo = 60, 61
    for sub, sites in sorted(slow_sites.items()):
        s0 = Sreg(sub, 0)
        m = [Ngm(sub, 0), Ngm(sub, 1)]
        k.label(f"k2_slow_{sub}")
        k.nop(8)
        for i in range(64): k.op("v_accvgpr_write_b32", A(OA + sub * 64 + i), 0)
        for qb in range(2):
            k.op("v_mov_b32", V(m[qb]), f32(-1e30))
            for i in range(4): k.op("v_mov_b32", V(Lac(sub, qb) + i), 0)
        k.op("s_mov_b32", S(sU), 1)
        k.op("s_mov_b32", S(sUo), 0)
        loop = f"k2_slowloop_{sub}"
        k.label(loop)
        for c in range(4):
            k.op("s_add_u32", S(sLd), S(sUo), c * 4096)
            for i in range(4): k.op("buffer_load_dwordx4", A((c * 4 + i) * 4, 4), V(vL16), S(sK, 4), S(sLd), mods=f"offen offset:{i*1024}" + SC)
        k.wait(vm=0)
        for f in range(16):
            kb, ds = f >> 2, f & 3
            for qb in range(2):
                d = V(s0 + qb * 16 + kb * 4, 4)
                mf(d, A(f * 4, 4), V(Qreg(sub, qb, ds), 4), "0" if ds == 0 else d)
        for c in range(4):
            k.op("s_add_u32", S(sLd), S(sUo), c * 4096 + 16384)
            for i in range(4): k.op("buffer_load_dwordx4", A((c * 4 + i) * 4, 4), V(vL16), S(sV, 4), S(sLd), mods=f"offen offset:{i*1024}" + SC)
        lab = k.newlabel("snomask")
        k.op("s_cmp_lg_u32", S(sU), S(sNa if sub == 0 else sNb)); k.op("s_cbranch_scc1", lab)
        mask_block(sub, 0)
        k.label(lab)
        for qb in range(2):
            al = m[qb] + 1
            rowmax(sub, 0, qb, vT + 3)
            k.op("v_max_f32", V(vT + 3), V(vT + 3), V(m[qb]))
            k.op("v_sub_f32", V(al), V(m[qb]), V(vT + 3))
            k.op("v_mov_b32", V(m[qb]), V(vT + 3))
            k.op("v_exp_f32", V(al), V(al))
            for e in range(16): k.op("v_sub_f32", V(s0 + 16 * qb + e), V(s0 + 16 * qb + e), V(m[qb]))
            for i in range(4): k.op("v_mul_f32", V(Lac(sub, qb) + i), V(Lac(sub, qb) + i), V(al))
            for db in range(8):
                for i in range(4):
                    ar = OA + sub * 64 + (db * 2 + qb) * 4 + i
                    k.op("v_accvgpr_read_b32", V(vT + (i & 1)), A(ar))
                    k.op("v_mul_f32", V(vT + (i & 1)), V(vT + (i & 1)), V(al))
                    k.op("v_accvgpr_write_b32", A(ar), V(vT + (i & 1)))
        for n in range(33):
            if n < 32: soft_exp(sub, 0, n)
            else: k.nop(1)
            if n % 2 == 0 and n: soft_cvt(sub, 0, n)
        k.wait(vm=0)
        k.nop(1)
        for f in range(16):
            k32, db = f >> 3, f & 7
            for qb in range(2):
                d = A(OA + sub * 64 + (db * 2 + qb) * 4, 4)
                mf(d, A(f * 4, 4), V(s0 + qb * 16 + k32 * 8, 4), d)
            if f % 4 == 3:
                qb = (f >> 2) & 1
                d = V(Lac(sub, qb), 4)
                mf(d, V(ON1, 4), V(s0 + qb * 16 + k32 * 8, 4), d)
        k.op("s_add_u32", S(sUo), S(sUo), 16384)
        k.op("s_add_u32", S(sU), S(sU), 1)
        k.nop(8)
        k.op("s_cmp_le_u32", S(sU), S(sNa if sub == 0 else sNb))
        k.op("s_cbranch_scc1", loop)
        for (site, lab) in sites[:-1]:
            k.op("s_cmp_eq_u32", S(sRet), site); k.op("s_cbranch_scc1", lab)
        k.op("s_branch", sites[-1][1])
    k.label("k2_end")
    k.op("s_endpgm")
    return k

if __name__ == "__main__":
    k = build_k2()
    for e in k.check_hazards(): print(e)
    for e in k.check_waits(): print(e)
    print(k.maxregs(), len(k.ins))
```

```python
from common import *
from k1_v1 import layernorm
import copy

def build_k1(store_mods=" sc1", stamps=False, pf2=True, pf2at=9, D=5, pfself=True, krot=3, npark=16, **_):
    k = Kern("k1_kernel")
    vq, lq = Q(k, "vmcnt", 63), Q(k, "lgkmcnt", 15)
    stp = Stamps(k, stamps, 60, 0, lq, maxn=10)
    sWS, sC, sWK, sWV, sX = 8, 12, 16, 20, 24
    sT0, sT1, sT2, sKV, sW, sH, sJ = 28, 29, 30, 31, 32, 33, 35
    sSo, sSo2, sAo, sSt, sW8k, sR, sW4k = 36, 37, 42, 43, 44, 45, 48
    sFL, sFA, sF2, sF3, sDb = 53, 54, 55, 56, 4
    CHA = 84
    vL, vL16 = 1, 2
    TA, VA, VW, AAr, WF = 16, 32, 36, 40, 52
    AFB, X0, X1, VZ, VW2 = 128, 224, 228, 232, 46
    PK = 192
    g, l15, r_, cc, g1, t0, t1, p8 = 4, 5, 6, 7, 8, 9, 10, 11
    k.op("s_cmp_ge_u32", "s2", 256)
    k.op("s_cbranch_scc1", "k1_end")
    if pfself:
        pf_self(k, "k1_end", vt=14); vq.issue()
    k.op("s_load_dwordx4", S(84, 4), S(0, 2), KA["x"])
    k.op("s_load_dwordx4", S(88, 4), S(0, 2), KA["wuk"])
    k.op("s_load_dwordx4", S(92, 4), S(0, 2), KA["dbg"])
    k.op("s_load_dwordx2", S(96, 2), S(0, 2), KA["wq"])
    k.op("s_load_dwordx2", S(98, 2), S(0, 2), KA["w1"])
    k.op("v_and_b32", V(vL), 63, "v0")
    k.op("v_lshrrev_b32", V(t0), 6, "v0")
    k.op("s_and_b32", S(sT0), "s2", 7)
    k.op("v_readfirstlane_b32", S(sW), V(t0))
    k.op("s_lshr_b32", S(sT1), "s2", 3)
    k.op("s_and_b32", S(sT2), S(sT1), 3)
    k.op("s_lshl_b32", S(sH), S(sT0), 2)
    k.op("s_add_u32", S(sH), S(sH), S(sT2))
    k.op("s_lshr_b32", S(sJ), S(sT1), 2)
    k.op("s_lshr_b32", S(sKV), S(sW), 1)
    k.op("v_lshlrev_b32", V(vL16), 4, V(vL))
    k.op("v_lshrrev_b32", V(g), 4, V(vL))
    k.op("v_and_b32", V(l15), 15, V(vL))
    k.op("v_bfe_u32", V(r_), V(vL), 2, 2)
    k.op("v_and_b32", V(cc), 3, V(vL))
    k.op("v_and_b32", V(g1), 1, V(g))
    k.op("v_and_b32", V(p8), 7, V(vL))
    k.op("s_lshl_b32", S(sW4k), S(sW), 12)
    k.op("s_lshl_b32", S(sW8k), S(sW), 13)
    k.op("v_lshlrev_b32", V(t0), 1, V(g))
    k.op("v_xor_b32", V(t0), V(t0), V(l15))
    k.op("v_lshlrev_b32", V(t0), 4, V(t0))
    k.op("v_lshl_add_u32", V(t0), V(g), 13, V(t0))
    k.op("s_lshl_b32", S(sT0), S(sW), 17)
    k.op("s_lshl_b32", S(sT1), S(sH), 8)
    k.op("s_add_u32", S(sT0), S(sT0), S(sT1))
    k.op("v_add_u32", V(VW), S(sT0), V(t0))
    k.op("v_add_u32", V(VW + 1), 32768 - 1024, V(VW))
    k.op("v_xor_b32", V(VW + 2), 128, V(VW))
    k.op("v_add_u32", V(VW + 2), 2 * (32768 - 1024), V(VW + 2))
    k.op("v_add_u32", V(VW + 3), 32768 - 1024, V(VW + 2))
    k.op("s_and_b32", S(sT0), S(sW), 1)
    k.op("s_lshl_b32", S(sT0), S(sT0), 7)
    k.op("v_xor_b32", V(t0), S(sT0), V(t0))
    k.op("s_lshl_b32", S(sT0), S(sW), 16)
    k.op("s_add_u32", S(sT0), S(sT0), S(sT1))
    k.op("v_add_u32", V(VW2), S(sT0), V(t0))
    k.op("v_add_u32", V(VW2 + 1), 32768 - 1024, V(VW2))
    k.op("v_lshrrev_b32", V(t1), 3, V(vL))
    k.op("v_xor_b32", V(t0), V(p8), V(g))
    k.op("v_lshlrev_b32", V(t0), 4, V(t0))
    k.op("v_lshl_add_u32", V(t0), V(t1), 10, V(t0))
    k.op("s_lshl_b32", S(sAo), S(sJ), 18)
    k.op("s_lshl_b32", S(sT0), S(sW), 16)
    k.op("s_add_u32", S(sAo), S(sAo), S(sT0))
    k.op("v_add_u32", V(VA), S(sAo), V(t0))
    k.op("v_xor_b32", V(VA + 1), 64, V(VA))
    k.op("v_add_u32", V(VA + 1), 7168, V(VA + 1))
    k.op("v_add_u32", V(VA + 2), 2 * 7168, V(VA))
    k.op("v_add_u32", V(VA + 3), 2 * 7168, V(VA + 1))
    sKr, sW2k = 49, 50
    k.op("s_add_u32", S(sKr), S(sJ), S(sT2))
    k.op("s_and_b32", S(sKr), S(sKr), krot)
    k.op("s_lshl_b32", S(sW2k), S(sW), 11)
    k.op("s_lshl_b32", S(sR), "s2", 3)
    k.op("s_lshl_b32", S(sT1), S(sW), 1)
    k.op("s_add_u32", S(sR), S(sR), S(sT1))
    k.op("s_lshl_b32", S(sR), S(sR), 10)
    k.wait(lgkm=0)
    stp.stamp()
    load_srd(k, sX, "x", 84)
    k.op("buffer_load_dwordx4", V(X0, 4), V(vL16), S(sX, 4), S(sR), mods="offen"); vq.issue("ln")
    k.op("buffer_load_dwordx4", V(X1, 4), V(vL16), S(sX, 4), S(sR), mods="offen offset:1024"); vq.issue("ln")
    load_srd(k, sC, "ckv", 86); load_srd(k, sWK, "wuk", 88); load_srd(k, sWV, "wuv", 90)
    def aslot(s): return 65536 + (s % 3) * 32768
    def wslot(ks): return (ks % 4) * 16384
    def dma_w_items(ks):
        it = []
        for kv in range(2):
            def setup(kv=kv):
                k.op("s_add_u32", "m0", S(sW2k), wslot(ks) + kv * 8192)
                if kv == 0:
                    k.op("s_xor_b32", S(sSo), S(sKr), ks >> 1)
                    k.op("s_lshl_b32", S(sSo), S(sSo), 19)
                    if ks & 1: k.op("s_add_u32", S(sSo), S(sSo), 262144)
                else: k.op("s_nop", 0)
            it.append(setup)
            for i in range(2):
                def f(i=i, kv=kv):
                    k.op("buffer_load_dwordx4", V(VW2 + i), S(sWV if kv else sWK, 4), S(sSo), mods=f"offen offset:{i*1024} lds"); vq.issue(("W", ks))
                it.append(f)
        return it
    def dma_a_items(s, u):
        it = []
        def setup():
            k.op("s_add_u32", "m0", S(sW8k), aslot(s) + u * 4096)
            k.op("s_xor_b32", S(sSo), S(sKr), s)
            k.op("s_lshl_b32", S(sSo), S(sSo), 7)
            if u: k.op("s_add_u32", S(sSo), S(sSo), 32768)
        it.append(setup)
        for i in range(4):
            def f(i=i):
                k.op("buffer_load_dwordx4", V(VA + i), S(sC, 4), S(sSo), mods=f"offen offset:{i*1024} lds"); vq.issue(("A", s))
            it.append(f)
        return it
    for f in dma_w_items(0) + dma_a_items(0, 0) + dma_a_items(0, 1): f()
    late = dma_w_items(1) + dma_w_items(2) + dma_a_items(1, 0) + dma_a_items(1, 1)
    stp.stamp()
    load_srd(k, sWS, "ws", 94)
    k.op("v_lshl_or_b32", V(t1), V(g1), 2, V(r_))
    k.op("v_lshl_add_u32", V(t0), V(g), 3, V(r_))
    k.op("v_lshlrev_b32", V(t0), 8, V(t0))
    k.op("v_lshl_add_u32", V(t0), V(cc), 3, V(t0))
    k.op("s_lshl_b32", S(sT0), S(sKV), 13)
    k.op("v_add_u32", V(t0), S(sT0), V(t0))
    for nb in range(8):
        k.op("v_xor_b32", V(12), nb, V(t1))
        k.op("v_lshl_add_u32", V(TA + nb), V(12), 5, V(t0))
    k.op("v_lshrrev_b32", V(t1), 1, V(l15))
    k.op("v_xor_b32", V(t1), V(t1), V(g))
    k.op("v_lshlrev_b32", V(t1), 4, V(t1))
    k.op("v_lshl_add_u32", V(t1), V(l15), 7, V(t1))
    k.op("s_and_b32", S(sT0), S(sW), 1)
    k.op("s_lshl_b32", S(sT0), S(sT0), 14)
    k.op("s_add_u32", S(sT0), S(sT0), 65536)
    k.op("v_add_u32", V(AAr), S(sT0), V(t1))
    k.op("v_xor_b32", V(AAr + 1), 64, V(AAr))
    k.op("v_add_u32", V(AAr + 2), 65536, V(AAr))
    k.op("v_add_u32", V(AAr + 3), 65536, V(AAr + 1))
    k.op("s_lshl_b32", S(sSt), S(sH), 19)
    k.op("s_lshl_b32", S(sT1), S(sJ), 16)
    k.op("s_add_u32", S(sSt), S(sSt), S(sT1))
    k.op("s_and_b32", S(sT1), S(sW), 1)
    k.op("s_lshl_b32", S(sT1), S(sT1), 15)
    k.op("s_add_u32", S(sSt), S(sSt), S(sT1))
    k.op("s_mov_b32", S(sT1), VF_OFF)
    k.op("s_cmp_eq_u32", S(sKV), 0)
    k.op("s_cselect_b32", S(sT1), KF_OFF, S(sT1))
    k.op("s_add_u32", S(sSt), S(sSt), S(sT1))
    vLd, vLz = VZ, VZ + 1
    k.op("v_mov_b32", V(vLz), 0)
    k.op("s_lshl_b32", S(sFL), "s2", 2)
    k.op("s_add_u32", S(sFL), S(sFL), FL_OFF)
    k.op("s_lshl_b32", S(sFA), S(sH), 7)
    k.op("s_lshl_b32", S(sT1), S(sJ), 2)
    k.op("s_add_u32", S(sFA), S(sFA), S(sT1))
    k.op("s_add_u32", S(sFA), S(sFA), FA_OFF)
    k.op("s_lshl_b32", S(sF2), S(sJ), 8)
    k.op("s_lshl_b32", S(sT1), S(sH), 2)
    k.op("s_add_u32", S(sF2), S(sF2), S(sT1))
    k.op("s_add_u32", S(sF2), S(sF2), FLAG2_OFF)
    k.op("s_and_b32", S(sT1), "s2", 1)
    k.op("s_lshl_b32", S(sF3), S(sT1), 13)
    k.op("s_bfe_u32", S(sT1), "s2", "0x30003")
    k.op("s_lshl_b32", S(sT1), S(sT1), 10)
    k.op("s_add_u32", S(sF3), S(sF3), S(sT1))
    k.op("s_lshr_b32", S(sT1), "s2", 6)
    k.op("s_lshl_b32", S(sT1), S(sT1), 8)
    k.op("s_add_u32", S(sF3), S(sF3), S(sT1))
    k.op("s_and_b32", S(sT1), "s2", 6)
    k.op("s_lshl_b32", S(sT1), S(sT1), 1)
    k.op("s_add_u32", S(sF3), S(sF3), S(sT1))
    k.op("s_add_u32", S(sF3), S(sF3), FLAG_OFF)
    k.op("s_add_u32", S(57), S(sF2), 128)
    one_lane_store(k, sW, sWS, [sFL, sFA, sF2, sF3, 57], 0, VZ + 4)
    k.op("s_mov_b32", S(sDb), S(92))
    k.op("s_and_b32", S(sDb + 1), S(93), "0xffff")
    k.op("s_mov_b32", S(sDb + 2), 256)
    k.op("s_mov_b32", S(sDb + 3), "0x20000")
    GB = 131072
    LN2 = 84
    vq.need("ln")
    k.op("s_lshl_b32", S(sT1), S(sW), 5)
    k.op("s_add_u32", S(sT1), S(sT1), GB)
    k.op("v_lshlrev_b32", V(vLd), 7, V(vL))
    k.op("v_add_u32", V(vLd), S(sT1), V(vLd))
    k.op("s_lshl_b32", S(sT1), S(sW), 4)
    k.op("s_add_u32", S(sT1), S(sT1), GB + 8192)
    k.op("v_mov_b32", V(VZ + 2), S(sT1))
    ln = Kern("ln")
    for r, X in enumerate((X0, X1)):
        layernorm(ln, X, LN2 + 4, LN2 + 8, LN2 + 16)
        layernorm(ln, LN2 + 4, LN2 + 24, LN2 + 8, LN2 + 16, stats_only=True)
        ln.op("ds_write_b128", V(vLd), V(LN2 + 4, 4), mods=f"offset:{16*r}")
        ln.op("ds_write_b64", V(VZ + 2), V(LN2 + 24, 2), mods=f"offset:{8*r}")
        ln.wait(lgkm=0)
    for i, ins in enumerate(ln.ins):
        k.ins.append(ins)
        if i % 12 == 5 and late: late.pop(0)()
    for f in late: f()
    k.op("s_lshl_b32", S(sT1), S(sW), 11)
    k.op("s_add_u32", S(sT1), S(sT1), GB)
    k.op("v_add_u32", V(vLd), S(sT1), V(vL16))
    k.op("v_lshrrev_b32", V(VZ + 3), 3, V(vL))
    k.op("v_lshlrev_b32", V(VZ + 3), 8, V(VZ + 3))
    k.op("v_lshl_add_u32", V(VZ + 3), V(p8), 4, V(VZ + 3))
    k.op("s_lshr_b32", S(sR + 1), "s2", 1)
    k.op("s_lshl_b32", S(sR + 1), S(sR + 1), 14)
    k.op("s_and_b32", S(sT1), "s2", 1)
    k.op("s_lshl_b32", S(sT1), S(sT1), 7)
    k.op("s_add_u32", S(sR + 1), S(sR + 1), S(sT1))
    k.op("s_add_u32", S(sR + 1), S(sR + 1), S(sW4k))
    k.op("s_lshl_b32", S(sR + 2), "s2", 6)
    k.op("s_add_u32", S(sR + 2), S(sR + 2), YF_OFF)
    k.op("v_and_b32", V(VZ + 2), 48, V(vL16))
    k.op("v_add_u32", V(LN2 + 30), GB + 8192, V(VZ + 2))
    k.op("s_barrier")
    k.op("ds_read_b128", V(LN2, 4), V(vLd))
    k.op("ds_read_b128", V(LN2 + 4, 4), V(vLd), mods="offset:1024")
    k.op("ds_read_b128", V(LN2 + 8, 4), V(LN2 + 30))
    k.wait(lgkm=0)
    k.op("buffer_store_dwordx4", V(LN2, 4), V(VZ + 3), S(sWS, 4), S(sR + 1), mods="offen sc1"); vq.issue("lnst")
    k.op("buffer_store_dwordx4", V(LN2 + 4, 4), V(VZ + 3), S(sWS, 4), S(sR + 1), mods="offen offset:2048 sc1"); vq.issue("lnst")
    k.op("buffer_store_dwordx4", V(LN2 + 8, 4), V(VZ + 2), S(sWS, 4), S(sR + 2), mods="offen sc1"); vq.issue("lnst")

    def pf_k2():
        k.op("s_lshr_b32", S(sT1), "s2", 3)
        k.op("s_lshl_b32", S(sT1), S(sT1), 2)
        k.op("s_add_u32", S(sT1), S(sT1), S(sW))
        k.op("s_and_b32", S(sT0), "s2", 7)
        load_srd(k, sX, "wq", 96)
        k.op("v_bfe_u32", V(12), V(vL), 3, 2)
        k.op("v_lshlrev_b32", V(13), 13, V(12))
        k.op("v_lshl_add_u32", V(13), V(p8), 7, V(13))
        k.op("s_lshl_b32", S(57), S(sT1), 15)
        k.op("s_lshl_b32", S(sT2), S(sT0), 10)
        k.op("s_add_u32", S(57), S(57), S(sT2))
        k.op("buffer_load_dword", V(15), V(13), S(sX, 4), S(57), mods="offen", dummy=True); vq.issue()
        load_srd(k, sX, "w1", 98)
        k.op("v_mul_u32_u24", V(13), 2752, V(12))
        k.op("v_lshl_add_u32", V(13), V(p8), 6, V(13))
        k.op("s_mul_i32", S(57), S(sT1), 4 * 2752)
        k.op("s_mul_i32", S(sT2), S(sT0), 384)
        k.op("s_add_u32", S(57), S(57), S(sT2))
        k.op("buffer_load_dword", V(15), V(13), S(sX, 4), S(57), mods="offen", dummy=True); vq.issue()
        k.op("s_lshl_b32", S(57), S(sT1), 13)
        pf_code(k, sX, "k2_kernel", "k2_slow_0-k2_kernel", 13, vL, 57, 15); vq.issue()

    k.op("s_cmp_lg_u32", S(sKV), 0)
    k.op("s_cbranch_scc1", "k1_V")
    vq0, lq0, n0 = copy.deepcopy((vq.q, vq.ever)), copy.deepcopy((lq.q, lq.ever)), stp.n
    for kv in range(2):
        if kv:
            k.label("k1_V")
            vq.q, vq.ever = copy.deepcopy(vq0); lq.q, lq.ever = copy.deepcopy(lq0); stp.n = n0
        onst = lambda i: vq.issue() if i.kind == "vstore" else None
        q1, q2 = FillQ(k), FillQ(k, on_emit=onst)
        K2VW, K2VW1, sLd = 108, 112, 98
        def k2_setup():
            e = Kern("e")
            load_srd(e, 12, "wq", 96); load_srd(e, 16, "w1", 98)
            for i in range(4): e.op("v_mov_b32", V(K2VW + i), V(VW + i))
            e.op("v_lshlrev_b32", V(84), 1, V(g1))
            e.op("v_xor_b32", V(84), V(84), V(p8))
            e.op("v_lshlrev_b32", V(84), 4, V(84))
            e.op("v_lshrrev_b32", V(85), 3, V(vL))
            e.op("v_mul_u32_u24", V(85), 2752, V(85))
            e.op("s_mul_i32", S(38), S(sW), 32 * 2752)
            e.op("s_mul_i32", S(39), S(sH), 96)
            e.op("s_add_u32", S(38), S(38), S(39))
            e.op("v_add_u32", V(85), S(38), V(85))
            e.op("v_add_u32", V(K2VW1), V(85), V(84))
            e.op("v_xor_b32", V(84), 64, V(84))
            e.op("v_add_u32", V(K2VW1 + 1), V(85), V(84))
            e.op("v_add_u32", V(K2VW1 + 1), 8 * 2752 - 1024, V(K2VW1 + 1))
            e.op("v_add_u32", V(K2VW1 + 2), 2 * (8 * 2752 - 1024), V(K2VW1))
            e.op("v_add_u32", V(K2VW1 + 3), 2 * (8 * 2752 - 1024), V(K2VW1 + 1))
            e.op("s_lshl_b32", S(38), S(sJ), 17)
            e.op("s_lshl_b32", S(39), S(sW), 15)
            e.op("s_add_u32", S(sLd), S(38), S(39))
            e.op("s_add_u32", S(sLd + 1), S(sLd), 16384)
            e.op("s_sub_u32", S(sLd + 2), 1920 * 1024, S(38))
            e.op("s_add_u32", S(sLd + 2), S(sLd + 2), S(39))
            e.op("s_add_u32", S(sLd + 3), S(sLd + 2), 16384)
            return e
        def k2_pages():
            it = []
            for pg, (srd, vb, so) in enumerate([(16, K2VW1, 0), (12, K2VW, 0), (12, K2VW, 524288)]):
                def setup(pg=pg, so=so):
                    k.op("s_add_u32", "m0", S(sW4k), pg * 16384)
                    k.op("s_mov_b32", S(41), so)
                it.append(setup)
                for i in range(4):
                    def f(i=i, srd=srd, vb=vb):
                        k.op("buffer_load_dwordx4", V(vb + i), S(srd, 4), S(41), mods=f"offen offset:{i*1024} lds"); vq.issue()
                    it.append(f)
            return it
        def k2_xn(ks):
            it = []
            for rb in range(4):
                def f(rb=rb):
                    k.op("buffer_load_dwordx4", A((ks * 4 + rb) * 4, 4), V(vL16), S(sWS, 4), S(sLd + rb), mods=f"offen offset:{ks*1024} sc1"); vq.issue()
                it.append(f)
            return it
        def acc(rb, nb): return (rb * 8 + nb) * 4
        def chunk(c):
            if kv == 0: rb, ds = c >> 2, c & 3; return acc(rb, 2 * ds), acc(rb, 2 * ds + 1)
            kb, db = c >> 3, c & 7; return acc(2 * kb, db), acc(2 * kb + 1, db)
        def epi_kern(c, park=None):
            e = Kern("e")
            a, b = chunk(c)
            t = PK + 8 * (epi_n[0] % 4); epi_n[0] += 1
            for i in range(4): e.op("v_accvgpr_read_b32", V(t + i), A(a + i))
            for i in range(4): e.op("v_accvgpr_read_b32", V(t + 4 + i), A(b + i))
            d = t if park is None else park
            for i in range(4): e.op("v_cvt_pk_bf16_f32", V(d + i), V(t + 2 * i), V(t + 2 * i + 1))
            if park is None:
                e.op("s_add_u32", S(sSo2), S(sSt), c * 1024)
                e.op("buffer_store_dwordx4", V(t, 4), V(vL16), S(sWS, 4), S(sSo2), mods=f"offen{store_mods}")
            return e
        epi_n = [0]
        def ready_nb(c): return (2 * (c & 3) + 1) if kv == 0 else (c & 7)
        def zst():
            lab = k.newlabel("noz")
            k.op("v_mov_b32", V(VZ + 5), 1)
            k.op("s_cmp_lg_u32", S(sW), 0); k.op("s_cbranch_scc1", lab)
            k.op("s_mov_b64", "exec", 1)
            k.op("buffer_store_byte", V(VZ + 5), V(vLz), S(sDb, 4), "s2", mods="offen sc1")
            k.op("s_mov_b64", "exec", -1)
            k.label(lab)
        pz = lambda: k.op("buffer_load_dword", V(242), V(243), S(sDb, 4), 0, mods="offen sc1")
        pl = lambda: k.op("buffer_load_dword", V(241), V(240), S(sWS, 4), S(sFL), mods="offen sc1")
        def switch(ks):
            need = [("W", ks)] + ([("A", ks >> 1)] if ks % 2 == 0 else [])
            vq.need(*need, cnt=[4, 8][:len(need)])
            if ks == 3: vq.need("lnst", cnt=[3])
            k.op("s_barrier")
            if ks == 0: stp.stamp()
            if ks == 12:
                vq.need("pz")
                spin_until(k, f"k1_sz{kv}", pz, lambda: k.op("v_cmp_ne_u32", "vcc", "0x01010101", V(242)), sT1)
            if ks == 15:
                vq.need("pp")
                spin_until(k, f"k1_sp{kv}", pl, lambda: k.op("v_cmp_ne_u32", "vcc", 1, V(241)), sT1)
            q1.flush()
            if ks >= 1 and ks + 2 < 16:
                for f in dma_w_items(ks + 2): q1.add(f)
            sN = ((ks + 1) >> 1) + 1
            if ks >= 1 and sN < 8 and sN >= 2:
                for f in dma_a_items(sN, (ks + 1) & 1): q1.add(f)
            if ks == 2: q1.add(zst)
            if ks == 3: q1.add(lambda: one_lane_store(k, sW, sWS, [sFL], 1, VZ + 4))
            if ks == 10:
                def a():
                    k.op("v_lshlrev_b32", V(243), 2, V(vL)); pz(); vq.issue("pz")
                q1.add(a)
            if ks == 13:
                def a():
                    k.op("s_lshl_b32", S(sT1), S(sJ), 6)
                    k.op("s_sub_u32", S(sT2), 960, S(sT1))
                    k.op("v_mov_b32", V(240), S(sT1))
                    k.op("v_mov_b32", V(241), S(sT2))
                    k.op("v_cmp_eq_u32", "vcc", 0, V(g1))
                    k.op("s_mov_b32", S(sFL), FL_OFF)
                    k.nop(1)
                    k.op("v_cndmask_b32", V(240), V(241), V(240), "vcc")
                    k.op("v_lshl_add_u32", V(240), V(l15), 2, V(240))
                    pl(); vq.issue("pp")
                q1.add(a)
            if ks == 14: q1.add_kern(k2_setup())
            for rb in range(8):
                def f(rb=rb):
                    off = aslot(ks >> 1) - 65536
                    wn = off // 65536
                    k.op("ds_read_b128", V(AFB + (ks % 2) * 32 + rb * 4, 4), V(AAr + 2 * wn + (ks & 1)), mods=f"offset:{off - wn*65536 + rb*2048}")
                    lq.issue(("a", ks))
                qa.add(f)
        qa = FillQ(k)
        def rd_w(n, i):
            ks, nb = n >> 3, n & 7
            if nb == 0 and i == 0: switch(ks)
            k.op("ds_read_b64_tr_b16", V(WF + (n % 8) * 4 + 2 * i, 2), V(TA + nb), mods=f"offset:{wslot(ks) + i*1024}")
            lq.issue(("w", n))
        rd_w(0, 0); rd_w(0, 1); qa.flush()
        for n in range(1, D):
            rd_w(n, 0); rd_w(n, 1)
        direct = list(range(32 - npark))
        done = set()
        for n in range(128):
            ks, nb = n >> 3, n & 7
            if n in (32, 64, 96): stp.stamp()
            if pf2 and n == pf2at * 8 + 4: pf_k2()
            if ks == 15:
                for c in direct:
                    if c not in done and ready_nb(c) + 2 <= nb:
                        q2.add_kern(epi_kern(c)); done.add(c)
            lq.need(("w", n), ("a", ks), cnt=[2, 8])
            wf = V(WF + (n % 8) * 4, 4)
            for rb in range(8):
                d = A(acc(rb, nb), 4); af = V(AFB + (ks % 2) * 32 + rb * 4, 4)
                if kv == 0: k.op("v_mfma_f32_16x16x32_bf16", d, wf, af, "0" if ks == 0 else d)
                else: k.op("v_mfma_f32_16x16x32_bf16", d, af, wf, "0" if ks == 0 else d)
                if rb < 2 and n + D < 128: rd_w(n + D, rb)
                elif rb in (2, 4, 6) and len(qa): qa.emit(1)
                elif rb in (3, 7) or ks >= 14: q1.emit(1)
                if ks == 15: q2.emit(2)
        stp.stamp()
        q1.flush()
        k.op("s_barrier")
        stp.stamp()
        rest = [c for c in direct if c not in done]
        for c in [c for c in rest if c < 8]: q2.add_kern(epi_kern(c))
        pages = k2_pages()
        while len(q2):
            q2.emit(5)
            if pages: pages.pop(0)()
        stp.stamp()
        loads = pages + [f for ks in range(4) for f in k2_xn(ks)]
        def pv(i): return AFB + i if i < 64 else WF + (i - 64)
        for i, c in enumerate(range(32 - npark, 32)): q2.add_kern(epi_kern(c, park=pv(4 * i)))
        w = Kern("w")
        for i in range(4 * npark): w.op("v_accvgpr_write_b32", A(192 - 4 * npark + i), V(pv(i)))
        q2.add_kern(w)
        while len(q2) or loads:
            q2.emit(9)
            if loads: loads.pop(0)()
        for c in [c for c in rest if c >= 8]: q2.add_kern(epi_kern(c))
        q2.flush()
        k.op("s_add_u32", S(50), S(sSt), (32 - npark) * 1024)
        if stamps:
            stp.stamp()
            stp.flush(sWS, sW, 4)
        k.op("s_mov_b32", "s3", S(sFA))
        k.raw("  s_branch k2_kernel")
        k.op("s_endpgm")
    k.label("k1_end")
    k.op("s_endpgm")
    return k

if __name__ == "__main__":
    k = build_k1()
    for e in k.check_hazards(): print(e)
    for e in k.check_waits(): print(e)
    print(k.maxregs(), len(k.ins))
```

```python
from common import *
import struct
def f32(x): return hex(struct.unpack("<I", struct.pack("<f", x))[0])
LOG2E = 1.4426950408889634
QSCALE = LOG2E / (128 ** 0.5)
STAT_OFF = YF_OFF

def build_k2(stamps=False, D=6, DA=8, thr=2.0 ** 80, pf3=True, fuse3=False, xnobar=False, xnodma=False, oolmask=True, pfself=True, fused1=False, early1=False, pace=True, wp=4, early3=False, park=0, pst=4, fast=6):
    k = Kern("k2_kernel")
    SC = " sc1" if fused1 else ""
    XN = (192 - 4 * park) // 16 if park else 12
    vq, lq = Q(k, "vmcnt", 63), Q(k, "lgkmcnt", 15)
    stp = Stamps(k, stamps, 62, 1, lq, maxn=8)
    sWS, sWQ, sW1, sK, sV, sB1 = 8, 12, 16, 20, 24, 28
    sW, sH, sP, sNa, sNb, sT = 32, 33, 34, 35, 36, 37
    sT0, sT1, sT2, sSo = 38, 39, 40, 41
    sP2, sP1, sRd, sNx = 42, 43, 44, 45
    sTK, sTV, sW4k, sThr, sRet = 46, 47, 48, 49, 50
    sXa, sXb = 51, 52
    sCa, sCb = 53, 54
    sM = 56
    sLd = 98
    vL, vL16, vA, vD, vZ, vNinf = 1, 2, 3, 4, 5, 6
    vPs = [7, 8]; vLs = [9, 10]; vMx = [11, 12]
    vT = 13
    vCo = 20
    QR, NEGM, SR = 32, 96, 128
    def Sreg(sub, par): return SR + sub * 64 + par * 32
    OA, FR = 64, 192
    TA, TB, VW, VW1 = 96, 104, 108, 112
    vXo = 21
    MACC = 32
    ONES = 116
    XR = 0

    k.op("s_cmp_ge_u32", "s2", 256)
    k.op("s_cbranch_scc1", "k2_end")
    if pfself:
        pf_self(k, "k2_slow_0", vt=254); vq.issue()
    k.op("s_load_dwordx2", S(84, 2), S(0, 2), KA["wq"])
    k.op("s_load_dwordx4", S(88, 4), S(0, 2), KA["w1"])
    k.op("s_load_dwordx2", S(92, 2), S(0, 2), KA["ws"])
    k.op("s_load_dwordx2", S(86, 2), S(0, 2), KA["wo"])
    k.op("s_load_dwordx2", S(96, 2), S(0, 2), KA["w2"])
    k.op("v_and_b32", V(vL), 63, "v0")
    k.op("v_lshrrev_b32", V(13), 6, "v0")
    k.op("s_and_b32", S(sT0), "s2", 7)
    k.op("v_readfirstlane_b32", S(sW), V(13))
    k.op("s_lshr_b32", S(sT1), "s2", 3)
    k.op("s_and_b32", S(sT2), S(sT1), 3)
    k.op("s_lshl_b32", S(sH), S(sT0), 2)
    k.op("s_add_u32", S(sH), S(sH), S(sT2))
    k.op("s_lshr_b32", S(sP), S(sT1), 2)
    k.op("v_lshlrev_b32", V(vL16), 4, V(vL))
    k.op("s_lshl_b32", S(sW4k), S(sW), 12)
    k.op("v_add_u32", V(vD), S(sW4k), V(vL16))
    g, l15, p8, l3, r_, cc, g1, t7 = 22, 23, 24, 25, 26, 27, 28, 29
    k.op("v_lshrrev_b32", V(g), 4, V(vL))
    k.op("v_and_b32", V(l15), 15, V(vL))
    k.op("v_and_b32", V(p8), 7, V(vL))
    k.op("v_lshrrev_b32", V(l3), 3, V(vL))
    k.op("v_bfe_u32", V(r_), V(vL), 2, 2)
    k.op("v_and_b32", V(cc), 3, V(vL))
    k.op("v_and_b32", V(g1), 1, V(g))
    k.op("v_lshlrev_b32", V(t7), 1, V(g))
    k.op("v_xor_b32", V(t7), V(t7), V(l15))
    k.op("v_lshlrev_b32", V(t7), 4, V(t7))
    k.op("v_lshl_add_u32", V(t7), V(g), 13, V(t7))
    k.op("s_lshl_b32", S(sT0), S(sW), 17)
    k.op("s_lshl_b32", S(sT1), S(sH), 8)
    k.op("s_add_u32", S(sT0), S(sT0), S(sT1))
    k.op("v_add_u32", V(VW), S(sT0), V(t7))
    k.op("v_add_u32", V(VW + 1), 32768 - 1024, V(VW))
    k.op("v_xor_b32", V(VW + 2), 128, V(VW))
    k.op("v_add_u32", V(VW + 2), 2 * (32768 - 1024), V(VW + 2))
    k.op("v_add_u32", V(VW + 3), 32768 - 1024, V(VW + 2))
    k.op("v_lshlrev_b32", V(t7), 1, V(g1))
    k.op("v_xor_b32", V(t7), V(t7), V(p8))
    k.op("v_lshlrev_b32", V(t7), 4, V(t7))
    k.op("v_mul_u32_u24", V(30), 2752, V(l3))
    k.op("s_mul_i32", S(sT0), S(sW), 32 * 2752)
    k.op("s_mul_i32", S(sT1), S(sH), 96)
    k.op("s_add_u32", S(sT0), S(sT0), S(sT1))
    k.op("v_add_u32", V(30), S(sT0), V(30))
    k.op("v_add_u32", V(VW1), V(30), V(t7))
    k.op("v_xor_b32", V(t7), 64, V(t7))
    k.op("v_add_u32", V(VW1 + 1), V(30), V(t7))
    k.op("v_add_u32", V(VW1 + 1), 8 * 2752 - 1024, V(VW1 + 1))
    k.op("v_add_u32", V(VW1 + 2), 2 * (8 * 2752 - 1024), V(VW1))
    k.op("v_add_u32", V(VW1 + 3), 2 * (8 * 2752 - 1024), V(VW1 + 1))
    k.op("s_lshl_b32", S(sT0), S(sP), 7)
    k.op("s_lshl_b32", S(sT1), S(sW), 5)
    k.op("s_add_u32", S(sXa), S(sT0), S(sT1))
    k.op("s_sub_u32", S(sXb), 1920, S(sT0))
    k.op("s_add_u32", S(sXb), S(sXb), S(sT1))
    k.op("s_lshl_b32", S(sT2), S(sH), 12)
    k.op("s_add_u32", S(sT2), S(sT2), CTX_OFF)
    k.op("s_lshl_b32", S(sCa), S(sXa), 13)
    k.op("s_add_u32", S(sCa), S(sCa), S(sT2))
    k.op("s_lshl_b32", S(sCb), S(sXb), 13)
    k.op("s_add_u32", S(sCb), S(sCb), S(sT2))
    sRa, sRb = 94, 95
    k.op("s_mov_b32", S(sRa), S(sXa)); k.op("s_mov_b32", S(sRb), S(sXb))
    sHr = 56
    for rb in range(4):
        k.op("s_lshr_b32", S(sHr + rb), S(sRa if rb < 2 else sRb), 4)
        k.op("s_add_u32", S(sHr + rb), S(sHr + rb), rb & 1)
        k.op("s_mul_i32", S(sHr + rb), S(sHr + rb), 43 * 1024)
    k.op("s_lshl_b32", S(sXa), S(sXa), 10)
    k.op("s_lshl_b32", S(sXb), S(sXb), 10)
    k.op("s_lshr_b32", S(sT1), S(sW), 1)
    k.op("s_lshl_b32", S(sT0), S(sP), 1)
    k.op("s_add_u32", S(sNa), S(sT0), S(sT1))
    k.op("s_add_u32", S(sNa), S(sNa), 1)
    k.op("s_sub_u32", S(sNb), 31, S(sT0))
    k.op("s_add_u32", S(sNb), S(sNb), S(sT1))
    k.wait(lgkm=0)
    stp.stamp()
    load_srd(k, sWQ, "wq", 84); load_srd(k, sW1, "w1", 88); load_srd(k, sWS, "ws", 92)

    pages = {}
    order = []
    for j in range(4):
        order += [("W1", j), ("WQ", 2 * j), ("WQ", 2 * j + 1)]
    for i, p in enumerate(order): pages[p] = i
    for t in range(6): pages[("K", t)] = 12 + 2 * t; pages[("V", t)] = 15 + 2 * t
    def slot(p): return (pages[p] % 10) * 16384
    def dma_items(p):
        kind, j = p
        def setup():
            k.op("s_add_u32", "m0", S(sW4k), slot(p))
            k.op("s_mov_b32", S(sSo), {"W1": j * 128 * 2752, "WQ": j * 524288, "K": j * 16384, "V": (j + 1) * 16384}[kind])
        def ld(i):
            def f():
                if kind == "WQ": k.op("buffer_load_dwordx4", V(VW + i), S(sWQ, 4), S(sSo), mods=f"offen offset:{i*1024} lds")
                elif kind == "W1": k.op("buffer_load_dwordx4", V(VW1 + i), S(sW1, 4), S(sSo), mods=f"offen offset:{i*1024} lds")
                else: k.op("buffer_load_dwordx4", V(vD), S(sK if kind == "K" else sV, 4), S(sSo), mods=f"offen offset:{i*1024}{SC} lds")
                vq.issue(p)
            return f
        return [setup] + [ld(i) for i in range(4)]
    def xn_load(ks, rb):
        def f():
            r = XR + ((ks % XN) * 4 + rb) * 4
            if ks & 3 == 0: k.op("s_add_u32", S(sLd + rb), S(sXa if rb < 2 else sXb), (rb & 1) * 16384 + (ks >> 2) * 4096)
            k.op("buffer_load_dwordx4", A(r, 4), V(vL16), S(sWS, 4), S(sLd + rb), mods=f"offen offset:{(ks&3)*1024}" + SC)
            vq.issue(("x", ks))
        return f
    if early1:
        for p in (("W1", 0), ("WQ", 0), ("WQ", 1)):
            for _ in range(4): vq.issue(p)
        for ks in range(4):
            for _ in range(4): vq.issue(("x", ks))
        for _ in range(0 if park else 2): vq.issue()
    else:
        for p in (("W1", 0), ("WQ", 0)):
            for f in dma_items(p): f()
        for ks in range(2):
            for rb in range(4): xn_load(ks, rb)()
        for f in dma_items(("WQ", 1)): f()
        for ks in range(2, 4):
            for rb in range(4): xn_load(ks, rb)()
    load_srd(k, sB1, "b1", 90)
    k.op("s_lshl_b32", S(sT0), S(sH), 19)
    k.op("s_add_u32", S(sT1), S(sT0), KF_OFF)
    k.op("s_add_u32", S(sK), S(92), S(sT1))
    k.op("s_addc_u32", S(sK + 1), S(93), 0)
    k.op("s_and_b32", S(sK + 1), S(sK + 1), "0xffff")
    k.op("s_lshl_b32", S(sT2), S(sP), 15)
    k.op("s_sub_u32", S(sK + 2), 32 * 16384, S(sT2))
    k.op("s_mov_b32", S(sK + 3), "0x20000")
    k.op("s_add_u32", S(sT1), S(sT0), VF_OFF - 16384)
    k.op("s_add_u32", S(sV), S(92), S(sT1))
    k.op("s_addc_u32", S(sV + 1), S(93), 0)
    k.op("s_and_b32", S(sV + 1), S(sV + 1), "0xffff")
    k.op("s_add_u32", S(sV + 2), S(sK + 2), 16384)
    k.op("s_mov_b32", S(sV + 3), "0x20000")
    k.op("v_lshl_or_b32", V(30), V(g1), 2, V(r_))
    k.op("v_lshl_add_u32", V(31), V(g), 3, V(r_))
    k.op("v_lshlrev_b32", V(t7), 8, V(31))
    k.op("v_lshl_add_u32", V(t7), V(cc), 3, V(t7))
    for nb in range(8):
        k.op("v_xor_b32", V(13), nb, V(30))
        k.op("v_lshl_add_u32", V(TA + nb), V(13), 5, V(t7))
    k.op("v_lshrrev_b32", V(13), 1, V(r_))
    k.op("v_lshl_or_b32", V(30), V(g1), 1, V(13))
    k.op("v_lshlrev_b32", V(t7), 7, V(31))
    k.op("v_lshl_add_u32", V(t7), V(cc), 3, V(t7))
    for nb in range(3):
        k.op("v_xor_b32", V(13), nb, V(30))
        k.op("v_lshl_add_u32", V(TB + nb), V(13), 5, V(t7))
    for i in range(4): k.op("v_mov_b32", V(ONES + i), "0x3f803f80")
    ST = 120
    B1 = [92, 94, 30]
    k.op("v_lshlrev_b32", V(13), 3, V(l15))
    for rb in range(4):
        k.op("s_lshl_b32", S(sT0), S(sRa if rb < 2 else sRb), 3)
        k.op("s_add_u32", S(sT0), S(sT0), STAT_OFF + (rb & 1) * 128)
        k.op("buffer_load_dwordx2", V(ST + 2 * rb, 2), V(13), S(sWS, 4), S(sT0), mods="offen" + SC); vq.issue("st")
    k.op("v_lshlrev_b32", V(14), 3, V(g))
    k.op("s_mul_i32", S(sT1), S(sH), 96)
    for nb in range(3):
        k.op("buffer_load_dwordx2", V(B1[nb], 2), V(14), S(sB1, 4), S(sT1), mods=f"offen offset:{nb*32}"); vq.issue("st")
    win = {"TA": 0, "TB": 0}
    def set_window(name, base, n, off):
        w = off // 65536
        if win[name] != w:
            d = (w - win[name]) * 65536
            for i in range(n): k.op("v_add_u32", V(base + i), hex(d & 0xffffffff), V(base + i))
            win[name] = w
        return off - w * 65536
    frs = []
    for ks in range(16):
        for nb in range(3): frs.append(("W1", ks, nb))
        for nb in range(8): frs.append(("WQ", ks, nb))
    NF = len(frs)
    q1 = FillQ(k)
    plan = {0: [("W1", 1), ("WQ", 2)], 1: [("WQ", 3)], 2: [("W1", 2), ("WQ", 4)], 3: [("WQ", 5)], 4: [("W1", 3), ("WQ", 6)],
            5: [("WQ", 7)], 6: [("K", 0), ("K", 1)], 7: [("V", 0), ("K", 2)]}
    def stage_switch(s):
        need = [("WQ", s)] + ([("W1", s // 2)] if s % 2 == 0 else [])
        vq.need(*need, cnt=[4] * len(need))
        if park and s == fast: vq.need("pk", cnt=[park])
        k.op("s_barrier")
        q1.flush()
        if fused1 and s == (fast if park else 2):
            one_lane_store(k, sW, sWS, [3], 1, 18)
        if fused1 and s == (7 if park else 5):
            k.op("s_lshl_b32", S(55), S(sH), 7)
            k.op("s_add_u32", S(55), S(55), FA_OFF)
            k.op("v_lshlrev_b32", V(18), 2, V(p8))
            k.op("buffer_load_dword", V(19), V(18), S(sWS, 4), S(55), mods="offen sc1"); vq.issue("pp")
        if fused1 and s == 6 and not park:
            vq.need("pp")
            spin_until(k, "k2_sp", lambda: k.op("buffer_load_dword", V(19), V(18), S(sWS, 4), S(55), mods="offen sc1"),
                       lambda: k.op("v_cmp_ne_u32", "vcc", 1, V(19)), sT1)
        if 2 * s + 4 < 16:
            for rb in range(4): q1.add(xn_load(2 * s + 4, rb))
        for p in plan[s]:
            if park and p[0] in "KV": continue
            for f in dma_items(p): q1.add(f)
        sts = []
        for i in range(pst):
            c = s * pst + i
            if c >= park: break
            def st_(c=c):
                k.op("buffer_store_dwordx4", A(192 - 4 * park + c * 4, 4), V(vL16), S(sWS, 4), S(50), mods=f"offen offset:{(c%4)*1024} sc1"); vq.issue("pk")
                if c % 4 == 3: k.op("s_add_u32", S(50), S(50), 4096)
            sts.append(st_)
        for f in sts[:len(sts) // 2]: q1.add(f)
        if 2 * s + 5 < 16:
            for rb in range(4): q1.add(xn_load(2 * s + 5, rb))
        for f in sts[len(sts) // 2:]: q1.add(f)
    def read_frag(n, which):
        kind, ks, nb = frs[n]
        if n % 22 == 0 and which == 0: stage_switch(n // 22)
        r = FR + (n % 16) * 4
        if kind == "WQ":
            off = slot(("WQ", ks // 2)) + (ks & 1) * 8192 + which * 1024
            off = set_window("TA", TA, 8, slot(("WQ", ks // 2))) + (ks & 1) * 8192 + which * 1024
            k.op("ds_read_b64_tr_b16", A(r + 2 * which, 2), V(TA + nb), mods=f"offset:{off}")
        else:
            off = set_window("TB", TB, 3, slot(("W1", ks // 4))) + (ks & 3) * 4096 + which * 512
            k.op("ds_read_b64_tr_b16", A(r + 2 * which, 2), V(TB + nb), mods=f"offset:{off}")
        lq.issue(("w", n))
    def qacc(nb, rb): return SR + 4 * (nb * 4 + rb)
    def macc(nb, rb): return MACC + 4 * (nb * 4 + rb)
    for n in range(D):
        read_frag(n, 0); read_frag(n, 1)
    stp.stamp()
    for n in range(NF):
        kind, ks, nb = frs[n]
        if n % 11 == 0: vq.need(("x", ks), cnt=[4])
        if n % 2 == 0: lq.need(("w", n), ("w", n + 1), cnt=[2, 2])
        wf = A(FR + (n % 16) * 4, 4)
        first = ks == 0
        ms = []
        for rb in range(4):
            d = V(qacc(nb, rb) if kind == "WQ" else macc(nb, rb), 4)
            ms.append((d, A(XR + ((ks % XN) * 4 + rb) * 4, 4)))
        if kind == "W1": ms.append((V(MACC + 48 + 4 * nb, 4), V(ONES, 4)))
        for c, (d, b) in enumerate(ms):
            k.op("v_mfma_f32_16x16x32_bf16", d, wf, b, "0" if first else d)
            if c < 2 and n + D < NF: read_frag(n + D, c)
            elif not pace or c == 2 or (c == 3 and len(q1) > 22 - (n % 22 + D) % 22): q1.emit(2 if (len(q1) > 12 and not pace) else 1)
    q1.flush()
    stp.stamp()
    if park:
        vq.need("pp")
        spin_until(k, "k2_sp", lambda: k.op("buffer_load_dword", V(19), V(18), S(sWS, 4), S(55), mods="offen sc1"),
                   lambda: k.op("v_cmp_ne_u32", "vcc", 1, V(19)), sT1)
        k.op("s_barrier")
        for p in (("K", 0), ("K", 1), ("V", 0), ("K", 2)):
            for f in dma_items(p): f()
    else:
        vq.need(("K", 0), cnt=[4])
        k.op("s_barrier")
        for p in (("V", 1), ("K", 3), ("V", 2)):
            for f in dma_items(p): f()
    k.op("v_mul_u32_u24", V(15), 44032, V(g1))
    k.op("v_lshrrev_b32", V(16), 5, V(vL))
    k.op("v_lshl_add_u32", V(15), V(16), 8, V(15))
    k.op("v_lshl_add_u32", V(15), V(l15), 4, V(15))
    C1, C2 = -2 * LOG2E * 0.7978845608028654, -2 * LOG2E * 0.7978845608028654 * 0.044715
    k.op("v_mov_b32", V(16), f32(C1)); k.op("v_mov_b32", V(17), f32(C2))
    k.op("v_mov_b32", V(18), "1.0"); k.op("v_mov_b32", V(19), "1.0")
    def P(r): return V(r, 2)
    bb, t = 96, 100
    for nb in range(3):
        k.op("v_lshlrev_b32", V(bb), 16, V(B1[nb]))
        k.op("v_and_b32", V(bb + 1), "0xffff0000", V(B1[nb]))
        k.op("v_lshlrev_b32", V(bb + 2), 16, V(B1[nb] + 1))
        k.op("v_and_b32", V(bb + 3), "0xffff0000", V(B1[nb] + 1))
        cs = MACC + 48 + 4 * nb
        k.op("s_mul_i32", S(sT1), S(sH), 3)
        k.op("s_add_u32", S(sT1), S(sT1), nb)
        k.op("s_lshl_b32", S(sT2), S(sT1), 9)
        k.op("s_add_u32", S(sT2), S(sT2), HF_OFF)
        lab = k.newlabel("skiph")
        k.op("s_cmp_ge_u32", S(sT1), 86)
        k.op("s_cbranch_scc1", lab)
        for rp in range(2):
            rbs = (2 * rp, 2 * rp + 1)
            def each(fn):
                for j, rb in enumerate(rbs):
                    for i in (0, 2): fn(macc(nb, rb) + i, t + 4 * j + i, ST + 2 * rb, i)
            each(lambda a, tt, st, i: k.op("v_pk_fma_f32", P(a), P(cs + i), P(st), P(a), mods="op_sel_hi:[1,0,1] neg_lo:[1,0,0] neg_hi:[1,0,0]"))
            each(lambda a, tt, st, i: k.op("v_pk_fma_f32", P(a), P(a), P(st), P(bb + i), mods="op_sel:[0,1,0]"))
            each(lambda a, tt, st, i: k.op("v_pk_mul_f32", P(tt), P(a), P(a)))
            each(lambda a, tt, st, i: k.op("v_pk_fma_f32", P(tt), P(tt), P(16), P(16), mods="op_sel:[0,1,0] op_sel_hi:[1,1,0]"))
            each(lambda a, tt, st, i: k.op("v_pk_mul_f32", P(tt), P(tt), P(a)))
            for i in range(8): k.op("v_exp_f32", V(t + i), V(t + i))
            each(lambda a, tt, st, i: k.op("v_pk_add_f32", P(tt), P(tt), P(18)))
            for i in range(8): k.op("v_rcp_f32", V(t + i), V(t + i))
            each(lambda a, tt, st, i: k.op("v_pk_mul_f32", P(a), P(a), P(tt)))
            a0, a1 = macc(nb, rbs[0]), macc(nb, rbs[1])
            k.op("v_cvt_pk_bf16_f32", V(a0), V(a0), V(a0 + 1))
            k.op("v_cvt_pk_bf16_f32", V(a0 + 1), V(a0 + 2), V(a0 + 3))
            k.op("v_cvt_pk_bf16_f32", V(a0 + 2), V(a1), V(a1 + 1))
            k.op("v_cvt_pk_bf16_f32", V(a0 + 3), V(a1 + 2), V(a1 + 3))
            k.op("s_add_u32", S(sT0), S(sHr + 2 * rp), S(sT2))
            k.nop(1)
            k.op("v_permlane16_swap_b32", V(a0), V(a0 + 2))
            k.op("v_permlane16_swap_b32", V(a0 + 1), V(a0 + 3))
            k.op("buffer_store_dwordx4", V(a0, 4), V(15), S(sWS, 4), S(sT0), mods="offen" + (" sc1" if fuse3 else ""))
        k.label(lab)
    if park:
        for p in (("V", 1), ("K", 3), ("V", 2)):
            for f in dma_items(p): f()
    k.op("v_mov_b32", V(16), f32(QSCALE)); k.op("v_mov_b32", V(17), f32(QSCALE))
    def Qreg(sub, qb, ds): return QR + sub * 32 + qb * 16 + ds * 4
    for rb in range(4):
        for ds in range(4):
            X = Qreg(rb >> 1, rb & 1, ds)
            for half in range(2):
                a = qacc(2 * ds + half, rb)
                for i in (0, 2): k.op("v_pk_mul_f32", P(a + i), P(a + i), P(16))
                k.op("v_cvt_pk_bf16_f32", V(X + 2 * half), V(a), V(a + 1))
                k.op("v_cvt_pk_bf16_f32", V(X + 2 * half + 1), V(a + 2), V(a + 3))
    stp.stamp()
    def Ngm(sub, qb): return NEGM + sub * 8 + qb * 4
    def Lac(sub, qb): return 112 + sub * 8 + qb * 4
    ON1 = 24
    k.op("s_and_b32", S(sT0), S(sW), 1)
    k.op("s_lshl_b32", S(sT0), S(sT0), 5)
    k.op("v_add_u32", V(vZ), S(sT0), V(l15))
    k.op("v_lshlrev_b32", V(15), 2, V(g))
    k.op("v_sub_u32", V(vZ), V(vZ), V(15))
    k.op("v_mov_b32", V(vNinf), f32(-1e30))
    for i in range(4): k.op("v_mov_b32", V(ON1 + i), "0x3f803f80")
    for i in range(16): k.op("v_mov_b32", V(112 + i), 0)
    k.op("s_mov_b32", S(sThr), f32(thr))
    k.op("s_mov_b32", S(sP2), 0)
    k.op("s_mov_b32", S(sNx), 98304)
    k.op("s_mov_b32", S(sTK), 4 * 16384)
    k.op("s_mov_b32", S(sT), 2)

    def mf(d, a, b, c): k.op("v_mfma_f32_16x16x32_bf16", d, a, b, c)
    def mask_block(sub, par):
        s0 = Sreg(sub, par)
        for e0 in range(0, 32, 2):
            for u in range(2):
                e = e0 + u; qb, kb, r = e >> 4, (e >> 2) & 3, e & 3
                k.op("v_cmp_gt_i32", S(sM + 2 * u, 2), 16 * kb + r - 16 * qb, V(vZ))
            k.nop(1)
            for u in range(2):
                k.op("v_cndmask_b32", V(s0 + e0 + u), V(s0 + e0 + u), V(vNinf), S(sM + 2 * u, 2))
    def ereg(n):
        k32, qb, j = n >> 4, (n >> 3) & 1, n & 7
        return qb * 16 + k32 * 8 + j
    def soft_exp(sub, par, n):
        r = Sreg(sub, par) + ereg(n)
        k.op("v_exp_f32", V(r), V(r))
    def soft_cvt(sub, par, n):
        e = n - 2
        r = Sreg(sub, par) + ereg(e)
        d = Sreg(sub, par) + (ereg(e) & ~7) + ((e & 7) >> 1)
        k.op("v_cvt_pk_bf16_f32", V(d), V(r), V(r + 1))
    def rd(frag, isV):
        k.op("ds_read_b128", A(FR + frag * 4, 4), V(vA), mods=f"offset:{(16384 if isV else 0) + frag*1024}")
    def ldK(i): return lambda: k.op("buffer_load_dwordx4", V(vD), S(sK, 4), S(sTK), mods=f"offen offset:{i*1024}{SC} lds")
    def ldV(i): return lambda: k.op("buffer_load_dwordx4", V(vD), S(sV, 4), S(sTK), mods=f"offen offset:{i*1024}{SC} lds")
    m0K = lambda: k.op("s_add_u32", "m0", S(sP2), S(sW4k))
    m0V = lambda: k.op("s_add_u32", "m0", "m0", 16384)
    advT = lambda: k.op("s_add_u32", S(sTK), S(sTK), 16384)
    advP = lambda: k.op("s_add_u32", S(sP2), S(sP2), 32768)
    wrapP = lambda: (k.op("s_cmp_eq_u32", S(sP2), 163840), k.op("s_cselect_b32", S(sP2), 0, S(sP2)))
    XA = {1: [ldK(2)], 5: [ldK(3)], 7: [m0V], 9: [ldV(0)], 13: [ldV(1)]}
    XB = {1: [ldV(2)], 5: [ldV(3)], 7: [advT, advP], 9: [wrapP, m0K], 11: [ldK(0)], 15: [ldK(1)]}
    if DA == 6:
        XB = {1: [ldV(2)], 5: [ldV(3)], 7: [advT, advP], 9: [wrapP], 11: [m0K], 13: [ldK(0)], 15: [ldK(1)]}
    WP = wp
    def phaseA(par, qk, ex):
        if not qk:
            k.wait(lgkm=0)
            for f in range(DA): rd(f, True)
            for n in range(16, 32):
                for sub in ex:
                    soft_exp(sub, par, n)
                    if n % 2 == 0: soft_cvt(sub, par, n)
            return
        for f in range(16):
            kb, ds = f >> 2, f & 3
            if f % WP == 0: k.wait(lgkm=DA - WP)
            for j, sub in enumerate(qk):
                xs = ex if len(qk) == 1 else [sub]
                for qb in range(2):
                    d = V(Sreg(sub, 1 - par) + qb * 16 + kb * 4, 4)
                    mf(d, A(FR + f * 4, 4), V(Qreg(sub, qb, ds), 4), V(Ngm(sub, qb), 4) if ds == 0 else d)
                    if qb == 0:
                        for x in xs: soft_exp(x, par, 16 + f)
                if j == 0:
                    nf = f + DA
                    if nf < 16: rd(nf, False)
                    else: rd(nf - 16, True)
                if f % 2 == 0:
                    for x in xs: soft_cvt(x, par, 16 + f)
                if j == len(qk) - 1:
                    for fn in XA.get(f, []): fn()
    def phaseB(par, pv, exn, bar="always", tailops=()):
        extra = list(tailops)
        for f in range(16):
            k32, db = f >> 3, f & 7
            if f % WP == 0: k.wait(lgkm=DA - WP if bar == "always" else max(0, min(DA - WP, 16 - f - WP)))
            for j, sub in enumerate(pv):
                for qb in range(2):
                    d = A(OA + sub * 64 + (db * 2 + qb) * 4, 4)
                    mf(d, A(FR + f * 4, 4), V(Sreg(sub, par) + qb * 16 + k32 * 8, 4), d)
                    if qb == 0 and sub in exn: soft_exp(sub, 1 - par, f)
                if j == 0:
                    nf = f + DA
                    if nf == 16:
                        if bar == "always":
                            k.wait(vm=16); k.op("s_barrier")
                        elif bar == "w01":
                            lab = k.newlabel("nobar")
                            k.op("s_cmp_ge_u32", S(sW), 2); k.op("s_cbranch_scc1", lab)
                            k.wait(vm=8); k.op("s_barrier")
                            k.label(lab)
                        k.op("v_add_u32", V(vA), S(sNx), V(vL16))
                    if bar == "always" or nf < 16:
                        if nf < 16: rd(nf, True)
                        else: rd(nf - 16, False)
                if f == 0: soft_cvt(sub, par, 32)
                elif f % 2 == 0 and sub in exn: soft_cvt(sub, 1 - par, f)
                if f % 4 == 3:
                    qb = (f >> 2) & 1
                    d = V(Lac(sub, qb), 4)
                    mf(d, V(ON1, 4), V(Sreg(sub, par) + qb * 16 + k32 * 8, 4), d)
                if j == len(pv) - 1 and bar == "always":
                    for fn in XB.get(f, []): fn()
                    if f in (3, 13, 14) and extra: extra.pop(0)()
        for fn in extra: fn()
    def nx_items():
        return [lambda: k.op("s_add_u32", S(sT), S(sT), 1),
                lambda: k.op("s_add_u32", S(sNx), S(sNx), 32768),
                lambda: (k.op("s_cmp_eq_u32", S(sNx), 163840), k.op("s_cselect_b32", S(sNx), 0, S(sNx)))]
    def rowmax(sub, par, qb, dst):
        s0 = Sreg(sub, par) + 16 * qb
        k.op("v_max3_f32", V(dst), V(s0), V(s0 + 1), V(s0 + 2))
        for e in range(3, 15, 2): k.op("v_max3_f32", V(dst), V(dst), V(s0 + e), V(s0 + e + 1))
        k.op("v_max_f32", V(dst), V(dst), V(s0 + 15))
        for sw in ("v_permlane16_swap_b32", "v_permlane32_swap_b32"):
            k.op("v_mov_b32", V(vT + 1), V(dst))
            k.nop(2)
            k.op(sw, V(dst), V(vT + 1))
            k.op("v_max_f32", V(dst), V(dst), V(vT + 1))
    slow_sites = {}
    def epilogue(sub, site):
        t = Sreg(sub, 0)
        k.nop(8)
        k.op("v_max_f32", V(vT), V(Lac(sub, 0)), V(Lac(sub, 1)))
        k.op("v_add_f32", V(vT + 1), V(Lac(sub, 0)), V(Lac(sub, 1)))
        k.op("v_cmp_nle_f32", "vcc", V(vT + 1), V(21))
        k.op("s_mov_b32", S(sRet), site)
        k.op("s_cbranch_vccnz", f"k2_slow_{sub}")
        lab = f"k2_ret_{sub}_{site}"
        k.label(lab)
        slow_sites.setdefault(sub, []).append((site, lab))
        k.op("v_rcp_f32", V(vT + 3), V(Lac(sub, 0)))
        k.op("v_rcp_f32", V(vT + 4), V(Lac(sub, 1)))
        for qb in range(2):
            if qb: k.op("s_add_u32", S(sT0), S(sCa if sub == 0 else sCb), 131072)
            for ks in range(4):
                b = t + (qb * 4 + ks) * 8
                for half in range(2):
                    for i in range(4):
                        k.op("v_accvgpr_read_b32", V(b + 4 * half + i), A(OA + sub * 64 + ((2 * ks + half) * 2 + qb) * 4 + i))
                for i in range(0, 8, 2):
                    k.op("v_pk_mul_f32", P(b + i), P(b + i), P(vT + 3), mods="op_sel_hi:[1,0]" if qb == 0 else "op_sel:[0,1]")
                for i in range(4): k.op("v_cvt_pk_bf16_f32", V(b + i), V(b + 2 * i), V(b + 2 * i + 1))
                k.op("buffer_store_dwordx4", V(b, 4), V(vL16), S(sWS, 4), S(sT0 if qb else (sCa if sub == 0 else sCb)),
                     mods=f"offen offset:{ks*1024}" + (" sc1" if fuse3 else ""))
    k.op("v_mov_b32", V(21), S(sThr))
    k.op("v_add_u32", V(vT), 32768, V(vL16))
    if park:
        k.wait(vm=24)
        k.op("s_barrier")
    for f in range(16): k.op("ds_read_b128", A(f * 4, 4), V(vT), mods=f"offset:{f*1024}")
    zi = 0
    for f in range(16):
        kb, ds = f >> 2, f & 3
        k.wait(lgkm=15 - f)
        for sub in range(2):
            for qb in range(2):
                d = V(Sreg(sub, 0) + qb * 16 + kb * 4, 4)
                mf(d, A(f * 4, 4), V(Qreg(sub, qb, ds), 4), "0" if ds == 0 else d)
                for _ in range(2):
                    k.op("v_accvgpr_write_b32", A(OA + zi), 0); zi += 1
    k.wait(vm=0 if fuse3 else 12)
    k.op("s_barrier")
    if fuse3:
        k.op("s_lshl_b32", S(sT0), S(sP), 8)
        k.op("s_lshl_b32", S(sT1), S(sH), 2)
        k.op("s_add_u32", S(sT0), S(sT0), S(sT1))
        k.op("s_add_u32", S(sT0), S(sT0), FLAG2_OFF + 128)
        one_lane_store(k, sW, sWS, [sT0], 1, vT + 4)
    m0K()
    k.op("v_add_u32", V(vA), 65536, V(vL16))
    ldK(0)(); ldK(1)()
    for f in range(DA): rd(f, False)
    lab = k.newlabel("nomask0")
    k.op("s_cmp_lg_u32", S(sNa), 1); k.op("s_cbranch_scc1", lab)
    mask_block(0, 0)
    k.label(lab)
    for sub in range(2):
        for qb in range(2):
            rowmax(sub, 0, qb, vT + 2)
            n0 = Ngm(sub, qb)
            for i in range(4): k.op("v_sub_f32", V(n0 + i), 0, V(vT + 2))
            for e in range(0, 16, 2): k.op("v_pk_add_f32", P(Sreg(sub, 0) + 16 * qb + e), P(Sreg(sub, 0) + 16 * qb + e), P(n0))
    for n in range(16):
        for sub in range(2):
            soft_exp(sub, 0, n)
        for sub in range(2):
            if n % 2 == 0 and n: soft_cvt(sub, 0, n)
    def pf_k3():
        load_srd(k, sWQ, "wo", 86); load_srd(k, sW1, "w2", 96)
        k.op("s_bfe_u32", S(sT0), "s2", "0x20001")
        k.op("s_lshr_b32", S(sT2), "s2", 3)
        k.op("s_lshl_b32", S(sT2), S(sT2), 2)
        k.op("s_add_u32", S(sT2), S(sT2), S(sW))
        k.op("s_lshl_b32", S(sT1), S(sT0), 20)
        k.op("s_lshl_b32", S(sSo), S(sT2), 13)
        k.op("s_add_u32", S(sT1), S(sT1), S(sSo))
        k.op("v_lshlrev_b32", V(vT), 7, V(vL))
        k.op("buffer_load_dword", V(12), V(vT), S(sWQ, 4), S(sT1), mods="offen", dummy=True)
        k.op("s_mul_i32", S(sT1), S(sT0), 384 * 1024)
        k.op("s_mul_i32", S(sT0), S(sT2), 3072)
        k.op("s_add_u32", S(sT1), S(sT1), S(sT0))
        k.op("v_and_b32", V(vT + 2), 31, V(vL))
        k.op("v_lshlrev_b32", V(vT + 2), 7, V(vT + 2))
        k.op("buffer_load_dword", V(12), V(vT + 2), S(sW1, 4), S(sT1), mods="offen", dummy=True)
        pf_code(k, sB1, "k3_kernel", "k3_end-k3_kernel", vT, vL, sSo, 12)
    if pf3 == 3: pf_k3()
    stp.stamp()
    k.op("s_cmp_lt_u32", 1, S(sNa))
    k.op("s_cbranch_scc0", "k2_DL0")
    ool = []
    sl_hooks = []
    def maskif(sub, par):
        lab, lab2 = k.newlabel("nomask"), k.newlabel("domask")
        k.op("s_cmp_eq_u32", S(sT), S(sNa if sub == 0 else sNb)); k.op("s_cbranch_scc1", lab2)
        k.label(lab)
        ool.append((lab2, lab, sub, par))
    for par in range(2):
        k.label(f"k2_DD{par}")
        phaseA(par, [0, 1], [0, 1])
        maskif(0, 1 - par)
        phaseB(par, [0, 1], [0, 1], tailops=nx_items())
        k.op("s_cmp_le_u32", S(sT), S(sNa))
        k.op("s_cbranch_scc0", f"k2_DL{1-par}")
        if par == 1: k.op("s_branch", "k2_DD0")
    for par in range(2):
        k.label(f"k2_DL{par}")
        phaseA(par, [1], [0, 1])
        phaseB(par, [0, 1], [1], tailops=nx_items())
        epilogue(0, par)
        if pf3 == 2: pf_k3()
        k.op("s_branch", f"k2_SS{1-par}")
    for par in range(2):
        k.label(f"k2_SS{par}")
        phaseA(par, [1], [1])
        maskif(1, 1 - par)
        phaseB(par, [1], [1], tailops=nx_items())
        k.op("s_cmp_le_u32", S(sT), S(sNb))
        k.op("s_cbranch_scc0", f"k2_SL{1-par}")
        if par == 1: k.op("s_branch", "k2_SS0")
    for par in range(2):
        k.label(f"k2_SL{par}")
        if pf3 == 1: pf_k3()
        if early3: sl_hooks.append(len(k.ins))
        phaseA(par, [], [1])
        k.nop(2)
        phaseB(par, [1], [], bar="w01")
        if par == 0: k.op("s_branch", "k2_fin")
    k.label("k2_fin")
    stp.stamp()
    if early3:
        e2, eMt, eNt, eS, eRot, eAo, eWc, eAc, eMa = 12, 16, 17, 18, 19, 28, 29, 30, 31
        ev = 7
        def e_setup():
            load_srd(k, e2, "w2", 96)
            k.op("s_bfe_u32", S(eS), "s2", "0x20001")
            k.op("s_and_b32", S(eMt), "s2", 1)
            k.op("s_lshl_b32", S(eMt), S(eMt), 3)
            k.op("s_bfe_u32", S(eNt), "s2", "0x30003")
            k.op("s_add_u32", S(eMt), S(eMt), S(eNt))
            k.op("s_lshr_b32", S(eNt), "s2", 6)
            k.op("s_add_u32", S(eRot), S(eMt), S(eNt))
            k.op("s_and_b32", S(eRot), S(eRot), 3)
            k.op("s_lshl_b32", S(eAo), S(eMt), 3)
            k.op("s_lshl_b32", S(eWc), S(sW), 1)
            k.op("s_add_u32", S(eAo), S(eAo), S(eWc))
            k.op("s_mul_i32", S(eAo), S(eAo), 44032)
            k.op("s_add_u32", S(eAo), S(eAo), HF_OFF)
            k.op("v_mov_b32", V(ev), V(vL16))
            k.op("v_add_u32", V(ev + 1), 44032 - 1024, V(vL16))
            k.op("v_lshlrev_b32", V(ev + 2), 1, V(g))
            k.op("v_xor_b32", V(ev + 2), V(ev + 2), V(l15))
            k.op("v_lshlrev_b32", V(ev + 2), 4, V(ev + 2))
            k.op("v_lshl_add_u32", V(ev + 2), V(g), 10, V(ev + 2))
            k.op("s_lshl_b32", S(eWc), S(eNt), 8)
            k.op("s_lshl_b32", S(eAc), S(sW), 13)
            k.op("s_add_u32", S(eWc), S(eWc), S(eAc))
            k.op("v_add_u32", V(ev + 2), S(eWc), V(ev + 2))
            k.op("s_and_b32", S(eWc), S(sW), 1)
            k.op("s_lshl_b32", S(eWc), S(eWc), 7)
            k.op("v_xor_b32", V(ev + 2), S(eWc), V(ev + 2))
            k.op("v_add_u32", V(ev + 3), 4096 - 1024, V(ev + 2))
            k.op("s_lshl_b32", S(eMa), S(sW), 11)
            k.op("s_sub_u32", S(eWc), 15, S(eMt))
            k.op("s_min_u32", S(eMt), S(eMt), S(eWc))
            k.op("s_lshl_b32", S(eMt), S(eMt), 8)
            k.op("s_add_u32", S(eMt), S(eMt), FLAG2_OFF + 128)
            k.op("v_and_b32", V(ev + 4), 7, V(vL))
            k.op("s_lshl_b32", S(eWc), S(eS), 3)
            k.op("v_add_u32", V(ev + 4), S(eWc), V(ev + 4))
            k.op("v_lshlrev_b32", V(ev + 4), 2, V(ev + 4))
        e_poll = lambda: k.op("buffer_load_dword", V(ev + 5), V(ev + 4), S(sWS, 4), S(eMt), mods="offen sc1")
        def e_issue(tag):
            k.wait(vm=8, lgkm=0)
            spin_until(k, f"k2_sh{tag}", e_poll, lambda: k.op("v_cmp_ne_u32", "vcc", 1, V(ev + 5)), eAc, sleep=8)
            k.op("s_barrier")
            for st in range(3):
                k.op("s_add_u32", S(eNt), S(eRot), st)
                k.op("s_cmp_ge_u32", S(eNt), 3)
                k.op("s_cselect_b32", S(eWc), 3, 0)
                k.op("s_sub_u32", S(eNt), S(eNt), S(eWc))
                k.op("s_mul_i32", S(eWc), S(eS), 6)
                k.op("s_add_u32", S(eNt), S(eNt), S(eWc))
                k.op("s_lshl_b32", S(eWc), S(eNt), 16)
                k.op("s_lshl_b32", S(eNt), S(eNt), 1)
                for u in range(2):
                    k.op("s_add_u32", "m0", S(eMa), st * 32768 + u * 16384 + 8192)
                    k.op("s_add_u32", S(eAc), S(eNt), u)
                    for j in range(2):
                        k.op("buffer_load_dwordx4", V(ev + 2 + j), S(e2, 4), S(eWc), mods=f"offen offset:{j*1024} lds")
                    k.op("s_add_u32", "m0", S(eMa), st * 32768 + u * 16384)
                    k.op("s_add_u32", S(eWc), S(eWc), 32768)
                    k.op("s_min_u32", S(eAc), S(eAc), 42)
                    k.op("s_lshl_b32", S(eAc), S(eAc), 10)
                    k.op("s_add_u32", S(eAc), S(eAc), S(eAo))
                    for j in range(2):
                        k.op("buffer_load_dwordx4", V(ev + j), S(sWS, 4), S(eAc), mods=f"offen offset:{j*1024} sc1 lds")
        for pos in reversed(sl_hooks):
            n0 = len(k.ins)
            e_setup(); e_poll()
            blk = k.ins[n0:]; del k.ins[n0:]
            k.ins[pos:pos] = blk
        epilogue(1, 0)
        e_issue(0)
    else:
        epilogue(1, 0)
    if stamps:
        k.wait(vm=0, lgkm=0)
        stp.stamp()
        stp.flush(sWS, sW, 13)
    if fuse3:
        k.op("s_lshl_b32", S(sT0), S(sP), 8)
        k.op("s_lshl_b32", S(sT1), S(sH), 2)
        k.op("s_add_u32", S(sT0), S(sT0), S(sT1))
        k.op("s_add_u32", S(96), S(sT0), FLAG2_OFF)
        k.wait(lgkm=0)
        k.raw("  s_branch k3_kernel")
    k.op("s_endpgm")
    for (lab2, lab, sub, par) in ool:
        k.label(lab2)
        k.nop(8)
        mask_block(sub, par)
        k.op("s_branch", lab)
    sU, sUo = 60, 61
    for sub, sites in sorted(slow_sites.items()):
        s0 = Sreg(sub, 0)
        m = [Ngm(sub, 0), Ngm(sub, 1)]
        k.label(f"k2_slow_{sub}")
        k.nop(8)
        for i in range(64): k.op("v_accvgpr_write_b32", A(OA + sub * 64 + i), 0)
        for qb in range(2):
            k.op("v_mov_b32", V(m[qb]), f32(-1e30))
            for i in range(4): k.op("v_mov_b32", V(Lac(sub, qb) + i), 0)
        k.op("s_mov_b32", S(sU), 1)
        k.op("s_mov_b32", S(sUo), 0)
        loop = f"k2_slowloop_{sub}"
        k.label(loop)
        for c in range(4):
            k.op("s_add_u32", S(sLd), S(sUo), c * 4096)
            for i in range(4): k.op("buffer_load_dwordx4", A((c * 4 + i) * 4, 4), V(vL16), S(sK, 4), S(sLd), mods=f"offen offset:{i*1024}" + SC)
        k.wait(vm=0)
        for f in range(16):
            kb, ds = f >> 2, f & 3
            for qb in range(2):
                d = V(s0 + qb * 16 + kb * 4, 4)
                mf(d, A(f * 4, 4), V(Qreg(sub, qb, ds), 4), "0" if ds == 0 else d)
        for c in range(4):
            k.op("s_add_u32", S(sLd), S(sUo), c * 4096 + 16384)
            for i in range(4): k.op("buffer_load_dwordx4", A((c * 4 + i) * 4, 4), V(vL16), S(sV, 4), S(sLd), mods=f"offen offset:{i*1024}" + SC)
        lab = k.newlabel("snomask")
        k.op("s_cmp_lg_u32", S(sU), S(sNa if sub == 0 else sNb)); k.op("s_cbranch_scc1", lab)
        mask_block(sub, 0)
        k.label(lab)
        for qb in range(2):
            al = m[qb] + 1
            rowmax(sub, 0, qb, vT + 3)
            k.op("v_max_f32", V(vT + 3), V(vT + 3), V(m[qb]))
            k.op("v_sub_f32", V(al), V(m[qb]), V(vT + 3))
            k.op("v_mov_b32", V(m[qb]), V(vT + 3))
            k.op("v_exp_f32", V(al), V(al))
            for e in range(16): k.op("v_sub_f32", V(s0 + 16 * qb + e), V(s0 + 16 * qb + e), V(m[qb]))
            for i in range(4): k.op("v_mul_f32", V(Lac(sub, qb) + i), V(Lac(sub, qb) + i), V(al))
            for db in range(8):
                for i in range(4):
                    ar = OA + sub * 64 + (db * 2 + qb) * 4 + i
                    k.op("v_accvgpr_read_b32", V(vT + (i & 1)), A(ar))
                    k.op("v_mul_f32", V(vT + (i & 1)), V(vT + (i & 1)), V(al))
                    k.op("v_accvgpr_write_b32", A(ar), V(vT + (i & 1)))
        for n in range(33):
            if n < 32: soft_exp(sub, 0, n)
            else: k.nop(1)
            if n % 2 == 0 and n: soft_cvt(sub, 0, n)
        k.wait(vm=0)
        k.nop(1)
        for f in range(16):
            k32, db = f >> 3, f & 7
            for qb in range(2):
                d = A(OA + sub * 64 + (db * 2 + qb) * 4, 4)
                mf(d, A(f * 4, 4), V(s0 + qb * 16 + k32 * 8, 4), d)
            if f % 4 == 3:
                qb = (f >> 2) & 1
                d = V(Lac(sub, qb), 4)
                mf(d, V(ON1, 4), V(s0 + qb * 16 + k32 * 8, 4), d)
        k.op("s_add_u32", S(sUo), S(sUo), 16384)
        k.op("s_add_u32", S(sU), S(sU), 1)
        k.nop(8)
        k.op("s_cmp_le_u32", S(sU), S(sNa if sub == 0 else sNb))
        k.op("s_cbranch_scc1", loop)
        for (site, lab) in sites[:-1]:
            k.op("s_cmp_eq_u32", S(sRet), site); k.op("s_cbranch_scc1", lab)
        k.op("s_branch", sites[-1][1])
    k.label("k2_end")
    k.op("s_endpgm")
    return k

if __name__ == "__main__":
    k = build_k2()
    for e in k.check_hazards(): print(e)
    for e in k.check_waits(): print(e)
    print(k.maxregs(), len(k.ins))
```

```python
from common import *
import struct
def f32(x): return hex(struct.unpack("<I", struct.pack("<f", x))[0])
LOG2E = 1.4426950408889634
QSCALE = LOG2E / (128 ** 0.5)
STAT_OFF = YF_OFF

def build_k2(stamps=False, D=6, DA=8, thr=2.0 ** 80, pf3=True, fuse3=False, xnobar=False, xnodma=False, oolmask=True, pfself=True, fused1=False, early1=False, pace=True, wp=4, early3=False, park=0, pst=4, fast=6, mark=False):
    k = Kern("k2_kernel")
    SC = " sc1" if fused1 else ""
    XN = (192 - 4 * park) // 16 if park else 12
    vq, lq = Q(k, "vmcnt", 63), Q(k, "lgkmcnt", 15)
    stp = Stamps(k, stamps, 62, 1, lq, maxn=8)
    sWS, sWQ, sW1, sK, sV, sB1 = 8, 12, 16, 20, 24, 28
    sW, sH, sP, sNa, sNb, sT = 32, 33, 34, 35, 36, 37
    sT0, sT1, sT2, sSo = 38, 39, 40, 41
    sP2, sP1, sRd, sNx = 42, 43, 44, 45
    sTK, sTV, sW4k, sThr, sRet = 46, 47, 48, 49, 50
    sXa, sXb = 51, 52
    sCa, sCb = 53, 54
    sM = 56
    sLd = 98
    vL, vL16, vA, vD, vZ, vNinf = 1, 2, 3, 4, 5, 6
    vPs = [7, 8]; vLs = [9, 10]; vMx = [11, 12]
    vT = 13
    vCo = 20
    QR, NEGM, SR = 32, 96, 128
    def Sreg(sub, par): return SR + sub * 64 + par * 32
    OA, FR = 64, 192
    TA, TB, VW, VW1 = 96, 104, 108, 112
    vXo = 21
    MACC = 32
    ONES = 116
    XR = 0

    k.op("s_cmp_ge_u32", "s2", 256)
    k.op("s_cbranch_scc1", "k2_end")
    if pfself:
        pf_self(k, "k2_slow_0", vt=254); vq.issue()
    k.op("s_load_dwordx2", S(84, 2), S(0, 2), KA["wq"])
    k.op("s_load_dwordx4", S(88, 4), S(0, 2), KA["w1"])
    k.op("s_load_dwordx2", S(92, 2), S(0, 2), KA["ws"])
    k.op("s_load_dwordx2", S(86, 2), S(0, 2), KA["wo"])
    k.op("s_load_dwordx2", S(96, 2), S(0, 2), KA["w2"])
    k.op("v_and_b32", V(vL), 63, "v0")
    k.op("v_lshrrev_b32", V(13), 6, "v0")
    k.op("s_and_b32", S(sT0), "s2", 7)
    k.op("v_readfirstlane_b32", S(sW), V(13))
    k.op("s_lshr_b32", S(sT1), "s2", 3)
    k.op("s_and_b32", S(sT2), S(sT1), 3)
    k.op("s_lshl_b32", S(sH), S(sT0), 2)
    k.op("s_add_u32", S(sH), S(sH), S(sT2))
    k.op("s_lshr_b32", S(sP), S(sT1), 2)
    k.op("v_lshlrev_b32", V(vL16), 4, V(vL))
    k.op("s_lshl_b32", S(sW4k), S(sW), 12)
    k.op("v_add_u32", V(vD), S(sW4k), V(vL16))
    g, l15, p8, l3, r_, cc, g1, t7 = 22, 23, 24, 25, 26, 27, 28, 29
    k.op("v_lshrrev_b32", V(g), 4, V(vL))
    k.op("v_and_b32", V(l15), 15, V(vL))
    k.op("v_and_b32", V(p8), 7, V(vL))
    k.op("v_lshrrev_b32", V(l3), 3, V(vL))
    k.op("v_bfe_u32", V(r_), V(vL), 2, 2)
    k.op("v_and_b32", V(cc), 3, V(vL))
    k.op("v_and_b32", V(g1), 1, V(g))
    k.op("v_lshlrev_b32", V(t7), 1, V(g))
    k.op("v_xor_b32", V(t7), V(t7), V(l15))
    k.op("v_lshlrev_b32", V(t7), 4, V(t7))
    k.op("v_lshl_add_u32", V(t7), V(g), 13, V(t7))
    k.op("s_lshl_b32", S(sT0), S(sW), 17)
    k.op("s_lshl_b32", S(sT1), S(sH), 8)
    k.op("s_add_u32", S(sT0), S(sT0), S(sT1))
    k.op("v_add_u32", V(VW), S(sT0), V(t7))
    k.op("v_add_u32", V(VW + 1), 32768 - 1024, V(VW))
    k.op("v_xor_b32", V(VW + 2), 128, V(VW))
    k.op("v_add_u32", V(VW + 2), 2 * (32768 - 1024), V(VW + 2))
    k.op("v_add_u32", V(VW + 3), 32768 - 1024, V(VW + 2))
    k.op("v_lshlrev_b32", V(t7), 1, V(g1))
    k.op("v_xor_b32", V(t7), V(t7), V(p8))
    k.op("v_lshlrev_b32", V(t7), 4, V(t7))
    k.op("v_mul_u32_u24", V(30), 2752, V(l3))
    k.op("s_mul_i32", S(sT0), S(sW), 32 * 2752)
    k.op("s_mul_i32", S(sT1), S(sH), 96)
    k.op("s_add_u32", S(sT0), S(sT0), S(sT1))
    k.op("v_add_u32", V(30), S(sT0), V(30))
    k.op("v_add_u32", V(VW1), V(30), V(t7))
    k.op("v_xor_b32", V(t7), 64, V(t7))
    k.op("v_add_u32", V(VW1 + 1), V(30), V(t7))
    k.op("v_add_u32", V(VW1 + 1), 8 * 2752 - 1024, V(VW1 + 1))
    k.op("v_add_u32", V(VW1 + 2), 2 * (8 * 2752 - 1024), V(VW1))
    k.op("v_add_u32", V(VW1 + 3), 2 * (8 * 2752 - 1024), V(VW1 + 1))
    k.op("s_lshl_b32", S(sT0), S(sP), 7)
    k.op("s_lshl_b32", S(sT1), S(sW), 5)
    k.op("s_add_u32", S(sXa), S(sT0), S(sT1))
    k.op("s_sub_u32", S(sXb), 1920, S(sT0))
    k.op("s_add_u32", S(sXb), S(sXb), S(sT1))
    k.op("s_lshl_b32", S(sT2), S(sH), 12)
    k.op("s_add_u32", S(sT2), S(sT2), CTX_OFF)
    k.op("s_lshl_b32", S(sCa), S(sXa), 13)
    k.op("s_add_u32", S(sCa), S(sCa), S(sT2))
    k.op("s_lshl_b32", S(sCb), S(sXb), 13)
    k.op("s_add_u32", S(sCb), S(sCb), S(sT2))
    sRa, sRb = 94, 95
    k.op("s_mov_b32", S(sRa), S(sXa)); k.op("s_mov_b32", S(sRb), S(sXb))
    sHr = 56
    for rb in range(4):
        k.op("s_lshr_b32", S(sHr + rb), S(sRa if rb < 2 else sRb), 4)
        k.op("s_add_u32", S(sHr + rb), S(sHr + rb), rb & 1)
        k.op("s_mul_i32", S(sHr + rb), S(sHr + rb), 43 * 1024)
    k.op("s_lshl_b32", S(sXa), S(sXa), 10)
    k.op("s_lshl_b32", S(sXb), S(sXb), 10)
    k.op("s_lshr_b32", S(sT1), S(sW), 1)
    k.op("s_lshl_b32", S(sT0), S(sP), 1)
    k.op("s_add_u32", S(sNa), S(sT0), S(sT1))
    k.op("s_add_u32", S(sNa), S(sNa), 1)
    k.op("s_sub_u32", S(sNb), 31, S(sT0))
    k.op("s_add_u32", S(sNb), S(sNb), S(sT1))
    k.wait(lgkm=0)
    stp.stamp()
    load_srd(k, sWQ, "wq", 84); load_srd(k, sW1, "w1", 88); load_srd(k, sWS, "ws", 92)

    pages = {}
    order = []
    for j in range(4):
        order += [("W1", j), ("WQ", 2 * j), ("WQ", 2 * j + 1)]
    for i, p in enumerate(order): pages[p] = i
    for t in range(6): pages[("K", t)] = 12 + 2 * t; pages[("V", t)] = 15 + 2 * t
    def slot(p): return (pages[p] % 10) * 16384
    def dma_items(p):
        kind, j = p
        def setup():
            k.op("s_add_u32", "m0", S(sW4k), slot(p))
            k.op("s_mov_b32", S(sSo), {"W1": j * 128 * 2752, "WQ": j * 524288, "K": j * 16384, "V": (j + 1) * 16384}[kind])
        def ld(i):
            def f():
                if kind == "WQ": k.op("buffer_load_dwordx4", V(VW + i), S(sWQ, 4), S(sSo), mods=f"offen offset:{i*1024} lds")
                elif kind == "W1": k.op("buffer_load_dwordx4", V(VW1 + i), S(sW1, 4), S(sSo), mods=f"offen offset:{i*1024} lds")
                else: k.op("buffer_load_dwordx4", V(vD), S(sK if kind == "K" else sV, 4), S(sSo), mods=f"offen offset:{i*1024}{SC} lds")
                vq.issue(p)
            return f
        return [setup] + [ld(i) for i in range(4)]
    def xn_load(ks, rb):
        def f():
            r = XR + ((ks % XN) * 4 + rb) * 4
            if ks & 3 == 0: k.op("s_add_u32", S(sLd + rb), S(sXa if rb < 2 else sXb), (rb & 1) * 16384 + (ks >> 2) * 4096)
            k.op("buffer_load_dwordx4", A(r, 4), V(vL16), S(sWS, 4), S(sLd + rb), mods=f"offen offset:{(ks&3)*1024}" + SC)
            vq.issue(("x", ks))
        return f
    if early1:
        for p in (("W1", 0), ("WQ", 0), ("WQ", 1)):
            for _ in range(4): vq.issue(p)
        for ks in range(4):
            for _ in range(4): vq.issue(("x", ks))
        for _ in range(0 if park else 2): vq.issue()
    else:
        for p in (("W1", 0), ("WQ", 0)):
            for f in dma_items(p): f()
        for ks in range(2):
            for rb in range(4): xn_load(ks, rb)()
        for f in dma_items(("WQ", 1)): f()
        for ks in range(2, 4):
            for rb in range(4): xn_load(ks, rb)()
    load_srd(k, sB1, "b1", 90)
    k.op("s_lshl_b32", S(sT0), S(sH), 19)
    k.op("s_add_u32", S(sT1), S(sT0), KF_OFF)
    k.op("s_add_u32", S(sK), S(92), S(sT1))
    k.op("s_addc_u32", S(sK + 1), S(93), 0)
    k.op("s_and_b32", S(sK + 1), S(sK + 1), "0xffff")
    k.op("s_lshl_b32", S(sT2), S(sP), 15)
    k.op("s_sub_u32", S(sK + 2), 32 * 16384, S(sT2))
    k.op("s_mov_b32", S(sK + 3), "0x20000")
    k.op("s_add_u32", S(sT1), S(sT0), VF_OFF - 16384)
    k.op("s_add_u32", S(sV), S(92), S(sT1))
    k.op("s_addc_u32", S(sV + 1), S(93), 0)
    k.op("s_and_b32", S(sV + 1), S(sV + 1), "0xffff")
    k.op("s_add_u32", S(sV + 2), S(sK + 2), 16384)
    k.op("s_mov_b32", S(sV + 3), "0x20000")
    k.op("v_lshl_or_b32", V(30), V(g1), 2, V(r_))
    k.op("v_lshl_add_u32", V(31), V(g), 3, V(r_))
    k.op("v_lshlrev_b32", V(t7), 8, V(31))
    k.op("v_lshl_add_u32", V(t7), V(cc), 3, V(t7))
    for nb in range(8):
        k.op("v_xor_b32", V(13), nb, V(30))
        k.op("v_lshl_add_u32", V(TA + nb), V(13), 5, V(t7))
    k.op("v_lshrrev_b32", V(13), 1, V(r_))
    k.op("v_lshl_or_b32", V(30), V(g1), 1, V(13))
    k.op("v_lshlrev_b32", V(t7), 7, V(31))
    k.op("v_lshl_add_u32", V(t7), V(cc), 3, V(t7))
    for nb in range(3):
        k.op("v_xor_b32", V(13), nb, V(30))
        k.op("v_lshl_add_u32", V(TB + nb), V(13), 5, V(t7))
    for i in range(4): k.op("v_mov_b32", V(ONES + i), "0x3f803f80")
    ST = 120
    B1 = [92, 94, 30]
    k.op("v_lshlrev_b32", V(13), 3, V(l15))
    for rb in range(4):
        k.op("s_lshl_b32", S(sT0), S(sRa if rb < 2 else sRb), 3)
        k.op("s_add_u32", S(sT0), S(sT0), STAT_OFF + (rb & 1) * 128)
        k.op("buffer_load_dwordx2", V(ST + 2 * rb, 2), V(13), S(sWS, 4), S(sT0), mods="offen" + SC); vq.issue("st")
    k.op("v_lshlrev_b32", V(14), 3, V(g))
    k.op("s_mul_i32", S(sT1), S(sH), 96)
    for nb in range(3):
        k.op("buffer_load_dwordx2", V(B1[nb], 2), V(14), S(sB1, 4), S(sT1), mods=f"offen offset:{nb*32}"); vq.issue("st")
    win = {"TA": 0, "TB": 0}
    def set_window(name, base, n, off):
        w = off // 65536
        if win[name] != w:
            d = (w - win[name]) * 65536
            for i in range(n): k.op("v_add_u32", V(base + i), hex(d & 0xffffffff), V(base + i))
            win[name] = w
        return off - w * 65536
    frs = []
    for ks in range(16):
        for nb in range(3): frs.append(("W1", ks, nb))
        for nb in range(8): frs.append(("WQ", ks, nb))
    NF = len(frs)
    q1 = FillQ(k)
    plan = {0: [("W1", 1), ("WQ", 2)], 1: [("WQ", 3)], 2: [("W1", 2), ("WQ", 4)], 3: [("WQ", 5)], 4: [("W1", 3), ("WQ", 6)],
            5: [("WQ", 7)], 6: [("K", 0), ("K", 1)], 7: [("V", 0), ("K", 2)]}
    def stage_switch(s):
        need = [("WQ", s)] + ([("W1", s // 2)] if s % 2 == 0 else [])
        vq.need(*need, cnt=[4] * len(need))
        if park and s == fast: vq.need("pk", cnt=[park])
        k.op("s_barrier")
        q1.flush()
        if fused1 and s == (fast if park else 2):
            one_lane_store(k, sW, sWS, [3], 1, 18)
        if fused1 and s == (7 if park else 5):
            k.op("s_lshl_b32", S(55), S(sH), 7)
            k.op("s_add_u32", S(55), S(55), FA_OFF)
            k.op("v_lshlrev_b32", V(18), 2, V(p8))
            k.op("buffer_load_dword", V(19), V(18), S(sWS, 4), S(55), mods="offen sc1"); vq.issue("pp")
        if fused1 and s == 6 and not park:
            vq.need("pp")
            spin_until(k, "k2_sp", lambda: k.op("buffer_load_dword", V(19), V(18), S(sWS, 4), S(55), mods="offen sc1"),
                       lambda: k.op("v_cmp_ne_u32", "vcc", 1, V(19)), sT1)
        if 2 * s + 4 < 16:
            for rb in range(4): q1.add(xn_load(2 * s + 4, rb))
        for p in plan[s]:
            if park and p[0] in "KV": continue
            for f in dma_items(p): q1.add(f)
        sts = []
        for i in range(pst):
            c = s * pst + i
            if c >= park: break
            def st_(c=c):
                k.op("buffer_store_dwordx4", A(192 - 4 * park + c * 4, 4), V(vL16), S(sWS, 4), S(50), mods=f"offen offset:{(c%4)*1024} sc1"); vq.issue("pk")
                if c % 4 == 3: k.op("s_add_u32", S(50), S(50), 4096)
            sts.append(st_)
        for f in sts[:len(sts) // 2]: q1.add(f)
        if 2 * s + 5 < 16:
            for rb in range(4): q1.add(xn_load(2 * s + 5, rb))
        for f in sts[len(sts) // 2:]: q1.add(f)
    def read_frag(n, which):
        kind, ks, nb = frs[n]
        if n % 22 == 0 and which == 0: stage_switch(n // 22)
        r = FR + (n % 16) * 4
        if kind == "WQ":
            off = slot(("WQ", ks // 2)) + (ks & 1) * 8192 + which * 1024
            off = set_window("TA", TA, 8, slot(("WQ", ks // 2))) + (ks & 1) * 8192 + which * 1024
            k.op("ds_read_b64_tr_b16", A(r + 2 * which, 2), V(TA + nb), mods=f"offset:{off}")
        else:
            off = set_window("TB", TB, 3, slot(("W1", ks // 4))) + (ks & 3) * 4096 + which * 512
            k.op("ds_read_b64_tr_b16", A(r + 2 * which, 2), V(TB + nb), mods=f"offset:{off}")
        lq.issue(("w", n))
    def qacc(nb, rb): return SR + 4 * (nb * 4 + rb)
    def macc(nb, rb): return MACC + 4 * (nb * 4 + rb)
    for n in range(D):
        read_frag(n, 0); read_frag(n, 1)
    stp.stamp()
    for n in range(NF):
        kind, ks, nb = frs[n]
        if n % 11 == 0: vq.need(("x", ks), cnt=[4])
        if n % 2 == 0: lq.need(("w", n), ("w", n + 1), cnt=[2, 2])
        wf = A(FR + (n % 16) * 4, 4)
        first = ks == 0
        ms = []
        for rb in range(4):
            d = V(qacc(nb, rb) if kind == "WQ" else macc(nb, rb), 4)
            ms.append((d, A(XR + ((ks % XN) * 4 + rb) * 4, 4)))
        if kind == "W1": ms.append((V(MACC + 48 + 4 * nb, 4), V(ONES, 4)))
        for c, (d, b) in enumerate(ms):
            k.op("v_mfma_f32_16x16x32_bf16", d, wf, b, "0" if first else d)
            if c < 2 and n + D < NF: read_frag(n + D, c)
            elif not pace or c == 2 or (c == 3 and len(q1) > 22 - (n % 22 + D) % 22): q1.emit(2 if (len(q1) > 12 and not pace) else 1)
    q1.flush()
    stp.stamp()
    if park:
        vq.need("pp")
        spin_until(k, "k2_sp", lambda: k.op("buffer_load_dword", V(19), V(18), S(sWS, 4), S(55), mods="offen sc1"),
                   lambda: k.op("v_cmp_ne_u32", "vcc", 1, V(19)), sT1)
        k.op("s_barrier")
        for p in (("K", 0), ("K", 1), ("V", 0), ("K", 2)):
            for f in dma_items(p): f()
    else:
        vq.need(("K", 0), cnt=[4])
        k.op("s_barrier")
        for p in (("V", 1), ("K", 3), ("V", 2)):
            for f in dma_items(p): f()
    k.op("v_mul_u32_u24", V(15), 44032, V(g1))
    k.op("v_lshrrev_b32", V(16), 5, V(vL))
    k.op("v_lshl_add_u32", V(15), V(16), 8, V(15))
    k.op("v_lshl_add_u32", V(15), V(l15), 4, V(15))
    C1, C2 = -2 * LOG2E * 0.7978845608028654, -2 * LOG2E * 0.7978845608028654 * 0.044715
    k.op("v_mov_b32", V(16), f32(C1)); k.op("v_mov_b32", V(17), f32(C2))
    k.op("v_mov_b32", V(18), "1.0"); k.op("v_mov_b32", V(19), "1.0")
    def P(r): return V(r, 2)
    bb, t = 96, 100
    for nb in range(3):
        k.op("v_lshlrev_b32", V(bb), 16, V(B1[nb]))
        k.op("v_and_b32", V(bb + 1), "0xffff0000", V(B1[nb]))
        k.op("v_lshlrev_b32", V(bb + 2), 16, V(B1[nb] + 1))
        k.op("v_and_b32", V(bb + 3), "0xffff0000", V(B1[nb] + 1))
        cs = MACC + 48 + 4 * nb
        k.op("s_mul_i32", S(sT1), S(sH), 3)
        k.op("s_add_u32", S(sT1), S(sT1), nb)
        k.op("s_lshl_b32", S(sT2), S(sT1), 9)
        k.op("s_add_u32", S(sT2), S(sT2), HF_OFF)
        lab = k.newlabel("skiph")
        k.op("s_cmp_ge_u32", S(sT1), 86)
        k.op("s_cbranch_scc1", lab)
        for rp in range(2):
            rbs = (2 * rp, 2 * rp + 1)
            def each(fn):
                for j, rb in enumerate(rbs):
                    for i in (0, 2): fn(macc(nb, rb) + i, t + 4 * j + i, ST + 2 * rb, i)
            each(lambda a, tt, st, i: k.op("v_pk_fma_f32", P(a), P(cs + i), P(st), P(a), mods="op_sel_hi:[1,0,1] neg_lo:[1,0,0] neg_hi:[1,0,0]"))
            each(lambda a, tt, st, i: k.op("v_pk_fma_f32", P(a), P(a), P(st), P(bb + i), mods="op_sel:[0,1,0]"))
            each(lambda a, tt, st, i: k.op("v_pk_mul_f32", P(tt), P(a), P(a)))
            each(lambda a, tt, st, i: k.op("v_pk_fma_f32", P(tt), P(tt), P(16), P(16), mods="op_sel:[0,1,0] op_sel_hi:[1,1,0]"))
            each(lambda a, tt, st, i: k.op("v_pk_mul_f32", P(tt), P(tt), P(a)))
            for i in range(8): k.op("v_exp_f32", V(t + i), V(t + i))
            each(lambda a, tt, st, i: k.op("v_pk_add_f32", P(tt), P(tt), P(18)))
            for i in range(8): k.op("v_rcp_f32", V(t + i), V(t + i))
            each(lambda a, tt, st, i: k.op("v_pk_mul_f32", P(a), P(a), P(tt)))
            a0, a1 = macc(nb, rbs[0]), macc(nb, rbs[1])
            k.op("v_cvt_pk_bf16_f32", V(a0), V(a0), V(a0 + 1))
            k.op("v_cvt_pk_bf16_f32", V(a0 + 1), V(a0 + 2), V(a0 + 3))
            k.op("v_cvt_pk_bf16_f32", V(a0 + 2), V(a1), V(a1 + 1))
            k.op("v_cvt_pk_bf16_f32", V(a0 + 3), V(a1 + 2), V(a1 + 3))
            k.op("s_add_u32", S(sT0), S(sHr + 2 * rp), S(sT2))
            k.nop(1)
            k.op("v_permlane16_swap_b32", V(a0), V(a0 + 2))
            k.op("v_permlane16_swap_b32", V(a0 + 1), V(a0 + 3))
            k.op("buffer_store_dwordx4", V(a0, 4), V(15), S(sWS, 4), S(sT0), mods="offen" + (" sc1" if fuse3 else ""))
        k.label(lab)
    if park:
        for p in (("V", 1), ("K", 3), ("V", 2)):
            for f in dma_items(p): f()
    k.op("v_mov_b32", V(16), f32(QSCALE)); k.op("v_mov_b32", V(17), f32(QSCALE))
    def Qreg(sub, qb, ds): return QR + sub * 32 + qb * 16 + ds * 4
    for rb in range(4):
        for ds in range(4):
            X = Qreg(rb >> 1, rb & 1, ds)
            for half in range(2):
                a = qacc(2 * ds + half, rb)
                for i in (0, 2): k.op("v_pk_mul_f32", P(a + i), P(a + i), P(16))
                k.op("v_cvt_pk_bf16_f32", V(X + 2 * half), V(a), V(a + 1))
                k.op("v_cvt_pk_bf16_f32", V(X + 2 * half + 1), V(a + 2), V(a + 3))
    stp.stamp()
    def Ngm(sub, qb): return NEGM + sub * 8 + qb * 4
    def Lac(sub, qb): return 112 + sub * 8 + qb * 4
    ON1 = 24
    k.op("s_and_b32", S(sT0), S(sW), 1)
    k.op("s_lshl_b32", S(sT0), S(sT0), 5)
    k.op("v_add_u32", V(vZ), S(sT0), V(l15))
    k.op("v_lshlrev_b32", V(15), 2, V(g))
    k.op("v_sub_u32", V(vZ), V(vZ), V(15))
    k.op("v_mov_b32", V(vNinf), f32(-1e30))
    for i in range(4): k.op("v_mov_b32", V(ON1 + i), "0x3f803f80")
    for i in range(16): k.op("v_mov_b32", V(112 + i), 0)
    k.op("s_mov_b32", S(sThr), f32(thr))
    k.op("s_mov_b32", S(sP2), 0)
    k.op("s_mov_b32", S(sNx), 98304)
    k.op("s_mov_b32", S(sTK), 4 * 16384)
    k.op("s_mov_b32", S(sT), 2)

    def mf(d, a, b, c): k.op("v_mfma_f32_16x16x32_bf16", d, a, b, c)
    def mask_block(sub, par):
        s0 = Sreg(sub, par)
        for e0 in range(0, 32, 2):
            for u in range(2):
                e = e0 + u; qb, kb, r = e >> 4, (e >> 2) & 3, e & 3
                k.op("v_cmp_gt_i32", S(sM + 2 * u, 2), 16 * kb + r - 16 * qb, V(vZ))
            k.nop(1)
            for u in range(2):
                k.op("v_cndmask_b32", V(s0 + e0 + u), V(s0 + e0 + u), V(vNinf), S(sM + 2 * u, 2))
    def ereg(n):
        k32, qb, j = n >> 4, (n >> 3) & 1, n & 7
        return qb * 16 + k32 * 8 + j
    def soft_exp(sub, par, n):
        r = Sreg(sub, par) + ereg(n)
        k.op("v_exp_f32", V(r), V(r))
    def soft_cvt(sub, par, n):
        e = n - 2
        r = Sreg(sub, par) + ereg(e)
        d = Sreg(sub, par) + (ereg(e) & ~7) + ((e & 7) >> 1)
        k.op("v_cvt_pk_bf16_f32", V(d), V(r), V(r + 1))
    def rd(frag, isV):
        k.op("ds_read_b128", A(FR + frag * 4, 4), V(vA), mods=f"offset:{(16384 if isV else 0) + frag*1024}")
    def ldK(i): return lambda: k.op("buffer_load_dwordx4", V(vD), S(sK, 4), S(sTK), mods=f"offen offset:{i*1024}{SC} lds")
    def ldV(i): return lambda: k.op("buffer_load_dwordx4", V(vD), S(sV, 4), S(sTK), mods=f"offen offset:{i*1024}{SC} lds")
    m0K = lambda: k.op("s_add_u32", "m0", S(sP2), S(sW4k))
    m0V = lambda: k.op("s_add_u32", "m0", "m0", 16384)
    advT = lambda: k.op("s_add_u32", S(sTK), S(sTK), 16384)
    advP = lambda: k.op("s_add_u32", S(sP2), S(sP2), 32768)
    wrapP = lambda: (k.op("s_cmp_eq_u32", S(sP2), 163840), k.op("s_cselect_b32", S(sP2), 0, S(sP2)))
    XA = {1: [ldK(2)], 5: [ldK(3)], 7: [m0V], 9: [ldV(0)], 13: [ldV(1)]}
    XB = {1: [ldV(2)], 5: [ldV(3)], 7: [advT, advP], 9: [wrapP, m0K], 11: [ldK(0)], 15: [ldK(1)]}
    if DA == 12:
        XA = {1: [ldK(2)], 5: [ldK(3)], 6: [m0V], 8: [ldV(0)], 11: [ldV(1)], 14: [ldV(2)]}
        XB = {1: [ldV(3)], 2: [advT, advP], 5: [wrapP, m0K], 7: [ldK(0)], 11: [ldK(1)]}
    if DA == 6:
        XB = {1: [ldV(2)], 5: [ldV(3)], 7: [advT, advP], 9: [wrapP], 11: [m0K], 13: [ldK(0)], 15: [ldK(1)]}
    WP = wp
    def phaseA(par, qk, ex):
        if not qk:
            k.wait(lgkm=0)
            for f in range(DA): rd(f, True)
            for n in range(16, 32):
                for sub in ex:
                    soft_exp(sub, par, n)
                    if n % 2 == 0: soft_cvt(sub, par, n)
            return
        for f in range(16):
            kb, ds = f >> 2, f & 3
            if f % WP == 0: k.wait(lgkm=DA - WP)
            for j, sub in enumerate(qk):
                xs = ex if len(qk) == 1 else [sub]
                for qb in range(2):
                    d = V(Sreg(sub, 1 - par) + qb * 16 + kb * 4, 4)
                    mf(d, A(FR + f * 4, 4), V(Qreg(sub, qb, ds), 4), V(Ngm(sub, qb), 4) if ds == 0 else d)
                    if qb == 0:
                        for x in xs: soft_exp(x, par, 16 + f)
                if j == 0:
                    nf = f + DA
                    if nf < 16: rd(nf, False)
                    else: rd(nf - 16, True)
                if f % 2 == 0:
                    for x in xs: soft_cvt(x, par, 16 + f)
                if j == len(qk) - 1:
                    for fn in XA.get(f, []): fn()
    def phaseB(par, pv, exn, bar="always", tailops=()):
        extra = list(tailops)
        for f in range(16):
            k32, db = f >> 3, f & 7
            if f % WP == 0: k.wait(lgkm=DA - WP if bar == "always" else max(0, min(DA - WP, 16 - f - WP)))
            for j, sub in enumerate(pv):
                for qb in range(2):
                    d = A(OA + sub * 64 + (db * 2 + qb) * 4, 4)
                    mf(d, A(FR + f * 4, 4), V(Sreg(sub, par) + qb * 16 + k32 * 8, 4), d)
                    if qb == 0 and sub in exn: soft_exp(sub, 1 - par, f)
                if j == 0:
                    nf = f + DA
                    if nf == 16:
                        if bar == "always":
                            k.wait(vm=16); k.op("s_barrier")
                        elif bar == "w01":
                            lab = k.newlabel("nobar")
                            k.op("s_cmp_ge_u32", S(sW), 2); k.op("s_cbranch_scc1", lab)
                            k.wait(vm=8); k.op("s_barrier")
                            k.label(lab)
                        k.op("v_add_u32", V(vA), S(sNx), V(vL16))
                    if bar == "always" or nf < 16:
                        if nf < 16: rd(nf, True)
                        else: rd(nf - 16, False)
                if f == 0: soft_cvt(sub, par, 32)
                elif f % 2 == 0 and sub in exn: soft_cvt(sub, 1 - par, f)
                if f % 4 == 3:
                    qb = (f >> 2) & 1
                    d = V(Lac(sub, qb), 4)
                    mf(d, V(ON1, 4), V(Sreg(sub, par) + qb * 16 + k32 * 8, 4), d)
                if j == len(pv) - 1 and bar == "always":
                    for fn in XB.get(f, []): fn()
                    if f in (3, 13, 14) and extra: extra.pop(0)()
        for fn in extra: fn()
    def nx_items():
        return [lambda: k.op("s_add_u32", S(sT), S(sT), 1),
                lambda: k.op("s_add_u32", S(sNx), S(sNx), 32768),
                lambda: (k.op("s_cmp_eq_u32", S(sNx), 163840), k.op("s_cselect_b32", S(sNx), 0, S(sNx)))]
    def rowmax(sub, par, qb, dst):
        s0 = Sreg(sub, par) + 16 * qb
        k.op("v_max3_f32", V(dst), V(s0), V(s0 + 1), V(s0 + 2))
        for e in range(3, 15, 2): k.op("v_max3_f32", V(dst), V(dst), V(s0 + e), V(s0 + e + 1))
        k.op("v_max_f32", V(dst), V(dst), V(s0 + 15))
        for sw in ("v_permlane16_swap_b32", "v_permlane32_swap_b32"):
            k.op("v_mov_b32", V(vT + 1), V(dst))
            k.nop(2)
            k.op(sw, V(dst), V(vT + 1))
            k.op("v_max_f32", V(dst), V(dst), V(vT + 1))
    slow_sites = {}
    def epilogue(sub, site):
        t = Sreg(sub, 0)
        k.nop(8)
        k.op("v_max_f32", V(vT), V(Lac(sub, 0)), V(Lac(sub, 1)))
        k.op("v_add_f32", V(vT + 1), V(Lac(sub, 0)), V(Lac(sub, 1)))
        k.op("v_cmp_nle_f32", "vcc", V(vT + 1), V(21))
        k.op("s_mov_b32", S(sRet), site)
        k.op("s_cbranch_vccnz", f"k2_slow_{sub}")
        lab = f"k2_ret_{sub}_{site}"
        k.label(lab)
        slow_sites.setdefault(sub, []).append((site, lab))
        k.op("v_rcp_f32", V(vT + 3), V(Lac(sub, 0)))
        k.op("v_rcp_f32", V(vT + 4), V(Lac(sub, 1)))
        for qb in range(2):
            if qb: k.op("s_add_u32", S(sT0), S(sCa if sub == 0 else sCb), 131072)
            for ks in range(4):
                b = t + (qb * 4 + ks) * 8
                for half in range(2):
                    for i in range(4):
                        k.op("v_accvgpr_read_b32", V(b + 4 * half + i), A(OA + sub * 64 + ((2 * ks + half) * 2 + qb) * 4 + i))
                for i in range(0, 8, 2):
                    k.op("v_pk_mul_f32", P(b + i), P(b + i), P(vT + 3), mods="op_sel_hi:[1,0]" if qb == 0 else "op_sel:[0,1]")
                for i in range(4): k.op("v_cvt_pk_bf16_f32", V(b + i), V(b + 2 * i), V(b + 2 * i + 1))
                k.op("buffer_store_dwordx4", V(b, 4), V(vL16), S(sWS, 4), S(sT0 if qb else (sCa if sub == 0 else sCb)),
                     mods=f"offen offset:{ks*1024}" + (" sc1" if fuse3 else ""))
    k.op("v_mov_b32", V(21), S(sThr))
    k.op("v_add_u32", V(vT), 32768, V(vL16))
    if park:
        k.wait(vm=24)
        k.op("s_barrier")
    for f in range(16): k.op("ds_read_b128", A(f * 4, 4), V(vT), mods=f"offset:{f*1024}")
    zi = 0
    for f in range(16):
        kb, ds = f >> 2, f & 3
        k.wait(lgkm=15 - f)
        for sub in range(2):
            for qb in range(2):
                d = V(Sreg(sub, 0) + qb * 16 + kb * 4, 4)
                mf(d, A(f * 4, 4), V(Qreg(sub, qb, ds), 4), "0" if ds == 0 else d)
                for _ in range(2):
                    k.op("v_accvgpr_write_b32", A(OA + zi), 0); zi += 1
    k.wait(vm=0 if fuse3 else 12)
    k.op("s_barrier")
    if fuse3:
        k.op("s_lshl_b32", S(sT0), S(sP), 8)
        k.op("s_lshl_b32", S(sT1), S(sH), 2)
        k.op("s_add_u32", S(sT0), S(sT0), S(sT1))
        k.op("s_add_u32", S(sT0), S(sT0), FLAG2_OFF + 128)
        one_lane_store(k, sW, sWS, [sT0], 1, vT + 4)
    m0K()
    k.op("v_add_u32", V(vA), 65536, V(vL16))
    ldK(0)(); ldK(1)()
    for f in range(DA): rd(f, False)
    lab = k.newlabel("nomask0")
    k.op("s_cmp_lg_u32", S(sNa), 1); k.op("s_cbranch_scc1", lab)
    mask_block(0, 0)
    k.label(lab)
    for sub in range(2):
        for qb in range(2):
            rowmax(sub, 0, qb, vT + 2)
            n0 = Ngm(sub, qb)
            for i in range(4): k.op("v_sub_f32", V(n0 + i), 0, V(vT + 2))
            for e in range(0, 16, 2): k.op("v_pk_add_f32", P(Sreg(sub, 0) + 16 * qb + e), P(Sreg(sub, 0) + 16 * qb + e), P(n0))
    for n in range(16):
        for sub in range(2):
            soft_exp(sub, 0, n)
        for sub in range(2):
            if n % 2 == 0 and n: soft_cvt(sub, 0, n)
    def pf_k3():
        load_srd(k, sWQ, "wo", 86); load_srd(k, sW1, "w2", 96)
        k.op("s_bfe_u32", S(sT0), "s2", "0x20001")
        k.op("s_lshr_b32", S(sT2), "s2", 3)
        k.op("s_lshl_b32", S(sT2), S(sT2), 2)
        k.op("s_add_u32", S(sT2), S(sT2), S(sW))
        k.op("s_lshl_b32", S(sT1), S(sT0), 20)
        k.op("s_lshl_b32", S(sSo), S(sT2), 13)
        k.op("s_add_u32", S(sT1), S(sT1), S(sSo))
        k.op("v_lshlrev_b32", V(vT), 7, V(vL))
        k.op("buffer_load_dword", V(12), V(vT), S(sWQ, 4), S(sT1), mods="offen", dummy=True)
        k.op("s_mul_i32", S(sT1), S(sT0), 384 * 1024)
        k.op("s_mul_i32", S(sT0), S(sT2), 3072)
        k.op("s_add_u32", S(sT1), S(sT1), S(sT0))
        k.op("v_and_b32", V(vT + 2), 31, V(vL))
        k.op("v_lshlrev_b32", V(vT + 2), 7, V(vT + 2))
        k.op("buffer_load_dword", V(12), V(vT + 2), S(sW1, 4), S(sT1), mods="offen", dummy=True)
        pf_code(k, sB1, "k3_kernel", "k3_end-k3_kernel", vT, vL, sSo, 12)
    if pf3 == 3: pf_k3()
    stp.stamp()
    k.op("s_cmp_lt_u32", 1, S(sNa))
    k.op("s_cbranch_scc0", "k2_DL0")
    ool = []
    sl_hooks = []
    def maskif(sub, par):
        lab, lab2 = k.newlabel("nomask"), k.newlabel("domask")
        k.op("s_cmp_eq_u32", S(sT), S(sNa if sub == 0 else sNb)); k.op("s_cbranch_scc1", lab2)
        k.label(lab)
        ool.append((lab2, lab, sub, par))
    for par in range(2):
        k.label(f"k2_DD{par}")
        phaseA(par, [0, 1], [0, 1])
        maskif(0, 1 - par)
        phaseB(par, [0, 1], [0, 1], tailops=nx_items())
        k.op("s_cmp_le_u32", S(sT), S(sNa))
        k.op("s_cbranch_scc0", f"k2_DL{1-par}")
        if par == 1: k.op("s_branch", "k2_DD0")
    for par in range(2):
        k.label(f"k2_DL{par}")
        phaseA(par, [1], [0, 1])
        phaseB(par, [0, 1], [1], tailops=nx_items())
        epilogue(0, par)
        if pf3 == 2: pf_k3()
        k.op("s_branch", f"k2_SS{1-par}")
    for par in range(2):
        k.label(f"k2_SS{par}")
        phaseA(par, [1], [1])
        maskif(1, 1 - par)
        phaseB(par, [1], [1], tailops=nx_items())
        k.op("s_cmp_le_u32", S(sT), S(sNb))
        k.op("s_cbranch_scc0", f"k2_SL{1-par}")
        if par == 1: k.op("s_branch", "k2_SS0")
    for par in range(2):
        k.label(f"k2_SL{par}")
        if pf3 == 1: pf_k3()
        if early3: sl_hooks.append(len(k.ins))
        phaseA(par, [], [1])
        k.nop(2)
        phaseB(par, [1], [], bar="w01")
        if par == 0: k.op("s_branch", "k2_fin")
    k.label("k2_fin")
    stp.stamp()
    if early3:
        e2, eMt, eNt, eS, eRot, eAo, eWc, eAc, eMa = 12, 16, 17, 18, 19, 28, 29, 30, 31
        ev = 7
        def e_setup():
            load_srd(k, e2, "w2", 96)
            k.op("s_bfe_u32", S(eS), "s2", "0x20001")
            k.op("s_and_b32", S(eMt), "s2", 1)
            k.op("s_lshl_b32", S(eMt), S(eMt), 3)
            k.op("s_bfe_u32", S(eNt), "s2", "0x30003")
            k.op("s_add_u32", S(eMt), S(eMt), S(eNt))
            k.op("s_lshr_b32", S(eNt), "s2", 6)
            k.op("s_add_u32", S(eRot), S(eMt), S(eNt))
            k.op("s_and_b32", S(eRot), S(eRot), 3)
            k.op("s_lshl_b32", S(eAo), S(eMt), 3)
            k.op("s_lshl_b32", S(eWc), S(sW), 1)
            k.op("s_add_u32", S(eAo), S(eAo), S(eWc))
            k.op("s_mul_i32", S(eAo), S(eAo), 44032)
            k.op("s_add_u32", S(eAo), S(eAo), HF_OFF)
            k.op("v_mov_b32", V(ev), V(vL16))
            k.op("v_add_u32", V(ev + 1), 44032 - 1024, V(vL16))
            k.op("v_lshlrev_b32", V(ev + 2), 1, V(g))
            k.op("v_xor_b32", V(ev + 2), V(ev + 2), V(l15))
            k.op("v_lshlrev_b32", V(ev + 2), 4, V(ev + 2))
            k.op("v_lshl_add_u32", V(ev + 2), V(g), 10, V(ev + 2))
            k.op("s_lshl_b32", S(eWc), S(eNt), 8)
            k.op("s_lshl_b32", S(eAc), S(sW), 13)
            k.op("s_add_u32", S(eWc), S(eWc), S(eAc))
            k.op("v_add_u32", V(ev + 2), S(eWc), V(ev + 2))
            k.op("s_and_b32", S(eWc), S(sW), 1)
            k.op("s_lshl_b32", S(eWc), S(eWc), 7)
            k.op("v_xor_b32", V(ev + 2), S(eWc), V(ev + 2))
            k.op("v_add_u32", V(ev + 3), 4096 - 1024, V(ev + 2))
            k.op("s_lshl_b32", S(eMa), S(sW), 11)
            k.op("s_sub_u32", S(eWc), 15, S(eMt))
            k.op("s_min_u32", S(eMt), S(eMt), S(eWc))
            k.op("s_lshl_b32", S(eMt), S(eMt), 8)
            k.op("s_add_u32", S(eMt), S(eMt), FLAG2_OFF + 128)
            k.op("v_and_b32", V(ev + 4), 7, V(vL))
            k.op("s_lshl_b32", S(eWc), S(eS), 3)
            k.op("v_add_u32", V(ev + 4), S(eWc), V(ev + 4))
            k.op("v_lshlrev_b32", V(ev + 4), 2, V(ev + 4))
        e_poll = lambda: k.op("buffer_load_dword", V(ev + 5), V(ev + 4), S(sWS, 4), S(eMt), mods="offen sc1")
        def e_issue(tag):
            k.wait(vm=8, lgkm=0)
            spin_until(k, f"k2_sh{tag}", e_poll, lambda: k.op("v_cmp_ne_u32", "vcc", 1, V(ev + 5)), eAc, sleep=8)
            k.op("s_barrier")
            for st in range(3):
                k.op("s_add_u32", S(eNt), S(eRot), st)
                k.op("s_cmp_ge_u32", S(eNt), 3)
                k.op("s_cselect_b32", S(eWc), 3, 0)
                k.op("s_sub_u32", S(eNt), S(eNt), S(eWc))
                k.op("s_mul_i32", S(eWc), S(eS), 6)
                k.op("s_add_u32", S(eNt), S(eNt), S(eWc))
                k.op("s_lshl_b32", S(eWc), S(eNt), 16)
                k.op("s_lshl_b32", S(eNt), S(eNt), 1)
                for u in range(2):
                    k.op("s_add_u32", "m0", S(eMa), st * 32768 + u * 16384 + 8192)
                    k.op("s_add_u32", S(eAc), S(eNt), u)
                    for j in range(2):
                        k.op("buffer_load_dwordx4", V(ev + 2 + j), S(e2, 4), S(eWc), mods=f"offen offset:{j*1024} lds")
                    k.op("s_add_u32", "m0", S(eMa), st * 32768 + u * 16384)
                    k.op("s_add_u32", S(eWc), S(eWc), 32768)
                    k.op("s_min_u32", S(eAc), S(eAc), 42)
                    k.op("s_lshl_b32", S(eAc), S(eAc), 10)
                    k.op("s_add_u32", S(eAc), S(eAc), S(eAo))
                    for j in range(2):
                        k.op("buffer_load_dwordx4", V(ev + j), S(sWS, 4), S(eAc), mods=f"offen offset:{j*1024} sc1 lds")
        for pos in reversed(sl_hooks):
            n0 = len(k.ins)
            e_setup(); e_poll()
            blk = k.ins[n0:]; del k.ins[n0:]
            k.ins[pos:pos] = blk
        epilogue(1, 0)
        e_issue(0)
    else:
        epilogue(1, 0)
    if stamps:
        k.wait(vm=0, lgkm=0)
        stp.stamp()
        stp.flush(sWS, sW, 13)
    if fuse3:
        k.op("s_lshl_b32", S(sT0), S(sP), 8)
        k.op("s_lshl_b32", S(sT1), S(sH), 2)
        k.op("s_add_u32", S(sT0), S(sT0), S(sT1))
        k.op("s_add_u32", S(96), S(sT0), FLAG2_OFF)
        k.wait(lgkm=0)
        k.raw("  s_branch k3_kernel")
    k.op("s_endpgm")
    for (lab2, lab, sub, par) in ool:
        k.label(lab2)
        k.nop(8)
        mask_block(sub, par)
        k.op("s_branch", lab)
    sU, sUo = 60, 61
    for sub, sites in sorted(slow_sites.items()):
        s0 = Sreg(sub, 0)
        m = [Ngm(sub, 0), Ngm(sub, 1)]
        k.label(f"k2_slow_{sub}")
        k.nop(8)
        if mark:
            k.op("s_mov_b32", S(sLd), STAMP_OFF + 0xc0000)
            k.op("v_mov_b32", V(vT), 0); k.op("v_mov_b32", V(vT + 1), "s2")
            k.op("buffer_store_dword", V(vT + 1), V(vT), S(sWS, 4), S(sLd), mods="offen sc1")
        for i in range(64): k.op("v_accvgpr_write_b32", A(OA + sub * 64 + i), 0)
        for qb in range(2):
            k.op("v_mov_b32", V(m[qb]), f32(-1e30))
            for i in range(4): k.op("v_mov_b32", V(Lac(sub, qb) + i), 0)
        k.op("s_mov_b32", S(sU), 1)
        k.op("s_mov_b32", S(sUo), 0)
        loop = f"k2_slowloop_{sub}"
        k.label(loop)
        for c in range(4):
            k.op("s_add_u32", S(sLd), S(sUo), c * 4096)
            for i in range(4): k.op("buffer_load_dwordx4", A((c * 4 + i) * 4, 4), V(vL16), S(sK, 4), S(sLd), mods=f"offen offset:{i*1024}" + SC)
        k.wait(vm=0)
        for f in range(16):
            kb, ds = f >> 2, f & 3
            for qb in range(2):
                d = V(s0 + qb * 16 + kb * 4, 4)
                mf(d, A(f * 4, 4), V(Qreg(sub, qb, ds), 4), "0" if ds == 0 else d)
        for c in range(4):
            k.op("s_add_u32", S(sLd), S(sUo), c * 4096 + 16384)
            for i in range(4): k.op("buffer_load_dwordx4", A((c * 4 + i) * 4, 4), V(vL16), S(sV, 4), S(sLd), mods=f"offen offset:{i*1024}" + SC)
        lab = k.newlabel("snomask")
        k.op("s_cmp_lg_u32", S(sU), S(sNa if sub == 0 else sNb)); k.op("s_cbranch_scc1", lab)
        mask_block(sub, 0)
        k.label(lab)
        for qb in range(2):
            al = m[qb] + 1
            rowmax(sub, 0, qb, vT + 3)
            k.op("v_max_f32", V(vT + 3), V(vT + 3), V(m[qb]))
            k.op("v_sub_f32", V(al), V(m[qb]), V(vT + 3))
            k.op("v_mov_b32", V(m[qb]), V(vT + 3))
            k.op("v_exp_f32", V(al), V(al))
            for e in range(16): k.op("v_sub_f32", V(s0 + 16 * qb + e), V(s0 + 16 * qb + e), V(m[qb]))
            for i in range(4): k.op("v_mul_f32", V(Lac(sub, qb) + i), V(Lac(sub, qb) + i), V(al))
            for db in range(8):
                for i in range(4):
                    ar = OA + sub * 64 + (db * 2 + qb) * 4 + i
                    k.op("v_accvgpr_read_b32", V(vT + (i & 1)), A(ar))
                    k.op("v_mul_f32", V(vT + (i & 1)), V(vT + (i & 1)), V(al))
                    k.op("v_accvgpr_write_b32", A(ar), V(vT + (i & 1)))
        for n in range(33):
            if n < 32: soft_exp(sub, 0, n)
            else: k.nop(1)
            if n % 2 == 0 and n: soft_cvt(sub, 0, n)
        k.wait(vm=0)
        k.nop(1)
        for f in range(16):
            k32, db = f >> 3, f & 7
            for qb in range(2):
                d = A(OA + sub * 64 + (db * 2 + qb) * 4, 4)
                mf(d, A(f * 4, 4), V(s0 + qb * 16 + k32 * 8, 4), d)
            if f % 4 == 3:
                qb = (f >> 2) & 1
                d = V(Lac(sub, qb), 4)
                mf(d, V(ON1, 4), V(s0 + qb * 16 + k32 * 8, 4), d)
        k.op("s_add_u32", S(sUo), S(sUo), 16384)
        k.op("s_add_u32", S(sU), S(sU), 1)
        k.nop(8)
        k.op("s_cmp_le_u32", S(sU), S(sNa if sub == 0 else sNb))
        k.op("s_cbranch_scc1", loop)
        for (site, lab) in sites[:-1]:
            k.op("s_cmp_eq_u32", S(sRet), site); k.op("s_cbranch_scc1", lab)
        k.op("s_branch", sites[-1][1])
    k.label("k2_end")
    k.op("s_endpgm")
    return k

if __name__ == "__main__":
    k = build_k2()
    for e in k.check_hazards(): print(e)
    for e in k.check_waits(): print(e)
    print(k.maxregs(), len(k.ins))
```

```python
from common import *
from k1_v1 import layernorm
import copy

def build_k1(store_mods=" sc1", stamps=False, pf2=True, pf2at=9, D=5, pfself=True, krot=3, npark=16, pfw='wc', zk=10, pfx=False, **_):
    assert pf2at <= 12
    k = Kern("k1_kernel")
    vq, lq = Q(k, "vmcnt", 63), Q(k, "lgkmcnt", 15)
    stp = Stamps(k, stamps, 60, 0, lq, maxn=10)
    sWS, sC, sWK, sWV, sX = 8, 12, 16, 20, 24
    sT0, sT1, sT2, sKV, sW, sH, sJ = 28, 29, 30, 31, 32, 33, 35
    sSo, sSo2, sAo, sSt, sW8k, sR, sW4k = 36, 37, 42, 43, 44, 45, 48
    sFL, sFA, sF2, sF3, sDb = 53, 54, 55, 56, 4
    CHA = 84
    vL, vL16 = 1, 2
    TA, VA, VW, AAr, WF = 16, 32, 36, 40, 52
    AFB, X0, X1, VZ, VW2 = 128, 224, 228, 232, 46
    PK = 192
    g, l15, r_, cc, g1, t0, t1, p8 = 4, 5, 6, 7, 8, 9, 10, 11
    k.op("s_cmp_ge_u32", "s2", 256)
    k.op("s_cbranch_scc1", "k1_end")
    if pfself:
        pf_self(k, "k1_end", vt=14); vq.issue()
    k.op("s_load_dwordx4", S(84, 4), S(0, 2), KA["x"])
    k.op("s_load_dwordx4", S(88, 4), S(0, 2), KA["wuk"])
    k.op("s_load_dwordx4", S(92, 4), S(0, 2), KA["dbg"])
    k.op("s_load_dwordx2", S(96, 2), S(0, 2), KA["wq"])
    k.op("s_load_dwordx2", S(98, 2), S(0, 2), KA["w1"])
    k.op("v_and_b32", V(vL), 63, "v0")
    k.op("v_lshrrev_b32", V(t0), 6, "v0")
    k.op("s_and_b32", S(sT0), "s2", 7)
    k.op("v_readfirstlane_b32", S(sW), V(t0))
    k.op("s_lshr_b32", S(sT1), "s2", 3)
    k.op("s_and_b32", S(sT2), S(sT1), 3)
    k.op("s_lshl_b32", S(sH), S(sT0), 2)
    k.op("s_add_u32", S(sH), S(sH), S(sT2))
    k.op("s_lshr_b32", S(sJ), S(sT1), 2)
    k.op("s_lshr_b32", S(sKV), S(sW), 1)
    k.op("v_lshlrev_b32", V(vL16), 4, V(vL))
    k.op("v_lshrrev_b32", V(g), 4, V(vL))
    k.op("v_and_b32", V(l15), 15, V(vL))
    k.op("v_bfe_u32", V(r_), V(vL), 2, 2)
    k.op("v_and_b32", V(cc), 3, V(vL))
    k.op("v_and_b32", V(g1), 1, V(g))
    k.op("v_and_b32", V(p8), 7, V(vL))
    k.op("s_lshl_b32", S(sW4k), S(sW), 12)
    k.op("s_lshl_b32", S(sW8k), S(sW), 13)
    k.op("v_lshlrev_b32", V(t0), 1, V(g))
    k.op("v_xor_b32", V(t0), V(t0), V(l15))
    k.op("v_lshlrev_b32", V(t0), 4, V(t0))
    k.op("v_lshl_add_u32", V(t0), V(g), 13, V(t0))
    k.op("s_lshl_b32", S(sT0), S(sW), 17)
    k.op("s_lshl_b32", S(sT1), S(sH), 8)
    k.op("s_add_u32", S(sT0), S(sT0), S(sT1))
    k.op("v_add_u32", V(VW), S(sT0), V(t0))
    k.op("v_add_u32", V(VW + 1), 32768 - 1024, V(VW))
    k.op("v_xor_b32", V(VW + 2), 128, V(VW))
    k.op("v_add_u32", V(VW + 2), 2 * (32768 - 1024), V(VW + 2))
    k.op("v_add_u32", V(VW + 3), 32768 - 1024, V(VW + 2))
    k.op("s_and_b32", S(sT0), S(sW), 1)
    k.op("s_lshl_b32", S(sT0), S(sT0), 7)
    k.op("v_xor_b32", V(t0), S(sT0), V(t0))
    k.op("s_lshl_b32", S(sT0), S(sW), 16)
    k.op("s_add_u32", S(sT0), S(sT0), S(sT1))
    k.op("v_add_u32", V(VW2), S(sT0), V(t0))
    k.op("v_add_u32", V(VW2 + 1), 32768 - 1024, V(VW2))
    k.op("v_lshrrev_b32", V(t1), 3, V(vL))
    k.op("v_xor_b32", V(t0), V(p8), V(g))
    k.op("v_lshlrev_b32", V(t0), 4, V(t0))
    k.op("v_lshl_add_u32", V(t0), V(t1), 10, V(t0))
    k.op("s_lshl_b32", S(sAo), S(sJ), 18)
    k.op("s_lshl_b32", S(sT0), S(sW), 16)
    k.op("s_add_u32", S(sAo), S(sAo), S(sT0))
    k.op("v_add_u32", V(VA), S(sAo), V(t0))
    k.op("v_xor_b32", V(VA + 1), 64, V(VA))
    k.op("v_add_u32", V(VA + 1), 7168, V(VA + 1))
    k.op("v_add_u32", V(VA + 2), 2 * 7168, V(VA))
    k.op("v_add_u32", V(VA + 3), 2 * 7168, V(VA + 1))
    sKr, sW2k = 49, 50
    k.op("s_add_u32", S(sKr), S(sJ), S(sT2))
    k.op("s_and_b32", S(sKr), S(sKr), krot)
    k.op("s_lshl_b32", S(sW2k), S(sW), 11)
    k.op("s_lshl_b32", S(sR), "s2", 3)
    k.op("s_lshl_b32", S(sT1), S(sW), 1)
    k.op("s_add_u32", S(sR), S(sR), S(sT1))
    k.op("s_lshl_b32", S(sR), S(sR), 10)
    k.wait(lgkm=0)
    stp.stamp()
    load_srd(k, sX, "x", 84)
    k.op("buffer_load_dwordx4", V(X0, 4), V(vL16), S(sX, 4), S(sR), mods="offen"); vq.issue("ln")
    k.op("buffer_load_dwordx4", V(X1, 4), V(vL16), S(sX, 4), S(sR), mods="offen offset:1024"); vq.issue("ln")
    load_srd(k, sC, "ckv", 86); load_srd(k, sWK, "wuk", 88); load_srd(k, sWV, "wuv", 90)
    def aslot(s): return 65536 + (s % 3) * 32768
    def wslot(ks): return (ks % 4) * 16384
    def dma_w_items(ks):
        it = []
        for kv in range(2):
            def setup(kv=kv):
                k.op("s_add_u32", "m0", S(sW2k), wslot(ks) + kv * 8192)
                if kv == 0:
                    k.op("s_xor_b32", S(sSo), S(sKr), ks >> 1)
                    k.op("s_lshl_b32", S(sSo), S(sSo), 19)
                    if ks & 1: k.op("s_add_u32", S(sSo), S(sSo), 262144)
                else: k.op("s_nop", 0)
            it.append(setup)
            for i in range(2):
                def f(i=i, kv=kv):
                    k.op("buffer_load_dwordx4", V(VW2 + i), S(sWV if kv else sWK, 4), S(sSo), mods=f"offen offset:{i*1024} lds"); vq.issue(("W", ks))
                it.append(f)
        return it
    def dma_a_items(s, u):
        it = []
        def setup():
            k.op("s_add_u32", "m0", S(sW8k), aslot(s) + u * 4096)
            k.op("s_xor_b32", S(sSo), S(sKr), s)
            k.op("s_lshl_b32", S(sSo), S(sSo), 7)
            if u: k.op("s_add_u32", S(sSo), S(sSo), 32768)
        it.append(setup)
        for i in range(4):
            def f(i=i):
                k.op("buffer_load_dwordx4", V(VA + i), S(sC, 4), S(sSo), mods=f"offen offset:{i*1024} lds"); vq.issue(("A", s))
            it.append(f)
        return it
    for f in dma_w_items(0) + dma_a_items(0, 0) + dma_a_items(0, 1): f()
    late = dma_w_items(1) + dma_w_items(2) + dma_a_items(1, 0) + dma_a_items(1, 1)
    stp.stamp()
    load_srd(k, sWS, "ws", 94)
    k.op("v_lshl_or_b32", V(t1), V(g1), 2, V(r_))
    k.op("v_lshl_add_u32", V(t0), V(g), 3, V(r_))
    k.op("v_lshlrev_b32", V(t0), 8, V(t0))
    k.op("v_lshl_add_u32", V(t0), V(cc), 3, V(t0))
    k.op("s_lshl_b32", S(sT0), S(sKV), 13)
    k.op("v_add_u32", V(t0), S(sT0), V(t0))
    for nb in range(8):
        k.op("v_xor_b32", V(12), nb, V(t1))
        k.op("v_lshl_add_u32", V(TA + nb), V(12), 5, V(t0))
    k.op("v_lshrrev_b32", V(t1), 1, V(l15))
    k.op("v_xor_b32", V(t1), V(t1), V(g))
    k.op("v_lshlrev_b32", V(t1), 4, V(t1))
    k.op("v_lshl_add_u32", V(t1), V(l15), 7, V(t1))
    k.op("s_and_b32", S(sT0), S(sW), 1)
    k.op("s_lshl_b32", S(sT0), S(sT0), 14)
    k.op("s_add_u32", S(sT0), S(sT0), 65536)
    k.op("v_add_u32", V(AAr), S(sT0), V(t1))
    k.op("v_xor_b32", V(AAr + 1), 64, V(AAr))
    k.op("v_add_u32", V(AAr + 2), 65536, V(AAr))
    k.op("v_add_u32", V(AAr + 3), 65536, V(AAr + 1))
    k.op("s_lshl_b32", S(sSt), S(sH), 19)
    k.op("s_lshl_b32", S(sT1), S(sJ), 16)
    k.op("s_add_u32", S(sSt), S(sSt), S(sT1))
    k.op("s_and_b32", S(sT1), S(sW), 1)
    k.op("s_lshl_b32", S(sT1), S(sT1), 15)
    k.op("s_add_u32", S(sSt), S(sSt), S(sT1))
    k.op("s_mov_b32", S(sT1), VF_OFF)
    k.op("s_cmp_eq_u32", S(sKV), 0)
    k.op("s_cselect_b32", S(sT1), KF_OFF, S(sT1))
    k.op("s_add_u32", S(sSt), S(sSt), S(sT1))
    vLd, vLz = VZ, VZ + 1
    k.op("v_mov_b32", V(vLz), 0)
    k.op("s_lshl_b32", S(sFL), "s2", 2)
    k.op("s_add_u32", S(sFL), S(sFL), FL_OFF)
    k.op("s_lshl_b32", S(sFA), S(sH), 7)
    k.op("s_lshl_b32", S(sT1), S(sJ), 2)
    k.op("s_add_u32", S(sFA), S(sFA), S(sT1))
    k.op("s_add_u32", S(sFA), S(sFA), FA_OFF)
    k.op("s_lshl_b32", S(sF2), S(sJ), 8)
    k.op("s_lshl_b32", S(sT1), S(sH), 2)
    k.op("s_add_u32", S(sF2), S(sF2), S(sT1))
    k.op("s_add_u32", S(sF2), S(sF2), FLAG2_OFF)
    k.op("s_and_b32", S(sT1), "s2", 1)
    k.op("s_lshl_b32", S(sF3), S(sT1), 13)
    k.op("s_bfe_u32", S(sT1), "s2", "0x30003")
    k.op("s_lshl_b32", S(sT1), S(sT1), 10)
    k.op("s_add_u32", S(sF3), S(sF3), S(sT1))
    k.op("s_lshr_b32", S(sT1), "s2", 6)
    k.op("s_lshl_b32", S(sT1), S(sT1), 8)
    k.op("s_add_u32", S(sF3), S(sF3), S(sT1))
    k.op("s_and_b32", S(sT1), "s2", 6)
    k.op("s_lshl_b32", S(sT1), S(sT1), 1)
    k.op("s_add_u32", S(sF3), S(sF3), S(sT1))
    k.op("s_add_u32", S(sF3), S(sF3), FLAG_OFF)
    k.op("s_add_u32", S(57), S(sF2), 128)
    one_lane_store(k, sW, sWS, [sFL, sFA, sF2, sF3, 57], 0, VZ + 4)
    k.op("s_mov_b32", S(sDb), S(92))
    k.op("s_and_b32", S(sDb + 1), S(93), "0xffff")
    k.op("s_mov_b32", S(sDb + 2), 256)
    k.op("s_mov_b32", S(sDb + 3), "0x20000")
    GB = 131072
    LN2 = 84
    vq.need("ln")
    k.op("s_lshl_b32", S(sT1), S(sW), 5)
    k.op("s_add_u32", S(sT1), S(sT1), GB)
    k.op("v_lshlrev_b32", V(vLd), 7, V(vL))
    k.op("v_add_u32", V(vLd), S(sT1), V(vLd))
    k.op("s_lshl_b32", S(sT1), S(sW), 4)
    k.op("s_add_u32", S(sT1), S(sT1), GB + 8192)
    k.op("v_mov_b32", V(VZ + 2), S(sT1))
    ln = Kern("ln")
    for r, X in enumerate((X0, X1)):
        layernorm(ln, X, LN2 + 4, LN2 + 8, LN2 + 16)
        layernorm(ln, LN2 + 4, LN2 + 24, LN2 + 8, LN2 + 16, stats_only=True)
        ln.op("ds_write_b128", V(vLd), V(LN2 + 4, 4), mods=f"offset:{16*r}")
        ln.op("ds_write_b64", V(VZ + 2), V(LN2 + 24, 2), mods=f"offset:{8*r}")
        ln.wait(lgkm=0)
    for i, ins in enumerate(ln.ins):
        k.ins.append(ins)
        if i % 12 == 5 and late: late.pop(0)()
    for f in late: f()
    k.op("s_lshl_b32", S(sT1), S(sW), 11)
    k.op("s_add_u32", S(sT1), S(sT1), GB)
    k.op("v_add_u32", V(vLd), S(sT1), V(vL16))
    k.op("v_lshrrev_b32", V(VZ + 3), 3, V(vL))
    k.op("v_lshlrev_b32", V(VZ + 3), 8, V(VZ + 3))
    k.op("v_lshl_add_u32", V(VZ + 3), V(p8), 4, V(VZ + 3))
    k.op("s_lshr_b32", S(sR + 1), "s2", 1)
    k.op("s_lshl_b32", S(sR + 1), S(sR + 1), 14)
    k.op("s_and_b32", S(sT1), "s2", 1)
    k.op("s_lshl_b32", S(sT1), S(sT1), 7)
    k.op("s_add_u32", S(sR + 1), S(sR + 1), S(sT1))
    k.op("s_add_u32", S(sR + 1), S(sR + 1), S(sW4k))
    k.op("s_lshl_b32", S(sR + 2), "s2", 6)
    k.op("s_add_u32", S(sR + 2), S(sR + 2), YF_OFF)
    k.op("v_and_b32", V(VZ + 2), 48, V(vL16))
    k.op("v_add_u32", V(LN2 + 30), GB + 8192, V(VZ + 2))
    k.op("s_barrier")
    k.op("ds_read_b128", V(LN2, 4), V(vLd))
    k.op("ds_read_b128", V(LN2 + 4, 4), V(vLd), mods="offset:1024")
    k.op("ds_read_b128", V(LN2 + 8, 4), V(LN2 + 30))
    k.wait(lgkm=0)
    k.op("buffer_store_dwordx4", V(LN2, 4), V(VZ + 3), S(sWS, 4), S(sR + 1), mods="offen sc1"); vq.issue("lnst")
    k.op("buffer_store_dwordx4", V(LN2 + 4, 4), V(VZ + 3), S(sWS, 4), S(sR + 1), mods="offen offset:2048 sc1"); vq.issue("lnst")
    k.op("buffer_store_dwordx4", V(LN2 + 8, 4), V(VZ + 2), S(sWS, 4), S(sR + 2), mods="offen sc1"); vq.issue("lnst")

    def pf_k2():
        k.op("s_lshr_b32", S(sT1), "s2", 3)
        k.op("s_lshl_b32", S(sT1), S(sT1), 2)
        k.op("s_add_u32", S(sT1), S(sT1), S(sW))
        k.op("s_and_b32", S(sT0), "s2", 7)
        if 'w' in pfw:
            load_srd(k, sX, "wq", 96)
            k.op("v_bfe_u32", V(12), V(vL), 3, 2)
            k.op("v_lshlrev_b32", V(13), 13, V(12))
            k.op("v_lshl_add_u32", V(13), V(p8), 7, V(13))
            k.op("s_lshl_b32", S(57), S(sT1), 15)
            k.op("s_lshl_b32", S(sT2), S(sT0), 10)
            k.op("s_add_u32", S(57), S(57), S(sT2))
            k.op("buffer_load_dword", V(15), V(13), S(sX, 4), S(57), mods="offen", dummy=True); vq.issue()
            load_srd(k, sX, "w1", 98)
            k.op("v_mul_u32_u24", V(13), 2752, V(12))
            k.op("v_lshl_add_u32", V(13), V(p8), 6, V(13))
            k.op("s_mul_i32", S(57), S(sT1), 4 * 2752)
            k.op("s_mul_i32", S(sT2), S(sT0), 384)
            k.op("s_add_u32", S(57), S(57), S(sT2))
            k.op("buffer_load_dword", V(15), V(13), S(sX, 4), S(57), mods="offen", dummy=True); vq.issue()
        k.op("s_lshl_b32", S(57), S(sT1), 13)
        if 'c' in pfw: pf_code(k, sX, "k2_kernel", "k2_slow_0-k2_kernel", 13, vL, 57, 15); vq.issue()
        if '3' in pfw: pf_code(k, sX, "k3_kernel", "k3_end-k3_kernel", 13, vL, 57, 15); vq.issue()

    k.op("s_cmp_lg_u32", S(sKV), 0)
    k.op("s_cbranch_scc1", "k1_V")
    vq0, lq0, n0 = copy.deepcopy((vq.q, vq.ever)), copy.deepcopy((lq.q, lq.ever)), stp.n
    for kv in range(2):
        if kv:
            k.label("k1_V")
            vq.q, vq.ever = copy.deepcopy(vq0); lq.q, lq.ever = copy.deepcopy(lq0); stp.n = n0
        onst = lambda i: vq.issue() if i.kind == "vstore" else None
        q1, q2 = FillQ(k), FillQ(k, on_emit=onst)
        K2VW, K2VW1, sLd = 108, 112, 98
        def k2_setup():
            e = Kern("e")
            load_srd(e, 12, "wq", 96); load_srd(e, 16, "w1", 98)
            for i in range(4): e.op("v_mov_b32", V(K2VW + i), V(VW + i))
            e.op("v_lshlrev_b32", V(84), 1, V(g1))
            e.op("v_xor_b32", V(84), V(84), V(p8))
            e.op("v_lshlrev_b32", V(84), 4, V(84))
            e.op("v_lshrrev_b32", V(85), 3, V(vL))
            e.op("v_mul_u32_u24", V(85), 2752, V(85))
            e.op("s_mul_i32", S(38), S(sW), 32 * 2752)
            e.op("s_mul_i32", S(39), S(sH), 96)
            e.op("s_add_u32", S(38), S(38), S(39))
            e.op("v_add_u32", V(85), S(38), V(85))
            e.op("v_add_u32", V(K2VW1), V(85), V(84))
            e.op("v_xor_b32", V(84), 64, V(84))
            e.op("v_add_u32", V(K2VW1 + 1), V(85), V(84))
            e.op("v_add_u32", V(K2VW1 + 1), 8 * 2752 - 1024, V(K2VW1 + 1))
            e.op("v_add_u32", V(K2VW1 + 2), 2 * (8 * 2752 - 1024), V(K2VW1))
            e.op("v_add_u32", V(K2VW1 + 3), 2 * (8 * 2752 - 1024), V(K2VW1 + 1))
            e.op("s_lshl_b32", S(38), S(sJ), 17)
            e.op("s_lshl_b32", S(39), S(sW), 15)
            e.op("s_add_u32", S(sLd), S(38), S(39))
            e.op("s_add_u32", S(sLd + 1), S(sLd), 16384)
            e.op("s_sub_u32", S(sLd + 2), 1920 * 1024, S(38))
            e.op("s_add_u32", S(sLd + 2), S(sLd + 2), S(39))
            e.op("s_add_u32", S(sLd + 3), S(sLd + 2), 16384)
            return e
        def k2_pages():
            it = []
            for pg, (srd, vb, so) in enumerate([(16, K2VW1, 0), (12, K2VW, 0), (12, K2VW, 524288)]):
                def setup(pg=pg, so=so):
                    k.op("s_add_u32", "m0", S(sW4k), pg * 16384)
                    k.op("s_mov_b32", S(41), so)
                it.append(setup)
                for i in range(4):
                    def f(i=i, srd=srd, vb=vb):
                        k.op("buffer_load_dwordx4", V(vb + i), S(srd, 4), S(41), mods=f"offen offset:{i*1024} lds"); vq.issue()
                    it.append(f)
            return it
        def k2_xn(ks):
            it = []
            for rb in range(4):
                def f(rb=rb):
                    k.op("buffer_load_dwordx4", A((ks * 4 + rb) * 4, 4), V(vL16), S(sWS, 4), S(sLd + rb), mods=f"offen offset:{ks*1024} sc1"); vq.issue()
                it.append(f)
            return it
        def acc(rb, nb): return (rb * 8 + nb) * 4
        def chunk(c):
            if kv == 0: rb, ds = c >> 2, c & 3; return acc(rb, 2 * ds), acc(rb, 2 * ds + 1)
            kb, db = c >> 3, c & 7; return acc(2 * kb, db), acc(2 * kb + 1, db)
        def epi_kern(c, park=None):
            e = Kern("e")
            a, b = chunk(c)
            t = PK + 8 * (epi_n[0] % 4); epi_n[0] += 1
            for i in range(4): e.op("v_accvgpr_read_b32", V(t + i), A(a + i))
            for i in range(4): e.op("v_accvgpr_read_b32", V(t + 4 + i), A(b + i))
            d = t if park is None else park
            for i in range(4): e.op("v_cvt_pk_bf16_f32", V(d + i), V(t + 2 * i), V(t + 2 * i + 1))
            if park is None:
                e.op("s_add_u32", S(sSo2), S(sSt), c * 1024)
                e.op("buffer_store_dwordx4", V(t, 4), V(vL16), S(sWS, 4), S(sSo2), mods=f"offen{store_mods}")
            return e
        epi_n = [0]
        def ready_nb(c): return (2 * (c & 3) + 1) if kv == 0 else (c & 7)
        def zst():
            lab = k.newlabel("noz")
            k.op("v_mov_b32", V(VZ + 5), 1)
            k.op("s_cmp_lg_u32", S(sW), 0); k.op("s_cbranch_scc1", lab)
            k.op("s_mov_b64", "exec", 1)
            k.op("buffer_store_byte", V(VZ + 5), V(vLz), S(sDb, 4), "s2", mods="offen sc1")
            k.op("s_mov_b64", "exec", -1)
            k.label(lab)
        pz = lambda: k.op("buffer_load_dword", V(242), V(243), S(sDb, 4), 0, mods="offen sc1")
        pl = lambda: k.op("buffer_load_dword", V(241), V(240), S(sWS, 4), S(sFL), mods="offen sc1")
        def switch(ks):
            need = [("W", ks)] + ([("A", ks >> 1)] if ks % 2 == 0 else [])
            vq.need(*need, cnt=[4, 8][:len(need)])
            if ks == 3: vq.need("lnst", cnt=[3])
            k.op("s_barrier")
            if ks == 0: stp.stamp()
            if ks == zk + 2:
                vq.need("pz")
                spin_until(k, f"k1_sz{kv}", pz, lambda: k.op("v_cmp_ne_u32", "vcc", "0x01010101", V(242)), sT1)
            if ks == zk + 5:
                vq.need("pp")
                spin_until(k, f"k1_sp{kv}", pl, lambda: k.op("v_cmp_ne_u32", "vcc", 1, V(241)), sT1)
            q1.flush()
            if ks >= 1 and ks + 2 < 16:
                for f in dma_w_items(ks + 2): q1.add(f)
            sN = ((ks + 1) >> 1) + 1
            if ks >= 1 and sN < 8 and sN >= 2:
                for f in dma_a_items(sN, (ks + 1) & 1): q1.add(f)
            if ks == 2: q1.add(zst)
            if ks == 3: q1.add(lambda: one_lane_store(k, sW, sWS, [sFL], 1, VZ + 4))
            if ks == zk:
                def a():
                    k.op("v_lshlrev_b32", V(243), 2, V(vL)); pz(); vq.issue("pz")
                q1.add(a)
            if ks == zk + 3:
                def a():
                    k.op("s_lshl_b32", S(sT1), S(sJ), 6)
                    k.op("s_sub_u32", S(sT2), 960, S(sT1))
                    k.op("v_mov_b32", V(240), S(sT1))
                    k.op("v_mov_b32", V(241), S(sT2))
                    k.op("v_cmp_eq_u32", "vcc", 0, V(g1))
                    k.op("s_mov_b32", S(sFL), FL_OFF)
                    k.nop(1)
                    k.op("v_cndmask_b32", V(240), V(241), V(240), "vcc")
                    k.op("v_lshl_add_u32", V(240), V(l15), 2, V(240))
                    pl(); vq.issue("pp")
                q1.add(a)
            if ks == zk + 5 and pfx:
                def a():
                    k.op("s_lshl_b32", S(sT0), S(sJ), 17)
                    k.op("s_lshl_b32", S(sT1), S(sW), 15)
                    k.op("s_and_b32", S(sT2), S(sH), 3)
                    k.op("s_lshl_b32", S(sT2), S(sT2), 12)
                    k.op("s_add_u32", S(sT1), S(sT1), S(sT2))
                    k.op("s_add_u32", S(57), S(sT0), S(sT1))
                    k.op("v_lshrrev_b32", V(12), 5, V(vL))
                    k.op("v_and_b32", V(13), 31, V(vL))
                    k.op("v_lshlrev_b32", V(13), 7, V(13))
                    k.op("v_lshl_add_u32", V(13), V(12), 14, V(13))
                    k.op("buffer_load_dword", V(15), V(13), S(sWS, 4), S(57), mods="offen sc1", dummy=True); vq.issue()
                    k.op("s_sub_u32", S(57), 1920 * 1024, S(sT0))
                    k.op("s_add_u32", S(57), S(57), S(sT1))
                    k.op("buffer_load_dword", V(15), V(13), S(sWS, 4), S(57), mods="offen sc1", dummy=True); vq.issue()
                q1.add(a)
            if ks == 14: q1.add_kern(k2_setup())
            for rb in range(8):
                def f(rb=rb):
                    off = aslot(ks >> 1) - 65536
                    wn = off // 65536
                    k.op("ds_read_b128", V(AFB + (ks % 2) * 32 + rb * 4, 4), V(AAr + 2 * wn + (ks & 1)), mods=f"offset:{off - wn*65536 + rb*2048}")
                    lq.issue(("a", ks))
                qa.add(f)
        qa = FillQ(k)
        def rd_w(n, i):
            ks, nb = n >> 3, n & 7
            if nb == 0 and i == 0: switch(ks)
            k.op("ds_read_b64_tr_b16", V(WF + (n % 8) * 4 + 2 * i, 2), V(TA + nb), mods=f"offset:{wslot(ks) + i*1024}")
            lq.issue(("w", n))
        rd_w(0, 0); rd_w(0, 1); qa.flush()
        for n in range(1, D):
            rd_w(n, 0); rd_w(n, 1)
        direct = list(range(32 - npark))
        done = set()
        for n in range(128):
            ks, nb = n >> 3, n & 7
            if n in (32, 64, 96): stp.stamp()
            if pf2 and n == pf2at * 8 + 4: pf_k2()
            if ks == 15:
                for c in direct:
                    if c not in done and ready_nb(c) + 2 <= nb:
                        q2.add_kern(epi_kern(c)); done.add(c)
            lq.need(("w", n), ("a", ks), cnt=[2, 8])
            wf = V(WF + (n % 8) * 4, 4)
            for rb in range(8):
                d = A(acc(rb, nb), 4); af = V(AFB + (ks % 2) * 32 + rb * 4, 4)
                if kv == 0: k.op("v_mfma_f32_16x16x32_bf16", d, wf, af, "0" if ks == 0 else d)
                else: k.op("v_mfma_f32_16x16x32_bf16", d, af, wf, "0" if ks == 0 else d)
                if rb < 2 and n + D < 128: rd_w(n + D, rb)
                elif rb in (2, 4, 6) and len(qa): qa.emit(1)
                elif rb in (3, 7) or ks >= 14: q1.emit(1)
                if ks == 15: q2.emit(2)
        stp.stamp()
        q1.flush()
        k.op("s_barrier")
        stp.stamp()
        rest = [c for c in direct if c not in done]
        for c in [c for c in rest if c < 8]: q2.add_kern(epi_kern(c))
        pages = k2_pages()
        while len(q2):
            q2.emit(5)
            if pages: pages.pop(0)()
        stp.stamp()
        loads = pages + [f for ks in range(4) for f in k2_xn(ks)]
        def pv(i): return AFB + i if i < 64 else WF + (i - 64)
        for i, c in enumerate(range(32 - npark, 32)): q2.add_kern(epi_kern(c, park=pv(4 * i)))
        w = Kern("w")
        for i in range(4 * npark): w.op("v_accvgpr_write_b32", A(192 - 4 * npark + i), V(pv(i)))
        q2.add_kern(w)
        while len(q2) or loads:
            q2.emit(9)
            if loads: loads.pop(0)()
        for c in [c for c in rest if c >= 8]: q2.add_kern(epi_kern(c))
        q2.flush()
        k.op("s_add_u32", S(50), S(sSt), (32 - npark) * 1024)
        if stamps:
            stp.stamp()
            stp.flush(sWS, sW, 4)
        k.op("s_mov_b32", "s3", S(sFA))
        k.raw("  s_branch k2_kernel")
        k.op("s_endpgm")
    k.label("k1_end")
    k.op("s_endpgm")
    return k

if __name__ == "__main__":
    k = build_k1()
    for e in k.check_hazards(): print(e)
    for e in k.check_waits(): print(e)
    print(k.maxregs(), len(k.ins))
```

```python
from common import *
import struct
def f32(x): return hex(struct.unpack("<I", struct.pack("<f", x))[0])
LOG2E = 1.4426950408889634
QSCALE = LOG2E / (128 ** 0.5)
STAT_OFF = YF_OFF

def build_k2(stamps=False, D=6, DA=8, thr=2.0 ** 80, pf3=True, fuse3=False, xnobar=False, xnodma=False, oolmask=True, pfself=True, fused1=False, early1=False, pace=True, wp=4, early3=False, park=0, pst=4, fast=6, mark=False):
    k = Kern("k2_kernel")
    SC = " sc1" if fused1 else ""
    XN = (192 - 4 * park) // 16 if park else 12
    vq, lq = Q(k, "vmcnt", 63), Q(k, "lgkmcnt", 15)
    stp = Stamps(k, stamps, 62, 1, lq, maxn=8)
    sWS, sWQ, sW1, sK, sV, sB1 = 8, 12, 16, 20, 24, 28
    sW, sH, sP, sNa, sNb, sT = 32, 33, 34, 35, 36, 37
    sT0, sT1, sT2, sSo = 38, 39, 40, 41
    sP2, sP1, sRd, sNx = 42, 43, 44, 45
    sTK, sTV, sW4k, sThr, sRet = 46, 47, 48, 49, 50
    sXa, sXb = 51, 52
    sCa, sCb = 53, 54
    sM = 56
    sLd = 98
    vL, vL16, vA, vD, vZ, vNinf = 1, 2, 3, 4, 5, 6
    vPs = [7, 8]; vLs = [9, 10]; vMx = [11, 12]
    vT = 13
    vCo = 20
    QR, NEGM, SR = 32, 96, 128
    def Sreg(sub, par): return SR + sub * 64 + par * 32
    OA, FR = 64, 192
    TA, TB, VW, VW1 = 96, 104, 108, 112
    vXo = 21
    MACC = 32
    ONES = 116
    XR = 0

    k.op("s_cmp_ge_u32", "s2", 256)
    k.op("s_cbranch_scc1", "k2_end")
    if pfself:
        pf_self(k, "k2_slow_0", vt=254); vq.issue()
    k.op("s_load_dwordx2", S(84, 2), S(0, 2), KA["wq"])
    k.op("s_load_dwordx4", S(88, 4), S(0, 2), KA["w1"])
    k.op("s_load_dwordx2", S(92, 2), S(0, 2), KA["ws"])
    k.op("s_load_dwordx2", S(86, 2), S(0, 2), KA["wo"])
    k.op("s_load_dwordx2", S(96, 2), S(0, 2), KA["w2"])
    k.op("v_and_b32", V(vL), 63, "v0")
    k.op("v_lshrrev_b32", V(13), 6, "v0")
    k.op("s_and_b32", S(sT0), "s2", 7)
    k.op("v_readfirstlane_b32", S(sW), V(13))
    k.op("s_lshr_b32", S(sT1), "s2", 3)
    k.op("s_and_b32", S(sT2), S(sT1), 3)
    k.op("s_lshl_b32", S(sH), S(sT0), 2)
    k.op("s_add_u32", S(sH), S(sH), S(sT2))
    k.op("s_lshr_b32", S(sP), S(sT1), 2)
    k.op("v_lshlrev_b32", V(vL16), 4, V(vL))
    k.op("s_lshl_b32", S(sW4k), S(sW), 12)
    k.op("v_add_u32", V(vD), S(sW4k), V(vL16))
    g, l15, p8, l3, r_, cc, g1, t7 = 22, 23, 24, 25, 26, 27, 28, 29
    k.op("v_lshrrev_b32", V(g), 4, V(vL))
    k.op("v_and_b32", V(l15), 15, V(vL))
    k.op("v_and_b32", V(p8), 7, V(vL))
    k.op("v_lshrrev_b32", V(l3), 3, V(vL))
    k.op("v_bfe_u32", V(r_), V(vL), 2, 2)
    k.op("v_and_b32", V(cc), 3, V(vL))
    k.op("v_and_b32", V(g1), 1, V(g))
    k.op("v_lshlrev_b32", V(t7), 1, V(g))
    k.op("v_xor_b32", V(t7), V(t7), V(l15))
    k.op("v_lshlrev_b32", V(t7), 4, V(t7))
    k.op("v_lshl_add_u32", V(t7), V(g), 13, V(t7))
    k.op("s_lshl_b32", S(sT0), S(sW), 17)
    k.op("s_lshl_b32", S(sT1), S(sH), 8)
    k.op("s_add_u32", S(sT0), S(sT0), S(sT1))
    k.op("v_add_u32", V(VW), S(sT0), V(t7))
    k.op("v_add_u32", V(VW + 1), 32768 - 1024, V(VW))
    k.op("v_xor_b32", V(VW + 2), 128, V(VW))
    k.op("v_add_u32", V(VW + 2), 2 * (32768 - 1024), V(VW + 2))
    k.op("v_add_u32", V(VW + 3), 32768 - 1024, V(VW + 2))
    k.op("v_lshlrev_b32", V(t7), 1, V(g1))
    k.op("v_xor_b32", V(t7), V(t7), V(p8))
    k.op("v_lshlrev_b32", V(t7), 4, V(t7))
    k.op("v_mul_u32_u24", V(30), 2752, V(l3))
    k.op("s_mul_i32", S(sT0), S(sW), 32 * 2752)
    k.op("s_mul_i32", S(sT1), S(sH), 96)
    k.op("s_add_u32", S(sT0), S(sT0), S(sT1))
    k.op("v_add_u32", V(30), S(sT0), V(30))
    k.op("v_add_u32", V(VW1), V(30), V(t7))
    k.op("v_xor_b32", V(t7), 64, V(t7))
    k.op("v_add_u32", V(VW1 + 1), V(30), V(t7))
    k.op("v_add_u32", V(VW1 + 1), 8 * 2752 - 1024, V(VW1 + 1))
    k.op("v_add_u32", V(VW1 + 2), 2 * (8 * 2752 - 1024), V(VW1))
    k.op("v_add_u32", V(VW1 + 3), 2 * (8 * 2752 - 1024), V(VW1 + 1))
    k.op("s_lshl_b32", S(sT0), S(sP), 7)
    k.op("s_lshl_b32", S(sT1), S(sW), 5)
    k.op("s_add_u32", S(sXa), S(sT0), S(sT1))
    k.op("s_sub_u32", S(sXb), 1920, S(sT0))
    k.op("s_add_u32", S(sXb), S(sXb), S(sT1))
    k.op("s_lshl_b32", S(sT2), S(sH), 12)
    k.op("s_add_u32", S(sT2), S(sT2), CTX_OFF)
    k.op("s_lshl_b32", S(sCa), S(sXa), 13)
    k.op("s_add_u32", S(sCa), S(sCa), S(sT2))
    k.op("s_lshl_b32", S(sCb), S(sXb), 13)
    k.op("s_add_u32", S(sCb), S(sCb), S(sT2))
    sRa, sRb = 94, 95
    k.op("s_mov_b32", S(sRa), S(sXa)); k.op("s_mov_b32", S(sRb), S(sXb))
    sHr = 56
    for rb in range(4):
        k.op("s_lshr_b32", S(sHr + rb), S(sRa if rb < 2 else sRb), 4)
        k.op("s_add_u32", S(sHr + rb), S(sHr + rb), rb & 1)
        k.op("s_mul_i32", S(sHr + rb), S(sHr + rb), 43 * 1024)
    k.op("s_lshl_b32", S(sXa), S(sXa), 10)
    k.op("s_lshl_b32", S(sXb), S(sXb), 10)
    k.op("s_lshr_b32", S(sT1), S(sW), 1)
    k.op("s_lshl_b32", S(sT0), S(sP), 1)
    k.op("s_add_u32", S(sNa), S(sT0), S(sT1))
    k.op("s_add_u32", S(sNa), S(sNa), 1)
    k.op("s_sub_u32", S(sNb), 31, S(sT0))
    k.op("s_add_u32", S(sNb), S(sNb), S(sT1))
    k.wait(lgkm=0)
    stp.stamp()
    load_srd(k, sWQ, "wq", 84); load_srd(k, sW1, "w1", 88); load_srd(k, sWS, "ws", 92)

    pages = {}
    order = []
    for j in range(4):
        order += [("W1", j), ("WQ", 2 * j), ("WQ", 2 * j + 1)]
    for i, p in enumerate(order): pages[p] = i
    for t in range(6): pages[("K", t)] = 12 + 2 * t; pages[("V", t)] = 15 + 2 * t
    def slot(p): return (pages[p] % 10) * 16384
    def dma_items(p):
        kind, j = p
        def setup():
            k.op("s_add_u32", "m0", S(sW4k), slot(p))
            k.op("s_mov_b32", S(sSo), {"W1": j * 128 * 2752, "WQ": j * 524288, "K": j * 16384, "V": (j + 1) * 16384}[kind])
        def ld(i):
            def f():
                if kind == "WQ": k.op("buffer_load_dwordx4", V(VW + i), S(sWQ, 4), S(sSo), mods=f"offen offset:{i*1024} lds")
                elif kind == "W1": k.op("buffer_load_dwordx4", V(VW1 + i), S(sW1, 4), S(sSo), mods=f"offen offset:{i*1024} lds")
                else: k.op("buffer_load_dwordx4", V(vD), S(sK if kind == "K" else sV, 4), S(sSo), mods=f"offen offset:{i*1024}{SC} lds")
                vq.issue(p)
            return f
        return [setup] + [ld(i) for i in range(4)]
    def xn_load(ks, rb):
        def f():
            r = XR + ((ks % XN) * 4 + rb) * 4
            if ks & 3 == 0: k.op("s_add_u32", S(sLd + rb), S(sXa if rb < 2 else sXb), (rb & 1) * 16384 + (ks >> 2) * 4096)
            k.op("buffer_load_dwordx4", A(r, 4), V(vL16), S(sWS, 4), S(sLd + rb), mods=f"offen offset:{(ks&3)*1024}" + SC)
            vq.issue(("x", ks))
        return f
    if early1:
        for p in (("W1", 0), ("WQ", 0), ("WQ", 1)):
            for _ in range(4): vq.issue(p)
        for ks in range(4):
            for _ in range(4): vq.issue(("x", ks))
        for _ in range(0 if park else 2): vq.issue()
    else:
        for p in (("W1", 0), ("WQ", 0)):
            for f in dma_items(p): f()
        for ks in range(2):
            for rb in range(4): xn_load(ks, rb)()
        for f in dma_items(("WQ", 1)): f()
        for ks in range(2, 4):
            for rb in range(4): xn_load(ks, rb)()
    load_srd(k, sB1, "b1", 90)
    k.op("s_lshl_b32", S(sT0), S(sH), 19)
    k.op("s_add_u32", S(sT1), S(sT0), KF_OFF)
    k.op("s_add_u32", S(sK), S(92), S(sT1))
    k.op("s_addc_u32", S(sK + 1), S(93), 0)
    k.op("s_and_b32", S(sK + 1), S(sK + 1), "0xffff")
    k.op("s_lshl_b32", S(sT2), S(sP), 15)
    k.op("s_sub_u32", S(sK + 2), 32 * 16384, S(sT2))
    k.op("s_mov_b32", S(sK + 3), "0x20000")
    k.op("s_add_u32", S(sT1), S(sT0), VF_OFF - 16384)
    k.op("s_add_u32", S(sV), S(92), S(sT1))
    k.op("s_addc_u32", S(sV + 1), S(93), 0)
    k.op("s_and_b32", S(sV + 1), S(sV + 1), "0xffff")
    k.op("s_add_u32", S(sV + 2), S(sK + 2), 16384)
    k.op("s_mov_b32", S(sV + 3), "0x20000")
    k.op("v_lshl_or_b32", V(30), V(g1), 2, V(r_))
    k.op("v_lshl_add_u32", V(31), V(g), 3, V(r_))
    k.op("v_lshlrev_b32", V(t7), 8, V(31))
    k.op("v_lshl_add_u32", V(t7), V(cc), 3, V(t7))
    for nb in range(8):
        k.op("v_xor_b32", V(13), nb, V(30))
        k.op("v_lshl_add_u32", V(TA + nb), V(13), 5, V(t7))
    k.op("v_lshrrev_b32", V(13), 1, V(r_))
    k.op("v_lshl_or_b32", V(30), V(g1), 1, V(13))
    k.op("v_lshlrev_b32", V(t7), 7, V(31))
    k.op("v_lshl_add_u32", V(t7), V(cc), 3, V(t7))
    for nb in range(3):
        k.op("v_xor_b32", V(13), nb, V(30))
        k.op("v_lshl_add_u32", V(TB + nb), V(13), 5, V(t7))
    for i in range(4): k.op("v_mov_b32", V(ONES + i), "0x3f803f80")
    ST = 120
    B1 = [92, 94, 30]
    k.op("v_lshlrev_b32", V(13), 3, V(l15))
    for rb in range(4):
        k.op("s_lshl_b32", S(sT0), S(sRa if rb < 2 else sRb), 3)
        k.op("s_add_u32", S(sT0), S(sT0), STAT_OFF + (rb & 1) * 128)
        k.op("buffer_load_dwordx2", V(ST + 2 * rb, 2), V(13), S(sWS, 4), S(sT0), mods="offen" + SC); vq.issue("st")
    k.op("v_lshlrev_b32", V(14), 3, V(g))
    k.op("s_mul_i32", S(sT1), S(sH), 96)
    for nb in range(3):
        k.op("buffer_load_dwordx2", V(B1[nb], 2), V(14), S(sB1, 4), S(sT1), mods=f"offen offset:{nb*32}"); vq.issue("st")
    win = {"TA": 0, "TB": 0}
    def set_window(name, base, n, off):
        w = off // 65536
        if win[name] != w:
            d = (w - win[name]) * 65536
            for i in range(n): k.op("v_add_u32", V(base + i), hex(d & 0xffffffff), V(base + i))
            win[name] = w
        return off - w * 65536
    frs = []
    for ks in range(16):
        for nb in range(3): frs.append(("W1", ks, nb))
        for nb in range(8): frs.append(("WQ", ks, nb))
    NF = len(frs)
    q1 = FillQ(k)
    plan = {0: [("W1", 1), ("WQ", 2)], 1: [("WQ", 3)], 2: [("W1", 2), ("WQ", 4)], 3: [("WQ", 5)], 4: [("W1", 3), ("WQ", 6)],
            5: [("WQ", 7)], 6: [("K", 0), ("K", 1)], 7: [("V", 0), ("K", 2)]}
    def stage_switch(s):
        need = [("WQ", s)] + ([("W1", s // 2)] if s % 2 == 0 else [])
        vq.need(*need, cnt=[4] * len(need))
        if park and s == fast: vq.need("pk", cnt=[park])
        k.op("s_barrier")
        q1.flush()
        if fused1 and s == (fast if park else 2):
            one_lane_store(k, sW, sWS, [3], 1, 18)
        if fused1 and s == (7 if park else 5):
            k.op("s_lshl_b32", S(55), S(sH), 7)
            k.op("s_add_u32", S(55), S(55), FA_OFF)
            k.op("v_lshlrev_b32", V(18), 2, V(p8))
            k.op("buffer_load_dword", V(19), V(18), S(sWS, 4), S(55), mods="offen sc1"); vq.issue("pp")
        if fused1 and s == 6 and not park:
            vq.need("pp")
            spin_until(k, "k2_sp", lambda: k.op("buffer_load_dword", V(19), V(18), S(sWS, 4), S(55), mods="offen sc1"),
                       lambda: k.op("v_cmp_ne_u32", "vcc", 1, V(19)), sT1)
        if 2 * s + 4 < 16:
            for rb in range(4): q1.add(xn_load(2 * s + 4, rb))
        for p in plan[s]:
            if park and p[0] in "KV": continue
            for f in dma_items(p): q1.add(f)
        sts = []
        for i in range(pst):
            c = s * pst + i
            if c >= park: break
            def st_(c=c):
                k.op("buffer_store_dwordx4", A(192 - 4 * park + c * 4, 4), V(vL16), S(sWS, 4), S(50), mods=f"offen offset:{(c%4)*1024} sc1"); vq.issue("pk")
                if c % 4 == 3: k.op("s_add_u32", S(50), S(50), 4096)
            sts.append(st_)
        for f in sts[:len(sts) // 2]: q1.add(f)
        if 2 * s + 5 < 16:
            for rb in range(4): q1.add(xn_load(2 * s + 5, rb))
        for f in sts[len(sts) // 2:]: q1.add(f)
    def read_frag(n, which):
        kind, ks, nb = frs[n]
        if n % 22 == 0 and which == 0: stage_switch(n // 22)
        r = FR + (n % 16) * 4
        if kind == "WQ":
            off = slot(("WQ", ks // 2)) + (ks & 1) * 8192 + which * 1024
            off = set_window("TA", TA, 8, slot(("WQ", ks // 2))) + (ks & 1) * 8192 + which * 1024
            k.op("ds_read_b64_tr_b16", A(r + 2 * which, 2), V(TA + nb), mods=f"offset:{off}")
        else:
            off = set_window("TB", TB, 3, slot(("W1", ks // 4))) + (ks & 3) * 4096 + which * 512
            k.op("ds_read_b64_tr_b16", A(r + 2 * which, 2), V(TB + nb), mods=f"offset:{off}")
        lq.issue(("w", n))
    def qacc(nb, rb): return SR + 4 * (nb * 4 + rb)
    def macc(nb, rb): return MACC + 4 * (nb * 4 + rb)
    for n in range(D):
        read_frag(n, 0); read_frag(n, 1)
    stp.stamp()
    for n in range(NF):
        kind, ks, nb = frs[n]
        if n % 11 == 0: vq.need(("x", ks), cnt=[4])
        if n % 2 == 0: lq.need(("w", n), ("w", n + 1), cnt=[2, 2])
        wf = A(FR + (n % 16) * 4, 4)
        first = ks == 0
        ms = []
        for rb in range(4):
            d = V(qacc(nb, rb) if kind == "WQ" else macc(nb, rb), 4)
            ms.append((d, A(XR + ((ks % XN) * 4 + rb) * 4, 4)))
        if kind == "W1": ms.append((V(MACC + 48 + 4 * nb, 4), V(ONES, 4)))
        for c, (d, b) in enumerate(ms):
            k.op("v_mfma_f32_16x16x32_bf16", d, wf, b, "0" if first else d)
            if c < 2 and n + D < NF: read_frag(n + D, c)
            elif not pace or c == 2 or (c == 3 and len(q1) > 22 - (n % 22 + D) % 22): q1.emit(2 if (len(q1) > 12 and not pace) else 1)
    q1.flush()
    stp.stamp()
    if park:
        vq.need("pp")
        spin_until(k, "k2_sp", lambda: k.op("buffer_load_dword", V(19), V(18), S(sWS, 4), S(55), mods="offen sc1"),
                   lambda: k.op("v_cmp_ne_u32", "vcc", 1, V(19)), sT1)
        k.op("s_barrier")
        for p in (("K", 0), ("K", 1), ("V", 0), ("K", 2)):
            for f in dma_items(p): f()
    else:
        vq.need(("K", 0), cnt=[4])
        k.op("s_barrier")
        for p in (("V", 1), ("K", 3), ("V", 2)):
            for f in dma_items(p): f()
    k.op("v_mul_u32_u24", V(15), 44032, V(g1))
    k.op("v_lshrrev_b32", V(16), 5, V(vL))
    k.op("v_lshl_add_u32", V(15), V(16), 8, V(15))
    k.op("v_lshl_add_u32", V(15), V(l15), 4, V(15))
    C1, C2 = -2 * LOG2E * 0.7978845608028654, -2 * LOG2E * 0.7978845608028654 * 0.044715
    k.op("v_mov_b32", V(16), f32(C1)); k.op("v_mov_b32", V(17), f32(C2))
    k.op("v_mov_b32", V(18), "1.0"); k.op("v_mov_b32", V(19), "1.0")
    def P(r): return V(r, 2)
    bb, t = 96, 100
    for nb in range(3):
        k.op("v_lshlrev_b32", V(bb), 16, V(B1[nb]))
        k.op("v_and_b32", V(bb + 1), "0xffff0000", V(B1[nb]))
        k.op("v_lshlrev_b32", V(bb + 2), 16, V(B1[nb] + 1))
        k.op("v_and_b32", V(bb + 3), "0xffff0000", V(B1[nb] + 1))
        cs = MACC + 48 + 4 * nb
        k.op("s_mul_i32", S(sT1), S(sH), 3)
        k.op("s_add_u32", S(sT1), S(sT1), nb)
        k.op("s_lshl_b32", S(sT2), S(sT1), 9)
        k.op("s_add_u32", S(sT2), S(sT2), HF_OFF)
        lab = k.newlabel("skiph")
        k.op("s_cmp_ge_u32", S(sT1), 86)
        k.op("s_cbranch_scc1", lab)
        for rp in range(2):
            rbs = (2 * rp, 2 * rp + 1)
            def each(fn):
                for j, rb in enumerate(rbs):
                    for i in (0, 2): fn(macc(nb, rb) + i, t + 4 * j + i, ST + 2 * rb, i)
            each(lambda a, tt, st, i: k.op("v_pk_fma_f32", P(a), P(cs + i), P(st), P(a), mods="op_sel_hi:[1,0,1] neg_lo:[1,0,0] neg_hi:[1,0,0]"))
            each(lambda a, tt, st, i: k.op("v_pk_fma_f32", P(a), P(a), P(st), P(bb + i), mods="op_sel:[0,1,0]"))
            each(lambda a, tt, st, i: k.op("v_pk_mul_f32", P(tt), P(a), P(a)))
            each(lambda a, tt, st, i: k.op("v_pk_fma_f32", P(tt), P(tt), P(16), P(16), mods="op_sel:[0,1,0] op_sel_hi:[1,1,0]"))
            each(lambda a, tt, st, i: k.op("v_pk_mul_f32", P(tt), P(tt), P(a)))
            for i in range(8): k.op("v_exp_f32", V(t + i), V(t + i))
            each(lambda a, tt, st, i: k.op("v_pk_add_f32", P(tt), P(tt), P(18)))
            for i in range(8): k.op("v_rcp_f32", V(t + i), V(t + i))
            each(lambda a, tt, st, i: k.op("v_pk_mul_f32", P(a), P(a), P(tt)))
            a0, a1 = macc(nb, rbs[0]), macc(nb, rbs[1])
            k.op("v_cvt_pk_bf16_f32", V(a0), V(a0), V(a0 + 1))
            k.op("v_cvt_pk_bf16_f32", V(a0 + 1), V(a0 + 2), V(a0 + 3))
            k.op("v_cvt_pk_bf16_f32", V(a0 + 2), V(a1), V(a1 + 1))
            k.op("v_cvt_pk_bf16_f32", V(a0 + 3), V(a1 + 2), V(a1 + 3))
            k.op("s_add_u32", S(sT0), S(sHr + 2 * rp), S(sT2))
            k.nop(1)
            k.op("v_permlane16_swap_b32", V(a0), V(a0 + 2))
            k.op("v_permlane16_swap_b32", V(a0 + 1), V(a0 + 3))
            k.op("buffer_store_dwordx4", V(a0, 4), V(15), S(sWS, 4), S(sT0), mods="offen" + (" sc1" if fuse3 else ""))
        k.label(lab)
    if park:
        for p in (("V", 1), ("K", 3), ("V", 2)):
            for f in dma_items(p): f()
    k.op("v_mov_b32", V(16), f32(QSCALE)); k.op("v_mov_b32", V(17), f32(QSCALE))
    def Qreg(sub, qb, ds): return QR + sub * 32 + qb * 16 + ds * 4
    for rb in range(4):
        for ds in range(4):
            X = Qreg(rb >> 1, rb & 1, ds)
            for half in range(2):
                a = qacc(2 * ds + half, rb)
                for i in (0, 2): k.op("v_pk_mul_f32", P(a + i), P(a + i), P(16))
                k.op("v_cvt_pk_bf16_f32", V(X + 2 * half), V(a), V(a + 1))
                k.op("v_cvt_pk_bf16_f32", V(X + 2 * half + 1), V(a + 2), V(a + 3))
    stp.stamp()
    def Ngm(sub, qb): return NEGM + sub * 8 + qb * 4
    def Lac(sub, qb): return 112 + sub * 8 + qb * 4
    ON1 = 24
    k.op("s_and_b32", S(sT0), S(sW), 1)
    k.op("s_lshl_b32", S(sT0), S(sT0), 5)
    k.op("v_add_u32", V(vZ), S(sT0), V(l15))
    k.op("v_lshlrev_b32", V(15), 2, V(g))
    k.op("v_sub_u32", V(vZ), V(vZ), V(15))
    k.op("v_mov_b32", V(vNinf), f32(-1e30))
    for i in range(4): k.op("v_mov_b32", V(ON1 + i), "0x3f803f80")
    for i in range(16): k.op("v_mov_b32", V(112 + i), 0)
    k.op("s_mov_b32", S(sThr), f32(thr))
    k.op("s_mov_b32", S(sP2), 0)
    k.op("s_mov_b32", S(sNx), 98304)
    k.op("s_mov_b32", S(sTK), 4 * 16384)
    k.op("s_mov_b32", S(sT), 2)

    def mf(d, a, b, c): k.op("v_mfma_f32_16x16x32_bf16", d, a, b, c)
    def mask_block(sub, par):
        s0 = Sreg(sub, par)
        for e0 in range(0, 32, 2):
            for u in range(2):
                e = e0 + u; qb, kb, r = e >> 4, (e >> 2) & 3, e & 3
                k.op("v_cmp_gt_i32", S(sM + 2 * u, 2), 16 * kb + r - 16 * qb, V(vZ))
            k.nop(1)
            for u in range(2):
                k.op("v_cndmask_b32", V(s0 + e0 + u), V(s0 + e0 + u), V(vNinf), S(sM + 2 * u, 2))
    def ereg(n):
        k32, qb, j = n >> 4, (n >> 3) & 1, n & 7
        return qb * 16 + k32 * 8 + j
    def soft_exp(sub, par, n):
        r = Sreg(sub, par) + ereg(n)
        k.op("v_exp_f32", V(r), V(r))
    def soft_cvt(sub, par, n):
        e = n - 2
        r = Sreg(sub, par) + ereg(e)
        d = Sreg(sub, par) + (ereg(e) & ~7) + ((e & 7) >> 1)
        k.op("v_cvt_pk_bf16_f32", V(d), V(r), V(r + 1))
    def rd(frag, isV):
        k.op("ds_read_b128", A(FR + frag * 4, 4), V(vA), mods=f"offset:{(16384 if isV else 0) + frag*1024}")
    def ldK(i): return lambda: k.op("buffer_load_dwordx4", V(vD), S(sK, 4), S(sTK), mods=f"offen offset:{i*1024}{SC} lds")
    def ldV(i): return lambda: k.op("buffer_load_dwordx4", V(vD), S(sV, 4), S(sTK), mods=f"offen offset:{i*1024}{SC} lds")
    m0K = lambda: k.op("s_add_u32", "m0", S(sP2), S(sW4k))
    m0V = lambda: k.op("s_add_u32", "m0", "m0", 16384)
    advT = lambda: k.op("s_add_u32", S(sTK), S(sTK), 16384)
    advP = lambda: k.op("s_add_u32", S(sP2), S(sP2), 32768)
    wrapP = lambda: (k.op("s_cmp_eq_u32", S(sP2), 163840), k.op("s_cselect_b32", S(sP2), 0, S(sP2)))
    XA = {1: [ldK(2)], 5: [ldK(3)], 7: [m0V], 9: [ldV(0)], 13: [ldV(1)]}
    XB = {1: [ldV(2)], 5: [ldV(3)], 7: [advT, advP], 9: [wrapP, m0K], 11: [ldK(0)], 15: [ldK(1)]}
    if DA == 12:
        XA = {1: [ldK(2)], 5: [ldK(3)], 6: [m0V], 8: [ldV(0)], 11: [ldV(1)], 14: [ldV(2)]}
        XB = {1: [ldV(3)], 2: [advT, advP], 5: [wrapP, m0K], 7: [ldK(0)], 11: [ldK(1)]}
    if DA == 6:
        XB = {1: [ldV(2)], 5: [ldV(3)], 7: [advT, advP], 9: [wrapP], 11: [m0K], 13: [ldK(0)], 15: [ldK(1)]}
    WP = wp
    def phaseA(par, qk, ex):
        if not qk:
            k.wait(lgkm=0)
            for f in range(DA): rd(f, True)
            for n in range(16, 32):
                for sub in ex:
                    soft_exp(sub, par, n)
                    if n % 2 == 0: soft_cvt(sub, par, n)
            return
        for f in range(16):
            kb, ds = f >> 2, f & 3
            if f % WP == 0: k.wait(lgkm=DA - WP)
            for j, sub in enumerate(qk):
                xs = ex if len(qk) == 1 else [sub]
                for qb in range(2):
                    d = V(Sreg(sub, 1 - par) + qb * 16 + kb * 4, 4)
                    mf(d, A(FR + f * 4, 4), V(Qreg(sub, qb, ds), 4), V(Ngm(sub, qb), 4) if ds == 0 else d)
                    if qb == 0:
                        for x in xs: soft_exp(x, par, 16 + f)
                if j == 0:
                    nf = f + DA
                    if nf < 16: rd(nf, False)
                    else: rd(nf - 16, True)
                if f % 2 == 0:
                    for x in xs: soft_cvt(x, par, 16 + f)
                if j == len(qk) - 1:
                    for fn in XA.get(f, []): fn()
    def phaseB(par, pv, exn, bar="always", tailops=()):
        extra = list(tailops)
        for f in range(16):
            k32, db = f >> 3, f & 7
            if f % WP == 0: k.wait(lgkm=DA - WP if bar == "always" else max(0, min(DA - WP, 16 - f - WP)))
            for j, sub in enumerate(pv):
                for qb in range(2):
                    d = A(OA + sub * 64 + (db * 2 + qb) * 4, 4)
                    mf(d, A(FR + f * 4, 4), V(Sreg(sub, par) + qb * 16 + k32 * 8, 4), d)
                    if qb == 0 and sub in exn: soft_exp(sub, 1 - par, f)
                if j == 0:
                    nf = f + DA
                    if nf == 16:
                        if bar == "always":
                            k.wait(vm=16); k.op("s_barrier")
                        elif bar == "w01":
                            lab = k.newlabel("nobar")
                            k.op("s_cmp_ge_u32", S(sW), 2); k.op("s_cbranch_scc1", lab)
                            k.wait(vm=8); k.op("s_barrier")
                            k.label(lab)
                        k.op("v_add_u32", V(vA), S(sNx), V(vL16))
                    if bar == "always" or nf < 16:
                        if nf < 16: rd(nf, True)
                        else: rd(nf - 16, False)
                if f == 0: soft_cvt(sub, par, 32)
                elif f % 2 == 0 and sub in exn: soft_cvt(sub, 1 - par, f)
                if f % 4 == 3:
                    qb = (f >> 2) & 1
                    d = V(Lac(sub, qb), 4)
                    mf(d, V(ON1, 4), V(Sreg(sub, par) + qb * 16 + k32 * 8, 4), d)
                if j == len(pv) - 1 and bar == "always":
                    for fn in XB.get(f, []): fn()
                    if f in (3, 13, 14) and extra: extra.pop(0)()
        for fn in extra: fn()
    def nx_items():
        return [lambda: k.op("s_add_u32", S(sT), S(sT), 1),
                lambda: k.op("s_add_u32", S(sNx), S(sNx), 32768),
                lambda: (k.op("s_cmp_eq_u32", S(sNx), 163840), k.op("s_cselect_b32", S(sNx), 0, S(sNx)))]
    def rowmax(sub, par, qb, dst):
        s0 = Sreg(sub, par) + 16 * qb
        k.op("v_max3_f32", V(dst), V(s0), V(s0 + 1), V(s0 + 2))
        for e in range(3, 15, 2): k.op("v_max3_f32", V(dst), V(dst), V(s0 + e), V(s0 + e + 1))
        k.op("v_max_f32", V(dst), V(dst), V(s0 + 15))
        for sw in ("v_permlane16_swap_b32", "v_permlane32_swap_b32"):
            k.op("v_mov_b32", V(vT + 1), V(dst))
            k.nop(2)
            k.op(sw, V(dst), V(vT + 1))
            k.op("v_max_f32", V(dst), V(dst), V(vT + 1))
    slow_sites = {}
    def epilogue(sub, site):
        t = Sreg(sub, 0)
        k.nop(8)
        k.op("v_max_f32", V(vT), V(Lac(sub, 0)), V(Lac(sub, 1)))
        k.op("v_add_f32", V(vT + 1), V(Lac(sub, 0)), V(Lac(sub, 1)))
        k.op("v_cmp_nle_f32", "vcc", V(vT + 1), V(21))
        k.op("s_mov_b32", S(sRet), site)
        k.op("s_cbranch_vccnz", f"k2_slow_{sub}")
        lab = f"k2_ret_{sub}_{site}"
        k.label(lab)
        slow_sites.setdefault(sub, []).append((site, lab))
        k.op("v_rcp_f32", V(vT + 3), V(Lac(sub, 0)))
        k.op("v_rcp_f32", V(vT + 4), V(Lac(sub, 1)))
        for qb in range(2):
            if qb: k.op("s_add_u32", S(sT0), S(sCa if sub == 0 else sCb), 131072)
            for ks in range(4):
                b = t + (qb * 4 + ks) * 8
                for half in range(2):
                    for i in range(4):
                        k.op("v_accvgpr_read_b32", V(b + 4 * half + i), A(OA + sub * 64 + ((2 * ks + half) * 2 + qb) * 4 + i))
                for i in range(0, 8, 2):
                    k.op("v_pk_mul_f32", P(b + i), P(b + i), P(vT + 3), mods="op_sel_hi:[1,0]" if qb == 0 else "op_sel:[0,1]")
                for i in range(4): k.op("v_cvt_pk_bf16_f32", V(b + i), V(b + 2 * i), V(b + 2 * i + 1))
                k.op("buffer_store_dwordx4", V(b, 4), V(vL16), S(sWS, 4), S(sT0 if qb else (sCa if sub == 0 else sCb)),
                     mods=f"offen offset:{ks*1024}" + (" sc1" if fuse3 else ""))
    k.op("v_mov_b32", V(21), S(sThr))
    k.op("v_add_u32", V(vT), 32768, V(vL16))
    if park:
        k.wait(vm=24)
        k.op("s_barrier")
    for f in range(16): k.op("ds_read_b128", A(f * 4, 4), V(vT), mods=f"offset:{f*1024}")
    zi = 0
    for f in range(16):
        kb, ds = f >> 2, f & 3
        k.wait(lgkm=15 - f)
        for sub in range(2):
            for qb in range(2):
                d = V(Sreg(sub, 0) + qb * 16 + kb * 4, 4)
                mf(d, A(f * 4, 4), V(Qreg(sub, qb, ds), 4), "0" if ds == 0 else d)
                for _ in range(2):
                    k.op("v_accvgpr_write_b32", A(OA + zi), 0); zi += 1
    k.wait(vm=0 if fuse3 else 12)
    k.op("s_barrier")
    if fuse3:
        k.op("s_lshl_b32", S(sT0), S(sP), 8)
        k.op("s_lshl_b32", S(sT1), S(sH), 2)
        k.op("s_add_u32", S(sT0), S(sT0), S(sT1))
        k.op("s_add_u32", S(sT0), S(sT0), FLAG2_OFF + 128)
        one_lane_store(k, sW, sWS, [sT0], 1, vT + 4)
    m0K()
    k.op("v_add_u32", V(vA), 65536, V(vL16))
    ldK(0)(); ldK(1)()
    for f in range(DA): rd(f, False)
    lab = k.newlabel("nomask0")
    k.op("s_cmp_lg_u32", S(sNa), 1); k.op("s_cbranch_scc1", lab)
    mask_block(0, 0)
    k.label(lab)
    for sub in range(2):
        for qb in range(2):
            rowmax(sub, 0, qb, vT + 2)
            n0 = Ngm(sub, qb)
            for i in range(4): k.op("v_sub_f32", V(n0 + i), 0, V(vT + 2))
            for e in range(0, 16, 2): k.op("v_pk_add_f32", P(Sreg(sub, 0) + 16 * qb + e), P(Sreg(sub, 0) + 16 * qb + e), P(n0))
    for n in range(16):
        for sub in range(2):
            soft_exp(sub, 0, n)
        for sub in range(2):
            if n % 2 == 0 and n: soft_cvt(sub, 0, n)
    def pf_k3():
        load_srd(k, sWQ, "wo", 86); load_srd(k, sW1, "w2", 96)
        k.op("s_bfe_u32", S(sT0), "s2", "0x20001")
        k.op("s_lshr_b32", S(sT2), "s2", 3)
        k.op("s_lshl_b32", S(sT2), S(sT2), 2)
        k.op("s_add_u32", S(sT2), S(sT2), S(sW))
        k.op("s_lshl_b32", S(sT1), S(sT0), 20)
        k.op("s_lshl_b32", S(sSo), S(sT2), 13)
        k.op("s_add_u32", S(sT1), S(sT1), S(sSo))
        k.op("v_lshlrev_b32", V(vT), 7, V(vL))
        k.op("buffer_load_dword", V(12), V(vT), S(sWQ, 4), S(sT1), mods="offen", dummy=True)
        k.op("s_mul_i32", S(sT1), S(sT0), 384 * 1024)
        k.op("s_mul_i32", S(sT0), S(sT2), 3072)
        k.op("s_add_u32", S(sT1), S(sT1), S(sT0))
        k.op("v_and_b32", V(vT + 2), 31, V(vL))
        k.op("v_lshlrev_b32", V(vT + 2), 7, V(vT + 2))
        k.op("buffer_load_dword", V(12), V(vT + 2), S(sW1, 4), S(sT1), mods="offen", dummy=True)
        pf_code(k, sB1, "k3_kernel", "k3_end-k3_kernel", vT, vL, sSo, 12)
    if pf3 == 3: pf_k3()
    stp.stamp()
    k.op("s_cmp_lt_u32", 1, S(sNa))
    k.op("s_cbranch_scc0", "k2_DL0")
    ool = []
    sl_hooks = []
    def maskif(sub, par):
        lab, lab2 = k.newlabel("nomask"), k.newlabel("domask")
        k.op("s_cmp_eq_u32", S(sT), S(sNa if sub == 0 else sNb)); k.op("s_cbranch_scc1", lab2)
        k.label(lab)
        ool.append((lab2, lab, sub, par))
    for par in range(2):
        k.label(f"k2_DD{par}")
        phaseA(par, [0, 1], [0, 1])
        maskif(0, 1 - par)
        phaseB(par, [0, 1], [0, 1], tailops=nx_items())
        k.op("s_cmp_le_u32", S(sT), S(sNa))
        k.op("s_cbranch_scc0", f"k2_DL{1-par}")
        if par == 1: k.op("s_branch", "k2_DD0")
    for par in range(2):
        k.label(f"k2_DL{par}")
        phaseA(par, [1], [0, 1])
        phaseB(par, [0, 1], [1], tailops=nx_items())
        epilogue(0, par)
        if pf3 == 2: pf_k3()
        k.op("s_branch", f"k2_SS{1-par}")
    for par in range(2):
        k.label(f"k2_SS{par}")
        phaseA(par, [1], [1])
        maskif(1, 1 - par)
        phaseB(par, [1], [1], tailops=nx_items())
        k.op("s_cmp_le_u32", S(sT), S(sNb))
        k.op("s_cbranch_scc0", f"k2_SL{1-par}")
        if par == 1: k.op("s_branch", "k2_SS0")
    for par in range(2):
        k.label(f"k2_SL{par}")
        if pf3 == 1: pf_k3()
        if early3: sl_hooks.append(len(k.ins))
        phaseA(par, [], [1])
        k.nop(2)
        phaseB(par, [1], [], bar="w01")
        if par == 0: k.op("s_branch", "k2_fin")
    k.label("k2_fin")
    stp.stamp()
    if early3:
        e2, eMt, eNt, eS, eRot, eAo, eWc, eAc, eMa = 12, 16, 17, 18, 19, 28, 29, 30, 31
        ev = 7
        def e_setup():
            load_srd(k, e2, "w2", 96)
            k.op("s_bfe_u32", S(eS), "s2", "0x20001")
            k.op("s_and_b32", S(eMt), "s2", 1)
            k.op("s_lshl_b32", S(eMt), S(eMt), 3)
            k.op("s_bfe_u32", S(eNt), "s2", "0x30003")
            k.op("s_add_u32", S(eMt), S(eMt), S(eNt))
            k.op("s_lshr_b32", S(eNt), "s2", 6)
            k.op("s_add_u32", S(eRot), S(eMt), S(eNt))
            k.op("s_and_b32", S(eRot), S(eRot), 3)
            k.op("s_lshl_b32", S(eAo), S(eMt), 3)
            k.op("s_lshl_b32", S(eWc), S(sW), 1)
            k.op("s_add_u32", S(eAo), S(eAo), S(eWc))
            k.op("s_mul_i32", S(eAo), S(eAo), 44032)
            k.op("s_add_u32", S(eAo), S(eAo), HF_OFF)
            k.op("v_mov_b32", V(ev), V(vL16))
            k.op("v_add_u32", V(ev + 1), 44032 - 1024, V(vL16))
            k.op("v_lshlrev_b32", V(ev + 2), 1, V(g))
            k.op("v_xor_b32", V(ev + 2), V(ev + 2), V(l15))
            k.op("v_lshlrev_b32", V(ev + 2), 4, V(ev + 2))
            k.op("v_lshl_add_u32", V(ev + 2), V(g), 10, V(ev + 2))
            k.op("s_lshl_b32", S(eWc), S(eNt), 8)
            k.op("s_lshl_b32", S(eAc), S(sW), 13)
            k.op("s_add_u32", S(eWc), S(eWc), S(eAc))
            k.op("v_add_u32", V(ev + 2), S(eWc), V(ev + 2))
            k.op("s_and_b32", S(eWc), S(sW), 1)
            k.op("s_lshl_b32", S(eWc), S(eWc), 7)
            k.op("v_xor_b32", V(ev + 2), S(eWc), V(ev + 2))
            k.op("v_add_u32", V(ev + 3), 4096 - 1024, V(ev + 2))
            k.op("s_lshl_b32", S(eMa), S(sW), 11)
            k.op("s_sub_u32", S(eWc), 15, S(eMt))
            k.op("s_min_u32", S(eMt), S(eMt), S(eWc))
            k.op("s_lshl_b32", S(eMt), S(eMt), 8)
            k.op("s_add_u32", S(eMt), S(eMt), FLAG2_OFF + 128)
            k.op("v_and_b32", V(ev + 4), 7, V(vL))
            k.op("s_lshl_b32", S(eWc), S(eS), 3)
            k.op("v_add_u32", V(ev + 4), S(eWc), V(ev + 4))
            k.op("v_lshlrev_b32", V(ev + 4), 2, V(ev + 4))
        e_poll = lambda: k.op("buffer_load_dword", V(ev + 5), V(ev + 4), S(sWS, 4), S(eMt), mods="offen sc1")
        def e_issue(tag):
            k.wait(vm=8, lgkm=0)
            spin_until(k, f"k2_sh{tag}", e_poll, lambda: k.op("v_cmp_ne_u32", "vcc", 1, V(ev + 5)), eAc, sleep=8)
            k.op("s_barrier")
            for st in range(3):
                k.op("s_add_u32", S(eNt), S(eRot), st)
                k.op("s_cmp_ge_u32", S(eNt), 3)
                k.op("s_cselect_b32", S(eWc), 3, 0)
                k.op("s_sub_u32", S(eNt), S(eNt), S(eWc))
                k.op("s_mul_i32", S(eWc), S(eS), 6)
                k.op("s_add_u32", S(eNt), S(eNt), S(eWc))
                k.op("s_lshl_b32", S(eWc), S(eNt), 16)
                k.op("s_lshl_b32", S(eNt), S(eNt), 1)
                for u in range(2):
                    k.op("s_add_u32", "m0", S(eMa), st * 32768 + u * 16384 + 8192)
                    k.op("s_add_u32", S(eAc), S(eNt), u)
                    for j in range(2):
                        k.op("buffer_load_dwordx4", V(ev + 2 + j), S(e2, 4), S(eWc), mods=f"offen offset:{j*1024} lds")
                    k.op("s_add_u32", "m0", S(eMa), st * 32768 + u * 16384)
                    k.op("s_add_u32", S(eWc), S(eWc), 32768)
                    k.op("s_min_u32", S(eAc), S(eAc), 42)
                    k.op("s_lshl_b32", S(eAc), S(eAc), 10)
                    k.op("s_add_u32", S(eAc), S(eAc), S(eAo))
                    for j in range(2):
                        k.op("buffer_load_dwordx4", V(ev + j), S(sWS, 4), S(eAc), mods=f"offen offset:{j*1024} sc1 lds")
        for pos in reversed(sl_hooks):
            n0 = len(k.ins)
            e_setup(); e_poll()
            blk = k.ins[n0:]; del k.ins[n0:]
            k.ins[pos:pos] = blk
        epilogue(1, 0)
        e_issue(0)
    else:
        epilogue(1, 0)
    if stamps:
        k.wait(vm=0, lgkm=0)
        stp.stamp()
        stp.flush(sWS, sW, 13)
    if fuse3:
        k.op("s_lshl_b32", S(sT0), S(sP), 8)
        k.op("s_lshl_b32", S(sT1), S(sH), 2)
        k.op("s_add_u32", S(sT0), S(sT0), S(sT1))
        k.op("s_add_u32", S(96), S(sT0), FLAG2_OFF)
        k.wait(lgkm=0)
        k.raw("  s_branch k3_kernel")
    k.op("s_endpgm")
    for (lab2, lab, sub, par) in ool:
        k.label(lab2)
        if pf3 == 4 and sub == 1:
            k.op("s_lshr_b32", S(sT2), "s2", 3)
            k.op("s_lshl_b32", S(sT2), S(sT2), 2)
            k.op("s_add_u32", S(sT2), S(sT2), S(sW))
            k.op("s_lshl_b32", S(sSo), S(sT2), 13)
            pf_code(k, sB1, "k3_kernel", "k3_end-k3_kernel", vT, vL, sSo, 130)
        if pf3 == 5 and sub == 1:
            n0 = len(k.ins); pf_k3()
            for i in k.ins[n0:]:
                if i.mn == "buffer_load_dword": i.ops[0] = "v130"
        k.nop(8)
        mask_block(sub, par)
        k.op("s_branch", lab)
    sU, sUo = 60, 61
    for sub, sites in sorted(slow_sites.items()):
        s0 = Sreg(sub, 0)
        m = [Ngm(sub, 0), Ngm(sub, 1)]
        k.label(f"k2_slow_{sub}")
        k.nop(8)
        if mark:
            k.op("s_mov_b32", S(sLd), STAMP_OFF + 0xc0000)
            k.op("v_mov_b32", V(vT), 0); k.op("v_mov_b32", V(vT + 1), "s2")
            k.op("buffer_store_dword", V(vT + 1), V(vT), S(sWS, 4), S(sLd), mods="offen sc1")
        for i in range(64): k.op("v_accvgpr_write_b32", A(OA + sub * 64 + i), 0)
        for qb in range(2):
            k.op("v_mov_b32", V(m[qb]), f32(-1e30))
            for i in range(4): k.op("v_mov_b32", V(Lac(sub, qb) + i), 0)
        k.op("s_mov_b32", S(sU), 1)
        k.op("s_mov_b32", S(sUo), 0)
        loop = f"k2_slowloop_{sub}"
        k.label(loop)
        for c in range(4):
            k.op("s_add_u32", S(sLd), S(sUo), c * 4096)
            for i in range(4): k.op("buffer_load_dwordx4", A((c * 4 + i) * 4, 4), V(vL16), S(sK, 4), S(sLd), mods=f"offen offset:{i*1024}" + SC)
        k.wait(vm=0)
        for f in range(16):
            kb, ds = f >> 2, f & 3
            for qb in range(2):
                d = V(s0 + qb * 16 + kb * 4, 4)
                mf(d, A(f * 4, 4), V(Qreg(sub, qb, ds), 4), "0" if ds == 0 else d)
        for c in range(4):
            k.op("s_add_u32", S(sLd), S(sUo), c * 4096 + 16384)
            for i in range(4): k.op("buffer_load_dwordx4", A((c * 4 + i) * 4, 4), V(vL16), S(sV, 4), S(sLd), mods=f"offen offset:{i*1024}" + SC)
        lab = k.newlabel("snomask")
        k.op("s_cmp_lg_u32", S(sU), S(sNa if sub == 0 else sNb)); k.op("s_cbranch_scc1", lab)
        mask_block(sub, 0)
        k.label(lab)
        for qb in range(2):
            al = m[qb] + 1
            rowmax(sub, 0, qb, vT + 3)
            k.op("v_max_f32", V(vT + 3), V(vT + 3), V(m[qb]))
            k.op("v_sub_f32", V(al), V(m[qb]), V(vT + 3))
            k.op("v_mov_b32", V(m[qb]), V(vT + 3))
            k.op("v_exp_f32", V(al), V(al))
            for e in range(16): k.op("v_sub_f32", V(s0 + 16 * qb + e), V(s0 + 16 * qb + e), V(m[qb]))
            for i in range(4): k.op("v_mul_f32", V(Lac(sub, qb) + i), V(Lac(sub, qb) + i), V(al))
            for db in range(8):
                for i in range(4):
                    ar = OA + sub * 64 + (db * 2 + qb) * 4 + i
                    k.op("v_accvgpr_read_b32", V(vT + (i & 1)), A(ar))
                    k.op("v_mul_f32", V(vT + (i & 1)), V(vT + (i & 1)), V(al))
                    k.op("v_accvgpr_write_b32", A(ar), V(vT + (i & 1)))
        for n in range(33):
            if n < 32: soft_exp(sub, 0, n)
            else: k.nop(1)
            if n % 2 == 0 and n: soft_cvt(sub, 0, n)
        k.wait(vm=0)
        k.nop(1)
        for f in range(16):
            k32, db = f >> 3, f & 7
            for qb in range(2):
                d = A(OA + sub * 64 + (db * 2 + qb) * 4, 4)
                mf(d, A(f * 4, 4), V(s0 + qb * 16 + k32 * 8, 4), d)
            if f % 4 == 3:
                qb = (f >> 2) & 1
                d = V(Lac(sub, qb), 4)
                mf(d, V(ON1, 4), V(s0 + qb * 16 + k32 * 8, 4), d)
        k.op("s_add_u32", S(sUo), S(sUo), 16384)
        k.op("s_add_u32", S(sU), S(sU), 1)
        k.nop(8)
        k.op("s_cmp_le_u32", S(sU), S(sNa if sub == 0 else sNb))
        k.op("s_cbranch_scc1", loop)
        for (site, lab) in sites[:-1]:
            k.op("s_cmp_eq_u32", S(sRet), site); k.op("s_cbranch_scc1", lab)
        k.op("s_branch", sites[-1][1])
    k.label("k2_end")
    k.op("s_endpgm")
    return k

if __name__ == "__main__":
    k = build_k2()
    for e in k.check_hazards(): print(e)
    for e in k.check_waits(): print(e)
    print(k.maxregs(), len(k.ins))
```

```python
from common import *
from k1_v1 import layernorm
import copy

def build_k1(store_mods=" sc1", stamps=False, pf2=True, pf2at=9, D=5, pfself=True, krot=3, npark=16, pfw='wc', zk=10, pfx=False, zs=2, fs=3, **_):
    assert pf2at <= 12
    k = Kern("k1_kernel")
    vq, lq = Q(k, "vmcnt", 63), Q(k, "lgkmcnt", 15)
    stp = Stamps(k, stamps, 60, 0, lq, maxn=10)
    sWS, sC, sWK, sWV, sX = 8, 12, 16, 20, 24
    sT0, sT1, sT2, sKV, sW, sH, sJ = 28, 29, 30, 31, 32, 33, 35
    sSo, sSo2, sAo, sSt, sW8k, sR, sW4k = 36, 37, 42, 43, 44, 45, 48
    sFL, sFA, sF2, sF3, sDb = 53, 54, 55, 56, 4
    CHA = 84
    vL, vL16 = 1, 2
    TA, VA, VW, AAr, WF = 16, 32, 36, 40, 52
    AFB, X0, X1, VZ, VW2 = 128, 224, 228, 232, 46
    PK = 192
    g, l15, r_, cc, g1, t0, t1, p8 = 4, 5, 6, 7, 8, 9, 10, 11
    k.op("s_cmp_ge_u32", "s2", 256)
    k.op("s_cbranch_scc1", "k1_end")
    if pfself:
        pf_self(k, "k1_end", vt=14); vq.issue()
    k.op("s_load_dwordx4", S(84, 4), S(0, 2), KA["x"])
    k.op("s_load_dwordx4", S(88, 4), S(0, 2), KA["wuk"])
    k.op("s_load_dwordx4", S(92, 4), S(0, 2), KA["dbg"])
    k.op("s_load_dwordx2", S(96, 2), S(0, 2), KA["wq"])
    k.op("s_load_dwordx2", S(98, 2), S(0, 2), KA["w1"])
    k.op("v_and_b32", V(vL), 63, "v0")
    k.op("v_lshrrev_b32", V(t0), 6, "v0")
    k.op("s_and_b32", S(sT0), "s2", 7)
    k.op("v_readfirstlane_b32", S(sW), V(t0))
    k.op("s_lshr_b32", S(sT1), "s2", 3)
    k.op("s_and_b32", S(sT2), S(sT1), 3)
    k.op("s_lshl_b32", S(sH), S(sT0), 2)
    k.op("s_add_u32", S(sH), S(sH), S(sT2))
    k.op("s_lshr_b32", S(sJ), S(sT1), 2)
    k.op("s_lshr_b32", S(sKV), S(sW), 1)
    k.op("v_lshlrev_b32", V(vL16), 4, V(vL))
    k.op("v_lshrrev_b32", V(g), 4, V(vL))
    k.op("v_and_b32", V(l15), 15, V(vL))
    k.op("v_bfe_u32", V(r_), V(vL), 2, 2)
    k.op("v_and_b32", V(cc), 3, V(vL))
    k.op("v_and_b32", V(g1), 1, V(g))
    k.op("v_and_b32", V(p8), 7, V(vL))
    k.op("s_lshl_b32", S(sW4k), S(sW), 12)
    k.op("s_lshl_b32", S(sW8k), S(sW), 13)
    k.op("v_lshlrev_b32", V(t0), 1, V(g))
    k.op("v_xor_b32", V(t0), V(t0), V(l15))
    k.op("v_lshlrev_b32", V(t0), 4, V(t0))
    k.op("v_lshl_add_u32", V(t0), V(g), 13, V(t0))
    k.op("s_lshl_b32", S(sT0), S(sW), 17)
    k.op("s_lshl_b32", S(sT1), S(sH), 8)
    k.op("s_add_u32", S(sT0), S(sT0), S(sT1))
    k.op("v_add_u32", V(VW), S(sT0), V(t0))
    k.op("v_add_u32", V(VW + 1), 32768 - 1024, V(VW))
    k.op("v_xor_b32", V(VW + 2), 128, V(VW))
    k.op("v_add_u32", V(VW + 2), 2 * (32768 - 1024), V(VW + 2))
    k.op("v_add_u32", V(VW + 3), 32768 - 1024, V(VW + 2))
    k.op("s_and_b32", S(sT0), S(sW), 1)
    k.op("s_lshl_b32", S(sT0), S(sT0), 7)
    k.op("v_xor_b32", V(t0), S(sT0), V(t0))
    k.op("s_lshl_b32", S(sT0), S(sW), 16)
    k.op("s_add_u32", S(sT0), S(sT0), S(sT1))
    k.op("v_add_u32", V(VW2), S(sT0), V(t0))
    k.op("v_add_u32", V(VW2 + 1), 32768 - 1024, V(VW2))
    k.op("v_lshrrev_b32", V(t1), 3, V(vL))
    k.op("v_xor_b32", V(t0), V(p8), V(g))
    k.op("v_lshlrev_b32", V(t0), 4, V(t0))
    k.op("v_lshl_add_u32", V(t0), V(t1), 10, V(t0))
    k.op("s_lshl_b32", S(sAo), S(sJ), 18)
    k.op("s_lshl_b32", S(sT0), S(sW), 16)
    k.op("s_add_u32", S(sAo), S(sAo), S(sT0))
    k.op("v_add_u32", V(VA), S(sAo), V(t0))
    k.op("v_xor_b32", V(VA + 1), 64, V(VA))
    k.op("v_add_u32", V(VA + 1), 7168, V(VA + 1))
    k.op("v_add_u32", V(VA + 2), 2 * 7168, V(VA))
    k.op("v_add_u32", V(VA + 3), 2 * 7168, V(VA + 1))
    sKr, sW2k = 49, 50
    k.op("s_add_u32", S(sKr), S(sJ), S(sT2))
    k.op("s_and_b32", S(sKr), S(sKr), krot)
    k.op("s_lshl_b32", S(sW2k), S(sW), 11)
    k.op("s_lshl_b32", S(sR), "s2", 3)
    k.op("s_lshl_b32", S(sT1), S(sW), 1)
    k.op("s_add_u32", S(sR), S(sR), S(sT1))
    k.op("s_lshl_b32", S(sR), S(sR), 10)
    k.wait(lgkm=0)
    stp.stamp()
    load_srd(k, sX, "x", 84)
    k.op("buffer_load_dwordx4", V(X0, 4), V(vL16), S(sX, 4), S(sR), mods="offen"); vq.issue("ln")
    k.op("buffer_load_dwordx4", V(X1, 4), V(vL16), S(sX, 4), S(sR), mods="offen offset:1024"); vq.issue("ln")
    load_srd(k, sC, "ckv", 86); load_srd(k, sWK, "wuk", 88); load_srd(k, sWV, "wuv", 90)
    def aslot(s): return 65536 + (s % 3) * 32768
    def wslot(ks): return (ks % 4) * 16384
    def dma_w_items(ks):
        it = []
        for kv in range(2):
            def setup(kv=kv):
                k.op("s_add_u32", "m0", S(sW2k), wslot(ks) + kv * 8192)
                if kv == 0:
                    k.op("s_xor_b32", S(sSo), S(sKr), ks >> 1)
                    k.op("s_lshl_b32", S(sSo), S(sSo), 19)
                    if ks & 1: k.op("s_add_u32", S(sSo), S(sSo), 262144)
                else: k.op("s_nop", 0)
            it.append(setup)
            for i in range(2):
                def f(i=i, kv=kv):
                    k.op("buffer_load_dwordx4", V(VW2 + i), S(sWV if kv else sWK, 4), S(sSo), mods=f"offen offset:{i*1024} lds"); vq.issue(("W", ks))
                it.append(f)
        return it
    def dma_a_items(s, u):
        it = []
        def setup():
            k.op("s_add_u32", "m0", S(sW8k), aslot(s) + u * 4096)
            k.op("s_xor_b32", S(sSo), S(sKr), s)
            k.op("s_lshl_b32", S(sSo), S(sSo), 7)
            if u: k.op("s_add_u32", S(sSo), S(sSo), 32768)
        it.append(setup)
        for i in range(4):
            def f(i=i):
                k.op("buffer_load_dwordx4", V(VA + i), S(sC, 4), S(sSo), mods=f"offen offset:{i*1024} lds"); vq.issue(("A", s))
            it.append(f)
        return it
    for f in dma_w_items(0) + dma_a_items(0, 0) + dma_a_items(0, 1): f()
    late = dma_w_items(1) + dma_w_items(2) + dma_a_items(1, 0) + dma_a_items(1, 1)
    stp.stamp()
    load_srd(k, sWS, "ws", 94)
    k.op("v_lshl_or_b32", V(t1), V(g1), 2, V(r_))
    k.op("v_lshl_add_u32", V(t0), V(g), 3, V(r_))
    k.op("v_lshlrev_b32", V(t0), 8, V(t0))
    k.op("v_lshl_add_u32", V(t0), V(cc), 3, V(t0))
    k.op("s_lshl_b32", S(sT0), S(sKV), 13)
    k.op("v_add_u32", V(t0), S(sT0), V(t0))
    for nb in range(8):
        k.op("v_xor_b32", V(12), nb, V(t1))
        k.op("v_lshl_add_u32", V(TA + nb), V(12), 5, V(t0))
    k.op("v_lshrrev_b32", V(t1), 1, V(l15))
    k.op("v_xor_b32", V(t1), V(t1), V(g))
    k.op("v_lshlrev_b32", V(t1), 4, V(t1))
    k.op("v_lshl_add_u32", V(t1), V(l15), 7, V(t1))
    k.op("s_and_b32", S(sT0), S(sW), 1)
    k.op("s_lshl_b32", S(sT0), S(sT0), 14)
    k.op("s_add_u32", S(sT0), S(sT0), 65536)
    k.op("v_add_u32", V(AAr), S(sT0), V(t1))
    k.op("v_xor_b32", V(AAr + 1), 64, V(AAr))
    k.op("v_add_u32", V(AAr + 2), 65536, V(AAr))
    k.op("v_add_u32", V(AAr + 3), 65536, V(AAr + 1))
    k.op("s_lshl_b32", S(sSt), S(sH), 19)
    k.op("s_lshl_b32", S(sT1), S(sJ), 16)
    k.op("s_add_u32", S(sSt), S(sSt), S(sT1))
    k.op("s_and_b32", S(sT1), S(sW), 1)
    k.op("s_lshl_b32", S(sT1), S(sT1), 15)
    k.op("s_add_u32", S(sSt), S(sSt), S(sT1))
    k.op("s_mov_b32", S(sT1), VF_OFF)
    k.op("s_cmp_eq_u32", S(sKV), 0)
    k.op("s_cselect_b32", S(sT1), KF_OFF, S(sT1))
    k.op("s_add_u32", S(sSt), S(sSt), S(sT1))
    vLd, vLz = VZ, VZ + 1
    k.op("v_mov_b32", V(vLz), 0)
    k.op("s_lshl_b32", S(sFL), "s2", 2)
    k.op("s_add_u32", S(sFL), S(sFL), FL_OFF)
    k.op("s_lshl_b32", S(sFA), S(sH), 7)
    k.op("s_lshl_b32", S(sT1), S(sJ), 2)
    k.op("s_add_u32", S(sFA), S(sFA), S(sT1))
    k.op("s_add_u32", S(sFA), S(sFA), FA_OFF)
    k.op("s_lshl_b32", S(sF2), S(sJ), 8)
    k.op("s_lshl_b32", S(sT1), S(sH), 2)
    k.op("s_add_u32", S(sF2), S(sF2), S(sT1))
    k.op("s_add_u32", S(sF2), S(sF2), FLAG2_OFF)
    k.op("s_and_b32", S(sT1), "s2", 1)
    k.op("s_lshl_b32", S(sF3), S(sT1), 13)
    k.op("s_bfe_u32", S(sT1), "s2", "0x30003")
    k.op("s_lshl_b32", S(sT1), S(sT1), 10)
    k.op("s_add_u32", S(sF3), S(sF3), S(sT1))
    k.op("s_lshr_b32", S(sT1), "s2", 6)
    k.op("s_lshl_b32", S(sT1), S(sT1), 8)
    k.op("s_add_u32", S(sF3), S(sF3), S(sT1))
    k.op("s_and_b32", S(sT1), "s2", 6)
    k.op("s_lshl_b32", S(sT1), S(sT1), 1)
    k.op("s_add_u32", S(sF3), S(sF3), S(sT1))
    k.op("s_add_u32", S(sF3), S(sF3), FLAG_OFF)
    k.op("s_add_u32", S(57), S(sF2), 128)
    one_lane_store(k, sW, sWS, [sFL, sFA, sF2, sF3, 57], 0, VZ + 4)
    k.op("s_mov_b32", S(sDb), S(92))
    k.op("s_and_b32", S(sDb + 1), S(93), "0xffff")
    k.op("s_mov_b32", S(sDb + 2), 256)
    k.op("s_mov_b32", S(sDb + 3), "0x20000")
    GB = 131072
    LN2 = 84
    vq.need("ln")
    k.op("s_lshl_b32", S(sT1), S(sW), 5)
    k.op("s_add_u32", S(sT1), S(sT1), GB)
    k.op("v_lshlrev_b32", V(vLd), 7, V(vL))
    k.op("v_add_u32", V(vLd), S(sT1), V(vLd))
    k.op("s_lshl_b32", S(sT1), S(sW), 4)
    k.op("s_add_u32", S(sT1), S(sT1), GB + 8192)
    k.op("v_mov_b32", V(VZ + 2), S(sT1))
    ln = Kern("ln")
    for r, X in enumerate((X0, X1)):
        layernorm(ln, X, LN2 + 4, LN2 + 8, LN2 + 16)
        layernorm(ln, LN2 + 4, LN2 + 24, LN2 + 8, LN2 + 16, stats_only=True)
        ln.op("ds_write_b128", V(vLd), V(LN2 + 4, 4), mods=f"offset:{16*r}")
        ln.op("ds_write_b64", V(VZ + 2), V(LN2 + 24, 2), mods=f"offset:{8*r}")
        ln.wait(lgkm=0)
    for i, ins in enumerate(ln.ins):
        k.ins.append(ins)
        if i % 12 == 5 and late: late.pop(0)()
    for f in late: f()
    k.op("s_lshl_b32", S(sT1), S(sW), 11)
    k.op("s_add_u32", S(sT1), S(sT1), GB)
    k.op("v_add_u32", V(vLd), S(sT1), V(vL16))
    k.op("v_lshrrev_b32", V(VZ + 3), 3, V(vL))
    k.op("v_lshlrev_b32", V(VZ + 3), 8, V(VZ + 3))
    k.op("v_lshl_add_u32", V(VZ + 3), V(p8), 4, V(VZ + 3))
    k.op("s_lshr_b32", S(sR + 1), "s2", 1)
    k.op("s_lshl_b32", S(sR + 1), S(sR + 1), 14)
    k.op("s_and_b32", S(sT1), "s2", 1)
    k.op("s_lshl_b32", S(sT1), S(sT1), 7)
    k.op("s_add_u32", S(sR + 1), S(sR + 1), S(sT1))
    k.op("s_add_u32", S(sR + 1), S(sR + 1), S(sW4k))
    k.op("s_lshl_b32", S(sR + 2), "s2", 6)
    k.op("s_add_u32", S(sR + 2), S(sR + 2), YF_OFF)
    k.op("v_and_b32", V(VZ + 2), 48, V(vL16))
    k.op("v_add_u32", V(LN2 + 30), GB + 8192, V(VZ + 2))
    k.op("s_barrier")
    k.op("ds_read_b128", V(LN2, 4), V(vLd))
    k.op("ds_read_b128", V(LN2 + 4, 4), V(vLd), mods="offset:1024")
    k.op("ds_read_b128", V(LN2 + 8, 4), V(LN2 + 30))
    k.wait(lgkm=0)
    k.op("buffer_store_dwordx4", V(LN2, 4), V(VZ + 3), S(sWS, 4), S(sR + 1), mods="offen sc1"); vq.issue("lnst")
    k.op("buffer_store_dwordx4", V(LN2 + 4, 4), V(VZ + 3), S(sWS, 4), S(sR + 1), mods="offen offset:2048 sc1"); vq.issue("lnst")
    k.op("buffer_store_dwordx4", V(LN2 + 8, 4), V(VZ + 2), S(sWS, 4), S(sR + 2), mods="offen sc1"); vq.issue("lnst")

    def pf_k2():
        k.op("s_lshr_b32", S(sT1), "s2", 3)
        k.op("s_lshl_b32", S(sT1), S(sT1), 2)
        k.op("s_add_u32", S(sT1), S(sT1), S(sW))
        k.op("s_and_b32", S(sT0), "s2", 7)
        if 'w' in pfw:
            load_srd(k, sX, "wq", 96)
            k.op("v_bfe_u32", V(12), V(vL), 3, 2)
            k.op("v_lshlrev_b32", V(13), 13, V(12))
            k.op("v_lshl_add_u32", V(13), V(p8), 7, V(13))
            k.op("s_lshl_b32", S(57), S(sT1), 15)
            k.op("s_lshl_b32", S(sT2), S(sT0), 10)
            k.op("s_add_u32", S(57), S(57), S(sT2))
            k.op("buffer_load_dword", V(15), V(13), S(sX, 4), S(57), mods="offen", dummy=True); vq.issue()
            load_srd(k, sX, "w1", 98)
            k.op("v_mul_u32_u24", V(13), 2752, V(12))
            k.op("v_lshl_add_u32", V(13), V(p8), 6, V(13))
            k.op("s_mul_i32", S(57), S(sT1), 4 * 2752)
            k.op("s_mul_i32", S(sT2), S(sT0), 384)
            k.op("s_add_u32", S(57), S(57), S(sT2))
            k.op("buffer_load_dword", V(15), V(13), S(sX, 4), S(57), mods="offen", dummy=True); vq.issue()
        k.op("s_lshl_b32", S(57), S(sT1), 13)
        if 'c' in pfw: pf_code(k, sX, "k2_kernel", "k2_slow_0-k2_kernel", 13, vL, 57, 15); vq.issue()
        if '3' in pfw: pf_code(k, sX, "k3_kernel", "k3_end-k3_kernel", 13, vL, 57, 15); vq.issue()

    k.op("s_cmp_lg_u32", S(sKV), 0)
    k.op("s_cbranch_scc1", "k1_V")
    vq0, lq0, n0 = copy.deepcopy((vq.q, vq.ever)), copy.deepcopy((lq.q, lq.ever)), stp.n
    for kv in range(2):
        if kv:
            k.label("k1_V")
            vq.q, vq.ever = copy.deepcopy(vq0); lq.q, lq.ever = copy.deepcopy(lq0); stp.n = n0
        onst = lambda i: vq.issue() if i.kind == "vstore" else None
        q1, q2 = FillQ(k), FillQ(k, on_emit=onst)
        K2VW, K2VW1, sLd = 108, 112, 98
        def k2_setup():
            e = Kern("e")
            load_srd(e, 12, "wq", 96); load_srd(e, 16, "w1", 98)
            for i in range(4): e.op("v_mov_b32", V(K2VW + i), V(VW + i))
            e.op("v_lshlrev_b32", V(84), 1, V(g1))
            e.op("v_xor_b32", V(84), V(84), V(p8))
            e.op("v_lshlrev_b32", V(84), 4, V(84))
            e.op("v_lshrrev_b32", V(85), 3, V(vL))
            e.op("v_mul_u32_u24", V(85), 2752, V(85))
            e.op("s_mul_i32", S(38), S(sW), 32 * 2752)
            e.op("s_mul_i32", S(39), S(sH), 96)
            e.op("s_add_u32", S(38), S(38), S(39))
            e.op("v_add_u32", V(85), S(38), V(85))
            e.op("v_add_u32", V(K2VW1), V(85), V(84))
            e.op("v_xor_b32", V(84), 64, V(84))
            e.op("v_add_u32", V(K2VW1 + 1), V(85), V(84))
            e.op("v_add_u32", V(K2VW1 + 1), 8 * 2752 - 1024, V(K2VW1 + 1))
            e.op("v_add_u32", V(K2VW1 + 2), 2 * (8 * 2752 - 1024), V(K2VW1))
            e.op("v_add_u32", V(K2VW1 + 3), 2 * (8 * 2752 - 1024), V(K2VW1 + 1))
            e.op("s_lshl_b32", S(38), S(sJ), 17)
            e.op("s_lshl_b32", S(39), S(sW), 15)
            e.op("s_add_u32", S(sLd), S(38), S(39))
            e.op("s_add_u32", S(sLd + 1), S(sLd), 16384)
            e.op("s_sub_u32", S(sLd + 2), 1920 * 1024, S(38))
            e.op("s_add_u32", S(sLd + 2), S(sLd + 2), S(39))
            e.op("s_add_u32", S(sLd + 3), S(sLd + 2), 16384)
            return e
        def k2_pages():
            it = []
            for pg, (srd, vb, so) in enumerate([(16, K2VW1, 0), (12, K2VW, 0), (12, K2VW, 524288)]):
                def setup(pg=pg, so=so):
                    k.op("s_add_u32", "m0", S(sW4k), pg * 16384)
                    k.op("s_mov_b32", S(41), so)
                it.append(setup)
                for i in range(4):
                    def f(i=i, srd=srd, vb=vb):
                        k.op("buffer_load_dwordx4", V(vb + i), S(srd, 4), S(41), mods=f"offen offset:{i*1024} lds"); vq.issue()
                    it.append(f)
            return it
        def k2_xn(ks):
            it = []
            for rb in range(4):
                def f(rb=rb):
                    k.op("buffer_load_dwordx4", A((ks * 4 + rb) * 4, 4), V(vL16), S(sWS, 4), S(sLd + rb), mods=f"offen offset:{ks*1024} sc1"); vq.issue()
                it.append(f)
            return it
        def acc(rb, nb): return (rb * 8 + nb) * 4
        def chunk(c):
            if kv == 0: rb, ds = c >> 2, c & 3; return acc(rb, 2 * ds), acc(rb, 2 * ds + 1)
            kb, db = c >> 3, c & 7; return acc(2 * kb, db), acc(2 * kb + 1, db)
        def epi_kern(c, park=None):
            e = Kern("e")
            a, b = chunk(c)
            t = PK + 8 * (epi_n[0] % 4); epi_n[0] += 1
            for i in range(4): e.op("v_accvgpr_read_b32", V(t + i), A(a + i))
            for i in range(4): e.op("v_accvgpr_read_b32", V(t + 4 + i), A(b + i))
            d = t if park is None else park
            for i in range(4): e.op("v_cvt_pk_bf16_f32", V(d + i), V(t + 2 * i), V(t + 2 * i + 1))
            if park is None:
                e.op("s_add_u32", S(sSo2), S(sSt), c * 1024)
                e.op("buffer_store_dwordx4", V(t, 4), V(vL16), S(sWS, 4), S(sSo2), mods=f"offen{store_mods}")
            return e
        epi_n = [0]
        def ready_nb(c): return (2 * (c & 3) + 1) if kv == 0 else (c & 7)
        def zst():
            lab = k.newlabel("noz")
            k.op("v_mov_b32", V(VZ + 5), 1)
            k.op("s_cmp_lg_u32", S(sW), 0); k.op("s_cbranch_scc1", lab)
            k.op("s_mov_b64", "exec", 1)
            k.op("buffer_store_byte", V(VZ + 5), V(vLz), S(sDb, 4), "s2", mods="offen sc1")
            k.op("s_mov_b64", "exec", -1)
            k.label(lab)
        pz = lambda: k.op("buffer_load_dword", V(242), V(243), S(sDb, 4), 0, mods="offen sc1")
        pl = lambda: k.op("buffer_load_dword", V(241), V(240), S(sWS, 4), S(sFL), mods="offen sc1")
        def switch(ks):
            need = [("W", ks)] + ([("A", ks >> 1)] if ks % 2 == 0 else [])
            vq.need(*need, cnt=[4, 8][:len(need)])
            if ks == fs: vq.need("lnst", cnt=[3])
            k.op("s_barrier")
            if ks == 0: stp.stamp()
            if ks == zk + 2:
                vq.need("pz")
                spin_until(k, f"k1_sz{kv}", pz, lambda: k.op("v_cmp_ne_u32", "vcc", "0x01010101", V(242)), sT1)
            if ks == zk + 5:
                vq.need("pp")
                spin_until(k, f"k1_sp{kv}", pl, lambda: k.op("v_cmp_ne_u32", "vcc", 1, V(241)), sT1)
            q1.flush()
            if ks >= 1 and ks + 2 < 16:
                for f in dma_w_items(ks + 2): q1.add(f)
            sN = ((ks + 1) >> 1) + 1
            if ks >= 1 and sN < 8 and sN >= 2:
                for f in dma_a_items(sN, (ks + 1) & 1): q1.add(f)
            if ks == zs: q1.add(zst)
            if ks == fs: q1.add(lambda: one_lane_store(k, sW, sWS, [sFL], 1, VZ + 4))
            if ks == zk:
                def a():
                    k.op("v_lshlrev_b32", V(243), 2, V(vL)); pz(); vq.issue("pz")
                q1.add(a)
            if ks == zk + 3:
                def a():
                    k.op("s_lshl_b32", S(sT1), S(sJ), 6)
                    k.op("s_sub_u32", S(sT2), 960, S(sT1))
                    k.op("v_mov_b32", V(240), S(sT1))
                    k.op("v_mov_b32", V(241), S(sT2))
                    k.op("v_cmp_eq_u32", "vcc", 0, V(g1))
                    k.op("s_mov_b32", S(sFL), FL_OFF)
                    k.nop(1)
                    k.op("v_cndmask_b32", V(240), V(241), V(240), "vcc")
                    k.op("v_lshl_add_u32", V(240), V(l15), 2, V(240))
                    pl(); vq.issue("pp")
                q1.add(a)
            if pf2 and pf2at == 0 and ks == 13: q1.add(pf_k2)
            if ks == zk + 5 and pfx:
                def a():
                    k.op("s_lshl_b32", S(sT0), S(sJ), 17)
                    k.op("s_lshl_b32", S(sT1), S(sW), 15)
                    k.op("s_and_b32", S(sT2), S(sH), 3)
                    k.op("s_lshl_b32", S(sT2), S(sT2), 12)
                    k.op("s_add_u32", S(sT1), S(sT1), S(sT2))
                    k.op("s_add_u32", S(57), S(sT0), S(sT1))
                    k.op("v_lshrrev_b32", V(12), 5, V(vL))
                    k.op("v_and_b32", V(13), 31, V(vL))
                    k.op("v_lshlrev_b32", V(13), 7, V(13))
                    k.op("v_lshl_add_u32", V(13), V(12), 14, V(13))
                    k.op("buffer_load_dword", V(15), V(13), S(sWS, 4), S(57), mods="offen sc1", dummy=True); vq.issue()
                    k.op("s_sub_u32", S(57), 1920 * 1024, S(sT0))
                    k.op("s_add_u32", S(57), S(57), S(sT1))
                    k.op("buffer_load_dword", V(15), V(13), S(sWS, 4), S(57), mods="offen sc1", dummy=True); vq.issue()
                q1.add(a)
            if ks == 14: q1.add_kern(k2_setup())
            for rb in range(8):
                def f(rb=rb):
                    off = aslot(ks >> 1) - 65536
                    wn = off // 65536
                    k.op("ds_read_b128", V(AFB + (ks % 2) * 32 + rb * 4, 4), V(AAr + 2 * wn + (ks & 1)), mods=f"offset:{off - wn*65536 + rb*2048}")
                    lq.issue(("a", ks))
                qa.add(f)
        qa = FillQ(k)
        def rd_w(n, i):
            ks, nb = n >> 3, n & 7
            if nb == 0 and i == 0: switch(ks)
            k.op("ds_read_b64_tr_b16", V(WF + (n % 8) * 4 + 2 * i, 2), V(TA + nb), mods=f"offset:{wslot(ks) + i*1024}")
            lq.issue(("w", n))
        rd_w(0, 0); rd_w(0, 1); qa.flush()
        for n in range(1, D):
            rd_w(n, 0); rd_w(n, 1)
        direct = list(range(32 - npark))
        done = set()
        for n in range(128):
            ks, nb = n >> 3, n & 7
            if n in (32, 64, 96): stp.stamp()
            if pf2 and pf2at and n == pf2at * 8 + 4: pf_k2()
            if ks == 15:
                for c in direct:
                    if c not in done and ready_nb(c) + 2 <= nb:
                        q2.add_kern(epi_kern(c)); done.add(c)
            lq.need(("w", n), ("a", ks), cnt=[2, 8])
            wf = V(WF + (n % 8) * 4, 4)
            for rb in range(8):
                d = A(acc(rb, nb), 4); af = V(AFB + (ks % 2) * 32 + rb * 4, 4)
                if kv == 0: k.op("v_mfma_f32_16x16x32_bf16", d, wf, af, "0" if ks == 0 else d)
                else: k.op("v_mfma_f32_16x16x32_bf16", d, af, wf, "0" if ks == 0 else d)
                if rb < 2 and n + D < 128: rd_w(n + D, rb)
                elif rb in (2, 4, 6) and len(qa): qa.emit(1)
                elif rb in (3, 7) or ks >= 14: q1.emit(1)
                if ks == 15: q2.emit(2)
        stp.stamp()
        q1.flush()
        k.op("s_barrier")
        stp.stamp()
        rest = [c for c in direct if c not in done]
        for c in [c for c in rest if c < 8]: q2.add_kern(epi_kern(c))
        pages = k2_pages()
        while len(q2):
            q2.emit(5)
            if pages: pages.pop(0)()
        stp.stamp()
        loads = pages + [f for ks in range(4) for f in k2_xn(ks)]
        def pv(i): return AFB + i if i < 64 else WF + (i - 64)
        for i, c in enumerate(range(32 - npark, 32)): q2.add_kern(epi_kern(c, park=pv(4 * i)))
        w = Kern("w")
        for i in range(4 * npark): w.op("v_accvgpr_write_b32", A(192 - 4 * npark + i), V(pv(i)))
        q2.add_kern(w)
        while len(q2) or loads:
            q2.emit(9)
            if loads: loads.pop(0)()
        for c in [c for c in rest if c >= 8]: q2.add_kern(epi_kern(c))
        q2.flush()
        k.op("s_add_u32", S(50), S(sSt), (32 - npark) * 1024)
        if stamps:
            stp.stamp()
            stp.flush(sWS, sW, 4)
        k.op("s_mov_b32", "s3", S(sFA))
        k.raw("  s_branch k2_kernel")
        k.op("s_endpgm")
    k.label("k1_end")
    k.op("s_endpgm")
    return k

if __name__ == "__main__":
    k = build_k1()
    for e in k.check_hazards(): print(e)
    for e in k.check_waits(): print(e)
    print(k.maxregs(), len(k.ins))
```
